```python
import torch

def _softmax(x, axis=-1):
    return torch.softmax(x, dim=axis)

def _gelu(x):
    return torch.nn.functional.gelu(x, approximate='tanh')

def _silu(x):
    return torch.nn.functional.silu(x)

def _sigmoid(x):
    return torch.sigmoid(x)

def _layernorm(x, axis=-1, eps=1e-05):
    m = x.mean(dim=axis, keepdim=True)
    v = x.var(dim=axis, keepdim=True, unbiased=False)
    return (x - m) / torch.sqrt(v + eps)

def _scatter_add(tgt, idx, src, axis=0):
    return tgt.clone().index_add_(axis, idx, src)

def _segment_sum(src, seg, n):
    out = torch.zeros((n,) + src.shape[1:], dtype=src.dtype)
    return out.index_add_(0, seg, src)

def _pad(x, pw):
    flat = tuple((v for pair in reversed(pw) for v in pair))
    return torch.nn.functional.pad(x, flat)
kernel_name = 'adaLN_cond__spectral_gfnet__glu_gated_swiglu__prompt'

def setup_inputs():

    _w = lambda a: (lambda t: t.to(torch.bfloat16) if t.is_floating_point() else t)(torch.as_tensor(a))

    def _A_setup():
        B, S, D = (1, 2048, 640)
        Df = D // 2 + 1
        return {'x': _w((lambda *s: torch.randn(*s, dtype=torch.bfloat16) * 0.05)(B, S, D)), 'w_r': _w((lambda *s: torch.randn(*s, dtype=torch.bfloat16) * 1.6)(S, Df) * 0.02), 'w_i': _w((lambda *s: torch.randn(*s, dtype=torch.bfloat16) * 1.6)(S, Df) * 0.02)}
    _A_in = _A_setup()

    def _B_setup():
        B, S, D, F = (1, 2048, 640, 1728)
        return {'x': _w((lambda *s: torch.randn(*s, dtype=torch.bfloat16) * 0.05)(B, S, D)), 'w1': _w((lambda *s: torch.randn(*s, dtype=torch.bfloat16) * 0.4)(D, F) * (2.0 / D) ** 0.5), 'w3': _w((lambda *s: torch.randn(*s, dtype=torch.bfloat16) * 0.4)(D, F) * (2.0 / D) ** 0.5), 'w2': _w((lambda *s: torch.randn(*s, dtype=torch.bfloat16) * 0.4)(F, D) * (2.0 / F) ** 0.5)}
    _B_in = _B_setup()
    return {'A_x': _A_in['x'], 'A_w_r': _A_in['w_r'], 'A_w_i': _A_in['w_i'], 'B_x': _B_in['x'], 'B_w1': _B_in['w1'], 'B_w3': _B_in['w3'], 'B_w2': _B_in['w2'], 'c': _w((lambda *s: torch.randn(*s, dtype=torch.bfloat16) * 0.1)(1, 640) * 8.0), 'w_mod': _w((lambda *s: torch.randn(*s, dtype=torch.bfloat16) * 0.1)(640, 6 * 640) * 640 ** (-0.5) * 8.0)}

def reference(A_x, A_w_r, A_w_i, B_x, B_w1, B_w3, B_w2, c, w_mod):

    def _A_ref(x, w_r, w_i):
        B, S, D = x.shape
        X = (lambda x, axes=(-2, -1): torch.fft.rfft2(x.float(), dim=axes))(x, axes=(-2, -1))
        W = w_r + 1j * w_i
        X = X * W
        y = (lambda x, s, axes=(-2, -1): torch.fft.irfft2(x, s=s, dim=axes).to(torch.bfloat16))(X, (S, D), axes=(-2, -1))
        return y

    def _B_ref(x, w1, w3, w2):
        gate = torch.einsum('bsd,df->bsf', x, w1)
        up = torch.einsum('bsd,df->bsf', x, w3)
        h = _silu(gate) * up
        out = torch.einsum('bsf,fd->bsd', h, w2)
        return out
    x = A_x
    mod = (_silu(c) @ w_mod).reshape(c.shape[0], 6, 1, -1)
    sa, ca, ga, sb, cb, gb = (mod[:, 0].clone(), mod[:, 1].clone(), mod[:, 2].clone(), mod[:, 3].clone(), mod[:, 4].clone(), mod[:, 5].clone())
    h = _layernorm(x, axis=-1) * (1 + ca) + sa
    x = x + ga * _A_ref(h, A_w_r, A_w_i)
    h = _layernorm(x, axis=-1) * (1 + cb) + sb
    x = x + gb * _B_ref(h, B_w1, B_w3, B_w2)
    return x
```

```python
import re

def v(i, n=1):
    return f"v{i}" if n == 1 else f"v[{i}:{i+n-1}]"
def s(i, n=1):
    return f"s{i}" if n == 1 else f"s[{i}:{i+n-1}]"
def a_(i, n=1):
    return f"a{i}" if n == 1 else f"a[{i}:{i+n-1}]"

def f32bits(x):
    import struct
    return struct.unpack("<I", struct.pack("<f", x))[0]
def flit(x):
    inl = {0.0: "0", 0.5: "0.5", 1.0: "1.0", 2.0: "2.0", 4.0: "4.0", -0.5: "-0.5", -1.0: "-1.0", -2.0: "-2.0", -4.0: "-4.0"}
    if x in inl: return inl[x]
    return hex(f32bits(x))

_REG = re.compile(r"(?<![\w.])(-?\|?)([vsa])(?:(\d+)|\[(\d+):(\d+)\])")
def regs_of(tok):
    out = set()
    for m in _REG.finditer(tok):
        k = m.group(2)
        if m.group(3) is not None:
            out.add((k, int(m.group(3))))
        else:
            for r in range(int(m.group(4)), int(m.group(5)) + 1):
                out.add((k, r))
    t = tok.strip().lstrip('-').strip('|')
    if t == "vcc": out |= {("s", 106), ("s", 107)}
    if t == "exec": out |= {("s", 126), ("s", 127)}
    if t == "m0": out |= {("s", 124)}
    if t in ("vcc_lo",): out.add(("s", 106))
    if t in ("vcc_hi",): out.add(("s", 107))
    return out

TRANS = re.compile(r"v_(exp|log|rcp|rsq|sqrt|sin|cos)_f32")
def split_ops(rest):
    ops = []; depth = 0; cur = ""
    for ch in rest:
        if ch in "[(": depth += 1
        if ch in "])": depth -= 1
        if ch == "," and depth == 0:
            ops.append(cur.strip()); cur = ""
        else:
            cur += ch
    if cur.strip(): ops.append(cur.strip())
    return ops

class Inst:
    __slots__ = ("text", "mn", "ops", "w", "r", "kind", "passes", "srcA", "srcB", "srcC", "dpp", "nop")
    def __init__(self, text):
        self.text = text
        t = text.split(";")[0].strip()
        self.mn = ""; self.ops = []; self.w = set(); self.r = set(); self.kind = "none"
        self.passes = 0; self.srcA = self.srcB = self.srcC = set(); self.dpp = False; self.nop = 0
        if not t or t.endswith(":") or t.startswith("."):
            return
        parts = t.split(None, 1)
        mn = self.mn = parts[0]
        rest = parts[1] if len(parts) > 1 else ""
        ops = split_ops(rest)
        mods = ""
        if ops:
            last = ops[-1]
            m = re.match(r"(-?\|?[\w.]+(?:\[[^\]]*\])?\|?|-?0x[0-9a-fA-F]+|-?[\d.]+)(.*)", last)
            if m:
                ops[-1] = m.group(1); mods = m.group(2)
        self.ops = ops
        R = lambda i: regs_of(ops[i]) if i < len(ops) else set()
        allr = lambda a: set().union(*[R(i) for i in range(a, len(ops))]) if len(ops) > a else set()
        if mn.startswith("v_mfma"):
            self.kind = "mfma"
            self.passes = 8 if "32x32" in mn else 4
            self.w = R(0); self.srcA = R(1); self.srcB = R(2); self.srcC = R(3)
            self.r = self.srcA | self.srcB | self.srcC
        elif mn.startswith("v_cmp"):
            self.kind = "valu"; self.w = R(0); self.r = allr(1)
            if mn.startswith("v_cmpx"): self.w |= {("s", 126), ("s", 127)}
        elif mn.startswith("v_readfirstlane") or mn.startswith("v_readlane"):
            self.kind = "valu"; self.w = R(0); self.r = allr(1)
        elif mn.startswith("v_permlane"):
            self.kind = "valu"; self.w = R(0) | R(1); self.r = R(0) | R(1)
        elif mn.startswith("v_add_co") or mn.startswith("v_sub_co") or mn.startswith("v_addc_co") or mn.startswith("v_subb_co"):
            self.kind = "valu"; self.w = R(0) | R(1); self.r = allr(2)
        elif mn.startswith("v_"):
            self.kind = "valu"; self.w = R(0); self.r = allr(1)
            if mn.startswith(("v_fmac", "v_pk_fmac", "v_dot2c", "v_mac")): self.r |= R(0)
            if mn.startswith("v_cndmask") and len(ops) == 3: self.r |= {("s", 106), ("s", 107)}
            if "dpp" in mn or "quad_perm" in mods or "row_" in mods:
                self.dpp = True; self.r |= R(0)
            if mn.startswith("v_writelane"): self.r |= R(0)
        elif mn.startswith(("buffer_load", "global_load")):
            self.kind = "vmem"
            if "lds" in mn or " lds" in (" " + mods):
                self.r = allr(0) | {("s", 124)}; self.kind = "vmem_lds"
            else:
                self.w = R(0); self.r = allr(1)
        elif mn.startswith(("buffer_store", "global_store")):
            self.kind = "vmem_st"; self.r = allr(0)
        elif mn.startswith(("buffer_atomic", "global_atomic")):
            self.kind = "vmem_st"; self.r = allr(0)
            if "sc0" in mods: self.w = R(0)
        elif mn.startswith(("buffer_wbl2", "buffer_inv")):
            self.kind = "vmem"
        elif mn.startswith("ds_read") or mn.startswith("ds_bpermute") or mn.startswith("ds_swizzle") or mn.startswith("ds_permute"):
            self.kind = "ds"; self.w = R(0); self.r = allr(1)
        elif mn.startswith("ds_"):
            self.kind = "ds"; self.r = allr(0)
        elif mn == "s_nop":
            self.kind = "nop"; self.nop = int(ops[0], 0) + 1
        elif mn.startswith("s_"):
            self.kind = "salu"
            if mn.startswith(("s_cmp", "s_cbranch", "s_branch", "s_waitcnt", "s_barrier", "s_endpgm", "s_sleep", "s_setprio", "s_bitcmp")):
                self.r = allr(0)
            else:
                self.w = R(0); self.r = allr(1)
                if "saveexec" in mn: self.w |= {("s", 126), ("s", 127)}

def is_wide_store(i):
    return i.kind == "vmem_st" and ("x3" in i.mn or "x4" in i.mn)

def need(prev, cur):
    n = 0
    pv = {r for r in prev.w if r[0] in "va"}
    ps = {r for r in prev.w if r[0] == "s"}
    if prev.kind == "valu":
        if cur.kind == "mfma" and pv & cur.r: n = max(n, 2)
        if cur.kind == "valu":
            if cur.dpp and pv & cur.r: n = max(n, 2)
            if cur.mn.startswith("v_permlane") and pv & cur.r: n = max(n, 2)
            if cur.mn.startswith(("v_readlane", "v_readfirstlane")) and pv & cur.r: n = max(n, 1)
            if TRANS.match(prev.mn) and not TRANS.match(cur.mn) and pv & (cur.r): n = max(n, 1)
            if ps & cur.r: n = max(n, 4 if cur.mn.startswith(("v_readlane", "v_writelane")) else 2)
            if ("s", 126) in ps and cur.dpp: n = max(n, 5)
            if "sdwa" in prev.mn and "dst_sel:DWORD" not in prev.text and pv & (cur.r | cur.w): n = max(n, 1)
        if cur.kind == "mfma" and ("s", 126) in ps: n = max(n, 4)
        if cur.kind.startswith("vmem") and ps & cur.r: n = max(n, 5)
    if prev.kind == "mfma":
        d = prev.w
        big = prev.passes == 8
        if cur.kind == "mfma":
            if d & (cur.srcA | cur.srcB): n = max(n, 12 if big else 8)
            if d & cur.srcC:
                if cur.srcC == d and cur.passes == prev.passes: pass
                else: n = max(n, 10 if big else 6)
            if d & cur.w and not (cur.srcC == d and cur.w == d): n = max(n, 10 if big else 6)
        elif cur.kind == "valu":
            if d & (cur.r | cur.w): n = max(n, 12 if big else 8)
            if prev.srcC & cur.w: n = max(n, 7 if big else 3)
        elif cur.kind in ("vmem", "vmem_lds", "vmem_st", "ds"):
            if d & (cur.r | cur.w): n = max(n, 12 if big else 8)
    if prev.kind == "salu":
        if ("s", 124) in ps and cur.kind == "vmem_lds": n = max(n, 1)
    if is_wide_store(prev):
        data = regs_of(prev.ops[0]) if prev.mn.startswith("buffer") else regs_of(prev.ops[1])
        if cur.kind == "valu" and data & cur.w: n = max(n, 2)
        elif data & cur.w: n = max(n, 1)
    return n

def fix_hazards(lines, window=24):
    out = []
    nins = 0
    for text in lines:
        cur = Inst(text)
        if cur.kind == "none":
            out.append(cur); continue
        dist = 0; req = 0
        for p in reversed(out):
            if p.kind == "none": continue
            if dist >= 13: break
            k = need(p, cur) - dist
            if k > req: req = k
            dist += p.nop if p.kind == "nop" else 1
        while req > 0:
            k = min(req, 16)
            out.append(Inst(f"    s_nop {k-1}")); req -= k; nins += 1
        out.append(cur)
    return [p.text for p in out], nins

class A:
    def __init__(self):
        self.lines = []
        self.uid = 0
    def __call__(self, s=""):
        for l in s.split("\n"):
            self.lines.append(l)
    def label(self, name):
        self.lines.append(name + ":")
    def newlabel(self, p="L"):
        self.uid += 1
        return f"{p}_{self.uid}"
    def text(self, fix=True):
        if fix:
            lines, n = fix_hazards(self.lines)
            return "\n".join(lines) + "\n"
        return "\n".join(self.lines) + "\n"

def kernel_desc(name, vgpr, sgpr=102, accum=None):
    tot = vgpr
    if accum is None:
        accum = min(256, (vgpr + 3) // 4 * 4)
    s = f""".section .rodata,"a"
.p2align 6
.amdhsa_kernel {name}
  .amdhsa_next_free_vgpr {tot}
  .amdhsa_next_free_sgpr {sgpr}
  .amdhsa_accum_offset {accum}
  .amdhsa_group_segment_fixed_size 0
  .amdhsa_kernarg_size 96
  .amdhsa_user_sgpr_count 2
  .amdhsa_user_sgpr_kernarg_segment_ptr 1
  .amdhsa_system_sgpr_workgroup_id_x 1
  .amdhsa_float_denorm_mode_32 3
  .amdhsa_float_denorm_mode_16_64 3
.end_amdhsa_kernel
.text
"""
    return s

def kernel_head(name):
    return f""".text
.globl {name}
.p2align 8
.type {name},@function
{name}:
"""
if __name__ == "__main__":
    t = ["v_mov_b32 v1, v2", "v_mfma_f32_32x32x16_bf16 v[0:15], v[0:3], v[4:7], v[0:15]", "v_add_f32 v0, v0, v1",
         "v_cos_f32 v3, v4", "v_mul_f32 v5, v3, v3", "v_add_f32_dpp v6, v5, v5 quad_perm:[1,0,3,2] row_mask:0xf bank_mask:0xf",
         "buffer_store_dwordx4 v[8:11], v1, s[4:7], 0 offen offset:16", "v_mov_b32 v9, 0", "s_mov_b32 m0, s3", "buffer_load_dwordx4 v2, s[8:11], s16 offen lds",
         "v_cmp_gt_u32 vcc, 3, v4", "v_cndmask_b32 v1, v2, v3, vcc", "v_pk_mul_f32 v[0:1], v[2:3], v[4:5] op_sel_hi:[0,1]", "ds_read2st64_b32 v[0:1], v2 offset0:5 offset1:10"]
    l, n = fix_hazards(t)
    print("\n".join(l))
```

```python
import math
from asm import *

S, D, F = 2048, 640, 1728
NC = 321
WS_MOD = 0x0
WS_WT  = 0x100000
WS_Y1  = 0x400000
WS_Z   = 0x700000
WS_X2  = 0xA00000
WS_H2P = 0xD00000
WS_HH  = 0x1000000
WS_W13 = 0x1800000
WS_W2  = 0x1D00000
SZ_MOD = 3840*4
SZ_COL = 321*8192
SZ_X   = S*D*2
SZ_H2P = 128*20*1024
SZ_HH  = 128*54*1024
SZ_W13 = 20*108*2*1024
SZ_W2P = 54*40*1024
SZ_WF  = S*NC*2
KA = dict(x=0, wr=8, wi=16, bx=24, w1=32, w3=40, w2=48, c=56, wmod=64, out=72, dbg=80, ws=88)
OOB = 0x40000000

def srd(A, d, base, off, size):
    if off:
        A(f"s_add_u32 s{d}, s{base}, {hex(off)}")
        A(f"s_addc_u32 s{d+1}, s{base+1}, 0")
    else:
        A(f"s_mov_b32 s{d}, s{base}")
        A(f"s_mov_b32 s{d+1}, s{base+1}")
    A(f"s_mov_b32 s{d+2}, {hex(size)}")
    A(f"s_mov_b32 s{d+3}, 0x20000")

def sigma(u, h, e):
    return 16*u + 8*(e >> 2) + 4*h + (e & 3)

class Kern:
    def __init__(self, name, grid, lds, vgpr=128, agpr=0):
        self.name = name; self.grid = grid; self.lds = lds
        self.vgpr = vgpr; self.agpr = agpr
        self.A = A()
    def launch_line(self):
        return f"; @launch kernel={self.name} grid=({self.grid},1,1) block=(256,1,1) lds={self.lds}"
    def text(self):
        body = self.A.text()
        acc = (self.vgpr + 3)//4*4
        tot = acc + self.agpr if self.agpr else self.vgpr
        return kernel_head(self.name) + body + kernel_desc(self.name, tot, 102, acc)

HEADER = open("adaLN_cond__spectral_gfnet__glu_gated_swiglu__prompt.s.ref").read().split("; Override launch")[0]

def assemble_file(kerns, path, order=None):
    t = HEADER
    for k in (order or kerns):
        t += k.launch_line() + "\n"
    t += '.amdgcn_target "amdgcn-amd-amdhsa--gfx950"\n'
    seen = set()
    for k in kerns:
        if k.name in seen: continue
        seen.add(k.name)
        t += k.text()
    open(path, "w").write(t)
    return t

def bf16_round_v(A, dst, src):
    A(f"v_cvt_pk_bf16_f32 v{dst}, v{src}, v{src}")
    A(f"v_lshlrev_b32 v{dst}, 16, v{dst}")
```

```python
from gen_common import *

MAIN = "adaLN_cond__spectral_gfnet__glu_gated_swiglu__prompt_kernel"
N_MOD = 240
N_WT = 192

def k1(name=MAIN):
    K = Kern(name, N_MOD + N_WT, 1024, vgpr=64)
    A = K.A
    A(f"s_cmp_ge_u32 s2, {N_MOD+N_WT}")
    A(f"s_cbranch_scc1 k1_end")
    A("s_load_dwordx4 s[4:7], s[0:1], 56")
    A("s_load_dwordx2 s[8:9], s[0:1], 88")
    A("s_load_dwordx4 s[12:15], s[0:1], 8")
    A(f"s_cmp_ge_u32 s2, {N_MOD}")
    A("s_cbranch_scc1 k1_wt")
    A("s_and_b32 s16, s2, 7")
    A("s_lshr_b32 s17, s2, 3")
    A("s_mul_i32 s16, s16, 30")
    A("s_add_u32 s16, s16, s17")
    A("s_lshl_b32 s17, s16, 5")
    A("v_lshrrev_b32 v1, 1, v0")
    A("v_and_b32 v2, 1, v0")
    A("v_mul_u32_u24 v3, 7680, v1")
    A("v_lshl_add_u32 v3, v2, 4, v3")
    A("v_add_u32 v3, s17, v3")
    A("v_lshlrev_b32 v4, 1, v1")
    A("s_waitcnt lgkmcnt(0)")
    srd(A, 20, 4, 0, 1280)
    srd(A, 24, 6, 0, 640*7680)
    srd(A, 28, 8, WS_MOD, SZ_MOD)
    for i in range(5):
        A(f"buffer_load_ushort v{8+i}, v4, s[20:23], 0 offen offset:{256*i}")
    for i in range(5):
        if i: A(f"s_mov_b32 s{32+i}, {i*128*7680}")
    for i in range(5):
        so = f"s{32+i}" if i else "0"
        A(f"buffer_load_dwordx4 v[{16+4*i}:{19+4*i}], v3, s[24:27], {so} offen")
    for q in range(8): A(f"v_mov_b32 v{40+q}, 0")
    A("s_waitcnt vmcnt(5)")
    for i in range(5):
        r = 8+i
        A(f"v_lshlrev_b32 v{r}, 16, v{r}")
        A(f"v_mul_f32 v14, {flit(-math.log2(math.e))}, v{r}")
        A(f"v_exp_f32 v14, v14")
        A(f"v_add_f32 v14, 1.0, v14")
        A(f"v_rcp_f32 v14, v14")
        A(f"v_mul_f32 v{r}, v{r}, v14")
        bf16_round_v(A, r, r)
    for i in range(5):
        A(f"s_waitcnt vmcnt({4-i})")
        for q in range(4):
            w = 16+4*i+q
            A(f"v_lshlrev_b32 v14, 16, v{w}")
            A(f"v_and_b32 v15, 0xffff0000, v{w}")
            A(f"v_fmac_f32 v{40+2*q}, v{8+i}, v14")
            A(f"v_fmac_f32 v{41+2*q}, v{8+i}, v15")
    for ctl in ["quad_perm:[2,3,0,1]", "row_ror:4", "row_ror:8"]:
        for q in range(8):
            A(f"v_add_f32_dpp v{40+q}, v{40+q}, v{40+q} {ctl} row_mask:0xf bank_mask:0xf")
    A("v_lshrrev_b32 v5, 4, v0")
    A("v_lshlrev_b32 v5, 6, v5")
    A("v_lshl_add_u32 v5, v2, 5, v5")
    A("v_and_b32 v6, 14, v0")
    A("v_cmp_eq_u32 vcc, 0, v6")
    A("s_and_saveexec_b64 s[40:41], vcc")
    A("ds_write_b128 v5, v[40:43]")
    A("ds_write_b128 v5, v[44:47] offset:16")
    A("s_mov_b64 exec, s[40:41]")
    A("s_waitcnt lgkmcnt(0)")
    A("s_barrier")
    A("v_cmp_gt_u32 vcc, 64, v0")
    A("s_and_saveexec_b64 s[40:41], vcc")
    A("s_cbranch_execz k1_end")
    A("v_and_b32 v6, 15, v0")
    A("v_lshrrev_b32 v7, 4, v0")
    A("v_lshlrev_b32 v7, 8, v7")
    A("v_lshl_add_u32 v7, v6, 2, v7")
    A("ds_read2_b32 v[16:17], v7 offset0:0 offset1:16")
    A("ds_read2_b32 v[18:19], v7 offset0:32 offset1:48")
    A("s_waitcnt lgkmcnt(0)")
    A("v_add_f32 v16, v16, v17")
    A("v_add_f32 v18, v18, v19")
    A("v_add_f32 v16, v16, v18")
    A("v_mov_b32 v17, v16")
    A("v_permlane16_swap_b32 v16, v17")
    A("v_add_f32 v16, v16, v17")
    A("v_mov_b32 v17, v16")
    A("v_permlane32_swap_b32 v16, v17")
    A("v_add_f32 v16, v16, v17")
    bf16_round_v(A, 16, 16)
    A("s_cmp_ge_u32 s16, 160")
    A("s_cselect_b32 s18, 120, 0")
    A("s_sub_u32 s18, s16, s18")
    A("s_sub_u32 s18, s18, 40")
    A("s_cmp_lt_u32 s18, 40")
    A("s_cbranch_scc0 k1_noone")
    A("v_add_f32 v16, 1.0, v16")
    bf16_round_v(A, 16, 16)
    A("k1_noone:")
    A("s_lshl_b32 s17, s16, 6")
    A("v_lshl_add_u32 v6, v6, 2, s17")
    A("v_cmp_gt_u32 vcc, 16, v0")
    A("s_and_b64 exec, exec, vcc")
    A("buffer_store_dword v16, v6, s[28:31], 0 offen")
    A("s_endpgm")
    A("k1_wt:")
    A(f"s_sub_u32 s16, s2, {N_MOD}")
    A("s_mul_i32 s17, s16, 171")
    A("s_lshr_b32 s17, s17, 10")
    A("s_mul_i32 s18, s17, 6")
    A("s_sub_u32 s18, s16, s18")
    A("s_mul_i32 s18, s18, 54")
    A("s_and_b32 s19, s17, 1")
    A("s_lshr_b32 s17, s17, 1")
    A("v_and_b32 v1, 63, v0")
    A("v_lshrrev_b32 v2, 6, v0")
    A("v_add_u32 v3, s18, v1")
    A("s_lshl_b32 s19, s19, 4")
    A("v_lshl_add_u32 v4, v2, 2, s19")
    A("s_lshl_b32 s33, s17, 7")
    A("v_add_u32 v5, s33, v4")
    A("v_mul_u32_u24 v5, 642, v5")
    A("v_lshl_add_u32 v5, v3, 1, v5")
    A("v_lshlrev_b32 v6, 13, v3")
    A("v_lshl_add_u32 v6, v4, 4, v6")
    A("s_lshl_b32 s33, s17, 9")
    A("v_add_u32 v6, s33, v6")
    A("v_cmp_gt_u32 vcc, 54, v1")
    A(f"v_cmp_gt_u32 s[40:41], {NC}, v3") if False else None
    A(f"s_movk_i32 s33, {NC}")
    A("v_cmp_gt_u32 s[40:41], s33, v3")
    A("s_and_b64 vcc, vcc, s[40:41]")
    A(f"v_mov_b32 v7, {hex(OOB)}")
    A("v_cndmask_b32 v5, v7, v5, vcc")
    A("v_cndmask_b32 v6, v7, v6, vcc")
    for i in range(1, 4): A(f"s_mov_b32 s{33+i}, {i*32*642}")
    A("s_waitcnt lgkmcnt(0)")
    srd(A, 20, 12, 0, SZ_WF)
    srd(A, 24, 14, 0, SZ_WF)
    srd(A, 28, 8, WS_WT, SZ_COL)
    for kk in range(4):
        for i in range(4):
            so = f"s{33+i}" if i else "0"
            A(f"buffer_load_ushort v{16+4*kk+i}, v5, s[20:23], {so} offen offset:{642*kk}")
            A(f"buffer_load_ushort v{32+4*kk+i}, v5, s[24:27], {so} offen offset:{642*kk}")
    for kk in range(4):
        A(f"s_waitcnt vmcnt({24-8*kk + kk})")
        for i in range(4):
            A(f"v_lshl_or_b32 v{16+4*kk+i}, v{32+4*kk+i}, 16, v{16+4*kk+i}")
        A(f"buffer_store_dwordx4 v[{16+4*kk}:{19+4*kk}], v6, s[28:31], 0 offen offset:{16*kk}")
    A("k1_end:")
    A("s_endpgm")
    return K
```

```python
import sys; sys.path.insert(0,'work')
import importlib
from gen_common import *
import gen_k1
ks=[gen_k1.k1()]
for m,f in [("gen_k2","k2"),("gen_k3","k3"),("gen_k4","k4"),("gen_k5","k5"),("gen_k6","k6")]:
    try:
        mod=importlib.import_module(m)
    except ModuleNotFoundError:
        break
    ks.append(getattr(mod,f)())
n = int(sys.argv[1]) if len(sys.argv)>1 else len(ks)
ks=ks[:n]
t=assemble_file(ks,'p.s')
print(len(t), "bytes", [k.name for k in ks])
import chk
chk.chk('p.s')
```

```python
from gen_common import *

PITCH2 = 1312
ROWS_LDS = 8*PITCH2
TR_OFF = 10496

def reduce32(A, regs, tmp):
    for ctl in ["quad_perm:[1,0,3,2]", "quad_perm:[2,3,0,1]", "row_ror:4", "row_ror:8"]:
        for r in regs:
            A(f"v_add_f32_dpp v{r}, v{r}, v{r} {ctl} row_mask:0xf bank_mask:0xf")
    for r, t in zip(regs, tmp):
        A(f"v_mov_b32 v{t}, v{r}")
    for r, t in zip(regs, tmp):
        A(f"v_permlane16_swap_b32 v{r}, v{t}")
    for r, t in zip(regs, tmp):
        A(f"v_add_f32 v{r}, v{r}, v{t}")

def unpack_bf16(A, dst, src, n):
    for q in range(n):
        A(f"v_lshlrev_b32 v{dst+2*q}, 16, v{src+q}")
        A(f"v_and_b32 v{dst+2*q+1}, 0xffff0000, v{src+q}")

def layernorm(A, xf, n, t0, t1):
    A(f"v_add_f32 v{t0}, v{xf}, v{xf+1}")
    A(f"v_add_f32 v{t1}, v{xf+2}, v{xf+3}")
    for q in range(4, n, 2):
        A(f"v_add_f32 v{t0}, v{t0}, v{xf+q}")
        A(f"v_add_f32 v{t1}, v{t1}, v{xf+q+1}")
    A(f"v_add_f32 v{t0}, v{t0}, v{t1}")
    reduce32(A, [t0], [t1])
    A(f"v_mul_f32 v{t0}, {flit(1.0/640)}, v{t0}")
    for q in range(n):
        A(f"v_sub_f32 v{xf+q}, v{xf+q}, v{t0}")
    A(f"v_mul_f32 v{t0}, v{xf}, v{xf}")
    A(f"v_mul_f32 v{t1}, v{xf+1}, v{xf+1}")
    for q in range(2, n, 2):
        A(f"v_fmac_f32 v{t0}, v{xf+q}, v{xf+q}")
        A(f"v_fmac_f32 v{t1}, v{xf+q+1}, v{xf+q+1}")
    A(f"v_add_f32 v{t0}, v{t0}, v{t1}")
    reduce32(A, [t0], [t1])
    A(f"v_mov_b32 v{t1}, {flit(1e-5)}")
    A(f"v_fmac_f32 v{t1}, {flit(1.0/640)}, v{t0}")
    A(f"v_rsq_f32 v{t0}, v{t1}")

def k2(name="k2_kernel"):
    K = Kern(name, 256, TR_OFF + 16384, vgpr=216)
    A = K.A
    A("s_cmp_ge_u32 s2, 256")
    A("s_cbranch_scc1 k2_end")
    A("s_load_dwordx2 s[4:5], s[0:1], 0")
    A("s_load_dwordx2 s[6:7], s[0:1], 88")
    A("v_and_b32 v1, 63, v0")
    A("v_and_b32 v2, 31, v0")
    A("v_lshrrev_b32 v3, 5, v1")
    A("v_lshrrev_b32 v4, 6, v0")
    A("v_readfirstlane_b32 s3, v4")
    A("s_and_b32 s8, s2, 7")
    A("s_lshl_b32 s8, s8, 3")
    A("s_bfe_u32 s9, s2, 0x30003")
    A("s_add_u32 s8, s8, s9")
    A("s_lshr_b32 s9, s2, 7")
    A("s_bfe_u32 s10, s2, 0x10006")
    A("s_lshl_b32 s11, s9, 4")
    A("s_lshl_b32 s12, s10, 2")
    A("s_add_u32 s11, s11, s12")
    A("s_lshr_b32 s12, s3, 1")
    A("s_lshl_b32 s12, s12, 3")
    A("s_add_u32 s11, s11, s12")
    A("s_and_b32 s12, s3, 1")
    A("s_lshl_b32 s12, s12, 1")
    A("s_add_u32 s11, s11, s12")
    A("s_lshl_b32 s11, s11, 6")
    A("s_add_u32 s11, s11, s8")
    A("s_mul_i32 s11, s11, 1280")
    A("v_mul_u32_u24 v5, 81920, v3")
    A("v_lshl_add_u32 v5, v2, 3, v5")
    A("v_add_u32 v5, s11, v5")
    A("v_lshlrev_b32 v6, 4, v2")
    A("s_movk_i32 s13, 2560")
    A("s_waitcnt lgkmcnt(0)")
    srd(A, 16, 4, 0, SZ_X)
    srd(A, 20, 6, WS_MOD, SZ_MOD)
    srd(A, 24, 6, WS_Y1, SZ_COL)
    for i in range(5):
        A(f"buffer_load_dwordx2 v[{8+2*i}:{9+2*i}], v5, s[16:19], 0 offen offset:{256*i}")
    for i in range(5):
        A(f"buffer_load_dwordx4 v[{20+4*i}:{23+4*i}], v6, s[20:23], s13 offen offset:{512*i}")
        A(f"buffer_load_dwordx4 v[{40+4*i}:{43+4*i}], v6, s[20:23], 0 offen offset:{512*i}")
    A("v_cvt_f32_u32 v7, v2")
    A("v_cvt_f32_u32 v18, v3")
    A(f"v_mul_f32 v212, {flit(1/32)}, v7")
    A("v_mul_f32 v213, v212, v18")
    A(f"v_mul_f32 v213, {flit(8.0)}, v213")
    for mh in range(2):
        for p in range(4):
            for z in range(2):
                A(f"v_fmamk_f32 v214, v212, {hex(f32bits(float(16*mh+2*p+z)))}, v213")
                A(f"v_cos_f32 v{60+z}, v214")
                A(f"v_sin_f32 v{62+z}, -v214")
            A(f"v_cvt_pk_bf16_f32 v{80+4*mh+p}, v60, v61")
            A(f"v_cvt_pk_bf16_f32 v{88+4*mh+p}, v62, v63")
    A(f"v_mul_f32 v212, {flit(1/640)}, v7")
    A("v_mul_f32 v213, v212, v18")
    A("v_mul_f32 v213, 4.0, v213")
    for r in range(12):
        A(f"v_fmamk_f32 v214, v212, {hex(f32bits(float(8*(r//4)+r%4)))}, v213")
        A(f"v_cos_f32 v{96+r}, v214")
        A(f"v_sin_f32 v{108+r}, v214")
    A("v_and_b32 v60, 15, v2")
    A("v_cvt_f32_u32 v60, v60")
    A("v_lshrrev_b32 v61, 4, v2")
    A("v_cvt_f32_u32 v61, v61")
    A(f"v_mul_f32 v212, {flit(1/20)}, v60")
    A("v_mul_f32 v213, v212, v18")
    A("v_mul_f32 v213, 4.0, v213")
    A(f"v_fmamk_f32 v213, v61, {hex(f32bits(0.25))}, v213")
    A(f"v_add_f32 v215, {flit(-0.25)}, v213")
    def cpair(dst, consts, bases):
        for z in range(2):
            A(f"v_fmamk_f32 v214, v212, {hex(f32bits(float(consts[z])))}, v{bases[z]}")
            A(f"v_cos_f32 v{62+z}, v214")
        A(f"v_cvt_pk_bf16_f32 v{dst}, v62, v63")
    for p in range(4):
        d = [8*((2*p+z) >> 2) + ((2*p+z) & 3) for z in range(2)]
        cpair(120+p, d, [213, 213])
        cpair(124+p, d, [215, 215])
    for p in range(2):
        d = [16+2*p, 17+2*p]
        cpair(128+p, d, [213, 213])
        cpair(130+p, d, [215, 215])
    A("v_cmp_eq_u32 vcc, 0, v3")
    for p in range(4):
        A(f"v_cndmask_b32 v{128+p}, 0, v{128+p}, vcc")
    A("s_waitcnt vmcnt(10)")
    unpack_bf16(A, 60, 8, 10)
    layernorm(A, 60, 20, 212, 213)
    A("s_waitcnt vmcnt(0)")
    for q in range(20):
        A(f"v_mul_f32 v{20+q}, v{20+q}, v212")
    for q in range(20):
        A(f"v_fma_f32 v{60+q}, v{60+q}, v{20+q}, v{40+q}")
    for q in range(10):
        A(f"v_cvt_pk_bf16_f32 v{8+q}, v{60+2*q}, v{61+2*q}")
    A(f"s_mul_i32 s14, s3, {2*PITCH2}")
    A(f"v_mul_u32_u24 v4, {PITCH2}, v3")
    A("v_lshl_add_u32 v4, v2, 3, v4")
    A("v_add_u32 v4, s14, v4")
    for i in range(5):
        A(f"ds_write_b64 v4, v[{8+2*i}:{9+2*i}] offset:{256*i}")
    A("v_mov_b32 v18, 0")
    A("v_mov_b32 v19, 0")
    A("v_cmp_eq_u32 vcc, 0, v2")
    A("s_and_saveexec_b64 s[28:29], vcc")
    A("ds_write_b64 v4, v[18:19] offset:1280")
    A("s_mov_b64 exec, s[28:29]")
    A("v_bfe_u32 v5, v1, 2, 2")
    A("v_lshl_add_u32 v5, v3, 3, v5")
    A("v_mul_u32_u24 v5, 40, v5")
    A("v_bfe_u32 v6, v1, 4, 1")
    A("v_lshl_add_u32 v5, v6, 5, v5")
    A("v_and_b32 v6, 3, v1")
    A("v_lshl_add_u32 v5, v6, 3, v5")
    A("v_add_u32 v5, s14, v5")
    A("s_waitcnt lgkmcnt(0)")
    for row in range(2):
        for mh in range(2):
            for j in range(2):
                d = 132 + 8*row + 4*mh + 2*j
                A(f"ds_read_b64_tr_b16 v[{d}:{d+1}], v5 offset:{row*PITCH2 + 640*mh + 160*j}")
    T = [[148, 164], [180, 196]]
    for mh in range(2):
        for row in range(2):
            A(f"s_waitcnt lgkmcnt({ (2 if row==0 else 0) + 0 if mh==1 else 0})") if False else None
        if mh == 0: A("s_waitcnt lgkmcnt(0)")
        for row in range(2):
            a = 132 + 8*row + 4*mh
            for ri in range(2):
                t = T[row][ri]; b = (80 if ri == 0 else 88) + 4*mh
                c = "0" if mh == 0 else f"v[{t}:{t+15}]"
                A(f"v_mfma_f32_32x32x16_bf16 v[{t}:{t+15}], v[{a}:{a+3}], v[{b}:{b+3}], {c}")
    B = [20, 32]
    for row in range(2):
        tr, ti = T[row]
        for r in range(12):
            c, s_ = 96+r, 108+r
            A(f"v_mul_f32 v60, v{tr+r}, v{c}")
            A(f"v_mul_f32 v61, v{ti+r}, v{c}")
            A(f"v_fma_f32 v{62+r}, v{ti+r}, v{s_}, v60")
            A(f"v_fma_f32 v{ti+r}, -v{tr+r}, v{s_}, v61")
        b = B[row]
        for p in range(4):
            A(f"v_cvt_pk_bf16_f32 v{b+p}, v{62+2*p}, v{63+2*p}")
            A(f"v_cvt_pk_bf16_f32 v{b+4+p}, v{ti+2*p}, v{ti+2*p+1}")
        for p in range(2):
            A(f"v_cvt_pk_bf16_f32 v{b+8+p}, v{70+2*p}, v{71+2*p}")
            A(f"v_cvt_pk_bf16_f32 v{b+10+p}, v{ti+8+2*p}, v{ti+9+2*p}")
    O = [148, 180]
    for st in range(3):
        for row in range(2):
            o = O[row]; b = B[row] + 4*st; a = 120 + 4*st
            c = "0" if st == 0 else f"v[{o}:{o+15}]"
            A(f"v_mfma_f32_32x32x16_bf16 v[{o}:{o+15}], v[{a}:{a+3}], v[{b}:{b+3}], {c}")
    A("s_lshl_b32 s15, s3, 7")
    A(f"s_add_u32 s15, s15, {TR_OFF}")
    A("v_lshlrev_b32 v4, 11, v3")
    A("v_lshl_add_u32 v4, v2, 2, v4")
    A("v_add_u32 v4, s15, v4")
    for ri in range(2):
        for r in range(7):
            A(f"v_cvt_pk_bf16_f32 v{60+7*ri+r}, v{O[0]+8*ri+r}, v{O[1]+8*ri+r}")
            A(f"ds_write_b32 v4, v{60+7*ri+r} offset:{ri*8192 + (8*(r//4)+r%4)*512}")
    A("s_lshl_b32 s15, s3, 9")
    A(f"s_add_u32 s15, s15, {TR_OFF}")
    A("v_lshlrev_b32 v5, 13, v3")
    A("v_lshl_add_u32 v5, v2, 2, v5")
    A("v_add_u32 v5, s15, v5")
    A("s_lshl_b32 s15, s3, 18")
    A("s_lshr_b32 s14, s8, 5")
    A("s_lshl_b32 s14, s14, 12")
    A("s_add_u32 s15, s15, s14")
    A("s_lshl_b32 s14, s9, 10")
    A("s_add_u32 s15, s15, s14")
    A("s_lshl_b32 s14, s10, 9")
    A("s_add_u32 s15, s15, s14")
    A("s_and_b32 s14, s8, 31")
    A("s_lshl_b32 s14, s14, 4")
    A("s_add_u32 s15, s15, s14")
    A("v_lshlrev_b32 v6, 13, v2")
    A("v_lshl_add_u32 v6, v3, 11, v6")
    A("v_add_u32 v6, s15, v6")
    A("s_mov_b32 s30, 0x100000")
    A("s_mov_b32 s31, 0x200000")
    A("s_waitcnt lgkmcnt(0)")
    A("s_barrier")
    for n in range(3):
        for wq in range(4):
            A(f"ds_read_b32 v{8+4*n+wq}, v5 offset:{2048*n + 128*wq}")
    for n in range(3):
        A(f"s_waitcnt lgkmcnt({8-4*n})")
        so = ["0", "s30", "s31"][n]
        A(f"buffer_store_dwordx4 v[{8+4*n}:{11+4*n}], v6, s[24:27], {so} offen")
    A("k2_end:")
    A("s_endpgm")
    return K
```

```python
from gen_common import *

NCOLWG = 161
def mf(A, d, a, b, first):
    c = "0" if first else f"v[{d}:{d+15}]"
    A(f"v_mfma_f32_32x32x16_bf16 v[{d}:{d+15}], v[{a}:{a+3}], v[{b}:{b+3}], {c}")

def csel(A, d, a, b):
    A(f"s_mov_b32 {d}, {b}")
    A(f"s_cselect_b32 {d}, {a}, {d}")

def fk(x): return hex(f32bits(float(x)))

def k3(name="k3_kernel"):
    K = Kern(name, 256, 81920, vgpr=248)
    A = K.A
    A("s_cmp_ge_u32 s2, 256")
    A("s_cbranch_scc1 k3_end")
    A("s_load_dwordx2 s[6:7], s[0:1], 88")
    A("s_load_dwordx4 s[36:39], s[0:1], 32")
    A("s_load_dwordx2 s[40:41], s[0:1], 48")
    A("v_and_b32 v1, 63, v0")
    A("v_and_b32 v2, 31, v0")
    A("v_lshrrev_b32 v3, 5, v1")
    A("v_lshrrev_b32 v4, 6, v0")
    A("v_readfirstlane_b32 s3, v4")
    A(f"s_cmp_ge_u32 s2, {NCOLWG}")
    A("s_cbranch_scc1 k3_prep")
    A("s_and_b32 s8, s3, 1")
    A("s_lshr_b32 s9, s3, 1")
    A("s_lshl_b32 s10, s2, 1")
    A("s_add_u32 s9, s9, s10")
    A("s_lshl_b32 s10, s9, 13")
    A("s_lshl_b32 s11, s8, 12")
    A("s_add_u32 s10, s10, s11")
    A("v_lshlrev_b32 v4, 4, v1")
    A("v_add_u32 v4, s10, v4")
    A("s_waitcnt lgkmcnt(0)")
    srd(A, 16, 6, WS_Y1, SZ_COL)
    srd(A, 20, 6, WS_WT, SZ_COL)
    srd(A, 24, 6, WS_Z, SZ_COL)
    for ri in range(2):
        for t in range(2):
            d = 8 + 8*ri + 4*t
            A(f"buffer_load_dwordx4 v[{d}:{d+3}], v4, s[16:19], 0 offen offset:{ri*2048+t*1024}")
    for j in range(4):
        A(f"buffer_load_dwordx4 v[{24+4*j}:{27+4*j}], v4, s[20:23], 0 offen offset:{j*1024}")
    C32, S32, N32 = 40, 48, 56
    C64, S64 = 64, 80
    TWc, TWs = 96, 112
    AR, AI = 128, 144
    Pr, Pi, Pn = 160, 168, 176
    Or, Oi, On = 184, 192, 200
    T2c, T2s = 208, 224
    t0, t1, t2, t3, t4, t5 = 240, 241, 242, 243, 244, 245
    hf, pf, af = 246, 247, 5
    A(f"v_cvt_f32_u32 v{hf}, v3")
    A(f"v_cvt_f32_u32 v{pf}, v2")
    A(f"v_cvt_f32_u32 v{af}, s8")
    A(f"v_mul_f32 v6, {flit(1/32)}, v{pf}")
    A(f"v_mul_f32 v7, v6, v{hf}")
    A(f"v_mul_f32 v7, 4.0, v7")
    for t in range(2):
        for p in range(4):
            for z in range(2):
                e = 2*p+z
                A(f"v_fmamk_f32 v{t0}, v6, {fk(16*t+8*(e>>2)+(e&3))}, v7")
                A(f"v_cos_f32 v{t1+z}, v{t0}")
                A(f"v_sin_f32 v{t3+z}, v{t0}")
            A(f"v_cvt_pk_bf16_f32 v{C32+4*t+p}, v{t1}, v{t2}")
            A(f"v_cvt_pk_bf16_f32 v{S32+4*t+p}, v{t3}, v{t4}")
            A(f"v_xor_b32 v{N32+4*t+p}, 0x80008000, v{S32+4*t+p}")
    A(f"v_mul_f32 v6, {flit(1/2048)}, v{pf}")
    A(f"v_fma_f32 v7, v{af}, {flit(4.0)}, v{hf}") if False else None
    A(f"v_mul_f32 v7, {flit(8.0)}, v{af}")
    A(f"v_add_f32 v7, v7, v{hf}")
    A(f"v_mul_f32 v7, 4.0, v7")
    A(f"v_mul_f32 v7, v7, v6")
    for r in range(16):
        A(f"v_fmamk_f32 v{t0}, v6, {fk(8*(r//4)+r%4)}, v7")
        A(f"v_cos_f32 v{TWc+r}, v{t0}")
        A(f"v_sin_f32 v{TWs+r}, v{t0}")
    A("s_waitcnt vmcnt(4)")
    Xr, Xi = 8, 16
    for t in range(2):
        mf(A, AR, Xr+4*t, C32+4*t, t == 0)
        mf(A, AI, Xi+4*t, C32+4*t, t == 0)
        mf(A, AR, Xi+4*t, S32+4*t, False)
        mf(A, AI, Xr+4*t, N32+4*t, False)
    A(f"v_mul_f32 v6, {flit(32.0)}, v{af}")
    A(f"v_add_f32 v6, v6, v{pf}")
    A(f"v_mov_b32 v{t5}, v6")
    A(f"v_mul_f32 v6, {flit(1/64)}, v6")
    for src in range(2):
        if src == 0:
            A(f"v_mul_f32 v7, {flit(8.0)}, v{af}")
        else:
            A(f"v_sub_f32 v7, 1.0, v{af}")
            A(f"v_mul_f32 v7, {flit(8.0)}, v7")
        A(f"v_add_f32 v7, v7, v{hf}")
        A(f"v_mul_f32 v7, 4.0, v7")
        A(f"v_mul_f32 v7, v7, v6")
        for u in range(2):
            for p in range(4):
                for z in range(2):
                    e = 2*p+z
                    A(f"v_fmamk_f32 v{t0}, v6, {fk(16*u+8*(e>>2)+(e&3))}, v7")
                    A(f"v_cos_f32 v{t1+z}, v{t0}")
                    A(f"v_sin_f32 v{t3+z}, v{t0}")
                A(f"v_cvt_pk_bf16_f32 v{C64+8*src+4*u+p}, v{t1}, v{t2}")
                A(f"v_cvt_pk_bf16_f32 v{S64+8*src+4*u+p}, v{t3}, v{t4}")
    def cmul_pack(cr, ci, conj_tw, scale=False):
        for r in range(16):
            c, s_ = cr+r, ci+r
            A(f"v_mul_f32 v{t0}, v{AR+r}, v{c}")
            A(f"v_mul_f32 v{t1}, v{AI+r}, v{c}")
            if not conj_tw:
                A(f"v_fma_f32 v{t2+(r&1)}, v{AI+r}, v{s_}, v{t0}")
                A(f"v_fma_f32 v{AI+r}, -v{AR+r}, v{s_}, v{t1}")
            else:
                A(f"v_fma_f32 v{t2+(r&1)}, -v{AI+r}, v{s_}, v{t0}")
                A(f"v_fma_f32 v{AI+r}, v{AR+r}, v{s_}, v{t1}")
            if r & 1:
                A(f"v_cvt_pk_bf16_f32 v{Pr+r//2}, v{t2}, v{t3}")
                A(f"v_cvt_pk_bf16_f32 v{Pi+r//2}, v{AI+r-1}, v{AI+r}")
    cmul_pack(TWc, TWs, False)
    A("s_lshl_b32 s12, s3, 12")
    A("s_xor_b32 s13, s12, 0x1000")
    A("v_lshlrev_b32 v6, 4, v1")
    A("v_add_u32 v7, s13, v6")
    A("v_add_u32 v6, s12, v6")
    def exch(off):
        for g in range(2):
            A(f"ds_write_b128 v6, v[{Pr+4*g}:{Pr+4*g+3}] offset:{off+1024*g}")
            A(f"ds_write_b128 v6, v[{Pi+4*g}:{Pi+4*g+3}] offset:{off+2048+1024*g}")
        A("s_waitcnt lgkmcnt(0)")
        A("s_barrier")
        for g in range(2):
            A(f"ds_read_b128 v[{Or+4*g}:{Or+4*g+3}], v7 offset:{off+1024*g}")
            A(f"ds_read_b128 v[{Oi+4*g}:{Oi+4*g+3}], v7 offset:{off+2048+1024*g}")
    exch(0)
    for q in range(8): A(f"v_xor_b32 v{Pn+q}, 0x80008000, v{Pr+q}")
    for u in range(2):
        mf(A, AR, C64+4*u, Pr+4*u, u == 0)
        mf(A, AI, C64+4*u, Pi+4*u, u == 0)
        mf(A, AR, S64+4*u, Pi+4*u, False)
        mf(A, AI, S64+4*u, Pn+4*u, False)
    A("s_waitcnt lgkmcnt(0)")
    for q in range(8): A(f"v_xor_b32 v{On+q}, 0x80008000, v{Or+q}")
    for u in range(2):
        mf(A, AR, C64+8+4*u, Or+4*u, False)
        mf(A, AI, C64+8+4*u, Oi+4*u, False)
        mf(A, AR, S64+8+4*u, Oi+4*u, False)
        mf(A, AI, S64+8+4*u, On+4*u, False)
    A(f"s_cmp_eq_u32 s9, 0")
    A(f"s_cselect_b32 s14, 1, 0")
    A(f"s_cmp_eq_u32 s9, 320")
    A(f"s_cselect_b32 s14, 1, s14")
    A(f"s_cmp_eq_u32 s14, 1")
    csel(A, "s14", hex(f32bits(1.0/(2048*640))), hex(f32bits(2.0/(2048*640))))
    A(f"v_mul_f32 v4, {flit(1/2048)}, v{t5}")
    A(f"v_mul_f32 v5, v4, v{hf}")
    A(f"v_mul_f32 v5, 4.0, v5")
    for r in range(16):
        A(f"v_fmamk_f32 v{t0}, v4, {fk(8*(r//4)+r%4)}, v5")
        A(f"v_cos_f32 v{T2c+r}, v{t0}")
        A(f"v_sin_f32 v{T2s+r}, v{t0}")
        A(f"v_mul_f32 v{T2c+r}, s14, v{T2c+r}")
        A(f"v_mul_f32 v{T2s+r}, s14, v{T2s+r}")
    A("s_waitcnt vmcnt(0)")
    for r in range(16):
        w = 24 + r
        A(f"v_lshlrev_b32 v{t4}, 16, v{w}")
        A(f"v_and_b32 v{w}, 0xffff0000, v{w}")
        A(f"v_mul_f32 v{t0}, v{AR+r}, v{t4}")
        A(f"v_mul_f32 v{t1}, v{AI+r}, v{t4}")
        A(f"v_fma_f32 v{t2+(r&1)}, -v{AI+r}, v{w}, v{t0}")
        A(f"v_fma_f32 v{AI+r}, v{AR+r}, v{w}, v{t1}")
        if r & 1:
            A(f"v_cvt_pk_bf16_f32 v{Pr+r//2}, v{t2}, v{t3}")
            A(f"v_cvt_pk_bf16_f32 v{Pi+r//2}, v{AI+r-1}, v{AI+r}")
    exch(16384)
    for q in range(8): A(f"v_xor_b32 v{Pn+q}, 0x80008000, v{Pi+q}")
    for u in range(2):
        mf(A, AR, Pr+4*u, C64+4*u, u == 0)
        mf(A, AI, Pi+4*u, C64+4*u, u == 0)
        mf(A, AR, Pn+4*u, S64+4*u, False)
        mf(A, AI, Pr+4*u, S64+4*u, False)
    A("s_waitcnt lgkmcnt(0)")
    for q in range(8): A(f"v_xor_b32 v{On+q}, 0x80008000, v{Oi+q}")
    for u in range(2):
        mf(A, AR, Or+4*u, C64+8+4*u, False)
        mf(A, AI, Oi+4*u, C64+8+4*u, False)
        mf(A, AR, On+4*u, S64+8+4*u, False)
        mf(A, AI, Or+4*u, S64+8+4*u, False)
    cmul_pack(T2c, T2s, True)
    for t in range(2):
        mf(A, AR, C32+4*t, Pr+4*t, t == 0)
        mf(A, AI, C32+4*t, Pi+4*t, t == 0)
        mf(A, AR, N32+4*t, Pi+4*t, False)
        mf(A, AI, S32+4*t, Pr+4*t, False)
    A("v_lshlrev_b32 v4, 5, v2")
    A("v_lshl_add_u32 v4, v3, 4, v4")
    A("v_add_u32 v4, s10, v4")
    for j in range(4):
        for i in range(4):
            r = 4*j+i
            A(f"v_cvt_pk_bf16_f32 v{8+r}, v{AR+r}, v{AI+r}")
        A(f"buffer_store_dwordx4 v[{8+4*j}:{11+4*j}], v4, s[24:27], 0 offen offset:{j*1024}")
    A("s_endpgm")

    A("k3_prep:")
    A(f"s_sub_u32 s8, s2, {NCOLWG}")
    A("s_lshr_b32 s9, s8, 5")
    A("s_and_b32 s8, s8, 31")
    A("s_lshl_b32 s8, s8, 2")
    A("s_add_u32 s8, s8, s3")
    A("s_cmp_eq_u32 s9, 2")
    csel(A, "s10", "124", "128")
    csel(A, "s11", "1280", "3456")
    csel(A, "s12", "10", "27")
    csel(A, "s13", "6554", "2428")
    csel(A, "s14", "40960", "221184")
    csel(A, "s15", "4096", "8192")
    csel(A, "s28", "1024", "2048")
    csel(A, "s29", "4", "8")
    csel(A, "s30", "16", "4")
    A("s_waitcnt lgkmcnt(0)")
    A("s_cmp_eq_u32 s9, 0")
    A("s_cselect_b32 s16, s36, s38")
    A("s_cselect_b32 s17, s37, s39")
    A("s_cmp_eq_u32 s9, 2")
    A("s_cselect_b32 s16, s40, s16")
    A("s_cselect_b32 s17, s41, s17")
    A(f"s_mov_b32 s18, {640*1728*2}")
    A("s_mov_b32 s19, 0x20000")
    csel(A, "s31", hex(WS_W2), hex(WS_W13))
    csel(A, "s22", hex(SZ_W2P), hex(SZ_W13))
    A("s_add_u32 s20, s6, s31")
    A("s_addc_u32 s21, s7, 0")
    A("s_mov_b32 s23, 0x20000")
    A("s_cmp_eq_u32 s9, 1")
    A("s_cselect_b32 s31, 1024, 0")
    A("v_lshrrev_b32 v4, 3, v1")
    A("v_and_b32 v5, 7, v1")
    A("v_bfe_u32 v6, v1, 4, 1")
    A("v_lshrrev_b32 v7, 5, v1")
    A("v_lshlrev_b32 v6, 1, v6")
    A("v_lshl_or_b32 v6, v7, 2, v6")
    A("v_xor_b32 v7, 4, v6")
    A("v_xor_b32 v6, v5, v6")
    A("v_xor_b32 v7, v5, v7")
    A("v_mul_lo_u32 v4, v4, s11")
    A("v_lshl_add_u32 v6, v6, 4, v4")
    A("v_lshl_add_u32 v7, v7, 4, v4")
    A("s_mul_i32 s32, s3, 20480")
    A("s_lshl_b32 s33, s11, 3")
    for k in range(5):
        A(f"s_mul_i32 s34, s10, {k}")
        A("s_add_u32 s34, s34, s8")
        A("s_mul_i32 s35, s34, s13")
        A("s_lshr_b32 s35, s35, 16")
        A("s_mul_i32 s42, s35, s12")
        A("s_sub_u32 s42, s34, s42")
        A("s_cmp_lt_u32 s34, 540")
        A("s_mul_i32 s43, s35, s33")
        A("s_lshl_b32 s43, s43, 2")
        A("s_lshl_b32 s44, s42, 7")
        A("s_add_u32 s43, s43, s44")
        A("s_mul_i32 s45, s35, s14")
        A("s_mul_i32 s44, s42, s15")
        A("s_add_u32 s45, s45, s44")
        A("s_add_u32 s45, s45, s31")
        A("s_cmp_lt_u32 s34, 540")
        A(f"s_cselect_b32 s43, s43, {hex(OOB)}")
        A(f"s_cselect_b32 s{50+k}, s45, {hex(OOB)}")
        for i in range(4):
            A(f"s_add_u32 m0, s32, {4096*k+1024*i}")
            A(f"buffer_load_dwordx4 v{6+(i&1)}, s[16:19], s43 offen lds")
            if i < 3: A("s_add_u32 s43, s43, s33")
    A("v_lshrrev_b32 v8, 4, v1")
    A("v_bfe_u32 v9, v1, 2, 2")
    A("v_mul_lo_u32 v8, v8, s29")
    A("v_add_u32 v8, v8, v9")
    A("v_add_u32 v9, s30, v8")
    A("v_and_b32 v10, 1, v1")
    A("v_bfe_u32 v11, v1, 1, 1")
    for j, rr in enumerate([8, 9]):
        A(f"v_bfe_u32 v12, v{rr}, 1, 1")
        A(f"v_lshrrev_b32 v13, 2, v{rr}")
        A(f"v_lshrrev_b32 v14, 3, v{rr}")
        A(f"v_xor_b32 v13, v13, v14")
        A(f"v_and_b32 v13, 1, v13")
        A(f"v_lshl_or_b32 v12, v13, 1, v12")
        A(f"v_lshlrev_b32 v12, 1, v12")
        A(f"v_xor_b32 v12, v12, v11")
        A(f"v_lshlrev_b32 v15, 7, v{rr}")
        A(f"v_lshl_add_u32 v15, v10, 3, v15")
        A(f"v_add_u32 v15, s32, v15")
        for tile in range(4):
            A(f"v_xor_b32 v13, {2*tile}, v12")
            A(f"v_lshl_add_u32 v{16+4*j+tile}, v13, 4, v15")
    A("v_lshlrev_b32 v24, 4, v1")
    for k in range(5):
        A(f"s_waitcnt vmcnt({4*(4-k) + 4*k})")
        for tile in range(4):
            for j in range(2):
                d = 32 + 16*(k&1) + 4*tile + 2*j
                A(f"ds_read_b64_tr_b16 v[{d}:{d+1}], v{16+4*j+tile} offset:{4096*k}")
        A(f"s_mov_b32 s43, s{50+k}")
        for tile in range(4):
            A(f"s_waitcnt lgkmcnt({6-2*tile})")
            d = 32 + 16*(k&1) + 4*tile
            A(f"buffer_store_dwordx4 v[{d}:{d+3}], v24, s[20:23], s43 offen")
            if tile < 3: A("s_add_u32 s43, s43, s28")
    A("k3_end:")
    A("s_endpgm")
    return K
```

```python
from gen_common import *
from gen_k2 import reduce32, unpack_bf16, layernorm
from gen_k3 import mf, fk

ZP = 1552
YOFF = 8*ZP
YP = 2560

def k4(name="k4_kernel"):
    K = Kern(name, 256, YOFF + 8*YP, vgpr=256)
    A = K.A
    A("s_cmp_ge_u32 s2, 256")
    A("s_cbranch_scc1 k4_end")
    A("s_load_dwordx2 s[4:5], s[0:1], 0")
    A("s_load_dwordx2 s[6:7], s[0:1], 88")
    A("v_and_b32 v1, 63, v0")
    A("v_and_b32 v2, 31, v0")
    A("v_lshrrev_b32 v3, 5, v1")
    A("v_lshrrev_b32 v4, 6, v0")
    A("v_readfirstlane_b32 s3, v4")
    A("s_and_b32 s8, s2, 7")
    A("s_lshr_b32 s9, s2, 3")
    A("s_lshl_b32 s10, s8, 3")
    A("s_and_b32 s11, s9, 7")
    A("s_add_u32 s10, s10, s11")
    A("s_lshr_b32 s11, s9, 3")
    A("s_lshr_b32 s12, s10, 5")
    A("s_lshl_b32 s12, s12, 12")
    A("s_lshl_b32 s13, s11, 10")
    A("s_add_u32 s12, s12, s13")
    A("s_and_b32 s13, s10, 31")
    A("s_lshl_b32 s13, s13, 5")
    A("s_add_u32 s12, s12, s13")
    A("v_and_b32 v4, 1, v1")
    A("v_bfe_u32 v5, v1, 1, 2")
    A("v_lshrrev_b32 v6, 3, v1")
    A("s_lshl_b32 s13, s3, 3")
    A("v_add_u32 v6, s13, v6")
    A("v_lshl_add_u32 v7, v5, 5, v6")
    A("v_lshlrev_b32 v7, 13, v7")
    A("v_lshl_add_u32 v7, v4, 4, v7")
    A("v_add_u32 v7, s12, v7")
    A(f"v_mul_u32_u24 v252, {4*ZP}, v4")
    A("v_mul_u32_u24 v253, 48, v6")
    A("v_add_u32 v252, v252, v253")
    A("v_lshl_add_u32 v252, v5, 2, v252")
    A("s_lshl_b32 s13, s11, 3")
    A("s_lshl_b32 s14, s3, 1")
    A("s_add_u32 s13, s13, s14")
    A("s_lshl_b32 s13, s13, 6")
    A("s_add_u32 s13, s13, s10")
    A("s_mul_i32 s13, s13, 1280")
    A("v_mul_u32_u24 v253, 81920, v3")
    A("v_lshl_add_u32 v253, v2, 3, v253")
    A("v_add_u32 v253, s13, v253")
    A("v_lshlrev_b32 v254, 4, v2")
    A("s_mov_b32 s30, 0x100000")
    A("s_mov_b32 s31, 0x200000")
    A(f"s_movk_i32 s32, {2*2560}")
    A(f"s_movk_i32 s33, {4*2560}")
    A(f"s_movk_i32 s34, {3*2560}")
    A("s_waitcnt lgkmcnt(0)")
    srd(A, 16, 6, WS_Z, SZ_COL)
    srd(A, 20, 4, 0, SZ_X)
    srd(A, 24, 6, WS_MOD, SZ_MOD)
    srd(A, 36, 6, WS_X2, SZ_X)
    srd(A, 40, 6, WS_H2P, SZ_H2P)
    for m in range(3):
        A(f"buffer_load_dwordx4 v[{8+4*m}:{11+4*m}], v7, s[16:19], {['0','s30','s31'][m]} offen")
    for i in range(5):
        A(f"buffer_load_dwordx2 v[{20+2*i}:{21+2*i}], v253, s[20:23], 0 offen offset:{256*i}")
    for i in range(5):
        A(f"buffer_load_dwordx4 v[{32+4*i}:{35+4*i}], v254, s[24:27], s32 offen offset:{512*i}")
    for i in range(5):
        A(f"buffer_load_dwordx4 v[{52+4*i}:{55+4*i}], v254, s[24:27], s33 offen offset:{512*i}")
        A(f"buffer_load_dwordx4 v[{72+4*i}:{75+4*i}], v254, s[24:27], s34 offen offset:{512*i}")
    BR, BI, TC, TS, C32, N32 = 92, 100, 108, 124, 140, 148
    t0, t1, t2, t3, t4 = 244, 245, 246, 247, 248
    pf, hf = 249, 250
    A(f"v_cvt_f32_u32 v{pf}, v2")
    A(f"v_cvt_f32_u32 v{hf}, v3")
    A(f"v_mul_f32 v4, {flit(1/20)}, v{pf}")
    A(f"v_mul_f32 v5, v4, v{hf}")
    A(f"v_mul_f32 v5, 4.0, v5")
    A(f"v_mov_b32 v6, 0")
    for st in range(2):
        for q in range(4):
            A(f"v_fmamk_f32 v{t0}, v4, {fk(8*st+q)}, v{5 if st == 0 else 6}")
            A(f"v_cos_f32 v{t1}, v{t0}")
            A(f"v_sin_f32 v{t2}, v{t0}")
            A(f"v_sub_f32 v{t3}, 0, v{t2}")
            A(f"v_cvt_pk_bf16_f32 v{BR+4*st+q}, v{t1}, v{t3}")
            A(f"v_cvt_pk_bf16_f32 v{BI+4*st+q}, v{t2}, v{t1}")
    A("v_cmp_eq_u32 vcc, 0, v3")
    for q in range(4):
        A(f"v_cndmask_b32 v{BR+4+q}, 0, v{BR+4+q}, vcc")
        A(f"v_cndmask_b32 v{BI+4+q}, 0, v{BI+4+q}, vcc")
    A(f"v_mul_f32 v4, {flit(1/640)}, v{pf}")
    A(f"v_mul_f32 v5, v4, v{hf}")
    A(f"v_mul_f32 v5, 4.0, v5")
    for r in range(16):
        A(f"v_fmamk_f32 v{t0}, v4, {fk(8*(r//4)+r%4)}, v5")
        A(f"v_cos_f32 v{TC+r}, v{t0}")
        A(f"v_sin_f32 v{TS+r}, v{t0}")
    A(f"v_mul_f32 v4, {flit(1/32)}, v{pf}")
    A(f"v_mul_f32 v5, v4, v{hf}")
    A(f"v_mul_f32 v5, 4.0, v5")
    for t in range(2):
        for p in range(4):
            for z in range(2):
                e = 2*p+z
                A(f"v_fmamk_f32 v{t0}, v4, {fk(16*t+8*(e>>2)+(e&3))}, v5")
                A(f"v_cos_f32 v{t1+z}, v{t0}")
                A(f"v_sin_f32 v{t3+z}, -v{t0}")
            A(f"v_cvt_pk_bf16_f32 v{C32+4*t+p}, v{t1}, v{t2}")
            A(f"v_cvt_pk_bf16_f32 v{N32+4*t+p}, v{t3}, v{t4}")
    for m in range(3):
        A(f"s_waitcnt vmcnt({20+2-m})")
        for i in range(4):
            A(f"ds_write_b32 v252, v{8+4*m+i} offset:{i*ZP + 16*m}")
    A(f"s_mul_i32 s14, s3, {2*ZP}")
    A("v_mul_u32_u24 v4, 48, v2")
    A("v_add_u32 v4, s14, v4")
    A("v_lshl_add_u32 v5, v3, 4, v4")
    A("s_waitcnt lgkmcnt(0)")
    A("s_barrier")
    FA = [[156, 160], [164, 168]]
    for row in range(2):
        A(f"ds_read_b128 v[{FA[row][0]}:{FA[row][0]+3}], v5 offset:{row*ZP}")
        A(f"ds_read_b128 v[{FA[row][1]}:{FA[row][1]+3}], v4 offset:{row*ZP+32}")
    U = [[172, 188], [204, 220]]
    A("s_waitcnt lgkmcnt(0)")
    for st in range(2):
        for row in range(2):
            mf(A, U[row][0], FA[row][st], BR+4*st, st == 0)
            mf(A, U[row][1], FA[row][st], BI+4*st, st == 0)
    P = [[156, 164], [228, 236]]
    P = [[156, 164], [8, 12+4]]
    P[1] = [8, 236]
    for row in range(2):
        ur, ui = U[row]; pr, pi = P[row]
        for r in range(16):
            c, s_ = TC+r, TS+r
            A(f"v_mul_f32 v{t0}, v{ur+r}, v{c}")
            A(f"v_mul_f32 v{t1}, v{ui+r}, v{c}")
            A(f"v_fma_f32 v{t2+(r&1)}, -v{ui+r}, v{s_}, v{t0}")
            A(f"v_fma_f32 v{ui+r}, v{ur+r}, v{s_}, v{t1}")
            if r & 1:
                A(f"v_cvt_pk_bf16_f32 v{pr+r//2}, v{t2}, v{t3}")
                A(f"v_cvt_pk_bf16_f32 v{pi+r//2}, v{ui+r-1}, v{ui+r}")
    Y = [172, 204]
    for t in range(2):
        for row in range(2):
            mf(A, Y[row], C32+4*t, P[row][0]+4*t, t == 0)
        for row in range(2):
            mf(A, Y[row], N32+4*t, P[row][1]+4*t, False)
    A(f"s_mul_i32 s14, s3, {2*YP}")
    A(f"s_add_u32 s14, s14, {YOFF}")
    A("v_mul_u32_u24 v4, 320, v3")
    A("v_lshl_add_u32 v4, v2, 2, v4")
    A("v_add_u32 v4, s14, v4")
    A("v_cmp_gt_u32 vcc, 20, v2")
    A("s_and_saveexec_b64 s[28:29], vcc")
    for row in range(2):
        for r in range(16):
            A(f"ds_write_b32 v4, v{Y[row]+r} offset:{row*YP + (8*(r//4)+r%4)*80}")
    A("s_mov_b64 exec, s[28:29]")
    A(f"v_mul_u32_u24 v5, {YP}, v3")
    A("v_lshl_add_u32 v5, v2, 4, v5")
    A("v_add_u32 v5, s14, v5")
    A("s_waitcnt lgkmcnt(0)")
    YF = 172
    for i in range(5):
        A(f"ds_read_b128 v[{YF+4*i}:{YF+4*i+3}], v5 offset:{512*i}")
    XF = 196
    A("s_waitcnt vmcnt(10)")
    unpack_bf16(A, XF, 20, 10)
    A("s_waitcnt lgkmcnt(0)")
    for q in range(20):
        A(f"v_fmac_f32 v{XF+q}, v{32+q}, v{YF+q}")
    for q in range(10):
        A(f"v_cvt_pk_bf16_f32 v{20+q}, v{XF+2*q}, v{XF+2*q+1}")
    for i in range(5):
        A(f"buffer_store_dwordx2 v[{20+2*i}:{21+2*i}], v253, s[36:39], 0 offen offset:{256*i}")
    unpack_bf16(A, XF, 20, 10)
    layernorm(A, XF, 20, t0, t1)
    A("s_waitcnt vmcnt(5)")
    for q in range(20):
        A(f"v_mul_f32 v{52+q}, v{52+q}, v{t0}")
    for q in range(20):
        A(f"v_fma_f32 v{XF+q}, v{XF+q}, v{52+q}, v{72+q}")
    for q in range(10):
        A(f"v_cvt_pk_bf16_f32 v{8+q}, v{XF+2*q}, v{XF+2*q+1}")
    A("s_lshl_b32 s14, s8, 4")
    A("s_lshr_b32 s15, s9, 1")
    A("s_add_u32 s14, s14, s15")
    A("s_mul_i32 s14, s14, 20480")
    A("s_and_b32 s15, s9, 1")
    A("s_lshl_b32 s15, s15, 3")
    A("s_lshl_b32 s28, s3, 1")
    A("s_add_u32 s15, s15, s28")
    A("s_lshl_b32 s15, s15, 4")
    A("s_add_u32 s14, s14, s15")
    A("v_lshrrev_b32 v4, 3, v2")
    A("v_lshlrev_b32 v4, 10, v4")
    A("v_bfe_u32 v5, v2, 1, 2")
    A("v_lshl_add_u32 v4, v5, 8, v4")
    A("v_lshl_add_u32 v4, v3, 4, v4")
    A("v_and_b32 v5, 1, v2")
    A("v_lshl_add_u32 v4, v5, 3, v4")
    A("v_add_u32 v4, s14, v4")
    for i in range(5):
        if i: A(f"s_movk_i32 s{44+i}, {4096*i}")
    for i in range(5):
        so = f"s{44+i}" if i else "0"
        A(f"buffer_store_dwordx2 v[{8+2*i}:{9+2*i}], v4, s[40:43], {so} offen")
    A("k4_end:")
    A("s_endpgm")
    return K
```

```python
from gen_common import *

class VM:
    def __init__(self, A): self.A = A; self.q = []
    def issue(self, tag): self.q.append(tag)
    def wait(self, tags, extra=""):
        idx = [i for i, t in enumerate(self.q) if t in tags]
        if not idx: return
        n = len(self.q) - 1 - max(idx)
        assert n <= 63
        self.A(f"s_waitcnt vmcnt({n})")
        self.q = self.q[max(idx)+1:]

NS = 5
SLOT = 28*1024
D_LA = 6
RA = 8
RB = 10

def k5(name="k5_kernel"):
    K = Kern(name, 256, NS*SLOT, vgpr=248)
    A = K.A
    ACC = 0
    ACC = 8
    AR = 120
    BR = 152
    VL = 232
    VB = 237
    VD = 239
    A("s_cmp_ge_u32 s2, 256")
    A("s_cbranch_scc1 k5_end")
    A("s_load_dwordx2 s[6:7], s[0:1], 88")
    A("v_and_b32 v1, 63, v0")
    A("v_lshrrev_b32 v4, 6, v0")
    A("v_readfirstlane_b32 s3, v4")
    A("s_and_b32 s8, s2, 7")
    A("s_lshr_b32 s9, s2, 3")
    A("s_and_b32 s10, s8, 1")
    A("s_lshl_b32 s10, s10, 3")
    A("s_and_b32 s11, s9, 7")
    A("s_add_u32 s10, s10, s11")
    A("s_lshr_b32 s11, s8, 1")
    A("s_lshl_b32 s11, s11, 2")
    A("s_lshr_b32 s12, s9, 3")
    A("s_add_u32 s11, s11, s12")
    A("s_mul_i32 s11, s11, 7")
    A("s_min_u32 s11, s11, 101")
    A("s_lshl_b32 s12, s10, 3")
    A("s_lshl_b32 s13, s3, 1")
    A("s_add_u32 s12, s12, s13")
    A("v_lshlrev_b32 v2, 4, v1")
    A("s_mul_i32 s13, s12, 20480")
    A(f"v_add_u32 v{VB}, s13, v2")
    A(f"v_add_u32 v{VB+1}, 20480, v{VB}")
    A("s_lshr_b32 s13, s3, 1")
    A("s_mul_i32 s13, s13, 221184")
    A("s_lshl_b32 s14, s11, 11")
    A("s_add_u32 s13, s13, s14")
    A("s_and_b32 s14, s3, 1")
    A("s_mul_i32 s14, s14, 7168")
    A("s_add_u32 s13, s13, s14")
    A(f"v_add_u32 v{VD}, s13, v2")
    for b in range(NS):
        A(f"v_add_u32 v{VL+b}, {b*SLOT}, v2") if b else A(f"v_mov_b32 v{VL}, v2")
    A("s_mul_i32 s15, s3, 7168")
    A("s_waitcnt lgkmcnt(0)")
    srd(A, 16, 6, WS_H2P, SZ_H2P)
    srd(A, 20, 6, WS_W13, SZ_W13)
    srd(A, 24, 6, WS_HH, SZ_HH)
    vm = VM(A)
    NSL = 10
    def slot_ops(s):
        ops = []
        def dma(i):
            def f():
                A(f"s_add_u32 m0, s15, {(s % NS)*SLOT + i*1024}")
                A(f"s_mov_b32 s28, {2*s*221184 + i*1024}")
                A(f"buffer_load_dwordx4 v{VD}, s[20:23], s28 offen lds")
                vm.issue(("W", s))
            return f
        def bl(t, rt):
            def f():
                A(f"s_movk_i32 s29, {t*1024}")
                r = BR + (t % RB)*8 + 4*rt
                A(f"buffer_load_dwordx4 v[{r}:{r+3}], v{VB+rt}, s[16:19], s29 offen")
                vm.issue(("B", t))
            return f
        ops += [bl(2*s, 0), bl(2*s, 1)]
        ops += [dma(i) for i in range(7)]
        ops += [bl(2*s+1, 0), bl(2*s+1, 1)]
        return ops
    for s_ in range(NS-2):
        for f in slot_ops(s_): f()
    pending = []
    NF = 280
    def lds_read(n):
        t, i = divmod(n, 14)
        s_ = t >> 1
        r = AR + (n % RA)*4
        A(f"ds_read_b128 v[{r}:{r+3}], v{VL + s_ % NS} offset:{((t & 1)*14 + i)*1024}")
    def enter_slot(s_):
        vm.wait([("W", s_)])
        A("s_barrier")
        if s_ + NS - 2 < NSL:
            pending.extend(slot_ops(s_ + NS - 2))
    enter_slot(0)
    for n in range(D_LA): lds_read(n)
    for n in range(NF):
        t, i = divmod(n, 14)
        nn = n + D_LA
        if nn < NF:
            if nn % 28 == 0: enter_slot(nn // 28)
            lds_read(nn)
        if pending and (n % 2 == 1):
            pending.pop(0)()
        rem = min(NF - 1 - n, D_LA)
        A(f"s_waitcnt lgkmcnt({rem})")
        if i == 0: vm.wait([("B", t)])
        a = AR + (n % RA)*4
        for rt in range(2):
            c = ACC + (i*2 + rt)*4
            b = BR + (t % RB)*8 + 4*rt
            src = "0" if t == 0 else f"v[{c}:{c+3}]"
            A(f"v_mfma_f32_16x16x32_bf16 v[{c}:{c+3}], v[{a}:{a+3}], v[{b}:{b+3}], {src}")
    assert not pending
    A("s_mul_i32 s13, s12, 55296")
    A(f"v_add_u32 v{VB}, s13, v2")
    A(f"v_add_u32 v{VB+1}, 55296, v{VB}")
    T = 120
    for ft in range(7):
        A(f"s_add_u32 s28, s11, {ft}")
        A("s_and_b32 s29, s28, 1")
        A("s_lshl_b32 s29, s29, 3")
        A("s_lshr_b32 s28, s28, 1")
        A("s_lshl_b32 s28, s28, 10")
        A("s_add_u32 s28, s28, s29")
        for rt in range(2):
            g = ACC + ((2*ft)*2 + rt)*4
            u = ACC + ((2*ft+1)*2 + rt)*4
            t = T + 8*rt + 16*(ft & 1)
            for r in range(4): A(f"v_mul_f32 v{t+r}, {flit(-math.log2(math.e))}, v{g+r}")
            for r in range(4): A(f"v_exp_f32 v{t+r}, v{t+r}")
            for r in range(4): A(f"v_mul_f32 v{g+r}, v{g+r}, v{u+r}")
            for r in range(4): A(f"v_add_f32 v{t+r}, 1.0, v{t+r}")
            for r in range(4): A(f"v_rcp_f32 v{t+r}, v{t+r}")
            for r in range(4): A(f"v_mul_f32 v{g+r}, v{g+r}, v{t+r}")
            A(f"v_cvt_pk_bf16_f32 v{t+4}, v{g}, v{g+1}")
            A(f"v_cvt_pk_bf16_f32 v{t+5}, v{g+2}, v{g+3}")
            A(f"buffer_store_dwordx2 v[{t+4}:{t+5}], v{VB+rt}, s[24:27], s28 offen")
    A("k5_end:")
    A("s_endpgm")
    return K
```

```python
from gen_common import *
from gen_k5 import VM

NST = 14
PD = 3
RING = 4

def k6(name="k6_kernel"):
    K = Kern(name, 256, 81920, vgpr=248)
    A = K.A
    ACC = 8
    FR = 88
    VH = 232
    VW = 236
    A("s_cmp_ge_u32 s2, 256")
    A("s_cbranch_scc1 k6_end")
    A("s_load_dwordx2 s[6:7], s[0:1], 88")
    A("s_load_dwordx2 s[4:5], s[0:1], 72")
    A("v_and_b32 v1, 63, v0")
    A("v_lshrrev_b32 v4, 6, v0")
    A("v_readfirstlane_b32 s3, v4")
    A("s_and_b32 s8, s2, 7")
    A("s_lshr_b32 s9, s2, 3")
    A("s_lshr_b32 s10, s8, 1")
    A("s_lshl_b32 s10, s10, 3")
    A("s_and_b32 s11, s9, 7")
    A("s_add_u32 s10, s10, s11")
    A("s_and_b32 s11, s8, 1")
    A("s_lshl_b32 s11, s11, 2")
    A("s_lshr_b32 s12, s9, 3")
    A("s_add_u32 s11, s11, s12")
    A("s_mul_i32 s12, s3, 14")
    A("s_cmp_eq_u32 s3, 3")
    A("s_cselect_b32 s13, 1, 0")
    A("s_sub_u32 s12, s12, s13")
    A("v_lshlrev_b32 v2, 4, v1")
    A("s_lshl_b32 s13, s10, 2")
    A("s_mul_i32 s13, s13, 55296")
    A("s_lshl_b32 s14, s12, 10")
    A("s_add_u32 s13, s13, s14")
    A(f"v_add_u32 v{VH}, s13, v2")
    for q in range(1, 4): A(f"v_add_u32 v{VH+q}, {55296*q}, v{VH}")
    A("s_mul_i32 s13, s12, 40960")
    A("s_mul_i32 s14, s11, 5120")
    A("s_add_u32 s13, s13, s14")
    A(f"v_add_u32 v{VW}, s13, v2")
    A(f"v_add_u32 v{VW+1}, 4096, v{VW}")
    A("s_cmp_ge_u32 s3, 2")
    A(f"s_mov_b32 s15, {13*40960}")
    A(f"s_cselect_b32 s15, {hex(OOB)}, s15")
    A("s_waitcnt lgkmcnt(0)")
    srd(A, 16, 6, WS_HH, SZ_HH)
    srd(A, 20, 6, WS_W2, SZ_W2P)
    srd(A, 24, 6, WS_X2, SZ_X)
    srd(A, 28, 6, WS_MOD, SZ_MOD)
    srd(A, 32, 4, 0, SZ_X)
    vm = VM(A)
    def loads(st):
        base = FR + (st % RING)*36
        A(f"s_movk_i32 s36, {st*1024}")
        if st < NST-1: A(f"s_mov_b32 s37, {st*40960}")
        else: A("s_mov_b32 s37, s15")
        for p in range(5):
            r = base + 16 + 4*p
            if p < 4: A(f"buffer_load_dwordx4 v[{r}:{r+3}], v{VW}, s[20:23], s37 offen offset:{1024*p}")
            else: A(f"buffer_load_dwordx4 v[{r}:{r+3}], v{VW+1}, s[20:23], s37 offen")
            vm.issue(st)
        for q in range(4):
            r = base + 4*q
            A(f"buffer_load_dwordx4 v[{r}:{r+3}], v{VH+q}, s[16:19], s36 offen")
            vm.issue(st)
    for st in range(PD): loads(st)
    A("v_and_b32 v3, 15, v1")
    A("s_lshl_b32 s13, s10, 6")
    A("s_lshl_b32 s14, s3, 4")
    A("s_add_u32 s13, s13, s14")
    A("v_add_u32 v3, s13, v3")
    A("v_lshrrev_b32 v4, 8, v3")
    A("v_bfe_u32 v5, v3, 3, 3")
    A("v_lshl_add_u32 v4, v4, 3, v5")
    A("v_bfe_u32 v5, v3, 6, 2")
    A("v_and_b32 v6, 7, v3")
    A("v_lshl_add_u32 v5, v5, 3, v6")
    A("v_lshl_add_u32 v4, v5, 6, v4")
    A("v_mul_u32_u24 v4, 1280, v4")
    A("v_lshrrev_b32 v5, 4, v1")
    A("s_mul_i32 s13, s11, 160")
    A("v_lshl_add_u32 v4, v5, 3, v4")
    A("v_add_u32 v4, s13, v4")
    A("s_mul_i32 s13, s11, 320")
    A(f"s_add_u32 s13, s13, {5*2560}")
    A("v_lshlrev_b32 v5, 4, v5")
    A("v_add_u32 v5, s13, v5")
    for st in range(NST):
        if st + PD < NST: loads(st + PD)
        vm.wait([st])
        base = FR + (st % RING)*36
        for p in range(5):
            for q in range(4):
                c = ACC + (q*5+p)*4
                src = "0" if st == 0 else f"v[{c}:{c+3}]"
                A(f"v_mfma_f32_16x16x32_bf16 v[{c}:{c+3}], v[{base+16+4*p}:{base+19+4*p}], v[{base+4*q}:{base+4*q+3}], {src}")
    X = 88; G = 100
    for p in range(5):
        A(f"buffer_load_dwordx2 v[{X+2*p}:{X+2*p+1}], v4, s[24:27], 0 offen offset:{32*p}")
        A(f"buffer_load_dwordx4 v[{G+4*p}:{G+4*p+3}], v5, s[28:31], 0 offen offset:{64*p}")
    A("s_mul_i32 s13, s3, 20480")
    A("v_add_u32 v6, s13, v2")
    for q in range(4):
        A(f"s_cmp_eq_u32 s3, {q}")
        A(f"s_cbranch_scc1 k6_skipw{q}")
        for p in range(5):
            c = ACC + (q*5+p)*4
            A(f"ds_write_b128 v6, v[{c}:{c+3}] offset:{(q*5+p)*1024}")
        A(f"k6_skipw{q}:")
    OWN = 124
    for q in range(4):
        A(f"s_cmp_lg_u32 s3, {q}")
        A(f"s_cbranch_scc1 k6_skipm{q}")
        for r in range(20):
            A(f"v_mov_b32 v{OWN+r}, v{ACC+q*20+r}")
        A(f"k6_skipm{q}:")
    A("s_waitcnt lgkmcnt(0)")
    A("s_barrier")
    R = 148
    for k in range(1, 4):
        A(f"s_add_u32 s13, s3, {k}")
        A("s_and_b32 s13, s13, 3")
        A("s_mul_i32 s13, s13, 20480")
        A("s_mul_i32 s14, s3, 5120")
        A("s_add_u32 s13, s13, s14")
        A(f"v_add_u32 v7, s13, v2")
        for p in range(5):
            r = R + (k-1)*20 + 4*p
            A(f"ds_read_b128 v[{r}:{r+3}], v7 offset:{p*1024}")
    for k in range(1, 4):
        A(f"s_waitcnt lgkmcnt({5*(3-k)})")
        for r in range(20):
            A(f"v_add_f32 v{OWN+r}, v{OWN+r}, v{R+(k-1)*20+r}")
    A("s_waitcnt vmcnt(0)")
    for p in range(5):
        for z in range(2):
            A(f"v_lshlrev_b32 v8, 16, v{X+2*p+z}")
            A(f"v_and_b32 v9, 0xffff0000, v{X+2*p+z}")
            A(f"v_fmac_f32 v8, v{G+4*p+2*z}, v{OWN+4*p+2*z}")
            A(f"v_fmac_f32 v9, v{G+4*p+2*z+1}, v{OWN+4*p+2*z+1}")
            A(f"v_cvt_pk_bf16_f32 v{10+2*p+z}, v8, v9")
        A(f"buffer_store_dwordx2 v[{10+2*p}:{11+2*p}], v4, s[32:35], 0 offen offset:{32*p}")
    A("k6_end:")
    A("s_endpgm")
    return K
```

```python
import sys; sys.path.insert(0,'work')
from gen_common import *
import gen_k1, gen_k2, gen_k3, gen_k4, gen_k5, gen_k6, chk
def dummy():
    K = Kern("dummy_kernel", 256, 0, vgpr=8)
    K.A("s_endpgm")
    return K
def mk(path, pre, post):
    ks=[gen_k1.k1(), gen_k2.k2(), gen_k3.k3(), gen_k4.k4(), gen_k5.k5(), gen_k6.k6()]
    d = dummy()
    order = [d]*pre + ks + [d]*post
    assemble_file(ks+[d] if (pre or post) else ks, path, order)
    chk.chk(path)
mk('d0.s',0,0)
mk('d_post1.s',0,1)
mk('d_post4.s',0,4)
mk('d_pre1.s',1,0)
mk('d_pre4.s',4,0)
```

```python
import math
from asm import *

S, D, F = 2048, 640, 1728
NC = 321
WS_MOD = 0x0
WS_WT  = 0x100000
WS_Y1  = 0x400000
WS_Z   = 0x700000
WS_X2  = 0xA00000
WS_H2P = 0xD00000
WS_HH  = 0x1000000
WS_W13 = 0x1800000
WS_W2  = 0x1D00000
SZ_MOD = 3840*4
SZ_COL = 321*8192
SZ_X   = S*D*2
SZ_H2P = 128*20*1024
SZ_HH  = 128*54*1024
SZ_W13 = 20*108*2*1024
SZ_W2P = 54*40*1024
SZ_WF  = S*NC*2
KA = dict(x=0, wr=8, wi=16, bx=24, w1=32, w3=40, w2=48, c=56, wmod=64, out=72, dbg=80, ws=88)
OOB = 0x40000000

def srd(A, d, base, off, size):
    if off:
        A(f"s_add_u32 s{d}, s{base}, {hex(off)}")
        A(f"s_addc_u32 s{d+1}, s{base+1}, 0")
    else:
        A(f"s_mov_b32 s{d}, s{base}")
        A(f"s_mov_b32 s{d+1}, s{base+1}")
    A(f"s_mov_b32 s{d+2}, {hex(size)}")
    A(f"s_mov_b32 s{d+3}, 0x20000")

def sigma(u, h, e):
    return 16*u + 8*(e >> 2) + 4*h + (e & 3)

import os
PROF = bool(int(os.environ.get("PROF", "0")))
WS_PROF = 0x2000000
PROF_IDX = [0]
def prof_wrap(name, body, kidx):
    lab = name + "_prof_end"
    lines = body.split("\n")
    out = ["s_memrealtime s[98:99]", "s_memtime s[88:89]"] + [f"s_mov_b32 s{56+i}, 0" for i in range(24)]
    for l in lines:
        if l.strip() == "s_endpgm": out.append(f"s_branch {lab}")
        else: out.append(l)
    out += [f"{lab}:", "s_waitcnt vmcnt(0) lgkmcnt(0)", "s_memrealtime s[100:101]", "s_memtime s[86:87]", "s_load_dwordx2 s[96:97], s[0:1], 88",
            "s_mov_b64 exec, -1", "v_lshrrev_b32 v1, 6, v0", "s_nop 1", "v_readfirstlane_b32 s90, v1", "s_waitcnt lgkmcnt(0)",
            f"s_add_u32 s92, s96, {hex(WS_PROF)}", "s_addc_u32 s93, s97, 0", "s_mov_b32 s94, 0x200000", "s_mov_b32 s95, 0x20000",
            f"s_add_u32 s91, s2, {kidx*512}", "s_lshl_b32 s91, s91, 2", "s_add_u32 s91, s91, s90", "s_lshl_b32 s91, s91, 7",
            "v_and_b32 v1, 63, v0", "v_lshlrev_b32 v1, 2, v1", "v_add_u32 v1, s91, v1"]
    src = [98, 99, 100, 101, 88, 89, 86, 87] + [56+i for i in range(24)]
    for i, r in enumerate(src): out.append(f"v_writelane_b32 v2, s{r}, {i}")
    out += ["s_mov_b32 exec_lo, -1", "s_mov_b32 exec_hi, 0", "s_nop 4", "buffer_store_dword v2, v1, s[92:95], 0 offen", "s_endpgm"]
    return "\n".join(out) + "\n"

DBGT = bool(int(os.environ.get("DBGT", "0")))
def dbgt_wrap(name, body, kidx):
    lab = name + "_dbg_end"
    out = ["s_memrealtime s[98:99]"]
    for l in body.split("\n"):
        if l.strip() == "s_endpgm": out.append(f"s_branch {lab}")
        else: out.append(l)
    out += [f"{lab}:", "s_waitcnt vmcnt(0) lgkmcnt(0)", "s_memrealtime s[100:101]", "s_load_dwordx2 s[96:97], s[0:1], 80",
            "s_and_b32 s90, s2, 15", "s_cmp_lg_u32 s90, 0", f"s_cbranch_scc1 {lab}2",
            "s_mov_b64 exec, -1", "v_lshrrev_b32 v1, 6, v0", "s_nop 1", "v_readfirstlane_b32 s90, v1", "s_cmp_lg_u32 s90, 0", f"s_cbranch_scc1 {lab}2",
            "s_waitcnt lgkmcnt(0)",
            f"s_add_u32 s92, s96, {(5-kidx)*512}", "s_addc_u32 s93, s97, 0", "s_mov_b32 s94, 256", "s_mov_b32 s95, 0x20000",
            "s_not_b32 s98, s98", "v_mov_b32 v2, s98", "v_mov_b32 v3, s100", f"v_mov_b32 v1, {kidx*8}",
            "s_mov_b64 exec, 1", "s_nop 4", "buffer_atomic_umax v2, v1, s[92:95], 0 offen", "buffer_atomic_umax v3, v1, s[92:95], 0 offen offset:4",
            f"{lab}2:", "s_endpgm"]
    return "\n".join(out) + "\n"

INNER_OFF = [False]
def stamp(A, i):
    if not PROF: return
    if INNER_OFF[0]: return
    A("s_waitcnt lgkmcnt(0)")
    A("s_memtime s[84:85]")
    A("s_waitcnt lgkmcnt(0)")
    A(f"s_mov_b32 s{56+i}, s84")

class Kern:
    def __init__(self, name, grid, lds, vgpr=128, agpr=0):
        self.name = name; self.grid = grid; self.lds = lds
        self.vgpr = vgpr; self.agpr = agpr
        self.A = A()
    def launch_line(self):
        return f"; @launch kernel={self.name} grid=({self.grid},1,1) block=(256,1,1) lds={self.lds}"
    def text(self):
        body = self.A.text()
        if DBGT:
            body = dbgt_wrap(self.name, body, PROF_IDX[0]); PROF_IDX[0] += 1
        if PROF:
            body = prof_wrap(self.name, body, PROF_IDX[0]); PROF_IDX[0] += 1
        acc = (self.vgpr + 3)//4*4
        tot = acc + self.agpr if self.agpr else self.vgpr
        return kernel_head(self.name) + body + kernel_desc(self.name, tot, 102, acc)

HEADER = open("adaLN_cond__spectral_gfnet__glu_gated_swiglu__prompt.s.ref").read().split("; Override launch")[0]

def assemble_file(kerns, path, order=None):
    t = HEADER
    for k in (order or kerns):
        t += k.launch_line() + "\n"
    t += '.amdgcn_target "amdgcn-amd-amdhsa--gfx950"\n'
    seen = set()
    for k in kerns:
        if k.name in seen: continue
        seen.add(k.name)
        t += k.text()
    open(path, "w").write(t)
    return t

def bf16_round_v(A, dst, src):
    A(f"v_cvt_pk_bf16_f32 v{dst}, v{src}, v{src}")
    A(f"v_lshlrev_b32 v{dst}, 16, v{dst}")
```

```python
from gen_common import *

MAIN = "adaLN_cond__spectral_gfnet__glu_gated_swiglu__prompt_kernel"
N_MOD = 240
N_WT = 192

def k1(name=MAIN):
    K = Kern(name, N_MOD + N_WT, 1024, vgpr=64)
    A = K.A
    A(f"s_cmp_ge_u32 s2, {N_MOD+N_WT}")
    A(f"s_cbranch_scc1 k1_end")
    A("s_load_dwordx4 s[4:7], s[0:1], 56")
    A("s_load_dwordx2 s[8:9], s[0:1], 88")
    A("s_load_dwordx4 s[12:15], s[0:1], 8")
    A(f"s_cmp_ge_u32 s2, {N_MOD}")
    A("s_cbranch_scc1 k1_wt")
    A("s_and_b32 s16, s2, 7")
    A("s_lshr_b32 s17, s2, 3")
    A("s_mul_i32 s16, s16, 30")
    A("s_add_u32 s16, s16, s17")
    A("s_lshl_b32 s17, s16, 5")
    A("v_lshrrev_b32 v1, 1, v0")
    A("v_and_b32 v2, 1, v0")
    A("v_mul_u32_u24 v3, 7680, v1")
    A("v_lshl_add_u32 v3, v2, 4, v3")
    A("v_add_u32 v3, s17, v3")
    A("v_lshlrev_b32 v4, 1, v1")
    A("s_waitcnt lgkmcnt(0)")
    srd(A, 20, 4, 0, 1280)
    srd(A, 24, 6, 0, 640*7680)
    srd(A, 28, 8, WS_MOD, SZ_MOD)
    for i in range(5):
        A(f"buffer_load_ushort v{8+i}, v4, s[20:23], 0 offen offset:{256*i}")
    for i in range(5):
        if i: A(f"s_mov_b32 s{32+i}, {i*128*7680}")
    for i in range(5):
        so = f"s{32+i}" if i else "0"
        A(f"buffer_load_dwordx4 v[{16+4*i}:{19+4*i}], v3, s[24:27], {so} offen")
    for q in range(8): A(f"v_mov_b32 v{40+q}, 0")
    stamp(A, 0)
    A("s_waitcnt vmcnt(5)")
    stamp(A, 1)
    for i in range(5):
        r = 8+i
        A(f"v_lshlrev_b32 v{r}, 16, v{r}")
        A(f"v_mul_f32 v14, {flit(-math.log2(math.e))}, v{r}")
        A(f"v_exp_f32 v14, v14")
        A(f"v_add_f32 v14, 1.0, v14")
        A(f"v_rcp_f32 v14, v14")
        A(f"v_mul_f32 v{r}, v{r}, v14")
        bf16_round_v(A, r, r)
    for i in range(5):
        A(f"s_waitcnt vmcnt({4-i})")
        for q in range(4):
            w = 16+4*i+q
            A(f"v_lshlrev_b32 v14, 16, v{w}")
            A(f"v_and_b32 v15, 0xffff0000, v{w}")
            A(f"v_fmac_f32 v{40+2*q}, v{8+i}, v14")
            A(f"v_fmac_f32 v{41+2*q}, v{8+i}, v15")
    stamp(A, 2)
    for ctl in ["quad_perm:[2,3,0,1]", "row_ror:4", "row_ror:8"]:
        for q in range(8):
            A(f"v_add_f32_dpp v{40+q}, v{40+q}, v{40+q} {ctl} row_mask:0xf bank_mask:0xf")
    A("v_lshrrev_b32 v5, 4, v0")
    A("v_lshlrev_b32 v5, 6, v5")
    A("v_lshl_add_u32 v5, v2, 5, v5")
    A("v_and_b32 v6, 14, v0")
    A("v_cmp_eq_u32 vcc, 0, v6")
    A("s_and_saveexec_b64 s[40:41], vcc")
    A("ds_write_b128 v5, v[40:43]")
    A("ds_write_b128 v5, v[44:47] offset:16")
    A("s_mov_b64 exec, s[40:41]")
    A("s_waitcnt lgkmcnt(0)")
    A("s_barrier")
    A("v_cmp_gt_u32 vcc, 64, v0")
    A("s_and_saveexec_b64 s[40:41], vcc")
    A("s_cbranch_execz k1_end")
    A("v_and_b32 v6, 15, v0")
    A("v_lshrrev_b32 v7, 4, v0")
    A("v_lshlrev_b32 v7, 8, v7")
    A("v_lshl_add_u32 v7, v6, 2, v7")
    A("ds_read2_b32 v[16:17], v7 offset0:0 offset1:16")
    A("ds_read2_b32 v[18:19], v7 offset0:32 offset1:48")
    A("s_waitcnt lgkmcnt(0)")
    A("v_add_f32 v16, v16, v17")
    A("v_add_f32 v18, v18, v19")
    A("v_add_f32 v16, v16, v18")
    A("v_mov_b32 v17, v16")
    A("v_permlane16_swap_b32 v16, v17")
    A("v_add_f32 v16, v16, v17")
    A("v_mov_b32 v17, v16")
    A("v_permlane32_swap_b32 v16, v17")
    A("v_add_f32 v16, v16, v17")
    bf16_round_v(A, 16, 16)
    A("s_cmp_ge_u32 s16, 160")
    A("s_cselect_b32 s18, 120, 0")
    A("s_sub_u32 s18, s16, s18")
    A("s_sub_u32 s18, s18, 40")
    A("s_cmp_lt_u32 s18, 40")
    A("s_cbranch_scc0 k1_noone")
    A("v_add_f32 v16, 1.0, v16")
    bf16_round_v(A, 16, 16)
    A("k1_noone:")
    A("s_lshl_b32 s17, s16, 6")
    A("v_lshl_add_u32 v6, v6, 2, s17")
    A("v_cmp_gt_u32 vcc, 16, v0")
    A("s_and_b64 exec, exec, vcc")
    A("buffer_store_dword v16, v6, s[28:31], 0 offen")
    A("s_endpgm")
    A("k1_wt:")
    A(f"s_sub_u32 s16, s2, {N_MOD}")
    A("s_mul_i32 s17, s16, 171")
    A("s_lshr_b32 s17, s17, 10")
    A("s_mul_i32 s18, s17, 6")
    A("s_sub_u32 s18, s16, s18")
    A("s_mul_i32 s18, s18, 54")
    A("s_and_b32 s19, s17, 1")
    A("s_lshr_b32 s17, s17, 1")
    A("v_and_b32 v1, 63, v0")
    A("v_lshrrev_b32 v2, 6, v0")
    A("v_add_u32 v3, s18, v1")
    A("s_lshl_b32 s19, s19, 4")
    A("v_lshl_add_u32 v4, v2, 2, s19")
    A("s_lshl_b32 s33, s17, 7")
    A("v_add_u32 v5, s33, v4")
    A("v_mul_u32_u24 v5, 642, v5")
    A("v_lshl_add_u32 v5, v3, 1, v5")
    A("v_lshlrev_b32 v6, 13, v3")
    A("v_lshl_add_u32 v6, v4, 4, v6")
    A("s_lshl_b32 s33, s17, 9")
    A("v_add_u32 v6, s33, v6")
    A("v_cmp_gt_u32 vcc, 54, v1")
    A(f"v_cmp_gt_u32 s[40:41], {NC}, v3") if False else None
    A(f"s_movk_i32 s33, {NC}")
    A("v_cmp_gt_u32 s[40:41], s33, v3")
    A("s_and_b64 vcc, vcc, s[40:41]")
    A(f"v_mov_b32 v7, {hex(OOB)}")
    A("v_cndmask_b32 v5, v7, v5, vcc")
    A("v_cndmask_b32 v6, v7, v6, vcc")
    for i in range(1, 4): A(f"s_mov_b32 s{33+i}, {i*32*642}")
    A("s_waitcnt lgkmcnt(0)")
    srd(A, 20, 12, 0, SZ_WF)
    srd(A, 24, 14, 0, SZ_WF)
    srd(A, 28, 8, WS_WT, SZ_COL)
    for kk in range(4):
        for i in range(4):
            so = f"s{33+i}" if i else "0"
            A(f"buffer_load_ushort v{16+4*kk+i}, v5, s[20:23], {so} offen offset:{642*kk}")
            A(f"buffer_load_ushort v{32+4*kk+i}, v5, s[24:27], {so} offen offset:{642*kk}")
    for kk in range(4):
        A(f"s_waitcnt vmcnt({24-8*kk + kk})")
        for i in range(4):
            A(f"v_lshl_or_b32 v{16+4*kk+i}, v{32+4*kk+i}, 16, v{16+4*kk+i}")
        A(f"buffer_store_dwordx4 v[{16+4*kk}:{19+4*kk}], v6, s[28:31], 0 offen offset:{16*kk}")
    A("k1_end:")
    A("s_endpgm")
    return K
```

```python
from gen_common import *

PITCH2 = 1312
ROWS_LDS = 8*PITCH2
TR_OFF = 10496

def reduce32(A, regs, tmp):
    for ctl in ["quad_perm:[1,0,3,2]", "quad_perm:[2,3,0,1]", "row_ror:4", "row_ror:8"]:
        for r in regs:
            A(f"v_add_f32_dpp v{r}, v{r}, v{r} {ctl} row_mask:0xf bank_mask:0xf")
    for r, t in zip(regs, tmp):
        A(f"v_mov_b32 v{t}, v{r}")
    for r, t in zip(regs, tmp):
        A(f"v_permlane16_swap_b32 v{r}, v{t}")
    for r, t in zip(regs, tmp):
        A(f"v_add_f32 v{r}, v{r}, v{t}")

def unpack_bf16(A, dst, src, n):
    for q in range(n):
        A(f"v_lshlrev_b32 v{dst+2*q}, 16, v{src+q}")
        A(f"v_and_b32 v{dst+2*q+1}, 0xffff0000, v{src+q}")

def layernorm(A, xf, n, t0, t1):
    A(f"v_add_f32 v{t0}, v{xf}, v{xf+1}")
    A(f"v_add_f32 v{t1}, v{xf+2}, v{xf+3}")
    for q in range(4, n, 2):
        A(f"v_add_f32 v{t0}, v{t0}, v{xf+q}")
        A(f"v_add_f32 v{t1}, v{t1}, v{xf+q+1}")
    A(f"v_add_f32 v{t0}, v{t0}, v{t1}")
    reduce32(A, [t0], [t1])
    A(f"v_mul_f32 v{t0}, {flit(1.0/640)}, v{t0}")
    for q in range(n):
        A(f"v_sub_f32 v{xf+q}, v{xf+q}, v{t0}")
    A(f"v_mul_f32 v{t0}, v{xf}, v{xf}")
    A(f"v_mul_f32 v{t1}, v{xf+1}, v{xf+1}")
    for q in range(2, n, 2):
        A(f"v_fmac_f32 v{t0}, v{xf+q}, v{xf+q}")
        A(f"v_fmac_f32 v{t1}, v{xf+q+1}, v{xf+q+1}")
    A(f"v_add_f32 v{t0}, v{t0}, v{t1}")
    reduce32(A, [t0], [t1])
    A(f"v_mov_b32 v{t1}, {flit(1e-5)}")
    A(f"v_fmac_f32 v{t1}, {flit(1.0/640)}, v{t0}")
    A(f"v_rsq_f32 v{t0}, v{t1}")

def k2(name="k2_kernel"):
    K = Kern(name, 256, TR_OFF + 16384, vgpr=216)
    A = K.A
    A("s_cmp_ge_u32 s2, 256")
    A("s_cbranch_scc1 k2_end")
    A("s_load_dwordx2 s[4:5], s[0:1], 0")
    A("s_load_dwordx2 s[6:7], s[0:1], 88")
    A("v_and_b32 v1, 63, v0")
    A("v_and_b32 v2, 31, v0")
    A("v_lshrrev_b32 v3, 5, v1")
    A("v_lshrrev_b32 v4, 6, v0")
    A("v_readfirstlane_b32 s3, v4")
    A("s_and_b32 s8, s2, 7")
    A("s_lshl_b32 s8, s8, 3")
    A("s_bfe_u32 s9, s2, 0x30003")
    A("s_add_u32 s8, s8, s9")
    A("s_lshr_b32 s9, s2, 7")
    A("s_bfe_u32 s10, s2, 0x10006")
    A("s_lshl_b32 s11, s9, 4")
    A("s_lshl_b32 s12, s10, 2")
    A("s_add_u32 s11, s11, s12")
    A("s_lshr_b32 s12, s3, 1")
    A("s_lshl_b32 s12, s12, 3")
    A("s_add_u32 s11, s11, s12")
    A("s_and_b32 s12, s3, 1")
    A("s_lshl_b32 s12, s12, 1")
    A("s_add_u32 s11, s11, s12")
    A("s_lshl_b32 s11, s11, 6")
    A("s_add_u32 s11, s11, s8")
    A("s_mul_i32 s11, s11, 1280")
    A("v_mul_u32_u24 v5, 81920, v3")
    A("v_lshl_add_u32 v5, v2, 3, v5")
    A("v_add_u32 v5, s11, v5")
    A("v_lshlrev_b32 v6, 4, v2")
    A("s_movk_i32 s13, 2560")
    A("s_waitcnt lgkmcnt(0)")
    srd(A, 16, 4, 0, SZ_X)
    srd(A, 20, 6, WS_MOD, SZ_MOD)
    srd(A, 24, 6, WS_Y1, SZ_COL)
    for i in range(5):
        A(f"buffer_load_dwordx2 v[{8+2*i}:{9+2*i}], v5, s[16:19], 0 offen offset:{256*i}")
    for i in range(5):
        A(f"buffer_load_dwordx4 v[{20+4*i}:{23+4*i}], v6, s[20:23], s13 offen offset:{512*i}")
        A(f"buffer_load_dwordx4 v[{40+4*i}:{43+4*i}], v6, s[20:23], 0 offen offset:{512*i}")
    stamp(A, 0)
    A("v_cvt_f32_u32 v7, v2")
    A("v_cvt_f32_u32 v18, v3")
    A(f"v_mul_f32 v212, {flit(1/32)}, v7")
    A("v_mul_f32 v213, v212, v18")
    A(f"v_mul_f32 v213, {flit(8.0)}, v213")
    for mh in range(2):
        for p in range(4):
            for z in range(2):
                A(f"v_fmamk_f32 v214, v212, {hex(f32bits(float(16*mh+2*p+z)))}, v213")
                A(f"v_cos_f32 v{60+z}, v214")
                A(f"v_sin_f32 v{62+z}, -v214")
            A(f"v_cvt_pk_bf16_f32 v{80+4*mh+p}, v60, v61")
            A(f"v_cvt_pk_bf16_f32 v{88+4*mh+p}, v62, v63")
    A(f"v_mul_f32 v212, {flit(1/640)}, v7")
    A("v_mul_f32 v213, v212, v18")
    A("v_mul_f32 v213, 4.0, v213")
    for r in range(12):
        A(f"v_fmamk_f32 v214, v212, {hex(f32bits(float(8*(r//4)+r%4)))}, v213")
        A(f"v_cos_f32 v{96+r}, v214")
        A(f"v_sin_f32 v{108+r}, v214")
    A("v_and_b32 v60, 15, v2")
    A("v_cvt_f32_u32 v60, v60")
    A("v_lshrrev_b32 v61, 4, v2")
    A("v_cvt_f32_u32 v61, v61")
    A(f"v_mul_f32 v212, {flit(1/20)}, v60")
    A("v_mul_f32 v213, v212, v18")
    A("v_mul_f32 v213, 4.0, v213")
    A(f"v_fmamk_f32 v213, v61, {hex(f32bits(0.25))}, v213")
    A(f"v_add_f32 v215, {flit(-0.25)}, v213")
    def cpair(dst, consts, bases):
        for z in range(2):
            A(f"v_fmamk_f32 v214, v212, {hex(f32bits(float(consts[z])))}, v{bases[z]}")
            A(f"v_cos_f32 v{62+z}, v214")
        A(f"v_cvt_pk_bf16_f32 v{dst}, v62, v63")
    for p in range(4):
        d = [8*((2*p+z) >> 2) + ((2*p+z) & 3) for z in range(2)]
        cpair(120+p, d, [213, 213])
        cpair(124+p, d, [215, 215])
    for p in range(2):
        d = [16+2*p, 17+2*p]
        cpair(128+p, d, [213, 213])
        cpair(130+p, d, [215, 215])
    A("v_cmp_eq_u32 vcc, 0, v3")
    for p in range(4):
        A(f"v_cndmask_b32 v{128+p}, 0, v{128+p}, vcc")
    stamp(A, 1)
    A("s_waitcnt vmcnt(10)")
    stamp(A, 2)
    unpack_bf16(A, 60, 8, 10)
    layernorm(A, 60, 20, 212, 213)
    stamp(A, 3)
    A("s_waitcnt vmcnt(0)")
    stamp(A, 4)
    for q in range(20):
        A(f"v_mul_f32 v{20+q}, v{20+q}, v212")
    for q in range(20):
        A(f"v_fma_f32 v{60+q}, v{60+q}, v{20+q}, v{40+q}")
    for q in range(10):
        A(f"v_cvt_pk_bf16_f32 v{8+q}, v{60+2*q}, v{61+2*q}")
    A(f"s_mul_i32 s14, s3, {2*PITCH2}")
    A(f"v_mul_u32_u24 v4, {PITCH2}, v3")
    A("v_lshl_add_u32 v4, v2, 3, v4")
    A("v_add_u32 v4, s14, v4")
    for i in range(5):
        A(f"ds_write_b64 v4, v[{8+2*i}:{9+2*i}] offset:{256*i}")
    A("v_mov_b32 v18, 0")
    A("v_mov_b32 v19, 0")
    A("v_cmp_eq_u32 vcc, 0, v2")
    A("s_and_saveexec_b64 s[28:29], vcc")
    A("ds_write_b64 v4, v[18:19] offset:1280")
    A("s_mov_b64 exec, s[28:29]")
    A("v_bfe_u32 v5, v1, 2, 2")
    A("v_lshl_add_u32 v5, v3, 3, v5")
    A("v_mul_u32_u24 v5, 40, v5")
    A("v_bfe_u32 v6, v1, 4, 1")
    A("v_lshl_add_u32 v5, v6, 5, v5")
    A("v_and_b32 v6, 3, v1")
    A("v_lshl_add_u32 v5, v6, 3, v5")
    A("v_add_u32 v5, s14, v5")
    A("s_waitcnt lgkmcnt(0)")
    for row in range(2):
        for mh in range(2):
            for j in range(2):
                d = 132 + 8*row + 4*mh + 2*j
                A(f"ds_read_b64_tr_b16 v[{d}:{d+1}], v5 offset:{row*PITCH2 + 640*mh + 160*j}")
    T = [[148, 164], [180, 196]]
    for mh in range(2):
        for row in range(2):
            A(f"s_waitcnt lgkmcnt({ (2 if row==0 else 0) + 0 if mh==1 else 0})") if False else None
        if mh == 0: A("s_waitcnt lgkmcnt(0)")
        for row in range(2):
            a = 132 + 8*row + 4*mh
            for ri in range(2):
                t = T[row][ri]; b = (80 if ri == 0 else 88) + 4*mh
                c = "0" if mh == 0 else f"v[{t}:{t+15}]"
                A(f"v_mfma_f32_32x32x16_bf16 v[{t}:{t+15}], v[{a}:{a+3}], v[{b}:{b+3}], {c}")
    stamp(A, 5)
    B = [20, 32]
    for row in range(2):
        tr, ti = T[row]
        for r in range(12):
            c, s_ = 96+r, 108+r
            A(f"v_mul_f32 v60, v{tr+r}, v{c}")
            A(f"v_mul_f32 v61, v{ti+r}, v{c}")
            A(f"v_fma_f32 v{62+r}, v{ti+r}, v{s_}, v60")
            A(f"v_fma_f32 v{ti+r}, -v{tr+r}, v{s_}, v61")
        b = B[row]
        for p in range(4):
            A(f"v_cvt_pk_bf16_f32 v{b+p}, v{62+2*p}, v{63+2*p}")
            A(f"v_cvt_pk_bf16_f32 v{b+4+p}, v{ti+2*p}, v{ti+2*p+1}")
        for p in range(2):
            A(f"v_cvt_pk_bf16_f32 v{b+8+p}, v{70+2*p}, v{71+2*p}")
            A(f"v_cvt_pk_bf16_f32 v{b+10+p}, v{ti+8+2*p}, v{ti+9+2*p}")
    O = [148, 180]
    for st in range(3):
        for row in range(2):
            o = O[row]; b = B[row] + 4*st; a = 120 + 4*st
            c = "0" if st == 0 else f"v[{o}:{o+15}]"
            A(f"v_mfma_f32_32x32x16_bf16 v[{o}:{o+15}], v[{a}:{a+3}], v[{b}:{b+3}], {c}")
    stamp(A, 6)
    A("s_lshl_b32 s15, s3, 7")
    A(f"s_add_u32 s15, s15, {TR_OFF}")
    A("v_lshlrev_b32 v4, 11, v3")
    A("v_lshl_add_u32 v4, v2, 2, v4")
    A("v_add_u32 v4, s15, v4")
    for ri in range(2):
        for r in range(7):
            A(f"v_cvt_pk_bf16_f32 v{60+7*ri+r}, v{O[0]+8*ri+r}, v{O[1]+8*ri+r}")
            A(f"ds_write_b32 v4, v{60+7*ri+r} offset:{ri*8192 + (8*(r//4)+r%4)*512}")
    A("s_lshl_b32 s15, s3, 9")
    A(f"s_add_u32 s15, s15, {TR_OFF}")
    A("v_lshlrev_b32 v5, 13, v3")
    A("v_lshl_add_u32 v5, v2, 2, v5")
    A("v_add_u32 v5, s15, v5")
    A("s_lshl_b32 s15, s3, 18")
    A("s_lshr_b32 s14, s8, 5")
    A("s_lshl_b32 s14, s14, 12")
    A("s_add_u32 s15, s15, s14")
    A("s_lshl_b32 s14, s9, 10")
    A("s_add_u32 s15, s15, s14")
    A("s_lshl_b32 s14, s10, 9")
    A("s_add_u32 s15, s15, s14")
    A("s_and_b32 s14, s8, 31")
    A("s_lshl_b32 s14, s14, 4")
    A("s_add_u32 s15, s15, s14")
    A("v_lshlrev_b32 v6, 13, v2")
    A("v_lshl_add_u32 v6, v3, 11, v6")
    A("v_add_u32 v6, s15, v6")
    A("s_mov_b32 s30, 0x100000")
    A("s_mov_b32 s31, 0x200000")
    A("s_waitcnt lgkmcnt(0)")
    A("s_barrier")
    stamp(A, 7)
    for n in range(3):
        for wq in range(4):
            A(f"ds_read_b32 v{8+4*n+wq}, v5 offset:{2048*n + 128*wq}")
    for n in range(3):
        A(f"s_waitcnt lgkmcnt({8-4*n})")
        so = ["0", "s30", "s31"][n]
        A(f"buffer_store_dwordx4 v[{8+4*n}:{11+4*n}], v6, s[24:27], {so} offen")
    stamp(A, 8)
    A("k2_end:")
    A("s_endpgm")
    return K
```

```python
from gen_common import *

NCOLWG = 161
def mf(A, d, a, b, first):
    c = "0" if first else f"v[{d}:{d+15}]"
    A(f"v_mfma_f32_32x32x16_bf16 v[{d}:{d+15}], v[{a}:{a+3}], v[{b}:{b+3}], {c}")

def csel(A, d, a, b):
    A(f"s_mov_b32 {d}, {b}")
    A(f"s_cselect_b32 {d}, {a}, {d}")

def fk(x): return hex(f32bits(float(x)))

def k3(name="k3_kernel"):
    K = Kern(name, 256, 81920, vgpr=248)
    A = K.A
    A("s_cmp_ge_u32 s2, 256")
    A("s_cbranch_scc1 k3_end")
    A("s_load_dwordx2 s[6:7], s[0:1], 88")
    A("s_load_dwordx4 s[36:39], s[0:1], 32")
    A("s_load_dwordx2 s[40:41], s[0:1], 48")
    A("v_and_b32 v1, 63, v0")
    A("v_and_b32 v2, 31, v0")
    A("v_lshrrev_b32 v3, 5, v1")
    A("v_lshrrev_b32 v4, 6, v0")
    A("v_readfirstlane_b32 s3, v4")
    A(f"s_cmp_ge_u32 s2, {NCOLWG}")
    A("s_cbranch_scc1 k3_prep")
    A("s_and_b32 s8, s3, 1")
    A("s_lshr_b32 s9, s3, 1")
    A("s_lshl_b32 s10, s2, 1")
    A("s_add_u32 s9, s9, s10")
    A("s_lshl_b32 s10, s9, 13")
    A("s_lshl_b32 s11, s8, 12")
    A("s_add_u32 s10, s10, s11")
    A("v_lshlrev_b32 v4, 4, v1")
    A("v_add_u32 v4, s10, v4")
    A("s_waitcnt lgkmcnt(0)")
    srd(A, 16, 6, WS_Y1, SZ_COL)
    srd(A, 20, 6, WS_WT, SZ_COL)
    srd(A, 24, 6, WS_Z, SZ_COL)
    for ri in range(2):
        for t in range(2):
            d = 8 + 8*ri + 4*t
            A(f"buffer_load_dwordx4 v[{d}:{d+3}], v4, s[16:19], 0 offen offset:{ri*2048+t*1024}")
    for j in range(4):
        A(f"buffer_load_dwordx4 v[{24+4*j}:{27+4*j}], v4, s[20:23], 0 offen offset:{j*1024}")
    stamp(A, 0)
    C32, S32, N32 = 40, 48, 56
    C64, S64 = 64, 80
    TWc, TWs = 96, 112
    AR, AI = 128, 144
    Pr, Pi, Pn = 160, 168, 176
    Or, Oi, On = 184, 192, 200
    T2c, T2s = 208, 224
    t0, t1, t2, t3, t4, t5 = 240, 241, 242, 243, 244, 245
    hf, pf, af = 246, 247, 5
    A(f"v_cvt_f32_u32 v{hf}, v3")
    A(f"v_cvt_f32_u32 v{pf}, v2")
    A(f"v_cvt_f32_u32 v{af}, s8")
    A(f"v_mul_f32 v6, {flit(1/32)}, v{pf}")
    A(f"v_mul_f32 v7, v6, v{hf}")
    A(f"v_mul_f32 v7, 4.0, v7")
    for t in range(2):
        for p in range(4):
            for z in range(2):
                e = 2*p+z
                A(f"v_fmamk_f32 v{t0}, v6, {fk(16*t+8*(e>>2)+(e&3))}, v7")
                A(f"v_cos_f32 v{t1+z}, v{t0}")
                A(f"v_sin_f32 v{t3+z}, v{t0}")
            A(f"v_cvt_pk_bf16_f32 v{C32+4*t+p}, v{t1}, v{t2}")
            A(f"v_cvt_pk_bf16_f32 v{S32+4*t+p}, v{t3}, v{t4}")
            A(f"v_xor_b32 v{N32+4*t+p}, 0x80008000, v{S32+4*t+p}")
    A(f"v_mul_f32 v6, {flit(1/2048)}, v{pf}")
    A(f"v_fma_f32 v7, v{af}, {flit(4.0)}, v{hf}") if False else None
    A(f"v_mul_f32 v7, {flit(8.0)}, v{af}")
    A(f"v_add_f32 v7, v7, v{hf}")
    A(f"v_mul_f32 v7, 4.0, v7")
    A(f"v_mul_f32 v7, v7, v6")
    for r in range(16):
        A(f"v_fmamk_f32 v{t0}, v6, {fk(8*(r//4)+r%4)}, v7")
        A(f"v_cos_f32 v{TWc+r}, v{t0}")
        A(f"v_sin_f32 v{TWs+r}, v{t0}")
    stamp(A, 1)
    A("s_waitcnt vmcnt(4)")
    stamp(A, 2)
    Xr, Xi = 8, 16
    for t in range(2):
        mf(A, AR, Xr+4*t, C32+4*t, t == 0)
        mf(A, AI, Xi+4*t, C32+4*t, t == 0)
        mf(A, AR, Xi+4*t, S32+4*t, False)
        mf(A, AI, Xr+4*t, N32+4*t, False)
    A(f"v_mul_f32 v6, {flit(32.0)}, v{af}")
    A(f"v_add_f32 v6, v6, v{pf}")
    A(f"v_mov_b32 v{t5}, v6")
    A(f"v_mul_f32 v6, {flit(1/64)}, v6")
    for src in range(2):
        if src == 0:
            A(f"v_mul_f32 v7, {flit(8.0)}, v{af}")
        else:
            A(f"v_sub_f32 v7, 1.0, v{af}")
            A(f"v_mul_f32 v7, {flit(8.0)}, v7")
        A(f"v_add_f32 v7, v7, v{hf}")
        A(f"v_mul_f32 v7, 4.0, v7")
        A(f"v_mul_f32 v7, v7, v6")
        for u in range(2):
            for p in range(4):
                for z in range(2):
                    e = 2*p+z
                    A(f"v_fmamk_f32 v{t0}, v6, {fk(16*u+8*(e>>2)+(e&3))}, v7")
                    A(f"v_cos_f32 v{t1+z}, v{t0}")
                    A(f"v_sin_f32 v{t3+z}, v{t0}")
                A(f"v_cvt_pk_bf16_f32 v{C64+8*src+4*u+p}, v{t1}, v{t2}")
                A(f"v_cvt_pk_bf16_f32 v{S64+8*src+4*u+p}, v{t3}, v{t4}")
    stamp(A, 3)
    def cmul_pack(cr, ci, conj_tw, scale=False):
        for r in range(16):
            c, s_ = cr+r, ci+r
            A(f"v_mul_f32 v{t0}, v{AR+r}, v{c}")
            A(f"v_mul_f32 v{t1}, v{AI+r}, v{c}")
            if not conj_tw:
                A(f"v_fma_f32 v{t2+(r&1)}, v{AI+r}, v{s_}, v{t0}")
                A(f"v_fma_f32 v{AI+r}, -v{AR+r}, v{s_}, v{t1}")
            else:
                A(f"v_fma_f32 v{t2+(r&1)}, -v{AI+r}, v{s_}, v{t0}")
                A(f"v_fma_f32 v{AI+r}, v{AR+r}, v{s_}, v{t1}")
            if r & 1:
                A(f"v_cvt_pk_bf16_f32 v{Pr+r//2}, v{t2}, v{t3}")
                A(f"v_cvt_pk_bf16_f32 v{Pi+r//2}, v{AI+r-1}, v{AI+r}")
    cmul_pack(TWc, TWs, False)
    A("s_lshl_b32 s12, s3, 12")
    A("s_xor_b32 s13, s12, 0x1000")
    A("v_lshlrev_b32 v6, 4, v1")
    A("v_add_u32 v7, s13, v6")
    A("v_add_u32 v6, s12, v6")
    def exch(off):
        for g in range(2):
            A(f"ds_write_b128 v6, v[{Pr+4*g}:{Pr+4*g+3}] offset:{off+1024*g}")
            A(f"ds_write_b128 v6, v[{Pi+4*g}:{Pi+4*g+3}] offset:{off+2048+1024*g}")
        A("s_waitcnt lgkmcnt(0)")
        A("s_barrier")
        for g in range(2):
            A(f"ds_read_b128 v[{Or+4*g}:{Or+4*g+3}], v7 offset:{off+1024*g}")
            A(f"ds_read_b128 v[{Oi+4*g}:{Oi+4*g+3}], v7 offset:{off+2048+1024*g}")
    stamp(A, 4)
    exch(0)
    stamp(A, 5)
    for q in range(8): A(f"v_xor_b32 v{Pn+q}, 0x80008000, v{Pr+q}")
    for u in range(2):
        mf(A, AR, C64+4*u, Pr+4*u, u == 0)
        mf(A, AI, C64+4*u, Pi+4*u, u == 0)
        mf(A, AR, S64+4*u, Pi+4*u, False)
        mf(A, AI, S64+4*u, Pn+4*u, False)
    A("s_waitcnt lgkmcnt(0)")
    for q in range(8): A(f"v_xor_b32 v{On+q}, 0x80008000, v{Or+q}")
    for u in range(2):
        mf(A, AR, C64+8+4*u, Or+4*u, False)
        mf(A, AI, C64+8+4*u, Oi+4*u, False)
        mf(A, AR, S64+8+4*u, Oi+4*u, False)
        mf(A, AI, S64+8+4*u, On+4*u, False)
    A(f"s_cmp_eq_u32 s9, 0")
    A(f"s_cselect_b32 s14, 1, 0")
    A(f"s_cmp_eq_u32 s9, 320")
    A(f"s_cselect_b32 s14, 1, s14")
    A(f"s_cmp_eq_u32 s14, 1")
    csel(A, "s14", hex(f32bits(1.0/(2048*640))), hex(f32bits(2.0/(2048*640))))
    A(f"v_mul_f32 v4, {flit(1/2048)}, v{t5}")
    A(f"v_mul_f32 v5, v4, v{hf}")
    A(f"v_mul_f32 v5, 4.0, v5")
    for r in range(16):
        A(f"v_fmamk_f32 v{t0}, v4, {fk(8*(r//4)+r%4)}, v5")
        A(f"v_cos_f32 v{T2c+r}, v{t0}")
        A(f"v_sin_f32 v{T2s+r}, v{t0}")
        A(f"v_mul_f32 v{T2c+r}, s14, v{T2c+r}")
        A(f"v_mul_f32 v{T2s+r}, s14, v{T2s+r}")
    stamp(A, 6)
    A("s_waitcnt vmcnt(0)")
    stamp(A, 7)
    for r in range(16):
        w = 24 + r
        A(f"v_lshlrev_b32 v{t4}, 16, v{w}")
        A(f"v_and_b32 v{w}, 0xffff0000, v{w}")
        A(f"v_mul_f32 v{t0}, v{AR+r}, v{t4}")
        A(f"v_mul_f32 v{t1}, v{AI+r}, v{t4}")
        A(f"v_fma_f32 v{t2+(r&1)}, -v{AI+r}, v{w}, v{t0}")
        A(f"v_fma_f32 v{AI+r}, v{AR+r}, v{w}, v{t1}")
        if r & 1:
            A(f"v_cvt_pk_bf16_f32 v{Pr+r//2}, v{t2}, v{t3}")
            A(f"v_cvt_pk_bf16_f32 v{Pi+r//2}, v{AI+r-1}, v{AI+r}")
    stamp(A, 8)
    exch(16384)
    stamp(A, 9)
    for q in range(8): A(f"v_xor_b32 v{Pn+q}, 0x80008000, v{Pi+q}")
    for u in range(2):
        mf(A, AR, Pr+4*u, C64+4*u, u == 0)
        mf(A, AI, Pi+4*u, C64+4*u, u == 0)
        mf(A, AR, Pn+4*u, S64+4*u, False)
        mf(A, AI, Pr+4*u, S64+4*u, False)
    A("s_waitcnt lgkmcnt(0)")
    for q in range(8): A(f"v_xor_b32 v{On+q}, 0x80008000, v{Oi+q}")
    for u in range(2):
        mf(A, AR, Or+4*u, C64+8+4*u, False)
        mf(A, AI, Oi+4*u, C64+8+4*u, False)
        mf(A, AR, On+4*u, S64+8+4*u, False)
        mf(A, AI, Or+4*u, S64+8+4*u, False)
    stamp(A, 10)
    cmul_pack(T2c, T2s, True)
    stamp(A, 11)
    for t in range(2):
        mf(A, AR, C32+4*t, Pr+4*t, t == 0)
        mf(A, AI, C32+4*t, Pi+4*t, t == 0)
        mf(A, AR, N32+4*t, Pi+4*t, False)
        mf(A, AI, S32+4*t, Pr+4*t, False)
    A("v_lshlrev_b32 v4, 5, v2")
    A("v_lshl_add_u32 v4, v3, 4, v4")
    A("v_add_u32 v4, s10, v4")
    for j in range(4):
        for i in range(4):
            r = 4*j+i
            A(f"v_cvt_pk_bf16_f32 v{8+r}, v{AR+r}, v{AI+r}")
        A(f"buffer_store_dwordx4 v[{8+4*j}:{11+4*j}], v4, s[24:27], 0 offen offset:{j*1024}")
    stamp(A, 12)
    A("s_endpgm")

    A("k3_prep:")
    A(f"s_sub_u32 s8, s2, {NCOLWG}")
    A("s_lshr_b32 s9, s8, 5")
    A("s_and_b32 s8, s8, 31")
    A("s_lshl_b32 s8, s8, 2")
    A("s_add_u32 s8, s8, s3")
    A("s_cmp_eq_u32 s9, 2")
    csel(A, "s10", "124", "128")
    csel(A, "s11", "1280", "3456")
    csel(A, "s12", "10", "27")
    csel(A, "s13", "6554", "2428")
    csel(A, "s14", "40960", "221184")
    csel(A, "s15", "4096", "8192")
    csel(A, "s28", "1024", "2048")
    csel(A, "s29", "4", "8")
    csel(A, "s30", "16", "4")
    A("s_waitcnt lgkmcnt(0)")
    A("s_cmp_eq_u32 s9, 0")
    A("s_cselect_b32 s16, s36, s38")
    A("s_cselect_b32 s17, s37, s39")
    A("s_cmp_eq_u32 s9, 2")
    A("s_cselect_b32 s16, s40, s16")
    A("s_cselect_b32 s17, s41, s17")
    A(f"s_mov_b32 s18, {640*1728*2}")
    A("s_mov_b32 s19, 0x20000")
    csel(A, "s31", hex(WS_W2), hex(WS_W13))
    csel(A, "s22", hex(SZ_W2P), hex(SZ_W13))
    A("s_add_u32 s20, s6, s31")
    A("s_addc_u32 s21, s7, 0")
    A("s_mov_b32 s23, 0x20000")
    A("s_cmp_eq_u32 s9, 1")
    A("s_cselect_b32 s31, 1024, 0")
    A("v_lshrrev_b32 v4, 3, v1")
    A("v_and_b32 v5, 7, v1")
    A("v_bfe_u32 v6, v1, 4, 1")
    A("v_lshrrev_b32 v7, 5, v1")
    A("v_lshlrev_b32 v6, 1, v6")
    A("v_lshl_or_b32 v6, v7, 2, v6")
    A("v_xor_b32 v7, 4, v6")
    A("v_xor_b32 v6, v5, v6")
    A("v_xor_b32 v7, v5, v7")
    A("v_mul_lo_u32 v4, v4, s11")
    A("v_lshl_add_u32 v6, v6, 4, v4")
    A("v_lshl_add_u32 v7, v7, 4, v4")
    A("s_mul_i32 s32, s3, 20480")
    A("s_lshl_b32 s33, s11, 3")
    for k in range(5):
        A(f"s_mul_i32 s34, s10, {k}")
        A("s_add_u32 s34, s34, s8")
        A("s_mul_i32 s35, s34, s13")
        A("s_lshr_b32 s35, s35, 16")
        A("s_mul_i32 s42, s35, s12")
        A("s_sub_u32 s42, s34, s42")
        A("s_cmp_lt_u32 s34, 540")
        A("s_mul_i32 s43, s35, s33")
        A("s_lshl_b32 s43, s43, 2")
        A("s_lshl_b32 s44, s42, 7")
        A("s_add_u32 s43, s43, s44")
        A("s_mul_i32 s45, s35, s14")
        A("s_mul_i32 s44, s42, s15")
        A("s_add_u32 s45, s45, s44")
        A("s_add_u32 s45, s45, s31")
        A("s_cmp_lt_u32 s34, 540")
        A(f"s_cselect_b32 s43, s43, {hex(OOB)}")
        A(f"s_cselect_b32 s{50+k}, s45, {hex(OOB)}")
        for i in range(4):
            A(f"s_add_u32 m0, s32, {4096*k+1024*i}")
            A(f"buffer_load_dwordx4 v{6+(i&1)}, s[16:19], s43 offen lds")
            if i < 3: A("s_add_u32 s43, s43, s33")
    A("v_lshrrev_b32 v8, 4, v1")
    A("v_bfe_u32 v9, v1, 2, 2")
    A("v_mul_lo_u32 v8, v8, s29")
    A("v_add_u32 v8, v8, v9")
    A("v_add_u32 v9, s30, v8")
    A("v_and_b32 v10, 1, v1")
    A("v_bfe_u32 v11, v1, 1, 1")
    for j, rr in enumerate([8, 9]):
        A(f"v_bfe_u32 v12, v{rr}, 1, 1")
        A(f"v_lshrrev_b32 v13, 2, v{rr}")
        A(f"v_lshrrev_b32 v14, 3, v{rr}")
        A(f"v_xor_b32 v13, v13, v14")
        A(f"v_and_b32 v13, 1, v13")
        A(f"v_lshl_or_b32 v12, v13, 1, v12")
        A(f"v_lshlrev_b32 v12, 1, v12")
        A(f"v_xor_b32 v12, v12, v11")
        A(f"v_lshlrev_b32 v15, 7, v{rr}")
        A(f"v_lshl_add_u32 v15, v10, 3, v15")
        A(f"v_add_u32 v15, s32, v15")
        for tile in range(4):
            A(f"v_xor_b32 v13, {2*tile}, v12")
            A(f"v_lshl_add_u32 v{16+4*j+tile}, v13, 4, v15")
    A("v_lshlrev_b32 v24, 4, v1")
    for k in range(5):
        A(f"s_waitcnt vmcnt({4*(4-k) + 4*k})")
        for tile in range(4):
            for j in range(2):
                d = 32 + 16*(k&1) + 4*tile + 2*j
                A(f"ds_read_b64_tr_b16 v[{d}:{d+1}], v{16+4*j+tile} offset:{4096*k}")
        A(f"s_mov_b32 s43, s{50+k}")
        for tile in range(4):
            A(f"s_waitcnt lgkmcnt({6-2*tile})")
            d = 32 + 16*(k&1) + 4*tile
            A(f"buffer_store_dwordx4 v[{d}:{d+3}], v24, s[20:23], s43 offen")
            if tile < 3: A("s_add_u32 s43, s43, s28")
    A("k3_end:")
    A("s_endpgm")
    return K
```

```python
from gen_common import *
from gen_k2 import reduce32, unpack_bf16, layernorm
from gen_k3 import mf, fk

ZP = 1552
YOFF = 8*ZP
YP = 2560

def k4(name="k4_kernel"):
    K = Kern(name, 256, YOFF + 8*YP, vgpr=256)
    A = K.A
    A("s_cmp_ge_u32 s2, 256")
    A("s_cbranch_scc1 k4_end")
    A("s_load_dwordx2 s[4:5], s[0:1], 0")
    A("s_load_dwordx2 s[6:7], s[0:1], 88")
    A("v_and_b32 v1, 63, v0")
    A("v_and_b32 v2, 31, v0")
    A("v_lshrrev_b32 v3, 5, v1")
    A("v_lshrrev_b32 v4, 6, v0")
    A("v_readfirstlane_b32 s3, v4")
    A("s_and_b32 s8, s2, 7")
    A("s_lshr_b32 s9, s2, 3")
    A("s_lshl_b32 s10, s8, 3")
    A("s_and_b32 s11, s9, 7")
    A("s_add_u32 s10, s10, s11")
    A("s_lshr_b32 s11, s9, 3")
    A("s_lshr_b32 s12, s10, 5")
    A("s_lshl_b32 s12, s12, 12")
    A("s_lshl_b32 s13, s11, 10")
    A("s_add_u32 s12, s12, s13")
    A("s_and_b32 s13, s10, 31")
    A("s_lshl_b32 s13, s13, 5")
    A("s_add_u32 s12, s12, s13")
    A("v_and_b32 v4, 1, v1")
    A("v_bfe_u32 v5, v1, 1, 2")
    A("v_lshrrev_b32 v6, 3, v1")
    A("s_lshl_b32 s13, s3, 3")
    A("v_add_u32 v6, s13, v6")
    A("v_lshl_add_u32 v7, v5, 5, v6")
    A("v_lshlrev_b32 v7, 13, v7")
    A("v_lshl_add_u32 v7, v4, 4, v7")
    A("v_add_u32 v7, s12, v7")
    A(f"v_mul_u32_u24 v252, {4*ZP}, v4")
    A("v_mul_u32_u24 v253, 48, v6")
    A("v_add_u32 v252, v252, v253")
    A("v_lshl_add_u32 v252, v5, 2, v252")
    A("s_lshl_b32 s13, s11, 3")
    A("s_lshl_b32 s14, s3, 1")
    A("s_add_u32 s13, s13, s14")
    A("s_lshl_b32 s13, s13, 6")
    A("s_add_u32 s13, s13, s10")
    A("s_mul_i32 s13, s13, 1280")
    A("v_mul_u32_u24 v253, 81920, v3")
    A("v_lshl_add_u32 v253, v2, 3, v253")
    A("v_add_u32 v253, s13, v253")
    A("v_lshlrev_b32 v254, 4, v2")
    A("s_mov_b32 s30, 0x100000")
    A("s_mov_b32 s31, 0x200000")
    A(f"s_movk_i32 s32, {2*2560}")
    A(f"s_movk_i32 s33, {4*2560}")
    A(f"s_movk_i32 s34, {3*2560}")
    A("s_waitcnt lgkmcnt(0)")
    srd(A, 16, 6, WS_Z, SZ_COL)
    srd(A, 20, 4, 0, SZ_X)
    srd(A, 24, 6, WS_MOD, SZ_MOD)
    srd(A, 36, 6, WS_X2, SZ_X)
    srd(A, 40, 6, WS_H2P, SZ_H2P)
    for m in range(3):
        A(f"buffer_load_dwordx4 v[{8+4*m}:{11+4*m}], v7, s[16:19], {['0','s30','s31'][m]} offen")
    for i in range(5):
        A(f"buffer_load_dwordx2 v[{20+2*i}:{21+2*i}], v253, s[20:23], 0 offen offset:{256*i}")
    for i in range(5):
        A(f"buffer_load_dwordx4 v[{32+4*i}:{35+4*i}], v254, s[24:27], s32 offen offset:{512*i}")
    for i in range(5):
        A(f"buffer_load_dwordx4 v[{52+4*i}:{55+4*i}], v254, s[24:27], s33 offen offset:{512*i}")
        A(f"buffer_load_dwordx4 v[{72+4*i}:{75+4*i}], v254, s[24:27], s34 offen offset:{512*i}")
    stamp(A, 0)
    BR, BI, TC, TS, C32, N32 = 92, 100, 108, 124, 140, 148
    t0, t1, t2, t3, t4 = 244, 245, 246, 247, 248
    pf, hf = 249, 250
    A(f"v_cvt_f32_u32 v{pf}, v2")
    A(f"v_cvt_f32_u32 v{hf}, v3")
    A(f"v_mul_f32 v4, {flit(1/20)}, v{pf}")
    A(f"v_mul_f32 v5, v4, v{hf}")
    A(f"v_mul_f32 v5, 4.0, v5")
    A(f"v_mov_b32 v6, 0")
    for st in range(2):
        for q in range(4):
            A(f"v_fmamk_f32 v{t0}, v4, {fk(8*st+q)}, v{5 if st == 0 else 6}")
            A(f"v_cos_f32 v{t1}, v{t0}")
            A(f"v_sin_f32 v{t2}, v{t0}")
            A(f"v_sub_f32 v{t3}, 0, v{t2}")
            A(f"v_cvt_pk_bf16_f32 v{BR+4*st+q}, v{t1}, v{t3}")
            A(f"v_cvt_pk_bf16_f32 v{BI+4*st+q}, v{t2}, v{t1}")
    A("v_cmp_eq_u32 vcc, 0, v3")
    for q in range(4):
        A(f"v_cndmask_b32 v{BR+4+q}, 0, v{BR+4+q}, vcc")
        A(f"v_cndmask_b32 v{BI+4+q}, 0, v{BI+4+q}, vcc")
    A(f"v_mul_f32 v4, {flit(1/640)}, v{pf}")
    A(f"v_mul_f32 v5, v4, v{hf}")
    A(f"v_mul_f32 v5, 4.0, v5")
    for r in range(16):
        A(f"v_fmamk_f32 v{t0}, v4, {fk(8*(r//4)+r%4)}, v5")
        A(f"v_cos_f32 v{TC+r}, v{t0}")
        A(f"v_sin_f32 v{TS+r}, v{t0}")
    A(f"v_mul_f32 v4, {flit(1/32)}, v{pf}")
    A(f"v_mul_f32 v5, v4, v{hf}")
    A(f"v_mul_f32 v5, 4.0, v5")
    for t in range(2):
        for p in range(4):
            for z in range(2):
                e = 2*p+z
                A(f"v_fmamk_f32 v{t0}, v4, {fk(16*t+8*(e>>2)+(e&3))}, v5")
                A(f"v_cos_f32 v{t1+z}, v{t0}")
                A(f"v_sin_f32 v{t3+z}, -v{t0}")
            A(f"v_cvt_pk_bf16_f32 v{C32+4*t+p}, v{t1}, v{t2}")
            A(f"v_cvt_pk_bf16_f32 v{N32+4*t+p}, v{t3}, v{t4}")
    stamp(A, 1)
    for m in range(3):
        A(f"s_waitcnt vmcnt({20+2-m})")
        for i in range(4):
            A(f"ds_write_b32 v252, v{8+4*m+i} offset:{i*ZP + 16*m}")
    A(f"s_mul_i32 s14, s3, {2*ZP}")
    A("v_mul_u32_u24 v4, 48, v2")
    A("v_add_u32 v4, s14, v4")
    A("v_lshl_add_u32 v5, v3, 4, v4")
    A("s_waitcnt lgkmcnt(0)")
    A("s_barrier")
    stamp(A, 2)
    FA = [[156, 160], [164, 168]]
    for row in range(2):
        A(f"ds_read_b128 v[{FA[row][0]}:{FA[row][0]+3}], v5 offset:{row*ZP}")
        A(f"ds_read_b128 v[{FA[row][1]}:{FA[row][1]+3}], v4 offset:{row*ZP+32}")
    U = [[172, 188], [204, 220]]
    A("s_waitcnt lgkmcnt(0)")
    for st in range(2):
        for row in range(2):
            mf(A, U[row][0], FA[row][st], BR+4*st, st == 0)
            mf(A, U[row][1], FA[row][st], BI+4*st, st == 0)
    P = [[156, 164], [228, 236]]
    P = [[156, 164], [8, 12+4]]
    P[1] = [8, 236]
    for row in range(2):
        ur, ui = U[row]; pr, pi = P[row]
        for r in range(16):
            c, s_ = TC+r, TS+r
            A(f"v_mul_f32 v{t0}, v{ur+r}, v{c}")
            A(f"v_mul_f32 v{t1}, v{ui+r}, v{c}")
            A(f"v_fma_f32 v{t2+(r&1)}, -v{ui+r}, v{s_}, v{t0}")
            A(f"v_fma_f32 v{ui+r}, v{ur+r}, v{s_}, v{t1}")
            if r & 1:
                A(f"v_cvt_pk_bf16_f32 v{pr+r//2}, v{t2}, v{t3}")
                A(f"v_cvt_pk_bf16_f32 v{pi+r//2}, v{ui+r-1}, v{ui+r}")
    stamp(A, 3)
    Y = [172, 204]
    for t in range(2):
        for row in range(2):
            mf(A, Y[row], C32+4*t, P[row][0]+4*t, t == 0)
        for row in range(2):
            mf(A, Y[row], N32+4*t, P[row][1]+4*t, False)
    A(f"s_mul_i32 s14, s3, {2*YP}")
    A(f"s_add_u32 s14, s14, {YOFF}")
    A("v_mul_u32_u24 v4, 320, v3")
    A("v_lshl_add_u32 v4, v2, 2, v4")
    A("v_add_u32 v4, s14, v4")
    A("v_cmp_gt_u32 vcc, 20, v2")
    A("s_and_saveexec_b64 s[28:29], vcc")
    for row in range(2):
        for r in range(16):
            A(f"ds_write_b32 v4, v{Y[row]+r} offset:{row*YP + (8*(r//4)+r%4)*80}")
    A("s_mov_b64 exec, s[28:29]")
    A(f"v_mul_u32_u24 v5, {YP}, v3")
    A("v_lshl_add_u32 v5, v2, 4, v5")
    A("v_add_u32 v5, s14, v5")
    A("s_waitcnt lgkmcnt(0)")
    YF = 172
    for i in range(5):
        A(f"ds_read_b128 v[{YF+4*i}:{YF+4*i+3}], v5 offset:{512*i}")
    stamp(A, 4)
    XF = 196
    A("s_waitcnt vmcnt(10)")
    unpack_bf16(A, XF, 20, 10)
    A("s_waitcnt lgkmcnt(0)")
    for q in range(20):
        A(f"v_fmac_f32 v{XF+q}, v{32+q}, v{YF+q}")
    for q in range(10):
        A(f"v_cvt_pk_bf16_f32 v{20+q}, v{XF+2*q}, v{XF+2*q+1}")
    for i in range(5):
        A(f"buffer_store_dwordx2 v[{20+2*i}:{21+2*i}], v253, s[36:39], 0 offen offset:{256*i}")
    unpack_bf16(A, XF, 20, 10)
    stamp(A, 5)
    layernorm(A, XF, 20, t0, t1)
    stamp(A, 6)
    A("s_waitcnt vmcnt(5)")
    for q in range(20):
        A(f"v_mul_f32 v{52+q}, v{52+q}, v{t0}")
    for q in range(20):
        A(f"v_fma_f32 v{XF+q}, v{XF+q}, v{52+q}, v{72+q}")
    for q in range(10):
        A(f"v_cvt_pk_bf16_f32 v{8+q}, v{XF+2*q}, v{XF+2*q+1}")
    A("s_lshl_b32 s14, s8, 4")
    A("s_lshr_b32 s15, s9, 1")
    A("s_add_u32 s14, s14, s15")
    A("s_mul_i32 s14, s14, 20480")
    A("s_and_b32 s15, s9, 1")
    A("s_lshl_b32 s15, s15, 3")
    A("s_lshl_b32 s28, s3, 1")
    A("s_add_u32 s15, s15, s28")
    A("s_lshl_b32 s15, s15, 4")
    A("s_add_u32 s14, s14, s15")
    A("v_lshrrev_b32 v4, 3, v2")
    A("v_lshlrev_b32 v4, 10, v4")
    A("v_bfe_u32 v5, v2, 1, 2")
    A("v_lshl_add_u32 v4, v5, 8, v4")
    A("v_lshl_add_u32 v4, v3, 4, v4")
    A("v_and_b32 v5, 1, v2")
    A("v_lshl_add_u32 v4, v5, 3, v4")
    A("v_add_u32 v4, s14, v4")
    for i in range(5):
        if i: A(f"s_movk_i32 s{44+i}, {4096*i}")
    for i in range(5):
        so = f"s{44+i}" if i else "0"
        A(f"buffer_store_dwordx2 v[{8+2*i}:{9+2*i}], v4, s[40:43], {so} offen")
    stamp(A, 7)
    A("k4_end:")
    A("s_endpgm")
    return K
```

```python
from gen_common import *

class VM:
    def __init__(self, A): self.A = A; self.q = []; self.n_issued = 0; self.all = []
    def issue(self, tag): self.q.append(tag); self.n_issued += 1; self.all.append(tag)
    def wait(self, tags, extra=""):
        idx = [i for i, t in enumerate(self.q) if t in tags]
        if not idx: return
        n = len(self.q) - 1 - max(idx)
        n = min(n, 63)
        self.A(f"s_waitcnt vmcnt({n})")
        self.q = self.q[max(idx)+1:]

NS = 5
SLOT = 28*1024
D_LA = 6
RA = 8
RB = 10

def k5(name="k5_kernel"):
    K = Kern(name, 256, NS*SLOT, vgpr=248)
    A = K.A
    ACC = 0
    ACC = 8
    AR = 120
    BR = 152
    VL = 232
    VB = 237
    VD = 239
    A("s_cmp_ge_u32 s2, 256")
    A("s_cbranch_scc1 k5_end")
    A("s_load_dwordx2 s[6:7], s[0:1], 88")
    A("v_and_b32 v1, 63, v0")
    A("v_lshrrev_b32 v4, 6, v0")
    A("v_readfirstlane_b32 s3, v4")
    A("s_and_b32 s8, s2, 7")
    A("s_lshr_b32 s9, s2, 3")
    A("s_and_b32 s10, s8, 1")
    A("s_lshl_b32 s10, s10, 3")
    A("s_and_b32 s11, s9, 7")
    A("s_add_u32 s10, s10, s11")
    A("s_lshr_b32 s11, s8, 1")
    A("s_lshl_b32 s11, s11, 2")
    A("s_lshr_b32 s12, s9, 3")
    A("s_add_u32 s11, s11, s12")
    A("s_mul_i32 s11, s11, 7")
    A("s_min_u32 s11, s11, 101")
    A("s_lshl_b32 s12, s10, 3")
    A("s_lshl_b32 s13, s3, 1")
    A("s_add_u32 s12, s12, s13")
    A("v_lshlrev_b32 v2, 4, v1")
    A("s_mul_i32 s13, s12, 20480")
    A(f"v_add_u32 v{VB}, s13, v2")
    A(f"v_add_u32 v{VB+1}, 20480, v{VB}")
    A("s_lshr_b32 s13, s3, 1")
    A("s_mul_i32 s13, s13, 221184")
    A("s_lshl_b32 s14, s11, 11")
    A("s_add_u32 s13, s13, s14")
    A("s_and_b32 s14, s3, 1")
    A("s_mul_i32 s14, s14, 7168")
    A("s_add_u32 s13, s13, s14")
    A(f"v_add_u32 v{VD}, s13, v2")
    for b in range(NS):
        A(f"v_add_u32 v{VL+b}, {b*SLOT}, v2") if b else A(f"v_mov_b32 v{VL}, v2")
    A("s_mul_i32 s15, s3, 7168")
    A("s_waitcnt lgkmcnt(0)")
    srd(A, 16, 6, WS_H2P, SZ_H2P)
    srd(A, 20, 6, WS_W13, SZ_W13)
    srd(A, 24, 6, WS_HH, SZ_HH)
    vm = VM(A)
    NSL = 10
    def slot_ops(s):
        ops = []
        def dma(i):
            def f():
                A(f"s_add_u32 m0, s15, {(s % NS)*SLOT + i*1024}")
                A(f"s_mov_b32 s28, {2*s*221184 + i*1024}")
                A(f"buffer_load_dwordx4 v{VD}, s[20:23], s28 offen lds")
                vm.issue(("W", s))
            return f
        def bl(t, rt):
            def f():
                A(f"s_movk_i32 s29, {t*1024}")
                r = BR + (t % RB)*8 + 4*rt
                A(f"buffer_load_dwordx4 v[{r}:{r+3}], v{VB+rt}, s[16:19], s29 offen")
                vm.issue(("B", t))
            return f
        ops += [bl(2*s, 0), bl(2*s, 1)]
        ops += [dma(i) for i in range(7)]
        ops += [bl(2*s+1, 0), bl(2*s+1, 1)]
        return ops
    stamp(A, 0)
    for s_ in range(NS-2):
        for f in slot_ops(s_): f()
    stamp(A, 1)
    pending = []
    NF = 280
    def lds_read(n):
        t, i = divmod(n, 14)
        s_ = t >> 1
        r = AR + (n % RA)*4
        A(f"ds_read_b128 v[{r}:{r+3}], v{VL + s_ % NS} offset:{((t & 1)*14 + i)*1024}")
    def enter_slot(s_):
        vm.wait([("W", s_)])
        A("s_barrier")
        stamp(A, 2 + s_)
        if s_ + NS - 2 < NSL:
            pending.extend(slot_ops(s_ + NS - 2))
    enter_slot(0)
    for n in range(D_LA): lds_read(n)
    for n in range(NF):
        t, i = divmod(n, 14)
        nn = n + D_LA
        if nn < NF:
            if nn % 28 == 0: enter_slot(nn // 28)
            lds_read(nn)
        if pending and (n % 2 == 1):
            pending.pop(0)()
        rem = min(NF - 1 - n, D_LA)
        A(f"s_waitcnt lgkmcnt({rem})")
        if i == 0: vm.wait([("B", t)])
        a = AR + (n % RA)*4
        for rt in range(2):
            c = ACC + (i*2 + rt)*4
            b = BR + (t % RB)*8 + 4*rt
            src = "0" if t == 0 else f"v[{c}:{c+3}]"
            A(f"v_mfma_f32_16x16x32_bf16 v[{c}:{c+3}], v[{a}:{a+3}], v[{b}:{b+3}], {src}")
    assert not pending
    stamp(A, 12)
    A("s_mul_i32 s13, s12, 55296")
    A(f"v_add_u32 v{VB}, s13, v2")
    A(f"v_add_u32 v{VB+1}, 55296, v{VB}")
    T = 120
    for ft in range(7):
        A(f"s_add_u32 s28, s11, {ft}")
        A("s_and_b32 s29, s28, 1")
        A("s_lshl_b32 s29, s29, 3")
        A("s_lshr_b32 s28, s28, 1")
        A("s_lshl_b32 s28, s28, 10")
        A("s_add_u32 s28, s28, s29")
        for rt in range(2):
            g = ACC + ((2*ft)*2 + rt)*4
            u = ACC + ((2*ft+1)*2 + rt)*4
            t = T + 8*rt + 16*(ft & 1)
            for r in range(4): A(f"v_mul_f32 v{t+r}, {flit(-math.log2(math.e))}, v{g+r}")
            for r in range(4): A(f"v_exp_f32 v{t+r}, v{t+r}")
            for r in range(4): A(f"v_mul_f32 v{g+r}, v{g+r}, v{u+r}")
            for r in range(4): A(f"v_add_f32 v{t+r}, 1.0, v{t+r}")
            for r in range(4): A(f"v_rcp_f32 v{t+r}, v{t+r}")
            for r in range(4): A(f"v_mul_f32 v{g+r}, v{g+r}, v{t+r}")
            A(f"v_cvt_pk_bf16_f32 v{t+4}, v{g}, v{g+1}")
            A(f"v_cvt_pk_bf16_f32 v{t+5}, v{g+2}, v{g+3}")
            A(f"buffer_store_dwordx2 v[{t+4}:{t+5}], v{VB+rt}, s[24:27], s28 offen")
    stamp(A, 13)
    A("k5_end:")
    A("s_endpgm")
    return K
```

```python
from gen_common import *
from gen_k5 import VM

NST = 14
PD = 3
RING = 4

def k6(name="k6_kernel"):
    K = Kern(name, 256, 81920, vgpr=248)
    A = K.A
    ACC = 8
    FR = 88
    VH = 232
    VW = 236
    A("s_cmp_ge_u32 s2, 256")
    A("s_cbranch_scc1 k6_end")
    A("s_load_dwordx2 s[6:7], s[0:1], 88")
    A("s_load_dwordx2 s[4:5], s[0:1], 72")
    A("v_and_b32 v1, 63, v0")
    A("v_lshrrev_b32 v4, 6, v0")
    A("v_readfirstlane_b32 s3, v4")
    A("s_and_b32 s8, s2, 7")
    A("s_lshr_b32 s9, s2, 3")
    A("s_lshr_b32 s10, s8, 1")
    A("s_lshl_b32 s10, s10, 3")
    A("s_and_b32 s11, s9, 7")
    A("s_add_u32 s10, s10, s11")
    A("s_and_b32 s11, s8, 1")
    A("s_lshl_b32 s11, s11, 2")
    A("s_lshr_b32 s12, s9, 3")
    A("s_add_u32 s11, s11, s12")
    A("s_mul_i32 s12, s3, 14")
    A("s_cmp_eq_u32 s3, 3")
    A("s_cselect_b32 s13, 1, 0")
    A("s_sub_u32 s12, s12, s13")
    A("v_lshlrev_b32 v2, 4, v1")
    A("s_lshl_b32 s13, s10, 2")
    A("s_mul_i32 s13, s13, 55296")
    A("s_lshl_b32 s14, s12, 10")
    A("s_add_u32 s13, s13, s14")
    A(f"v_add_u32 v{VH}, s13, v2")
    for q in range(1, 4): A(f"v_add_u32 v{VH+q}, {55296*q}, v{VH}")
    A("s_mul_i32 s13, s12, 40960")
    A("s_mul_i32 s14, s11, 5120")
    A("s_add_u32 s13, s13, s14")
    A(f"v_add_u32 v{VW}, s13, v2")
    A(f"v_add_u32 v{VW+1}, 4096, v{VW}")
    A("s_cmp_ge_u32 s3, 2")
    A(f"s_mov_b32 s15, {13*40960}")
    A(f"s_cselect_b32 s15, {hex(OOB)}, s15")
    A("s_waitcnt lgkmcnt(0)")
    srd(A, 16, 6, WS_HH, SZ_HH)
    srd(A, 20, 6, WS_W2, SZ_W2P)
    srd(A, 24, 6, WS_X2, SZ_X)
    srd(A, 28, 6, WS_MOD, SZ_MOD)
    srd(A, 32, 4, 0, SZ_X)
    vm = VM(A)
    def loads(st):
        base = FR + (st % RING)*36
        A(f"s_movk_i32 s36, {st*1024}")
        if st < NST-1: A(f"s_mov_b32 s37, {st*40960}")
        else: A("s_mov_b32 s37, s15")
        for p in range(5):
            r = base + 16 + 4*p
            if p < 4: A(f"buffer_load_dwordx4 v[{r}:{r+3}], v{VW}, s[20:23], s37 offen offset:{1024*p}")
            else: A(f"buffer_load_dwordx4 v[{r}:{r+3}], v{VW+1}, s[20:23], s37 offen")
            vm.issue(st)
        for q in range(4):
            r = base + 4*q
            A(f"buffer_load_dwordx4 v[{r}:{r+3}], v{VH+q}, s[16:19], s36 offen")
            vm.issue(st)
    stamp(A, 0)
    for st in range(PD): loads(st)
    stamp(A, 1)
    A("v_and_b32 v3, 15, v1")
    A("s_lshl_b32 s13, s10, 6")
    A("s_lshl_b32 s14, s3, 4")
    A("s_add_u32 s13, s13, s14")
    A("v_add_u32 v3, s13, v3")
    A("v_lshrrev_b32 v4, 8, v3")
    A("v_bfe_u32 v5, v3, 3, 3")
    A("v_lshl_add_u32 v4, v4, 3, v5")
    A("v_bfe_u32 v5, v3, 6, 2")
    A("v_and_b32 v6, 7, v3")
    A("v_lshl_add_u32 v5, v5, 3, v6")
    A("v_lshl_add_u32 v4, v5, 6, v4")
    A("v_mul_u32_u24 v4, 1280, v4")
    A("v_lshrrev_b32 v5, 4, v1")
    A("s_mul_i32 s13, s11, 160")
    A("v_lshl_add_u32 v4, v5, 3, v4")
    A("v_add_u32 v4, s13, v4")
    A("s_mul_i32 s13, s11, 320")
    A(f"s_add_u32 s13, s13, {5*2560}")
    A("v_lshlrev_b32 v5, 4, v5")
    A("v_add_u32 v5, s13, v5")
    for st in range(NST):
        if st + PD < NST: loads(st + PD)
        vm.wait([st])
        stamp(A, 2 + st)
        base = FR + (st % RING)*36
        for p in range(5):
            for q in range(4):
                c = ACC + (q*5+p)*4
                src = "0" if st == 0 else f"v[{c}:{c+3}]"
                A(f"v_mfma_f32_16x16x32_bf16 v[{c}:{c+3}], v[{base+16+4*p}:{base+19+4*p}], v[{base+4*q}:{base+4*q+3}], {src}")
    stamp(A, 16)
    X = 88; G = 100
    for p in range(5):
        A(f"buffer_load_dwordx2 v[{X+2*p}:{X+2*p+1}], v4, s[24:27], 0 offen offset:{32*p}")
        A(f"buffer_load_dwordx4 v[{G+4*p}:{G+4*p+3}], v5, s[28:31], 0 offen offset:{64*p}")
    A("s_mul_i32 s13, s3, 20480")
    A("v_add_u32 v6, s13, v2")
    for q in range(4):
        A(f"s_cmp_eq_u32 s3, {q}")
        A(f"s_cbranch_scc1 k6_skipw{q}")
        for p in range(5):
            c = ACC + (q*5+p)*4
            A(f"ds_write_b128 v6, v[{c}:{c+3}] offset:{(q*5+p)*1024}")
        A(f"k6_skipw{q}:")
    OWN = 124
    for q in range(4):
        A(f"s_cmp_lg_u32 s3, {q}")
        A(f"s_cbranch_scc1 k6_skipm{q}")
        for r in range(20):
            A(f"v_mov_b32 v{OWN+r}, v{ACC+q*20+r}")
        A(f"k6_skipm{q}:")
    A("s_waitcnt lgkmcnt(0)")
    A("s_barrier")
    stamp(A, 17)
    R = 148
    for k in range(1, 4):
        A(f"s_add_u32 s13, s3, {k}")
        A("s_and_b32 s13, s13, 3")
        A("s_mul_i32 s13, s13, 20480")
        A("s_mul_i32 s14, s3, 5120")
        A("s_add_u32 s13, s13, s14")
        A(f"v_add_u32 v7, s13, v2")
        for p in range(5):
            r = R + (k-1)*20 + 4*p
            A(f"ds_read_b128 v[{r}:{r+3}], v7 offset:{p*1024}")
    for k in range(1, 4):
        A(f"s_waitcnt lgkmcnt({5*(3-k)})")
        for r in range(20):
            A(f"v_add_f32 v{OWN+r}, v{OWN+r}, v{R+(k-1)*20+r}")
    A("s_waitcnt vmcnt(0)")
    for p in range(5):
        for z in range(2):
            A(f"v_lshlrev_b32 v8, 16, v{X+2*p+z}")
            A(f"v_and_b32 v9, 0xffff0000, v{X+2*p+z}")
            A(f"v_fmac_f32 v8, v{G+4*p+2*z}, v{OWN+4*p+2*z}")
            A(f"v_fmac_f32 v9, v{G+4*p+2*z+1}, v{OWN+4*p+2*z+1}")
            A(f"v_cvt_pk_bf16_f32 v{10+2*p+z}, v8, v9")
        A(f"buffer_store_dwordx2 v[{10+2*p}:{11+2*p}], v4, s[32:35], 0 offen offset:{32*p}")
    stamp(A, 18)
    A("k6_end:")
    A("s_endpgm")
    return K
```

```python
import sys; sys.path.insert(0,'work')
from gen_common import *
import gen_common
import gen_k1, gen_k2, gen_k3, gen_k4, gen_k5, gen_k6, chk
MAIN = gen_k1.MAIN

def gbar(idx, expect=32):
    L = f"gb{idx}"
    return f"""
s_waitcnt vmcnt(0) lgkmcnt(0)
s_barrier
v_lshrrev_b32 v1, 6, v0
s_nop 0
v_readfirstlane_b32 s3, v1
s_cmp_lg_u32 s3, 0
s_cbranch_scc1 {L}_wait
s_load_dwordx2 s[4:5], s[0:1], 80
s_waitcnt lgkmcnt(0)
s_mov_b32 s8, s4
s_mov_b32 s9, s5
s_mov_b32 s10, 256
s_mov_b32 s11, 0x20000
v_mov_b32 v2, 1
s_and_b32 s12, s2, 7
s_lshl_b32 s12, s12, 2
s_add_u32 s12, s12, {idx*32}
v_mov_b32 v3, s12
v_and_b32 v4, 7, v0
v_lshlrev_b32 v4, 2, v4
v_add_u32 v4, {idx*32}, v4
s_mov_b64 exec, 1
buffer_atomic_add v2, v3, s[8:11], 0 offen sc1
s_mov_b64 exec, 0xff
s_mov_b32 s13, 0
{L}_poll:
s_add_u32 s13, s13, 1
s_cmp_ge_u32 s13, 200000
s_cbranch_scc1 {L}_out
buffer_load_dword v5, v4, s[8:11], 0 offen sc0 sc1
s_waitcnt vmcnt(0)
v_cmp_gt_u32 vcc, {expect}, v5
s_cbranch_vccnz {L}_poll
{L}_out:
s_mov_b64 exec, -1
{L}_wait:
s_barrier
"""

def phase(K, tag, sc=True):
    body = K.A.text()
    out = []
    for l in body.split("\n"):
        s_ = l.strip()
        if s_ == "s_endpgm": out.append(f"s_branch {tag}_pend")
        elif sc and s_.startswith("buffer_store"): out.append(l + " sc0 sc1")
        else: out.append(l)
    out.append(f"{tag}_pend:")
    out.append("s_mov_b64 exec, -1")
    return "\n".join(out) + "\n"

def build(path):
    ks = [gen_k1.k1(), gen_k2.k2(), gen_k3.k3(), gen_k4.k4(), gen_k5.k5(), gen_k6.k6()]
    t = "s_cmp_ge_u32 s2, 256\ns_cbranch_scc1 all_end\ns_mov_b32 s55, s2\n"
    t += "k1_loop:\n" + phase(ks[0], "p1")
    t += "s_add_u32 s2, s2, 256\ns_cmp_lt_u32 s2, 432\ns_cbranch_scc1 k1_loop\ns_mov_b32 s2, s55\n"
    for i in range(1, 6):
        t += gbar(i-1)
        t += phase(ks[i], f"p{i+1}", sc=(i < 5))
    t += "all_end:\ns_endpgm\n"
    if gen_common.PROF: t = gen_common.prof_wrap(MAIN, t, 0)
    lds = max(k.lds for k in ks)
    txt = HEADER + f"; @launch grid=(256,1,1) block=(256,1,1) lds={lds}\n" + '.amdgcn_target "amdgcn-amd-amdhsa--gfx950"\n'
    txt += kernel_head(MAIN) + t + kernel_desc(MAIN, 256, 102, 256)
    open(path, "w").write(txt)
    chk.chk(path)
if __name__ == "__main__":
    build(sys.argv[1] if len(sys.argv) > 1 else "all.s")
```

```python
import os, math
from gen_common import *
from gen_k5 import VM
from gen_k2 import layernorm, unpack_bf16, PITCH2

MAIN = "adaLN_cond__spectral_gfnet__glu_gated_swiglu__prompt_kernel"
OPT = dict(kv.split("=") for kv in os.environ.get("OPT", "").split(",") if kv)
SC = "sc0 sc1"
LSC = "sc1"
WS_EPOCH = 0x80000
WS_FLG = 0x84000
FA, FW, FP = 0, 0x8000, 0x10000
WS_MODG = 0xA0000
BLK = 10368
SZ_Y1N = 256*BLK
TAGSTEP = 0x9E3779B9
RETRY_LIMIT = 30000
STAG = 55

def fk(x): return hex(f32bits(float(x)))
def pr(r): return f"v[{r}:{r+1}]"
def mf32(A, d, a, b, first):
    c = "0" if first else f"v[{d}:{d+15}]"
    A(f"v_mfma_f32_32x32x16_bf16 v[{d}:{d+15}], v[{a}:{a+3}], v[{b}:{b+3}], {c}")
def csel(A, d, a, b):
    A(f"s_mov_b32 {d}, {b}")
    A(f"s_cselect_b32 {d}, {a}, {d}")

class Ctx:
    def __init__(self, A):
        self.A = A; self.vm = VM(A); self.n = 0; self.tail = []
    def lab(self, p):
        self.n += 1; return f"{p}_{self.n}"

def max_ops(A, regs, acc):
    regs = list(regs); ops = []
    ops.append(lambda r=regs[:3]: A(f"v_max3_u32 v{acc}, v{r[0]}, v{r[1]}, v{r[2]}"))
    rest = regs[3:]
    while rest:
        if len(rest) >= 2:
            ops.append(lambda r=rest[:2]: A(f"v_max3_u32 v{acc}, v{acc}, v{r[0]}, v{r[1]}")); rest = rest[2:]
        else:
            ops.append(lambda r=rest[0]: A(f"v_max_u32 v{acc}, v{acc}, v{r}")); rest = []
    return ops
def fill_test(A, regs, acc):
    for f in max_ops(A, regs, acc): f()
    A(f"v_cmp_eq_u32 vcc, -1, v{acc}")
def retry_loop(C, loads, test, scnt=53):
    A = C.A; L = C.lab("rt")
    A(f"s_mov_b32 s{scnt}, 0")
    A(f"{L}:")
    loads()
    A(f"s_add_u32 s{scnt}, s{scnt}, 1")
    A("s_waitcnt vmcnt(0)")
    test()
    A(f"s_cmp_ge_u32 s{scnt}, {RETRY_LIMIT}")
    A(f"s_cbranch_scc1 {L}_x")
    A(f"s_cbranch_vccnz {L}")
    A(f"{L}_x:")
    C.vm.q = []
def check_ops(C, loads, regs, acc):
    A = C.A; L = C.lab("fx")
    ops = max_ops(A, regs, acc)
    ops.append(lambda: A(f"v_cmp_eq_u32 vcc, -1, v{acc}"))
    def br():
        A(f"s_cbranch_vccnz {L}")
        A(f"{L}_b:")
    ops.append(br)
    def tail():
        A(f"{L}:")
        q = C.vm.q
        retry_loop(C, loads, lambda: fill_test(A, regs, acc))
        C.vm.q = q
        A(f"s_branch {L}_b")
    C.tail.append(tail)
    return ops
def flag_store(C, off, va=4, vb=5):
    A = C.A; L = C.lab("fl")
    A("s_cmp_lg_u32 s3, 0")
    A(f"s_cbranch_scc1 {L}")
    A("s_lshl_b32 s50, s2, 7")
    A(f"s_add_u32 s50, s50, {off}")
    A(f"v_mov_b32 v{va}, s50")
    A(f"v_mov_b32 v{vb}, s{STAG}")
    A("s_mov_b64 exec, 1")
    A(f"buffer_store_dword v{vb}, v{va}, s[12:15], 0 offen {SC}")
    A("s_mov_b64 exec, -1")
    A(f"{L}:")

L_ROWS = 0
L_TR = 8*PITCH2
L_MODP = L_TR + 16384
L_MODV = L_MODP + 1024
L_WT = L_MODV + 5120
L_PREP = 45056
L_YST = L_PREP + 32768
assert L_WT + 4*2816 <= L_PREP and L_YST + 16384 <= 114688

def prep_params(C, unit, B):
    A = C.A
    g, pitch, so, do, ts, ga, ja, a, b, c = [f"s{B+i}" for i in range(10)]
    A(f"s_lshl_b32 {a}, s2, 2")
    A(f"s_add_u32 {a}, {a}, s3")
    if unit: A(f"s_add_u32 {a}, {a}, 1024")
    A(f"s_cmp_ge_u32 {a}, 540")
    A(f"s_cselect_b32 {g}, 1, 0")
    A(f"s_cmp_ge_u32 {a}, 1080")
    A(f"s_cselect_b32 {g}, 2, {g}")
    A(f"s_mul_i32 {b}, {g}, 540")
    A(f"s_sub_u32 {b}, {a}, {b}")
    A(f"s_cmp_eq_u32 {g}, 2")
    csel(A, pitch, "1280", "3456")
    csel(A, ts, "1024", "2048")
    csel(A, ga, "4", "8")
    csel(A, ja, "16", "4")
    csel(A, c, "6554", "2428")
    csel(A, so, "10", "27")
    csel(A, do, "40960", "221184")
    A(f"s_mul_i32 {c}, {c}, {b}")
    A(f"s_lshr_b32 {c}, {c}, 16")
    A(f"s_mul_i32 {so}, {so}, {c}")
    A(f"s_sub_u32 {b}, {b}, {so}")
    A(f"s_mul_i32 {do}, {do}, {c}")
    A(f"s_mul_i32 {so}, {c}, {pitch}")
    A(f"s_lshl_b32 {so}, {so}, 5")
    A(f"s_lshl_b32 {c}, {b}, 7")
    A(f"s_add_u32 {so}, {so}, {c}")
    A(f"s_cmp_eq_u32 {g}, 2")
    csel(A, c, "4096", "8192")
    A(f"s_mul_i32 {c}, {c}, {b}")
    A(f"s_add_u32 {do}, {do}, {c}")
    A(f"s_cmp_eq_u32 {g}, 1")
    A(f"s_cselect_b32 {c}, 1024, 0")
    A(f"s_add_u32 {do}, {do}, {c}")
    A(f"s_cmp_lt_u32 {a}, 1620")
    A(f"s_cselect_b32 {so}, {so}, {hex(OOB)}")
    A(f"s_cselect_b32 {do}, {do}, {hex(OOB)}")

def phase0(C):
    A = C.A; vm = C.vm
    A("s_cmp_ge_u32 s2, 256")
    A("s_cbranch_scc1 all_end")
    A("s_load_dwordx2 s[4:5], s[0:1], 88")
    A("s_load_dwordx4 s[28:31], s[0:1], 56")
    A("s_load_dwordx2 s[6:7], s[0:1], 0")
    A("s_load_dwordx4 s[16:19], s[0:1], 8")
    A("s_load_dwordx4 s[20:23], s[0:1], 32")
    A("s_load_dwordx2 s[24:25], s[0:1], 48")
    A("s_load_dwordx2 s[8:9], s[0:1], 72")
    A("v_and_b32 v1, 63, v0")
    A("v_and_b32 v2, 31, v0")
    A("v_lshrrev_b32 v3, 5, v1")
    A("v_lshrrev_b32 v4, 6, v0")
    A("v_readfirstlane_b32 s3, v4")
    A("s_and_b32 s48, s2, 7")
    A("s_lshr_b32 s49, s2, 3")
    A("s_mul_i32 s26, s48, 10")
    A("s_add_u32 s26, s26, s49")
    A("s_mul_i32 s27, s48, 20")
    A("s_add_u32 s27, s27, s49")
    A("s_add_u32 s27, s27, 70")
    A("s_cmp_lt_u32 s49, 10")
    A("s_cselect_b32 s54, s26, s27")
    A("s_lshl_b32 s26, s54, 5")
    A("s_cmp_lt_u32 s49, 30")
    A(f"s_cselect_b32 s26, s26, {hex(OOB)}")
    A("v_lshrrev_b32 v4, 1, v0")
    A("v_and_b32 v5, 1, v0")
    A("v_mul_u32_u24 v56, 7680, v4")
    A("v_lshl_add_u32 v56, v5, 4, v56")
    A("v_add_u32 v56, s26, v56")
    A("v_lshlrev_b32 v57, 1, v4")
    A("s_lshl_b32 s80, s48, 3")
    A("s_and_b32 s26, s49, 7")
    A("s_add_u32 s80, s80, s26")
    A("s_lshr_b32 s26, s2, 7")
    A("s_lshl_b32 s26, s26, 4")
    A("s_bfe_u32 s27, s2, 0x10006")
    A("s_lshl_b32 s27, s27, 2")
    A("s_add_u32 s26, s26, s27")
    A("s_lshr_b32 s27, s3, 1")
    A("s_lshl_b32 s27, s27, 3")
    A("s_add_u32 s26, s26, s27")
    A("s_and_b32 s27, s3, 1")
    A("s_lshl_b32 s27, s27, 1")
    A("s_add_u32 s26, s26, s27")
    A("s_lshl_b32 s26, s26, 6")
    A("s_add_u32 s26, s26, s80")
    A("s_mul_i32 s26, s26, 1280")
    A("v_mul_u32_u24 v58, 81920, v3")
    A("v_lshl_add_u32 v58, v2, 3, v58")
    A("v_add_u32 v58, s26, v58")
    A("s_lshr_b32 s26, s2, 6")
    A("s_lshl_b32 s26, s26, 6")
    A("s_add_u32 s80, s80, s26")
    A(f"s_mul_i32 s80, s80, {BLK}")
    A("s_lshl_b32 s26, s2, 12")
    A("v_lshl_add_u32 v60, v0, 4, s26")
    for q in range(4): A(f"v_mov_b32 v{64+q}, -1")
    A("s_waitcnt lgkmcnt(0)")
    A(f"s_load_dword s{STAG}, s[4:5], {hex(WS_EPOCH)}")
    srd(A, 32, 28, 0, 1280)
    srd(A, 36, 30, 0, 640*7680)
    for i in range(5):
        A(f"buffer_load_ushort v{20+i}, v57, s[32:35], 0 offen offset:{256*i}"); vm.issue("c")
    for i in range(5):
        if i: A(f"s_mov_b32 s26, {i*128*7680}")
        A(f"buffer_load_dwordx4 v[{28+4*i}:{31+4*i}], v56, s[36:39], {'s26' if i else '0'} offen"); vm.issue(("w", i))
    srd(A, 32, 6, 0, SZ_X)
    for i in range(5):
        A(f"buffer_load_dwordx2 v[{8+2*i}:{9+2*i}], v58, s[32:35], 0 offen offset:{256*i}"); vm.issue("x")
    stamp(A, 0)
    for off, sz in ((WS_Y1, SZ_Y1N), (WS_Z, SZ_COL), (WS_H2P, SZ_H2P), (WS_X2, SZ_X), (WS_HH, SZ_HH)):
        srd(A, 32, 4, off, sz)
        for i in range((sz + (1 << 20) - 1) >> 20):
            if i: A(f"s_mov_b32 s26, {i << 20}")
            A(f"buffer_store_dwordx4 v[64:67], v60, s[32:35], {'s26' if i else '0'} offen {SC}"); vm.issue("fill")
    A("s_lshl_b32 s26, s49, 2")
    A("s_add_u32 s26, s26, s3")
    A("s_mul_i32 s27, s26, 4370")
    A("s_lshr_b32 s27, s27, 16")
    A("s_mul_i32 s50, s27, 15")
    A("s_sub_u32 s26, s26, s50")
    A("s_mul_i32 s26, s26, 22")
    A("s_min_u32 s26, s26, 299")
    A("s_lshl_b32 s50, s48, 3")
    A("s_add_u32 s27, s27, s50")
    A("s_lshr_b32 s50, s27, 2")
    A("s_and_b32 s27, s27, 3")
    A("v_and_b32 v4, 7, v1")
    A("v_bfe_u32 v5, v1, 3, 2")
    A("v_lshl_add_u32 v6, v5, 5, v4")
    A("s_lshl_b32 s51, s50, 7")
    A("s_lshl_b32 s52, s27, 3")
    A("s_add_u32 s51, s51, s52")
    A("v_add_u32 v6, s51, v6")
    A("v_mul_u32_u24 v228, 642, v6")
    A("v_mul_u32_u24 v7, 20, v3")
    A("v_add_u32 v228, v228, v7")
    A("s_lshl_b32 s51, s26, 1")
    A("s_cmp_lt_u32 s49, 30")
    A(f"s_cselect_b32 s51, s51, {hex(OOB)}")
    A("v_add_u32 v228, s51, v228")
    A("s_mul_i32 s51, s3, 2816")
    A(f"s_add_u32 s51, s51, {L_WT}")
    A("v_mul_u32_u24 v229, 1280, v3")
    A("v_lshl_add_u32 v229, v4, 4, v229")
    A("v_lshl_add_u32 v229, v5, 2, v229")
    A("v_add_u32 v229, s51, v229")
    A("v_lshl_add_u32 v230, v1, 4, s51")
    A("s_lshl_b32 s26, s26, 13")
    A("s_lshl_b32 s50, s50, 9")
    A("s_add_u32 s26, s26, s50")
    A("s_lshl_b32 s27, s27, 7")
    A("s_add_u32 s26, s26, s27")
    A("s_cmp_lt_u32 s49, 30")
    A(f"s_cselect_b32 s26, s26, {hex(OOB)}")
    A("v_lshrrev_b32 v5, 3, v1")
    A("v_lshlrev_b32 v231, 13, v5")
    A("v_lshl_add_u32 v231, v4, 4, v231")
    A("v_add_u32 v231, s26, v231")
    srd(A, 32, 16, 0, SZ_WF)
    srd(A, 36, 18, 0, SZ_WF)
    for m in range(2):
        A(f"buffer_load_dwordx4 v[{216+6*m}:{219+6*m}], v228, s[{32+4*m}:{35+4*m}], 0 offen"); vm.issue("wt")
        A(f"buffer_load_dwordx2 v[{220+6*m}:{221+6*m}], v228, s[{32+4*m}:{35+4*m}], 0 offen offset:16"); vm.issue("wt")
    A("v_lshrrev_b32 v4, 3, v1")
    A("v_and_b32 v5, 7, v1")
    A("v_bfe_u32 v6, v1, 4, 1")
    A("v_lshrrev_b32 v7, 5, v1")
    A("v_lshlrev_b32 v6, 1, v6")
    A("v_lshl_or_b32 v6, v7, 2, v6")
    A("v_xor_b32 v7, 4, v6")
    A("v_xor_b32 v6, v5, v6")
    A("v_xor_b32 v7, v5, v7")
    for unit in range(2):
        B = 36
        prep_params(C, unit, B)
        A(f"s_cmp_eq_u32 s{B}, 0")
        A("s_cselect_b32 s32, s20, s22")
        A("s_cselect_b32 s33, s21, s23")
        A(f"s_cmp_eq_u32 s{B}, 2")
        A("s_cselect_b32 s32, s24, s32")
        A("s_cselect_b32 s33, s25, s33")
        A(f"s_mov_b32 s34, {640*1728*2}")
        A("s_mov_b32 s35, 0x20000")
        A(f"v_mul_lo_u32 v59, v4, s{B+1}")
        A(f"v_lshl_add_u32 v232, v6, 4, v59")
        A(f"v_lshl_add_u32 v233, v7, 4, v59")
        A(f"s_lshl_b32 s27, s{B+1}, 3")
        A("s_lshl_b32 s26, s3, 13")
        for i in range(4):
            A(f"s_add_u32 m0, s26, {L_PREP + 4096*unit + 1024*i}")
            A(f"buffer_load_dwordx4 v{232+(i&1)}, s[32:35], s{B+2} offen lds"); vm.issue("prep")
            if i < 3: A(f"s_add_u32 s{B+2}, s{B+2}, s27")
    stamp(A, 1)
    A("s_waitcnt lgkmcnt(0)")
    A(f"s_add_u32 s{STAG}, s{STAG}, {hex(TAGSTEP)}")
    srd(A, 12, 4, WS_FLG, 0x18000)
    hf = 19
    A("v_cvt_f32_u32 v7, v2")
    A(f"v_cvt_f32_u32 v{hf}, v3")
    A(f"v_mul_f32 v212, {flit(1/32)}, v7")
    A(f"v_mul_f32 v213, v212, v{hf}")
    A(f"v_mul_f32 v213, {flit(8.0)}, v213")
    for mh in range(2):
        for p in range(4):
            for z in range(2):
                A(f"v_fmamk_f32 v214, v212, {fk(16*mh+2*p+z)}, v213")
                A(f"v_cos_f32 v{60+z}, v214")
                A(f"v_sin_f32 v{62+z}, -v214")
            A(f"v_cvt_pk_bf16_f32 v{80+4*mh+p}, v60, v61")
            A(f"v_cvt_pk_bf16_f32 v{88+4*mh+p}, v62, v63")
    A(f"v_mul_f32 v212, {flit(1/640)}, v7")
    A(f"v_mul_f32 v213, v212, v{hf}")
    A("v_mul_f32 v213, 4.0, v213")
    for r in range(12):
        A(f"v_fmamk_f32 v214, v212, {fk(8*(r//4)+r%4)}, v213")
        A(f"v_cos_f32 v{96+r}, v214")
        A(f"v_sin_f32 v{108+r}, v214")
    A("v_and_b32 v60, 15, v2")
    A("v_cvt_f32_u32 v60, v60")
    A("v_lshrrev_b32 v61, 4, v2")
    A("v_cvt_f32_u32 v61, v61")
    A(f"v_mul_f32 v212, {flit(1/20)}, v60")
    A(f"v_mul_f32 v213, v212, v{hf}")
    A("v_mul_f32 v213, 4.0, v213")
    A(f"v_fmamk_f32 v213, v61, {fk(0.25)}, v213")
    A(f"v_add_f32 v215, {flit(-0.25)}, v213")
    def cpair(dst, consts, bases):
        for z in range(2):
            A(f"v_fmamk_f32 v214, v212, {fk(consts[z])}, v{bases[z]}")
            A(f"v_cos_f32 v{62+z}, v214")
        A(f"v_cvt_pk_bf16_f32 v{dst}, v62, v63")
    for p in range(4):
        d = [8*((2*p+z) >> 2) + ((2*p+z) & 3) for z in range(2)]
        cpair(120+p, d, [213, 213])
        cpair(124+p, d, [215, 215])
    for p in range(2):
        d = [16+2*p, 17+2*p]
        cpair(128+p, d, [213, 213])
        cpair(130+p, d, [215, 215])
    A("v_cmp_eq_u32 vcc, 0, v3")
    for p in range(4):
        A(f"v_cndmask_b32 v{128+p}, 0, v{128+p}, vcc")
    stamp(A, 2)
    vm.wait(["c"])
    for i in range(5):
        r = 20+i
        A(f"v_lshlrev_b32 v{r}, 16, v{r}")
        A(f"v_mul_f32 v26, {flit(-math.log2(math.e))}, v{r}")
        A(f"v_exp_f32 v26, v26")
        A(f"v_add_f32 v26, 1.0, v26")
        A(f"v_rcp_f32 v26, v26")
        A(f"v_mul_f32 v{r}, v{r}, v26")
        bf16_round_v(A, r, r)
    for i in range(5):
        vm.wait([("w", i)])
        for q in range(4):
            w = 28+4*i+q
            A(f"v_lshlrev_b32 v26, 16, v{w}")
            A(f"v_and_b32 v27, 0xffff0000, v{w}")
            if i == 0:
                A(f"v_mul_f32 v{48+2*q}, v{20+i}, v26")
                A(f"v_mul_f32 v{49+2*q}, v{20+i}, v27")
            else:
                A(f"v_fmac_f32 v{48+2*q}, v{20+i}, v26")
                A(f"v_fmac_f32 v{49+2*q}, v{20+i}, v27")
    for ctl in ["quad_perm:[2,3,0,1]", "row_ror:4", "row_ror:8"]:
        for q in range(8):
            A(f"v_add_f32_dpp v{48+q}, v{48+q}, v{48+q} {ctl} row_mask:0xf bank_mask:0xf")
    A("v_lshrrev_b32 v5, 4, v0")
    A("v_lshlrev_b32 v5, 6, v5")
    A("v_and_b32 v6, 1, v0")
    A("v_lshl_add_u32 v5, v6, 5, v5")
    A("v_and_b32 v6, 14, v0")
    A("v_cmp_eq_u32 vcc, 0, v6")
    A("s_and_saveexec_b64 s[26:27], vcc")
    A(f"ds_write_b128 v5, v[48:51] offset:{L_MODP}")
    A(f"ds_write_b128 v5, v[52:55] offset:{L_MODP+16}")
    A("s_mov_b64 exec, s[26:27]")
    A("s_waitcnt lgkmcnt(0)")
    A("s_barrier")
    stamp(A, 3)
    L = C.lab("modfin")
    A("s_cmp_lg_u32 s3, 0")
    A(f"s_cbranch_scc1 {L}")
    A("v_and_b32 v6, 15, v0")
    A("v_lshrrev_b32 v5, 4, v0")
    A("v_lshlrev_b32 v5, 8, v5")
    A("v_lshl_add_u32 v5, v6, 2, v5")
    A(f"v_add_u32 v5, {L_MODP}, v5")
    A("ds_read2_b32 v[20:21], v5 offset0:0 offset1:16")
    A("ds_read2_b32 v[22:23], v5 offset0:32 offset1:48")
    A("s_waitcnt lgkmcnt(0)")
    A("v_add_f32 v20, v20, v21")
    A("v_add_f32 v22, v22, v23")
    A("v_add_f32 v20, v20, v22")
    for sw in ("v_permlane16_swap_b32", "v_permlane32_swap_b32"):
        A("v_mov_b32 v21, v20")
        A(f"{sw} v20, v21")
        A("v_add_f32 v20, v20, v21")
    bf16_round_v(A, 20, 20)
    A("s_cmp_ge_u32 s54, 160")
    A("s_cselect_b32 s26, 120, 0")
    A("s_sub_u32 s26, s54, s26")
    A("s_sub_u32 s26, s26, 40")
    A("v_add_f32 v21, 1.0, v20")
    bf16_round_v(A, 21, 21)
    A("s_cmp_lt_u32 s26, 40")
    A("s_cselect_b64 vcc, -1, 0")
    A("v_cndmask_b32 v20, v20, v21, vcc")
    A(f"v_mov_b32 v21, s{STAG}")
    A("s_lshl_b32 s26, s54, 7")
    A("s_cmp_lt_u32 s54, 80")
    A(f"s_cselect_b32 s26, s26, {hex(OOB)}")
    A("v_lshl_add_u32 v22, v6, 3, s26")
    A("s_lshl_b32 s26, s54, 6")
    A("s_cmp_ge_u32 s54, 80")
    A(f"s_cselect_b32 s26, s26, {hex(OOB)}")
    A("s_cmp_lt_u32 s49, 30")
    A(f"s_cselect_b32 s26, s26, {hex(OOB)}")
    A("v_lshl_add_u32 v23, v6, 2, s26")
    srd(A, 32, 4, WS_MODG, 80*128)
    srd(A, 36, 4, WS_MOD, SZ_MOD)
    A("s_mov_b64 exec, 0xffff")
    A(f"buffer_store_dwordx2 v[20:21], v22, s[32:35], 0 offen {SC}")
    A(f"buffer_store_dword v20, v23, s[36:39], 0 offen {SC}")
    A("s_mov_b64 exec, -1")
    A(f"{L}:")
    stamp(A, 4)
    vm.wait(["x"])
    unpack_bf16(A, 60, 8, 10)
    layernorm(A, 60, 20, 212, 213)
    stamp(A, 5)
    vm.wait(["fill"])
    A("s_barrier")
    flag_store(C, FA)
    vm.wait(["wt"])
    for m in range(2):
        for cc in range(12):
            op = "ds_write_b16_d16_hi" if cc & 1 else "ds_write_b16"
            A(f"{op} v229, v{216+6*m+cc//2} offset:{cc*128 + 2*m}")
    A("s_waitcnt lgkmcnt(0)")
    for j in range(3):
        A(f"ds_read_b128 v[{216+4*j}:{219+4*j}], v230 offset:{1024*j}")
    A(f"v_add_u32 v229, {hex(OOB)}, v231")
    A("v_cmp_gt_u32 vcc, 48, v1")
    A("v_cndmask_b32 v229, v229, v231, vcc")
    srd(A, 32, 4, WS_WT, SZ_COL)
    for j in range(3):
        A(f"s_waitcnt lgkmcnt({2-j})")
        if j: A(f"s_mov_b32 s26, {j*8*8192}")
        A(f"buffer_store_dwordx4 v[{216+4*j}:{219+4*j}], v{229 if j == 2 else 231}, s[32:35], {'s26' if j else '0'} offen {SC}"); vm.issue("wts")
    stamp(A, 6)
    A("v_lshlrev_b32 v245, 4, v0")
    A("v_add_u32 v246, 8192, v245")
    A("v_add_u32 v247, 4096, v245")
    A("v_cmp_gt_u32 vcc, 128, v0")
    A("v_cndmask_b32 v246, v247, v246, vcc")
    A("v_lshlrev_b32 v247, 7, v0")
    srd(A, 32, 4, WS_MODG, 80*128)
    A("s_movk_i32 s26, 4096")
    def mod_loads():
        A(f"buffer_load_dwordx4 v[232:235], v245, s[32:35], 0 offen {LSC}")
        A(f"buffer_load_dwordx4 v[236:239], v245, s[32:35], s26 offen {LSC}")
        A(f"buffer_load_dwordx4 v[240:243], v246, s[32:35], 0 offen {LSC}")
        A(f"buffer_load_dword v244, v247, s[12:15], 0 offen offset:{FA} {LSC}")
    def mod_test():
        A("v_min3_u32 v4, v233, v235, v237")
        A("v_max3_u32 v5, v233, v235, v237")
        A("v_min3_u32 v4, v4, v239, v241")
        A("v_max3_u32 v5, v5, v239, v241")
        A("v_min3_u32 v4, v4, v243, v244")
        A("v_max3_u32 v5, v5, v243, v244")
        A("v_cmp_ne_u32 vcc, v4, v5")
        A(f"v_cmp_ne_u32 s[50:51], s{STAG}, v5")
        A("s_or_b64 vcc, vcc, s[50:51]")
    retry_loop(C, mod_loads, mod_test)
    A("v_lshrrev_b32 v4, 1, v245")
    A("v_lshrrev_b32 v5, 1, v246")
    A(f"v_add_u32 v4, {L_MODV}, v4")
    A(f"v_add_u32 v5, {L_MODV}, v5")
    A("v_add_u32 v6, 2048, v4")
    A("ds_write2_b32 v4, v232, v234 offset0:0 offset1:1")
    A("ds_write2_b32 v6, v236, v238 offset0:0 offset1:1")
    A("ds_write2_b32 v5, v240, v242 offset0:0 offset1:1")
    A("s_waitcnt lgkmcnt(0)")
    A("s_barrier")
    flag_store(C, FW)
    stamp(A, 7)

def phase_a(C):
    A = C.A; vm = C.vm
    A(f"v_lshlrev_b32 v6, 4, v2")
    A(f"v_add_u32 v6, {L_MODV}, v6")
    for i in range(5):
        A(f"ds_read_b128 v[{20+4*i}:{23+4*i}], v6 offset:{2560 + 512*i}")
    for i in range(5):
        A(f"ds_read_b128 v[{40+4*i}:{43+4*i}], v6 offset:{512*i}")
    A(f"s_mul_i32 s26, s3, {2*PITCH2}")
    A(f"v_mul_u32_u24 v4, {PITCH2}, v3")
    A("v_lshl_add_u32 v4, v2, 3, v4")
    A("v_add_u32 v4, s26, v4")
    A("v_bfe_u32 v5, v1, 2, 2")
    A("v_lshl_add_u32 v5, v3, 3, v5")
    A("v_mul_u32_u24 v5, 40, v5")
    A("v_bfe_u32 v6, v1, 4, 1")
    A("v_lshl_add_u32 v5, v6, 5, v5")
    A("v_and_b32 v6, 3, v1")
    A("v_lshl_add_u32 v5, v6, 3, v5")
    A("v_add_u32 v5, s26, v5")
    for i in range(5):
        A(f"s_waitcnt lgkmcnt({9-i})")
        for k in (0, 2):
            q = 4*i+k
            A(f"v_pk_mul_f32 {pr(20+q)}, {pr(20+q)}, {pr(212)} op_sel_hi:[1,0]")
    for i in range(5):
        A(f"s_waitcnt lgkmcnt({4-i})")
        for k in (0, 2):
            q = 4*i+k
            A(f"v_pk_fma_f32 {pr(60+q)}, {pr(60+q)}, {pr(20+q)}, {pr(40+q)}")
        for k in (0, 1):
            q = 2*i+k
            A(f"v_cvt_pk_bf16_f32 v{8+q}, v{60+2*q}, v{61+2*q}")
        A(f"ds_write_b64 v4, v[{8+2*i}:{9+2*i}] offset:{256*i}")
    A("v_mov_b32 v18, 0")
    A("v_mov_b32 v19, 0")
    A("v_cmp_eq_u32 vcc, 0, v2")
    A("s_and_saveexec_b64 s[26:27], vcc")
    A("ds_write_b64 v4, v[18:19] offset:1280")
    A("s_mov_b64 exec, s[26:27]")
    A("s_waitcnt lgkmcnt(0)")
    for row in range(2):
        for mh in range(2):
            for j in range(2):
                d = 132 + 8*row + 4*mh + 2*j
                A(f"ds_read_b64_tr_b16 v[{d}:{d+1}], v5 offset:{row*PITCH2 + 640*mh + 160*j}")
    T = [[148, 164], [180, 196]]
    A("s_waitcnt lgkmcnt(0)")
    for mh in range(2):
        for row in range(2):
            a = 132 + 8*row + 4*mh
            for ri in range(2):
                mf32(A, T[row][ri], a, (80 if ri == 0 else 88) + 4*mh, mh == 0)
    stamp(A, 8)
    A("v_bfe_u32 v4, v2, 3, 1")
    A("v_lshlrev_b32 v5, 5, v2")
    A("v_lshl_add_u32 v5, v3, 12, v5")
    A("s_lshl_b32 s26, s3, 2")
    A(f"s_add_u32 s26, s26, {L_TR}")
    A("v_add_u32 v5, s26, v5")
    A("v_lshl_add_u32 v4, v4, 4, v5")
    A("v_bfe_u32 v6, v2, 3, 1")
    A("v_xor_b32 v6, 1, v6")
    A("v_lshl_add_u32 v5, v6, 4, v5")
    B = [20, 32]
    TA, TB = 60, 62
    for row in range(2):
        tr, ti = T[row]
        b = B[row]
        for r in range(0, 12, 2):
            c, s_ = 96+r, 108+r
            A(f"v_pk_mul_f32 {pr(TA)}, {pr(tr+r)}, {pr(c)}")
            A(f"v_pk_mul_f32 {pr(TB)}, {pr(ti+r)}, {pr(c)}")
            A(f"v_pk_fma_f32 {pr(TA)}, {pr(ti+r)}, {pr(s_)}, {pr(TA)}")
            A(f"v_pk_fma_f32 {pr(TB)}, {pr(tr+r)}, {pr(s_)}, {pr(TB)} neg_lo:[1,0,0] neg_hi:[1,0,0]")
            dr = b + r//2 if r < 8 else b + 8 + (r-8)//2
            di = b + 4 + r//2 if r < 8 else b + 10 + (r-8)//2
            A(f"v_cvt_pk_bf16_f32 v{dr}, v{TA}, v{TA+1}")
            A(f"v_cvt_pk_bf16_f32 v{di}, v{TB}, v{TB+1}")
    O = [148, 180]
    for st in range(3):
        for row in range(2):
            mf32(A, O[row], 120 + 4*st, B[row] + 4*st, st == 0)
    stamp(A, 9)
    A("v_bfe_u32 v6, v0, 4, 1")
    A("v_xor_b32 v6, v0, v6")
    A("v_lshlrev_b32 v6, 4, v6")
    A(f"v_add_u32 v6, {L_TR}, v6")
    A("v_lshl_add_u32 v7, v0, 4, s80")
    A(f"v_add_u32 v44, {hex(OOB)}, v7")
    A("s_movk_i32 s26, 136")
    A("v_cmp_gt_u32 vcc, s26, v0")
    A("v_cndmask_b32 v44, v44, v7, vcc")
    srd(A, 32, 4, WS_Y1, SZ_Y1N)
    for ri in range(2):
        for r in range(7):
            A(f"v_cvt_pk_bf16_f32 v{60+7*ri+r}, v{O[0]+8*ri+r}, v{O[1]+8*ri+r}")
            A(f"ds_write_b32 v{4+ri}, v{60+7*ri+r} offset:{(8*(r//4)+r%4)*1024}")
    A("s_movk_i32 s26, 4096")
    A("s_movk_i32 s27, 8192")
    A("s_waitcnt lgkmcnt(0)")
    A("s_barrier")
    for n in range(3):
        A(f"ds_read_b128 v[{8+4*n}:{11+4*n}], v6 offset:{4096*n}")
    for n in range(3):
        A(f"s_waitcnt lgkmcnt({2-n})")
        A(f"buffer_store_dwordx4 v[{8+4*n}:{11+4*n}], v{44 if n == 2 else 7}, s[32:35], {['0','s26','s27'][n]} offen {SC}"); vm.issue("y1")
    stamp(A, 10)

def prep_finish(C):
    A = C.A; vm = C.vm
    for unit in range(2):
        B = 36
        prep_params(C, unit, B)
        A(f"s_cmp_eq_u32 s{B}, 2")
        csel(A, "s26", hex(WS_W2), hex(WS_W13))
        csel(A, "s34", hex(SZ_W2P), hex(SZ_W13))
        A("s_add_u32 s32, s4, s26")
        A("s_addc_u32 s33, s5, 0")
        A("s_mov_b32 s35, 0x20000")
        A("s_lshl_b32 s26, s3, 13")
        A(f"s_add_u32 s26, s26, {L_PREP + 4096*unit}")
        A("v_lshrrev_b32 v8, 4, v1")
        A("v_bfe_u32 v9, v1, 2, 2")
        A(f"v_mul_lo_u32 v8, v8, s{B+5}")
        A("v_add_u32 v8, v8, v9")
        A(f"v_add_u32 v9, s{B+6}, v8")
        A("v_and_b32 v10, 1, v1")
        A("v_bfe_u32 v11, v1, 1, 1")
        for j, rr in enumerate([8, 9]):
            A(f"v_bfe_u32 v12, v{rr}, 1, 1")
            A(f"v_lshrrev_b32 v13, 2, v{rr}")
            A(f"v_lshrrev_b32 v14, 3, v{rr}")
            A(f"v_xor_b32 v13, v13, v14")
            A(f"v_and_b32 v13, 1, v13")
            A(f"v_lshl_or_b32 v12, v13, 1, v12")
            A(f"v_lshlrev_b32 v12, 1, v12")
            A(f"v_xor_b32 v12, v12, v11")
            A(f"v_lshlrev_b32 v15, 7, v{rr}")
            A(f"v_lshl_add_u32 v15, v10, 3, v15")
            A(f"v_add_u32 v15, s26, v15")
            for tile in range(4):
                A(f"v_xor_b32 v13, {2*tile}, v12")
                A(f"v_lshl_add_u32 v{16+4*j+tile}, v13, 4, v15")
        A("v_lshlrev_b32 v24, 4, v1")
        for tile in range(4):
            for j in range(2):
                d = 32 + 4*tile + 2*j
                A(f"ds_read_b64_tr_b16 v[{d}:{d+1}], v{16+4*j+tile}")
        for tile in range(4):
            A(f"s_waitcnt lgkmcnt({6-2*tile})")
            d = 32 + 4*tile
            A(f"buffer_store_dwordx4 v[{d}:{d+3}], v24, s[32:35], s{B+3} offen {SC}"); vm.issue("preps")
            if tile < 3: A(f"s_add_u32 s{B+3}, s{B+3}, s{B+4}")

def phase_b(C):
    A = C.A; vm = C.vm
    Lskip, Ldone = C.lab("b_skip"), C.lab("b_done")
    A("s_cmp_gt_u32 s2, 160")
    A(f"s_cbranch_scc1 {Lskip}")
    A("s_mul_i32 s20, s48, 20")
    A("s_add_u32 s20, s20, s49")
    A("s_cmp_eq_u32 s2, 160")
    A("s_cselect_b32 s20, 160, s20")
    A("s_lshl_b32 s21, s20, 1")
    A("s_lshr_b32 s22, s3, 1")
    A("s_add_u32 s21, s21, s22")
    A("s_and_b32 s23, s3, 1")
    A("s_lshl_b32 s24, s21, 13")
    A("s_lshl_b32 s25, s23, 12")
    A("s_add_u32 s24, s24, s25")
    C32, S32, N32 = 40, 48, 56
    C64, S64 = 64, 80
    TWc, TWs = 96, 112
    AR, AI = 128, 144
    Pr, Pi, Pn = 160, 168, 176
    Or, Oi, On = 184, 192, 200
    T2c, T2s = 208, 224
    t0, t1, t2, t3, t4, t5 = 240, 241, 242, 243, 244, 245
    hf, pf, af = 246, 247, 5
    A(f"v_cvt_f32_u32 v{hf}, v3")
    A(f"v_cvt_f32_u32 v{pf}, v2")
    A(f"v_cvt_f32_u32 v{af}, s23")
    A(f"v_mul_f32 v6, {flit(1/32)}, v{pf}")
    A(f"v_mul_f32 v7, v6, v{hf}")
    A(f"v_mul_f32 v7, 4.0, v7")
    for t in range(2):
        for p in range(4):
            for z in range(2):
                e = 2*p+z
                A(f"v_fmamk_f32 v{t0}, v6, {fk(16*t+8*(e>>2)+(e&3))}, v7")
                A(f"v_cos_f32 v{t1+z}, v{t0}")
                A(f"v_sin_f32 v{t3+z}, v{t0}")
            A(f"v_cvt_pk_bf16_f32 v{C32+4*t+p}, v{t1}, v{t2}")
            A(f"v_cvt_pk_bf16_f32 v{S32+4*t+p}, v{t3}, v{t4}")
            A(f"v_xor_b32 v{N32+4*t+p}, 0x80008000, v{S32+4*t+p}")
    A(f"v_mul_f32 v6, {flit(1/2048)}, v{pf}")
    A(f"v_mul_f32 v7, {flit(8.0)}, v{af}")
    A(f"v_add_f32 v7, v7, v{hf}")
    A(f"v_mul_f32 v7, 4.0, v7")
    A(f"v_mul_f32 v7, v7, v6")
    for r in range(16):
        A(f"v_fmamk_f32 v{t0}, v6, {fk(8*(r//4)+r%4)}, v7")
        A(f"v_cos_f32 v{TWc+r}, v{t0}")
        A(f"v_sin_f32 v{TWs+r}, v{t0}")
    A(f"v_mul_f32 v6, {flit(32.0)}, v{af}")
    A(f"v_add_f32 v6, v6, v{pf}")
    A(f"v_mov_b32 v{t5}, v6")
    A(f"v_mul_f32 v6, {flit(1/64)}, v6")
    for src in range(2):
        if src == 0:
            A(f"v_mul_f32 v7, {flit(8.0)}, v{af}")
        else:
            A(f"v_sub_f32 v7, 1.0, v{af}")
            A(f"v_mul_f32 v7, {flit(8.0)}, v7")
        A(f"v_add_f32 v7, v7, v{hf}")
        A(f"v_mul_f32 v7, 4.0, v7")
        A(f"v_mul_f32 v7, v7, v6")
        for u in range(2):
            for p in range(4):
                for z in range(2):
                    e = 2*p+z
                    A(f"v_fmamk_f32 v{t0}, v6, {fk(16*u+8*(e>>2)+(e&3))}, v7")
                    A(f"v_cos_f32 v{t1+z}, v{t0}")
                    A(f"v_sin_f32 v{t3+z}, v{t0}")
                A(f"v_cvt_pk_bf16_f32 v{C64+8*src+4*u+p}, v{t1}, v{t2}")
                A(f"v_cvt_pk_bf16_f32 v{S64+8*src+4*u+p}, v{t3}, v{t4}")
    A("s_cmp_eq_u32 s21, 0")
    A("s_cselect_b32 s26, 1, 0")
    A("s_cmp_eq_u32 s21, 320")
    A("s_cselect_b32 s26, 1, s26")
    A("s_cmp_eq_u32 s26, 1")
    csel(A, "s26", hex(f32bits(1.0/(2048*640))), hex(f32bits(2.0/(2048*640))))
    A(f"v_mul_f32 v6, {flit(1/2048)}, v{t5}")
    A(f"v_mul_f32 v7, v6, v{hf}")
    A(f"v_mul_f32 v7, 4.0, v7")
    for r in range(16):
        A(f"v_fmamk_f32 v{t0}, v6, {fk(8*(r//4)+r%4)}, v7")
        A(f"v_cos_f32 v{T2c+r}, v{t0}")
        A(f"v_sin_f32 v{T2s+r}, v{t0}")
    for r in range(0, 16, 2):
        A(f"v_pk_mul_f32 {pr(T2c+r)}, {pr(T2c+r)}, s[26:27] op_sel_hi:[1,0]")
        A(f"v_pk_mul_f32 {pr(T2s+r)}, {pr(T2s+r)}, s[26:27] op_sel_hi:[1,0]")
    stamp(A, 11)
    A("v_lshrrev_b32 v4, 2, v1")
    A("s_lshl_b32 s26, s3, 6")
    A("v_add_u32 v4, s26, v4")
    A("v_and_b32 v6, 3, v1")
    A(f"v_mul_u32_u24 v8, {BLK}, v4")
    A("v_lshl_add_u32 v8, v6, 4, v8")
    A("s_lshl_b32 s26, s20, 6")
    A("v_add_u32 v8, s26, v8")
    A("v_bfe_u32 v7, v4, 1, 2")
    A("v_xor_b32 v7, v7, v6")
    A("v_lshlrev_b32 v9, 6, v4")
    A("v_lshl_add_u32 v9, v7, 4, v9")
    A(f"v_add_u32 v9, {L_YST}, v9")
    A("v_lshlrev_b32 v10, 7, v0")
    A("s_lshl_b32 s26, s23, 5")
    A("v_lshl_add_u32 v11, v3, 6, v2")
    A("v_add_u32 v11, s26, v11")
    A("v_lshlrev_b32 v11, 6, v11")
    A(f"v_add_u32 v11, {L_YST}, v11")
    A("v_bfe_u32 v7, v2, 1, 2")
    A("s_and_b32 s26, s3, 2")
    A("v_xor_b32 v7, s26, v7")
    A("v_xor_b32 v12, 1, v7")
    A("v_lshl_add_u32 v12, v12, 4, v11")
    A("v_lshl_add_u32 v11, v7, 4, v11")
    srd(A, 16, 4, WS_Y1, SZ_Y1N)
    srd(A, 32, 4, WS_WT, SZ_COL)
    srd(A, 36, 4, WS_Z, SZ_COL)
    def y_loads():
        for i in range(4):
            if i: A(f"s_mov_b32 s26, {16*i*BLK}")
            A(f"buffer_load_dwordx4 v[{AR+4*i}:{AR+4*i+3}], v8, s[16:19], {'s26' if i else '0'} offen {LSC}")
        A(f"s_mov_b32 s26, {FW}")
        A(f"buffer_load_dword v{AI}, v10, s[12:15], s26 offen {LSC}")
    def y_test():
        fill_test(A, range(AR, AR+16), AI+1)
        A(f"v_cmp_ne_u32 s[50:51], s{STAG}, v{AI}")
        A("s_or_b64 vcc, vcc, s[50:51]")
    retry_loop(C, y_loads, y_test)
    for i in range(4):
        A(f"ds_write_b128 v9, v[{AR+4*i}:{AR+4*i+3}] offset:{1024*i}")
    A("v_lshlrev_b32 v4, 4, v1")
    A("v_add_u32 v4, s24, v4")
    for j in range(4):
        A(f"buffer_load_dwordx4 v[{24+4*j}:{27+4*j}], v4, s[32:35], 0 offen offset:{j*1024} {LSC}"); vm.issue("wt")
    A("s_waitcnt lgkmcnt(0)")
    A("s_barrier")
    flag_store(C, FP, 6, 7)
    stamp(A, 12)
    A("v_mov_b32 v6, v11")
    A("v_mov_b32 v7, v12")
    for t in range(2):
        for ri in range(2):
            d = 8 + 8*ri + 4*t
            A(f"ds_read_b128 v[{d}:{d+3}], v{6+ri} offset:{t*8192}")
    Xr, Xi = 8, 16
    def mf(d, a, b, first): mf32(A, d, a, b, first)
    for t in range(2):
        A(f"s_waitcnt lgkmcnt({2-2*t})")
        mf(AR, Xr+4*t, C32+4*t, t == 0)
        mf(AI, Xi+4*t, C32+4*t, t == 0)
        mf(AR, Xi+4*t, S32+4*t, False)
        mf(AI, Xr+4*t, N32+4*t, False)
    TA, TB = t0, t2
    def cmul_pack(cr, ci, conj_tw):
        n1 = "" if not conj_tw else " neg_lo:[1,0,0] neg_hi:[1,0,0]"
        n2 = " neg_lo:[1,0,0] neg_hi:[1,0,0]" if not conj_tw else ""
        for r in range(0, 16, 2):
            A(f"v_pk_mul_f32 {pr(TA)}, {pr(AR+r)}, {pr(cr+r)}")
            A(f"v_pk_mul_f32 {pr(TB)}, {pr(AI+r)}, {pr(cr+r)}")
            A(f"v_pk_fma_f32 {pr(TA)}, {pr(AI+r)}, {pr(ci+r)}, {pr(TA)}{n1}")
            A(f"v_pk_fma_f32 {pr(TB)}, {pr(AR+r)}, {pr(ci+r)}, {pr(TB)}{n2}")
            A(f"v_cvt_pk_bf16_f32 v{Pr+r//2}, v{TA}, v{TA+1}")
            A(f"v_cvt_pk_bf16_f32 v{Pi+r//2}, v{TB}, v{TB+1}")
    A("s_lshl_b32 s26, s3, 12")
    A("s_xor_b32 s27, s26, 0x1000")
    A("v_lshlrev_b32 v6, 4, v1")
    A("v_add_u32 v7, s27, v6")
    A("v_add_u32 v6, s26, v6")
    cmul_pack(TWc, TWs, False)
    def exch(off):
        for g in range(2):
            A(f"ds_write_b128 v6, v[{Pr+4*g}:{Pr+4*g+3}] offset:{off+1024*g}")
            A(f"ds_write_b128 v6, v[{Pi+4*g}:{Pi+4*g+3}] offset:{off+2048+1024*g}")
        A("s_waitcnt lgkmcnt(0)")
        A("s_barrier")
        for g in range(2):
            A(f"ds_read_b128 v[{Or+4*g}:{Or+4*g+3}], v7 offset:{off+1024*g}")
            A(f"ds_read_b128 v[{Oi+4*g}:{Oi+4*g+3}], v7 offset:{off+2048+1024*g}")
    stamp(A, 13)
    exch(0)
    for q in range(8): A(f"v_xor_b32 v{Pn+q}, 0x80008000, v{Pr+q}")
    for u in range(2):
        mf(AR, C64+4*u, Pr+4*u, u == 0)
        mf(AI, C64+4*u, Pi+4*u, u == 0)
        mf(AR, S64+4*u, Pi+4*u, False)
        mf(AI, S64+4*u, Pn+4*u, False)
    A("s_waitcnt lgkmcnt(0)")
    for q in range(8): A(f"v_xor_b32 v{On+q}, 0x80008000, v{Or+q}")
    for u in range(2):
        mf(AR, C64+8+4*u, Or+4*u, False)
        mf(AI, C64+8+4*u, Oi+4*u, False)
        mf(AR, S64+8+4*u, Oi+4*u, False)
        mf(AI, S64+8+4*u, On+4*u, False)
    stamp(A, 14)
    vm.wait(["wt"])
    W0, W1 = 8, 10
    for r in range(0, 16, 2):
        w = 24 + r
        A(f"v_lshlrev_b32 v{W0}, 16, v{w}")
        A(f"v_lshlrev_b32 v{W0+1}, 16, v{w+1}")
        A(f"v_and_b32 v{W1}, 0xffff0000, v{w}")
        A(f"v_and_b32 v{W1+1}, 0xffff0000, v{w+1}")
        A(f"v_pk_mul_f32 {pr(TA)}, {pr(AR+r)}, {pr(W0)}")
        A(f"v_pk_mul_f32 {pr(TB)}, {pr(AI+r)}, {pr(W0)}")
        A(f"v_pk_fma_f32 {pr(TA)}, {pr(AI+r)}, {pr(W1)}, {pr(TA)} neg_lo:[1,0,0] neg_hi:[1,0,0]")
        A(f"v_pk_fma_f32 {pr(TB)}, {pr(AR+r)}, {pr(W1)}, {pr(TB)}")
        A(f"v_cvt_pk_bf16_f32 v{Pr+r//2}, v{TA}, v{TA+1}")
        A(f"v_cvt_pk_bf16_f32 v{Pi+r//2}, v{TB}, v{TB+1}")
    exch(16384)
    for q in range(8): A(f"v_xor_b32 v{Pn+q}, 0x80008000, v{Pi+q}")
    for u in range(2):
        mf(AR, Pr+4*u, C64+4*u, u == 0)
        mf(AI, Pi+4*u, C64+4*u, u == 0)
        mf(AR, Pn+4*u, S64+4*u, False)
        mf(AI, Pr+4*u, S64+4*u, False)
    A("s_waitcnt lgkmcnt(0)")
    for q in range(8): A(f"v_xor_b32 v{On+q}, 0x80008000, v{Oi+q}")
    for u in range(2):
        mf(AR, Or+4*u, C64+8+4*u, False)
        mf(AI, Oi+4*u, C64+8+4*u, False)
        mf(AR, On+4*u, S64+8+4*u, False)
        mf(AI, Or+4*u, S64+8+4*u, False)
    stamp(A, 15)
    cmul_pack(T2c, T2s, True)
    for t in range(2):
        mf(AR, C32+4*t, Pr+4*t, t == 0)
        mf(AI, C32+4*t, Pi+4*t, t == 0)
        mf(AR, N32+4*t, Pi+4*t, False)
        mf(AI, S32+4*t, Pr+4*t, False)
    A("v_lshlrev_b32 v252, 7, v0")
    A(f"s_mov_b32 s26, {FP}")
    A(f"buffer_load_dword v253, v252, s[12:15], s26 offen {LSC}")
    A("v_lshlrev_b32 v4, 5, v2")
    A("v_lshl_add_u32 v4, v3, 4, v4")
    A("v_add_u32 v4, s24, v4")
    for j in range(4):
        for i in range(4):
            r = 4*j+i
            A(f"v_cvt_pk_bf16_f32 v{8+r}, v{AR+r}, v{AI+r}")
        A(f"buffer_store_dwordx4 v[{8+4*j}:{11+4*j}], v4, s[36:39], 0 offen offset:{j*1024} {SC}")
    A("s_waitcnt vmcnt(4)")
    stamp(A, 16)
    A(f"s_branch {Ldone}")
    A(f"{Lskip}:")
    A("s_waitcnt vmcnt(0)")
    A("s_barrier")
    flag_store(C, FP, 6, 7)
    A("v_lshlrev_b32 v252, 7, v0")
    A(f"s_mov_b32 s26, {FP}")
    A(f"buffer_load_dword v253, v252, s[12:15], s26 offen {LSC}")
    A("s_waitcnt vmcnt(0)")
    A(f"{Ldone}:")
    Lfx = C.lab("fp")
    A(f"v_cmp_ne_u32 vcc, s{STAG}, v253")
    A(f"s_cbranch_vccnz {Lfx}")
    A(f"{Lfx}_b:")
    def tail():
        A(f"{Lfx}:")
        q = C.vm.q
        def ld():
            A(f"s_mov_b32 s26, {FP}")
            A(f"buffer_load_dword v253, v252, s[12:15], s26 offen {LSC}")
        retry_loop(C, ld, lambda: A(f"v_cmp_ne_u32 vcc, s{STAG}, v253"))
        C.vm.q = q
        A(f"s_branch {Lfx}_b")
    C.tail.append(tail)
    A("s_barrier")
    vm.q = []

NS = 4
SLOT = 28*1024
C_LDS = NS*SLOT
def d_geometry(C):
    A = C.A
    A("s_and_b32 s40, s48, 1")
    A("s_lshl_b32 s40, s40, 3")
    A("s_and_b32 s41, s49, 7")
    A("s_add_u32 s40, s40, s41")
    A("s_lshr_b32 s41, s48, 1")
    A("s_lshl_b32 s41, s41, 2")
    A("s_lshr_b32 s42, s49, 3")
    A("s_add_u32 s41, s41, s42")
    A("s_mul_i32 s41, s41, 7")
    A("s_lshr_b32 s42, s3, 1")
    A("s_mul_i32 s42, s42, 221184")
    A("s_lshl_b32 s43, s41, 11")
    A("s_add_u32 s42, s42, s43")
    A("s_and_b32 s43, s3, 1")
    A("s_mul_i32 s43, s43, 7168")
    A("s_add_u32 s42, s42, s43")
    A("v_lshlrev_b32 v248, 4, v1")
    A("v_add_u32 v248, s42, v248")
    A("s_mul_i32 s42, s3, 7168")

def w13_ops(C, s, SRD=36):
    A = C.A; ops = []
    for i0, n in ((0, 4), (4, 3)):
        def setup(i0=i0):
            A(f"s_add_u32 m0, s42, {(s % NS)*SLOT + i0*1024}")
        def setup2(i0=i0):
            A(f"s_mov_b32 s43, {2*s*221184 + i0*1024}")
        ops += [setup, setup2]
        for i in range(n):
            def dma(i=i):
                A(f"buffer_load_dwordx4 v248, s[{SRD}:{SRD+3}], s43 offen offset:{i*1024} lds")
                C.vm.issue(("W", s))
            ops.append(dma)
    return ops

ZP = 1552
Z_OFF = C_LDS
ST_OFF = C_LDS + 8*ZP
STP = 1296
ST_H = ST_OFF + 8*STP
SCRAP = ST_H + 8*STP
LDS_TOTAL = SCRAP + 1024

def phase_c(C):
    A = C.A; vm = C.vm
    A("s_lshl_b32 s20, s48, 3")
    A("s_and_b32 s21, s49, 7")
    A("s_add_u32 s20, s20, s21")
    A("s_lshr_b32 s21, s49, 3")
    A("s_lshl_b32 s23, s21, 3")
    A("s_lshl_b32 s26, s3, 1")
    A("s_add_u32 s23, s23, s26")
    A("s_lshl_b32 s23, s23, 6")
    A("s_add_u32 s23, s23, s20")
    A("s_mul_i32 s23, s23, 1280")
    A("v_mul_u32_u24 v4, 40, v2")
    A("v_lshl_add_u32 v4, v3, 3, v4")
    A("v_add_u32 v5, s23, v4")
    srd(A, 28, 6, 0, SZ_X)
    A("s_mov_b32 s26, 81920")
    for r in range(2):
        for q in range(3):
            d = 20 + 6*r + 2*q
            A(f"buffer_load_dwordx2 v[{d}:{d+1}], v5, s[28:31], {'s26' if r else '0'} offen offset:{16*q}")
            vm.issue("X")
    A("v_lshlrev_b32 v6, 1, v4")
    srd(A, 32, 4, WS_MOD, SZ_MOD)
    GA, G2, SB = 32, 44, 56
    for base, sec in ((GA, 2), (G2, 4), (SB, 3)):
        A(f"s_movk_i32 s27, {sec*2560}")
        for q in range(3):
            A(f"buffer_load_dwordx4 v[{base+4*q}:{base+4*q+3}], v6, s[32:35], s27 offen offset:{32*q} {LSC}")
            vm.issue("M")
    d_geometry(C)
    srd(A, 36, 4, WS_W13, SZ_W13)
    for s_ in range(NS):
        for f in w13_ops(C, s_): f()
    stamp(A, 17)
    A("s_lshr_b32 s22, s20, 5")
    A("s_lshl_b32 s22, s22, 12")
    A("s_lshl_b32 s23, s21, 10")
    A("s_add_u32 s22, s22, s23")
    A("s_and_b32 s23, s20, 31")
    A("s_lshl_b32 s23, s23, 5")
    A("s_add_u32 s22, s22, s23")
    A("v_and_b32 v4, 1, v1")
    A("v_bfe_u32 v5, v1, 1, 2")
    A("v_lshrrev_b32 v6, 3, v1")
    A("s_lshl_b32 s23, s3, 3")
    A("v_add_u32 v6, s23, v6")
    A("v_lshl_add_u32 v251, v5, 5, v6")
    A("v_lshlrev_b32 v251, 13, v251")
    A("v_lshl_add_u32 v251, v4, 4, v251")
    A("v_add_u32 v251, s22, v251")
    A(f"v_mul_u32_u24 v252, {4*ZP}, v4")
    A("v_mul_u32_u24 v253, 48, v6")
    A("v_add_u32 v252, v252, v253")
    A("v_lshl_add_u32 v252, v5, 2, v252")
    A(f"v_add_u32 v252, {Z_OFF}, v252")
    srd(A, 16, 4, WS_Z, SZ_COL)
    A("s_mov_b32 s24, 0x100000")
    A("s_mov_b32 s25, 0x200000")
    BR, BI, TC, TS, C32, N32 = 92, 100, 108, 124, 140, 148
    t0, t1, t2, t3, t4 = 244, 245, 246, 247, 243
    pf, hf = 249, 250
    A(f"v_cvt_f32_u32 v{pf}, v2")
    A(f"v_cvt_f32_u32 v{hf}, v3")
    A(f"v_mul_f32 v4, {flit(1/20)}, v{pf}")
    A(f"v_mul_f32 v5, v4, v{hf}")
    A(f"v_mul_f32 v5, 4.0, v5")
    A(f"v_mov_b32 v6, 0")
    for st in range(2):
        for q in range(4):
            A(f"v_fmamk_f32 v{t0}, v4, {fk(8*st+q)}, v{5 if st == 0 else 6}")
            A(f"v_cos_f32 v{t1}, v{t0}")
            A(f"v_sin_f32 v{t2}, v{t0}")
            A(f"v_sub_f32 v{t3}, 0, v{t2}")
            A(f"v_cvt_pk_bf16_f32 v{BR+4*st+q}, v{t1}, v{t3}")
            A(f"v_cvt_pk_bf16_f32 v{BI+4*st+q}, v{t2}, v{t1}")
    A("v_cmp_eq_u32 vcc, 0, v3")
    for q in range(4):
        A(f"v_cndmask_b32 v{BR+4+q}, 0, v{BR+4+q}, vcc")
        A(f"v_cndmask_b32 v{BI+4+q}, 0, v{BI+4+q}, vcc")
    A(f"v_mul_f32 v4, {flit(1/640)}, v{pf}")
    A(f"v_mul_f32 v5, v4, v{hf}")
    A(f"v_mul_f32 v5, 4.0, v5")
    for r in range(16):
        A(f"v_fmamk_f32 v{t0}, v4, {fk(8*(r//4)+r%4)}, v5")
        A(f"v_cos_f32 v{TC+r}, v{t0}")
        A(f"v_sin_f32 v{TS+r}, v{t0}")
    A(f"v_mul_f32 v4, {flit(1/32)}, v{pf}")
    A(f"v_mul_f32 v5, v4, v{hf}")
    A(f"v_mul_f32 v5, 4.0, v5")
    for t in range(2):
        for p in range(4):
            for z in range(2):
                e = 2*p+z
                A(f"v_fmamk_f32 v{t0}, v4, {fk(16*t+8*(e>>2)+(e&3))}, v5")
                A(f"v_cos_f32 v{t1+z}, v{t0}")
                A(f"v_sin_f32 v{(t3, t4)[z]}, -v{t0}")
            A(f"v_cvt_pk_bf16_f32 v{C32+4*t+p}, v{t1}, v{t2}")
            A(f"v_cvt_pk_bf16_f32 v{N32+4*t+p}, v{t3}, v{t4}")
    XF = 68
    vm.wait(["X"])
    for r in range(2):
        for q in range(6):
            A(f"v_lshlrev_b32 v{XF+12*r+2*q}, 16, v{20+6*r+q}")
            A(f"v_and_b32 v{XF+12*r+2*q+1}, 0xffff0000, v{20+6*r+q}")
    A("v_cmp_eq_u32 vcc, 0, v3")
    vm.wait(["M"])
    for r in range(2):
        for k in range(8, 12): A(f"v_cndmask_b32 v{XF+12*r+k}, 0, v{XF+12*r+k}, vcc")
    for k in range(8, 12): A(f"v_cndmask_b32 v{GA+k}, 0, v{GA+k}, vcc")
    stamp(A, 18)
    def z_loads():
        for m in range(3):
            A(f"buffer_load_dwordx4 v[{8+4*m}:{11+4*m}], v251, s[16:19], {['0','s24','s25'][m]} offen {LSC}")
    retry_loop(C, z_loads, lambda: fill_test(A, range(8, 20), 4))
    for m in range(3):
        for i in range(4):
            A(f"ds_write_b32 v252, v{8+4*m+i} offset:{i*ZP + 16*m}")
    A(f"s_mul_i32 s26, s3, {2*ZP}")
    A(f"s_add_u32 s26, s26, {Z_OFF}")
    A("v_mul_u32_u24 v4, 48, v2")
    A("v_add_u32 v4, s26, v4")
    A("v_lshl_add_u32 v5, v3, 4, v4")
    A("s_waitcnt lgkmcnt(0)")
    A("s_barrier")
    stamp(A, 19)
    FA_ = [[156, 160], [164, 168]]
    for row in range(2):
        A(f"ds_read_b128 v[{FA_[row][0]}:{FA_[row][0]+3}], v5 offset:{row*ZP}")
        A(f"ds_read_b128 v[{FA_[row][1]}:{FA_[row][1]+3}], v4 offset:{row*ZP+32}")
    U = [[172, 188], [204, 220]]
    for st in range(2):
        for row in range(2):
            if st == 0: A(f"s_waitcnt lgkmcnt({2 if row == 0 else 0})")
            mf32(A, U[row][0], FA_[row][st], BR+4*st, st == 0)
            mf32(A, U[row][1], FA_[row][st], BI+4*st, st == 0)
    A("v_cmp_eq_u32 vcc, 0, v3")
    P = [[156, 164], [8, 236]]
    TA, TB = 20, 22
    for row in range(2):
        ur, ui = U[row]; pr_, pi_ = P[row]
        for r in range(0, 16, 2):
            A(f"v_pk_mul_f32 {pr(TA)}, {pr(ur+r)}, {pr(TC+r)}")
            A(f"v_pk_mul_f32 {pr(TB)}, {pr(ui+r)}, {pr(TC+r)}")
            A(f"v_pk_fma_f32 {pr(TA)}, {pr(ui+r)}, {pr(TS+r)}, {pr(TA)} neg_lo:[1,0,0] neg_hi:[1,0,0]")
            A(f"v_pk_fma_f32 {pr(TB)}, {pr(ur+r)}, {pr(TS+r)}, {pr(TB)}")
            A(f"v_cvt_pk_bf16_f32 v{pr_+r//2}, v{TA}, v{TA+1}")
            A(f"v_cvt_pk_bf16_f32 v{pi_+r//2}, v{TB}, v{TB+1}")
    Y = [172, 204]
    for t in range(2):
        for row in range(2):
            mf32(A, Y[row], P[row][0]+4*t, C32+4*t, t == 0)
        for row in range(2):
            mf32(A, Y[row], P[row][1]+4*t, N32+4*t, False)
    for row in range(2):
        for k in range(0, 12, 2):
            A(f"v_pk_fma_f32 {pr(XF+12*row+k)}, {pr(GA+k)}, {pr(Y[row]+k)}, {pr(XF+12*row+k)}")
    X2P = 20
    for row in range(2):
        for k in range(6):
            A(f"v_cvt_pk_bf16_f32 v{X2P+6*row+k}, v{XF+12*row+2*k}, v{XF+12*row+2*k+1}")
    A(f"s_mul_i32 s26, s3, {2*STP}")
    A(f"s_add_u32 s26, s26, {ST_OFF}")
    A("v_mul_u32_u24 v4, 40, v2")
    A("v_lshl_add_u32 v4, v3, 3, v4")
    A("v_add_u32 v4, s26, v4")
    A("v_lshlrev_b32 v7, 3, v1")
    A(f"v_add_u32 v7, {SCRAP}, v7")
    A("v_add_u32 v6, 32, v4")
    A("v_cndmask_b32 v5, v7, v6, vcc")
    for row in range(2):
        for q in range(2):
            A(f"ds_write_b64 v4, {pr(X2P+6*row+2*q)} offset:{row*STP + 16*q}")
    A(f"v_add_u32 v6, {STP}, v6")
    A("v_cndmask_b32 v6, v7, v6, vcc")
    A(f"ds_write_b64 v5, {pr(X2P+4)}")
    A(f"ds_write_b64 v6, {pr(X2P+10)}")
    for r in range(2):
        for q in range(6):
            A(f"v_lshlrev_b32 v{XF+12*r+2*q}, 16, v{X2P+6*r+q}") if OPT.get("rx2") else None
            A(f"v_and_b32 v{XF+12*r+2*q+1}, 0xffff0000, v{X2P+6*r+q}") if OPT.get("rx2") else None
    S0, S1, T0, T1 = 32, 34, 36, 38
    def red64(a, b):
        ta, tb = T0, T1
        for ctl in ["quad_perm:[1,0,3,2]", "quad_perm:[2,3,0,1]", "row_ror:4", "row_ror:8"]:
            A(f"v_add_f32_dpp v{a}, v{a}, v{a} {ctl} row_mask:0xf bank_mask:0xf")
            A(f"v_add_f32_dpp v{b}, v{b}, v{b} {ctl} row_mask:0xf bank_mask:0xf")
        for sw in ("v_permlane16_swap_b32", "v_permlane32_swap_b32"):
            A(f"v_mov_b32 v{ta}, v{a}")
            A(f"v_mov_b32 v{tb}, v{b}")
            A(f"{sw} v{a}, v{ta}")
            A(f"{sw} v{b}, v{tb}")
            A(f"v_add_f32 v{a}, v{a}, v{ta}")
            A(f"v_add_f32 v{b}, v{b}, v{tb}")
    S = [S0, S1]
    for k in range(0, 12, 2):
        for row in range(2):
            x = XF+12*row+k
            if k == 0: continue
            if k == 2: A(f"v_pk_add_f32 {pr(S[row])}, {pr(x-2)}, {pr(x)}")
            else: A(f"v_pk_add_f32 {pr(S[row])}, {pr(S[row])}, {pr(x)}")
    for row in range(2): A(f"v_add_f32 v{S[row]}, v{S[row]}, v{S[row]+1}")
    red64(S0, S1)
    for row in range(2):
        A(f"v_mul_f32 v{S[row]}, {flit(1/640)}, v{S[row]}")
        A(f"v_cndmask_b32 v{S[row]+1}, 0, v{S[row]}, vcc")
    for k in range(0, 12, 2):
        for row in range(2):
            x = XF+12*row+k
            sel = "op_sel_hi:[1,0]" if k < 8 else "op_sel:[0,1] op_sel_hi:[1,1]"
            A(f"v_pk_add_f32 {pr(x)}, {pr(x)}, {pr(S[row])} {sel} neg_lo:[0,1] neg_hi:[0,1]")
    V = [40, 42]
    for k in range(0, 12, 2):
        for row in range(2):
            x = XF+12*row+k
            if k == 0: A(f"v_pk_mul_f32 {pr(V[row])}, {pr(x)}, {pr(x)}")
            else: A(f"v_pk_fma_f32 {pr(V[row])}, {pr(x)}, {pr(x)}, {pr(V[row])}")
    for row in range(2): A(f"v_add_f32 v{V[row]}, v{V[row]}, v{V[row]+1}")
    red64(V[0], V[1])
    for row in range(2):
        A(f"v_mov_b32 v{S[row]}, {flit(1e-5)}")
        A(f"v_fmac_f32 v{S[row]}, {flit(1/640)}, v{V[row]}")
    for row in range(2): A(f"v_rsq_f32 v{S[row]}, v{S[row]}")
    for k in range(0, 12, 2):
        for row in range(2):
            x = XF+12*row+k
            A(f"v_pk_mul_f32 {pr(x)}, {pr(x)}, {pr(S[row])} op_sel_hi:[1,0]")
        for row in range(2):
            x = XF+12*row+k
            A(f"v_pk_fma_f32 {pr(x)}, {pr(x)}, {pr(G2+k)}, {pr(SB+k)}")
    H2P_ = 8
    for row in range(2):
        for k in range(6):
            A(f"v_cvt_pk_bf16_f32 v{H2P_+6*row+k}, v{XF+12*row+2*k}, v{XF+12*row+2*k+1}")
    HO = ST_H - ST_OFF
    for row in range(2):
        for q in range(2):
            A(f"ds_write_b64 v4, {pr(H2P_+6*row+2*q)} offset:{HO + row*STP + 16*q}")
    A(f"v_subrev_u32 v7, {HO}, v7")
    A(f"v_add_u32 v36, 32, v4")
    A(f"v_cndmask_b32 v37, v7, v36, vcc")
    A(f"v_add_u32 v36, {STP}, v36")
    A(f"v_cndmask_b32 v36, v7, v36, vcc")
    A(f"ds_write_b64 v37, {pr(H2P_+4)} offset:{HO}")
    A(f"ds_write_b64 v36, {pr(H2P_+10)} offset:{HO}")
    A("v_and_b32 v4, 7, v0")
    A("v_lshrrev_b32 v5, 3, v0")
    A(f"v_mul_u32_u24 v6, {STP}, v4")
    A("v_lshl_add_u32 v6, v5, 4, v6")
    A(f"v_add_u32 v6, {ST_H}, v6")
    A("s_lshl_b32 s26, s48, 4")
    A("s_lshr_b32 s27, s49, 1")
    A("s_add_u32 s26, s26, s27")
    A("s_mul_i32 s26, s26, 20480")
    A("s_and_b32 s27, s49, 1")
    A("s_lshl_b32 s27, s27, 7")
    A("s_add_u32 s26, s26, s27")
    A("v_lshlrev_b32 v5, 8, v5")
    A("v_lshl_add_u32 v5, v4, 4, v5")
    A("v_add_u32 v5, s26, v5")
    A("v_lshrrev_b32 v4, 5, v0")
    A(f"v_mul_u32_u24 v7, {STP}, v4")
    A("v_lshl_add_u32 v7, v2, 4, v7")
    A(f"v_add_u32 v7, {ST_OFF}, v7")
    A("s_lshl_b32 s26, s21, 9")
    A("s_add_u32 s26, s26, s20")
    A("s_mul_i32 s26, s26, 1280")
    A("v_mul_u32_u24 v4, 81920, v4")
    A("v_lshl_add_u32 v4, v2, 4, v4")
    A("v_add_u32 v4, s26, v4")
    A(f"v_add_u32 v36, {hex(OOB)}, v4")
    A("v_cmp_gt_u32 vcc, 16, v2")
    A("v_cndmask_b32 v36, v36, v4, vcc")
    A(f"v_add_u32 v37, {hex(OOB)}, v5")
    A("s_cmp_lt_u32 s3, 2")
    A("s_cselect_b64 vcc, -1, 0")
    A("v_cndmask_b32 v37, v37, v5, vcc")
    srd(A, 16, 4, WS_H2P, SZ_H2P)
    srd(A, 28, 4, WS_X2, SZ_X)
    A("s_waitcnt lgkmcnt(0)")
    A("s_barrier")
    for i in range(3):
        A(f"ds_read_b128 v[{8+4*i}:{11+4*i}], v6 offset:{512*i}")
    for i in range(3):
        A(f"ds_read_b128 v[{20+4*i}:{23+4*i}], v7 offset:{512*i}")
    A("s_movk_i32 s26, 8192")
    A("s_movk_i32 s27, 16384")
    for i in range(3):
        A(f"s_waitcnt lgkmcnt({5-i})")
        A(f"buffer_store_dwordx4 v[{8+4*i}:{11+4*i}], v{37 if i == 2 else 5}, s[16:19], {['0','s26','s27'][i]} offen {SC}"); vm.issue("st")
    for i in range(3):
        A(f"s_waitcnt lgkmcnt({2-i})")
        A(f"buffer_store_dwordx4 v[{20+4*i}:{23+4*i}], v{36 if i == 2 else 4}, s[28:31], 0 offen offset:{512*i} {SC}"); vm.issue("st")
    stamp(A, 20)

D_LA = 6
RA = 8
RB = 10
def e_geometry(C):
    A = C.A
    A("s_lshr_b32 s44, s48, 1")
    A("s_lshl_b32 s44, s44, 3")
    A("s_and_b32 s45, s49, 7")
    A("s_add_u32 s44, s44, s45")
    A("s_and_b32 s45, s48, 1")
    A("s_lshl_b32 s45, s45, 2")
    A("s_lshr_b32 s46, s49, 3")
    A("s_add_u32 s45, s45, s46")
    A("s_mul_i32 s46, s3, 14")
    A("s_mul_i32 s47, s46, 40960")
    A("s_mul_i32 s51, s45, 5120")
    A("s_add_u32 s47, s47, s51")
    A("v_lshlrev_b32 v246, 4, v1")
    A("v_add_u32 v246, s47, v246")
    A("v_add_u32 v247, 4096, v246")

NST = 14
def wfrag(st, p):
    k = st*5 + p
    if k < 64: return ("a", 4*k)
    return ("v", 152 + 4*(k-64))
def w2_ops(C, SRD=32):
    A = C.A; ops = []
    for st in range(NST):
        def setup(st=st):
            A(f"s_mov_b32 s51, {st*40960}")
        ops.append(setup)
        for p in range(5):
            def ld(st=st, p=p):
                k, r = wfrag(st, p)
                if p < 4: A(f"buffer_load_dwordx4 {k}[{r}:{r+3}], v246, s[{SRD}:{SRD+3}], s51 offen offset:{1024*p}")
                else: A(f"buffer_load_dwordx4 {k}[{r}:{r+3}], v247, s[{SRD}:{SRD+3}], s51 offen")
                C.vm.issue(("W2", st))
            ops.append(ld)
    return ops

def phase_d(C):
    A = C.A; vm = C.vm
    ACC, AR, BR = 8, 120, 152
    VL, VB = 232, 237
    e_geometry(C)
    srd(A, 32, 4, WS_W2, SZ_W2P)
    w2 = w2_ops(C)
    NPRE = int(OPT.get("w2pre", 36))
    for _ in range(NPRE): w2.pop(0)()
    A("s_lshl_b32 s20, s40, 3")
    A("s_lshl_b32 s21, s3, 1")
    A("s_add_u32 s20, s20, s21")
    A("v_lshlrev_b32 v4, 4, v1")
    A("s_mul_i32 s21, s20, 20480")
    A(f"v_add_u32 v{VB}, s21, v4")
    A(f"v_add_u32 v{VB+1}, 20480, v{VB}")
    for b in range(NS):
        A(f"v_add_u32 v{VL+b}, {b*SLOT}, v4") if b else A(f"v_mov_b32 v{VL}, v4")
    srd(A, 16, 4, WS_H2P, SZ_H2P)
    srd(A, 24, 4, WS_HH, SZ_HH)
    bstate = {}
    BACC = 236
    def b_regs(t): return range(BR + (t % RB)*8, BR + (t % RB)*8 + 8)
    def b_ops(t):
        ops = []
        if t % 4 == 0:
            ops.append(lambda t=t: A(f"s_movk_i32 s22, {t*1024}"))
        for rt in range(2):
            def f(t=t, rt=rt):
                if t >= RB: assert bstate.get(t-RB), ("B ring WAR", t)
                r = BR + (t % RB)*8 + 4*rt
                A(f"buffer_load_dwordx4 v[{r}:{r+3}], v{VB+rt}, s[16:19], s22 offen offset:{(t%4)*1024} {LSC}")
                vm.issue(("B", t))
            ops.append(f)
        return ops
    def b_reload(ts):
        def f():
            for t in ts:
                A(f"s_movk_i32 s54, {t*1024}")
                for rt in range(2):
                    r = BR + (t % RB)*8 + 4*rt
                    A(f"buffer_load_dwordx4 v[{r}:{r+3}], v{VB+rt}, s[16:19], s54 offen {LSC}")
        return f
    NB0 = 8
    NPOLL = 3
    retry_loop(C, b_reload(range(NPOLL)), lambda: fill_test(A, [r for t in range(NPOLL) for r in b_regs(t)], BACC))
    A("s_barrier")
    stamp(A, 21)
    A("s_movk_i32 s22, 0")
    for t in range(NPOLL, NB0):
        for f in b_ops(t): f()
    NF = 280; NSL = 10
    pending = []
    def lds_read(n):
        t, i = divmod(n, 14)
        s_ = t >> 1
        r = AR + (n % RA)*4
        A(f"ds_read_b128 v[{r}:{r+3}], v{VL + s_ % NS} offset:{((t & 1)*14 + i)*1024}")
    left = 77 - NPRE
    W2_SCHED = {}
    for s_, cap in ((5, 5), (6, 5), (7, 5), (8, 13), (9, 13)):
        k = min(cap, left); W2_SCHED[s_] = k; left -= k
    def enter_slot(s_):
        if s_ >= NS: vm.wait([("W", s_)])
        A("s_barrier")
        if s_ >= 2 and s_ + NS - 2 < NSL:
            pending.extend(w13_ops(C, s_ + NS - 2))
        for _ in range(W2_SCHED.get(s_, 0)): pending.append(w2.pop(0))
    def filler(k=1):
        for _ in range(k):
            if pending: pending.pop(0)()
    for t in range(NB0, RB): pending.extend(b_ops(t))
    for n in range(D_LA): lds_read(n)
    A(f"s_waitcnt lgkmcnt({D_LA-1})")
    for n in range(NF):
        t, i = divmod(n, 14)
        if i == 0 and NPOLL <= t + 1 < 20:
            vm.wait([("B", t+1)])
            pending[0:0] = check_ops(C, b_reload([t+1]), b_regs(t+1), BACC)
        a = AR + (n % RA)*4
        def mm(rt):
            c = ACC + (i*2 + rt)*4
            b = BR + (t % RB)*8 + 4*rt
            src = "0" if t == 0 else f"v[{c}:{c+3}]"
            A(f"v_mfma_f32_16x16x32_bf16 v[{c}:{c+3}], v[{a}:{a+3}], v[{b}:{b+3}], {src}")
        mm(0)
        nn = n + D_LA
        if nn < NF:
            if nn % 28 == 0: enter_slot(nn // 28)
            lds_read(nn)
        filler(1)
        mm(1)
        if i == 13:
            bstate[t] = True
            if t + RB < 20: pending.extend(b_ops(t + RB))
        if n + 1 < NF:
            rem = min(NF - 1 - (n+1), D_LA - 1)
            A(f"s_waitcnt lgkmcnt({rem})")
        filler(1)
    stamp(A, 22)
    rest = pending + w2
    A("s_mul_i32 s21, s20, 55296")
    A("v_lshlrev_b32 v4, 4, v1")
    A(f"v_add_u32 v{VB}, s21, v4")
    A(f"v_add_u32 v{VB+1}, 55296, v{VB}")
    A("s_lshr_b32 s22, s41, 1")
    A("s_lshl_b32 s22, s22, 10")
    for f in rest: f()
    T = 120
    NL = flit(-math.log2(math.e))
    A(f"v_mov_b32 v6, {NL}")
    def swiglu(ft, rt, dst):
        g = ACC + ((2*ft)*2 + rt)*4
        u = ACC + ((2*ft+1)*2 + rt)*4
        t = T + 4*rt
        for r in (0, 2): A(f"v_pk_mul_f32 {pr(t+r)}, {pr(g+r)}, {pr(6)} op_sel_hi:[1,0]")
        for r in range(4): A(f"v_exp_f32 v{t+r}, v{t+r}")
        for r in (0, 2): A(f"v_pk_mul_f32 {pr(g+r)}, {pr(g+r)}, {pr(u+r)}")
        for r in (0, 2): A(f"v_pk_add_f32 {pr(t+r)}, {pr(t+r)}, 1.0 op_sel_hi:[1,0]")
        for r in range(4): A(f"v_rcp_f32 v{t+r}, v{t+r}")
        for r in (0, 2): A(f"v_pk_mul_f32 {pr(g+r)}, {pr(g+r)}, {pr(t+r)}")
        A(f"v_cvt_pk_bf16_f32 v{dst}, v{g}, v{g+1}")
        A(f"v_cvt_pk_bf16_f32 v{dst+1}, v{g+2}, v{g+3}")
    Lodd, Ldone = C.lab("d_odd"), C.lab("d_done")
    A("v_lshlrev_b32 v4, 3, v1")
    A(f"v_sub_u32 v4, v{VB}, v4")
    A("v_add_u32 v5, 55296, v4")
    A("s_cmp_eq_u32 s41, 105")
    A(f"s_cselect_b32 s23, {hex(OOB)}, s22")
    A("s_bitcmp1_b32 s41, 0")
    A(f"s_cbranch_scc1 {Lodd}")
    OUTR = 128
    def variant(odd):
        groups = ([(0,)] + [(1,2),(3,4),(5,6)]) if odd else ([(0,1),(2,3),(4,5)] + [(6,)])
        for gi, grp in enumerate(groups):
            for rt in range(2):
                o = OUTR + 4*((2*gi + rt) % 4)
                if len(grp) == 2:
                    swiglu(grp[0], rt, o); swiglu(grp[1], rt, o+2)
                    so = "s23" if (odd and gi >= 2) else "s22"
                    A(f"buffer_store_dwordx4 v[{o}:{o+3}], v{VB+rt}, s[24:27], {so} offen offset:{1024*gi} {SC}")
                else:
                    swiglu(grp[0], rt, o)
                    A(f"buffer_store_dwordx2 v[{o}:{o+1}], v{4+rt}, s[24:27], s22 offen offset:{1024*gi + (512 if odd else 0)} {SC}")
    variant(False)
    A(f"s_branch {Ldone}")
    A(f"{Lodd}:")
    variant(True)
    A(f"{Ldone}:")
    vm.q = []
    stamp(A, 23)

def phase_e(C):
    A = C.A; vm = C.vm
    ACC = 8
    RING = [88, 104, 120, 136, 176, 192, 208, 224]
    VH = 240
    VH2 = 248
    A("v_lshlrev_b32 v2, 4, v1")
    A("s_lshl_b32 s20, s44, 2")
    A("s_lshl_b32 s21, s46, 10")
    for q in range(4):
        A(f"s_add_u32 s22, s3, {q}")
        A("s_and_b32 s22, s22, 3")
        A("s_add_u32 s22, s22, s20")
        A("s_mul_i32 s22, s22, 55296")
        A("s_add_u32 s22, s22, s21")
        A(f"v_add_u32 v{VH+q}, s22, v2")
        A(f"v_lshl_add_u32 v{VH2+q}, v1, 3, s22")
    A("s_cmp_eq_u32 s3, 3")
    A(f"s_mov_b32 s47, {12*1024}")
    A(f"s_cselect_b32 s47, {hex(OOB)}, s47")
    srd(A, 16, 4, WS_HH, SZ_HH)
    srd(A, 24, 4, WS_X2, SZ_X)
    srd(A, 28, 4, WS_MOD, SZ_MOD)
    srd(A, 36, 8, 0, SZ_X)
    A("v_and_b32 v3, 15, v1")
    A("s_lshl_b32 s21, s44, 6")
    A("s_lshl_b32 s22, s3, 4")
    A("s_add_u32 s21, s21, s22")
    A("v_add_u32 v3, s21, v3")
    A("v_lshrrev_b32 v4, 8, v3")
    A("v_bfe_u32 v5, v3, 3, 3")
    A("v_lshl_add_u32 v4, v4, 3, v5")
    A("v_bfe_u32 v5, v3, 6, 2")
    A("v_and_b32 v6, 7, v3")
    A("v_lshl_add_u32 v5, v5, 3, v6")
    A("v_lshl_add_u32 v4, v5, 6, v4")
    A("v_mul_u32_u24 v244, 1280, v4")
    A("v_lshrrev_b32 v5, 4, v1")
    A("s_mul_i32 s21, s45, 160")
    A("v_lshl_add_u32 v244, v5, 3, v244")
    A("v_add_u32 v244, s21, v244")
    A("s_mul_i32 s21, s45, 320")
    A(f"s_add_u32 s21, s21, {5*2560}")
    A("v_lshlrev_b32 v245, 4, v5")
    A("v_add_u32 v245, s21, v245")
    HACC = 252
    def h_regs(st): return range(RING[st % 8], RING[st % 8] + 16)
    def h_reload(sts):
        def f():
            for st in sts:
                if st >= 12: A("s_mov_b32 s54, s47"); off = (st - 12)*1024
                else: A(f"s_movk_i32 s54, {st*1024}"); off = 0
                for q in range(4):
                    r = RING[st % 8] + 4*q
                    if st % 7 == 3:
                        for z in range(2):
                            A(f"buffer_load_dwordx2 v[{r+2*z}:{r+2*z+1}], v{VH2+q}, s[16:19], s54 offen offset:{off + 512*z} {LSC}")
                    else:
                        A(f"buffer_load_dwordx4 v[{r}:{r+3}], v{VH+q}, s[16:19], s54 offen offset:{off} {LSC}")
        return f
    def h_ops(st):
        ops = []
        if st % 4 == 0:
            ops.append((lambda st=st: A(f"s_movk_i32 s22, {st*1024}")) if st < 12 else (lambda: A("s_mov_b32 s22, s47")))
        for q in range(4):
            r = RING[st % 8] + 4*q
            if st % 7 == 3:
                for z in range(2):
                    def f(q=q, st=st, r=r, z=z):
                        A(f"buffer_load_dwordx2 v[{r+2*z}:{r+2*z+1}], v{VH2+q}, s[16:19], s22 offen offset:{(st%4)*1024 + 512*z} {LSC}")
                        vm.issue(("H", st))
                    ops.append(f)
            else:
                def f(q=q, st=st, r=r):
                    A(f"buffer_load_dwordx4 v[{r}:{r+3}], v{VH+q}, s[16:19], s22 offen offset:{(st%4)*1024} {LSC}")
                    vm.issue(("H", st))
                ops.append(f)
        return ops
    NPOLL = 3
    retry_loop(C, h_reload(range(NPOLL)), lambda: fill_test(A, [r for st in range(NPOLL) for r in h_regs(st)], HACC))
    A("s_barrier")
    A("s_movk_i32 s22, 0")
    for st in range(NPOLL, 8):
        for f in h_ops(st): f()
    pending = []
    for st in range(NST):
        if NPOLL <= st + 1 < NST:
            vm.wait([("H", st+1)])
            pending[0:0] = check_ops(C, h_reload([st+1]), h_regs(st+1), HACC)
        k = 0
        for p in range(5):
            for q in range(4):
                c = ACC + (q*5+p)*4
                src = "0" if st == 0 else f"v[{c}:{c+3}]"
                wk, wr = wfrag(st, p)
                h = RING[st % 8] + 4*q
                A(f"v_mfma_f32_16x16x32_bf16 v[{c}:{c+3}], {wk}[{wr}:{wr+3}], v[{h}:{h+3}], {src}")
                k += 1
                if pending: pending.pop(0)()
        while pending: pending.pop(0)()
        if st + 8 < NST: pending.extend(h_ops(st + 8))
        if st == 7:
            def xg():
                for p in range(5):
                    A(f"buffer_load_dwordx2 {pr(208+2*p)}, v244, s[24:27], 0 offen offset:{32*p} {LSC}")
                    vm.issue("XG")
                    A(f"buffer_load_dwordx4 v[{220+4*p}:{223+4*p}], v245, s[28:31], 0 offen offset:{64*p} {LSC}")
                    vm.issue("XG")
            pending.append(xg)
    while pending: pending.pop(0)()
    X, G = 208, 220
    A("v_lshlrev_b32 v2, 4, v1")
    for q in range(1, 4):
        A(f"s_add_u32 s21, s3, {q}")
        A("s_and_b32 s21, s21, 3")
        A("s_mul_i32 s21, s21, 15360")
        A(f"s_add_u32 s21, s21, {(q-1)*5120}")
        A(f"v_add_u32 v6, s21, v2")
        for p in range(5):
            c = ACC + (q*5+p)*4
            A(f"ds_write_b128 v6, v[{c}:{c+3}] offset:{p*1024}")
    A("s_mul_i32 s21, s3, 15360")
    A("v_add_u32 v6, s21, v2")
    A("s_waitcnt lgkmcnt(0)")
    A("s_barrier")
    R = 88
    for k in range(3):
        for p in range(5):
            r = R + k*20 + 4*p
            A(f"ds_read_b128 v[{r}:{r+3}], v6 offset:{k*5120 + p*1024}")
    for k in range(3):
        A(f"s_waitcnt lgkmcnt({5*(2-k)})")
        for r in range(0, 20, 2):
            A(f"v_pk_add_f32 {pr(ACC+r)}, {pr(ACC+r)}, {pr(R+k*20+r)}")
    vm.wait(["XG"])
    def x_reload():
        for p in range(5): A(f"buffer_load_dwordx2 {pr(208+2*p)}, v244, s[24:27], 0 offen offset:{32*p} {LSC}")
    for f in check_ops(C, x_reload, range(208, 218), HACC): f()
    for p in range(5):
        for z in range(2):
            A(f"v_lshlrev_b32 v4, 16, v{X+2*p+z}")
            A(f"v_and_b32 v5, 0xffff0000, v{X+2*p+z}")
            A(f"v_pk_fma_f32 {pr(4)}, {pr(G+4*p+2*z)}, {pr(ACC+4*p+2*z)}, {pr(4)}")
            A(f"v_cvt_pk_bf16_f32 v{88+2*p+z}, v4, v5")
        A(f"buffer_store_dwordx2 {pr(88+2*p)}, v244, s[36:39], 0 offen offset:{32*p}")
    L = C.lab("ep")
    A("s_or_b32 s50, s2, s3")
    A("s_cmp_lg_u32 s50, 0")
    A(f"s_cbranch_scc1 {L}")
    srd(A, 16, 4, WS_EPOCH, 128)
    A("v_mov_b32 v4, 0")
    A(f"v_mov_b32 v5, s{STAG}")
    A("s_mov_b64 exec, 1")
    A(f"buffer_store_dword v5, v4, s[16:19], 0 offen {SC}")
    A("s_mov_b64 exec, -1")
    A(f"{L}:")

def fused(name=MAIN):
    K = Kern(name, 256, LDS_TOTAL, vgpr=256, agpr=256)
    A = K.A
    C = Ctx(A)
    phase0(C)
    phase_a(C)
    prep_finish(C)
    phase_b(C)
    phase_c(C)
    phase_d(C)
    phase_e(C)
    A("all_end:")
    A("s_endpgm")
    for f in C.tail: f()
    return K
```

```python
from gen_common import *

PITCH2 = 1312
ROWS_LDS = 8*PITCH2
TR_OFF = 10496

def reduce32(A, regs, tmp):
    for ctl in ["quad_perm:[1,0,3,2]", "quad_perm:[2,3,0,1]", "row_ror:4", "row_ror:8"]:
        for r in regs:
            A(f"v_add_f32_dpp v{r}, v{r}, v{r} {ctl} row_mask:0xf bank_mask:0xf")
    for r, t in zip(regs, tmp):
        A(f"v_mov_b32 v{t}, v{r}")
    for r, t in zip(regs, tmp):
        A(f"v_permlane16_swap_b32 v{r}, v{t}")
    for r, t in zip(regs, tmp):
        A(f"v_add_f32 v{r}, v{r}, v{t}")

def unpack_bf16(A, dst, src, n):
    for q in range(n):
        A(f"v_lshlrev_b32 v{dst+2*q}, 16, v{src+q}")
        A(f"v_and_b32 v{dst+2*q+1}, 0xffff0000, v{src+q}")

def layernorm(A, xf, n, t0, t1):
    A(f"v_add_f32 v{t0}, v{xf}, v{xf+1}")
    A(f"v_add_f32 v{t1}, v{xf+2}, v{xf+3}")
    for q in range(4, n, 2):
        A(f"v_add_f32 v{t0}, v{t0}, v{xf+q}")
        A(f"v_add_f32 v{t1}, v{t1}, v{xf+q+1}")
    A(f"v_add_f32 v{t0}, v{t0}, v{t1}")
    reduce32(A, [t0], [t1])
    A(f"v_mul_f32 v{t0}, {flit(1.0/640)}, v{t0}")
    for q in range(n):
        A(f"v_sub_f32 v{xf+q}, v{xf+q}, v{t0}")
    A(f"v_mul_f32 v{t0}, v{xf}, v{xf}")
    A(f"v_mul_f32 v{t1}, v{xf+1}, v{xf+1}")
    for q in range(2, n, 2):
        A(f"v_fmac_f32 v{t0}, v{xf+q}, v{xf+q}")
        A(f"v_fmac_f32 v{t1}, v{xf+q+1}, v{xf+q+1}")
    A(f"v_add_f32 v{t0}, v{t0}, v{t1}")
    reduce32(A, [t0], [t1])
    A(f"v_mov_b32 v{t1}, {flit(1e-5)}")
    A(f"v_fmac_f32 v{t1}, {flit(1.0/640)}, v{t0}")
    A(f"v_rsq_f32 v{t0}, v{t1}")

def k2(name="k2_kernel"):
    K = Kern(name, 256, TR_OFF + 16384, vgpr=216)
    A = K.A
    A("s_cmp_ge_u32 s2, 256")
    A("s_cbranch_scc1 k2_end")
    A("s_load_dwordx2 s[4:5], s[0:1], 0")
    A("s_load_dwordx2 s[6:7], s[0:1], 88")
    A("v_and_b32 v1, 63, v0")
    A("v_and_b32 v2, 31, v0")
    A("v_lshrrev_b32 v3, 5, v1")
    A("v_lshrrev_b32 v4, 6, v0")
    A("v_readfirstlane_b32 s3, v4")
    A("s_and_b32 s8, s2, 7")
    A("s_lshl_b32 s8, s8, 3")
    A("s_bfe_u32 s9, s2, 0x30003")
    A("s_add_u32 s8, s8, s9")
    A("s_lshr_b32 s9, s2, 7")
    A("s_bfe_u32 s10, s2, 0x10006")
    A("s_lshl_b32 s11, s9, 4")
    A("s_lshl_b32 s12, s10, 2")
    A("s_add_u32 s11, s11, s12")
    A("s_lshr_b32 s12, s3, 1")
    A("s_lshl_b32 s12, s12, 3")
    A("s_add_u32 s11, s11, s12")
    A("s_and_b32 s12, s3, 1")
    A("s_lshl_b32 s12, s12, 1")
    A("s_add_u32 s11, s11, s12")
    A("s_lshl_b32 s11, s11, 6")
    A("s_add_u32 s11, s11, s8")
    A("s_mul_i32 s11, s11, 1280")
    A("v_mul_u32_u24 v5, 81920, v3")
    A("v_lshl_add_u32 v5, v2, 3, v5")
    A("v_add_u32 v5, s11, v5")
    A("v_lshlrev_b32 v6, 4, v2")
    A("s_movk_i32 s13, 2560")
    A("s_waitcnt lgkmcnt(0)")
    srd(A, 16, 4, 0, SZ_X)
    srd(A, 20, 6, WS_MOD, SZ_MOD)
    srd(A, 24, 6, WS_Y1, SZ_COL)
    if os.environ.get("POISON"):
        A("s_lshl_b32 s28, s2, 12")
        A("v_lshl_add_u32 v60, v0, 4, s28")
        for q in range(4): A(f"v_mov_b32 v{64+q}, -1")
        for off, sz in ((WS_Z, SZ_COL), (WS_X2, SZ_X), (WS_H2P, SZ_H2P), (WS_HH, SZ_HH)):
            srd(A, 32, 6, off, sz)
            for i in range((sz + (1 << 20) - 1) >> 20):
                A(f"s_mov_b32 s28, {i << 20}")
                A("buffer_store_dwordx4 v[64:67], v60, s[32:35], s28 offen")
    for i in range(5):
        A(f"buffer_load_dwordx2 v[{8+2*i}:{9+2*i}], v5, s[16:19], 0 offen offset:{256*i}")
    for i in range(5):
        A(f"buffer_load_dwordx4 v[{20+4*i}:{23+4*i}], v6, s[20:23], s13 offen offset:{512*i}")
        A(f"buffer_load_dwordx4 v[{40+4*i}:{43+4*i}], v6, s[20:23], 0 offen offset:{512*i}")
    stamp(A, 0)
    A("v_cvt_f32_u32 v7, v2")
    A("v_cvt_f32_u32 v18, v3")
    A(f"v_mul_f32 v212, {flit(1/32)}, v7")
    A("v_mul_f32 v213, v212, v18")
    A(f"v_mul_f32 v213, {flit(8.0)}, v213")
    for mh in range(2):
        for p in range(4):
            for z in range(2):
                A(f"v_fmamk_f32 v214, v212, {hex(f32bits(float(16*mh+2*p+z)))}, v213")
                A(f"v_cos_f32 v{60+z}, v214")
                A(f"v_sin_f32 v{62+z}, -v214")
            A(f"v_cvt_pk_bf16_f32 v{80+4*mh+p}, v60, v61")
            A(f"v_cvt_pk_bf16_f32 v{88+4*mh+p}, v62, v63")
    A(f"v_mul_f32 v212, {flit(1/640)}, v7")
    A("v_mul_f32 v213, v212, v18")
    A("v_mul_f32 v213, 4.0, v213")
    for r in range(12):
        A(f"v_fmamk_f32 v214, v212, {hex(f32bits(float(8*(r//4)+r%4)))}, v213")
        A(f"v_cos_f32 v{96+r}, v214")
        A(f"v_sin_f32 v{108+r}, v214")
    A("v_and_b32 v60, 15, v2")
    A("v_cvt_f32_u32 v60, v60")
    A("v_lshrrev_b32 v61, 4, v2")
    A("v_cvt_f32_u32 v61, v61")
    A(f"v_mul_f32 v212, {flit(1/20)}, v60")
    A("v_mul_f32 v213, v212, v18")
    A("v_mul_f32 v213, 4.0, v213")
    A(f"v_fmamk_f32 v213, v61, {hex(f32bits(0.25))}, v213")
    A(f"v_add_f32 v215, {flit(-0.25)}, v213")
    def cpair(dst, consts, bases):
        for z in range(2):
            A(f"v_fmamk_f32 v214, v212, {hex(f32bits(float(consts[z])))}, v{bases[z]}")
            A(f"v_cos_f32 v{62+z}, v214")
        A(f"v_cvt_pk_bf16_f32 v{dst}, v62, v63")
    for p in range(4):
        d = [8*((2*p+z) >> 2) + ((2*p+z) & 3) for z in range(2)]
        cpair(120+p, d, [213, 213])
        cpair(124+p, d, [215, 215])
    for p in range(2):
        d = [16+2*p, 17+2*p]
        cpair(128+p, d, [213, 213])
        cpair(130+p, d, [215, 215])
    A("v_cmp_eq_u32 vcc, 0, v3")
    for p in range(4):
        A(f"v_cndmask_b32 v{128+p}, 0, v{128+p}, vcc")
    stamp(A, 1)
    A("s_waitcnt vmcnt(10)")
    stamp(A, 2)
    unpack_bf16(A, 60, 8, 10)
    layernorm(A, 60, 20, 212, 213)
    stamp(A, 3)
    A("s_waitcnt vmcnt(0)")
    stamp(A, 4)
    for q in range(20):
        A(f"v_mul_f32 v{20+q}, v{20+q}, v212")
    for q in range(20):
        A(f"v_fma_f32 v{60+q}, v{60+q}, v{20+q}, v{40+q}")
    for q in range(10):
        A(f"v_cvt_pk_bf16_f32 v{8+q}, v{60+2*q}, v{61+2*q}")
    A(f"s_mul_i32 s14, s3, {2*PITCH2}")
    A(f"v_mul_u32_u24 v4, {PITCH2}, v3")
    A("v_lshl_add_u32 v4, v2, 3, v4")
    A("v_add_u32 v4, s14, v4")
    for i in range(5):
        A(f"ds_write_b64 v4, v[{8+2*i}:{9+2*i}] offset:{256*i}")
    A("v_mov_b32 v18, 0")
    A("v_mov_b32 v19, 0")
    A("v_cmp_eq_u32 vcc, 0, v2")
    A("s_and_saveexec_b64 s[28:29], vcc")
    A("ds_write_b64 v4, v[18:19] offset:1280")
    A("s_mov_b64 exec, s[28:29]")
    A("v_bfe_u32 v5, v1, 2, 2")
    A("v_lshl_add_u32 v5, v3, 3, v5")
    A("v_mul_u32_u24 v5, 40, v5")
    A("v_bfe_u32 v6, v1, 4, 1")
    A("v_lshl_add_u32 v5, v6, 5, v5")
    A("v_and_b32 v6, 3, v1")
    A("v_lshl_add_u32 v5, v6, 3, v5")
    A("v_add_u32 v5, s14, v5")
    A("s_waitcnt lgkmcnt(0)")
    for row in range(2):
        for mh in range(2):
            for j in range(2):
                d = 132 + 8*row + 4*mh + 2*j
                A(f"ds_read_b64_tr_b16 v[{d}:{d+1}], v5 offset:{row*PITCH2 + 640*mh + 160*j}")
    T = [[148, 164], [180, 196]]
    for mh in range(2):
        for row in range(2):
            A(f"s_waitcnt lgkmcnt({ (2 if row==0 else 0) + 0 if mh==1 else 0})") if False else None
        if mh == 0: A("s_waitcnt lgkmcnt(0)")
        for row in range(2):
            a = 132 + 8*row + 4*mh
            for ri in range(2):
                t = T[row][ri]; b = (80 if ri == 0 else 88) + 4*mh
                c = "0" if mh == 0 else f"v[{t}:{t+15}]"
                A(f"v_mfma_f32_32x32x16_bf16 v[{t}:{t+15}], v[{a}:{a+3}], v[{b}:{b+3}], {c}")
    stamp(A, 5)
    B = [20, 32]
    for row in range(2):
        tr, ti = T[row]
        for r in range(12):
            c, s_ = 96+r, 108+r
            A(f"v_mul_f32 v60, v{tr+r}, v{c}")
            A(f"v_mul_f32 v61, v{ti+r}, v{c}")
            A(f"v_fma_f32 v{62+r}, v{ti+r}, v{s_}, v60")
            A(f"v_fma_f32 v{ti+r}, -v{tr+r}, v{s_}, v61")
        b = B[row]
        for p in range(4):
            A(f"v_cvt_pk_bf16_f32 v{b+p}, v{62+2*p}, v{63+2*p}")
            A(f"v_cvt_pk_bf16_f32 v{b+4+p}, v{ti+2*p}, v{ti+2*p+1}")
        for p in range(2):
            A(f"v_cvt_pk_bf16_f32 v{b+8+p}, v{70+2*p}, v{71+2*p}")
            A(f"v_cvt_pk_bf16_f32 v{b+10+p}, v{ti+8+2*p}, v{ti+9+2*p}")
    O = [148, 180]
    for st in range(3):
        for row in range(2):
            o = O[row]; b = B[row] + 4*st; a = 120 + 4*st
            c = "0" if st == 0 else f"v[{o}:{o+15}]"
            A(f"v_mfma_f32_32x32x16_bf16 v[{o}:{o+15}], v[{a}:{a+3}], v[{b}:{b+3}], {c}")
    stamp(A, 6)
    A("s_lshl_b32 s15, s3, 7")
    A(f"s_add_u32 s15, s15, {TR_OFF}")
    A("v_lshlrev_b32 v4, 11, v3")
    A("v_lshl_add_u32 v4, v2, 2, v4")
    A("v_add_u32 v4, s15, v4")
    for ri in range(2):
        for r in range(7):
            A(f"v_cvt_pk_bf16_f32 v{60+7*ri+r}, v{O[0]+8*ri+r}, v{O[1]+8*ri+r}")
            A(f"ds_write_b32 v4, v{60+7*ri+r} offset:{ri*8192 + (8*(r//4)+r%4)*512}")
    A("s_lshl_b32 s15, s3, 9")
    A(f"s_add_u32 s15, s15, {TR_OFF}")
    A("v_lshlrev_b32 v5, 13, v3")
    A("v_lshl_add_u32 v5, v2, 2, v5")
    A("v_add_u32 v5, s15, v5")
    A("s_lshl_b32 s15, s3, 18")
    A("s_lshr_b32 s14, s8, 5")
    A("s_lshl_b32 s14, s14, 12")
    A("s_add_u32 s15, s15, s14")
    A("s_lshl_b32 s14, s9, 10")
    A("s_add_u32 s15, s15, s14")
    A("s_lshl_b32 s14, s10, 9")
    A("s_add_u32 s15, s15, s14")
    A("s_and_b32 s14, s8, 31")
    A("s_lshl_b32 s14, s14, 4")
    A("s_add_u32 s15, s15, s14")
    A("v_lshlrev_b32 v6, 13, v2")
    A("v_lshl_add_u32 v6, v3, 11, v6")
    A("v_add_u32 v6, s15, v6")
    A("s_mov_b32 s30, 0x100000")
    A("s_mov_b32 s31, 0x200000")
    A("s_waitcnt lgkmcnt(0)")
    A("s_barrier")
    stamp(A, 7)
    for n in range(3):
        for wq in range(4):
            A(f"ds_read_b32 v{8+4*n+wq}, v5 offset:{2048*n + 128*wq}")
    for n in range(3):
        A(f"s_waitcnt lgkmcnt({8-4*n})")
        so = ["0", "s30", "s31"][n]
        A(f"buffer_store_dwordx4 v[{8+4*n}:{11+4*n}], v6, s[24:27], {so} offen")
    stamp(A, 8)
    A("k2_end:")
    A("s_endpgm")
    return K
```

```python
import sys; sys.path.insert(0,'work')
from gen_common import *
import gen_f, chk
K = gen_f.fused()
out = sys.argv[1] if len(sys.argv)>1 else 'f.s'
t = HEADER + f"; @launch grid=(256,1,1) block=(256,1,1) lds={K.lds}\n" + '.amdgcn_target "amdgcn-amd-amdhsa--gfx950"\n' + K.text()
open(out, "w").write(t)
print(len(t), "bytes", "LDS", K.lds)
chk.chk(out)
```

```python
import math
from asm import *

S, D, F = 2048, 640, 1728
NC = 321
WS_MOD = 0x0
WS_WT  = 0x100000
WS_Y1  = 0x400000
WS_Z   = 0x700000
WS_X2  = 0xA00000
WS_H2P = 0xD00000
WS_HH  = 0x1000000
WS_W13 = 0x1800000
WS_W2  = 0x1D00000
SZ_MOD = 3840*4
SZ_COL = 321*8192
SZ_X   = S*D*2
SZ_H2P = 128*20*1024
SZ_HH  = 128*54*1024
SZ_W13 = 20*108*2*1024
SZ_W2P = 54*40*1024
SZ_WF  = S*NC*2
KA = dict(x=0, wr=8, wi=16, bx=24, w1=32, w3=40, w2=48, c=56, wmod=64, out=72, dbg=80, ws=88)
OOB = 0x40000000

def srd(A, d, base, off, size):
    if off:
        A(f"s_add_u32 s{d}, s{base}, {hex(off)}")
        A(f"s_addc_u32 s{d+1}, s{base+1}, 0")
    else:
        A(f"s_mov_b32 s{d}, s{base}")
        A(f"s_mov_b32 s{d+1}, s{base+1}")
    A(f"s_mov_b32 s{d+2}, {hex(size)}")
    A(f"s_mov_b32 s{d+3}, 0x20000")

def sigma(u, h, e):
    return 16*u + 8*(e >> 2) + 4*h + (e & 3)

import os
PROF = bool(int(os.environ.get("PROF", "0")))
WS_PROF = 0x2000000
PROF_IDX = [0]
def prof_wrap(name, body, kidx):
    lab = name + "_prof_end"
    lines = body.split("\n")
    out = ["s_memrealtime s[98:99]", "s_memtime s[88:89]"] + [f"s_mov_b32 s{56+i}, 0" for i in range(24)]
    for l in lines:
        if l.strip() == "s_endpgm": out.append(f"s_branch {lab}")
        else: out.append(l)
    out += [f"{lab}:", "s_waitcnt vmcnt(0) lgkmcnt(0)", "s_memrealtime s[100:101]", "s_memtime s[86:87]", "s_load_dwordx2 s[96:97], s[0:1], 88",
            "s_mov_b64 exec, -1", "v_lshrrev_b32 v1, 6, v0", "s_nop 1", "v_readfirstlane_b32 s90, v1", "s_waitcnt lgkmcnt(0)",
            f"s_add_u32 s92, s96, {hex(WS_PROF)}", "s_addc_u32 s93, s97, 0", "s_mov_b32 s94, 0x200000", "s_mov_b32 s95, 0x20000",
            f"s_add_u32 s91, s2, {kidx*512}", "s_lshl_b32 s91, s91, 2", "s_add_u32 s91, s91, s90", "s_lshl_b32 s91, s91, 7",
            "v_and_b32 v1, 63, v0", "v_lshlrev_b32 v1, 2, v1", "v_add_u32 v1, s91, v1"]
    src = [98, 99, 100, 101, 88, 89, 86, 87] + [56+i for i in range(24)]
    for i, r in enumerate(src): out.append(f"v_writelane_b32 v2, s{r}, {i}")
    out += ["s_mov_b32 exec_lo, -1", "s_mov_b32 exec_hi, 0", "s_nop 4", "buffer_store_dword v2, v1, s[92:95], 0 offen", "s_endpgm"]
    return "\n".join(out) + "\n"

DBGT = bool(int(os.environ.get("DBGT", "0")))
def dbgt_wrap(name, body, kidx):
    lab = name + "_dbg_end"
    out = ["s_memrealtime s[98:99]"]
    for l in body.split("\n"):
        if l.strip() == "s_endpgm": out.append(f"s_branch {lab}")
        else: out.append(l)
    out += [f"{lab}:", "s_waitcnt vmcnt(0) lgkmcnt(0)", "s_memrealtime s[100:101]", "s_load_dwordx2 s[96:97], s[0:1], 80",
            "s_and_b32 s90, s2, 15", "s_cmp_lg_u32 s90, 0", f"s_cbranch_scc1 {lab}2",
            "s_mov_b64 exec, -1", "v_lshrrev_b32 v1, 6, v0", "s_nop 1", "v_readfirstlane_b32 s90, v1", "s_cmp_lg_u32 s90, 0", f"s_cbranch_scc1 {lab}2",
            "s_waitcnt lgkmcnt(0)",
            f"s_add_u32 s92, s96, {(5-kidx)*512}", "s_addc_u32 s93, s97, 0", "s_mov_b32 s94, 256", "s_mov_b32 s95, 0x20000",
            "s_not_b32 s98, s98", "v_mov_b32 v2, s98", "v_mov_b32 v3, s100", f"v_mov_b32 v1, {kidx*8}",
            "s_mov_b64 exec, 1", "s_nop 4", "buffer_atomic_umax v2, v1, s[92:95], 0 offen", "buffer_atomic_umax v3, v1, s[92:95], 0 offen offset:4",
            f"{lab}2:", "s_endpgm"]
    return "\n".join(out) + "\n"

DST = os.environ.get("DST")
DST_WG = int(os.environ.get("DST_WG", "0"))
def dst_wrap(name, body):
    ids = [int(x) for x in DST.split(",")]
    lab = name + "_dst_end"
    out = ["s_memrealtime s[98:99]"] + [f"s_mov_b32 s{56+i}, 0" for i in range(24)]
    for l in body.split("\n"):
        if l.strip() == "s_endpgm": out.append(f"s_branch {lab}")
        else: out.append(l)
    out += [f"{lab}:", "s_waitcnt vmcnt(0) lgkmcnt(0)", "s_memrealtime s[100:101]", "s_load_dwordx2 s[96:97], s[0:1], 80",
            "s_cmp_ge_u32 s2, 256", f"s_cbranch_scc1 {lab}2",
            "s_mov_b64 exec, -1", "v_lshrrev_b32 v1, 6, v0", "s_nop 1", "v_readfirstlane_b32 s90, v1", "s_cmp_lg_u32 s90, 0", f"s_cbranch_scc1 {lab}2",
            "s_waitcnt lgkmcnt(0)", "s_mov_b32 s92, s96", "s_mov_b32 s93, s97", "s_mov_b32 s94, 256", "s_mov_b32 s95, 0x20000",
            "s_not_b32 s91, s98", "v_mov_b32 v2, s91", "v_mov_b32 v3, s100", "v_mov_b32 v1, 56",
            "s_mov_b64 exec, 1", "s_nop 4", "buffer_atomic_umax v2, v1, s[92:95], 0 offen", "buffer_atomic_umax v3, v1, s[92:95], 0 offen offset:4",
            f"s_cmp_lg_u32 s2, {DST_WG}", f"s_cbranch_scc1 {lab}2", "s_mov_b64 exec, -1"]
    for k, i in enumerate(ids[:12]):
        out += [f"s_sub_u32 s91, s{56+i}, s98", f"v_writelane_b32 v2, s91, {k}"]
    out += ["s_sub_u32 s91, s100, s98", "v_writelane_b32 v2, s91, 12", "v_writelane_b32 v2, s98, 13",
            "v_lshlrev_b32 v1, 2, v0", "s_mov_b32 exec_lo, 0x3fff", "s_mov_b32 exec_hi, 0", "s_nop 4", "buffer_store_dword v2, v1, s[92:95], 0 offen",
            f"{lab}2:", "s_endpgm"]
    return "\n".join(out) + "\n"

INNER_OFF = [False]
def stamp(A, i):
    if DST:
        A("s_memrealtime s[84:85]")
        A("s_waitcnt lgkmcnt(0)")
        A(f"s_mov_b32 s{56+i}, s84")
        return
    if not PROF: return
    if INNER_OFF[0]: return
    A("s_waitcnt lgkmcnt(0)")
    A("s_memtime s[84:85]")
    A("s_waitcnt lgkmcnt(0)")
    A(f"s_mov_b32 s{56+i}, s84")

class Kern:
    def __init__(self, name, grid, lds, vgpr=128, agpr=0):
        self.name = name; self.grid = grid; self.lds = lds
        self.vgpr = vgpr; self.agpr = agpr
        self.A = A()
    def launch_line(self):
        return f"; @launch kernel={self.name} grid=({self.grid},1,1) block=(256,1,1) lds={self.lds}"
    def text(self):
        body = self.A.text()
        if DBGT:
            body = dbgt_wrap(self.name, body, PROF_IDX[0]); PROF_IDX[0] += 1
        if PROF:
            body = prof_wrap(self.name, body, PROF_IDX[0]); PROF_IDX[0] += 1
        if DST: body = dst_wrap(self.name, body)
        acc = (self.vgpr + 3)//4*4
        tot = acc + self.agpr if self.agpr else self.vgpr
        return kernel_head(self.name) + body + kernel_desc(self.name, tot, 102, acc)

HEADER = open("adaLN_cond__spectral_gfnet__glu_gated_swiglu__prompt.s.ref").read().split("; Override launch")[0]

def assemble_file(kerns, path, order=None):
    t = HEADER
    for k in (order or kerns):
        t += k.launch_line() + "\n"
    t += '.amdgcn_target "amdgcn-amd-amdhsa--gfx950"\n'
    seen = set()
    for k in kerns:
        if k.name in seen: continue
        seen.add(k.name)
        t += k.text()
    open(path, "w").write(t)
    return t

def bf16_round_v(A, dst, src):
    A(f"v_cvt_pk_bf16_f32 v{dst}, v{src}, v{src}")
    A(f"v_lshlrev_b32 v{dst}, 16, v{dst}")
```

```python
import math
from asm import *

S, D, F = 2048, 640, 1728
NC = 321
WS_MOD = 0x0
WS_WT  = 0x100000
WS_Y1  = 0x400000
WS_Z   = 0x700000
WS_X2  = 0xA00000
WS_H2P = 0xD00000
WS_HH  = 0x1000000
WS_W13 = 0x1800000
WS_W2  = 0x1D00000
SZ_MOD = 3840*4
SZ_COL = 321*8192
SZ_X   = S*D*2
SZ_H2P = 128*20*1024
SZ_HH  = 128*54*1024
SZ_W13 = 20*108*2*1024
SZ_W2P = 54*40*1024
SZ_WF  = S*NC*2
KA = dict(x=0, wr=8, wi=16, bx=24, w1=32, w3=40, w2=48, c=56, wmod=64, out=72, dbg=80, ws=88)
OOB = 0x40000000

def srd(A, d, base, off, size):
    if off:
        A(f"s_add_u32 s{d}, s{base}, {hex(off)}")
        A(f"s_addc_u32 s{d+1}, s{base+1}, 0")
    else:
        A(f"s_mov_b32 s{d}, s{base}")
        A(f"s_mov_b32 s{d+1}, s{base+1}")
    A(f"s_mov_b32 s{d+2}, {hex(size)}")
    A(f"s_mov_b32 s{d+3}, 0x20000")

def sigma(u, h, e):
    return 16*u + 8*(e >> 2) + 4*h + (e & 3)

import os
PROF = bool(int(os.environ.get("PROF", "0")))
WS_PROF = 0x2000000
PROF_IDX = [0]
def prof_wrap(name, body, kidx):
    lab = name + "_prof_end"
    lines = body.split("\n")
    out = ["s_memrealtime s[98:99]", "s_memtime s[88:89]"] + [f"s_mov_b32 s{56+i}, 0" for i in range(24)]
    for l in lines:
        if l.strip() == "s_endpgm": out.append(f"s_branch {lab}")
        else: out.append(l)
    out += [f"{lab}:", "s_waitcnt vmcnt(0) lgkmcnt(0)", "s_memrealtime s[100:101]", "s_memtime s[86:87]", "s_load_dwordx2 s[96:97], s[0:1], 88",
            "s_mov_b64 exec, -1", "v_lshrrev_b32 v1, 6, v0", "s_nop 1", "v_readfirstlane_b32 s90, v1", "s_waitcnt lgkmcnt(0)",
            f"s_add_u32 s92, s96, {hex(WS_PROF)}", "s_addc_u32 s93, s97, 0", "s_mov_b32 s94, 0x200000", "s_mov_b32 s95, 0x20000",
            f"s_add_u32 s91, s2, {kidx*512}", "s_lshl_b32 s91, s91, 2", "s_add_u32 s91, s91, s90", "s_lshl_b32 s91, s91, 7",
            "v_and_b32 v1, 63, v0", "v_lshlrev_b32 v1, 2, v1", "v_add_u32 v1, s91, v1"]
    src = [98, 99, 100, 101, 88, 89, 86, 87] + [56+i for i in range(24)]
    for i, r in enumerate(src): out.append(f"v_writelane_b32 v2, s{r}, {i}")
    out += ["s_mov_b32 exec_lo, -1", "s_mov_b32 exec_hi, 0", "s_nop 4", "buffer_store_dword v2, v1, s[92:95], 0 offen", "s_endpgm"]
    return "\n".join(out) + "\n"

DBGT = bool(int(os.environ.get("DBGT", "0")))
def dbgt_wrap(name, body, kidx):
    lab = name + "_dbg_end"
    out = ["s_memrealtime s[98:99]"]
    for l in body.split("\n"):
        if l.strip() == "s_endpgm": out.append(f"s_branch {lab}")
        else: out.append(l)
    out += [f"{lab}:", "s_waitcnt vmcnt(0) lgkmcnt(0)", "s_memrealtime s[100:101]", "s_load_dwordx2 s[96:97], s[0:1], 80",
            "s_and_b32 s90, s2, 15", "s_cmp_lg_u32 s90, 0", f"s_cbranch_scc1 {lab}2",
            "s_mov_b64 exec, -1", "v_lshrrev_b32 v1, 6, v0", "s_nop 1", "v_readfirstlane_b32 s90, v1", "s_cmp_lg_u32 s90, 0", f"s_cbranch_scc1 {lab}2",
            "s_waitcnt lgkmcnt(0)",
            f"s_add_u32 s92, s96, {(5-kidx)*512}", "s_addc_u32 s93, s97, 0", "s_mov_b32 s94, 256", "s_mov_b32 s95, 0x20000",
            "s_not_b32 s98, s98", "v_mov_b32 v2, s98", "v_mov_b32 v3, s100", f"v_mov_b32 v1, {kidx*8}",
            "s_mov_b64 exec, 1", "s_nop 4", "buffer_atomic_umax v2, v1, s[92:95], 0 offen", "buffer_atomic_umax v3, v1, s[92:95], 0 offen offset:4",
            f"{lab}2:", "s_endpgm"]
    return "\n".join(out) + "\n"

DST = os.environ.get("DST")
DST_WG = int(os.environ.get("DST_WG", "0"))
def dst_wrap(name, body):
    ids = [int(x) for x in DST.split(",")]
    lab = name + "_dst_end"
    out = ["s_memrealtime s[98:99]"] + [f"s_mov_b32 s{56+i}, 0" for i in range(24)]
    for l in body.split("\n"):
        if l.strip() == "s_endpgm": out.append(f"s_branch {lab}")
        else: out.append(l)
    out += [f"{lab}:", "s_waitcnt vmcnt(0) lgkmcnt(0)", "s_memrealtime s[100:101]", "s_load_dwordx2 s[96:97], s[0:1], 80",
            "s_cmp_ge_u32 s2, 256", f"s_cbranch_scc1 {lab}2",
            "s_mov_b64 exec, -1", "v_lshrrev_b32 v1, 6, v0", "s_nop 1", "v_readfirstlane_b32 s90, v1", "s_cmp_lg_u32 s90, 0", f"s_cbranch_scc1 {lab}2",
            "s_waitcnt lgkmcnt(0)", "s_mov_b32 s92, s96", "s_mov_b32 s93, s97", "s_mov_b32 s94, 256", "s_mov_b32 s95, 0x20000",
            "s_not_b32 s91, s98", "v_mov_b32 v2, s91", "v_mov_b32 v3, s100", "v_mov_b32 v1, 56",
            "s_mov_b64 exec, 1", "s_nop 4", "buffer_atomic_umax v2, v1, s[92:95], 0 offen", "buffer_atomic_umax v3, v1, s[92:95], 0 offen offset:4",
            f"s_cmp_lg_u32 s2, {DST_WG}", f"s_cbranch_scc1 {lab}2", "s_mov_b64 exec, -1"]
    for k, i in enumerate(ids[:12]):
        out += [f"s_sub_u32 s91, s{56+i}, s98", f"v_writelane_b32 v2, s91, {k}"]
    out += ["s_sub_u32 s91, s100, s98", "v_writelane_b32 v2, s91, 12", "v_writelane_b32 v2, s98, 13",
            "v_lshlrev_b32 v1, 2, v0", "s_mov_b32 exec_lo, 0x3fff", "s_mov_b32 exec_hi, 0", "s_nop 4", "buffer_store_dword v2, v1, s[92:95], 0 offen",
            f"{lab}2:", "s_endpgm"]
    return "\n".join(out) + "\n"

INNER_OFF = [False]
CNT = os.environ.get("CNT")
CNT_SLOTS = (4, 9, 13, 14, 15)
def cnt(A, k, reg=53):
    if CNT and PROF: A(f"s_mov_b32 s{56+CNT_SLOTS[k]}, s{reg}")
def stamp(A, i):
    if CNT and i in CNT_SLOTS: return
    return stamp_(A, i)
def stamp_(A, i):
    if DST:
        A("s_memrealtime s[84:85]")
        A("s_waitcnt lgkmcnt(0)")
        A(f"s_mov_b32 s{56+i}, s84")
        return
    if not PROF: return
    if INNER_OFF[0]: return
    A("s_waitcnt lgkmcnt(0)")
    A("s_memtime s[84:85]")
    A("s_waitcnt lgkmcnt(0)")
    A(f"s_mov_b32 s{56+i}, s84")

class Kern:
    def __init__(self, name, grid, lds, vgpr=128, agpr=0):
        self.name = name; self.grid = grid; self.lds = lds
        self.vgpr = vgpr; self.agpr = agpr
        self.A = A()
    def launch_line(self):
        return f"; @launch kernel={self.name} grid=({self.grid},1,1) block=(256,1,1) lds={self.lds}"
    def text(self):
        body = self.A.text()
        if DBGT:
            body = dbgt_wrap(self.name, body, PROF_IDX[0]); PROF_IDX[0] += 1
        if PROF:
            body = prof_wrap(self.name, body, PROF_IDX[0]); PROF_IDX[0] += 1
        if DST: body = dst_wrap(self.name, body)
        acc = (self.vgpr + 3)//4*4
        tot = acc + self.agpr if self.agpr else self.vgpr
        return kernel_head(self.name) + body + kernel_desc(self.name, tot, 102, acc)

HEADER = open("adaLN_cond__spectral_gfnet__glu_gated_swiglu__prompt.s.ref").read().split("; Override launch")[0]

def assemble_file(kerns, path, order=None):
    t = HEADER
    for k in (order or kerns):
        t += k.launch_line() + "\n"
    t += '.amdgcn_target "amdgcn-amd-amdhsa--gfx950"\n'
    seen = set()
    for k in kerns:
        if k.name in seen: continue
        seen.add(k.name)
        t += k.text()
    open(path, "w").write(t)
    return t

def bf16_round_v(A, dst, src):
    A(f"v_cvt_pk_bf16_f32 v{dst}, v{src}, v{src}")
    A(f"v_lshlrev_b32 v{dst}, 16, v{dst}")
```

```python
import os, math
from gen_common import *
from gen_k5 import VM
from gen_k2 import layernorm, unpack_bf16, PITCH2

MAIN = "adaLN_cond__spectral_gfnet__glu_gated_swiglu__prompt_kernel"
OPT = dict(kv.split("=") for kv in os.environ.get("OPT", "").split(",") if kv)
SC = "sc0 sc1"
LSC = "sc1"
WS_EPOCH = 0x80000
WS_FLG = 0xB0000
FA, FW, FP, FH1, FH2, FX = [0x8000*i for i in range(6)]
FSH = int(OPT.get("fsh", 5))
SZ_FLG = 6*0x8000
WS_MODG = 0xA0000
NB_WG = 161
BLK = 10368
SZ_Y1N = 256*BLK
TAGSTEP = 0x9E3779B9
RETRY_LIMIT = 30000
STAG = 55

def fk(x): return hex(f32bits(float(x)))
def pr(r): return f"v[{r}:{r+1}]"
def mf32(A, d, a, b, first):
    c = "0" if first else f"v[{d}:{d+15}]"
    A(f"v_mfma_f32_32x32x16_bf16 v[{d}:{d+15}], v[{a}:{a+3}], v[{b}:{b+3}], {c}")
def csel(A, d, a, b):
    A(f"s_mov_b32 {d}, {b}")
    A(f"s_cselect_b32 {d}, {a}, {d}")

class Ctx:
    def __init__(self, A):
        self.A = A; self.vm = VM(A); self.n = 0; self.tail = []
    def lab(self, p):
        self.n += 1; return f"{p}_{self.n}"

def max_ops(A, regs, acc):
    regs = list(regs); ops = []
    ops.append(lambda r=regs[:3]: A(f"v_max3_u32 v{acc}, v{r[0]}, v{r[1]}, v{r[2]}"))
    rest = regs[3:]
    while rest:
        if len(rest) >= 2:
            ops.append(lambda r=rest[:2]: A(f"v_max3_u32 v{acc}, v{acc}, v{r[0]}, v{r[1]}")); rest = rest[2:]
        else:
            ops.append(lambda r=rest[0]: A(f"v_max_u32 v{acc}, v{acc}, v{r}")); rest = []
    return ops
def fill_test(A, regs, acc):
    for f in max_ops(A, regs, acc): f()
    A(f"v_cmp_eq_u32 vcc, -1, v{acc}")
def retry_loop(C, loads, test, scnt=53):
    A = C.A; L = C.lab("rt")
    A(f"s_mov_b32 s{scnt}, 0")
    A(f"{L}:")
    loads()
    A(f"s_add_u32 s{scnt}, s{scnt}, 1")
    A("s_waitcnt vmcnt(0)")
    test()
    A(f"s_cmp_ge_u32 s{scnt}, {RETRY_LIMIT}")
    A(f"s_cbranch_scc1 {L}_x")
    A(f"s_cbranch_vccnz {L}")
    A(f"{L}_x:")
    C.vm.q = []
def poll2(C, loads, tests, nops, use, scnt=53):
    A = C.A; L = C.lab("p2")
    A(f"s_mov_b32 s{scnt}, 0")
    A(f"{L}:")
    for k in range(2):
        A(f"s_waitcnt vmcnt({nops})")
        tests[k]()
        A(f"s_cbranch_vccz {L}_{k}")
        loads[k]()
    A(f"s_add_u32 s{scnt}, s{scnt}, 1")
    A(f"s_cmp_lt_u32 s{scnt}, {RETRY_LIMIT}")
    A(f"s_cbranch_scc1 {L}")
    A(f"s_waitcnt vmcnt({nops})")
    A(f"{L}_0:")
    use(0)
    A(f"s_branch {L}_e")
    A(f"{L}_1:")
    use(1)
    A(f"{L}_e:")
    C.vm.q = ["stale"]*nops
def check_ops(C, loads, regs, acc):
    A = C.A; L = C.lab("fx")
    ops = max_ops(A, regs, acc)
    ops.append(lambda: A(f"v_cmp_eq_u32 vcc, -1, v{acc}"))
    def br():
        A(f"s_cbranch_vccnz {L}")
        A(f"{L}_b:")
    ops.append(br)
    def tail():
        A(f"{L}:")
        q = C.vm.q
        retry_loop(C, loads, lambda: fill_test(A, regs, acc))
        C.vm.q = q
        A(f"s_branch {L}_b")
    C.tail.append(tail)
    return ops
def flag_store(C, off, va=4, vb=5):
    A = C.A; L = C.lab("fl")
    A("s_cmp_lg_u32 s3, 0")
    A(f"s_cbranch_scc1 {L}")
    A(f"s_lshl_b32 s50, s2, {FSH}")
    A(f"s_add_u32 s50, s50, {off}")
    A(f"v_mov_b32 v{va}, s50")
    A(f"v_mov_b32 v{vb}, s{STAG}")
    A("s_mov_b64 exec, 1")
    A(f"buffer_store_dword v{vb}, v{va}, s[12:15], 0 offen {SC}")
    A("s_mov_b64 exec, -1")
    A(f"{L}:")

L_ROWS = 0
L_TR = 8*PITCH2
L_MODP = L_TR + 16384
L_MODV = L_MODP + 1024
L_WT = L_MODV + 5120
L_PREP = 45056
L_YST = L_PREP + 32768
assert L_WT + 4*2816 <= L_PREP and L_YST + 16384 <= 114688

def prep_params(C, unit, B):
    A = C.A
    g, pitch, so, do, ts, ga, ja, a, b, c = [f"s{B+i}" for i in range(10)]
    A(f"s_sub_u32 {a}, s2, {NB_WG}")
    A(f"s_lshl_b32 {a}, {a}, 2")
    A(f"s_add_u32 {a}, {a}, s3")
    if unit: A(f"s_add_u32 {a}, {a}, {unit*4*(256 - NB_WG)}")
    A(f"s_cmp_ge_u32 {a}, 540")
    A(f"s_cselect_b32 {g}, 1, 0")
    A(f"s_cmp_ge_u32 {a}, 1080")
    A(f"s_cselect_b32 {g}, 2, {g}")
    A(f"s_mul_i32 {b}, {g}, 540")
    A(f"s_sub_u32 {b}, {a}, {b}")
    A(f"s_cmp_eq_u32 {g}, 2")
    csel(A, pitch, "1280", "3456")
    csel(A, ts, "1024", "2048")
    csel(A, ga, "4", "8")
    csel(A, ja, "16", "4")
    csel(A, c, "6554", "2428")
    csel(A, so, "10", "27")
    csel(A, do, "40960", "221184")
    A(f"s_mul_i32 {c}, {c}, {b}")
    A(f"s_lshr_b32 {c}, {c}, 16")
    A(f"s_mul_i32 {so}, {so}, {c}")
    A(f"s_sub_u32 {b}, {b}, {so}")
    A(f"s_mul_i32 {do}, {do}, {c}")
    A(f"s_mul_i32 {so}, {c}, {pitch}")
    A(f"s_lshl_b32 {so}, {so}, 5")
    A(f"s_lshl_b32 {c}, {b}, 7")
    A(f"s_add_u32 {so}, {so}, {c}")
    A(f"s_cmp_eq_u32 {g}, 2")
    csel(A, c, "4096", "8192")
    A(f"s_mul_i32 {c}, {c}, {b}")
    A(f"s_add_u32 {do}, {do}, {c}")
    A(f"s_cmp_eq_u32 {g}, 1")
    A(f"s_cselect_b32 {c}, 1024, 0")
    A(f"s_add_u32 {do}, {do}, {c}")
    A(f"s_cmp_lt_u32 {a}, 1620")
    A(f"s_cselect_b32 {so}, {so}, {hex(OOB)}")
    A(f"s_cselect_b32 {do}, {do}, {hex(OOB)}")

def a_consts(C, pf):
    A = C.A
    hf = 19
    A("v_cvt_f32_u32 v7, v2")
    A(f"v_cvt_f32_u32 v{hf}, v3")
    A(f"v_mul_f32 v212, {flit(1/32)}, v7")
    A(f"v_mul_f32 v213, v212, v{hf}")
    A(f"v_mul_f32 v213, {flit(8.0)}, v213")
    for mh in range(2):
        for p in range(4):
            for z in range(2):
                A(f"v_fmamk_f32 v214, v212, {fk(16*mh+2*p+z)}, v213")
                A(f"v_cos_f32 v{60+z}, v214")
                A(f"v_sin_f32 v{62+z}, -v214")
            A(f"v_cvt_pk_bf16_f32 v{80+4*mh+p}, v60, v61")
            A(f"v_cvt_pk_bf16_f32 v{88+4*mh+p}, v62, v63")
            pf()
    A(f"v_mul_f32 v212, {flit(1/640)}, v7")
    A(f"v_mul_f32 v213, v212, v{hf}")
    A("v_mul_f32 v213, 4.0, v213")
    for r in range(12):
        A(f"v_fmamk_f32 v214, v212, {fk(8*(r//4)+r%4)}, v213")
        A(f"v_cos_f32 v{96+r}, v214")
        A(f"v_sin_f32 v{108+r}, v214")
        if r & 1: pf()
    A("v_and_b32 v60, 15, v2")
    A("v_cvt_f32_u32 v60, v60")
    A("v_lshrrev_b32 v61, 4, v2")
    A("v_cvt_f32_u32 v61, v61")
    A(f"v_mul_f32 v212, {flit(1/20)}, v60")
    A(f"v_mul_f32 v213, v212, v{hf}")
    A("v_mul_f32 v213, 4.0, v213")
    A(f"v_fmamk_f32 v213, v61, {fk(0.25)}, v213")
    A(f"v_add_f32 v215, {flit(-0.25)}, v213")
    def cpair(dst, consts, bases):
        for z in range(2):
            A(f"v_fmamk_f32 v214, v212, {fk(consts[z])}, v{bases[z]}")
            A(f"v_cos_f32 v{62+z}, v214")
        A(f"v_cvt_pk_bf16_f32 v{dst}, v62, v63")
    for p in range(4):
        d = [8*((2*p+z) >> 2) + ((2*p+z) & 3) for z in range(2)]
        cpair(120+p, d, [213, 213]); pf()
        cpair(124+p, d, [215, 215]); pf()
    for p in range(2):
        d = [16+2*p, 17+2*p]
        cpair(128+p, d, [213, 213]); pf()
        cpair(130+p, d, [215, 215]); pf()
    A("v_cmp_eq_u32 vcc, 0, v3")
    for p in range(4):
        A(f"v_cndmask_b32 v{128+p}, 0, v{128+p}, vcc")

N_FILLER = 16

def phase0(C):
    A = C.A; vm = C.vm
    A("s_cmp_ge_u32 s2, 256")
    A("s_cbranch_scc1 all_end")
    if OPT.get("cpf", "2") == "2":
        L = C.lab("cpf")
        A("s_getpc_b64 s[26:27]")
        A(f"{L}_pc:")
        A("s_bfe_u32 s50, s2, 0x30003")
        A("s_lshl_b32 s50, s50, 12")
        A("v_lshl_add_u32 v4, v0, 4, s50")
        A("s_bfe_u32 s50, s2, 0x20003")
        A("s_lshl_b32 s50, s50, 12")
        A("s_add_u32 s50, s50, 0x8000")
        A("v_lshl_add_u32 v6, v0, 4, s50")
        A(f"s_sub_u32 s26, s26, {L}_pc-{MAIN}")
        A("s_subb_u32 s27, s27, 0")
        A(f"v_min_u32 v6, code_end-{MAIN}-16, v6")
        A("global_load_dwordx4 v[248:251], v4, s[26:27]")
        A("global_load_dwordx4 v[252:255], v6, s[26:27]")
    A("s_load_dwordx2 s[4:5], s[0:1], 88")
    A("s_load_dwordx4 s[28:31], s[0:1], 56")
    A("s_load_dwordx2 s[6:7], s[0:1], 0")
    A("s_load_dwordx4 s[16:19], s[0:1], 8")
    A("s_load_dwordx4 s[20:23], s[0:1], 32")
    A("s_load_dwordx2 s[24:25], s[0:1], 48")
    A("s_load_dwordx2 s[8:9], s[0:1], 72")
    A("v_and_b32 v1, 63, v0")
    A("v_and_b32 v2, 31, v0")
    A("v_lshrrev_b32 v3, 5, v1")
    A("v_lshrrev_b32 v4, 6, v0")
    A("v_readfirstlane_b32 s3, v4")
    A("s_and_b32 s48, s2, 7")
    A("s_lshr_b32 s49, s2, 3")
    A("s_mul_i32 s26, s48, 10")
    A("s_add_u32 s26, s26, s49")
    A("s_mul_i32 s27, s48, 20")
    A("s_add_u32 s27, s27, s49")
    A("s_add_u32 s27, s27, 70")
    A("s_cmp_lt_u32 s49, 10")
    A("s_cselect_b32 s54, s26, s27")
    A("s_lshl_b32 s26, s54, 5")
    A("s_cmp_lt_u32 s49, 30")
    A(f"s_cselect_b32 s26, s26, {hex(OOB)}")
    A("v_lshrrev_b32 v4, 1, v0")
    A("v_and_b32 v5, 1, v0")
    A("v_mul_u32_u24 v56, 7680, v4")
    A("v_lshl_add_u32 v56, v5, 4, v56")
    A("v_add_u32 v56, s26, v56")
    A("v_lshlrev_b32 v57, 1, v4")
    A("s_lshl_b32 s80, s48, 3")
    A("s_and_b32 s26, s49, 7")
    A("s_add_u32 s80, s80, s26")
    A("s_lshr_b32 s26, s2, 7")
    A("s_lshl_b32 s26, s26, 4")
    A("s_bfe_u32 s27, s2, 0x10006")
    A("s_lshl_b32 s27, s27, 2")
    A("s_add_u32 s26, s26, s27")
    A("s_lshr_b32 s27, s3, 1")
    A("s_lshl_b32 s27, s27, 3")
    A("s_add_u32 s26, s26, s27")
    A("s_and_b32 s27, s3, 1")
    A("s_lshl_b32 s27, s27, 1")
    A("s_add_u32 s26, s26, s27")
    A("s_lshl_b32 s26, s26, 6")
    A("s_add_u32 s26, s26, s80")
    A("s_mul_i32 s26, s26, 1280")
    A("v_mul_u32_u24 v58, 81920, v3")
    A("v_lshl_add_u32 v58, v2, 3, v58")
    A("v_add_u32 v58, s26, v58")
    A("s_lshr_b32 s26, s2, 6")
    A("s_lshl_b32 s26, s26, 6")
    A("s_add_u32 s80, s80, s26")
    A(f"s_mul_i32 s80, s80, {BLK}")
    A("s_waitcnt lgkmcnt(0)")
    Lfill, Ljoin = C.lab("filler"), C.lab("p0join")
    A("s_cmp_ge_u32 s49, 30")
    A(f"s_cbranch_scc1 {Lfill}")
    srd(A, 32, 28, 0, 1280)
    srd(A, 36, 30, 0, 640*7680)
    for i in range(5):
        A(f"buffer_load_ushort v{20+i}, v57, s[32:35], 0 offen offset:{256*i}"); vm.issue("c")
    for i in range(5):
        if i: A(f"s_mov_b32 s26, {i*128*7680}")
        A(f"buffer_load_dwordx4 v[{28+4*i}:{31+4*i}], v56, s[36:39], {'s26' if i else '0'} offen"); vm.issue(("w", i))
    srd(A, 32, 6, 0, SZ_X)
    for i in range(5):
        A(f"buffer_load_dwordx2 v[{8+2*i}:{9+2*i}], v58, s[32:35], 0 offen offset:{256*i}"); vm.issue("x")
    stamp(A, 0)
    A(f"s_load_dword s{STAG}, s[4:5], {hex(WS_EPOCH)}")
    def wt_code():
        A("s_lshl_b32 s26, s49, 2")
        A("s_add_u32 s26, s26, s3")
        A("s_mul_i32 s27, s26, 4370")
        A("s_lshr_b32 s27, s27, 16")
        A("s_mul_i32 s50, s27, 15")
        A("s_sub_u32 s26, s26, s50")
        A("s_mul_i32 s26, s26, 22")
        A("s_min_u32 s26, s26, 299")
        A("s_lshl_b32 s50, s48, 3")
        A("s_add_u32 s27, s27, s50")
        A("s_lshr_b32 s50, s27, 2")
        A("s_and_b32 s27, s27, 3")
        A("v_and_b32 v4, 7, v1")
        A("v_bfe_u32 v5, v1, 3, 2")
        A("v_lshl_add_u32 v6, v5, 5, v4")
        A("s_lshl_b32 s51, s50, 7")
        A("s_lshl_b32 s52, s27, 3")
        A("s_add_u32 s51, s51, s52")
        A("v_add_u32 v6, s51, v6")
        A("v_mul_u32_u24 v228, 642, v6")
        A("v_mul_u32_u24 v7, 20, v3")
        A("v_add_u32 v228, v228, v7")
        A("s_lshl_b32 s51, s26, 1")
        A("s_cmp_lt_u32 s49, 30")
        A(f"s_cselect_b32 s51, s51, {hex(OOB)}")
        A("v_add_u32 v228, s51, v228")
        A("s_mul_i32 s51, s3, 2816")
        A(f"s_add_u32 s51, s51, {L_WT}")
        A("v_mul_u32_u24 v229, 1280, v3")
        A("v_lshl_add_u32 v229, v4, 4, v229")
        A("v_lshl_add_u32 v229, v5, 2, v229")
        A("v_add_u32 v229, s51, v229")
        A("v_lshl_add_u32 v230, v1, 4, s51")
        A("s_lshl_b32 s26, s26, 13")
        A("s_lshl_b32 s50, s50, 9")
        A("s_add_u32 s26, s26, s50")
        A("s_lshl_b32 s27, s27, 7")
        A("s_add_u32 s26, s26, s27")
        A("s_cmp_lt_u32 s49, 30")
        A(f"s_cselect_b32 s26, s26, {hex(OOB)}")
        A("v_lshrrev_b32 v5, 3, v1")
        A("v_lshlrev_b32 v231, 13, v5")
        A("v_lshl_add_u32 v231, v4, 4, v231")
        A("v_add_u32 v231, s26, v231")
        srd(A, 32, 16, 0, SZ_WF)
        srd(A, 36, 18, 0, SZ_WF)
        for m in range(2):
            A(f"buffer_load_dwordx4 v[{216+6*m}:{219+6*m}], v228, s[{32+4*m}:{35+4*m}], 0 offen"); vm.issue("wt")
            A(f"buffer_load_dwordx2 v[{220+6*m}:{221+6*m}], v228, s[{32+4*m}:{35+4*m}], 0 offen offset:16"); vm.issue("wt")
    wt_code()
    stamp(A, 1)
    A("s_waitcnt lgkmcnt(0)")
    A(f"s_add_u32 s{STAG}, s{STAG}, {hex(TAGSTEP)}")
    srd(A, 12, 4, WS_FLG, SZ_FLG)
    a_consts(C, lambda: None)
    stamp(A, 2)
    vm.wait(["c"])
    for i in range(5):
        r = 20+i
        A(f"v_lshlrev_b32 v{r}, 16, v{r}")
        A(f"v_mul_f32 v26, {flit(-math.log2(math.e))}, v{r}")
        A(f"v_exp_f32 v26, v26")
        A(f"v_add_f32 v26, 1.0, v26")
        A(f"v_rcp_f32 v26, v26")
        A(f"v_mul_f32 v{r}, v{r}, v26")
        bf16_round_v(A, r, r)
    for i in range(5):
        vm.wait([("w", i)])
        for q in range(4):
            w = 28+4*i+q
            A(f"v_lshlrev_b32 v26, 16, v{w}")
            A(f"v_and_b32 v27, 0xffff0000, v{w}")
            if i == 0:
                A(f"v_mul_f32 v{48+2*q}, v{20+i}, v26")
                A(f"v_mul_f32 v{49+2*q}, v{20+i}, v27")
            else:
                A(f"v_fmac_f32 v{48+2*q}, v{20+i}, v26")
                A(f"v_fmac_f32 v{49+2*q}, v{20+i}, v27")
    for ctl in ["quad_perm:[2,3,0,1]", "row_ror:4", "row_ror:8"]:
        for q in range(8):
            A(f"v_add_f32_dpp v{48+q}, v{48+q}, v{48+q} {ctl} row_mask:0xf bank_mask:0xf")
    A("v_lshrrev_b32 v5, 4, v0")
    A("v_lshlrev_b32 v5, 6, v5")
    A("v_and_b32 v6, 1, v0")
    A("v_lshl_add_u32 v5, v6, 5, v5")
    A("v_and_b32 v6, 14, v0")
    A("v_cmp_eq_u32 vcc, 0, v6")
    A("s_and_saveexec_b64 s[26:27], vcc")
    A(f"ds_write_b128 v5, v[48:51] offset:{L_MODP}")
    A(f"ds_write_b128 v5, v[52:55] offset:{L_MODP+16}")
    A("s_mov_b64 exec, s[26:27]")
    A("s_waitcnt lgkmcnt(0)")
    A("s_barrier")
    stamp(A, 3)
    L = C.lab("modfin")
    A("s_cmp_lg_u32 s3, 0")
    A(f"s_cbranch_scc1 {L}")
    A("v_and_b32 v6, 15, v0")
    A("v_lshrrev_b32 v5, 4, v0")
    A("v_lshlrev_b32 v5, 8, v5")
    A("v_lshl_add_u32 v5, v6, 2, v5")
    A(f"v_add_u32 v5, {L_MODP}, v5")
    A("ds_read2_b32 v[20:21], v5 offset0:0 offset1:16")
    A("ds_read2_b32 v[22:23], v5 offset0:32 offset1:48")
    A("s_waitcnt lgkmcnt(0)")
    A("v_add_f32 v20, v20, v21")
    A("v_add_f32 v22, v22, v23")
    A("v_add_f32 v20, v20, v22")
    for sw in ("v_permlane16_swap_b32", "v_permlane32_swap_b32"):
        A("v_mov_b32 v21, v20")
        A(f"{sw} v20, v21")
        A("v_add_f32 v20, v20, v21")
    bf16_round_v(A, 20, 20)
    A("s_cmp_ge_u32 s54, 160")
    A("s_cselect_b32 s26, 120, 0")
    A("s_sub_u32 s26, s54, s26")
    A("s_sub_u32 s26, s26, 40")
    A("v_add_f32 v21, 1.0, v20")
    bf16_round_v(A, 21, 21)
    A("s_cmp_lt_u32 s26, 40")
    A("s_cselect_b64 vcc, -1, 0")
    A("v_cndmask_b32 v20, v20, v21, vcc")
    A(f"v_mov_b32 v21, s{STAG}")
    A("s_lshl_b32 s26, s54, 7")
    A("s_cmp_lt_u32 s54, 80")
    A(f"s_cselect_b32 s26, s26, {hex(OOB)}")
    A("v_lshl_add_u32 v22, v6, 3, s26")
    A("s_lshl_b32 s26, s54, 6")
    A("s_cmp_ge_u32 s54, 80")
    A(f"s_cselect_b32 s26, s26, {hex(OOB)}")
    A("s_cmp_lt_u32 s49, 30")
    A(f"s_cselect_b32 s26, s26, {hex(OOB)}")
    A("v_lshl_add_u32 v23, v6, 2, s26")
    srd(A, 32, 4, WS_MODG, 80*128)
    srd(A, 36, 4, WS_MOD, SZ_MOD)
    A("s_mov_b64 exec, 0xffff")
    A(f"buffer_store_dwordx2 v[20:21], v22, s[32:35], 0 offen {SC}")
    A(f"buffer_store_dword v20, v23, s[36:39], 0 offen {SC}")
    A("s_mov_b64 exec, -1")
    A(f"{L}:")
    stamp(A, 4)
    vm.wait(["x"])
    unpack_bf16(A, 60, 8, 10)
    layernorm(A, 60, 20, 212, 213)
    stamp(A, 5)
    vm.wait(["wt"])
    for m in range(2):
        for cc in range(12):
            op = "ds_write_b16_d16_hi" if cc & 1 else "ds_write_b16"
            A(f"{op} v229, v{216+6*m+cc//2} offset:{cc*128 + 2*m}")
    A("s_waitcnt lgkmcnt(0)")
    for j in range(3):
        A(f"ds_read_b128 v[{216+4*j}:{219+4*j}], v230 offset:{1024*j}")
    A(f"v_add_u32 v229, {hex(OOB)}, v231")
    A("v_cmp_gt_u32 vcc, 48, v1")
    A("v_cndmask_b32 v229, v229, v231, vcc")
    for q in range(4): A(f"v_accvgpr_write_b32 a{12+q}, -1")
    A("s_waitcnt lgkmcnt(0)")
    A(f"s_branch {Ljoin}")
    A(f"{Lfill}:")
    q_main = vm.q; vm.q = []
    srd(A, 32, 6, 0, SZ_X)
    for i in range(5):
        A(f"buffer_load_dwordx2 v[{8+2*i}:{9+2*i}], v58, s[32:35], 0 offen offset:{256*i}"); vm.issue("x")
    stamp(A, 0)
    A(f"s_load_dword s{STAG}, s[4:5], {hex(WS_EPOCH)}")
    A(f"s_sub_u32 s26, s2, {256 - N_FILLER}")
    A("s_lshl_b32 s26, s26, 12")
    A("v_lshl_add_u32 v59, v0, 4, s26")
    for q in range(4): A(f"v_accvgpr_write_b32 a{12+q}, -1")
    srd(A, 40, 4, WS_Y1, SZ_Y1N)
    fills = []
    for sd, sz in ((40, SZ_Y1N),):
        for i in range(-(-sz // (N_FILLER*4096))):
            def f(sd=sd, i=i):
                A(f"s_mov_b32 s81, {i*N_FILLER*4096}")
                A(f"buffer_store_dwordx4 a[12:15], v59, s[{sd}:{sd+3}], s81 offen {SC}"); vm.issue("fill")
            fills.append(f)
    def pf(k=1):
        for _ in range(k):
            if fills: fills.pop(0)()
    pf(4)
    stamp(A, 1)
    A("s_waitcnt lgkmcnt(0)")
    A(f"s_add_u32 s{STAG}, s{STAG}, {hex(TAGSTEP)}")
    srd(A, 12, 4, WS_FLG, SZ_FLG)
    a_consts(C, pf)
    stamp(A, 2)
    vm.wait(["x"])
    unpack_bf16(A, 60, 8, 10)
    pf(2)
    layernorm(A, 60, 20, 212, 213)
    pf(99)
    A(f"v_mov_b32 v229, {hex(OOB)}")
    A(f"v_mov_b32 v231, {hex(OOB)}")
    stamp(A, 5)
    A("s_waitcnt vmcnt(0)")
    A("s_barrier")
    flag_store(C, FA)
    A(f"{Ljoin}:")
    vm.q = []
    stamp(A, 6)
    A("v_lshlrev_b32 v245, 4, v0")
    A("v_add_u32 v246, 8192, v245")
    A("v_add_u32 v247, 4096, v245")
    A("v_cmp_gt_u32 vcc, 128, v0")
    A("v_cndmask_b32 v246, v247, v246, vcc")
    A(f"v_and_b32 v247, {N_FILLER - 1}, v0")
    A(f"v_add_u32 v247, {256 - N_FILLER}, v247")
    A(f"v_lshlrev_b32 v247, {FSH}, v247")
    srd(A, 32, 4, WS_MODG, 80*128)
    A("s_movk_i32 s26, 4096")
    def mod_loads():
        A(f"buffer_load_dwordx4 v[232:235], v245, s[32:35], 0 offen {LSC}")
        A(f"buffer_load_dwordx4 v[236:239], v245, s[32:35], s26 offen {LSC}")
        A(f"buffer_load_dwordx4 v[240:243], v246, s[32:35], 0 offen {LSC}")
    def mod_test():
        A("v_min3_u32 v4, v233, v235, v237")
        A("v_max3_u32 v5, v233, v235, v237")
        A("v_min3_u32 v4, v4, v239, v241")
        A("v_max3_u32 v5, v5, v239, v241")
        A("v_min_u32 v4, v4, v243")
        A("v_max_u32 v5, v5, v243")
        A("v_cmp_ne_u32 vcc, v4, v5")
        A(f"v_cmp_ne_u32 s[50:51], s{STAG}, v5")
        A("s_or_b64 vcc, vcc, s[50:51]")
    retry_loop(C, mod_loads, mod_test)
    cnt(A, 0)
    A("v_lshrrev_b32 v4, 1, v245")
    A("v_lshrrev_b32 v5, 1, v246")
    A(f"v_add_u32 v4, {L_MODV}, v4")
    A(f"v_add_u32 v5, {L_MODV}, v5")
    A("v_add_u32 v6, 2048, v4")
    A("ds_write2_b32 v4, v232, v234 offset0:0 offset1:1")
    A("ds_write2_b32 v6, v236, v238 offset0:0 offset1:1")
    A("ds_write2_b32 v5, v240, v242 offset0:0 offset1:1")
    fa_ld(C); vm.issue("fa")
    srd(A, 28, 4, WS_WT, SZ_COL)
    def wt_store(j):
        if j: A(f"s_mov_b32 s81, {j*8*8192}")
        A(f"buffer_store_dwordx4 v[{216+4*j}:{219+4*j}], v{229 if j == 2 else 231}, s[28:31], {'s81' if j else '0'} offen {SC}"); vm.issue("wts")
    C.wt_ops = [lambda j=j: wt_store(j) for j in range(3)]
    if OPT.get("wts", "a") == "now":
        while C.wt_ops: C.wt_ops.pop(0)()
    if True:
        A("s_lshl_b32 s26, s2, 12")
        A("v_lshl_add_u32 v245, v0, 4, s26")
        for off, sz in ((WS_Z, SZ_COL),) + (((WS_H2P, SZ_H2P),) if OPT.get("h2f", "a2") == "a2" else ()):
            srd(A, 32, 4, off, sz)
            for i in range(3):
                if i: A(f"s_mov_b32 s26, {i << 20}")
                A(f"buffer_store_dwordx4 a[12:15], v245, s[32:35], {'s26' if i else '0'} offen {SC}"); vm.issue("wts")
    A("s_waitcnt lgkmcnt(0)")
    A("s_barrier")
    stamp(A, 7)

def fa_ld(C):
    C.A(f"buffer_load_dword v244, v247, s[12:15], 0 offen offset:{FA} {LSC}")
def flag_check(C, name, reg, ld):
    A = C.A; L = C.lab(name)
    A(f"v_cmp_ne_u32 vcc, s{STAG}, v{reg}")
    A(f"s_cbranch_vccnz {L}")
    A(f"{L}_b:")
    def tail():
        A(f"{L}:")
        q = C.vm.q
        retry_loop(C, ld, lambda: A(f"v_cmp_ne_u32 vcc, s{STAG}, v{reg}"))
        C.vm.q = q
        A(f"s_branch {L}_b")
    C.tail.append(tail)

def phase_a(C):
    A = C.A; vm = C.vm
    A(f"v_lshlrev_b32 v6, 4, v2")
    A(f"v_add_u32 v6, {L_MODV}, v6")
    for i in range(5):
        A(f"ds_read_b128 v[{20+4*i}:{23+4*i}], v6 offset:{2560 + 512*i}")
    for i in range(5):
        A(f"ds_read_b128 v[{40+4*i}:{43+4*i}], v6 offset:{512*i}")
    A(f"s_mul_i32 s26, s3, {2*PITCH2}")
    A(f"v_mul_u32_u24 v4, {PITCH2}, v3")
    A("v_lshl_add_u32 v4, v2, 3, v4")
    A("v_add_u32 v4, s26, v4")
    A("v_bfe_u32 v5, v1, 2, 2")
    A("v_lshl_add_u32 v5, v3, 3, v5")
    A("v_mul_u32_u24 v5, 40, v5")
    A("v_bfe_u32 v6, v1, 4, 1")
    A("v_lshl_add_u32 v5, v6, 5, v5")
    A("v_and_b32 v6, 3, v1")
    A("v_lshl_add_u32 v5, v6, 3, v5")
    A("v_add_u32 v5, s26, v5")
    for i in range(5):
        A(f"s_waitcnt lgkmcnt({9-i})")
        for k in (0, 2):
            q = 4*i+k
            A(f"v_pk_mul_f32 {pr(20+q)}, {pr(20+q)}, {pr(212)} op_sel_hi:[1,0]")
    for i in range(5):
        A(f"s_waitcnt lgkmcnt({4-i})")
        for k in (0, 2):
            q = 4*i+k
            A(f"v_pk_fma_f32 {pr(60+q)}, {pr(60+q)}, {pr(20+q)}, {pr(40+q)}")
        for k in (0, 1):
            q = 2*i+k
            A(f"v_cvt_pk_bf16_f32 v{8+q}, v{60+2*q}, v{61+2*q}")
        A(f"ds_write_b64 v4, v[{8+2*i}:{9+2*i}] offset:{256*i}")
    def wt1():
        if C.wt_ops: C.wt_ops.pop(0)()
    wt1()
    A("v_mov_b32 v18, 0")
    A("v_mov_b32 v19, 0")
    A("v_cmp_eq_u32 vcc, 0, v2")
    A("s_and_saveexec_b64 s[26:27], vcc")
    A("ds_write_b64 v4, v[18:19] offset:1280")
    A("s_mov_b64 exec, s[26:27]")
    A("s_waitcnt lgkmcnt(0)")
    for row in range(2):
        for mh in range(2):
            for j in range(2):
                d = 132 + 8*row + 4*mh + 2*j
                A(f"ds_read_b64_tr_b16 v[{d}:{d+1}], v5 offset:{row*PITCH2 + 640*mh + 160*j}")
    T = [[148, 164], [180, 196]]
    A("s_waitcnt lgkmcnt(0)")
    for mh in range(2):
        for row in range(2):
            a = 132 + 8*row + 4*mh
            for ri in range(2):
                mf32(A, T[row][ri], a, (80 if ri == 0 else 88) + 4*mh, mh == 0)
    wt1()
    stamp(A, 8)
    A("v_bfe_u32 v4, v2, 3, 1")
    A("v_lshlrev_b32 v5, 5, v2")
    A("v_lshl_add_u32 v5, v3, 12, v5")
    A("s_lshl_b32 s26, s3, 2")
    A(f"s_add_u32 s26, s26, {L_TR}")
    A("v_add_u32 v5, s26, v5")
    A("v_lshl_add_u32 v4, v4, 4, v5")
    A("v_bfe_u32 v6, v2, 3, 1")
    A("v_xor_b32 v6, 1, v6")
    A("v_lshl_add_u32 v5, v6, 4, v5")
    B = [20, 32]
    TA, TB = 60, 62
    for row in range(2):
        tr, ti = T[row]
        b = B[row]
        for r in range(0, 12, 2):
            c, s_ = 96+r, 108+r
            A(f"v_pk_mul_f32 {pr(TA)}, {pr(tr+r)}, {pr(c)}")
            A(f"v_pk_mul_f32 {pr(TB)}, {pr(ti+r)}, {pr(c)}")
            A(f"v_pk_fma_f32 {pr(TA)}, {pr(ti+r)}, {pr(s_)}, {pr(TA)}")
            A(f"v_pk_fma_f32 {pr(TB)}, {pr(tr+r)}, {pr(s_)}, {pr(TB)} neg_lo:[1,0,0] neg_hi:[1,0,0]")
            dr = b + r//2 if r < 8 else b + 8 + (r-8)//2
            di = b + 4 + r//2 if r < 8 else b + 10 + (r-8)//2
            A(f"v_cvt_pk_bf16_f32 v{dr}, v{TA}, v{TA+1}")
            A(f"v_cvt_pk_bf16_f32 v{di}, v{TB}, v{TB+1}")
    wt1()
    O = [148, 180]
    for st in range(3):
        for row in range(2):
            mf32(A, O[row], 120 + 4*st, B[row] + 4*st, st == 0)
    stamp(A, 9)
    A("v_bfe_u32 v6, v0, 4, 1")
    A("v_xor_b32 v6, v0, v6")
    A("v_lshlrev_b32 v6, 4, v6")
    A(f"v_add_u32 v6, {L_TR}, v6")
    A("v_lshl_add_u32 v7, v0, 4, s80")
    A(f"v_add_u32 v44, {hex(OOB)}, v7")
    A("s_movk_i32 s26, 136")
    A("v_cmp_gt_u32 vcc, s26, v0")
    A("v_cndmask_b32 v44, v44, v7, vcc")
    srd(A, 32, 4, WS_Y1, SZ_Y1N)
    for ri in range(2):
        for r in range(7):
            A(f"v_cvt_pk_bf16_f32 v{60+7*ri+r}, v{O[0]+8*ri+r}, v{O[1]+8*ri+r}")
            A(f"ds_write_b32 v{4+ri}, v{60+7*ri+r} offset:{(8*(r//4)+r%4)*1024}")
    vm.wait(["fa"])
    flag_check(C, "fa", 244, lambda: fa_ld(C))
    A("s_movk_i32 s26, 4096")
    A("s_movk_i32 s27, 8192")
    A("s_waitcnt lgkmcnt(0)")
    A("s_barrier")
    for n in range(3):
        A(f"ds_read_b128 v[{8+4*n}:{11+4*n}], v6 offset:{4096*n}")
    for n in range(3):
        A(f"s_waitcnt lgkmcnt({2-n})")
        A(f"buffer_store_dwordx4 v[{8+4*n}:{11+4*n}], v{44 if n == 2 else 7}, s[32:35], {['0','s26','s27'][n]} offen {SC}"); vm.issue("y1")
    stamp(A, 10)

NU = 5
L_PREP2 = L_PREP
PD = 40
G_S = [16, 17, 18, 19, 28]
DO_S = [29, 30, 31, 81, 82]
def repack(C):
    A = C.A; vm = C.vm
    A("v_lshrrev_b32 v4, 3, v1")
    A("v_and_b32 v5, 7, v1")
    A("v_bfe_u32 v6, v1, 4, 1")
    A("v_lshrrev_b32 v7, 5, v1")
    A("v_lshlrev_b32 v6, 1, v6")
    A("v_lshl_or_b32 v6, v7, 2, v6")
    A("v_xor_b32 v7, 4, v6")
    A("v_xor_b32 v6, v5, v6")
    A("v_xor_b32 v7, v5, v7")
    A("s_mul_i32 s83, s3, 20480")
    for unit in range(NU):
        B = 36
        prep_params(C, unit, B)
        A(f"s_cmp_eq_u32 s{B}, 0")
        A("s_cselect_b32 s32, s20, s22")
        A("s_cselect_b32 s33, s21, s23")
        A(f"s_cmp_eq_u32 s{B}, 2")
        A("s_cselect_b32 s32, s24, s32")
        A("s_cselect_b32 s33, s25, s33")
        A(f"s_mov_b32 s34, {640*1728*2}")
        A("s_mov_b32 s35, 0x20000")
        A(f"v_mul_lo_u32 v59, v4, s{B+1}")
        A(f"v_lshl_add_u32 v232, v6, 4, v59")
        A(f"v_lshl_add_u32 v233, v7, 4, v59")
        A(f"s_lshl_b32 s27, s{B+1}, 3")
        if OPT.get("xp") in ("nd", "nb"): A(f"s_mov_b32 s{B+2}, {hex(OOB)}")
        for i in range(4):
            A(f"s_add_u32 m0, s83, {L_PREP2 + 4096*unit + 1024*i}")
            A(f"buffer_load_dwordx4 v{232+(i&1)}, s[32:35], s{B+2} offen lds"); vm.issue(("P", unit))
            if i < 3: A(f"s_add_u32 s{B+2}, s{B+2}, s27")
        A(f"s_mov_b32 s{G_S[unit]}, s{B}")
        A(f"s_mov_b32 s{DO_S[unit]}, s{B+3}")
        if OPT.get("xp") in ("ns", "nb"): A(f"s_mov_b32 s{DO_S[unit]}, {hex(OOB)}")
    for base, ga, ja in ((8, 8, 4), (16, 4, 16)):
        A("v_lshrrev_b32 v24, 4, v1")
        A("v_bfe_u32 v25, v1, 2, 2")
        A(f"v_mul_u32_u24 v24, {ga}, v24")
        A("v_add_u32 v24, v24, v25")
        A(f"v_add_u32 v25, {ja}, v24")
        A("v_and_b32 v26, 1, v1")
        A("v_bfe_u32 v27, v1, 1, 1")
        for j, rr in enumerate([24, 25]):
            A(f"v_bfe_u32 v28, v{rr}, 1, 1")
            A(f"v_lshrrev_b32 v29, 2, v{rr}")
            A(f"v_lshrrev_b32 v30, 3, v{rr}")
            A(f"v_xor_b32 v29, v29, v30")
            A(f"v_and_b32 v29, 1, v29")
            A(f"v_lshl_or_b32 v28, v29, 1, v28")
            A(f"v_lshlrev_b32 v28, 1, v28")
            A(f"v_xor_b32 v28, v28, v27")
            A(f"v_lshlrev_b32 v31, 7, v{rr}")
            A(f"v_lshl_add_u32 v31, v26, 3, v31")
            A(f"v_add_u32 v31, s83, v31")
            for tile in range(4):
                A(f"v_xor_b32 v29, {2*tile}, v28")
                A(f"v_lshl_add_u32 v{base+4*j+tile}, v29, 4, v31")
    A("v_lshlrev_b32 v24, 4, v1")
    if OPT.get("yg", "1") == "1":
        srd(A, 44, 4, WS_Y1, SZ_Y1N)
        A(f"v_mul_u32_u24 v25, {BLK}, v0")
        retry_loop(C, lambda: A(f"buffer_load_dword v26, v25, s[44:47], 0 offen offset:{int(OPT.get('ygo', 0))} {LSC}"),
                   lambda: A("v_cmp_eq_u32 vcc, -1, v26"))
    for unit in range(NU):
        g, do = f"s{G_S[unit]}", f"s{DO_S[unit]}"
        L = C.lab("rp")
        A(f"s_cmp_eq_u32 {g}, 2")
        csel(A, "s26", hex(WS_W2), hex(WS_W13))
        csel(A, "s34", hex(SZ_W2P), hex(SZ_W13))
        csel(A, "s27", "1024", "2048")
        A("s_add_u32 s32, s4, s26")
        A("s_addc_u32 s33, s5, 0")
        vm.wait([("P", unit)])
        A(f"s_cmp_eq_u32 {g}, 2")
        A(f"s_cbranch_scc1 {L}")
        for var, base in enumerate((8, 16)):
            if var: A(f"{L}:")
            for tile in range(4):
                for j in range(2):
                    d = PD + 16*unit + 4*tile + 2*j
                    A(f"ds_read_b64_tr_b16 v[{d}:{d+1}], v{base+4*j+tile} offset:{L_PREP2 + 4096*unit}")
            if var == 0: A(f"s_branch {L}_e")
        A(f"{L}_e:")
        for tile in range(4):
            d = PD + 16*unit + 4*tile
            A(f"s_waitcnt lgkmcnt({6-2*tile})")
            A(f"buffer_store_dwordx4 v[{d}:{d+3}], v24, s[32:35], {do} offen {SC}"); vm.issue("ps")
            if tile < 3: A(f"s_add_u32 {do}, {do}, s27")

def cis_table(C, T, out, scale=None, fill=None):
    A = C.A
    WC, WS, BP, ANG, th, k0 = T, T+4, T+8, T+12, T+22, T+23
    A(f"v_add_f32 v{ANG}, v{th}, v{th}")
    A(f"v_mul_f32 v{ANG+1}, {fk(3.0)}, v{th}")
    for j, a in ((1, th), (2, ANG), (3, ANG+1)):
        A(f"v_cos_f32 v{WC+j}, v{a}")
        A(f"v_sin_f32 v{WS+j}, v{a}")
    def base(m):
        b = BP + 2*(m & 1); a = k0
        if m:
            a = ANG + (m & 1)
            A(f"v_fmamk_f32 v{a}, v{th}, {fk(8.0*m)}, v{k0}")
        A(f"v_cos_f32 v{b}, v{a}")
        A(f"v_sin_f32 v{b+1}, v{a}")
        if scale: A(f"v_pk_mul_f32 {pr(b)}, {pr(b)}, {scale} op_sel_hi:[1,0]")
    base(0)
    for m in range(4):
        if m < 3: base(m+1)
        b = BP + 2*(m & 1)
        for jp in range(2):
            r = 4*m + 2*jp
            dc, ds = out(r, None)
            A(f"v_pk_mul_f32 {pr(dc)}, {pr(WC+2*jp)}, {pr(b)} op_sel_hi:[1,0]")
            A(f"v_pk_mul_f32 {pr(ds)}, {pr(WC+2*jp)}, {pr(b)} op_sel:[0,1] op_sel_hi:[1,1]")
            A(f"v_pk_fma_f32 {pr(dc)}, {pr(WS+2*jp)}, {pr(b)}, {pr(dc)} op_sel:[0,1,0] op_sel_hi:[1,1,1] neg_lo:[1,0,0] neg_hi:[1,0,0]")
            A(f"v_pk_fma_f32 {pr(ds)}, {pr(WS+2*jp)}, {pr(b)}, {pr(ds)} op_sel:[0,0,0] op_sel_hi:[1,0,1]")
            out(r, (dc, ds))
        if fill: fill()

NS = 4
SLOT = 28*1024
C_LDS = NS*SLOT
ZP = 1552
Z_OFF = C_LDS
ST_OFF = C_LDS + 8*ZP
STP = 1296
ST_H = ST_OFF + 8*STP
SCRAP = ST_H + 8*STP
M_OFF = SCRAP + 1024
LDS_TOTAL = M_OFF + 8192
B_YST = C_LDS
B_EX1 = C_LDS + 16384
assert B_EX1 + 16384 <= M_OFF

def early_setup(C):
    A = C.A
    A("s_lshl_b32 s26, s48, 3")
    A("s_and_b32 s27, s49, 7")
    A("s_add_u32 s26, s26, s27")
    A("s_lshr_b32 s27, s49, 3")
    A("s_lshl_b32 s27, s27, 3")
    A("s_lshl_b32 s50, s3, 1")
    A("s_add_u32 s27, s27, s50")
    A("s_lshl_b32 s27, s27, 6")
    A("s_add_u32 s27, s27, s26")
    A("s_mul_i32 s27, s27, 1280")
    A("v_mul_u32_u24 v249, 40, v2")
    A("v_lshl_add_u32 v249, v3, 3, v249")
    A("v_add_u32 v249, s27, v249")
def hh_setup(C):
    A = C.A
    A("s_lshl_b32 s26, s40, 3")
    A("s_lshl_b32 s27, s3, 1")
    A("s_add_u32 s26, s26, s27")
    A("s_mul_i32 s26, s26, 55296")
    A("s_lshl_b32 s27, s41, 9")
    A("v_lshl_add_u32 v249, v1, 4, s27")
    A(f"v_mov_b32 v255, {hex(OOB)}")
    for i, r in ((3, 254), (2, 251), (1, 250), (0, 249)):
        A("s_mov_b32 s50, 55296")
        if i: A(f"v_add_u32 v{r}, {1024*i}, v249")
        A(f"v_cmp_gt_u32 vcc, s50, v{r}")
        A(f"v_add_u32 v{r}, s26, v{r}")
        if i == 3:
            A("v_cmp_gt_u32 s[50:51], 32, v1")
            A("s_and_b64 vcc, vcc, s[50:51]")
        A(f"v_cndmask_b32 v{r}, v255, v{r}, vcc")
    for q in range(4): A(f"v_accvgpr_write_b32 a{252+q}, -1")
def x_ops(C):
    A = C.A; ops = [lambda: srd(A, 28, 6, 0, SZ_X), lambda: A("s_mov_b32 s81, 81920")]
    for r in range(2):
        for q in range(3):
            def f(r=r, q=q):
                d = 6*r + 2*q
                A(f"buffer_load_dwordx2 a[{d}:{d+1}], v249, s[28:31], {'s81' if r else '0'} offen offset:{16*q}")
                C.vm.issue("X")
            ops.append(f)
    return ops
def hhfill_ops(C):
    A = C.A; ops = [lambda: A("s_mov_b32 s82, 55296")]
    for rt in range(2):
        for r in (249, 250, 251, 254):
            def f(r=r, rt=rt):
                A(f"buffer_store_dwordx4 a[252:255], v{r}, s[24:27], {'s82' if rt else '0'} offen {SC}")
                C.vm.issue("HF")
            ops.append(f)
    return ops
def m_ops(C):
    A = C.A; ops = []
    def m0():
        srd(A, 44, 4, WS_MOD, SZ_MOD)
        A("v_lshlrev_b32 v255, 4, v1")
        A("s_lshl_b32 s83, s3, 11")
    ops.append(m0)
    for i in range(2):
        def f(i=i):
            A(f"s_add_u32 m0, s83, {M_OFF + 1024*i}")
            A(f"s_add_u32 s43, s83, {5120 + 1024*i}")
            A(f"buffer_load_dwordx4 v255, s[44:47], s43 offen {LSC} lds")
            C.vm.issue("M")
        ops.append(f)
    return ops
def fw_ld(C):
    A = C.A
    A(f"s_mov_b32 s26, {FW}")
    A(f"buffer_load_dword v253, v252, s[12:15], s26 offen {LSC}")

def phase_b(C):
    A = C.A; vm = C.vm
    Lskip, Ldone = C.lab("b_skip"), C.lab("b_done")
    early_setup(C)
    A(f"v_lshlrev_b32 v252, {FSH}, v0")
    A("s_cmp_gt_u32 s2, 160")
    A(f"s_cbranch_scc1 {Lskip}")
    q_skip = list(vm.q)
    A("s_mul_i32 s20, s48, 20")
    A("s_add_u32 s20, s20, s49")
    A("s_cmp_eq_u32 s2, 160")
    A("s_cselect_b32 s20, 160, s20")
    A("s_lshl_b32 s21, s20, 1")
    A("s_lshr_b32 s22, s3, 1")
    A("s_add_u32 s21, s21, s22")
    A("s_and_b32 s23, s3, 1")
    A("s_lshl_b32 s24, s21, 13")
    A("s_lshl_b32 s25, s23, 12")
    A("s_add_u32 s24, s24, s25")
    srd(A, 36, 4, WS_Z, SZ_COL)
    pend = []
    def fill(k=1):
        for _ in range(k):
            if pend: pend.pop(0)()
    C32, S32, N32 = 40, 48, 56
    C64, S64 = 64, 80
    TWc, TWs = 96, 112
    AR, AI = 128, 144
    Pr, Pi, Pn = 160, 168, 176
    Or, Oi, On = 184, 192, 200
    T2c, T2s = 208, 224
    t0, t1, t2, t3, t4, t5 = 240, 241, 242, 243, 244, 245
    hf, pf, af = 246, 247, 5
    T = 176; TH, K0 = T+22, T+23
    A(f"v_cvt_f32_u32 v{hf}, v3")
    A(f"v_cvt_f32_u32 v{pf}, v2")
    A(f"v_cvt_f32_u32 v{af}, s23")
    A(f"v_mov_b32 v{T}, 1.0")
    A(f"v_mov_b32 v{T+4}, 0")
    def f32out(c, s_): return lambda r, p: (c+r, s_+r)
    def bfout(c, s_, n=None):
        def out(r, p):
            dc = T + 14 + 4*((r >> 1) & 1)
            if p is None: return (dc, dc+2)
            A(f"v_cvt_pk_bf16_f32 v{c + r//2}, v{dc}, v{dc+1}")
            A(f"v_cvt_pk_bf16_f32 v{s_ + r//2}, v{dc+2}, v{dc+3}")
            if n is not None: A(f"v_xor_b32 v{n + r//2}, 0x80008000, v{s_ + r//2}")
        return out
    A("v_lshrrev_b32 v4, 2, v1")
    A("s_lshl_b32 s26, s3, 6")
    A("v_add_u32 v4, s26, v4")
    A("v_and_b32 v6, 3, v1")
    A(f"v_mul_u32_u24 v8, {BLK}, v4")
    A("v_lshl_add_u32 v8, v6, 4, v8")
    A("s_lshl_b32 s26, s20, 6")
    A("v_add_u32 v8, s26, v8")
    A("v_bfe_u32 v7, v4, 1, 2")
    A("v_xor_b32 v7, v7, v6")
    A("v_lshlrev_b32 v9, 6, v4")
    A("v_lshl_add_u32 v9, v7, 4, v9")
    A(f"v_add_u32 v9, {B_YST}, v9")
    A("s_lshl_b32 s26, s23, 5")
    A("v_lshl_add_u32 v11, v3, 6, v2")
    A("v_add_u32 v11, s26, v11")
    A("v_lshlrev_b32 v11, 6, v11")
    A(f"v_add_u32 v11, {B_YST}, v11")
    A("v_bfe_u32 v7, v2, 1, 2")
    A("s_and_b32 s26, s3, 2")
    A("v_xor_b32 v7, s26, v7")
    A("v_xor_b32 v12, 1, v7")
    A("v_lshl_add_u32 v12, v12, 4, v11")
    A("v_lshl_add_u32 v11, v7, 4, v11")
    srd(A, 16, 4, WS_Y1, SZ_Y1N)
    srd(A, 32, 4, WS_WT, SZ_COL)
    YS = [24, 184]; YF = [253, 254]
    def y_loads(k):
        for i in range(4):
            if i: A(f"s_mov_b32 s26, {16*i*BLK}")
            A(f"buffer_load_dwordx4 v[{YS[k]+4*i}:{YS[k]+4*i+3}], v8, s[16:19], {'s26' if i else '0'} offen {LSC}")
        A(f"s_mov_b32 s26, {FW}")
        A(f"buffer_load_dword v{YF[k]}, v252, s[12:15], s26 offen {LSC}")
    def y_test(k):
        fill_test(A, range(YS[k], YS[k]+16), 255)
        if OPT.get("xp") == "nofw": return
        A(f"v_cmp_ne_u32 s[50:51], s{STAG}, v{YF[k]}")
        A("s_or_b64 vcc, vcc, s[50:51]")
    A(f"v_mul_f32 v{TH}, {flit(1/32)}, v{pf}")
    A(f"v_mul_f32 v{K0}, v{TH}, v{hf}")
    A(f"v_mul_f32 v{K0}, 4.0, v{K0}")
    cis_table(C, T, bfout(C32, S32, N32), fill=fill)
    A(f"v_mul_f32 v6, {flit(8.0)}, v{af}")
    A(f"v_add_f32 v6, v6, v{hf}")
    A(f"v_mul_f32 v6, 4.0, v6")
    A(f"v_mul_f32 v{TH}, {flit(1/2048)}, v{pf}")
    A(f"v_mul_f32 v{K0}, v6, v{TH}")
    cis_table(C, T, f32out(TWc, TWs), fill=fill)
    vm.wait(["wts"])
    A("s_barrier")
    flag_store(C, FW, 13, 14)
    A(f"v_mul_f32 v7, {flit(32.0)}, v{af}")
    A(f"v_add_f32 v{t5}, v7, v{pf}")
    A(f"v_mul_f32 v{TH}, {flit(1/64)}, v{t5}")
    A(f"v_mul_f32 v{K0}, v6, v{TH}")
    cis_table(C, T, bfout(C64, S64), fill=fill)
    A("v_and_b32 v7, 1, v2")
    A("v_mul_u32_u24 v7, 0x8000, v7")
    A("v_lshl_or_b32 v7, v7, 16, v7")
    for q in range(8):
        A(f"v_xor_b32 v{C64+8+q}, v7, v{C64+q}")
        A(f"v_xor_b32 v{S64+8+q}, v7, v{S64+q}")
    P2 = OPT.get("p2", "0") == "1"
    if P2: y_loads(0)
    A("s_cmp_eq_u32 s21, 0")
    A("s_cselect_b32 s26, 1, 0")
    A("s_cmp_eq_u32 s21, 320")
    A("s_cselect_b32 s26, 1, s26")
    A("s_cmp_eq_u32 s26, 1")
    csel(A, "s26", hex(f32bits(1.0/(2048*640))), hex(f32bits(2.0/(2048*640))))
    A(f"v_mul_f32 v{TH}, {flit(1/2048)}, v{t5}")
    A(f"v_mul_f32 v{K0}, v{TH}, v{hf}")
    A(f"v_mul_f32 v{K0}, 4.0, v{K0}")
    cis_table(C, T, f32out(T2c, T2s), scale="s[26:27]", fill=fill)
    fill(len(pend))
    stamp(A, 11)
    def y_use(k):
        for i in range(4):
            A(f"ds_write_b128 v9, v[{YS[k]+4*i}:{YS[k]+4*i+3}] offset:{1024*i}")
    if P2:
        y_loads(1)
        poll2(C, [lambda: y_loads(0), lambda: y_loads(1)], [lambda: y_test(0), lambda: y_test(1)], 5, y_use)
    else:
        retry_loop(C, lambda: y_loads(1), lambda: y_test(1))
        cnt(A, 1)
        y_use(1)
    if P2: A("s_waitcnt lgkmcnt(0)")
    A("v_lshlrev_b32 v4, 4, v1")
    A("v_add_u32 v4, s24, v4")
    for j in range(4):
        A(f"buffer_load_dwordx4 v[{24+4*j}:{27+4*j}], v4, s[32:35], 0 offen offset:{j*1024} {LSC}"); vm.issue("wt")
    pend.extend(x_ops(C))
    pend.extend(m_ops(C))
    A("s_waitcnt lgkmcnt(0)")
    A("s_barrier")
    stamp(A, 12)
    A("v_mov_b32 v6, v11")
    A("v_mov_b32 v7, v12")
    for t in range(2):
        for ri in range(2):
            d = 8 + 8*ri + 4*t
            A(f"ds_read_b128 v[{d}:{d+3}], v{6+ri} offset:{t*8192}")
    Xr, Xi = 8, 16
    def mf(d, a, b, first, k=0):
        mf32(A, d, a, b, first); fill(k)
    fill(3)
    for t in range(2):
        A(f"s_waitcnt lgkmcnt({2-2*t})")
        mf(AR, Xr+4*t, C32+4*t, t == 0, 1)
        mf(AI, Xi+4*t, C32+4*t, t == 0, 1)
        mf(AR, Xi+4*t, S32+4*t, False, 1)
        mf(AI, Xr+4*t, N32+4*t, False)
    TA, TB = t0, t2
    def cmul_pack(cr, ci, conj_tw, k=0):
        n1 = "" if not conj_tw else " neg_lo:[1,0,0] neg_hi:[1,0,0]"
        n2 = " neg_lo:[1,0,0] neg_hi:[1,0,0]" if not conj_tw else ""
        for r in range(0, 16, 2):
            A(f"v_pk_mul_f32 {pr(TA)}, {pr(AR+r)}, {pr(cr+r)}")
            A(f"v_pk_mul_f32 {pr(TB)}, {pr(AI+r)}, {pr(cr+r)}")
            A(f"v_pk_fma_f32 {pr(TA)}, {pr(AI+r)}, {pr(ci+r)}, {pr(TA)}{n1}")
            A(f"v_pk_fma_f32 {pr(TB)}, {pr(AR+r)}, {pr(ci+r)}, {pr(TB)}{n2}")
            A(f"v_cvt_pk_bf16_f32 v{Pr+r//2}, v{TA}, v{TA+1}")
            A(f"v_cvt_pk_bf16_f32 v{Pi+r//2}, v{TB}, v{TB+1}")
            fill(k)
    A("s_lshl_b32 s26, s3, 12")
    A(f"s_add_u32 s26, s26, {B_YST}")
    A("s_xor_b32 s27, s26, 0x1000")
    A("v_lshlrev_b32 v6, 4, v1")
    A("v_add_u32 v7, s27, v6")
    A("v_add_u32 v6, s26, v6")
    cmul_pack(TWc, TWs, False, 1)
    def exch(off):
        for g in range(2):
            A(f"ds_write_b128 v6, v[{Pr+4*g}:{Pr+4*g+3}] offset:{off+1024*g}")
            A(f"ds_write_b128 v6, v[{Pi+4*g}:{Pi+4*g+3}] offset:{off+2048+1024*g}")
        A("s_waitcnt lgkmcnt(0)")
        A("s_barrier")
        for g in range(2):
            A(f"ds_read_b128 v[{Or+4*g}:{Or+4*g+3}], v7 offset:{off+1024*g}")
            A(f"ds_read_b128 v[{Oi+4*g}:{Oi+4*g+3}], v7 offset:{off+2048+1024*g}")
    stamp(A, 13)
    vm.wait(["stale"])
    exch(B_EX1 - B_YST)
    for q in range(8): A(f"v_xor_b32 v{Pn+q}, 0x80008000, v{Pr+q}")
    for u in range(2):
        mf(AR, C64+4*u, Pr+4*u, u == 0, 1)
        mf(AI, C64+4*u, Pi+4*u, u == 0)
        mf(AR, S64+4*u, Pi+4*u, False, 1)
        mf(AI, S64+4*u, Pn+4*u, False)
    A("s_waitcnt lgkmcnt(0)")
    for q in range(8): A(f"v_xor_b32 v{On+q}, 0x80008000, v{Or+q}")
    for u in range(2):
        mf(AR, C64+8+4*u, Or+4*u, False)
        mf(AI, C64+8+4*u, Oi+4*u, False)
        mf(AR, S64+8+4*u, Oi+4*u, False)
        mf(AI, S64+8+4*u, On+4*u, False)
    fill(len(pend))
    stamp(A, 14)
    vm.wait(["wt"])
    W0, W1 = 8, 10
    for r in range(0, 16, 2):
        w = 24 + r
        A(f"v_lshlrev_b32 v{W0}, 16, v{w}")
        A(f"v_lshlrev_b32 v{W0+1}, 16, v{w+1}")
        A(f"v_and_b32 v{W1}, 0xffff0000, v{w}")
        A(f"v_and_b32 v{W1+1}, 0xffff0000, v{w+1}")
        A(f"v_pk_mul_f32 {pr(TA)}, {pr(AR+r)}, {pr(W0)}")
        A(f"v_pk_mul_f32 {pr(TB)}, {pr(AI+r)}, {pr(W0)}")
        A(f"v_pk_fma_f32 {pr(TA)}, {pr(AI+r)}, {pr(W1)}, {pr(TA)} neg_lo:[1,0,0] neg_hi:[1,0,0]")
        A(f"v_pk_fma_f32 {pr(TB)}, {pr(AR+r)}, {pr(W1)}, {pr(TB)}")
        A(f"v_cvt_pk_bf16_f32 v{Pr+r//2}, v{TA}, v{TA+1}")
        A(f"v_cvt_pk_bf16_f32 v{Pi+r//2}, v{TB}, v{TB+1}")
    exch(0)
    def ringfill(k): pass
    for q in range(8): A(f"v_xor_b32 v{Pn+q}, 0x80008000, v{Pi+q}")
    def mr(d, a, b, first, k=1):
        mf32(A, d, a, b, first); ringfill(k)
    for u in range(2):
        mr(AR, Pr+4*u, C64+4*u, u == 0)
        mr(AI, Pi+4*u, C64+4*u, u == 0, 0)
        mr(AR, Pn+4*u, S64+4*u, False)
        mr(AI, Pr+4*u, S64+4*u, False, 0)
    A("s_waitcnt lgkmcnt(0)")
    for q in range(8): A(f"v_xor_b32 v{On+q}, 0x80008000, v{Oi+q}")
    for u in range(2):
        mr(AR, Or+4*u, C64+8+4*u, False)
        mr(AI, Oi+4*u, C64+8+4*u, False, 0)
        mr(AR, On+4*u, S64+8+4*u, False)
        mr(AI, Or+4*u, S64+8+4*u, False, 0)
    stamp(A, 15)
    _fill = fill
    def cm2():
        n1 = " neg_lo:[1,0,0] neg_hi:[1,0,0]"
        for r in range(0, 16, 2):
            A(f"v_pk_mul_f32 {pr(TA)}, {pr(AR+r)}, {pr(T2c+r)}")
            A(f"v_pk_mul_f32 {pr(TB)}, {pr(AI+r)}, {pr(T2c+r)}")
            A(f"v_pk_fma_f32 {pr(TA)}, {pr(AI+r)}, {pr(T2s+r)}, {pr(TA)}{n1}")
            A(f"v_pk_fma_f32 {pr(TB)}, {pr(AR+r)}, {pr(T2s+r)}, {pr(TB)}")
            A(f"v_cvt_pk_bf16_f32 v{Pr+r//2}, v{TA}, v{TA+1}")
            A(f"v_cvt_pk_bf16_f32 v{Pi+r//2}, v{TB}, v{TB+1}")
            if r % 4 == 0: ringfill(1)
    cm2()
    for t in range(2):
        mr(AR, C32+4*t, Pr+4*t, t == 0)
        mr(AI, C32+4*t, Pi+4*t, t == 0)
        mr(AR, N32+4*t, Pi+4*t, False)
        mr(AI, S32+4*t, Pr+4*t, False, 0)
    A("v_lshlrev_b32 v4, 5, v2")
    A("v_lshl_add_u32 v4, v3, 4, v4")
    A("v_add_u32 v4, s24, v4")
    vm.wait(["X"])
    for j in range(4):
        for i in range(4):
            r = 4*j+i
            A(f"v_cvt_pk_bf16_f32 v{8+r}, v{AR+r}, v{AI+r}")
        A(f"buffer_store_dwordx4 v[{8+4*j}:{11+4*j}], v4, s[36:39], 0 offen offset:{j*1024} {SC}"); vm.issue("z")
    stamp(A, 16)
    A("s_barrier")
    A(f"s_branch {Ldone}")
    A(f"{Lskip}:")
    vm.q = q_skip
    for f in x_ops(C): f()
    vm.wait(["wts"])
    A("s_barrier")
    flag_store(C, FW, 8, 9)
    repack(C)
    if OPT.get("h2f", "a2") == "r":
        NF = 256 - NB_WG
        A(f"s_sub_u32 s26, s2, {NB_WG}")
        A("s_lshl_b32 s26, s26, 12")
        A("v_lshl_add_u32 v4, v0, 4, s26")
        srd(A, 32, 4, WS_H2P, SZ_H2P)
        for i in range(-(-SZ_H2P // (NF*4096))):
            if i: A(f"s_mov_b32 s26, {i*NF*4096}")
            A(f"buffer_store_dwordx4 a[12:15], v4, s[32:35], {'s26' if i else '0'} offen {SC}"); vm.issue("h2f")
    fw_ld(C); vm.issue("fw")
    vm.wait(["fw"])
    flag_check(C, "fw", 253, lambda: fw_ld(C))
    A("s_barrier")
    flag_store(C, FP, 8, 9)
    for f in m_ops(C): f()
    A(f"{Ldone}:")
    vm.q = []

def w13_ring(C):
    ops = []
    for s_ in range(NS): ops += w13_ops(C, s_)
    return ops

def fh_offset(C, v, which):
    A = C.A
    A(f"v_min_u32 v{v}, {255 - NB_WG}, v0")
    A(f"v_add_u32 v{v}, {NB_WG + (which >> FSH)}, v{v}")
    A(f"v_lshlrev_b32 v{v}, {FSH}, v{v}")

def d_geometry(C):
    A = C.A
    A("s_and_b32 s40, s48, 1")
    A("s_lshl_b32 s40, s40, 3")
    A("s_and_b32 s41, s49, 7")
    A("s_add_u32 s40, s40, s41")
    A("s_lshr_b32 s41, s48, 1")
    A("s_lshl_b32 s41, s41, 2")
    A("s_lshr_b32 s42, s49, 3")
    A("s_add_u32 s41, s41, s42")
    A("s_mul_i32 s41, s41, 7")
    A("s_lshr_b32 s42, s3, 1")
    A("s_mul_i32 s42, s42, 221184")
    A("s_lshl_b32 s43, s41, 11")
    A("s_add_u32 s42, s42, s43")
    A("s_and_b32 s43, s3, 1")
    A("s_mul_i32 s43, s43, 7168")
    A("s_add_u32 s42, s42, s43")
    A("v_lshlrev_b32 v248, 4, v1")
    A("v_add_u32 v248, s42, v248")
    A("s_mul_i32 s42, s3, 7168")

def w13_ops(C, s, SRD=36):
    A = C.A; ops = []
    for i0, n in ((0, 4), (4, 3)):
        def setup(i0=i0):
            A(f"s_add_u32 m0, s42, {(s % NS)*SLOT + i0*1024}")
        def setup2(i0=i0):
            A(f"s_mov_b32 s43, {2*s*221184 + i0*1024}")
        ops += [setup, setup2]
        for i in range(n):
            def dma(i=i):
                A(f"buffer_load_dwordx4 v248, s[{SRD}:{SRD+3}], s43 offen offset:{i*1024} lds")
                C.vm.issue(("W", s))
            ops.append(dma)
    return ops

def phase_c(C):
    A = C.A; vm = C.vm
    A("s_lshl_b32 s20, s48, 3")
    A("s_and_b32 s21, s49, 7")
    A("s_add_u32 s20, s20, s21")
    A("s_lshr_b32 s21, s49, 3")
    GA, G2, SB = 32, 44, 56
    srd(A, 36, 4, WS_W13, SZ_W13)
    d_geometry(C)
    stamp(A, 17)
    A("s_lshr_b32 s22, s20, 5")
    A("s_lshl_b32 s22, s22, 12")
    A("s_lshl_b32 s23, s21, 10")
    A("s_add_u32 s22, s22, s23")
    A("s_and_b32 s23, s20, 31")
    A("s_lshl_b32 s23, s23, 5")
    A("s_add_u32 s22, s22, s23")
    A("v_and_b32 v4, 1, v1")
    A("v_bfe_u32 v5, v1, 1, 2")
    A("v_lshrrev_b32 v6, 3, v1")
    A("s_lshl_b32 s23, s3, 3")
    A("v_add_u32 v6, s23, v6")
    A("v_lshl_add_u32 v251, v5, 5, v6")
    A("v_lshlrev_b32 v251, 13, v251")
    A("v_lshl_add_u32 v251, v4, 4, v251")
    A("v_add_u32 v251, s22, v251")
    A(f"v_mul_u32_u24 v252, {4*ZP}, v4")
    A("v_mul_u32_u24 v253, 48, v6")
    A("v_add_u32 v252, v252, v253")
    A("v_lshl_add_u32 v252, v5, 2, v252")
    A(f"v_add_u32 v252, {Z_OFF}, v252")
    srd(A, 16, 4, WS_Z, SZ_COL)
    A("s_mov_b32 s24, 0x100000")
    A("s_mov_b32 s25, 0x200000")
    BR, BI, TC, TS, C32, N32 = 92, 100, 108, 124, 140, 148
    t0, t1, t2, t3, t4 = 244, 245, 246, 247, 243
    pf, hf = 249, 250
    A(f"v_cvt_f32_u32 v{pf}, v2")
    A(f"v_cvt_f32_u32 v{hf}, v3")
    A(f"v_mul_f32 v4, {flit(1/20)}, v{pf}")
    A(f"v_mul_f32 v5, v4, v{hf}")
    A(f"v_mul_f32 v5, 4.0, v5")
    A(f"v_mov_b32 v6, 0")
    for st in range(2):
        for q in range(4):
            A(f"v_fmamk_f32 v{t0}, v4, {fk(8*st+q)}, v{5 if st == 0 else 6}")
            A(f"v_cos_f32 v{t1}, v{t0}")
            A(f"v_sin_f32 v{t2}, v{t0}")
            A(f"v_sub_f32 v{t3}, 0, v{t2}")
            A(f"v_cvt_pk_bf16_f32 v{BR+4*st+q}, v{t1}, v{t3}")
            A(f"v_cvt_pk_bf16_f32 v{BI+4*st+q}, v{t2}, v{t1}")
    A("v_cmp_eq_u32 vcc, 0, v3")
    for q in range(4):
        A(f"v_cndmask_b32 v{BR+4+q}, 0, v{BR+4+q}, vcc")
        A(f"v_cndmask_b32 v{BI+4+q}, 0, v{BI+4+q}, vcc")
    A(f"v_mul_f32 v4, {flit(1/640)}, v{pf}")
    A(f"v_mul_f32 v5, v4, v{hf}")
    A(f"v_mul_f32 v5, 4.0, v5")
    for r in range(16):
        A(f"v_fmamk_f32 v{t0}, v4, {fk(8*(r//4)+r%4)}, v5")
        A(f"v_cos_f32 v{TC+r}, v{t0}")
        A(f"v_sin_f32 v{TS+r}, v{t0}")
    A(f"v_mul_f32 v4, {flit(1/32)}, v{pf}")
    A(f"v_mul_f32 v5, v4, v{hf}")
    A(f"v_mul_f32 v5, 4.0, v5")
    for t in range(2):
        for p in range(4):
            for z in range(2):
                e = 2*p+z
                A(f"v_fmamk_f32 v{t0}, v4, {fk(16*t+8*(e>>2)+(e&3))}, v5")
                A(f"v_cos_f32 v{t1+z}, v{t0}")
                A(f"v_sin_f32 v{(t3, t4)[z]}, -v{t0}")
            A(f"v_cvt_pk_bf16_f32 v{C32+4*t+p}, v{t1}, v{t2}")
            A(f"v_cvt_pk_bf16_f32 v{N32+4*t+p}, v{t3}, v{t4}")
    XF = 68
    for q in range(12): A(f"v_accvgpr_read_b32 v{20+q}, a{q}")
    for r in range(2):
        for q in range(6):
            A(f"v_lshlrev_b32 v{XF+12*r+2*q}, 16, v{20+6*r+q}")
            A(f"v_and_b32 v{XF+12*r+2*q+1}, 0xffff0000, v{20+6*r+q}")
    A("v_cmp_eq_u32 vcc, 0, v3")
    for r in range(2):
        for k in range(8, 12): A(f"v_cndmask_b32 v{XF+12*r+k}, 0, v{XF+12*r+k}, vcc")
    A("v_mul_u32_u24 v7, 80, v2")
    A("v_lshl_add_u32 v7, v3, 4, v7")
    A(f"v_add_u32 v7, {M_OFF}, v7")
    stamp(A, 18)
    fh_offset(C, 253, FP)
    def z_loads():
        for m in range(3):
            A(f"buffer_load_dwordx4 v[{8+4*m}:{11+4*m}], v251, s[16:19], {['0','s24','s25'][m]} offen {LSC}")
        A(f"buffer_load_dword v254, v253, s[12:15], 0 offen {LSC}")
    def z_test():
        fill_test(A, range(8, 20), 4)
        A(f"v_cmp_ne_u32 s[50:51], s{STAG}, v254")
        A("s_or_b64 vcc, vcc, s[50:51]")
    retry_loop(C, z_loads, z_test)
    cnt(A, 2)
    for m in range(3):
        for i in range(4):
            A(f"ds_write_b32 v252, v{8+4*m+i} offset:{i*ZP + 16*m}")
    A(f"s_mul_i32 s26, s3, {2*ZP}")
    A(f"s_add_u32 s26, s26, {Z_OFF}")
    A("v_mul_u32_u24 v4, 48, v2")
    A("v_add_u32 v4, s26, v4")
    A("v_lshl_add_u32 v5, v3, 4, v4")
    A("s_waitcnt lgkmcnt(0)")
    A("s_barrier")
    stamp(A, 19)
    FA_ = [[156, 160], [164, 168]]
    for row in range(2):
        A(f"ds_read_b128 v[{FA_[row][0]}:{FA_[row][0]+3}], v5 offset:{row*ZP}")
        A(f"ds_read_b128 v[{FA_[row][1]}:{FA_[row][1]+3}], v4 offset:{row*ZP+32}")
    for base, sec in ((GA, 0), (G2, 2), (SB, 1)):
        for q in range(3):
            A(f"ds_read_b128 v[{base+4*q}:{base+4*q+3}], v7 offset:{sec*2560 + 32*q}")
    ring = w13_ring(C)
    def rf(k=1):
        n = 0
        while ring and n < k:
            q0 = len(vm.q); ring.pop(0)()
            if len(vm.q) > q0: n += 1
    U = [[172, 188], [204, 220]]
    rf(2)
    for st in range(2):
        for row in range(2):
            if st == 0: A(f"s_waitcnt lgkmcnt({9 + (2 if row == 0 else 0)})")
            mf32(A, U[row][0], FA_[row][st], BR+4*st, st == 0)
            rf()
            mf32(A, U[row][1], FA_[row][st], BI+4*st, st == 0)
    A("v_cmp_eq_u32 vcc, 0, v3")
    P = [[156, 164], [8, 236]]
    TA, TB = 20, 22
    for row in range(2):
        ur, ui = U[row]; pr_, pi_ = P[row]
        for r in range(0, 16, 2):
            A(f"v_pk_mul_f32 {pr(TA)}, {pr(ur+r)}, {pr(TC+r)}")
            A(f"v_pk_mul_f32 {pr(TB)}, {pr(ui+r)}, {pr(TC+r)}")
            A(f"v_pk_fma_f32 {pr(TA)}, {pr(ui+r)}, {pr(TS+r)}, {pr(TA)} neg_lo:[1,0,0] neg_hi:[1,0,0]")
            A(f"v_pk_fma_f32 {pr(TB)}, {pr(ur+r)}, {pr(TS+r)}, {pr(TB)}")
            A(f"v_cvt_pk_bf16_f32 v{pr_+r//2}, v{TA}, v{TA+1}")
            A(f"v_cvt_pk_bf16_f32 v{pi_+r//2}, v{TB}, v{TB+1}")
            if r % 4 == 0: rf()
    Y = [172, 204]
    for t in range(2):
        for row in range(2):
            mf32(A, Y[row], P[row][0]+4*t, C32+4*t, t == 0)
            rf()
        for row in range(2):
            mf32(A, Y[row], P[row][1]+4*t, N32+4*t, False)
    A("s_waitcnt lgkmcnt(0)")
    for k in range(8, 12): A(f"v_cndmask_b32 v{GA+k}, 0, v{GA+k}, vcc")
    for row in range(2):
        for k in range(0, 12, 2):
            A(f"v_pk_fma_f32 {pr(XF+12*row+k)}, {pr(GA+k)}, {pr(Y[row]+k)}, {pr(XF+12*row+k)}")
    X2P = 20
    for row in range(2):
        for k in range(6):
            A(f"v_cvt_pk_bf16_f32 v{X2P+6*row+k}, v{XF+12*row+2*k}, v{XF+12*row+2*k+1}")
    A(f"s_mul_i32 s26, s3, {2*STP}")
    A(f"s_add_u32 s26, s26, {ST_OFF}")
    A("v_mul_u32_u24 v4, 40, v2")
    A("v_lshl_add_u32 v4, v3, 3, v4")
    A("v_add_u32 v4, s26, v4")
    A("v_lshlrev_b32 v7, 3, v1")
    A(f"v_add_u32 v7, {SCRAP}, v7")
    A("v_add_u32 v6, 32, v4")
    A("v_cndmask_b32 v5, v7, v6, vcc")
    for row in range(2):
        for q in range(2):
            A(f"ds_write_b64 v4, {pr(X2P+6*row+2*q)} offset:{row*STP + 16*q}")
    A(f"v_add_u32 v6, {STP}, v6")
    A("v_cndmask_b32 v6, v7, v6, vcc")
    A(f"ds_write_b64 v5, {pr(X2P+4)}")
    A(f"ds_write_b64 v6, {pr(X2P+10)}")
    for r in range(2):
        for q in range(6):
            A(f"v_lshlrev_b32 v{XF+12*r+2*q}, 16, v{X2P+6*r+q}") if OPT.get("rx2") else None
            A(f"v_and_b32 v{XF+12*r+2*q+1}, 0xffff0000, v{X2P+6*r+q}") if OPT.get("rx2") else None
    S0, S1, T0, T1 = 32, 34, 36, 38
    def red64(a, b):
        ta, tb = T0, T1
        for ctl in ["quad_perm:[1,0,3,2]", "quad_perm:[2,3,0,1]", "row_ror:4", "row_ror:8"]:
            A(f"v_add_f32_dpp v{a}, v{a}, v{a} {ctl} row_mask:0xf bank_mask:0xf")
            A(f"v_add_f32_dpp v{b}, v{b}, v{b} {ctl} row_mask:0xf bank_mask:0xf")
        for sw in ("v_permlane16_swap_b32", "v_permlane32_swap_b32"):
            A(f"v_mov_b32 v{ta}, v{a}")
            A(f"v_mov_b32 v{tb}, v{b}")
            A(f"{sw} v{a}, v{ta}")
            A(f"{sw} v{b}, v{tb}")
            A(f"v_add_f32 v{a}, v{a}, v{ta}")
            A(f"v_add_f32 v{b}, v{b}, v{tb}")
    S = [S0, S1]
    for k in range(0, 12, 2):
        for row in range(2):
            x = XF+12*row+k
            if k == 0: continue
            if k == 2: A(f"v_pk_add_f32 {pr(S[row])}, {pr(x-2)}, {pr(x)}")
            else: A(f"v_pk_add_f32 {pr(S[row])}, {pr(S[row])}, {pr(x)}")
    for row in range(2): A(f"v_add_f32 v{S[row]}, v{S[row]}, v{S[row]+1}")
    rf(2)
    red64(S0, S1)
    rf(2)
    for row in range(2):
        A(f"v_mul_f32 v{S[row]}, {flit(1/640)}, v{S[row]}")
        A(f"v_cndmask_b32 v{S[row]+1}, 0, v{S[row]}, vcc")
    for k in range(0, 12, 2):
        for row in range(2):
            x = XF+12*row+k
            sel = "op_sel_hi:[1,0]" if k < 8 else "op_sel:[0,1] op_sel_hi:[1,1]"
            A(f"v_pk_add_f32 {pr(x)}, {pr(x)}, {pr(S[row])} {sel} neg_lo:[0,1] neg_hi:[0,1]")
    V = [40, 42]
    for k in range(0, 12, 2):
        for row in range(2):
            x = XF+12*row+k
            if k == 0: A(f"v_pk_mul_f32 {pr(V[row])}, {pr(x)}, {pr(x)}")
            else: A(f"v_pk_fma_f32 {pr(V[row])}, {pr(x)}, {pr(x)}, {pr(V[row])}")
    for row in range(2): A(f"v_add_f32 v{V[row]}, v{V[row]}, v{V[row]+1}")
    rf(2)
    red64(V[0], V[1])
    rf(99)
    for row in range(2):
        A(f"v_mov_b32 v{S[row]}, {flit(1e-5)}")
        A(f"v_fmac_f32 v{S[row]}, {flit(1/640)}, v{V[row]}")
    for row in range(2): A(f"v_rsq_f32 v{S[row]}, v{S[row]}")
    for k in range(0, 12, 2):
        for row in range(2):
            x = XF+12*row+k
            A(f"v_pk_mul_f32 {pr(x)}, {pr(x)}, {pr(S[row])} op_sel_hi:[1,0]")
        for row in range(2):
            x = XF+12*row+k
            A(f"v_pk_fma_f32 {pr(x)}, {pr(x)}, {pr(G2+k)}, {pr(SB+k)}")
    H2P_ = 8
    for row in range(2):
        for k in range(6):
            A(f"v_cvt_pk_bf16_f32 v{H2P_+6*row+k}, v{XF+12*row+2*k}, v{XF+12*row+2*k+1}")
    HO = ST_H - ST_OFF
    for row in range(2):
        for q in range(2):
            A(f"ds_write_b64 v4, {pr(H2P_+6*row+2*q)} offset:{HO + row*STP + 16*q}")
    A(f"v_subrev_u32 v7, {HO}, v7")
    A(f"v_add_u32 v36, 32, v4")
    A(f"v_cndmask_b32 v37, v7, v36, vcc")
    A(f"v_add_u32 v36, {STP}, v36")
    A(f"v_cndmask_b32 v36, v7, v36, vcc")
    A(f"ds_write_b64 v37, {pr(H2P_+4)} offset:{HO}")
    A(f"ds_write_b64 v36, {pr(H2P_+10)} offset:{HO}")
    A("v_and_b32 v4, 7, v0")
    A("v_lshrrev_b32 v5, 3, v0")
    A(f"v_mul_u32_u24 v6, {STP}, v4")
    A("v_lshl_add_u32 v6, v5, 4, v6")
    A(f"v_add_u32 v6, {ST_H}, v6")
    A("s_lshl_b32 s26, s48, 4")
    A("s_lshr_b32 s27, s49, 1")
    A("s_add_u32 s26, s26, s27")
    A("s_mul_i32 s26, s26, 20480")
    A("s_and_b32 s27, s49, 1")
    A("s_lshl_b32 s27, s27, 7")
    A("s_add_u32 s26, s26, s27")
    A("v_lshlrev_b32 v5, 8, v5")
    A("v_lshl_add_u32 v5, v4, 4, v5")
    A("v_add_u32 v5, s26, v5")
    A("v_lshrrev_b32 v4, 5, v0")
    A(f"v_mul_u32_u24 v7, {STP}, v4")
    A("v_lshl_add_u32 v7, v2, 4, v7")
    A(f"v_add_u32 v7, {ST_OFF}, v7")
    A("s_lshl_b32 s26, s21, 9")
    A("s_add_u32 s26, s26, s20")
    A("s_mul_i32 s26, s26, 1280")
    A("v_mul_u32_u24 v4, 81920, v4")
    A("v_lshl_add_u32 v4, v2, 4, v4")
    A("v_add_u32 v252, s26, v4")
    A(f"v_add_u32 v253, {hex(OOB)}, v252")
    A("v_cmp_gt_u32 vcc, 16, v2")
    A("v_cndmask_b32 v253, v253, v252, vcc")
    A(f"v_add_u32 v37, {hex(OOB)}, v5")
    A("s_cmp_lt_u32 s3, 2")
    A("s_cselect_b64 vcc, -1, 0")
    A("v_cndmask_b32 v37, v37, v5, vcc")
    srd(A, 16, 4, WS_H2P, SZ_H2P)
    srd(A, 28, 4, WS_X2, SZ_X)
    A("s_waitcnt lgkmcnt(0)")
    A("s_barrier")
    for i in range(3):
        A(f"ds_read_b128 v[{8+4*i}:{11+4*i}], v6 offset:{512*i}")
    for i in range(3):
        A(f"ds_read_b128 v[{216+4*i}:{219+4*i}], v7 offset:{512*i}")
    A("s_movk_i32 s26, 8192")
    A("s_movk_i32 s27, 16384")
    for i in range(3):
        A(f"s_waitcnt lgkmcnt({5-i})")
        A(f"buffer_store_dwordx4 v[{8+4*i}:{11+4*i}], v{37 if i == 2 else 5}, s[16:19], {['0','s26','s27'][i]} offen {SC}"); vm.issue("st")
    stamp(A, 20)

D_LA = 6
RA = 8
RB = 10
def e_geometry(C):
    A = C.A
    A("s_lshr_b32 s44, s48, 1")
    A("s_lshl_b32 s44, s44, 3")
    A("s_and_b32 s45, s49, 7")
    A("s_add_u32 s44, s44, s45")
    A("s_and_b32 s45, s48, 1")
    A("s_lshl_b32 s45, s45, 2")
    A("s_lshr_b32 s46, s49, 3")
    A("s_add_u32 s45, s45, s46")
    A("s_mul_i32 s46, s3, 14")
    A("s_mul_i32 s47, s46, 40960")
    A("s_mul_i32 s51, s45, 5120")
    A("s_add_u32 s47, s47, s51")
    A("v_lshlrev_b32 v246, 4, v1")
    A("v_add_u32 v246, s47, v246")
    A("v_add_u32 v247, 4096, v246")

NST = 14
def wfrag(st, p):
    k = st*5 + p
    if k < 64: return ("a", 4*k)
    return ("v", 152 + 4*(k-64))
def w2_ops(C, SRD=32):
    A = C.A; ops = []
    for st in range(NST):
        def setup(st=st):
            A(f"s_mov_b32 s51, {st*40960}")
        ops.append(setup)
        for p in range(5):
            def ld(st=st, p=p):
                k, r = wfrag(st, p)
                if p < 4: A(f"buffer_load_dwordx4 {k}[{r}:{r+3}], v246, s[{SRD}:{SRD+3}], s51 offen offset:{1024*p}")
                else: A(f"buffer_load_dwordx4 {k}[{r}:{r+3}], v247, s[{SRD}:{SRD+3}], s51 offen")
                C.vm.issue(("W2", st))
            ops.append(ld)
    return ops

def phase_d(C):
    A = C.A; vm = C.vm
    ACC, AR, BR = 8, 120, 152
    VL, VB = 232, 237
    e_geometry(C)
    srd(A, 32, 4, WS_W2, SZ_W2P)
    w2 = w2_ops(C)
    NPRE = int(OPT.get("w2pre", 36))
    for _ in range(NPRE): w2.pop(0)()
    A("s_lshl_b32 s20, s40, 3")
    A("s_lshl_b32 s21, s3, 1")
    A("s_add_u32 s20, s20, s21")
    A("v_lshlrev_b32 v4, 4, v1")
    A("s_mul_i32 s21, s20, 20480")
    A(f"v_add_u32 v{VB}, s21, v4")
    A(f"v_add_u32 v{VB+1}, 20480, v{VB}")
    for b in range(NS):
        A(f"v_add_u32 v{VL+b}, {b*SLOT}, v4") if b else A(f"v_mov_b32 v{VL}, v4")
    hh_setup(C)
    srd(A, 16, 4, WS_H2P, SZ_H2P)
    srd(A, 24, 4, WS_HH, SZ_HH)
    bstate = {}
    BACC = 236
    def b_regs(t): return range(BR + (t % RB)*8, BR + (t % RB)*8 + 8)
    def b_ops(t):
        ops = []
        if t % 4 == 0:
            ops.append(lambda t=t: A(f"s_movk_i32 s22, {t*1024}"))
        for rt in range(2):
            def f(t=t, rt=rt):
                if t >= RB: assert bstate.get(t-RB), ("B ring WAR", t)
                r = BR + (t % RB)*8 + 4*rt
                A(f"buffer_load_dwordx4 v[{r}:{r+3}], v{VB+rt}, s[16:19], s22 offen offset:{(t%4)*1024} {LSC}")
                vm.issue(("B", t))
            ops.append(f)
        return ops
    def b_reload(ts):
        def f():
            for t in ts:
                A(f"s_movk_i32 s54, {t*1024}")
                for rt in range(2):
                    r = BR + (t % RB)*8 + 4*rt
                    A(f"buffer_load_dwordx4 v[{r}:{r+3}], v{VB+rt}, s[16:19], s54 offen {LSC}")
        return f
    NB0 = 8
    NPOLL = 3
    def b_loads():
        b_reload(range(NPOLL))()
    def b_test():
        fill_test(A, [r for t in range(NPOLL) for r in b_regs(t)], BACC)
    retry_loop(C, b_loads, b_test)
    cnt(A, 3)
    A("s_barrier")
    stamp(A, 21)
    A("s_movk_i32 s22, 0")
    for t in range(NPOLL, NB0):
        for f in b_ops(t): f()
    def x2_store(i):
        A(f"buffer_store_dwordx4 v[{216+4*i}:{219+4*i}], v{253 if i == 2 else 252}, s[28:31], 0 offen offset:{512*i} {SC}"); vm.issue("st")
    A("s_waitcnt lgkmcnt(0)")
    for i in range(3): x2_store(i)
    NF = 280; NSL = 10
    pending = []
    hhf = hhfill_ops(C)
    def lds_read(n):
        t, i = divmod(n, 14)
        s_ = t >> 1
        r = AR + (n % RA)*4
        A(f"ds_read_b128 v[{r}:{r+3}], v{VL + s_ % NS} offset:{((t & 1)*14 + i)*1024}")
    left = 77 - NPRE
    W2_SCHED = {}
    for s_, cap in ((5, 5), (6, 5), (7, 5), (8, 13), (9, 13)):
        k = min(cap, left); W2_SCHED[s_] = k; left -= k
    def enter_slot(s_):
        if s_ >= NS: vm.wait([("W", s_)])
        A("s_barrier")
        if s_ >= 2 and s_ + NS - 2 < NSL:
            pending.extend(w13_ops(C, s_ + NS - 2))
        for _ in range(W2_SCHED.get(s_, 0)): pending.append(w2.pop(0))
        if s_ in (2, 3):
            for _ in range(5 if s_ == 2 else 4): pending.append(hhf.pop(0))
        if s_ == 7: flag_store(C, FX, 4, 5)
    def filler(k=1):
        for _ in range(k):
            if pending: pending.pop(0)()
    for t in range(NB0, RB): pending.extend(b_ops(t))
    for n in range(D_LA): lds_read(n)
    A(f"s_waitcnt lgkmcnt({D_LA-1})")
    for n in range(NF):
        t, i = divmod(n, 14)
        if i == 0 and NPOLL <= t + 1 < 20:
            vm.wait([("B", t+1)])
            pending[0:0] = check_ops(C, b_reload([t+1]), b_regs(t+1), BACC)
        a = AR + (n % RA)*4
        def mm(rt):
            c = ACC + (i*2 + rt)*4
            b = BR + (t % RB)*8 + 4*rt
            src = "0" if t == 0 else f"v[{c}:{c+3}]"
            A(f"v_mfma_f32_16x16x32_bf16 v[{c}:{c+3}], v[{a}:{a+3}], v[{b}:{b+3}], {src}")
        mm(0)
        nn = n + D_LA
        if nn < NF:
            if nn % 28 == 0: enter_slot(nn // 28)
            lds_read(nn)
        filler(1)
        mm(1)
        if i == 13:
            bstate[t] = True
            if t + RB < 20: pending.extend(b_ops(t + RB))
        if n + 1 < NF:
            rem = min(NF - 1 - (n+1), D_LA - 1)
            A(f"s_waitcnt lgkmcnt({rem})")
        filler(1)
    stamp(A, 22)
    rest = pending + w2
    A("s_mul_i32 s21, s20, 55296")
    A("v_lshlrev_b32 v4, 4, v1")
    A(f"v_add_u32 v{VB}, s21, v4")
    A(f"v_add_u32 v{VB+1}, 55296, v{VB}")
    A("s_lshr_b32 s22, s41, 1")
    A("s_lshl_b32 s22, s22, 10")
    for f in rest: f()
    A("s_lshr_b32 s21, s44, 1")
    A("s_lshr_b32 s50, s21, 3")
    A("s_and_b32 s21, s21, 7")
    A("s_lshl_b32 s21, s21, 3")
    A("s_add_u32 s21, s21, s50")
    A("v_and_b32 v252, 3, v1")
    A("v_lshlrev_b32 v252, 6, v252")
    A("v_bfe_u32 v253, v1, 2, 2")
    A("v_lshl_add_u32 v252, v253, 1, v252")
    A("v_add_u32 v252, s21, v252")
    A("s_and_b32 s21, s44, 3")
    A("s_lshl_b32 s21, s21, 6")
    A("s_lshr_b32 s50, s44, 2")
    A("s_add_u32 s21, s21, s50")
    A("v_and_b32 v253, 7, v1")
    A("v_lshl_add_u32 v253, v253, 3, s21")
    A("v_cmp_gt_u32 vcc, 16, v1")
    A("v_cndmask_b32 v252, v253, v252, vcc")
    A(f"v_add_u32 v252, {FX >> FSH}, v252")
    A(f"v_lshlrev_b32 v252, {FSH}, v252")
    def fx_ld(): A(f"buffer_load_dword v253, v252, s[12:15], 0 offen {LSC}")
    fx_ld(); vm.issue("fx")
    T = 120
    NL = flit(-math.log2(math.e))
    A(f"v_mov_b32 v6, {NL}")
    def swiglu(ft, rt, dst):
        g = ACC + ((2*ft)*2 + rt)*4
        u = ACC + ((2*ft+1)*2 + rt)*4
        t = T + 4*rt
        for r in (0, 2): A(f"v_pk_mul_f32 {pr(t+r)}, {pr(g+r)}, {pr(6)} op_sel_hi:[1,0]")
        for r in range(4): A(f"v_exp_f32 v{t+r}, v{t+r}")
        for r in (0, 2): A(f"v_pk_mul_f32 {pr(g+r)}, {pr(g+r)}, {pr(u+r)}")
        for r in (0, 2): A(f"v_pk_add_f32 {pr(t+r)}, {pr(t+r)}, 1.0 op_sel_hi:[1,0]")
        for r in range(4): A(f"v_rcp_f32 v{t+r}, v{t+r}")
        for r in (0, 2): A(f"v_pk_mul_f32 {pr(g+r)}, {pr(g+r)}, {pr(t+r)}")
        A(f"v_cvt_pk_bf16_f32 v{dst}, v{g}, v{g+1}")
        A(f"v_cvt_pk_bf16_f32 v{dst+1}, v{g+2}, v{g+3}")
    Lodd, Ldone = C.lab("d_odd"), C.lab("d_done")
    A("v_lshlrev_b32 v4, 3, v1")
    A(f"v_sub_u32 v4, v{VB}, v4")
    A("v_add_u32 v5, 55296, v4")
    A("s_cmp_eq_u32 s41, 105")
    A(f"s_cselect_b32 s23, {hex(OOB)}, s22")
    A("s_bitcmp1_b32 s41, 0")
    A(f"s_cbranch_scc1 {Lodd}")
    OUTR = 128
    def variant(odd):
        groups = ([(0,)] + [(1,2),(3,4),(5,6)]) if odd else ([(0,1),(2,3),(4,5)] + [(6,)])
        for gi, grp in enumerate(groups):
            for rt in range(2):
                o = OUTR + 4*((2*gi + rt) % 4)
                if len(grp) == 2:
                    swiglu(grp[0], rt, o); swiglu(grp[1], rt, o+2)
                    so = "s23" if (odd and gi >= 2) else "s22"
                    A(f"buffer_store_dwordx4 v[{o}:{o+3}], v{VB+rt}, s[24:27], {so} offen offset:{1024*gi} {SC}")
                else:
                    swiglu(grp[0], rt, o)
                    A(f"buffer_store_dwordx2 v[{o}:{o+1}], v{4+rt}, s[24:27], s22 offen offset:{1024*gi + (512 if odd else 0)} {SC}")
    variant(False)
    A(f"s_branch {Ldone}")
    A(f"{Lodd}:")
    variant(True)
    A(f"{Ldone}:")
    A("s_waitcnt vmcnt(8)")
    Lfx = C.lab("fx")
    A(f"v_cmp_ne_u32 vcc, s{STAG}, v253")
    A(f"s_cbranch_vccnz {Lfx}")
    A(f"{Lfx}_b:")
    def tail():
        A(f"{Lfx}:")
        retry_loop(C, fx_ld, lambda: A(f"v_cmp_ne_u32 vcc, s{STAG}, v253"))
        A(f"s_branch {Lfx}_b")
    C.tail.append(tail)
    vm.q = []
    stamp(A, 23)

def phase_e(C):
    A = C.A; vm = C.vm
    ACC = 8
    RING = [88, 104, 120, 136, 176, 192, 208, 224]
    VH = 240
    VH2 = 248
    A("v_lshlrev_b32 v2, 4, v1")
    A("s_lshl_b32 s20, s44, 2")
    A("s_lshl_b32 s21, s46, 10")
    for q in range(4):
        A(f"s_add_u32 s22, s3, {q}")
        A("s_and_b32 s22, s22, 3")
        A("s_add_u32 s22, s22, s20")
        A("s_mul_i32 s22, s22, 55296")
        A("s_add_u32 s22, s22, s21")
        A(f"v_add_u32 v{VH+q}, s22, v2")
        A(f"v_lshl_add_u32 v{VH2+q}, v1, 3, s22")
    A("s_cmp_eq_u32 s3, 3")
    A(f"s_mov_b32 s47, {12*1024}")
    A(f"s_cselect_b32 s47, {hex(OOB)}, s47")
    srd(A, 16, 4, WS_HH, SZ_HH)
    srd(A, 24, 4, WS_X2, SZ_X)
    srd(A, 28, 4, WS_MOD, SZ_MOD)
    srd(A, 36, 8, 0, SZ_X)
    A("v_and_b32 v3, 15, v1")
    A("s_lshl_b32 s21, s44, 6")
    A("s_lshl_b32 s22, s3, 4")
    A("s_add_u32 s21, s21, s22")
    A("v_add_u32 v3, s21, v3")
    A("v_lshrrev_b32 v4, 8, v3")
    A("v_bfe_u32 v5, v3, 3, 3")
    A("v_lshl_add_u32 v4, v4, 3, v5")
    A("v_bfe_u32 v5, v3, 6, 2")
    A("v_and_b32 v6, 7, v3")
    A("v_lshl_add_u32 v5, v5, 3, v6")
    A("v_lshl_add_u32 v4, v5, 6, v4")
    A("v_mul_u32_u24 v244, 1280, v4")
    A("v_lshrrev_b32 v5, 4, v1")
    A("s_mul_i32 s21, s45, 160")
    A("v_lshl_add_u32 v244, v5, 3, v244")
    A("v_add_u32 v244, s21, v244")
    A("s_mul_i32 s21, s45, 320")
    A(f"s_add_u32 s21, s21, {5*2560}")
    A("v_lshlrev_b32 v245, 4, v5")
    A("v_add_u32 v245, s21, v245")
    HACC = 252
    def h_regs(st): return range(RING[st % 8], RING[st % 8] + 16)
    def h_reload(sts):
        def f():
            for st in sts:
                if st >= 12: A("s_mov_b32 s54, s47"); off = (st - 12)*1024
                else: A(f"s_movk_i32 s54, {st*1024}"); off = 0
                for q in range(4):
                    r = RING[st % 8] + 4*q
                    if st % 7 == 3:
                        for z in range(2):
                            A(f"buffer_load_dwordx2 v[{r+2*z}:{r+2*z+1}], v{VH2+q}, s[16:19], s54 offen offset:{off + 512*z} {LSC}")
                    else:
                        A(f"buffer_load_dwordx4 v[{r}:{r+3}], v{VH+q}, s[16:19], s54 offen offset:{off} {LSC}")
        return f
    def h_ops(st):
        ops = []
        if st % 4 == 0:
            ops.append((lambda st=st: A(f"s_movk_i32 s22, {st*1024}")) if st < 12 else (lambda: A("s_mov_b32 s22, s47")))
        for q in range(4):
            r = RING[st % 8] + 4*q
            if st % 7 == 3:
                for z in range(2):
                    def f(q=q, st=st, r=r, z=z):
                        A(f"buffer_load_dwordx2 v[{r+2*z}:{r+2*z+1}], v{VH2+q}, s[16:19], s22 offen offset:{(st%4)*1024 + 512*z} {LSC}")
                        vm.issue(("H", st))
                    ops.append(f)
            else:
                def f(q=q, st=st, r=r):
                    A(f"buffer_load_dwordx4 v[{r}:{r+3}], v{VH+q}, s[16:19], s22 offen offset:{(st%4)*1024} {LSC}")
                    vm.issue(("H", st))
                ops.append(f)
        return ops
    NPOLL = 3
    def h_loads():
        h_reload(range(NPOLL))()
    def h_test():
        fill_test(A, [r for st in range(NPOLL) for r in h_regs(st)], HACC)
    retry_loop(C, h_loads, h_test)
    cnt(A, 4)
    A("s_barrier")
    A("s_movk_i32 s22, 0")
    for st in range(NPOLL, 8):
        for f in h_ops(st): f()
    pending = []
    for st in range(NST):
        if NPOLL <= st + 1 < NST:
            vm.wait([("H", st+1)])
            pending[0:0] = check_ops(C, h_reload([st+1]), h_regs(st+1), HACC)
        k = 0
        for p in range(5):
            for q in range(4):
                c = ACC + (q*5+p)*4
                src = "0" if st == 0 else f"v[{c}:{c+3}]"
                wk, wr = wfrag(st, p)
                h = RING[st % 8] + 4*q
                A(f"v_mfma_f32_16x16x32_bf16 v[{c}:{c+3}], {wk}[{wr}:{wr+3}], v[{h}:{h+3}], {src}")
                k += 1
                if pending: pending.pop(0)()
        while pending: pending.pop(0)()
        if st + 8 < NST: pending.extend(h_ops(st + 8))
        if st == 7:
            def xg():
                for p in range(5):
                    A(f"buffer_load_dwordx2 {pr(208+2*p)}, v244, s[24:27], 0 offen offset:{32*p} {LSC}")
                    vm.issue("XG")
                    A(f"buffer_load_dwordx4 v[{220+4*p}:{223+4*p}], v245, s[28:31], 0 offen offset:{64*p} {LSC}")
                    vm.issue("XG")
            pending.append(xg)
    while pending: pending.pop(0)()
    X, G = 208, 220
    A("v_lshlrev_b32 v2, 4, v1")
    for q in range(1, 4):
        A(f"s_add_u32 s21, s3, {q}")
        A("s_and_b32 s21, s21, 3")
        A("s_mul_i32 s21, s21, 15360")
        A(f"s_add_u32 s21, s21, {(q-1)*5120}")
        A(f"v_add_u32 v6, s21, v2")
        for p in range(5):
            c = ACC + (q*5+p)*4
            A(f"ds_write_b128 v6, v[{c}:{c+3}] offset:{p*1024}")
    A("s_mul_i32 s21, s3, 15360")
    A("v_add_u32 v6, s21, v2")
    A("s_waitcnt lgkmcnt(0)")
    A("s_barrier")
    R = 88
    for k in range(3):
        for p in range(5):
            r = R + k*20 + 4*p
            A(f"ds_read_b128 v[{r}:{r+3}], v6 offset:{k*5120 + p*1024}")
    for k in range(3):
        A(f"s_waitcnt lgkmcnt({5*(2-k)})")
        for r in range(0, 20, 2):
            A(f"v_pk_add_f32 {pr(ACC+r)}, {pr(ACC+r)}, {pr(R+k*20+r)}")
    vm.wait(["XG"])
    for p in range(5):
        for z in range(2):
            A(f"v_lshlrev_b32 v4, 16, v{X+2*p+z}")
            A(f"v_and_b32 v5, 0xffff0000, v{X+2*p+z}")
            A(f"v_pk_fma_f32 {pr(4)}, {pr(G+4*p+2*z)}, {pr(ACC+4*p+2*z)}, {pr(4)}")
            A(f"v_cvt_pk_bf16_f32 v{88+2*p+z}, v4, v5")
        A(f"buffer_store_dwordx2 {pr(88+2*p)}, v244, s[36:39], 0 offen offset:{32*p} {OPT.get('osc','').replace('+',' ')}")
    L = C.lab("ep")
    A("s_or_b32 s50, s2, s3")
    A("s_cmp_lg_u32 s50, 0")
    A(f"s_cbranch_scc1 {L}")
    srd(A, 16, 4, WS_EPOCH, 128)
    A("v_mov_b32 v4, 0")
    A(f"v_mov_b32 v5, s{STAG}")
    A("s_mov_b64 exec, 1")
    A(f"buffer_store_dword v5, v4, s[16:19], 0 offen {SC}")
    A("s_mov_b64 exec, -1")
    A(f"{L}:")

def fused(name=MAIN):
    K = Kern(name, 256, LDS_TOTAL, vgpr=256, agpr=256)
    A = K.A
    C = Ctx(A)
    phase0(C)
    phase_a(C)
    phase_b(C)
    phase_c(C)
    phase_d(C)
    phase_e(C)
    A("all_end:")
    A("s_endpgm")
    for f in C.tail: f()
    A("code_end:")
    return K
```

```python
import os, math
from gen_common import *
from gen_k5 import VM
from gen_k2 import layernorm, unpack_bf16, PITCH2

MAIN = "adaLN_cond__spectral_gfnet__glu_gated_swiglu__prompt_kernel"
OPT = dict(kv.split("=") for kv in os.environ.get("OPT", "").split(",") if kv)
SC = OPT.get("sc", "sc0+sc1").replace("+", " ")
LSC = "sc1"
WS_EPOCH = 0x80000
WS_FLG = 0xB0000
FA, FW, FP, FH1, FH2, FX = [0x8000*i for i in range(6)]
FSH = int(OPT.get("fsh", 5))
SZ_FLG = 6*0x8000
WS_MODG = 0xA0000
NB_WG = 161
BLK = 10368
SZ_Y1N = 256*BLK
TAGSTEP = 0x9E3779B9
RETRY_LIMIT = int(OPT.get("rl", 30000))
STAG = 55

ESTAMP = OPT.get("est") == "1"
_stamp = stamp
def stamp(A, i):
    if ESTAMP and i in (0, 1, 2, 3, 5): return
    if OPT.get("est") in ("2", "3") and i < 20: return
    if OPT.get("est") == "9": return
    _stamp(A, i)
def estamp(A, i):
    if ESTAMP: _stamp(A, i)
def fk(x): return hex(f32bits(float(x)))
def pr(r): return f"v[{r}:{r+1}]"
def mf32(A, d, a, b, first):
    c = "0" if first else f"v[{d}:{d+15}]"
    A(f"v_mfma_f32_32x32x16_bf16 v[{d}:{d+15}], v[{a}:{a+3}], v[{b}:{b+3}], {c}")
def csel(A, d, a, b):
    A(f"s_mov_b32 {d}, {b}")
    A(f"s_cselect_b32 {d}, {a}, {d}")

class Ctx:
    def __init__(self, A):
        self.A = A; self.vm = VM(A); self.n = 0; self.tail = []
    def lab(self, p):
        self.n += 1; return f"{p}_{self.n}"

def max_ops(A, regs, acc):
    regs = list(regs); ops = []
    ops.append(lambda r=regs[:3]: A(f"v_max3_u32 v{acc}, v{r[0]}, v{r[1]}, v{r[2]}"))
    rest = regs[3:]
    while rest:
        if len(rest) >= 2:
            ops.append(lambda r=rest[:2]: A(f"v_max3_u32 v{acc}, v{acc}, v{r[0]}, v{r[1]}")); rest = rest[2:]
        else:
            ops.append(lambda r=rest[0]: A(f"v_max_u32 v{acc}, v{acc}, v{r}")); rest = []
    return ops
def fill_test(A, regs, acc):
    for f in max_ops(A, regs, acc): f()
    A(f"v_cmp_eq_u32 vcc, -1, v{acc}")
def retry_loop(C, loads, test, scnt=53, spec=None, tags=()):
    A = C.A; L = C.lab("rt")
    A(f"s_mov_b32 s{scnt}, 0")
    A(f"{L}:")
    loads()
    if spec: spec()
    A(f"s_add_u32 s{scnt}, s{scnt}, 1")
    A(f"s_waitcnt vmcnt({len(tags)})")
    test()
    A(f"s_cmp_ge_u32 s{scnt}, {RETRY_LIMIT}")
    A(f"s_cbranch_scc1 {L}_x")
    A(f"s_cbranch_vccnz {L}")
    A(f"{L}_x:")
    C.vm.q = []
    for t in tags: C.vm.issue(t)
def poll2(C, loads, tests, nops, use, scnt=53):
    A = C.A; L = C.lab("p2")
    A(f"s_mov_b32 s{scnt}, 0")
    A(f"{L}:")
    for k in range(2):
        A(f"s_waitcnt vmcnt({nops})")
        tests[k]()
        A(f"s_cbranch_vccz {L}_{k}")
        loads[k]()
    A(f"s_add_u32 s{scnt}, s{scnt}, 1")
    A(f"s_cmp_lt_u32 s{scnt}, {RETRY_LIMIT}")
    A(f"s_cbranch_scc1 {L}")
    A(f"s_waitcnt vmcnt({nops})")
    A(f"{L}_0:")
    use(0)
    A(f"s_branch {L}_e")
    A(f"{L}_1:")
    use(1)
    A(f"{L}_e:")
    C.vm.q = ["stale"]*nops
def check_ops(C, loads, regs, acc):
    A = C.A; L = C.lab("fx")
    ops = max_ops(A, regs, acc)
    ops.append(lambda: A(f"v_cmp_eq_u32 vcc, -1, v{acc}"))
    def br():
        A(f"s_cbranch_vccnz {L}")
        A(f"{L}_b:")
    ops.append(br)
    def tail():
        A(f"{L}:")
        q = C.vm.q
        retry_loop(C, loads, lambda: fill_test(A, regs, acc))
        C.vm.q = q
        A(f"s_branch {L}_b")
    C.tail.append(tail)
    return ops
def flag_store(C, off, va=4, vb=5):
    A = C.A; L = C.lab("fl")
    A("s_cmp_lg_u32 s3, 0")
    A(f"s_cbranch_scc1 {L}")
    A(f"s_lshl_b32 s50, s2, {FSH}")
    A(f"s_add_u32 s50, s50, {off}")
    A(f"v_mov_b32 v{va}, s50")
    A(f"v_mov_b32 v{vb}, s{STAG}")
    A("s_mov_b64 exec, 1")
    A(f"buffer_store_dword v{vb}, v{va}, s[12:15], 0 offen {SC}")
    A("s_mov_b64 exec, -1")
    A(f"{L}:")

L_ROWS = 0
L_TR = 8*PITCH2
L_MODP = L_TR + 16384
L_MODV = L_MODP + 1024
L_WT = L_MODV + 5120
L_PREP = 45056
L_YST = L_PREP + 32768
assert L_WT + 4*2816 <= L_PREP and L_YST + 16384 <= 114688

def prep_params(C, unit, B):
    A = C.A
    g, pitch, so, do, ts, ga, ja, a, b, c = [f"s{B+i}" for i in range(10)]
    A(f"s_sub_u32 {a}, s2, {NB_WG}")
    A(f"s_lshl_b32 {a}, {a}, 2")
    A(f"s_add_u32 {a}, {a}, s3")
    if unit: A(f"s_add_u32 {a}, {a}, {unit*4*(256 - NB_WG)}")
    A(f"s_cmp_ge_u32 {a}, 540")
    A(f"s_cselect_b32 {g}, 1, 0")
    A(f"s_cmp_ge_u32 {a}, 1080")
    A(f"s_cselect_b32 {g}, 2, {g}")
    A(f"s_mul_i32 {b}, {g}, 540")
    A(f"s_sub_u32 {b}, {a}, {b}")
    A(f"s_cmp_eq_u32 {g}, 2")
    csel(A, pitch, "1280", "3456")
    csel(A, ts, "1024", "2048")
    csel(A, ga, "4", "8")
    csel(A, ja, "16", "4")
    csel(A, c, "6554", "2428")
    csel(A, so, "10", "27")
    csel(A, do, "40960", "221184")
    A(f"s_mul_i32 {c}, {c}, {b}")
    A(f"s_lshr_b32 {c}, {c}, 16")
    A(f"s_mul_i32 {so}, {so}, {c}")
    A(f"s_sub_u32 {b}, {b}, {so}")
    A(f"s_mul_i32 {do}, {do}, {c}")
    A(f"s_mul_i32 {so}, {c}, {pitch}")
    A(f"s_lshl_b32 {so}, {so}, 5")
    A(f"s_lshl_b32 {c}, {b}, 7")
    A(f"s_add_u32 {so}, {so}, {c}")
    A(f"s_cmp_eq_u32 {g}, 2")
    csel(A, c, "4096", "8192")
    A(f"s_mul_i32 {c}, {c}, {b}")
    A(f"s_add_u32 {do}, {do}, {c}")
    A(f"s_cmp_eq_u32 {g}, 1")
    A(f"s_cselect_b32 {c}, 1024, 0")
    A(f"s_add_u32 {do}, {do}, {c}")
    A(f"s_cmp_lt_u32 {a}, 1620")
    A(f"s_cselect_b32 {so}, {so}, {hex(OOB)}")
    A(f"s_cselect_b32 {do}, {do}, {hex(OOB)}")

def a_consts(C, pf):
    A = C.A
    hf = 19
    A("v_cvt_f32_u32 v7, v2")
    A(f"v_cvt_f32_u32 v{hf}, v3")
    A(f"v_mul_f32 v212, {flit(1/32)}, v7")
    A(f"v_mul_f32 v213, v212, v{hf}")
    A(f"v_mul_f32 v213, {flit(8.0)}, v213")
    for mh in range(2):
        for p in range(4):
            for z in range(2):
                A(f"v_fmamk_f32 v214, v212, {fk(16*mh+2*p+z)}, v213")
                A(f"v_cos_f32 v{60+z}, v214")
                A(f"v_sin_f32 v{62+z}, -v214")
            A(f"v_cvt_pk_bf16_f32 v{80+4*mh+p}, v60, v61")
            A(f"v_cvt_pk_bf16_f32 v{88+4*mh+p}, v62, v63")
            pf()
    A(f"v_mul_f32 v212, {flit(1/640)}, v7")
    A(f"v_mul_f32 v213, v212, v{hf}")
    A("v_mul_f32 v213, 4.0, v213")
    for r in range(12):
        A(f"v_fmamk_f32 v214, v212, {fk(8*(r//4)+r%4)}, v213")
        A(f"v_cos_f32 v{96+r}, v214")
        A(f"v_sin_f32 v{108+r}, v214")
        if r & 1: pf()
    A("v_and_b32 v60, 15, v2")
    A("v_cvt_f32_u32 v60, v60")
    A("v_lshrrev_b32 v61, 4, v2")
    A("v_cvt_f32_u32 v61, v61")
    A(f"v_mul_f32 v212, {flit(1/20)}, v60")
    A(f"v_mul_f32 v213, v212, v{hf}")
    A("v_mul_f32 v213, 4.0, v213")
    A(f"v_fmamk_f32 v213, v61, {fk(0.25)}, v213")
    A(f"v_add_f32 v215, {flit(-0.25)}, v213")
    def cpair(dst, consts, bases):
        for z in range(2):
            A(f"v_fmamk_f32 v214, v212, {fk(consts[z])}, v{bases[z]}")
            A(f"v_cos_f32 v{62+z}, v214")
        A(f"v_cvt_pk_bf16_f32 v{dst}, v62, v63")
    for p in range(4):
        d = [8*((2*p+z) >> 2) + ((2*p+z) & 3) for z in range(2)]
        cpair(120+p, d, [213, 213]); pf()
        cpair(124+p, d, [215, 215]); pf()
    for p in range(2):
        d = [16+2*p, 17+2*p]
        cpair(128+p, d, [213, 213]); pf()
        cpair(130+p, d, [215, 215]); pf()
    A("v_cmp_eq_u32 vcc, 0, v3")
    for p in range(4):
        A(f"v_cndmask_b32 v{128+p}, 0, v{128+p}, vcc")

N_FILLER = 16

def phase0(C):
    A = C.A; vm = C.vm
    A("s_cmp_ge_u32 s2, 256")
    A("s_cbranch_scc1 all_end")
    if OPT.get("cpf", "2") == "2":
        L = C.lab("cpf")
        A("s_getpc_b64 s[26:27]")
        A(f"{L}_pc:")
        A("s_bfe_u32 s50, s2, 0x30003")
        A("s_lshl_b32 s50, s50, 12")
        A("v_lshl_add_u32 v4, v0, 4, s50")
        A("s_bfe_u32 s50, s2, 0x20003")
        A("s_lshl_b32 s50, s50, 12")
        A("s_add_u32 s50, s50, 0x8000")
        A("v_lshl_add_u32 v6, v0, 4, s50")
        A(f"s_sub_u32 s26, s26, {L}_pc-{MAIN}")
        A("s_subb_u32 s27, s27, 0")
        A(f"v_min_u32 v6, code_end-{MAIN}-16, v6")
        A("global_load_dwordx4 v[248:251], v4, s[26:27]")
        A("global_load_dwordx4 v[252:255], v6, s[26:27]")
    A("s_load_dwordx2 s[4:5], s[0:1], 88")
    A("s_load_dwordx4 s[28:31], s[0:1], 56")
    A("s_load_dwordx2 s[6:7], s[0:1], 0")
    A("s_load_dwordx4 s[16:19], s[0:1], 8")
    A("s_load_dwordx4 s[20:23], s[0:1], 32")
    A("s_load_dwordx2 s[24:25], s[0:1], 48")
    A("s_load_dwordx2 s[8:9], s[0:1], 72")
    A("v_and_b32 v1, 63, v0")
    A("v_and_b32 v2, 31, v0")
    A("v_lshrrev_b32 v3, 5, v1")
    A("v_lshrrev_b32 v4, 6, v0")
    A("v_readfirstlane_b32 s3, v4")
    A("s_and_b32 s48, s2, 7")
    A("s_lshr_b32 s49, s2, 3")
    A("s_mul_i32 s26, s48, 10")
    A("s_add_u32 s26, s26, s49")
    A("s_mul_i32 s27, s48, 20")
    A("s_add_u32 s27, s27, s49")
    A("s_add_u32 s27, s27, 70")
    A("s_cmp_lt_u32 s49, 10")
    A("s_cselect_b32 s54, s26, s27")
    A("s_lshl_b32 s26, s54, 5")
    A("s_cmp_lt_u32 s49, 30")
    A(f"s_cselect_b32 s26, s26, {hex(OOB)}")
    A("v_lshrrev_b32 v4, 1, v0")
    A("v_and_b32 v5, 1, v0")
    A("v_mul_u32_u24 v56, 7680, v4")
    A("v_lshl_add_u32 v56, v5, 4, v56")
    A("v_add_u32 v56, s26, v56")
    A("v_lshlrev_b32 v57, 1, v4")
    A("s_lshl_b32 s80, s48, 3")
    A("s_and_b32 s26, s49, 7")
    A("s_add_u32 s80, s80, s26")
    A("s_lshr_b32 s26, s2, 7")
    A("s_lshl_b32 s26, s26, 4")
    A("s_bfe_u32 s27, s2, 0x10006")
    A("s_lshl_b32 s27, s27, 2")
    A("s_add_u32 s26, s26, s27")
    A("s_lshr_b32 s27, s3, 1")
    A("s_lshl_b32 s27, s27, 3")
    A("s_add_u32 s26, s26, s27")
    A("s_and_b32 s27, s3, 1")
    A("s_lshl_b32 s27, s27, 1")
    A("s_add_u32 s26, s26, s27")
    A("s_lshl_b32 s26, s26, 6")
    A("s_add_u32 s26, s26, s80")
    A("s_mul_i32 s26, s26, 1280")
    A("v_mul_u32_u24 v58, 81920, v3")
    A("v_lshl_add_u32 v58, v2, 3, v58")
    A("v_add_u32 v58, s26, v58")
    A("s_lshr_b32 s26, s2, 6")
    A("s_lshl_b32 s26, s26, 6")
    A("s_add_u32 s80, s80, s26")
    A(f"s_mul_i32 s80, s80, {BLK}")
    A("s_waitcnt lgkmcnt(0)")
    Lfill, Ljoin = C.lab("filler"), C.lab("p0join")
    A("s_cmp_ge_u32 s49, 30")
    A(f"s_cbranch_scc1 {Lfill}")
    srd(A, 32, 28, 0, 1280)
    srd(A, 36, 30, 0, 640*7680)
    for i in range(5):
        A(f"buffer_load_ushort v{20+i}, v57, s[32:35], 0 offen offset:{256*i}"); vm.issue("c")
    for i in range(5):
        if i: A(f"s_mov_b32 s26, {i*128*7680}")
        A(f"buffer_load_dwordx4 v[{28+4*i}:{31+4*i}], v56, s[36:39], {'s26' if i else '0'} offen"); vm.issue(("w", i))
    srd(A, 32, 6, 0, SZ_X)
    for i in range(5):
        A(f"buffer_load_dwordx2 v[{8+2*i}:{9+2*i}], v58, s[32:35], 0 offen offset:{256*i}"); vm.issue("x")
    stamp(A, 0)
    A(f"s_load_dword s{STAG}, s[4:5], {hex(WS_EPOCH)}")
    def wt_code():
        A("s_lshl_b32 s26, s49, 2")
        A("s_add_u32 s26, s26, s3")
        A("s_mul_i32 s27, s26, 4370")
        A("s_lshr_b32 s27, s27, 16")
        A("s_mul_i32 s50, s27, 15")
        A("s_sub_u32 s26, s26, s50")
        A("s_mul_i32 s26, s26, 22")
        A("s_min_u32 s26, s26, 299")
        A("s_lshl_b32 s50, s48, 3")
        A("s_add_u32 s27, s27, s50")
        A("s_lshr_b32 s50, s27, 2")
        A("s_and_b32 s27, s27, 3")
        A("v_and_b32 v4, 7, v1")
        A("v_bfe_u32 v5, v1, 3, 2")
        A("v_lshl_add_u32 v6, v5, 5, v4")
        A("s_lshl_b32 s51, s50, 7")
        A("s_lshl_b32 s52, s27, 3")
        A("s_add_u32 s51, s51, s52")
        A("v_add_u32 v6, s51, v6")
        A("v_mul_u32_u24 v228, 642, v6")
        A("v_mul_u32_u24 v7, 20, v3")
        A("v_add_u32 v228, v228, v7")
        A("s_lshl_b32 s51, s26, 1")
        A("s_cmp_lt_u32 s49, 30")
        A(f"s_cselect_b32 s51, s51, {hex(OOB)}")
        A("v_add_u32 v228, s51, v228")
        A("s_mul_i32 s51, s3, 2816")
        A(f"s_add_u32 s51, s51, {L_WT}")
        A("v_mul_u32_u24 v229, 1280, v3")
        A("v_lshl_add_u32 v229, v4, 4, v229")
        A("v_lshl_add_u32 v229, v5, 2, v229")
        A("v_add_u32 v229, s51, v229")
        A("v_lshl_add_u32 v230, v1, 4, s51")
        A("s_lshl_b32 s26, s26, 13")
        A("s_lshl_b32 s50, s50, 9")
        A("s_add_u32 s26, s26, s50")
        A("s_lshl_b32 s27, s27, 7")
        A("s_add_u32 s26, s26, s27")
        A("s_cmp_lt_u32 s49, 30")
        A(f"s_cselect_b32 s26, s26, {hex(OOB)}")
        A("v_lshrrev_b32 v5, 3, v1")
        A("v_lshlrev_b32 v231, 13, v5")
        A("v_lshl_add_u32 v231, v4, 4, v231")
        A("v_add_u32 v231, s26, v231")
        srd(A, 32, 16, 0, SZ_WF)
        srd(A, 36, 18, 0, SZ_WF)
        for m in range(2):
            A(f"buffer_load_dwordx4 v[{216+6*m}:{219+6*m}], v228, s[{32+4*m}:{35+4*m}], 0 offen"); vm.issue("wt")
            A(f"buffer_load_dwordx2 v[{220+6*m}:{221+6*m}], v228, s[{32+4*m}:{35+4*m}], 0 offen offset:16"); vm.issue("wt")
    wt_code()
    stamp(A, 1)
    A("s_waitcnt lgkmcnt(0)")
    A(f"s_add_u32 s{STAG}, s{STAG}, {hex(TAGSTEP)}")
    srd(A, 12, 4, WS_FLG, SZ_FLG)
    a_consts(C, lambda: None)
    stamp(A, 2)
    vm.wait(["c"])
    for i in range(5):
        r = 20+i
        A(f"v_lshlrev_b32 v{r}, 16, v{r}")
        A(f"v_mul_f32 v26, {flit(-math.log2(math.e))}, v{r}")
        A(f"v_exp_f32 v26, v26")
        A(f"v_add_f32 v26, 1.0, v26")
        A(f"v_rcp_f32 v26, v26")
        A(f"v_mul_f32 v{r}, v{r}, v26")
        bf16_round_v(A, r, r)
    for i in range(5):
        vm.wait([("w", i)])
        for q in range(4):
            w = 28+4*i+q
            A(f"v_lshlrev_b32 v26, 16, v{w}")
            A(f"v_and_b32 v27, 0xffff0000, v{w}")
            if i == 0:
                A(f"v_mul_f32 v{48+2*q}, v{20+i}, v26")
                A(f"v_mul_f32 v{49+2*q}, v{20+i}, v27")
            else:
                A(f"v_fmac_f32 v{48+2*q}, v{20+i}, v26")
                A(f"v_fmac_f32 v{49+2*q}, v{20+i}, v27")
    for ctl in ["quad_perm:[2,3,0,1]", "row_ror:4", "row_ror:8"]:
        for q in range(8):
            A(f"v_add_f32_dpp v{48+q}, v{48+q}, v{48+q} {ctl} row_mask:0xf bank_mask:0xf")
    A("v_lshrrev_b32 v5, 4, v0")
    A("v_lshlrev_b32 v5, 6, v5")
    A("v_and_b32 v6, 1, v0")
    A("v_lshl_add_u32 v5, v6, 5, v5")
    A("v_and_b32 v6, 14, v0")
    A("v_cmp_eq_u32 vcc, 0, v6")
    A("s_and_saveexec_b64 s[26:27], vcc")
    A(f"ds_write_b128 v5, v[48:51] offset:{L_MODP}")
    A(f"ds_write_b128 v5, v[52:55] offset:{L_MODP+16}")
    A("s_mov_b64 exec, s[26:27]")
    A("s_waitcnt lgkmcnt(0)")
    A("s_barrier")
    stamp(A, 3)
    L = C.lab("modfin")
    A("s_cmp_lg_u32 s3, 0")
    A(f"s_cbranch_scc1 {L}")
    A("v_and_b32 v6, 15, v0")
    A("v_lshrrev_b32 v5, 4, v0")
    A("v_lshlrev_b32 v5, 8, v5")
    A("v_lshl_add_u32 v5, v6, 2, v5")
    A(f"v_add_u32 v5, {L_MODP}, v5")
    A("ds_read2_b32 v[20:21], v5 offset0:0 offset1:16")
    A("ds_read2_b32 v[22:23], v5 offset0:32 offset1:48")
    A("s_waitcnt lgkmcnt(0)")
    A("v_add_f32 v20, v20, v21")
    A("v_add_f32 v22, v22, v23")
    A("v_add_f32 v20, v20, v22")
    for sw in ("v_permlane16_swap_b32", "v_permlane32_swap_b32"):
        A("v_mov_b32 v21, v20")
        A(f"{sw} v20, v21")
        A("v_add_f32 v20, v20, v21")
    bf16_round_v(A, 20, 20)
    A("s_cmp_ge_u32 s54, 160")
    A("s_cselect_b32 s26, 120, 0")
    A("s_sub_u32 s26, s54, s26")
    A("s_sub_u32 s26, s26, 40")
    A("v_add_f32 v21, 1.0, v20")
    bf16_round_v(A, 21, 21)
    A("s_cmp_lt_u32 s26, 40")
    A("s_cselect_b64 vcc, -1, 0")
    A("v_cndmask_b32 v20, v20, v21, vcc")
    A(f"v_mov_b32 v21, s{STAG}")
    A("s_lshl_b32 s26, s54, 7")
    A("s_cmp_lt_u32 s54, 80")
    A(f"s_cselect_b32 s26, s26, {hex(OOB)}")
    A("v_lshl_add_u32 v22, v6, 3, s26")
    A("s_lshl_b32 s26, s54, 6")
    A("s_cmp_ge_u32 s54, 80")
    A(f"s_cselect_b32 s26, s26, {hex(OOB)}")
    A("s_cmp_lt_u32 s49, 30")
    A(f"s_cselect_b32 s26, s26, {hex(OOB)}")
    A("v_lshl_add_u32 v23, v6, 2, s26")
    srd(A, 32, 4, WS_MODG, 80*128)
    srd(A, 36, 4, WS_MOD, SZ_MOD)
    A("s_mov_b64 exec, 0xffff")
    A(f"buffer_store_dwordx2 v[20:21], v22, s[32:35], 0 offen {SC}")
    A(f"buffer_store_dword v20, v23, s[36:39], 0 offen {SC}")
    A("s_mov_b64 exec, -1")
    A(f"{L}:")
    stamp(A, 4)
    vm.wait(["x"])
    unpack_bf16(A, 60, 8, 10)
    layernorm(A, 60, 20, 212, 213)
    stamp(A, 5)
    vm.wait(["wt"])
    for m in range(2):
        for cc in range(12):
            op = "ds_write_b16_d16_hi" if cc & 1 else "ds_write_b16"
            A(f"{op} v229, v{216+6*m+cc//2} offset:{cc*128 + 2*m}")
    A("s_waitcnt lgkmcnt(0)")
    for j in range(3):
        A(f"ds_read_b128 v[{216+4*j}:{219+4*j}], v230 offset:{1024*j}")
    A(f"v_add_u32 v229, {hex(OOB)}, v231")
    A("v_cmp_gt_u32 vcc, 48, v1")
    A("v_cndmask_b32 v229, v229, v231, vcc")
    for q in range(4): A(f"v_accvgpr_write_b32 a{12+q}, -1")
    A("s_waitcnt lgkmcnt(0)")
    A(f"s_branch {Ljoin}")
    A(f"{Lfill}:")
    q_main = vm.q; vm.q = []
    srd(A, 32, 6, 0, SZ_X)
    for i in range(5):
        A(f"buffer_load_dwordx2 v[{8+2*i}:{9+2*i}], v58, s[32:35], 0 offen offset:{256*i}"); vm.issue("x")
    stamp(A, 0)
    A(f"s_load_dword s{STAG}, s[4:5], {hex(WS_EPOCH)}")
    A(f"s_sub_u32 s26, s2, {256 - N_FILLER}")
    A("s_lshl_b32 s26, s26, 12")
    A("v_lshl_add_u32 v59, v0, 4, s26")
    for q in range(4): A(f"v_accvgpr_write_b32 a{12+q}, -1")
    srd(A, 40, 4, WS_Y1, SZ_Y1N)
    fills = []
    for sd, sz in ((40, SZ_Y1N),):
        for i in range(-(-sz // (N_FILLER*4096))):
            def f(sd=sd, i=i):
                A(f"s_mov_b32 s81, {i*N_FILLER*4096}")
                A(f"buffer_store_dwordx4 a[12:15], v59, s[{sd}:{sd+3}], s81 offen {SC}"); vm.issue("fill")
            fills.append(f)
    def pf(k=1):
        for _ in range(k):
            if fills: fills.pop(0)()
    pf(4)
    stamp(A, 1)
    A("s_waitcnt lgkmcnt(0)")
    A(f"s_add_u32 s{STAG}, s{STAG}, {hex(TAGSTEP)}")
    srd(A, 12, 4, WS_FLG, SZ_FLG)
    a_consts(C, pf)
    stamp(A, 2)
    vm.wait(["x"])
    unpack_bf16(A, 60, 8, 10)
    pf(2)
    layernorm(A, 60, 20, 212, 213)
    pf(99)
    A(f"v_mov_b32 v229, {hex(OOB)}")
    A(f"v_mov_b32 v231, {hex(OOB)}")
    stamp(A, 5)
    A("s_waitcnt vmcnt(0)")
    A("s_barrier")
    flag_store(C, FA)
    A(f"{Ljoin}:")
    vm.q = []
    stamp(A, 6)
    A("v_lshlrev_b32 v245, 4, v0")
    A("v_add_u32 v246, 8192, v245")
    A("v_add_u32 v247, 4096, v245")
    A("v_cmp_gt_u32 vcc, 128, v0")
    A("v_cndmask_b32 v246, v247, v246, vcc")
    A(f"v_and_b32 v247, {N_FILLER - 1}, v0")
    A(f"v_add_u32 v247, {256 - N_FILLER}, v247")
    A(f"v_lshlrev_b32 v247, {FSH}, v247")
    srd(A, 32, 4, WS_MODG, 80*128)
    A("s_movk_i32 s26, 4096")
    def mod_loads():
        A(f"buffer_load_dwordx4 v[232:235], v245, s[32:35], 0 offen {LSC}")
        A(f"buffer_load_dwordx4 v[236:239], v245, s[32:35], s26 offen {LSC}")
        A(f"buffer_load_dwordx4 v[240:243], v246, s[32:35], 0 offen {LSC}")
    def mod_test():
        A("v_min3_u32 v4, v233, v235, v237")
        A("v_max3_u32 v5, v233, v235, v237")
        A("v_min3_u32 v4, v4, v239, v241")
        A("v_max3_u32 v5, v5, v239, v241")
        A("v_min_u32 v4, v4, v243")
        A("v_max_u32 v5, v5, v243")
        A("v_cmp_ne_u32 vcc, v4, v5")
        A(f"v_cmp_ne_u32 s[50:51], s{STAG}, v5")
        A("s_or_b64 vcc, vcc, s[50:51]")
    retry_loop(C, mod_loads, mod_test)
    cnt(A, 0)
    A("v_lshrrev_b32 v4, 1, v245")
    A("v_lshrrev_b32 v5, 1, v246")
    A(f"v_add_u32 v4, {L_MODV}, v4")
    A(f"v_add_u32 v5, {L_MODV}, v5")
    A("v_add_u32 v6, 2048, v4")
    A("ds_write2_b32 v4, v232, v234 offset0:0 offset1:1")
    A("ds_write2_b32 v6, v236, v238 offset0:0 offset1:1")
    A("ds_write2_b32 v5, v240, v242 offset0:0 offset1:1")
    fa_ld(C); vm.issue("fa")
    srd(A, 28, 4, WS_WT, SZ_COL)
    def wt_store(j):
        if j: A(f"s_mov_b32 s81, {j*8*8192}")
        A(f"buffer_store_dwordx4 v[{216+4*j}:{219+4*j}], v{229 if j == 2 else 231}, s[28:31], {'s81' if j else '0'} offen {SC}"); vm.issue("wts")
    C.wt_ops = [lambda j=j: wt_store(j) for j in range(3)]
    if OPT.get("wts", "a") == "now":
        while C.wt_ops: C.wt_ops.pop(0)()
    if True:
        A("s_lshl_b32 s26, s2, 12")
        A("v_lshl_add_u32 v245, v0, 4, s26")
        for off, sz in ((WS_Z, SZ_COL),) + (((WS_H2P, SZ_H2P),) if OPT.get("h2f", "a2") == "a2" else ()):
            srd(A, 32, 4, off, sz)
            for i in range(3):
                if i: A(f"s_mov_b32 s26, {i << 20}")
                A(f"buffer_store_dwordx4 a[12:15], v245, s[32:35], {'s26' if i else '0'} offen {SC}"); vm.issue("wts")
    A("s_waitcnt lgkmcnt(0)")
    A("s_barrier")
    stamp(A, 7)

def fa_ld(C):
    C.A(f"buffer_load_dword v244, v247, s[12:15], 0 offen offset:{FA} {LSC}")
def flag_check(C, name, reg, ld):
    A = C.A; L = C.lab(name)
    A(f"v_cmp_ne_u32 vcc, s{STAG}, v{reg}")
    A(f"s_cbranch_vccnz {L}")
    A(f"{L}_b:")
    def tail():
        A(f"{L}:")
        q = C.vm.q
        retry_loop(C, ld, lambda: A(f"v_cmp_ne_u32 vcc, s{STAG}, v{reg}"))
        C.vm.q = q
        A(f"s_branch {L}_b")
    C.tail.append(tail)

def phase_a(C):
    A = C.A; vm = C.vm
    A(f"v_lshlrev_b32 v6, 4, v2")
    A(f"v_add_u32 v6, {L_MODV}, v6")
    for i in range(5):
        A(f"ds_read_b128 v[{20+4*i}:{23+4*i}], v6 offset:{2560 + 512*i}")
    for i in range(5):
        A(f"ds_read_b128 v[{40+4*i}:{43+4*i}], v6 offset:{512*i}")
    A(f"s_mul_i32 s26, s3, {2*PITCH2}")
    A(f"v_mul_u32_u24 v4, {PITCH2}, v3")
    A("v_lshl_add_u32 v4, v2, 3, v4")
    A("v_add_u32 v4, s26, v4")
    A("v_bfe_u32 v5, v1, 2, 2")
    A("v_lshl_add_u32 v5, v3, 3, v5")
    A("v_mul_u32_u24 v5, 40, v5")
    A("v_bfe_u32 v6, v1, 4, 1")
    A("v_lshl_add_u32 v5, v6, 5, v5")
    A("v_and_b32 v6, 3, v1")
    A("v_lshl_add_u32 v5, v6, 3, v5")
    A("v_add_u32 v5, s26, v5")
    for i in range(5):
        A(f"s_waitcnt lgkmcnt({9-i})")
        for k in (0, 2):
            q = 4*i+k
            A(f"v_pk_mul_f32 {pr(20+q)}, {pr(20+q)}, {pr(212)} op_sel_hi:[1,0]")
    for i in range(5):
        A(f"s_waitcnt lgkmcnt({4-i})")
        for k in (0, 2):
            q = 4*i+k
            A(f"v_pk_fma_f32 {pr(60+q)}, {pr(60+q)}, {pr(20+q)}, {pr(40+q)}")
        for k in (0, 1):
            q = 2*i+k
            A(f"v_cvt_pk_bf16_f32 v{8+q}, v{60+2*q}, v{61+2*q}")
        A(f"ds_write_b64 v4, v[{8+2*i}:{9+2*i}] offset:{256*i}")
    def wt1():
        if C.wt_ops: C.wt_ops.pop(0)()
    wt1()
    A("v_mov_b32 v18, 0")
    A("v_mov_b32 v19, 0")
    A("v_cmp_eq_u32 vcc, 0, v2")
    A("s_and_saveexec_b64 s[26:27], vcc")
    A("ds_write_b64 v4, v[18:19] offset:1280")
    A("s_mov_b64 exec, s[26:27]")
    A("s_waitcnt lgkmcnt(0)")
    for row in range(2):
        for mh in range(2):
            for j in range(2):
                d = 132 + 8*row + 4*mh + 2*j
                A(f"ds_read_b64_tr_b16 v[{d}:{d+1}], v5 offset:{row*PITCH2 + 640*mh + 160*j}")
    T = [[148, 164], [180, 196]]
    A("s_waitcnt lgkmcnt(0)")
    for mh in range(2):
        for row in range(2):
            a = 132 + 8*row + 4*mh
            for ri in range(2):
                mf32(A, T[row][ri], a, (80 if ri == 0 else 88) + 4*mh, mh == 0)
    wt1()
    stamp(A, 8)
    A("v_bfe_u32 v4, v2, 3, 1")
    A("v_lshlrev_b32 v5, 5, v2")
    A("v_lshl_add_u32 v5, v3, 12, v5")
    A("s_lshl_b32 s26, s3, 2")
    A(f"s_add_u32 s26, s26, {L_TR}")
    A("v_add_u32 v5, s26, v5")
    A("v_lshl_add_u32 v4, v4, 4, v5")
    A("v_bfe_u32 v6, v2, 3, 1")
    A("v_xor_b32 v6, 1, v6")
    A("v_lshl_add_u32 v5, v6, 4, v5")
    B = [20, 32]
    TA, TB = 60, 62
    for row in range(2):
        tr, ti = T[row]
        b = B[row]
        for r in range(0, 12, 2):
            c, s_ = 96+r, 108+r
            A(f"v_pk_mul_f32 {pr(TA)}, {pr(tr+r)}, {pr(c)}")
            A(f"v_pk_mul_f32 {pr(TB)}, {pr(ti+r)}, {pr(c)}")
            A(f"v_pk_fma_f32 {pr(TA)}, {pr(ti+r)}, {pr(s_)}, {pr(TA)}")
            A(f"v_pk_fma_f32 {pr(TB)}, {pr(tr+r)}, {pr(s_)}, {pr(TB)} neg_lo:[1,0,0] neg_hi:[1,0,0]")
            dr = b + r//2 if r < 8 else b + 8 + (r-8)//2
            di = b + 4 + r//2 if r < 8 else b + 10 + (r-8)//2
            A(f"v_cvt_pk_bf16_f32 v{dr}, v{TA}, v{TA+1}")
            A(f"v_cvt_pk_bf16_f32 v{di}, v{TB}, v{TB+1}")
    wt1()
    O = [148, 180]
    for st in range(3):
        for row in range(2):
            mf32(A, O[row], 120 + 4*st, B[row] + 4*st, st == 0)
    stamp(A, 9)
    A("v_bfe_u32 v6, v0, 4, 1")
    A("v_xor_b32 v6, v0, v6")
    A("v_lshlrev_b32 v6, 4, v6")
    A(f"v_add_u32 v6, {L_TR}, v6")
    A("v_lshl_add_u32 v7, v0, 4, s80")
    A(f"v_add_u32 v44, {hex(OOB)}, v7")
    A("s_movk_i32 s26, 136")
    A("v_cmp_gt_u32 vcc, s26, v0")
    A("v_cndmask_b32 v44, v44, v7, vcc")
    srd(A, 32, 4, WS_Y1, SZ_Y1N)
    for ri in range(2):
        for r in range(7):
            A(f"v_cvt_pk_bf16_f32 v{60+7*ri+r}, v{O[0]+8*ri+r}, v{O[1]+8*ri+r}")
            A(f"ds_write_b32 v{4+ri}, v{60+7*ri+r} offset:{(8*(r//4)+r%4)*1024}")
    vm.wait(["fa"])
    flag_check(C, "fa", 244, lambda: fa_ld(C))
    A("s_movk_i32 s26, 4096")
    A("s_movk_i32 s27, 8192")
    A("s_waitcnt lgkmcnt(0)")
    A("s_barrier")
    for n in range(3):
        A(f"ds_read_b128 v[{8+4*n}:{11+4*n}], v6 offset:{4096*n}")
    for n in range(3):
        A(f"s_waitcnt lgkmcnt({2-n})")
        A(f"buffer_store_dwordx4 v[{8+4*n}:{11+4*n}], v{44 if n == 2 else 7}, s[32:35], {['0','s26','s27'][n]} offen {SC}"); vm.issue("y1")
    stamp(A, 10)

NU = 5
L_PREP2 = L_PREP
PD = 40
G_S = [16, 17, 18, 19, 28]
DO_S = [29, 30, 31, 81, 82]
def repack(C):
    A = C.A; vm = C.vm
    A("v_lshrrev_b32 v4, 3, v1")
    A("v_and_b32 v5, 7, v1")
    A("v_bfe_u32 v6, v1, 4, 1")
    A("v_lshrrev_b32 v7, 5, v1")
    A("v_lshlrev_b32 v6, 1, v6")
    A("v_lshl_or_b32 v6, v7, 2, v6")
    A("v_xor_b32 v7, 4, v6")
    A("v_xor_b32 v6, v5, v6")
    A("v_xor_b32 v7, v5, v7")
    A("s_mul_i32 s83, s3, 20480")
    for unit in range(NU):
        B = 36
        prep_params(C, unit, B)
        A(f"s_cmp_eq_u32 s{B}, 0")
        A("s_cselect_b32 s32, s20, s22")
        A("s_cselect_b32 s33, s21, s23")
        A(f"s_cmp_eq_u32 s{B}, 2")
        A("s_cselect_b32 s32, s24, s32")
        A("s_cselect_b32 s33, s25, s33")
        A(f"s_mov_b32 s34, {640*1728*2}")
        A("s_mov_b32 s35, 0x20000")
        A(f"v_mul_lo_u32 v59, v4, s{B+1}")
        A(f"v_lshl_add_u32 v232, v6, 4, v59")
        A(f"v_lshl_add_u32 v233, v7, 4, v59")
        A(f"s_lshl_b32 s27, s{B+1}, 3")
        if OPT.get("xp") in ("nd", "nb"): A(f"s_mov_b32 s{B+2}, {hex(OOB)}")
        for i in range(4):
            A(f"s_add_u32 m0, s83, {L_PREP2 + 4096*unit + 1024*i}")
            A(f"buffer_load_dwordx4 v{232+(i&1)}, s[32:35], s{B+2} offen lds"); vm.issue(("P", unit))
            if i < 3: A(f"s_add_u32 s{B+2}, s{B+2}, s27")
        A(f"s_mov_b32 s{G_S[unit]}, s{B}")
        A(f"s_mov_b32 s{DO_S[unit]}, s{B+3}")
        if OPT.get("xp") in ("ns", "nb"): A(f"s_mov_b32 s{DO_S[unit]}, {hex(OOB)}")
    for base, ga, ja in ((8, 8, 4), (16, 4, 16)):
        A("v_lshrrev_b32 v24, 4, v1")
        A("v_bfe_u32 v25, v1, 2, 2")
        A(f"v_mul_u32_u24 v24, {ga}, v24")
        A("v_add_u32 v24, v24, v25")
        A(f"v_add_u32 v25, {ja}, v24")
        A("v_and_b32 v26, 1, v1")
        A("v_bfe_u32 v27, v1, 1, 1")
        for j, rr in enumerate([24, 25]):
            A(f"v_bfe_u32 v28, v{rr}, 1, 1")
            A(f"v_lshrrev_b32 v29, 2, v{rr}")
            A(f"v_lshrrev_b32 v30, 3, v{rr}")
            A(f"v_xor_b32 v29, v29, v30")
            A(f"v_and_b32 v29, 1, v29")
            A(f"v_lshl_or_b32 v28, v29, 1, v28")
            A(f"v_lshlrev_b32 v28, 1, v28")
            A(f"v_xor_b32 v28, v28, v27")
            A(f"v_lshlrev_b32 v31, 7, v{rr}")
            A(f"v_lshl_add_u32 v31, v26, 3, v31")
            A(f"v_add_u32 v31, s83, v31")
            for tile in range(4):
                A(f"v_xor_b32 v29, {2*tile}, v28")
                A(f"v_lshl_add_u32 v{base+4*j+tile}, v29, 4, v31")
    A("v_lshlrev_b32 v24, 4, v1")
    if OPT.get("yg", "1") == "1":
        srd(A, 44, 4, WS_Y1, SZ_Y1N)
        A(f"v_mul_u32_u24 v25, {BLK}, v0")
        retry_loop(C, lambda: A(f"buffer_load_dword v26, v25, s[44:47], 0 offen offset:{int(OPT.get('ygo', 0))} {LSC}"),
                   lambda: A("v_cmp_eq_u32 vcc, -1, v26"))
    for unit in range(NU):
        g, do = f"s{G_S[unit]}", f"s{DO_S[unit]}"
        L = C.lab("rp")
        A(f"s_cmp_eq_u32 {g}, 2")
        csel(A, "s26", hex(WS_W2), hex(WS_W13))
        csel(A, "s34", hex(SZ_W2P), hex(SZ_W13))
        csel(A, "s27", "1024", "2048")
        A("s_add_u32 s32, s4, s26")
        A("s_addc_u32 s33, s5, 0")
        vm.wait([("P", unit)])
        A(f"s_cmp_eq_u32 {g}, 2")
        A(f"s_cbranch_scc1 {L}")
        for var, base in enumerate((8, 16)):
            if var: A(f"{L}:")
            for tile in range(4):
                for j in range(2):
                    d = PD + 16*unit + 4*tile + 2*j
                    A(f"ds_read_b64_tr_b16 v[{d}:{d+1}], v{base+4*j+tile} offset:{L_PREP2 + 4096*unit}")
            if var == 0: A(f"s_branch {L}_e")
        A(f"{L}_e:")
        for tile in range(4):
            d = PD + 16*unit + 4*tile
            A(f"s_waitcnt lgkmcnt({6-2*tile})")
            A(f"buffer_store_dwordx4 v[{d}:{d+3}], v24, s[32:35], {do} offen {SC}"); vm.issue("ps")
            if tile < 3: A(f"s_add_u32 {do}, {do}, s27")

def cis_table(C, T, out, scale=None, fill=None):
    A = C.A
    WC, WS, BP, ANG, th, k0 = T, T+4, T+8, T+12, T+22, T+23
    A(f"v_add_f32 v{ANG}, v{th}, v{th}")
    A(f"v_mul_f32 v{ANG+1}, {fk(3.0)}, v{th}")
    for j, a in ((1, th), (2, ANG), (3, ANG+1)):
        A(f"v_cos_f32 v{WC+j}, v{a}")
        A(f"v_sin_f32 v{WS+j}, v{a}")
    def base(m):
        b = BP + 2*(m & 1); a = k0
        if m:
            a = ANG + (m & 1)
            A(f"v_fmamk_f32 v{a}, v{th}, {fk(8.0*m)}, v{k0}")
        A(f"v_cos_f32 v{b}, v{a}")
        A(f"v_sin_f32 v{b+1}, v{a}")
        if scale: A(f"v_pk_mul_f32 {pr(b)}, {pr(b)}, {scale} op_sel_hi:[1,0]")
    base(0)
    for m in range(4):
        if m < 3: base(m+1)
        b = BP + 2*(m & 1)
        for jp in range(2):
            r = 4*m + 2*jp
            dc, ds = out(r, None)
            A(f"v_pk_mul_f32 {pr(dc)}, {pr(WC+2*jp)}, {pr(b)} op_sel_hi:[1,0]")
            A(f"v_pk_mul_f32 {pr(ds)}, {pr(WC+2*jp)}, {pr(b)} op_sel:[0,1] op_sel_hi:[1,1]")
            A(f"v_pk_fma_f32 {pr(dc)}, {pr(WS+2*jp)}, {pr(b)}, {pr(dc)} op_sel:[0,1,0] op_sel_hi:[1,1,1] neg_lo:[1,0,0] neg_hi:[1,0,0]")
            A(f"v_pk_fma_f32 {pr(ds)}, {pr(WS+2*jp)}, {pr(b)}, {pr(ds)} op_sel:[0,0,0] op_sel_hi:[1,0,1]")
            out(r, (dc, ds))
        if fill: fill()

NS = int(OPT.get("ns", 4))
NS0 = 4
SLOT = 28*1024
C_LDS = NS0*SLOT
ZP = 1552
Z_OFF = C_LDS
ST_OFF = C_LDS + 8*ZP
STP = 1296
ST_H = ST_OFF + 8*STP
SCRAP = ST_H + 8*STP
M_OFF = SCRAP + 1024
LDS_TOTAL = M_OFF + 8192
B_YST = C_LDS
B_EX1 = C_LDS + 16384
assert B_EX1 + 16384 <= M_OFF

DT = OPT.get("dt", "1") == "1"
def ring_buf(s_):
    if DT: return s_ % 4 if s_ < 9 else 4
    return s_ % NS

def early_setup(C):
    A = C.A
    A("s_lshl_b32 s26, s48, 3")
    A("s_and_b32 s27, s49, 7")
    A("s_add_u32 s26, s26, s27")
    A("s_lshr_b32 s27, s49, 3")
    A("s_lshl_b32 s27, s27, 3")
    A("s_lshl_b32 s50, s3, 1")
    A("s_add_u32 s27, s27, s50")
    A("s_lshl_b32 s27, s27, 6")
    A("s_add_u32 s27, s27, s26")
    A("s_mul_i32 s27, s27, 1280")
    A("v_mul_u32_u24 v249, 40, v2")
    A("v_lshl_add_u32 v249, v3, 3, v249")
    A("v_add_u32 v249, s27, v249")
def hh_setup(C):
    A = C.A
    A("s_lshl_b32 s26, s40, 3")
    A("s_lshl_b32 s27, s3, 1")
    A("s_add_u32 s26, s26, s27")
    A("s_mul_i32 s26, s26, 55296")
    A("s_lshl_b32 s27, s41, 9")
    A("v_lshl_add_u32 v249, v1, 4, s27")
    A(f"v_mov_b32 v241, {hex(OOB)}")
    for i, r in ((3, 254), (2, 251), (1, 250), (0, 249)):
        A("s_mov_b32 s50, 55296")
        if i: A(f"v_add_u32 v{r}, {1024*i}, v249")
        A(f"v_cmp_gt_u32 vcc, s50, v{r}")
        A(f"v_add_u32 v{r}, s26, v{r}")
        if i == 3:
            A("v_cmp_gt_u32 s[50:51], 32, v1")
            A("s_and_b64 vcc, vcc, s[50:51]")
        A(f"v_cndmask_b32 v{r}, v241, v{r}, vcc")
    for q in range(4): A(f"v_accvgpr_write_b32 a{252+q}, -1")
def x_ops(C):
    A = C.A; ops = [lambda: srd(A, 28, 6, 0, SZ_X), lambda: A("s_mov_b32 s81, 81920")]
    for r in range(2):
        for q in range(3):
            def f(r=r, q=q):
                d = 6*r + 2*q
                A(f"buffer_load_dwordx2 a[{d}:{d+1}], v249, s[28:31], {'s81' if r else '0'} offen offset:{16*q}")
                C.vm.issue("X")
            ops.append(f)
    return ops
def hhfill_ops(C):
    A = C.A; ops = [lambda: A("s_mov_b32 s82, 55296")]
    for rt in range(2):
        for r in (249, 250, 251, 254):
            def f(r=r, rt=rt):
                A(f"buffer_store_dwordx4 a[252:255], v{r}, s[24:27], {'s82' if rt else '0'} offen {SC}")
                C.vm.issue("HF")
            f.mem = True
            ops.append(f)
    return ops
def m_ops(C):
    A = C.A; ops = []
    def m0():
        srd(A, 44, 4, WS_MOD, SZ_MOD)
        A("v_lshlrev_b32 v255, 4, v1")
        A("s_lshl_b32 s83, s3, 11")
    ops.append(m0)
    for i in range(2):
        def f(i=i):
            A(f"s_add_u32 m0, s83, {M_OFF + 1024*i}")
            A(f"s_add_u32 s43, s83, {5120 + 1024*i}")
            A(f"buffer_load_dwordx4 v255, s[44:47], s43 offen {LSC} lds")
            C.vm.issue("M")
        ops.append(f)
    return ops
def fw_ld(C):
    A = C.A
    A(f"s_mov_b32 s26, {FW}")
    A(f"buffer_load_dword v253, v252, s[12:15], s26 offen {LSC}")

def phase_b(C):
    A = C.A; vm = C.vm
    Lskip, Ldone = C.lab("b_skip"), C.lab("b_done")
    early_setup(C)
    A(f"v_lshlrev_b32 v252, {FSH}, v0")
    A("s_cmp_gt_u32 s2, 160")
    A(f"s_cbranch_scc1 {Lskip}")
    q_skip = list(vm.q)
    A("s_mul_i32 s20, s48, 20")
    A("s_add_u32 s20, s20, s49")
    A("s_cmp_eq_u32 s2, 160")
    A("s_cselect_b32 s20, 160, s20")
    A("s_lshl_b32 s21, s20, 1")
    A("s_lshr_b32 s22, s3, 1")
    A("s_add_u32 s21, s21, s22")
    A("s_and_b32 s23, s3, 1")
    A("s_lshl_b32 s24, s21, 13")
    A("s_lshl_b32 s25, s23, 12")
    A("s_add_u32 s24, s24, s25")
    srd(A, 36, 4, WS_Z, SZ_COL)
    pend = []
    def fill(k=1):
        for _ in range(k):
            if pend: pend.pop(0)()
    C32, S32, N32 = 40, 48, 56
    C64, S64 = 64, 80
    TWc, TWs = 96, 112
    AR, AI = 128, 144
    Pr, Pi, Pn = 160, 168, 176
    Or, Oi, On = 184, 192, 200
    T2c, T2s = 208, 224
    t0, t1, t2, t3, t4, t5 = 240, 241, 242, 243, 244, 245
    hf, pf, af = 246, 247, 5
    T = 176; TH, K0 = T+22, T+23
    A(f"v_cvt_f32_u32 v{hf}, v3")
    A(f"v_cvt_f32_u32 v{pf}, v2")
    A(f"v_cvt_f32_u32 v{af}, s23")
    A(f"v_mov_b32 v{T}, 1.0")
    A(f"v_mov_b32 v{T+4}, 0")
    def f32out(c, s_): return lambda r, p: (c+r, s_+r)
    def bfout(c, s_, n=None):
        def out(r, p):
            dc = T + 14 + 4*((r >> 1) & 1)
            if p is None: return (dc, dc+2)
            A(f"v_cvt_pk_bf16_f32 v{c + r//2}, v{dc}, v{dc+1}")
            A(f"v_cvt_pk_bf16_f32 v{s_ + r//2}, v{dc+2}, v{dc+3}")
            if n is not None: A(f"v_xor_b32 v{n + r//2}, 0x80008000, v{s_ + r//2}")
        return out
    A("v_lshrrev_b32 v4, 2, v1")
    A("s_lshl_b32 s26, s3, 6")
    A("v_add_u32 v4, s26, v4")
    A("v_and_b32 v6, 3, v1")
    A(f"v_mul_u32_u24 v8, {BLK}, v4")
    A("v_lshl_add_u32 v8, v6, 4, v8")
    A("s_lshl_b32 s26, s20, 6")
    A("v_add_u32 v8, s26, v8")
    A("v_bfe_u32 v7, v4, 1, 2")
    A("v_xor_b32 v7, v7, v6")
    A("v_lshlrev_b32 v9, 6, v4")
    A("v_lshl_add_u32 v9, v7, 4, v9")
    A(f"v_add_u32 v9, {B_YST}, v9")
    A("s_lshl_b32 s26, s23, 5")
    A("v_lshl_add_u32 v11, v3, 6, v2")
    A("v_add_u32 v11, s26, v11")
    A("v_lshlrev_b32 v11, 6, v11")
    A(f"v_add_u32 v11, {B_YST}, v11")
    A("v_bfe_u32 v7, v2, 1, 2")
    A("s_and_b32 s26, s3, 2")
    A("v_xor_b32 v7, s26, v7")
    A("v_xor_b32 v12, 1, v7")
    A("v_lshl_add_u32 v12, v12, 4, v11")
    A("v_lshl_add_u32 v11, v7, 4, v11")
    srd(A, 16, 4, WS_Y1, SZ_Y1N)
    srd(A, 32, 4, WS_WT, SZ_COL)
    YS = [24, 184]; YF = [253, 254]
    def y_loads(k):
        for i in range(4):
            if i: A(f"s_mov_b32 s26, {16*i*BLK}")
            A(f"buffer_load_dwordx4 v[{YS[k]+4*i}:{YS[k]+4*i+3}], v8, s[16:19], {'s26' if i else '0'} offen {LSC}")
        A(f"s_mov_b32 s26, {FW}")
        A(f"buffer_load_dword v{YF[k]}, v252, s[12:15], s26 offen {LSC}")
    def y_test(k):
        fill_test(A, range(YS[k], YS[k]+16), 255)
        if OPT.get("xp") == "nofw": return
        A(f"v_cmp_ne_u32 s[50:51], s{STAG}, v{YF[k]}")
        A("s_or_b64 vcc, vcc, s[50:51]")
    A(f"v_mul_f32 v{TH}, {flit(1/32)}, v{pf}")
    A(f"v_mul_f32 v{K0}, v{TH}, v{hf}")
    A(f"v_mul_f32 v{K0}, 4.0, v{K0}")
    cis_table(C, T, bfout(C32, S32, N32), fill=fill)
    A(f"v_mul_f32 v6, {flit(8.0)}, v{af}")
    A(f"v_add_f32 v6, v6, v{hf}")
    A(f"v_mul_f32 v6, 4.0, v6")
    A(f"v_mul_f32 v{TH}, {flit(1/2048)}, v{pf}")
    A(f"v_mul_f32 v{K0}, v6, v{TH}")
    cis_table(C, T, f32out(TWc, TWs), fill=fill)
    vm.wait(["wts"])
    A("s_barrier")
    flag_store(C, FW, 13, 14)
    A(f"v_mul_f32 v7, {flit(32.0)}, v{af}")
    A(f"v_add_f32 v{t5}, v7, v{pf}")
    A(f"v_mul_f32 v{TH}, {flit(1/64)}, v{t5}")
    A(f"v_mul_f32 v{K0}, v6, v{TH}")
    cis_table(C, T, bfout(C64, S64), fill=fill)
    A("v_and_b32 v7, 1, v2")
    A("v_mul_u32_u24 v7, 0x8000, v7")
    A("v_lshl_or_b32 v7, v7, 16, v7")
    for q in range(8):
        A(f"v_xor_b32 v{C64+8+q}, v7, v{C64+q}")
        A(f"v_xor_b32 v{S64+8+q}, v7, v{S64+q}")
    P2 = OPT.get("p2", "0") == "1"
    if P2: y_loads(0)
    A("s_cmp_eq_u32 s21, 0")
    A("s_cselect_b32 s26, 1, 0")
    A("s_cmp_eq_u32 s21, 320")
    A("s_cselect_b32 s26, 1, s26")
    A("s_cmp_eq_u32 s26, 1")
    csel(A, "s26", hex(f32bits(1.0/(2048*640))), hex(f32bits(2.0/(2048*640))))
    A(f"v_mul_f32 v{TH}, {flit(1/2048)}, v{t5}")
    A(f"v_mul_f32 v{K0}, v{TH}, v{hf}")
    A(f"v_mul_f32 v{K0}, 4.0, v{K0}")
    cis_table(C, T, f32out(T2c, T2s), scale="s[26:27]", fill=fill)
    fill(len(pend))
    stamp(A, 11)
    def y_use(k):
        for i in range(4):
            A(f"ds_write_b128 v9, v[{YS[k]+4*i}:{YS[k]+4*i+3}] offset:{1024*i}")
    if P2:
        y_loads(1)
        poll2(C, [lambda: y_loads(0), lambda: y_loads(1)], [lambda: y_test(0), lambda: y_test(1)], 5, y_use)
    else:
        retry_loop(C, lambda: y_loads(1), lambda: y_test(1))
        cnt(A, 1)
        y_use(1)
    if P2: A("s_waitcnt lgkmcnt(0)")
    A("v_lshlrev_b32 v4, 4, v1")
    A("v_add_u32 v4, s24, v4")
    for j in range(4):
        A(f"buffer_load_dwordx4 v[{24+4*j}:{27+4*j}], v4, s[32:35], 0 offen offset:{j*1024} {LSC}"); vm.issue("wt")
    pend.extend(x_ops(C))
    pend.extend(m_ops(C))
    A("s_waitcnt lgkmcnt(0)")
    A("s_barrier")
    stamp(A, 12)
    A("v_mov_b32 v6, v11")
    A("v_mov_b32 v7, v12")
    for t in range(2):
        for ri in range(2):
            d = 8 + 8*ri + 4*t
            A(f"ds_read_b128 v[{d}:{d+3}], v{6+ri} offset:{t*8192}")
    Xr, Xi = 8, 16
    def mf(d, a, b, first, k=0):
        mf32(A, d, a, b, first); fill(k)
    fill(3)
    for t in range(2):
        A(f"s_waitcnt lgkmcnt({2-2*t})")
        mf(AR, Xr+4*t, C32+4*t, t == 0, 1)
        mf(AI, Xi+4*t, C32+4*t, t == 0, 1)
        mf(AR, Xi+4*t, S32+4*t, False, 1)
        mf(AI, Xr+4*t, N32+4*t, False)
    TA, TB = t0, t2
    def cmul_pack(cr, ci, conj_tw, k=0):
        n1 = "" if not conj_tw else " neg_lo:[1,0,0] neg_hi:[1,0,0]"
        n2 = " neg_lo:[1,0,0] neg_hi:[1,0,0]" if not conj_tw else ""
        for r in range(0, 16, 2):
            A(f"v_pk_mul_f32 {pr(TA)}, {pr(AR+r)}, {pr(cr+r)}")
            A(f"v_pk_mul_f32 {pr(TB)}, {pr(AI+r)}, {pr(cr+r)}")
            A(f"v_pk_fma_f32 {pr(TA)}, {pr(AI+r)}, {pr(ci+r)}, {pr(TA)}{n1}")
            A(f"v_pk_fma_f32 {pr(TB)}, {pr(AR+r)}, {pr(ci+r)}, {pr(TB)}{n2}")
            A(f"v_cvt_pk_bf16_f32 v{Pr+r//2}, v{TA}, v{TA+1}")
            A(f"v_cvt_pk_bf16_f32 v{Pi+r//2}, v{TB}, v{TB+1}")
            fill(k)
    A("s_lshl_b32 s26, s3, 12")
    A(f"s_add_u32 s26, s26, {B_YST}")
    A("s_xor_b32 s27, s26, 0x1000")
    A("v_lshlrev_b32 v6, 4, v1")
    A("v_add_u32 v7, s27, v6")
    A("v_add_u32 v6, s26, v6")
    cmul_pack(TWc, TWs, False, 1)
    def exch(off):
        for g in range(2):
            A(f"ds_write_b128 v6, v[{Pr+4*g}:{Pr+4*g+3}] offset:{off+1024*g}")
            A(f"ds_write_b128 v6, v[{Pi+4*g}:{Pi+4*g+3}] offset:{off+2048+1024*g}")
        A("s_waitcnt lgkmcnt(0)")
        A("s_barrier")
        for g in range(2):
            A(f"ds_read_b128 v[{Or+4*g}:{Or+4*g+3}], v7 offset:{off+1024*g}")
            A(f"ds_read_b128 v[{Oi+4*g}:{Oi+4*g+3}], v7 offset:{off+2048+1024*g}")
    stamp(A, 13)
    vm.wait(["stale"])
    exch(B_EX1 - B_YST)
    for q in range(8): A(f"v_xor_b32 v{Pn+q}, 0x80008000, v{Pr+q}")
    for u in range(2):
        mf(AR, C64+4*u, Pr+4*u, u == 0, 1)
        mf(AI, C64+4*u, Pi+4*u, u == 0)
        mf(AR, S64+4*u, Pi+4*u, False, 1)
        mf(AI, S64+4*u, Pn+4*u, False)
    A("s_waitcnt lgkmcnt(0)")
    for q in range(8): A(f"v_xor_b32 v{On+q}, 0x80008000, v{Or+q}")
    for u in range(2):
        mf(AR, C64+8+4*u, Or+4*u, False)
        mf(AI, C64+8+4*u, Oi+4*u, False)
        mf(AR, S64+8+4*u, Oi+4*u, False)
        mf(AI, S64+8+4*u, On+4*u, False)
    fill(len(pend))
    stamp(A, 14)
    vm.wait(["wt"])
    W0, W1 = 8, 10
    for r in range(0, 16, 2):
        w = 24 + r
        A(f"v_lshlrev_b32 v{W0}, 16, v{w}")
        A(f"v_lshlrev_b32 v{W0+1}, 16, v{w+1}")
        A(f"v_and_b32 v{W1}, 0xffff0000, v{w}")
        A(f"v_and_b32 v{W1+1}, 0xffff0000, v{w+1}")
        A(f"v_pk_mul_f32 {pr(TA)}, {pr(AR+r)}, {pr(W0)}")
        A(f"v_pk_mul_f32 {pr(TB)}, {pr(AI+r)}, {pr(W0)}")
        A(f"v_pk_fma_f32 {pr(TA)}, {pr(AI+r)}, {pr(W1)}, {pr(TA)} neg_lo:[1,0,0] neg_hi:[1,0,0]")
        A(f"v_pk_fma_f32 {pr(TB)}, {pr(AR+r)}, {pr(W1)}, {pr(TB)}")
        A(f"v_cvt_pk_bf16_f32 v{Pr+r//2}, v{TA}, v{TA+1}")
        A(f"v_cvt_pk_bf16_f32 v{Pi+r//2}, v{TB}, v{TB+1}")
    exch(0)
    def ringfill(k): pass
    for q in range(8): A(f"v_xor_b32 v{Pn+q}, 0x80008000, v{Pi+q}")
    def mr(d, a, b, first, k=1):
        mf32(A, d, a, b, first); ringfill(k)
    for u in range(2):
        mr(AR, Pr+4*u, C64+4*u, u == 0)
        mr(AI, Pi+4*u, C64+4*u, u == 0, 0)
        mr(AR, Pn+4*u, S64+4*u, False)
        mr(AI, Pr+4*u, S64+4*u, False, 0)
    A("s_waitcnt lgkmcnt(0)")
    for q in range(8): A(f"v_xor_b32 v{On+q}, 0x80008000, v{Oi+q}")
    for u in range(2):
        mr(AR, Or+4*u, C64+8+4*u, False)
        mr(AI, Oi+4*u, C64+8+4*u, False, 0)
        mr(AR, On+4*u, S64+8+4*u, False)
        mr(AI, Or+4*u, S64+8+4*u, False, 0)
    stamp(A, 15)
    _fill = fill
    def cm2():
        n1 = " neg_lo:[1,0,0] neg_hi:[1,0,0]"
        for r in range(0, 16, 2):
            A(f"v_pk_mul_f32 {pr(TA)}, {pr(AR+r)}, {pr(T2c+r)}")
            A(f"v_pk_mul_f32 {pr(TB)}, {pr(AI+r)}, {pr(T2c+r)}")
            A(f"v_pk_fma_f32 {pr(TA)}, {pr(AI+r)}, {pr(T2s+r)}, {pr(TA)}{n1}")
            A(f"v_pk_fma_f32 {pr(TB)}, {pr(AR+r)}, {pr(T2s+r)}, {pr(TB)}")
            A(f"v_cvt_pk_bf16_f32 v{Pr+r//2}, v{TA}, v{TA+1}")
            A(f"v_cvt_pk_bf16_f32 v{Pi+r//2}, v{TB}, v{TB+1}")
            if r % 4 == 0: ringfill(1)
    cm2()
    for t in range(2):
        mr(AR, C32+4*t, Pr+4*t, t == 0)
        mr(AI, C32+4*t, Pi+4*t, t == 0)
        mr(AR, N32+4*t, Pi+4*t, False)
        mr(AI, S32+4*t, Pr+4*t, False, 0)
    A("v_lshlrev_b32 v4, 5, v2")
    A("v_lshl_add_u32 v4, v3, 4, v4")
    A("v_add_u32 v4, s24, v4")
    vm.wait(["X"])
    for j in range(4):
        for i in range(4):
            r = 4*j+i
            A(f"v_cvt_pk_bf16_f32 v{8+r}, v{AR+r}, v{AI+r}")
        A(f"buffer_store_dwordx4 v[{8+4*j}:{11+4*j}], v4, s[36:39], 0 offen offset:{j*1024} {SC}"); vm.issue("z")
    stamp(A, 16)
    A("s_barrier")
    A(f"s_branch {Ldone}")
    A(f"{Lskip}:")
    vm.q = q_skip
    for f in x_ops(C): f()
    vm.wait(["wts"])
    A("s_barrier")
    flag_store(C, FW, 8, 9)
    repack(C)
    if OPT.get("h2f", "a2") == "r":
        NF = 256 - NB_WG
        A(f"s_sub_u32 s26, s2, {NB_WG}")
        A("s_lshl_b32 s26, s26, 12")
        A("v_lshl_add_u32 v4, v0, 4, s26")
        srd(A, 32, 4, WS_H2P, SZ_H2P)
        for i in range(-(-SZ_H2P // (NF*4096))):
            if i: A(f"s_mov_b32 s26, {i*NF*4096}")
            A(f"buffer_store_dwordx4 a[12:15], v4, s[32:35], {'s26' if i else '0'} offen {SC}"); vm.issue("h2f")
    fw_ld(C); vm.issue("fw")
    vm.wait(["fw"])
    flag_check(C, "fw", 253, lambda: fw_ld(C))
    A("s_barrier")
    flag_store(C, FP, 8, 9)
    for f in m_ops(C): f()
    A(f"{Ldone}:")
    vm.q = []

def w13_ring(C):
    ops = []
    for s_ in range(NS0): ops += w13_ops(C, s_)
    return ops

def fh_offset(C, v, which):
    A = C.A
    A(f"v_min_u32 v{v}, {255 - NB_WG}, v0")
    A(f"v_add_u32 v{v}, {NB_WG + (which >> FSH)}, v{v}")
    A(f"v_lshlrev_b32 v{v}, {FSH}, v{v}")

def d_geometry(C):
    A = C.A
    A("s_and_b32 s40, s48, 1")
    A("s_lshl_b32 s40, s40, 3")
    A("s_and_b32 s41, s49, 7")
    A("s_add_u32 s40, s40, s41")
    A("s_lshr_b32 s41, s48, 1")
    A("s_lshl_b32 s41, s41, 2")
    A("s_lshr_b32 s42, s49, 3")
    A("s_add_u32 s41, s41, s42")
    A("s_mul_i32 s41, s41, 7")
    A("s_lshr_b32 s42, s3, 1")
    A("s_mul_i32 s42, s42, 221184")
    A("s_lshl_b32 s43, s41, 11")
    A("s_add_u32 s42, s42, s43")
    A("s_and_b32 s43, s3, 1")
    A("s_mul_i32 s43, s43, 7168")
    A("s_add_u32 s42, s42, s43")
    if DT:
        A("s_and_b32 s43, s41, 1")
        A("s_lshl_b32 s43, s43, 11")
        A("s_add_u32 s42, s42, s43")
    A("v_lshlrev_b32 v248, 4, v1")
    A("v_add_u32 v248, s42, v248")
    if DT:
        A("s_and_b32 s43, s41, s3")
        A("s_and_b32 s43, s43, 1")
        A("s_mul_i32 s43, s43, 14336")
        A("v_subrev_u32 v255, s43, v248")
    A("s_mul_i32 s42, s3, 7168")

def w13_ops(C, s, SRD=36):
    A = C.A; ops = []
    for i0, n in ((0, 4), (4, 3)):
        def setup(i0=i0):
            A(f"s_add_u32 m0, s42, {ring_buf(s)*SLOT + i0*1024}")
        def setup2(i0=i0):
            A(f"s_mov_b32 s43, {2*s*221184 + i0*1024}")
        ops += [setup, setup2]
        for i in range(n):
            def dma(i=i, i0=i0):
                va = 255 if DT and i0 + i >= 5 else 248
                A(f"buffer_load_dwordx4 v{va}, s[{SRD}:{SRD+3}], s43 offen offset:{i*1024} lds")
                C.vm.issue(("W", s))
            ops.append(dma)
    return ops

def phase_c(C):
    A = C.A; vm = C.vm
    A("s_lshl_b32 s20, s48, 3")
    A("s_and_b32 s21, s49, 7")
    A("s_add_u32 s20, s20, s21")
    A("s_lshr_b32 s21, s49, 3")
    GA, G2, SB = 32, 44, 56
    srd(A, 36, 4, WS_W13, SZ_W13)
    d_geometry(C)
    stamp(A, 17)
    A("s_lshr_b32 s22, s20, 5")
    A("s_lshl_b32 s22, s22, 12")
    A("s_lshl_b32 s23, s21, 10")
    A("s_add_u32 s22, s22, s23")
    A("s_and_b32 s23, s20, 31")
    A("s_lshl_b32 s23, s23, 5")
    A("s_add_u32 s22, s22, s23")
    A("v_and_b32 v4, 1, v1")
    A("v_bfe_u32 v5, v1, 1, 2")
    A("v_lshrrev_b32 v6, 3, v1")
    A("s_lshl_b32 s23, s3, 3")
    A("v_add_u32 v6, s23, v6")
    A("v_lshl_add_u32 v251, v5, 5, v6")
    A("v_lshlrev_b32 v251, 13, v251")
    A("v_lshl_add_u32 v251, v4, 4, v251")
    A("v_add_u32 v251, s22, v251")
    A(f"v_mul_u32_u24 v252, {4*ZP}, v4")
    A("v_mul_u32_u24 v253, 48, v6")
    A("v_add_u32 v252, v252, v253")
    A("v_lshl_add_u32 v252, v5, 2, v252")
    A(f"v_add_u32 v252, {Z_OFF}, v252")
    srd(A, 16, 4, WS_Z, SZ_COL)
    A("s_mov_b32 s24, 0x100000")
    A("s_mov_b32 s25, 0x200000")
    BR, BI, TC, TS, C32, N32 = 92, 100, 108, 124, 140, 148
    t0, t1, t2, t3, t4 = 244, 245, 246, 247, 243
    pf, hf = 249, 250
    A(f"v_cvt_f32_u32 v{pf}, v2")
    A(f"v_cvt_f32_u32 v{hf}, v3")
    A(f"v_mul_f32 v4, {flit(1/20)}, v{pf}")
    A(f"v_mul_f32 v5, v4, v{hf}")
    A(f"v_mul_f32 v5, 4.0, v5")
    A(f"v_mov_b32 v6, 0")
    for st in range(2):
        for q in range(4):
            A(f"v_fmamk_f32 v{t0}, v4, {fk(8*st+q)}, v{5 if st == 0 else 6}")
            A(f"v_cos_f32 v{t1}, v{t0}")
            A(f"v_sin_f32 v{t2}, v{t0}")
            A(f"v_sub_f32 v{t3}, 0, v{t2}")
            A(f"v_cvt_pk_bf16_f32 v{BR+4*st+q}, v{t1}, v{t3}")
            A(f"v_cvt_pk_bf16_f32 v{BI+4*st+q}, v{t2}, v{t1}")
    A("v_cmp_eq_u32 vcc, 0, v3")
    for q in range(4):
        A(f"v_cndmask_b32 v{BR+4+q}, 0, v{BR+4+q}, vcc")
        A(f"v_cndmask_b32 v{BI+4+q}, 0, v{BI+4+q}, vcc")
    A(f"v_mul_f32 v4, {flit(1/640)}, v{pf}")
    A(f"v_mul_f32 v5, v4, v{hf}")
    A(f"v_mul_f32 v5, 4.0, v5")
    for r in range(16):
        A(f"v_fmamk_f32 v{t0}, v4, {fk(8*(r//4)+r%4)}, v5")
        A(f"v_cos_f32 v{TC+r}, v{t0}")
        A(f"v_sin_f32 v{TS+r}, v{t0}")
    A(f"v_mul_f32 v4, {flit(1/32)}, v{pf}")
    A(f"v_mul_f32 v5, v4, v{hf}")
    A(f"v_mul_f32 v5, 4.0, v5")
    for t in range(2):
        for p in range(4):
            for z in range(2):
                e = 2*p+z
                A(f"v_fmamk_f32 v{t0}, v4, {fk(16*t+8*(e>>2)+(e&3))}, v5")
                A(f"v_cos_f32 v{t1+z}, v{t0}")
                A(f"v_sin_f32 v{(t3, t4)[z]}, -v{t0}")
            A(f"v_cvt_pk_bf16_f32 v{C32+4*t+p}, v{t1}, v{t2}")
            A(f"v_cvt_pk_bf16_f32 v{N32+4*t+p}, v{t3}, v{t4}")
    XF = 68
    for q in range(12): A(f"v_accvgpr_read_b32 v{20+q}, a{q}")
    for r in range(2):
        for q in range(6):
            A(f"v_lshlrev_b32 v{XF+12*r+2*q}, 16, v{20+6*r+q}")
            A(f"v_and_b32 v{XF+12*r+2*q+1}, 0xffff0000, v{20+6*r+q}")
    A("v_cmp_eq_u32 vcc, 0, v3")
    for r in range(2):
        for k in range(8, 12): A(f"v_cndmask_b32 v{XF+12*r+k}, 0, v{XF+12*r+k}, vcc")
    A("v_mul_u32_u24 v7, 80, v2")
    A("v_lshl_add_u32 v7, v3, 4, v7")
    A(f"v_add_u32 v7, {M_OFF}, v7")
    stamp(A, 18)
    fh_offset(C, 253, FP)
    def z_loads():
        for m in range(3):
            A(f"buffer_load_dwordx4 v[{8+4*m}:{11+4*m}], v251, s[16:19], {['0','s24','s25'][m]} offen {LSC}")
        A(f"buffer_load_dword v254, v253, s[12:15], 0 offen {LSC}")
    def z_test():
        fill_test(A, range(8, 20), 4)
        A(f"v_cmp_ne_u32 s[50:51], s{STAG}, v254")
        A("s_or_b64 vcc, vcc, s[50:51]")
    retry_loop(C, z_loads, z_test)
    cnt(A, 2)
    for m in range(3):
        for i in range(4):
            A(f"ds_write_b32 v252, v{8+4*m+i} offset:{i*ZP + 16*m}")
    A(f"s_mul_i32 s26, s3, {2*ZP}")
    A(f"s_add_u32 s26, s26, {Z_OFF}")
    A("v_mul_u32_u24 v4, 48, v2")
    A("v_add_u32 v4, s26, v4")
    A("v_lshl_add_u32 v5, v3, 4, v4")
    A("s_waitcnt lgkmcnt(0)")
    A("s_barrier")
    stamp(A, 19)
    FA_ = [[156, 160], [164, 168]]
    for row in range(2):
        A(f"ds_read_b128 v[{FA_[row][0]}:{FA_[row][0]+3}], v5 offset:{row*ZP}")
        A(f"ds_read_b128 v[{FA_[row][1]}:{FA_[row][1]+3}], v4 offset:{row*ZP+32}")
    for base, sec in ((GA, 0), (G2, 2), (SB, 1)):
        for q in range(3):
            A(f"ds_read_b128 v[{base+4*q}:{base+4*q+3}], v7 offset:{sec*2560 + 32*q}")
    ring = w13_ring(C)
    def rf(k=1):
        n = 0
        while ring and n < k:
            q0 = len(vm.q); ring.pop(0)()
            if len(vm.q) > q0: n += 1
    U = [[172, 188], [204, 220]]
    rf(2)
    for st in range(2):
        for row in range(2):
            if st == 0: A(f"s_waitcnt lgkmcnt({9 + (2 if row == 0 else 0)})")
            mf32(A, U[row][0], FA_[row][st], BR+4*st, st == 0)
            rf()
            mf32(A, U[row][1], FA_[row][st], BI+4*st, st == 0)
    A("v_cmp_eq_u32 vcc, 0, v3")
    P = [[156, 164], [8, 236]]
    TA, TB = 20, 22
    for row in range(2):
        ur, ui = U[row]; pr_, pi_ = P[row]
        for r in range(0, 16, 2):
            A(f"v_pk_mul_f32 {pr(TA)}, {pr(ur+r)}, {pr(TC+r)}")
            A(f"v_pk_mul_f32 {pr(TB)}, {pr(ui+r)}, {pr(TC+r)}")
            A(f"v_pk_fma_f32 {pr(TA)}, {pr(ui+r)}, {pr(TS+r)}, {pr(TA)} neg_lo:[1,0,0] neg_hi:[1,0,0]")
            A(f"v_pk_fma_f32 {pr(TB)}, {pr(ur+r)}, {pr(TS+r)}, {pr(TB)}")
            A(f"v_cvt_pk_bf16_f32 v{pr_+r//2}, v{TA}, v{TA+1}")
            A(f"v_cvt_pk_bf16_f32 v{pi_+r//2}, v{TB}, v{TB+1}")
            if r % 4 == 0: rf()
    Y = [172, 204]
    for t in range(2):
        for row in range(2):
            mf32(A, Y[row], P[row][0]+4*t, C32+4*t, t == 0)
            rf()
        for row in range(2):
            mf32(A, Y[row], P[row][1]+4*t, N32+4*t, False)
    A("s_waitcnt lgkmcnt(0)")
    for k in range(8, 12): A(f"v_cndmask_b32 v{GA+k}, 0, v{GA+k}, vcc")
    for row in range(2):
        for k in range(0, 12, 2):
            A(f"v_pk_fma_f32 {pr(XF+12*row+k)}, {pr(GA+k)}, {pr(Y[row]+k)}, {pr(XF+12*row+k)}")
    X2P = 20
    for row in range(2):
        for k in range(6):
            A(f"v_cvt_pk_bf16_f32 v{X2P+6*row+k}, v{XF+12*row+2*k}, v{XF+12*row+2*k+1}")
    A(f"s_mul_i32 s26, s3, {2*STP}")
    A(f"s_add_u32 s26, s26, {ST_OFF}")
    A("v_mul_u32_u24 v4, 40, v2")
    A("v_lshl_add_u32 v4, v3, 3, v4")
    A("v_add_u32 v4, s26, v4")
    A("v_lshlrev_b32 v7, 3, v1")
    A(f"v_add_u32 v7, {SCRAP}, v7")
    A("v_add_u32 v6, 32, v4")
    A("v_cndmask_b32 v5, v7, v6, vcc")
    for row in range(2):
        for q in range(2):
            A(f"ds_write_b64 v4, {pr(X2P+6*row+2*q)} offset:{row*STP + 16*q}")
    A(f"v_add_u32 v6, {STP}, v6")
    A("v_cndmask_b32 v6, v7, v6, vcc")
    A(f"ds_write_b64 v5, {pr(X2P+4)}")
    A(f"ds_write_b64 v6, {pr(X2P+10)}")
    for r in range(2):
        for q in range(6):
            A(f"v_lshlrev_b32 v{XF+12*r+2*q}, 16, v{X2P+6*r+q}") if OPT.get("rx2") else None
            A(f"v_and_b32 v{XF+12*r+2*q+1}, 0xffff0000, v{X2P+6*r+q}") if OPT.get("rx2") else None
    S0, S1, T0, T1 = 32, 34, 36, 38
    def red64(a, b):
        ta, tb = T0, T1
        for ctl in ["quad_perm:[1,0,3,2]", "quad_perm:[2,3,0,1]", "row_ror:4", "row_ror:8"]:
            A(f"v_add_f32_dpp v{a}, v{a}, v{a} {ctl} row_mask:0xf bank_mask:0xf")
            A(f"v_add_f32_dpp v{b}, v{b}, v{b} {ctl} row_mask:0xf bank_mask:0xf")
        for sw in ("v_permlane16_swap_b32", "v_permlane32_swap_b32"):
            A(f"v_mov_b32 v{ta}, v{a}")
            A(f"v_mov_b32 v{tb}, v{b}")
            A(f"{sw} v{a}, v{ta}")
            A(f"{sw} v{b}, v{tb}")
            A(f"v_add_f32 v{a}, v{a}, v{ta}")
            A(f"v_add_f32 v{b}, v{b}, v{tb}")
    S = [S0, S1]
    for k in range(0, 12, 2):
        for row in range(2):
            x = XF+12*row+k
            if k == 0: continue
            if k == 2: A(f"v_pk_add_f32 {pr(S[row])}, {pr(x-2)}, {pr(x)}")
            else: A(f"v_pk_add_f32 {pr(S[row])}, {pr(S[row])}, {pr(x)}")
    for row in range(2): A(f"v_add_f32 v{S[row]}, v{S[row]}, v{S[row]+1}")
    rf(2)
    red64(S0, S1)
    rf(2)
    for row in range(2):
        A(f"v_mul_f32 v{S[row]}, {flit(1/640)}, v{S[row]}")
        A(f"v_cndmask_b32 v{S[row]+1}, 0, v{S[row]}, vcc")
    for k in range(0, 12, 2):
        for row in range(2):
            x = XF+12*row+k
            sel = "op_sel_hi:[1,0]" if k < 8 else "op_sel:[0,1] op_sel_hi:[1,1]"
            A(f"v_pk_add_f32 {pr(x)}, {pr(x)}, {pr(S[row])} {sel} neg_lo:[0,1] neg_hi:[0,1]")
    V = [40, 42]
    for k in range(0, 12, 2):
        for row in range(2):
            x = XF+12*row+k
            if k == 0: A(f"v_pk_mul_f32 {pr(V[row])}, {pr(x)}, {pr(x)}")
            else: A(f"v_pk_fma_f32 {pr(V[row])}, {pr(x)}, {pr(x)}, {pr(V[row])}")
    for row in range(2): A(f"v_add_f32 v{V[row]}, v{V[row]}, v{V[row]+1}")
    rf(2)
    red64(V[0], V[1])
    rf(99)
    for row in range(2):
        A(f"v_mov_b32 v{S[row]}, {flit(1e-5)}")
        A(f"v_fmac_f32 v{S[row]}, {flit(1/640)}, v{V[row]}")
    for row in range(2): A(f"v_rsq_f32 v{S[row]}, v{S[row]}")
    for k in range(0, 12, 2):
        for row in range(2):
            x = XF+12*row+k
            A(f"v_pk_mul_f32 {pr(x)}, {pr(x)}, {pr(S[row])} op_sel_hi:[1,0]")
        for row in range(2):
            x = XF+12*row+k
            A(f"v_pk_fma_f32 {pr(x)}, {pr(x)}, {pr(G2+k)}, {pr(SB+k)}")
    H2P_ = 8
    for row in range(2):
        for k in range(6):
            A(f"v_cvt_pk_bf16_f32 v{H2P_+6*row+k}, v{XF+12*row+2*k}, v{XF+12*row+2*k+1}")
    HO = ST_H - ST_OFF
    for row in range(2):
        for q in range(2):
            A(f"ds_write_b64 v4, {pr(H2P_+6*row+2*q)} offset:{HO + row*STP + 16*q}")
    A(f"v_subrev_u32 v7, {HO}, v7")
    A(f"v_add_u32 v36, 32, v4")
    A(f"v_cndmask_b32 v37, v7, v36, vcc")
    A(f"v_add_u32 v36, {STP}, v36")
    A(f"v_cndmask_b32 v36, v7, v36, vcc")
    A(f"ds_write_b64 v37, {pr(H2P_+4)} offset:{HO}")
    A(f"ds_write_b64 v36, {pr(H2P_+10)} offset:{HO}")
    A("v_and_b32 v4, 7, v0")
    A("v_lshrrev_b32 v5, 3, v0")
    A(f"v_mul_u32_u24 v6, {STP}, v4")
    A("v_lshl_add_u32 v6, v5, 4, v6")
    A(f"v_add_u32 v6, {ST_H}, v6")
    A("s_lshl_b32 s26, s48, 4")
    A("s_lshr_b32 s27, s49, 1")
    A("s_add_u32 s26, s26, s27")
    A("s_mul_i32 s26, s26, 20480")
    A("s_and_b32 s27, s49, 1")
    A("s_lshl_b32 s27, s27, 7")
    A("s_add_u32 s26, s26, s27")
    A("v_lshlrev_b32 v5, 8, v5")
    A("v_lshl_add_u32 v5, v4, 4, v5")
    A("v_add_u32 v5, s26, v5")
    A("v_lshrrev_b32 v4, 5, v0")
    A(f"v_mul_u32_u24 v7, {STP}, v4")
    A("v_lshl_add_u32 v7, v2, 4, v7")
    A(f"v_add_u32 v7, {ST_OFF}, v7")
    A("s_lshl_b32 s26, s21, 9")
    A("s_add_u32 s26, s26, s20")
    A("s_mul_i32 s26, s26, 1280")
    A("v_mul_u32_u24 v4, 81920, v4")
    A("v_lshl_add_u32 v4, v2, 4, v4")
    A("v_add_u32 v252, s26, v4")
    A(f"v_add_u32 v253, {hex(OOB)}, v252")
    A("v_cmp_gt_u32 vcc, 16, v2")
    A("v_cndmask_b32 v253, v253, v252, vcc")
    A(f"v_add_u32 v37, {hex(OOB)}, v5")
    A("s_cmp_lt_u32 s3, 2")
    A("s_cselect_b64 vcc, -1, 0")
    A("v_cndmask_b32 v37, v37, v5, vcc")
    srd(A, 16, 4, WS_H2P, SZ_H2P)
    srd(A, 28, 4, WS_X2, SZ_X)
    A("s_waitcnt lgkmcnt(0)")
    A("s_barrier")
    for i in range(3):
        A(f"ds_read_b128 v[{8+4*i}:{11+4*i}], v6 offset:{512*i}")
    for i in range(3):
        dst = f"a[{X2A+4*i}:{X2A+4*i+3}]" if xlate() else f"v[{216+4*i}:{219+4*i}]"
        A(f"ds_read_b128 {dst}, v7 offset:{512*i}")
    A("s_movk_i32 s26, 8192")
    A("s_movk_i32 s27, 16384")
    for i in range(3):
        A(f"s_waitcnt lgkmcnt({5-i})")
        A(f"buffer_store_dwordx4 v[{8+4*i}:{11+4*i}], v{37 if i == 2 else 5}, s[16:19], {['0','s26','s27'][i]} offen {SC}"); vm.issue("st")
    stamp(A, 20)

D_LA = 6
RA = 8
RB = 10
def e_geometry(C):
    A = C.A
    A("s_lshr_b32 s44, s48, 1")
    A("s_lshl_b32 s44, s44, 3")
    A("s_and_b32 s45, s49, 7")
    A("s_add_u32 s44, s44, s45")
    A("s_and_b32 s45, s48, 1")
    A("s_lshl_b32 s45, s45, 2")
    A("s_lshr_b32 s46, s49, 3")
    A("s_add_u32 s45, s45, s46")
    A("s_mul_i32 s46, s3, 14")
    A("s_mul_i32 s47, s46, 40960")
    A("s_mul_i32 s51, s45, 5120")
    A("s_add_u32 s47, s47, s51")
    A("v_lshlrev_b32 v246, 4, v1")
    A("v_add_u32 v246, s47, v246")
    A("v_add_u32 v247, 4096, v246")

NST = 14
def xlate(): return OPT.get("xl", "1") == "1" and OPT.get("dp", "1") == "1"
X2A = 240
def wfrag(st, p):
    k = st*5 + p
    if k < 64: return ("a", 4*k)
    return ("v", 152 + 4*(k-64))
def w2_ops(C, SRD=32):
    A = C.A; ops = []
    for st in range(NST):
        def setup(st=st):
            A(f"s_mov_b32 s51, {st*40960}")
        ops.append(setup)
        for p in range(5):
            def ld(st=st, p=p):
                k, r = wfrag(st, p)
                if p < 4: A(f"buffer_load_dwordx4 {k}[{r}:{r+3}], v246, s[{SRD}:{SRD+3}], s51 offen offset:{1024*p}")
                else: A(f"buffer_load_dwordx4 {k}[{r}:{r+3}], v247, s[{SRD}:{SRD+3}], s51 offen")
                C.vm.issue(("W2", st))
            ld.mem = True
            ops.append(ld)
    return ops

def phase_d(C):
    A = C.A; vm = C.vm
    ACC, AR, BR = 8, 120, 152
    VL, VB = 232, 237
    e_geometry(C)
    srd(A, 32, 4, WS_W2, SZ_W2P)
    w2 = w2_ops(C)
    NPRE = int(OPT.get("w2pre", 36))
    for _ in range(NPRE): w2.pop(0)()
    A("s_lshl_b32 s20, s40, 3")
    A("s_lshl_b32 s21, s3, 1")
    A("s_add_u32 s20, s20, s21")
    A("v_lshlrev_b32 v4, 4, v1")
    A("s_mul_i32 s21, s20, 20480")
    A(f"v_add_u32 v{VB}, s21, v4")
    A(f"v_add_u32 v{VB+1}, 20480, v{VB}")
    for b in range(NS):
        A(f"v_add_u32 v{VL+b}, {b*SLOT}, v4") if b else A(f"v_mov_b32 v{VL}, v4")
    hh_setup(C)
    srd(A, 16, 4, WS_H2P, SZ_H2P)
    srd(A, 24, 4, WS_HH, SZ_HH)
    bstate = {}
    BACC = 239
    def b_regs(t): return range(BR + (t % RB)*8, BR + (t % RB)*8 + 8)
    def b_ops(t):
        ops = []
        if t % 4 == 0:
            ops.append(lambda t=t: A(f"s_movk_i32 s22, {t*1024}"))
        for rt in range(2):
            def f(t=t, rt=rt):
                if t >= RB: assert bstate.get(t-RB), ("B ring WAR", t)
                r = BR + (t % RB)*8 + 4*rt
                A(f"buffer_load_dwordx4 v[{r}:{r+3}], v{VB+rt}, s[16:19], s22 offen offset:{(t%4)*1024} {LSC}")
                vm.issue(("B", t))
            ops.append(f)
        return ops
    def b_reload(ts):
        def f():
            for t in ts:
                A(f"s_movk_i32 s54, {t*1024}")
                for rt in range(2):
                    r = BR + (t % RB)*8 + 4*rt
                    A(f"buffer_load_dwordx4 v[{r}:{r+3}], v{VB+rt}, s[16:19], s54 offen {LSC}")
        return f
    NB0 = 8
    NPOLL = 3
    def b_loads():
        b_reload(range(NPOLL))()
    def b_test():
        fill_test(A, [r for t in range(NPOLL) for r in b_regs(t)], BACC)
    SPEC = OPT.get("dspec", "1") == "1"
    if SPEC:
        retry_loop(C, b_loads, b_test, spec=b_reload(range(NPOLL, NB0)), tags=[("B", t) for t in range(NPOLL, NB0) for _ in range(2)])
    else:
        retry_loop(C, b_loads, b_test)
    cnt(A, 3)
    A("s_waitcnt lgkmcnt(0)")
    if NS == 4 and OPT.get("dbar", "1") == "1" or NS == 5 or True:
        A("s_barrier")
    stamp(A, 21)
    A("s_movk_i32 s22, 0")
    if not SPEC:
        for t in range(NPOLL, NB0):
            for f in b_ops(t): f()
    else:
        A(f"s_movk_i32 s22, {((NB0 - 1)//4)*4096}")
    XLATE = xlate()
    def x2_store(i):
        src = f"a[{X2A+4*i}:{X2A+4*i+3}]" if XLATE else f"v[{216+4*i}:{219+4*i}]"
        A(f"buffer_store_dwordx4 {src}, v{253 if i == 2 else 252}, s[28:31], 0 offen offset:{512*i} {SC}"); vm.issue("st")
    x2o = []
    for i in range(3):
        f = lambda i=i: x2_store(i)
        x2o.append(f)
    def mk(f):
        def g(): f()
        g.mem = True
        return g
    x2o = [mk(f) for f in x2o]
    if not XLATE:
        for f in x2o: f()
        x2o = []
    NF = 280; NSL = 10
    pending = []
    hhf = hhfill_ops(C)
    def lds_read(n):
        t, i = divmod(n, 14)
        s_ = t >> 1
        r = AR + (n % RA)*4
        A(f"ds_read_b128 v[{r}:{r+3}], v{VL + s_ % NS} offset:{((t & 1)*14 + i)*1024}")
    left = 77 - NPRE
    if OPT.get("dp", "1") == "0":
        W2_SCHED = {}
        for s_, cap in ((5, 5), (6, 5), (7, 5), (8, 13), (9, 13)):
            k = min(cap, left); W2_SCHED[s_] = k; left -= k
        def enter_slot(s_):
            if s_ >= NS: vm.wait([("W", s_)])
            A("s_barrier")
            if s_ >= 2 and s_ + NS - 2 < NSL:
                pending.extend(w13_ops(C, s_ + NS - 2))
            for _ in range(W2_SCHED.get(s_, 0)): pending.append(w2.pop(0))
            if s_ in (2, 3):
                for _ in range(5 if s_ == 2 else 4): pending.append(hhf.pop(0))
            if s_ == 7: flag_store(C, FX, 4, 5)
        def filler(k=1):
            for _ in range(k):
                if pending: pending.pop(0)()
        for t in range(NB0, RB): pending.extend(b_ops(t))
        for n in range(D_LA): lds_read(n)
        A(f"s_waitcnt lgkmcnt({D_LA-1})")
        for n in range(NF):
            t, i = divmod(n, 14)
            if i == 0 and NPOLL <= t + 1 < 20:
                vm.wait([("B", t+1)])
                pending[0:0] = check_ops(C, b_reload([t+1]), b_regs(t+1), BACC)
            a = AR + (n % RA)*4
            def mm(rt):
                c = ACC + (i*2 + rt)*4
                b = BR + (t % RB)*8 + 4*rt
                src = "0" if t == 0 else f"v[{c}:{c+3}]"
                A(f"v_mfma_f32_16x16x32_bf16 v[{c}:{c+3}], v[{a}:{a+3}], v[{b}:{b+3}], {src}")
            mm(0)
            nn = n + D_LA
            if nn < NF:
                if nn % 28 == 0: enter_slot(nn // 28)
                lds_read(nn)
            filler(1)
            mm(1)
            if i == 13:
                bstate[t] = True
                if t + RB < 20: pending.extend(b_ops(t + RB))
            if n + 1 < NF:
                rem = min(NF - 1 - (n+1), D_LA - 1)
                A(f"s_waitcnt lgkmcnt({rem})")
            filler(1)
    else:
        PER = int(OPT.get("dper", 2))
        sched = OPT.get("dsch", "G")
        vq = []
        def take(lst, k):
            out = []
            while lst and k > 0:
                f = lst.pop(0); out.append(f)
                if getattr(f, "mem", False): k -= 1
            return out
        w2a = [w2.pop(0) for _ in range(left)]
        SCH = {"B":  [(0, 4, 3), (0, 4, 0), (0, 0, 0), (0, 0, 0), (0, 0, 0), (3, 0, 0), (5, 0, 0), (5, 0, 0), (12, 0, 0), (12, 0, 0)],
               "C":  [(0, 0, 0), (0, 0, 0), (0, 0, 3), (0, 3, 0), (0, 3, 0), (0, 2, 0), (5, 0, 0), (5, 0, 0), (12, 0, 0), (12, 0, 0)],
               "D":  [(0, 0, 0), (0, 3, 3), (0, 2, 0), (0, 3, 0), (0, 0, 0), (3, 0, 0), (5, 0, 0), (5, 0, 0), (12, 0, 0), (12, 0, 0)],
               "E":  [(0, 0, 0), (0, 0, 0), (0, 0, 0), (0, 2, 1), (0, 2, 1), (0, 2, 1), (4, 2, 0), (6, 0, 0), (12, 0, 0), (12, 0, 0)],
               "F":  [(0, 0, 0), (4, 0, 0), (0, 0, 0), (0, 2, 1), (0, 2, 1), (0, 2, 1), (4, 2, 0), (6, 0, 0), (10, 0, 0), (10, 0, 0)],
               "G":  [(0, 2, 0), (0, 2, 0), (0, 1, 0), (0, 2, 0), (0, 1, 0), (0, 0, 2), (3, 0, 1), (5, 0, 0), (13, 0, 0), (13, 0, 0)],
               "H":  [(0, 1, 0), (0, 2, 0), (0, 1, 0), (0, 2, 0), (0, 1, 0), (0, 1, 1), (2, 0, 2), (6, 0, 0), (13, 0, 0), (13, 0, 0)],
               "I":  [(0, 2, 0), (0, 2, 0), (0, 2, 0), (0, 2, 0), (0, 0, 2), (3, 0, 1), (5, 0, 0), (5, 0, 0), (12, 0, 0), (12, 0, 0)],
               "J":  [(0, 0, 3), (0, 2, 0), (0, 2, 0), (0, 2, 0), (0, 2, 0), (3, 0, 0), (5, 0, 0), (5, 0, 0), (12, 0, 0), (12, 0, 0)],
               }[sched]
        FXS = int(OPT.get("fxs", {"B": 7, "C": 8, "D": 7, "E": 9, "F": 9, "G": 9, "H": 9, "I": 8, "J": 8}[sched]))
        def slot_ops(s_):
            ops = []
            if NS == 5 and s_ == 0: ops += w13_ops(C, 4)
            if s_ >= 2 and s_ + NS - 2 < NSL: ops += w13_ops(C, s_ + NS - 2)
            k2, kf, kx = SCH[s_]
            ops += take(x2o, kx)
            ops += take(hhf, kf)
            ops += take(w2a, k2)
            return ops
        def enter_slot(s_):
            if s_ >= NS0:
                assert vm.all.count(("W", s_)) == 7, ("ring slot not issued", s_)
                vm.wait([("W", s_)])
            if s_ == FXS:
                assert not hhf and not x2o, "fills pending"
                assert vm.all.count("HF") == 8
                vm.wait(["HF", "st"])
            A("s_barrier")
            if OPT.get("est") == "2": A(f"s_memtime s[{56+2*s_}:{57+2*s_}]")
            vq.extend(slot_ops(s_))
            if s_ == FXS:
                flag_store(C, FX, 4, 5)
        def vpop():
            q0 = vm.n_issued
            while vq and vm.n_issued == q0: vq.pop(0)()
        def filler():
            if pending: pending.pop(0)()
        for t in range(NB0, RB): vq.extend(b_ops(t))
        vq.extend(slot_ops(0))
        if OPT.get("est") == "2": A(f"s_memtime s[56:57]")
        for n in range(D_LA): lds_read(n)
        A(f"s_waitcnt lgkmcnt({D_LA-1})")
        for n in range(NF):
            t, i = divmod(n, 14)
            if i == 0 and NPOLL <= t + 1 < 20:
                assert vm.all.count(("B", t+1)) == 2, t
                vm.wait([("B", t+1)])
                pending[0:0] = check_ops(C, b_reload([t+1]), b_regs(t+1), BACC)
            a = AR + (n % RA)*4
            def mm(rt):
                c = ACC + (i*2 + rt)*4
                b = BR + (t % RB)*8 + 4*rt
                src = "0" if t == 0 else f"v[{c}:{c+3}]"
                A(f"v_mfma_f32_16x16x32_bf16 v[{c}:{c+3}], v[{a}:{a+3}], v[{b}:{b+3}], {src}")
            mm(0)
            nn = n + D_LA
            if nn < NF:
                if nn % 28 == 0: enter_slot(nn // 28)
                lds_read(nn)
            filler()
            mm(1)
            if i == 13:
                assert not pending
                bstate[t] = True
                if t + RB < 20: vq[0:0] = b_ops(t + RB)
            if n + 1 < NF:
                rem = min(NF - 1 - (n+1), D_LA - 1)
                A(f"s_waitcnt lgkmcnt({rem})")
            if n % PER == PER - 1 and vq: vpop()
            else: filler()
        pending = pending + vq + w2a
    stamp(A, 22)
    rest = pending + w2
    A("s_mul_i32 s21, s20, 55296")
    A("v_lshlrev_b32 v4, 4, v1")
    A(f"v_add_u32 v{VB}, s21, v4")
    A(f"v_add_u32 v{VB+1}, 55296, v{VB}")
    A("s_lshr_b32 s22, s41, 1")
    A("s_lshl_b32 s22, s22, 10")
    for f in rest: f()
    A("s_lshr_b32 s21, s44, 1")
    A("s_lshr_b32 s50, s21, 3")
    A("s_and_b32 s21, s21, 7")
    A("s_lshl_b32 s21, s21, 3")
    A("s_add_u32 s21, s21, s50")
    A("v_and_b32 v252, 3, v1")
    A("v_lshlrev_b32 v252, 6, v252")
    A("v_bfe_u32 v253, v1, 2, 2")
    A("v_lshl_add_u32 v252, v253, 1, v252")
    A("v_add_u32 v252, s21, v252")
    A("s_and_b32 s21, s44, 3")
    A("s_lshl_b32 s21, s21, 6")
    A("s_lshr_b32 s50, s44, 2")
    A("s_add_u32 s21, s21, s50")
    A("v_and_b32 v253, 7, v1")
    A("v_lshl_add_u32 v253, v253, 3, s21")
    A("v_cmp_gt_u32 vcc, 16, v1")
    A("v_cndmask_b32 v252, v253, v252, vcc")
    A(f"v_add_u32 v252, {FX >> FSH}, v252")
    A(f"v_lshlrev_b32 v252, {FSH}, v252")
    def fx_ld(): A(f"buffer_load_dword v253, v252, s[12:15], 0 offen {LSC}")
    fx_ld(); vm.issue("fx")
    T = 120
    NL = flit(-math.log2(math.e))
    A(f"v_mov_b32 v6, {NL}")
    def swiglu(ft, rt, dst):
        g = ACC + ((2*ft)*2 + rt)*4
        u = ACC + ((2*ft+1)*2 + rt)*4
        t = T + 4*rt
        for r in (0, 2): A(f"v_pk_mul_f32 {pr(t+r)}, {pr(g+r)}, {pr(6)} op_sel_hi:[1,0]")
        for r in range(4): A(f"v_exp_f32 v{t+r}, v{t+r}")
        for r in (0, 2): A(f"v_pk_mul_f32 {pr(g+r)}, {pr(g+r)}, {pr(u+r)}")
        for r in (0, 2): A(f"v_pk_add_f32 {pr(t+r)}, {pr(t+r)}, 1.0 op_sel_hi:[1,0]")
        for r in range(4): A(f"v_rcp_f32 v{t+r}, v{t+r}")
        for r in (0, 2): A(f"v_pk_mul_f32 {pr(g+r)}, {pr(g+r)}, {pr(t+r)}")
        A(f"v_cvt_pk_bf16_f32 v{dst}, v{g}, v{g+1}")
        A(f"v_cvt_pk_bf16_f32 v{dst+1}, v{g+2}, v{g+3}")
    Lodd, Ldone = C.lab("d_odd"), C.lab("d_done")
    A("v_lshlrev_b32 v4, 3, v1")
    A(f"v_sub_u32 v4, v{VB}, v4")
    A("v_add_u32 v5, 55296, v4")
    A("s_cmp_eq_u32 s41, 105")
    A(f"s_cselect_b32 s23, {hex(OOB)}, s22")
    A("s_bitcmp1_b32 s41, 0")
    A(f"s_cbranch_scc1 {Lodd}")
    OUTR = 128
    def variant(odd):
        groups = ([(0,)] + [(1,2),(3,4),(5,6)]) if odd else ([(0,1),(2,3),(4,5)] + [(6,)])
        for gi, grp in enumerate(groups):
            for rt in range(2):
                o = OUTR + 4*((2*gi + rt) % 4)
                if len(grp) == 2:
                    swiglu(grp[0], rt, o); swiglu(grp[1], rt, o+2)
                    so = "s23" if (odd and gi >= 2) else "s22"
                    A(f"buffer_store_dwordx4 v[{o}:{o+3}], v{VB+rt}, s[24:27], {so} offen offset:{1024*gi} {SC}")
                else:
                    swiglu(grp[0], rt, o)
                    A(f"buffer_store_dwordx2 v[{o}:{o+1}], v{4+rt}, s[24:27], s22 offen offset:{1024*gi + (512 if odd else 0)} {SC}")
    variant(False)
    A(f"s_branch {Ldone}")
    A(f"{Lodd}:")
    variant(True)
    A(f"{Ldone}:")
    A("s_waitcnt vmcnt(8)")
    Lfx = C.lab("fx")
    A(f"v_cmp_ne_u32 vcc, s{STAG}, v253")
    A(f"s_cbranch_vccnz {Lfx}")
    A(f"{Lfx}_b:")
    def tail():
        A(f"{Lfx}:")
        retry_loop(C, fx_ld, lambda: A(f"v_cmp_ne_u32 vcc, s{STAG}, v253"))
        A(f"s_branch {Lfx}_b")
    C.tail.append(tail)
    vm.q = []
    stamp(A, 23)

def phase_d2(C):
    A = C.A; vm = C.vm
    ACC, AR, BR = 8, 120, 152
    VL, VB = 232, 237
    e_geometry(C)
    srd(A, 32, 4, WS_W2, SZ_W2P)
    w2 = w2_ops(C)
    NPRE = int(OPT.get("w2pre", 36))
    for _ in range(NPRE): w2.pop(0)()
    A("s_lshl_b32 s20, s40, 3")
    A("s_lshl_b32 s21, s3, 1")
    A("s_add_u32 s20, s20, s21")
    A("v_lshlrev_b32 v4, 4, v1")
    A("s_mul_i32 s21, s20, 20480")
    A(f"v_add_u32 v{VB}, s21, v4")
    A(f"v_add_u32 v{VB+1}, 20480, v{VB}")
    for b in range(5):
        A(f"v_add_u32 v{VL+b}, {b*SLOT}, v4") if b else A(f"v_mov_b32 v{VL}, v4")
    hh_setup(C)
    srd(A, 16, 4, WS_H2P, SZ_H2P)
    srd(A, 24, 4, WS_HH, SZ_HH)
    bstate = {}
    BACC = 239
    def b_regs(t): return range(BR + (t % RB)*8, BR + (t % RB)*8 + 8)
    def b_ops(t):
        ops = []
        if t % 4 == 0:
            ops.append(lambda t=t: A(f"s_movk_i32 s22, {t*1024}"))
        for rt in range(2):
            def f(t=t, rt=rt):
                if t >= RB: assert bstate.get(t-RB), ("B ring WAR", t)
                r = BR + (t % RB)*8 + 4*rt
                A(f"buffer_load_dwordx4 v[{r}:{r+3}], v{VB+rt}, s[16:19], s22 offen offset:{(t%4)*1024} {LSC}")
                vm.issue(("B", t))
            ops.append(f)
        return ops
    def b_reload(ts):
        def f():
            for t in ts:
                A(f"s_movk_i32 s54, {t*1024}")
                for rt in range(2):
                    r = BR + (t % RB)*8 + 4*rt
                    A(f"buffer_load_dwordx4 v[{r}:{r+3}], v{VB+rt}, s[16:19], s54 offen {LSC}")
        return f
    NB0 = 8
    NPOLL = 3
    retry_loop(C, b_reload(range(NPOLL)), lambda: fill_test(A, [r for t in range(NPOLL) for r in b_regs(t)], BACC),
               spec=b_reload(range(NPOLL, NB0)), tags=[("B", t) for t in range(NPOLL, NB0) for _ in range(2)])
    cnt(A, 3)
    A("s_waitcnt lgkmcnt(0)")
    A("s_barrier")
    stamp(A, 21)
    def mk(f):
        f.mem = True
        return f
    x2o = []
    for i in range(3):
        def x2_store(i=i):
            A(f"buffer_store_dwordx4 a[{X2A+4*i}:{X2A+4*i+3}], v{253 if i == 2 else 252}, s[28:31], 0 offen offset:{512*i} {SC}"); vm.issue("st")
        x2o.append(mk(x2_store))
    NF = 280; NT = 224
    def nt(n):
        if n < NT: return divmod(n, 14)
        k, r = divmod(n - NT, 8)
        return 16 + r//2, 2*k + (r & 1)
    pending = []
    hhf = hhfill_ops(C)
    def lds_read(n):
        t, i = nt(n)
        r = AR + (n % RA)*4
        A(f"ds_read_b128 v[{r}:{r+3}], v{VL + ring_buf(t >> 1)} offset:{((t & 1)*14 + i)*1024}")
    PER = int(OPT.get("dper", 2))
    vq = []
    def take(lst, k):
        out = []
        while lst and k > 0:
            f = lst.pop(0); out.append(f)
            if getattr(f, "mem", False): k -= 1
        return out
    SCH = {"A": [(0, 2, 0), (0, 2, 0), (0, 1, 0), (0, 2, 0), (0, 1, 1), (3, 0, 2), (7, 0, 0), (14, 0, 0), (14, 0, 0)],
           "B": [(0, 2, 0), (0, 1, 0), (0, 1, 0), (0, 2, 0), (0, 2, 0), (0, 0, 3), (7, 0, 0), (14, 0, 0), (14, 0, 0)],
           "C": [(0, 3, 0), (0, 0, 0), (0, 2, 0), (0, 2, 0), (0, 1, 1), (2, 0, 2), (7, 0, 0), (14, 0, 0), (10, 0, 0)],
           }[OPT.get("dsch2", "B")]
    S9 = int(OPT.get("s9", 1))
    def slot_ops(s_):
        ops = []
        if s_ == S9: ops += w13_ops(C, 9)
        if 2 <= s_ <= 6: ops += w13_ops(C, s_ + 2)
        k2, kf, kx = SCH[s_]
        ops += take(x2o, kx)
        ops += take(hhf, kf)
        if s_ < 7: assert NPRE//6*5 + NPRE % 6 + sum(q[0] for q in SCH[:s_+1]) <= 60
        ops += take(w2, k2)
        if OPT.get("xq") == "now2" and s_ >= 6: w2.clear()
        return ops
    def enter_slot(s_):
        if s_ >= NS0:
            for z in ((s_,) if s_ < 8 else (8, 9)):
                assert vm.all.count(("W", z)) == 7, ("ring slot not issued", z)
            vm.wait([("W", s_)] if s_ < 8 else [("W", 8), ("W", 9)])
        if s_ == 8:
            assert not hhf and not x2o, "fills pending"
            assert vm.all.count("HF") == 8
            vm.wait(["HF", "st"])
        A("s_barrier")
        if OPT.get("est") == "2": A(f"s_memtime s[{56+2*s_}:{57+2*s_}]")
        vq.extend(slot_ops(s_))
        if s_ == 8: flag_store(C, FX, 4, 5)
    def vpop():
        q0 = vm.n_issued
        while vq and vm.n_issued == q0: vq.pop(0)()
    T, OUTR = 176, 184
    fin = []
    def emit(x): fin.append(lambda x=x: A(x))
    def fin_setup():
        emit("s_mul_i32 s21, s20, 55296")
        emit("v_lshlrev_b32 v4, 4, v1")
        emit(f"v_add_u32 v{VB}, s21, v4")
        emit(f"v_add_u32 v{VB+1}, 55296, v{VB}")
        for x in ("s_lshr_b32 s21, s44, 1",
                  "s_lshr_b32 s50, s21, 3",
                  "s_and_b32 s21, s21, 7",
                  "s_lshl_b32 s21, s21, 3",
                  "s_add_u32 s21, s21, s50",
                  "v_and_b32 v252, 3, v1",
                  "v_lshlrev_b32 v252, 6, v252",
                  "v_bfe_u32 v253, v1, 2, 2",
                  "v_lshl_add_u32 v252, v253, 1, v252",
                  "v_add_u32 v252, s21, v252",
                  "s_and_b32 s21, s44, 3",
                  "s_lshl_b32 s21, s21, 6",
                  "s_lshr_b32 s50, s44, 2",
                  "s_add_u32 s21, s21, s50",
                  "v_and_b32 v253, 7, v1",
                  "v_lshl_add_u32 v253, v253, 3, s21",
                  "v_cmp_gt_u32 vcc, 16, v1",
                  "v_cndmask_b32 v252, v253, v252, vcc",
                  f"v_add_u32 v252, {FX >> FSH}, v252",
                  f"v_lshlrev_b32 v252, {FSH}, v252",
                  f"v_mov_b32 v6, {flit(-math.log2(math.e))}",
                  "v_lshlrev_b32 v4, 3, v1",
                  f"v_sub_u32 v4, v{VB}, v4",
                  "v_add_u32 v5, 55296, v4",
                  "s_lshr_b32 s22, s41, 1",
                  "s_lshl_b32 s22, s22, 10",
                  "s_bitcmp1_b32 s41, 0",
                  "s_cselect_b32 s21, 1, 6",
                  "s_cselect_b32 s23, 1024, 0",
                  "s_lshl_b32 s21, s21, 9",
                  "s_add_u32 s21, s21, s22",
                  "s_add_u32 s22, s22, s23",
                  "s_cmp_eq_u32 s41, 105",
                  f"s_cselect_b32 s23, {hex(OOB)}, s22"):
            emit(x)
    def fx_ld(): A(f"buffer_load_dword v253, v252, s[12:15], 0 offen {LSC}")
    def swiglu(ft, rt, dst):
        g = ACC + ((2*ft)*2 + rt)*4
        u = ACC + ((2*ft+1)*2 + rt)*4
        t = T + 4*rt
        if OPT.get("dpk", "0") == "0" and (ft < 6 or OPT.get("dpk6", "1") == "0"):
            for r in range(4): emit(f"v_mul_f32 v{t+r}, v6, v{g+r}")
            for r in range(4): emit(f"v_exp_f32 v{t+r}, v{t+r}")
            for r in range(4): emit(f"v_mul_f32 v{g+r}, v{g+r}, v{u+r}")
            for r in range(4): emit(f"v_add_f32 v{t+r}, 1.0, v{t+r}")
            for r in range(4): emit(f"v_rcp_f32 v{t+r}, v{t+r}")
            for r in range(4): emit(f"v_mul_f32 v{g+r}, v{g+r}, v{t+r}")
            emit(f"v_cvt_pk_bf16_f32 v{dst}, v{g}, v{g+1}")
            emit(f"v_cvt_pk_bf16_f32 v{dst+1}, v{g+2}, v{g+3}")
            return
        for r in (0, 2): emit(f"v_pk_mul_f32 {pr(t+r)}, {pr(g+r)}, {pr(6)} op_sel_hi:[1,0]")
        for r in range(4): emit(f"v_exp_f32 v{t+r}, v{t+r}")
        for r in (0, 2): emit(f"v_pk_mul_f32 {pr(g+r)}, {pr(g+r)}, {pr(u+r)}")
        for r in (0, 2): emit(f"v_pk_add_f32 {pr(t+r)}, {pr(t+r)}, 1.0 op_sel_hi:[1,0]")
        for r in range(4): emit(f"v_rcp_f32 v{t+r}, v{t+r}")
        for r in (0, 2): emit(f"v_pk_mul_f32 {pr(g+r)}, {pr(g+r)}, {pr(t+r)}")
        emit(f"v_cvt_pk_bf16_f32 v{dst}, v{g}, v{g+1}")
        emit(f"v_cvt_pk_bf16_f32 v{dst+1}, v{g+2}, v{g+3}")
    def pair_done(k):
        gi = k // 2
        for rt in range(2):
            o = OUTR + 4*((2*gi + rt) % 4)
            swiglu(k, rt, o + 2*(k & 1))
            if k & 1:
                def st(o=o, rt=rt, gi=gi):
                    if OPT.get("xp") == "hv" and gi < 2: return
                    A(f"buffer_store_dwordx4 v[{o}:{o+3}], v{VB+rt}, s[24:27], {'s23' if gi else 's22'} offen offset:{1024*gi} {SC}"); vm.issue("hh")
                fin.append(st)
            elif k == 6:
                def st(o=o, rt=rt):
                    A(f"buffer_store_dwordx2 v[{o}:{o+1}], v{4+rt}, s[24:27], s21 offen {SC}"); vm.issue("hh")
                fin.append(st)
    FXN = int(OPT.get("fxn", 250))
    def gap(n):
        if pending: pending.pop(0)()
        elif n >= NT:
            for _ in range(int(OPT.get("dfk", 3))):
                if fin: fin.pop(0)()
    for t in range(NB0, RB): vq.extend(b_ops(t))
    vq.extend(slot_ops(0))
    if OPT.get("est") == "2": A(f"s_memtime s[56:57]")
    for n in range(D_LA): lds_read(n)
    A(f"s_waitcnt lgkmcnt({D_LA-1})")
    for n in range(NF):
        t, i = nt(n)
        if n < NT and i == 0:
            for z in [t+1] + ([t+4] if t in (13, 14, 15) else []):
                if NPOLL <= z < 20:
                    assert vm.all.count(("B", z)) == 2, z
                    vm.wait([("B", z)])
                    pending[0:0] = check_ops(C, b_reload([z]), b_regs(z), BACC)
        if n == NT:
            assert not pending
            fin_setup()
        if n == FXN:
            def fxl(): fx_ld(); vm.issue("fx")
            fin.append(fxl)
        a = AR + (n % RA)*4
        def mm(rt):
            c = ACC + (i*2 + rt)*4
            b = BR + (t % RB)*8 + 4*rt
            src = "0" if t == 0 else f"v[{c}:{c+3}]"
            A(f"v_mfma_f32_16x16x32_bf16 v[{c}:{c+3}], v[{a}:{a+3}], v[{b}:{b+3}], {src}")
        mm(0)
        nn = n + D_LA
        if nn < NF:
            if nn % 28 == 0 and nn <= NT: enter_slot(nn // 28)
            lds_read(nn)
        gap(n)
        mm(1)
        if n < NT and i == 13:
            assert not pending
            bstate[t] = True
            if t + RB < 20: vq[0:0] = b_ops(t + RB)
        if n + 1 < NF:
            rem = min(NF - 1 - (n+1), D_LA - 1)
            A(f"s_waitcnt lgkmcnt({rem})")
        if n % PER == PER - 1 and vq: vpop()
        else: gap(n)
        if n >= NT and (n - NT) % 8 == 7: pair_done((n - NT)//8)
    stamp(A, 22)
    for f in vq + w2: f()
    while fin: fin.pop(0)()
    vm.wait(["fx"])
    Lfx = C.lab("fx")
    A(f"v_cmp_ne_u32 vcc, s{STAG}, v253")
    A(f"s_cbranch_vccnz {Lfx}")
    A(f"{Lfx}_b:")
    def tail():
        A(f"{Lfx}:")
        retry_loop(C, fx_ld, lambda: A(f"v_cmp_ne_u32 vcc, s{STAG}, v253"))
        A(f"s_branch {Lfx}_b")
    C.tail.append(tail)
    vm.q = []
    stamp(A, 23)

def phase_e(C):
    A = C.A; vm = C.vm
    ACC = 8
    RING = [88, 104, 120, 136, 176, 192, 208, 224]
    VH = 240
    VH2 = 248
    PROBE = OPT.get("epr", "0") == "1" and OPT.get("eq", "1") == "1"
    C.probes = [236, 237, 238][:int(OPT.get("npb", 3))]
    if PROBE:
        assert DT
        srd(A, 16, 4, WS_HH, SZ_HH)
        PL = int(OPT.get("epl", 4))
        A("v_lshrrev_b32 v7, 4, v1")
        A("s_lshl_b32 s20, s44, 2")
        A("v_add_u32 v7, s20, v7")
        A("v_mul_u32_u24 v7, 55296, v7")
        A("v_bfe_u32 v4, v1, 3, 1")
        A("v_mul_u32_u24 v4, 7168, v4")
        A("v_add_u32 v7, v7, v4")
        A("v_bfe_u32 v4, v1, 2, 1")
        A("v_lshl_add_u32 v7, v4, 9, v7")
        A(f"v_and_b32 v4, {PL - 1}, v1")
        A("v_lshl_add_u32 v7, v4, 7, v7")
        A("s_lshl_b32 s21, s46, 10")
        A("s_add_u32 s21, s21, 3072")
        A("v_add_u32 v7, s21, v7")
        A(f"buffer_load_dword v{C.probes[0]}, v7, s[16:19], 0 offen {LSC}")
    def probe(k):
        if PROBE and k < len(C.probes): A(f"buffer_load_dword v{C.probes[k]}, v7, s[16:19], 0 offen {LSC}")
    A("v_lshlrev_b32 v2, 4, v1")
    A("s_lshl_b32 s20, s44, 2")
    if OPT.get("xp") == "r0": A("s_mov_b32 s20, 0")
    if OPT.get("xp") == "r2": A("s_and_b32 s20, s20, 0x64")
    A("s_lshl_b32 s21, s46, 10")
    ROT = OPT.get("erot", "0") == "1" and OPT.get("eq", "1") == "1"
    if ROT:
        A("s_lshr_b32 s23, s49, 3")
        A("s_add_u32 s23, s23, s3")
        A("s_and_b32 s23, s23, 3")
    else:
        A("s_mov_b32 s23, s3")
    for q in range(4):
        A(f"s_add_u32 s22, s23, {q}")
        A("s_and_b32 s22, s22, 3")
        A("s_add_u32 s22, s22, s20")
        A("s_mul_i32 s22, s22, 55296")
        A("s_add_u32 s22, s22, s21")
        A(f"v_add_u32 v{VH+q}, s22, v2")
        A(f"v_lshl_add_u32 v{VH2+q}, v1, 3, s22")
    A("s_cmp_eq_u32 s3, 3")
    A(f"s_mov_b32 s47, {12*1024}")
    A(f"s_cselect_b32 s47, {hex(OOB)}, s47")
    probe(1)
    if not PROBE: srd(A, 16, 4, WS_HH, SZ_HH)
    srd(A, 24, 4, WS_X2, SZ_X)
    srd(A, 28, 4, WS_MOD, SZ_MOD)
    srd(A, 36, 8, 0, SZ_X)
    A("v_and_b32 v3, 15, v1")
    A("s_lshl_b32 s21, s44, 6")
    A("s_lshl_b32 s22, s23, 4")
    A("s_add_u32 s21, s21, s22")
    A("v_add_u32 v3, s21, v3")
    A("v_lshrrev_b32 v4, 8, v3")
    A("v_bfe_u32 v5, v3, 3, 3")
    A("v_lshl_add_u32 v4, v4, 3, v5")
    A("v_bfe_u32 v5, v3, 6, 2")
    A("v_and_b32 v6, 7, v3")
    A("v_lshl_add_u32 v5, v5, 3, v6")
    A("v_lshl_add_u32 v4, v5, 6, v4")
    A("v_mul_u32_u24 v244, 1280, v4")
    A("v_lshrrev_b32 v5, 4, v1")
    A("s_mul_i32 s21, s45, 160")
    A("v_lshl_add_u32 v244, v5, 3, v244")
    A("v_add_u32 v244, s21, v244")
    A("s_mul_i32 s21, s45, 320")
    A(f"s_add_u32 s21, s21, {5*2560}")
    A("v_lshlrev_b32 v245, 4, v5")
    A("v_add_u32 v245, s21, v245")
    HACC = 252
    probe(2)
    if OPT.get("eq", "1") == "1":
        e_qmajor(C, ACC, VH, VH2, HACC)
    else:
        e_stepmajor(C, ACC, RING, VH, VH2, HACC)
    L = C.lab("ep")
    A("s_or_b32 s50, s2, s3")
    A("s_cmp_lg_u32 s50, 0")
    A(f"s_cbranch_scc1 {L}")
    srd(A, 16, 4, WS_EPOCH, 128)
    A("v_mov_b32 v4, 0")
    A(f"v_mov_b32 v5, s{STAG}")
    A("s_mov_b64 exec, 1")
    A(f"buffer_store_dword v5, v4, s[16:19], 0 offen {SC}")
    A("s_mov_b64 exec, -1")
    A(f"{L}:")

def e_stepmajor(C, ACC, RING, VH, VH2, HACC):
    A = C.A; vm = C.vm
    def h_regs(st): return range(RING[st % 8], RING[st % 8] + 16)
    def h_reload(sts):
        def f():
            for st in sts:
                if st >= 12: A("s_mov_b32 s54, s47"); off = (st - 12)*1024
                else: A(f"s_movk_i32 s54, {st*1024}"); off = 0
                for q in range(4):
                    r = RING[st % 8] + 4*q
                    if st % 7 == 3:
                        for z in range(2):
                            A(f"buffer_load_dwordx2 v[{r+2*z}:{r+2*z+1}], v{VH2+q}, s[16:19], s54 offen offset:{off + 512*z} {LSC}")
                    else:
                        A(f"buffer_load_dwordx4 v[{r}:{r+3}], v{VH+q}, s[16:19], s54 offen offset:{off} {LSC}")
        return f
    def h_ops(st):
        ops = []
        if st % 4 == 0:
            ops.append((lambda st=st: A(f"s_movk_i32 s22, {st*1024}")) if st < 12 else (lambda: A("s_mov_b32 s22, s47")))
        for q in range(4):
            r = RING[st % 8] + 4*q
            if st % 7 == 3:
                for z in range(2):
                    def f(q=q, st=st, r=r, z=z):
                        A(f"buffer_load_dwordx2 v[{r+2*z}:{r+2*z+1}], v{VH2+q}, s[16:19], s22 offen offset:{(st%4)*1024 + 512*z} {LSC}")
                        vm.issue(("H", st))
                    ops.append(f)
            else:
                def f(q=q, st=st, r=r):
                    A(f"buffer_load_dwordx4 v[{r}:{r+3}], v{VH+q}, s[16:19], s22 offen offset:{(st%4)*1024} {LSC}")
                    vm.issue(("H", st))
                ops.append(f)
        return ops
    NPOLL = 3
    def h_loads():
        h_reload(range(NPOLL))()
    def h_test():
        fill_test(A, [r for st in range(NPOLL) for r in h_regs(st)], HACC)
    retry_loop(C, h_loads, h_test)
    cnt(A, 4)
    estamp(A, 0)
    A("s_barrier")
    A("s_movk_i32 s22, 0")
    for st in range(NPOLL, 8):
        for f in h_ops(st): f()
    pending = []
    for st in range(NST):
        if NPOLL <= st + 1 < NST:
            vm.wait([("H", st+1)])
            pending[0:0] = check_ops(C, h_reload([st+1]), h_regs(st+1), HACC)
        k = 0
        for p in range(5):
            for q in range(4):
                c = ACC + (q*5+p)*4
                src = "0" if st == 0 else f"v[{c}:{c+3}]"
                wk, wr = wfrag(st, p)
                h = RING[st % 8] + 4*q
                A(f"v_mfma_f32_16x16x32_bf16 v[{c}:{c+3}], {wk}[{wr}:{wr+3}], v[{h}:{h+3}], {src}")
                k += 1
                if pending: pending.pop(0)()
        while pending: pending.pop(0)()
        if st + 8 < NST: pending.extend(h_ops(st + 8))
        if st == 7:
            def xg():
                for p in range(5):
                    A(f"buffer_load_dwordx2 {pr(208+2*p)}, v244, s[24:27], 0 offen offset:{32*p} {LSC}")
                    vm.issue("XG")
                    A(f"buffer_load_dwordx4 v[{220+4*p}:{223+4*p}], v245, s[28:31], 0 offen offset:{64*p} {LSC}")
                    vm.issue("XG")
            pending.append(xg)
    while pending: pending.pop(0)()
    estamp(A, 1)
    X, G = 208, 220
    A("v_lshlrev_b32 v2, 4, v1")
    for q in range(1, 4):
        A(f"s_add_u32 s21, s3, {q}")
        A("s_and_b32 s21, s21, 3")
        A("s_mul_i32 s21, s21, 15360")
        A(f"s_add_u32 s21, s21, {(q-1)*5120}")
        A(f"v_add_u32 v6, s21, v2")
        for p in range(5):
            c = ACC + (q*5+p)*4
            A(f"ds_write_b128 v6, v[{c}:{c+3}] offset:{p*1024}")
    A("s_mul_i32 s21, s3, 15360")
    A("v_add_u32 v6, s21, v2")
    A("s_waitcnt lgkmcnt(0)")
    A("s_barrier")
    estamp(A, 2)
    R = 88
    for k in range(3):
        for p in range(5):
            r = R + k*20 + 4*p
            A(f"ds_read_b128 v[{r}:{r+3}], v6 offset:{k*5120 + p*1024}")
    for k in range(3):
        A(f"s_waitcnt lgkmcnt({5*(2-k)})")
        for r in range(0, 20, 2):
            A(f"v_pk_add_f32 {pr(ACC+r)}, {pr(ACC+r)}, {pr(R+k*20+r)}")
    vm.wait(["XG"])
    for p in range(5):
        for z in range(2):
            A(f"v_lshlrev_b32 v4, 16, v{X+2*p+z}")
            A(f"v_and_b32 v5, 0xffff0000, v{X+2*p+z}")
            A(f"v_pk_fma_f32 {pr(4)}, {pr(G+4*p+2*z)}, {pr(ACC+4*p+2*z)}, {pr(4)}")
            A(f"v_cvt_pk_bf16_f32 v{88+2*p+z}, v4, v5")
        A(f"buffer_store_dwordx2 {pr(88+2*p)}, v244, s[36:39], 0 offen offset:{32*p} {OPT.get('osc','').replace('+',' ')}")
    estamp(A, 3)

def e_qmajor(C, ACC, VH, VH2, HACC):
    A = C.A; vm = C.vm
    NR = int(OPT.get("enr", 32))
    NJ = 4*NST
    QO = (1, 2, 3, 0)
    RED = SLOT if DT else 2*SLOT if NS == 4 else 0
    def slot(j):
        i = j % NR
        return 88 + 4*i if i < 16 else 176 + 4*(i - 16)
    def regs(j): return list(range(slot(j), slot(j) + 4))
    A("s_movk_i32 s20, 4096")
    A("s_movk_i32 s21, 8192")
    state = dict(hi=0)
    def load(j, track=True):
        q, st = QO[j // NST], j % NST
        so = ["0", "s20", "s21", "s47"][st // 4]
        r = slot(j)
        if st % 7 == 3:
            for z in range(2):
                A(f"buffer_load_dwordx2 v[{r+2*z}:{r+2*z+1}], v{VH2+q}, s[16:19], {so} offen offset:{(st % 4)*1024 + 512*z} {LSC}")
                if track: vm.issue(("H", j))
        else:
            A(f"buffer_load_dwordx4 v[{r}:{r+3}], v{VH+q}, s[16:19], {so} offen offset:{(st % 4)*1024} {LSC}")
            if track: vm.issue(("H", j))
        if track: state["hi"] = j + 1
    def nloads(js): return sum(2 if (j % NST) % 7 == 3 else 1 for j in js)
    def check(j):
        if OPT.get("xp") in ("hv", "nc"): return []
        L = C.lab("ex")
        rr = regs(j) + regs(j+1)
        ops = max_ops(A, rr, HACC)
        ops.append(lambda: A(f"v_cmp_eq_u32 vcc, -1, v{HACC}"))
        def br():
            A(f"s_cbranch_vccnz {L}")
            A(f"{L}_b:")
            hi = state["hi"]
            def tail():
                A(f"{L}:")
                q = vm.q
                retry_loop(C, lambda: [load(k, False) for k in range(j, hi)], lambda: fill_test(A, rr, HACC))
                if CNT and PROF and OPT.get("crep"):
                    A("s_add_u32 s70, s70, 1")
                    A("s_add_u32 s69, s69, s53")
                vm.q = q
                A(f"s_branch {L}_b")
            C.tail.append(tail)
        ops.append(br)
        return ops
    if CNT and PROF and OPT.get("crep"):
        A("s_mov_b32 s70, 0")
        A("s_mov_b32 s69, 0")
    def lds_addr():
        A("v_lshlrev_b32 v2, 4, v1")
        for q in range(1, 4):
            A(f"s_add_u32 s22, s3, {q}")
            A("s_and_b32 s22, s22, 3")
            A("s_mul_i32 s22, s22, 15360")
            A(f"s_add_u32 s22, s22, {RED + (q-1)*5120}")
            A(f"v_add_u32 v{252+q}, s22, v2")
        A("s_mul_i32 s22, s3, 15360")
        A(f"s_add_u32 s22, s22, {RED}")
        A("v_add_u32 v6, s22, v2")
    NP = int(OPT.get("enp", 4))
    if OPT.get("epr", "0") == "1":
        NPB = len(C.probes)
        L = C.lab("pb")
        A("s_mov_b32 s53, 0")
        A(f"{L}:")
        for k, r in enumerate(C.probes):
            A(f"s_waitcnt vmcnt({NPB - 1})")
            A(f"v_cmp_eq_u32 vcc, -1, v{r}")
            A(f"s_cbranch_vccz {L}_x")
            A(f"buffer_load_dword v{r}, v7, s[16:19], 0 offen {LSC}")
        A("s_add_u32 s53, s53, 1")
        A(f"s_cmp_lt_u32 s53, {RETRY_LIMIT}")
        A(f"s_cbranch_scc1 {L}")
        A(f"{L}_x:")
        cnt(A, 4)
        estamp(A, 0)
        vm.q = ["stale"]*(NPB - 1)
        NP = 0
        for j in range(NR): load(j)
        lds_addr()
        vm.wait([("H", 0), ("H", 1)])
        for f in check(0): f()
    else:
        NSP = int(OPT.get("ens", 4))
        if OPT.get("ewait", "0") == "1": A("s_waitcnt vmcnt(0)")
        tags = [("H", j) for j in range(NP, NSP) for _ in range(nloads([j]))]
        retry_loop(C, lambda: [load(j, False) for j in range(NP)],
                   lambda: fill_test(A, [r for j in range(NP) for r in regs(j)], HACC),
                   spec=lambda: [load(j, False) for j in range(NP, NSP)], tags=tags)
        cnt(A, 4)
        estamp(A, 0)
        state["hi"] = NSP
        for j in range(NSP, NR): load(j)
        lds_addr()
    X, G = 208, 220
    assert NR == 32
    def xg_ops():
        ops = []
        for p in range(5):
            def fx(p=p):
                A(f"buffer_load_dwordx2 {pr(X+2*p)}, v244, s[24:27], 0 offen offset:{32*p} {LSC}"); vm.issue("XG")
            def fg(p=p):
                A(f"buffer_load_dwordx4 v[{G+4*p}:{G+4*p+3}], v245, s[28:31], 0 offen offset:{64*p} {LSC}"); vm.issue("XG")
            ops += [fx, fg]
        return ops
    P = ACC + 20
    pending = []; mem = []
    gaps_left = [5*NJ]
    def gap():
        gaps_left[0] -= 1
        k = 2 if len(pending) > BUSY[0] else 1
        for _ in range(k):
            if pending: pending.pop(0)()
    BUSY = [1000]
    for j in range(NJ):
        qi, st = divmod(j, NST)
        q = QO[qi]
        if OPT.get("est") == "3" and j % 6 == 0: A(f"s_memtime s[{56+2*(j//6)}:{57+2*(j//6)}]")
        if j % 2 == 0 and j + 2 < NJ and j + 2 >= NP:
            assert state["hi"] >= j + 4
            vm.wait([("H", j+2), ("H", j+3)])
            pending[0:0] = check(j + 2)
        if st == 0 and qi > 0:
            qp = QO[qi-1]
            for p in range(5):
                c = ACC + (qp*5+p)*4
                pending.append(lambda c=c, p=p, qp=qp: A(f"ds_write_b128 v{252+qp}, v[{c}:{c+3}] offset:{p*1024}"))
        if j == 32: mem.extend(xg_ops())
        if j == 44:
            assert not any(getattr(f, "w", 0) for f in pending)
            A("s_waitcnt lgkmcnt(0)")
            A("s_barrier")
            estamp(A, 2)
            for k in range(3):
                for p in range(5):
                    r = P + k*20 + 4*p
                    pending.append(lambda r=r, k=k, p=p: A(f"ds_read_b128 v[{r}:{r+3}], v6 offset:{k*5120 + p*1024}"))
            pending.append(lambda: A("s_waitcnt lgkmcnt(5)"))
            for r in range(20):
                pending.append(lambda r=r: A(f"v_add_f32 v{P+r}, v{P+r}, v{P+20+r}"))
            pending.append(lambda: A("s_waitcnt lgkmcnt(0)"))
            for r in range(20):
                pending.append(lambda r=r: A(f"v_add_f32 v{P+r}, v{P+r}, v{P+40+r}"))
            BUSY[0] = 0
        for p in range(5):
            c = ACC + (q*5+p)*4
            src = "0" if st == 0 else f"v[{c}:{c+3}]"
            wk, wr = wfrag(st, p)
            h = slot(j)
            A(f"v_mfma_f32_16x16x32_bf16 v[{c}:{c+3}], {wk}[{wr}:{wr+3}], v[{h}:{h+3}], {src}")
            if p == 0 and j >= 1 and j - 1 + NR < NJ and j - 1 + NR >= state["hi"]:
                load(j - 1 + NR)
            elif p in (0, 2) and mem:
                mem.pop(0)()
            else:
                gap()
        if st == NST - 1 and qi < 3 or j == 43:
            pass
        if j == 43:
            while pending: pending.pop(0)()
    estamp(A, 1)
    while pending: pending.pop(0)()
    vm.wait(["XG"])
    for p in range(5):
        for z in range(2):
            r = 4*p + 2*z
            A(f"v_pk_add_f32 {pr(ACC+r)}, {pr(ACC+r)}, {pr(P+r)}")
            A(f"v_lshlrev_b32 v4, 16, v{X+2*p+z}")
            A(f"v_and_b32 v5, 0xffff0000, v{X+2*p+z}")
            A(f"v_pk_fma_f32 {pr(4)}, {pr(G+r)}, {pr(ACC+r)}, {pr(4)}")
            A(f"v_cvt_pk_bf16_f32 v{88+2*p+z}, v4, v5")
        A(f"buffer_store_dwordx2 {pr(88+2*p)}, v244, s[36:39], 0 offen offset:{32*p} {OPT.get('osc','').replace('+',' ')}")
    estamp(A, 3)

def fused(name=MAIN):
    K = Kern(name, 256, LDS_TOTAL, vgpr=256, agpr=256)
    A = K.A
    C = Ctx(A)
    phase0(C)
    phase_a(C)
    phase_b(C)
    phase_c(C)
    (phase_d2 if DT else phase_d)(C)
    phase_e(C)
    A("all_end:")
    A("s_endpgm")
    for f in C.tail: f()
    A("code_end:")
    return K
```

```python
import os, math
from gen_common import *
from gen_k5 import VM
from gen_k2 import layernorm, unpack_bf16, PITCH2

MAIN = "adaLN_cond__spectral_gfnet__glu_gated_swiglu__prompt_kernel"
OPT = dict(kv.split("=") for kv in os.environ.get("OPT", "").split(",") if kv)
SC = OPT.get("sc", "sc0+sc1").replace("+", " ")
LSC = "sc1"
WS_EPOCH = 0x80000
WS_FLG = 0xB0000
FA, FW, FP, FH1, FH2, FX = [0x8000*i for i in range(6)]
FSH = int(OPT.get("fsh", 5))
SZ_FLG = 6*0x8000
WS_MODG = 0xA0000
NB_WG = 161
BLK = 10368
SZ_Y1N = 256*BLK
TAGSTEP = 0x9E3779B9
RETRY_LIMIT = int(OPT.get("rl", 4000000))
CUM = OPT.get("cum", "1") == "1" and not (CNT and PROF)
DG = OPT.get("dg") == "1"
STAG = 55

ESTAMP = OPT.get("est") == "1"
_stamp = stamp
def stamp(A, i):
    if ESTAMP and i in (0, 1, 2, 3, 5): return
    if OPT.get("est") in ("2", "3") and i < 20: return
    if OPT.get("est") == "9": return
    _stamp(A, i)
def estamp(A, i):
    if ESTAMP: _stamp(A, i)
def fk(x): return hex(f32bits(float(x)))
def pr(r): return f"v[{r}:{r+1}]"
def mf32(A, d, a, b, first):
    c = "0" if first else f"v[{d}:{d+15}]"
    A(f"v_mfma_f32_32x32x16_bf16 v[{d}:{d+15}], v[{a}:{a+3}], v[{b}:{b+3}], {c}")
def csel(A, d, a, b):
    A(f"s_mov_b32 {d}, {b}")
    A(f"s_cselect_b32 {d}, {a}, {d}")

class Ctx:
    def __init__(self, A):
        self.A = A; self.vm = VM(A); self.n = 0; self.tail = []
    def lab(self, p):
        self.n += 1; return f"{p}_{self.n}"

def max_ops(A, regs, acc):
    regs = list(regs); ops = []
    ops.append(lambda r=regs[:3]: A(f"v_max3_u32 v{acc}, v{r[0]}, v{r[1]}, v{r[2]}"))
    rest = regs[3:]
    while rest:
        if len(rest) >= 2:
            ops.append(lambda r=rest[:2]: A(f"v_max3_u32 v{acc}, v{acc}, v{r[0]}, v{r[1]}")); rest = rest[2:]
        else:
            ops.append(lambda r=rest[0]: A(f"v_max_u32 v{acc}, v{acc}, v{r}")); rest = []
    return ops
def fill_test(A, regs, acc):
    for f in max_ops(A, regs, acc): f()
    A(f"v_cmp_eq_u32 vcc, -1, v{acc}")
def retry_loop(C, loads, test, scnt=53, spec=None, tags=()):
    A = C.A; L = C.lab("rt")
    if not CUM: A(f"s_mov_b32 s{scnt}, 0")
    A(f"{L}:")
    loads()
    if spec: spec()
    A(f"s_add_u32 s{scnt}, s{scnt}, 1")
    A(f"s_waitcnt vmcnt({len(tags)})")
    test()
    A(f"s_cmp_ge_u32 s{scnt}, {RETRY_LIMIT}")
    A(f"s_cbranch_scc1 {L}_{'t' if DG else 'x'}")
    A(f"s_cbranch_vccnz {L}")
    A(f"{L}_x:")
    if DG: gave_up(C, L + "_t", L + "_x")
    C.vm.q = []
    for t in tags: C.vm.issue(t)
SITES = []
def gave_up(C, L, back):
    import inspect
    A = C.A
    site = len(SITES); SITES.append((L, [f.lineno for f in inspect.stack()[1:5]]))
    def tail():
        A(f"{L}:")
        A("s_memrealtime s[92:93]")
        A("s_load_dwordx2 s[90:91], s[0:1], 80")
        A("s_waitcnt lgkmcnt(0)")
        A("s_mov_b64 s[94:95], exec")
        A("s_mov_b64 exec, 1")
        A("v_mov_b32 v4, 0")
        A(f"v_mov_b32 v5, {hex(1 << (site & 31))}")
        A(f"global_atomic_or v4, v5, s[90:91] offset:{4*(site >> 5)}")
        A("v_mov_b32 v5, 1")
        A("global_atomic_add v4, v5, s[90:91] offset:8")
        A("s_not_b32 s92, s92")
        A("s_lshl_b32 s96, s92, 8")
        A("s_or_b32 s96, s96, s2")
        A("v_mov_b32 v5, s96")
        A("global_atomic_umax v4, v5, s[90:91] offset:12")
        A("s_lshl_b32 s96, s92, 6")
        A(f"s_or_b32 s96, s96, {site}")
        A("v_mov_b32 v5, s96")
        A("global_atomic_umax v4, v5, s[90:91] offset:28")
        A("v_mov_b32 v5, s92")
        A("global_atomic_umax v4, v5, s[90:91] offset:24")
        A("s_waitcnt vmcnt(0)")
        A("s_mov_b64 exec, s[94:95]")
        A(f"s_branch {back}")
    C.tail.append(tail)
def poll2(C, loads, tests, nops, use, scnt=53):
    A = C.A; L = C.lab("p2")
    if not CUM: A(f"s_mov_b32 s{scnt}, 0")
    A(f"{L}:")
    for k in range(2):
        A(f"s_waitcnt vmcnt({nops})")
        tests[k]()
        A(f"s_cbranch_vccz {L}_{k}")
        loads[k]()
    A(f"s_add_u32 s{scnt}, s{scnt}, 1")
    A(f"s_cmp_lt_u32 s{scnt}, {RETRY_LIMIT}")
    A(f"s_cbranch_scc1 {L}")
    if DG:
        A(f"s_branch {L}_t")
        A(f"{L}_x:")
        gave_up(C, L + "_t", L + "_x")
    A(f"s_waitcnt vmcnt({nops})")
    A(f"{L}_0:")
    use(0)
    A(f"s_branch {L}_e")
    A(f"{L}_1:")
    use(1)
    A(f"{L}_e:")
    C.vm.q = ["stale"]*nops
def check_ops(C, loads, regs, acc):
    A = C.A; L = C.lab("fx")
    ops = max_ops(A, regs, acc)
    ops.append(lambda: A(f"v_cmp_eq_u32 vcc, -1, v{acc}"))
    def br():
        A(f"s_cbranch_vccnz {L}")
        A(f"{L}_b:")
    ops.append(br)
    def tail():
        A(f"{L}:")
        q = C.vm.q
        retry_loop(C, loads, lambda: fill_test(A, regs, acc))
        C.vm.q = q
        A(f"s_branch {L}_b")
    C.tail.append(tail)
    return ops
def flag_store(C, off, va=4, vb=5):
    A = C.A; L = C.lab("fl")
    A("s_cmp_lg_u32 s3, 0")
    A(f"s_cbranch_scc1 {L}")
    A(f"s_lshl_b32 s50, s2, {FSH}")
    A(f"s_add_u32 s50, s50, {off}")
    A(f"v_mov_b32 v{va}, s50")
    A(f"v_mov_b32 v{vb}, s{STAG}")
    A("s_mov_b64 exec, 1")
    A(f"buffer_store_dword v{vb}, v{va}, s[12:15], 0 offen {SC}")
    A("s_mov_b64 exec, -1")
    A(f"{L}:")

L_ROWS = 0
L_TR = 8*PITCH2
L_MODP = L_TR + 16384
L_MODV = L_MODP + 1024
L_WT = L_MODV + 5120
L_PREP = 45056
L_YST = L_PREP + 32768
assert L_WT + 4*2816 <= L_PREP and L_YST + 16384 <= 114688

def prep_params(C, unit, B):
    A = C.A
    g, pitch, so, do, ts, ga, ja, a, b, c = [f"s{B+i}" for i in range(10)]
    A(f"s_sub_u32 {a}, s2, {NB_WG}")
    A(f"s_lshl_b32 {a}, {a}, 2")
    A(f"s_add_u32 {a}, {a}, s3")
    if unit: A(f"s_add_u32 {a}, {a}, {unit*4*(256 - NB_WG)}")
    A(f"s_cmp_ge_u32 {a}, 540")
    A(f"s_cselect_b32 {g}, 1, 0")
    A(f"s_cmp_ge_u32 {a}, 1080")
    A(f"s_cselect_b32 {g}, 2, {g}")
    A(f"s_mul_i32 {b}, {g}, 540")
    A(f"s_sub_u32 {b}, {a}, {b}")
    A(f"s_cmp_eq_u32 {g}, 2")
    csel(A, pitch, "1280", "3456")
    csel(A, ts, "1024", "2048")
    csel(A, ga, "4", "8")
    csel(A, ja, "16", "4")
    csel(A, c, "6554", "2428")
    csel(A, so, "10", "27")
    csel(A, do, "40960", "221184")
    A(f"s_mul_i32 {c}, {c}, {b}")
    A(f"s_lshr_b32 {c}, {c}, 16")
    A(f"s_mul_i32 {so}, {so}, {c}")
    A(f"s_sub_u32 {b}, {b}, {so}")
    A(f"s_mul_i32 {do}, {do}, {c}")
    A(f"s_mul_i32 {so}, {c}, {pitch}")
    A(f"s_lshl_b32 {so}, {so}, 5")
    A(f"s_lshl_b32 {c}, {b}, 7")
    A(f"s_add_u32 {so}, {so}, {c}")
    A(f"s_cmp_eq_u32 {g}, 2")
    csel(A, c, "4096", "8192")
    A(f"s_mul_i32 {c}, {c}, {b}")
    A(f"s_add_u32 {do}, {do}, {c}")
    A(f"s_cmp_eq_u32 {g}, 1")
    A(f"s_cselect_b32 {c}, 1024, 0")
    A(f"s_add_u32 {do}, {do}, {c}")
    A(f"s_cmp_lt_u32 {a}, 1620")
    A(f"s_cselect_b32 {so}, {so}, {hex(OOB)}")
    A(f"s_cselect_b32 {do}, {do}, {hex(OOB)}")

def a_consts(C, pf):
    A = C.A
    hf = 19
    A("v_cvt_f32_u32 v7, v2")
    A(f"v_cvt_f32_u32 v{hf}, v3")
    A(f"v_mul_f32 v212, {flit(1/32)}, v7")
    A(f"v_mul_f32 v213, v212, v{hf}")
    A(f"v_mul_f32 v213, {flit(8.0)}, v213")
    for mh in range(2):
        for p in range(4):
            for z in range(2):
                A(f"v_fmamk_f32 v214, v212, {fk(16*mh+2*p+z)}, v213")
                A(f"v_cos_f32 v{60+z}, v214")
                A(f"v_sin_f32 v{62+z}, -v214")
            A(f"v_cvt_pk_bf16_f32 v{80+4*mh+p}, v60, v61")
            A(f"v_cvt_pk_bf16_f32 v{88+4*mh+p}, v62, v63")
            pf()
    A(f"v_mul_f32 v212, {flit(1/640)}, v7")
    A(f"v_mul_f32 v213, v212, v{hf}")
    A("v_mul_f32 v213, 4.0, v213")
    for r in range(12):
        A(f"v_fmamk_f32 v214, v212, {fk(8*(r//4)+r%4)}, v213")
        A(f"v_cos_f32 v{96+r}, v214")
        A(f"v_sin_f32 v{108+r}, v214")
        if r & 1: pf()
    A("v_and_b32 v60, 15, v2")
    A("v_cvt_f32_u32 v60, v60")
    A("v_lshrrev_b32 v61, 4, v2")
    A("v_cvt_f32_u32 v61, v61")
    A(f"v_mul_f32 v212, {flit(1/20)}, v60")
    A(f"v_mul_f32 v213, v212, v{hf}")
    A("v_mul_f32 v213, 4.0, v213")
    A(f"v_fmamk_f32 v213, v61, {fk(0.25)}, v213")
    A(f"v_add_f32 v215, {flit(-0.25)}, v213")
    def cpair(dst, consts, bases):
        for z in range(2):
            A(f"v_fmamk_f32 v214, v212, {fk(consts[z])}, v{bases[z]}")
            A(f"v_cos_f32 v{62+z}, v214")
        A(f"v_cvt_pk_bf16_f32 v{dst}, v62, v63")
    for p in range(4):
        d = [8*((2*p+z) >> 2) + ((2*p+z) & 3) for z in range(2)]
        cpair(120+p, d, [213, 213]); pf()
        cpair(124+p, d, [215, 215]); pf()
    for p in range(2):
        d = [16+2*p, 17+2*p]
        cpair(128+p, d, [213, 213]); pf()
        cpair(130+p, d, [215, 215]); pf()
    A("v_cmp_eq_u32 vcc, 0, v3")
    for p in range(4):
        A(f"v_cndmask_b32 v{128+p}, 0, v{128+p}, vcc")

N_FILLER = 16

def phase0(C):
    A = C.A; vm = C.vm
    A("s_cmp_ge_u32 s2, 256")
    A("s_cbranch_scc1 all_end")
    if OPT.get("cpf", "2") == "2":
        L = C.lab("cpf")
        A("s_getpc_b64 s[26:27]")
        A(f"{L}_pc:")
        A("s_bfe_u32 s50, s2, 0x30003")
        A("s_lshl_b32 s50, s50, 12")
        A("v_lshl_add_u32 v4, v0, 4, s50")
        A("s_bfe_u32 s50, s2, 0x20003")
        A("s_lshl_b32 s50, s50, 12")
        A("s_add_u32 s50, s50, 0x8000")
        A("v_lshl_add_u32 v6, v0, 4, s50")
        A(f"s_sub_u32 s26, s26, {L}_pc-{MAIN}")
        A("s_subb_u32 s27, s27, 0")
        A(f"v_min_u32 v6, code_end-{MAIN}-16, v6")
        A("global_load_dwordx4 v[248:251], v4, s[26:27]")
        A("global_load_dwordx4 v[252:255], v6, s[26:27]")
    A("s_load_dwordx2 s[4:5], s[0:1], 88")
    A("s_load_dwordx4 s[28:31], s[0:1], 56")
    A("s_load_dwordx2 s[6:7], s[0:1], 0")
    A("s_load_dwordx4 s[16:19], s[0:1], 8")
    A("s_load_dwordx4 s[20:23], s[0:1], 32")
    A("s_load_dwordx2 s[24:25], s[0:1], 48")
    A("s_load_dwordx2 s[8:9], s[0:1], 72")
    if CUM: A("s_mov_b32 s53, 0")
    if DG:
        A("s_memrealtime s[92:93]")
        A("s_load_dwordx2 s[90:91], s[0:1], 80")
    A("v_and_b32 v1, 63, v0")
    A("v_and_b32 v2, 31, v0")
    A("v_lshrrev_b32 v3, 5, v1")
    A("v_lshrrev_b32 v4, 6, v0")
    A("v_readfirstlane_b32 s3, v4")
    A("s_and_b32 s48, s2, 7")
    A("s_lshr_b32 s49, s2, 3")
    A("s_mul_i32 s26, s48, 10")
    A("s_add_u32 s26, s26, s49")
    A("s_mul_i32 s27, s48, 20")
    A("s_add_u32 s27, s27, s49")
    A("s_add_u32 s27, s27, 70")
    A("s_cmp_lt_u32 s49, 10")
    A("s_cselect_b32 s54, s26, s27")
    A("s_lshl_b32 s26, s54, 5")
    A("s_cmp_lt_u32 s49, 30")
    A(f"s_cselect_b32 s26, s26, {hex(OOB)}")
    A("v_lshrrev_b32 v4, 1, v0")
    A("v_and_b32 v5, 1, v0")
    A("v_mul_u32_u24 v56, 7680, v4")
    A("v_lshl_add_u32 v56, v5, 4, v56")
    A("v_add_u32 v56, s26, v56")
    A("v_lshlrev_b32 v57, 1, v4")
    A("s_lshl_b32 s80, s48, 3")
    A("s_and_b32 s26, s49, 7")
    A("s_add_u32 s80, s80, s26")
    A("s_lshr_b32 s26, s2, 7")
    A("s_lshl_b32 s26, s26, 4")
    A("s_bfe_u32 s27, s2, 0x10006")
    A("s_lshl_b32 s27, s27, 2")
    A("s_add_u32 s26, s26, s27")
    A("s_lshr_b32 s27, s3, 1")
    A("s_lshl_b32 s27, s27, 3")
    A("s_add_u32 s26, s26, s27")
    A("s_and_b32 s27, s3, 1")
    A("s_lshl_b32 s27, s27, 1")
    A("s_add_u32 s26, s26, s27")
    A("s_lshl_b32 s26, s26, 6")
    A("s_add_u32 s26, s26, s80")
    A("s_mul_i32 s26, s26, 1280")
    A("v_mul_u32_u24 v58, 81920, v3")
    A("v_lshl_add_u32 v58, v2, 3, v58")
    A("v_add_u32 v58, s26, v58")
    A("s_lshr_b32 s26, s2, 6")
    A("s_lshl_b32 s26, s26, 6")
    A("s_add_u32 s80, s80, s26")
    A(f"s_mul_i32 s80, s80, {BLK}")
    A("s_waitcnt lgkmcnt(0)")
    if DG:
        A("s_mov_b64 exec, 1")
        A("v_mov_b32 v250, 0")
        A("v_mov_b32 v251, s92")
        A("global_atomic_umax v250, v251, s[90:91] offset:16")
        A("v_not_b32 v251, v251")
        A("global_atomic_umax v250, v251, s[90:91] offset:20")
        A("s_mov_b64 exec, -1")
    Lfill, Ljoin = C.lab("filler"), C.lab("p0join")
    A("s_cmp_ge_u32 s49, 30")
    A(f"s_cbranch_scc1 {Lfill}")
    srd(A, 32, 28, 0, 1280)
    srd(A, 36, 30, 0, 640*7680)
    for i in range(5):
        A(f"buffer_load_ushort v{20+i}, v57, s[32:35], 0 offen offset:{256*i}"); vm.issue("c")
    for i in range(5):
        if i: A(f"s_mov_b32 s26, {i*128*7680}")
        A(f"buffer_load_dwordx4 v[{28+4*i}:{31+4*i}], v56, s[36:39], {'s26' if i else '0'} offen"); vm.issue(("w", i))
    srd(A, 32, 6, 0, SZ_X)
    for i in range(5):
        A(f"buffer_load_dwordx2 v[{8+2*i}:{9+2*i}], v58, s[32:35], 0 offen offset:{256*i}"); vm.issue("x")
    stamp(A, 0)
    A(f"s_load_dword s{STAG}, s[4:5], {hex(WS_EPOCH)}")
    def wt_code():
        A("s_lshl_b32 s26, s49, 2")
        A("s_add_u32 s26, s26, s3")
        A("s_mul_i32 s27, s26, 4370")
        A("s_lshr_b32 s27, s27, 16")
        A("s_mul_i32 s50, s27, 15")
        A("s_sub_u32 s26, s26, s50")
        A("s_mul_i32 s26, s26, 22")
        A("s_min_u32 s26, s26, 299")
        A("s_lshl_b32 s50, s48, 3")
        A("s_add_u32 s27, s27, s50")
        A("s_lshr_b32 s50, s27, 2")
        A("s_and_b32 s27, s27, 3")
        A("v_and_b32 v4, 7, v1")
        A("v_bfe_u32 v5, v1, 3, 2")
        A("v_lshl_add_u32 v6, v5, 5, v4")
        A("s_lshl_b32 s51, s50, 7")
        A("s_lshl_b32 s52, s27, 3")
        A("s_add_u32 s51, s51, s52")
        A("v_add_u32 v6, s51, v6")
        A("v_mul_u32_u24 v228, 642, v6")
        A("v_mul_u32_u24 v7, 20, v3")
        A("v_add_u32 v228, v228, v7")
        A("s_lshl_b32 s51, s26, 1")
        A("s_cmp_lt_u32 s49, 30")
        A(f"s_cselect_b32 s51, s51, {hex(OOB)}")
        A("v_add_u32 v228, s51, v228")
        A("s_mul_i32 s51, s3, 2816")
        A(f"s_add_u32 s51, s51, {L_WT}")
        A("v_mul_u32_u24 v229, 1280, v3")
        A("v_lshl_add_u32 v229, v4, 4, v229")
        A("v_lshl_add_u32 v229, v5, 2, v229")
        A("v_add_u32 v229, s51, v229")
        A("v_lshl_add_u32 v230, v1, 4, s51")
        A("s_lshl_b32 s26, s26, 13")
        A("s_lshl_b32 s50, s50, 9")
        A("s_add_u32 s26, s26, s50")
        A("s_lshl_b32 s27, s27, 7")
        A("s_add_u32 s26, s26, s27")
        A("s_cmp_lt_u32 s49, 30")
        A(f"s_cselect_b32 s26, s26, {hex(OOB)}")
        A("v_lshrrev_b32 v5, 3, v1")
        A("v_lshlrev_b32 v231, 13, v5")
        A("v_lshl_add_u32 v231, v4, 4, v231")
        A("v_add_u32 v231, s26, v231")
        srd(A, 32, 16, 0, SZ_WF)
        srd(A, 36, 18, 0, SZ_WF)
        for m in range(2):
            A(f"buffer_load_dwordx4 v[{216+6*m}:{219+6*m}], v228, s[{32+4*m}:{35+4*m}], 0 offen"); vm.issue("wt")
            A(f"buffer_load_dwordx2 v[{220+6*m}:{221+6*m}], v228, s[{32+4*m}:{35+4*m}], 0 offen offset:16"); vm.issue("wt")
    wt_code()
    stamp(A, 1)
    A("s_waitcnt lgkmcnt(0)")
    A(f"s_add_u32 s{STAG}, s{STAG}, {hex(TAGSTEP)}")
    srd(A, 12, 4, WS_FLG, SZ_FLG)
    a_consts(C, lambda: None)
    stamp(A, 2)
    vm.wait(["c"])
    for i in range(5):
        r = 20+i
        A(f"v_lshlrev_b32 v{r}, 16, v{r}")
        A(f"v_mul_f32 v26, {flit(-math.log2(math.e))}, v{r}")
        A(f"v_exp_f32 v26, v26")
        A(f"v_add_f32 v26, 1.0, v26")
        A(f"v_rcp_f32 v26, v26")
        A(f"v_mul_f32 v{r}, v{r}, v26")
        bf16_round_v(A, r, r)
    for i in range(5):
        vm.wait([("w", i)])
        for q in range(4):
            w = 28+4*i+q
            A(f"v_lshlrev_b32 v26, 16, v{w}")
            A(f"v_and_b32 v27, 0xffff0000, v{w}")
            if i == 0:
                A(f"v_mul_f32 v{48+2*q}, v{20+i}, v26")
                A(f"v_mul_f32 v{49+2*q}, v{20+i}, v27")
            else:
                A(f"v_fmac_f32 v{48+2*q}, v{20+i}, v26")
                A(f"v_fmac_f32 v{49+2*q}, v{20+i}, v27")
    for ctl in ["quad_perm:[2,3,0,1]", "row_ror:4", "row_ror:8"]:
        for q in range(8):
            A(f"v_add_f32_dpp v{48+q}, v{48+q}, v{48+q} {ctl} row_mask:0xf bank_mask:0xf")
    A("v_lshrrev_b32 v5, 4, v0")
    A("v_lshlrev_b32 v5, 6, v5")
    A("v_and_b32 v6, 1, v0")
    A("v_lshl_add_u32 v5, v6, 5, v5")
    A("v_and_b32 v6, 14, v0")
    A("v_cmp_eq_u32 vcc, 0, v6")
    A("s_and_saveexec_b64 s[26:27], vcc")
    A(f"ds_write_b128 v5, v[48:51] offset:{L_MODP}")
    A(f"ds_write_b128 v5, v[52:55] offset:{L_MODP+16}")
    A("s_mov_b64 exec, s[26:27]")
    A("s_waitcnt lgkmcnt(0)")
    A("s_barrier")
    stamp(A, 3)
    L = C.lab("modfin")
    A("s_cmp_lg_u32 s3, 0")
    A(f"s_cbranch_scc1 {L}")
    A("v_and_b32 v6, 15, v0")
    A("v_lshrrev_b32 v5, 4, v0")
    A("v_lshlrev_b32 v5, 8, v5")
    A("v_lshl_add_u32 v5, v6, 2, v5")
    A(f"v_add_u32 v5, {L_MODP}, v5")
    A("ds_read2_b32 v[20:21], v5 offset0:0 offset1:16")
    A("ds_read2_b32 v[22:23], v5 offset0:32 offset1:48")
    A("s_waitcnt lgkmcnt(0)")
    A("v_add_f32 v20, v20, v21")
    A("v_add_f32 v22, v22, v23")
    A("v_add_f32 v20, v20, v22")
    for sw in ("v_permlane16_swap_b32", "v_permlane32_swap_b32"):
        A("v_mov_b32 v21, v20")
        A(f"{sw} v20, v21")
        A("v_add_f32 v20, v20, v21")
    bf16_round_v(A, 20, 20)
    A("s_cmp_ge_u32 s54, 160")
    A("s_cselect_b32 s26, 120, 0")
    A("s_sub_u32 s26, s54, s26")
    A("s_sub_u32 s26, s26, 40")
    A("v_add_f32 v21, 1.0, v20")
    bf16_round_v(A, 21, 21)
    A("s_cmp_lt_u32 s26, 40")
    A("s_cselect_b64 vcc, -1, 0")
    A("v_cndmask_b32 v20, v20, v21, vcc")
    A(f"v_mov_b32 v21, s{STAG}")
    A("s_lshl_b32 s26, s54, 7")
    A("s_cmp_lt_u32 s54, 80")
    A(f"s_cselect_b32 s26, s26, {hex(OOB)}")
    A("v_lshl_add_u32 v22, v6, 3, s26")
    A("s_lshl_b32 s26, s54, 6")
    A("s_cmp_ge_u32 s54, 80")
    A(f"s_cselect_b32 s26, s26, {hex(OOB)}")
    A("s_cmp_lt_u32 s49, 30")
    A(f"s_cselect_b32 s26, s26, {hex(OOB)}")
    A("v_lshl_add_u32 v23, v6, 2, s26")
    srd(A, 32, 4, WS_MODG, 80*128)
    srd(A, 36, 4, WS_MOD, SZ_MOD)
    A("s_mov_b64 exec, 0xffff")
    A(f"buffer_store_dwordx2 v[20:21], v22, s[32:35], 0 offen {SC}")
    A(f"buffer_store_dword v20, v23, s[36:39], 0 offen {SC}")
    A("s_mov_b64 exec, -1")
    A(f"{L}:")
    stamp(A, 4)
    vm.wait(["x"])
    unpack_bf16(A, 60, 8, 10)
    layernorm(A, 60, 20, 212, 213)
    stamp(A, 5)
    vm.wait(["wt"])
    for m in range(2):
        for cc in range(12):
            op = "ds_write_b16_d16_hi" if cc & 1 else "ds_write_b16"
            A(f"{op} v229, v{216+6*m+cc//2} offset:{cc*128 + 2*m}")
    A("s_waitcnt lgkmcnt(0)")
    for j in range(3):
        A(f"ds_read_b128 v[{216+4*j}:{219+4*j}], v230 offset:{1024*j}")
    A(f"v_add_u32 v229, {hex(OOB)}, v231")
    A("v_cmp_gt_u32 vcc, 48, v1")
    A("v_cndmask_b32 v229, v229, v231, vcc")
    for q in range(4): A(f"v_accvgpr_write_b32 a{12+q}, -1")
    A("s_waitcnt lgkmcnt(0)")
    A(f"s_branch {Ljoin}")
    A(f"{Lfill}:")
    q_main = vm.q; vm.q = []
    srd(A, 32, 6, 0, SZ_X)
    for i in range(5):
        A(f"buffer_load_dwordx2 v[{8+2*i}:{9+2*i}], v58, s[32:35], 0 offen offset:{256*i}"); vm.issue("x")
    stamp(A, 0)
    A(f"s_load_dword s{STAG}, s[4:5], {hex(WS_EPOCH)}")
    A(f"s_sub_u32 s26, s2, {256 - N_FILLER}")
    A("s_lshl_b32 s26, s26, 12")
    A("v_lshl_add_u32 v59, v0, 4, s26")
    for q in range(4): A(f"v_accvgpr_write_b32 a{12+q}, -1")
    srd(A, 40, 4, WS_Y1, SZ_Y1N)
    fills = []
    for sd, sz in ((40, SZ_Y1N),):
        for i in range(-(-sz // (N_FILLER*4096))):
            def f(sd=sd, i=i):
                A(f"s_mov_b32 s81, {i*N_FILLER*4096}")
                A(f"buffer_store_dwordx4 a[12:15], v59, s[{sd}:{sd+3}], s81 offen {SC}"); vm.issue("fill")
            fills.append(f)
    def pf(k=1):
        for _ in range(k):
            if fills: fills.pop(0)()
    pf(4)
    stamp(A, 1)
    A("s_waitcnt lgkmcnt(0)")
    A(f"s_add_u32 s{STAG}, s{STAG}, {hex(TAGSTEP)}")
    srd(A, 12, 4, WS_FLG, SZ_FLG)
    a_consts(C, pf)
    stamp(A, 2)
    vm.wait(["x"])
    unpack_bf16(A, 60, 8, 10)
    pf(2)
    layernorm(A, 60, 20, 212, 213)
    pf(99)
    A(f"v_mov_b32 v229, {hex(OOB)}")
    A(f"v_mov_b32 v231, {hex(OOB)}")
    stamp(A, 5)
    A("s_waitcnt vmcnt(0)")
    A("s_barrier")
    flag_store(C, FA)
    A(f"{Ljoin}:")
    vm.q = []
    stamp(A, 6)
    A("v_lshlrev_b32 v245, 4, v0")
    A("v_add_u32 v246, 8192, v245")
    A("v_add_u32 v247, 4096, v245")
    A("v_cmp_gt_u32 vcc, 128, v0")
    A("v_cndmask_b32 v246, v247, v246, vcc")
    A(f"v_and_b32 v247, {N_FILLER - 1}, v0")
    A(f"v_add_u32 v247, {256 - N_FILLER}, v247")
    A(f"v_lshlrev_b32 v247, {FSH}, v247")
    srd(A, 32, 4, WS_MODG, 80*128)
    A("s_movk_i32 s26, 4096")
    def mod_loads():
        A(f"buffer_load_dwordx4 v[232:235], v245, s[32:35], 0 offen {LSC}")
        A(f"buffer_load_dwordx4 v[236:239], v245, s[32:35], s26 offen {LSC}")
        A(f"buffer_load_dwordx4 v[240:243], v246, s[32:35], 0 offen {LSC}")
    def mod_test():
        A("v_min3_u32 v4, v233, v235, v237")
        A("v_max3_u32 v5, v233, v235, v237")
        A("v_min3_u32 v4, v4, v239, v241")
        A("v_max3_u32 v5, v5, v239, v241")
        A("v_min_u32 v4, v4, v243")
        A("v_max_u32 v5, v5, v243")
        A("v_cmp_ne_u32 vcc, v4, v5")
        A(f"v_cmp_ne_u32 s[50:51], s{STAG}, v5")
        A("s_or_b64 vcc, vcc, s[50:51]")
    retry_loop(C, mod_loads, mod_test)
    cnt(A, 0)
    A("v_lshrrev_b32 v4, 1, v245")
    A("v_lshrrev_b32 v5, 1, v246")
    A(f"v_add_u32 v4, {L_MODV}, v4")
    A(f"v_add_u32 v5, {L_MODV}, v5")
    A("v_add_u32 v6, 2048, v4")
    A("ds_write2_b32 v4, v232, v234 offset0:0 offset1:1")
    A("ds_write2_b32 v6, v236, v238 offset0:0 offset1:1")
    A("ds_write2_b32 v5, v240, v242 offset0:0 offset1:1")
    fa_ld(C); vm.issue("fa")
    srd(A, 28, 4, WS_WT, SZ_COL)
    def wt_store(j):
        if j: A(f"s_mov_b32 s81, {j*8*8192}")
        A(f"buffer_store_dwordx4 v[{216+4*j}:{219+4*j}], v{229 if j == 2 else 231}, s[28:31], {'s81' if j else '0'} offen {SC}"); vm.issue("wts")
    C.wt_ops = [lambda j=j: wt_store(j) for j in range(3)]
    if OPT.get("wts", "a") == "now":
        while C.wt_ops: C.wt_ops.pop(0)()
    if True:
        A("s_lshl_b32 s26, s2, 12")
        A("v_lshl_add_u32 v245, v0, 4, s26")
        for off, sz in ((WS_Z, SZ_COL),) + (((WS_H2P, SZ_H2P),) if OPT.get("h2f", "a2") == "a2" else ()):
            srd(A, 32, 4, off, sz)
            for i in range(3):
                if i: A(f"s_mov_b32 s26, {i << 20}")
                A(f"buffer_store_dwordx4 a[12:15], v245, s[32:35], {'s26' if i else '0'} offen {SC}"); vm.issue("wts")
    A("s_waitcnt lgkmcnt(0)")
    A("s_barrier")
    stamp(A, 7)

def fa_ld(C):
    C.A(f"buffer_load_dword v244, v247, s[12:15], 0 offen offset:{FA} {LSC}")
def flag_check(C, name, reg, ld):
    A = C.A; L = C.lab(name)
    A(f"v_cmp_ne_u32 vcc, s{STAG}, v{reg}")
    A(f"s_cbranch_vccnz {L}")
    A(f"{L}_b:")
    def tail():
        A(f"{L}:")
        q = C.vm.q
        retry_loop(C, ld, lambda: A(f"v_cmp_ne_u32 vcc, s{STAG}, v{reg}"))
        C.vm.q = q
        A(f"s_branch {L}_b")
    C.tail.append(tail)

def phase_a(C):
    A = C.A; vm = C.vm
    A(f"v_lshlrev_b32 v6, 4, v2")
    A(f"v_add_u32 v6, {L_MODV}, v6")
    for i in range(5):
        A(f"ds_read_b128 v[{20+4*i}:{23+4*i}], v6 offset:{2560 + 512*i}")
    for i in range(5):
        A(f"ds_read_b128 v[{40+4*i}:{43+4*i}], v6 offset:{512*i}")
    A(f"s_mul_i32 s26, s3, {2*PITCH2}")
    A(f"v_mul_u32_u24 v4, {PITCH2}, v3")
    A("v_lshl_add_u32 v4, v2, 3, v4")
    A("v_add_u32 v4, s26, v4")
    A("v_bfe_u32 v5, v1, 2, 2")
    A("v_lshl_add_u32 v5, v3, 3, v5")
    A("v_mul_u32_u24 v5, 40, v5")
    A("v_bfe_u32 v6, v1, 4, 1")
    A("v_lshl_add_u32 v5, v6, 5, v5")
    A("v_and_b32 v6, 3, v1")
    A("v_lshl_add_u32 v5, v6, 3, v5")
    A("v_add_u32 v5, s26, v5")
    for i in range(5):
        A(f"s_waitcnt lgkmcnt({9-i})")
        for k in (0, 2):
            q = 4*i+k
            A(f"v_pk_mul_f32 {pr(20+q)}, {pr(20+q)}, {pr(212)} op_sel_hi:[1,0]")
    for i in range(5):
        A(f"s_waitcnt lgkmcnt({4-i})")
        for k in (0, 2):
            q = 4*i+k
            A(f"v_pk_fma_f32 {pr(60+q)}, {pr(60+q)}, {pr(20+q)}, {pr(40+q)}")
        for k in (0, 1):
            q = 2*i+k
            A(f"v_cvt_pk_bf16_f32 v{8+q}, v{60+2*q}, v{61+2*q}")
        A(f"ds_write_b64 v4, v[{8+2*i}:{9+2*i}] offset:{256*i}")
    def wt1():
        if C.wt_ops: C.wt_ops.pop(0)()
    wt1()
    A("v_mov_b32 v18, 0")
    A("v_mov_b32 v19, 0")
    A("v_cmp_eq_u32 vcc, 0, v2")
    A("s_and_saveexec_b64 s[26:27], vcc")
    A("ds_write_b64 v4, v[18:19] offset:1280")
    A("s_mov_b64 exec, s[26:27]")
    A("s_waitcnt lgkmcnt(0)")
    for row in range(2):
        for mh in range(2):
            for j in range(2):
                d = 132 + 8*row + 4*mh + 2*j
                A(f"ds_read_b64_tr_b16 v[{d}:{d+1}], v5 offset:{row*PITCH2 + 640*mh + 160*j}")
    T = [[148, 164], [180, 196]]
    A("s_waitcnt lgkmcnt(0)")
    for mh in range(2):
        for row in range(2):
            a = 132 + 8*row + 4*mh
            for ri in range(2):
                mf32(A, T[row][ri], a, (80 if ri == 0 else 88) + 4*mh, mh == 0)
    wt1()
    stamp(A, 8)
    A("v_bfe_u32 v4, v2, 3, 1")
    A("v_lshlrev_b32 v5, 5, v2")
    A("v_lshl_add_u32 v5, v3, 12, v5")
    A("s_lshl_b32 s26, s3, 2")
    A(f"s_add_u32 s26, s26, {L_TR}")
    A("v_add_u32 v5, s26, v5")
    A("v_lshl_add_u32 v4, v4, 4, v5")
    A("v_bfe_u32 v6, v2, 3, 1")
    A("v_xor_b32 v6, 1, v6")
    A("v_lshl_add_u32 v5, v6, 4, v5")
    B = [20, 32]
    TA, TB = 60, 62
    for row in range(2):
        tr, ti = T[row]
        b = B[row]
        for r in range(0, 12, 2):
            c, s_ = 96+r, 108+r
            A(f"v_pk_mul_f32 {pr(TA)}, {pr(tr+r)}, {pr(c)}")
            A(f"v_pk_mul_f32 {pr(TB)}, {pr(ti+r)}, {pr(c)}")
            A(f"v_pk_fma_f32 {pr(TA)}, {pr(ti+r)}, {pr(s_)}, {pr(TA)}")
            A(f"v_pk_fma_f32 {pr(TB)}, {pr(tr+r)}, {pr(s_)}, {pr(TB)} neg_lo:[1,0,0] neg_hi:[1,0,0]")
            dr = b + r//2 if r < 8 else b + 8 + (r-8)//2
            di = b + 4 + r//2 if r < 8 else b + 10 + (r-8)//2
            A(f"v_cvt_pk_bf16_f32 v{dr}, v{TA}, v{TA+1}")
            A(f"v_cvt_pk_bf16_f32 v{di}, v{TB}, v{TB+1}")
    wt1()
    O = [148, 180]
    for st in range(3):
        for row in range(2):
            mf32(A, O[row], 120 + 4*st, B[row] + 4*st, st == 0)
    stamp(A, 9)
    A("v_bfe_u32 v6, v0, 4, 1")
    A("v_xor_b32 v6, v0, v6")
    A("v_lshlrev_b32 v6, 4, v6")
    A(f"v_add_u32 v6, {L_TR}, v6")
    A("v_lshl_add_u32 v7, v0, 4, s80")
    A(f"v_add_u32 v44, {hex(OOB)}, v7")
    A("s_movk_i32 s26, 136")
    A("v_cmp_gt_u32 vcc, s26, v0")
    A("v_cndmask_b32 v44, v44, v7, vcc")
    srd(A, 32, 4, WS_Y1, SZ_Y1N)
    for ri in range(2):
        for r in range(7):
            A(f"v_cvt_pk_bf16_f32 v{60+7*ri+r}, v{O[0]+8*ri+r}, v{O[1]+8*ri+r}")
            A(f"ds_write_b32 v{4+ri}, v{60+7*ri+r} offset:{(8*(r//4)+r%4)*1024}")
    vm.wait(["fa"])
    flag_check(C, "fa", 244, lambda: fa_ld(C))
    A("s_movk_i32 s26, 4096")
    A("s_movk_i32 s27, 8192")
    A("s_waitcnt lgkmcnt(0)")
    A("s_barrier")
    for n in range(3):
        A(f"ds_read_b128 v[{8+4*n}:{11+4*n}], v6 offset:{4096*n}")
    for n in range(3):
        A(f"s_waitcnt lgkmcnt({2-n})")
        A(f"buffer_store_dwordx4 v[{8+4*n}:{11+4*n}], v{44 if n == 2 else 7}, s[32:35], {['0','s26','s27'][n]} offen {SC}"); vm.issue("y1")
    stamp(A, 10)

NU = 5
L_PREP2 = L_PREP
PD = 40
G_S = [16, 17, 18, 19, 28]
DO_S = [29, 30, 31, 81, 82]
def repack(C):
    A = C.A; vm = C.vm
    A("v_lshrrev_b32 v4, 3, v1")
    A("v_and_b32 v5, 7, v1")
    A("v_bfe_u32 v6, v1, 4, 1")
    A("v_lshrrev_b32 v7, 5, v1")
    A("v_lshlrev_b32 v6, 1, v6")
    A("v_lshl_or_b32 v6, v7, 2, v6")
    A("v_xor_b32 v7, 4, v6")
    A("v_xor_b32 v6, v5, v6")
    A("v_xor_b32 v7, v5, v7")
    A("s_mul_i32 s83, s3, 20480")
    for unit in range(NU):
        B = 36
        prep_params(C, unit, B)
        A(f"s_cmp_eq_u32 s{B}, 0")
        A("s_cselect_b32 s32, s20, s22")
        A("s_cselect_b32 s33, s21, s23")
        A(f"s_cmp_eq_u32 s{B}, 2")
        A("s_cselect_b32 s32, s24, s32")
        A("s_cselect_b32 s33, s25, s33")
        A(f"s_mov_b32 s34, {640*1728*2}")
        A("s_mov_b32 s35, 0x20000")
        A(f"v_mul_lo_u32 v59, v4, s{B+1}")
        A(f"v_lshl_add_u32 v232, v6, 4, v59")
        A(f"v_lshl_add_u32 v233, v7, 4, v59")
        A(f"s_lshl_b32 s27, s{B+1}, 3")
        if OPT.get("xp") in ("nd", "nb"): A(f"s_mov_b32 s{B+2}, {hex(OOB)}")
        for i in range(4):
            A(f"s_add_u32 m0, s83, {L_PREP2 + 4096*unit + 1024*i}")
            A(f"buffer_load_dwordx4 v{232+(i&1)}, s[32:35], s{B+2} offen lds"); vm.issue(("P", unit))
            if i < 3: A(f"s_add_u32 s{B+2}, s{B+2}, s27")
        A(f"s_mov_b32 s{G_S[unit]}, s{B}")
        A(f"s_mov_b32 s{DO_S[unit]}, s{B+3}")
        if OPT.get("xp") in ("ns", "nb"): A(f"s_mov_b32 s{DO_S[unit]}, {hex(OOB)}")
    for base, ga, ja in ((8, 8, 4), (16, 4, 16)):
        A("v_lshrrev_b32 v24, 4, v1")
        A("v_bfe_u32 v25, v1, 2, 2")
        A(f"v_mul_u32_u24 v24, {ga}, v24")
        A("v_add_u32 v24, v24, v25")
        A(f"v_add_u32 v25, {ja}, v24")
        A("v_and_b32 v26, 1, v1")
        A("v_bfe_u32 v27, v1, 1, 1")
        for j, rr in enumerate([24, 25]):
            A(f"v_bfe_u32 v28, v{rr}, 1, 1")
            A(f"v_lshrrev_b32 v29, 2, v{rr}")
            A(f"v_lshrrev_b32 v30, 3, v{rr}")
            A(f"v_xor_b32 v29, v29, v30")
            A(f"v_and_b32 v29, 1, v29")
            A(f"v_lshl_or_b32 v28, v29, 1, v28")
            A(f"v_lshlrev_b32 v28, 1, v28")
            A(f"v_xor_b32 v28, v28, v27")
            A(f"v_lshlrev_b32 v31, 7, v{rr}")
            A(f"v_lshl_add_u32 v31, v26, 3, v31")
            A(f"v_add_u32 v31, s83, v31")
            for tile in range(4):
                A(f"v_xor_b32 v29, {2*tile}, v28")
                A(f"v_lshl_add_u32 v{base+4*j+tile}, v29, 4, v31")
    A("v_lshlrev_b32 v24, 4, v1")
    if OPT.get("yg", "1") == "1":
        srd(A, 44, 4, WS_Y1, SZ_Y1N)
        A(f"v_mul_u32_u24 v25, {BLK}, v0")
        retry_loop(C, lambda: A(f"buffer_load_dword v26, v25, s[44:47], 0 offen offset:{int(OPT.get('ygo', 0))} {LSC}"),
                   lambda: A("v_cmp_eq_u32 vcc, -1, v26"))
    for unit in range(NU):
        g, do = f"s{G_S[unit]}", f"s{DO_S[unit]}"
        L = C.lab("rp")
        A(f"s_cmp_eq_u32 {g}, 2")
        csel(A, "s26", hex(WS_W2), hex(WS_W13))
        csel(A, "s34", hex(SZ_W2P), hex(SZ_W13))
        csel(A, "s27", "1024", "2048")
        A("s_add_u32 s32, s4, s26")
        A("s_addc_u32 s33, s5, 0")
        vm.wait([("P", unit)])
        A(f"s_cmp_eq_u32 {g}, 2")
        A(f"s_cbranch_scc1 {L}")
        for var, base in enumerate((8, 16)):
            if var: A(f"{L}:")
            for tile in range(4):
                for j in range(2):
                    d = PD + 16*unit + 4*tile + 2*j
                    A(f"ds_read_b64_tr_b16 v[{d}:{d+1}], v{base+4*j+tile} offset:{L_PREP2 + 4096*unit}")
            if var == 0: A(f"s_branch {L}_e")
        A(f"{L}_e:")
        for tile in range(4):
            d = PD + 16*unit + 4*tile
            A(f"s_waitcnt lgkmcnt({6-2*tile})")
            A(f"buffer_store_dwordx4 v[{d}:{d+3}], v24, s[32:35], {do} offen {SC}"); vm.issue("ps")
            if tile < 3: A(f"s_add_u32 {do}, {do}, s27")

def cis_table(C, T, out, scale=None, fill=None):
    A = C.A
    WC, WS, BP, ANG, th, k0 = T, T+4, T+8, T+12, T+22, T+23
    A(f"v_add_f32 v{ANG}, v{th}, v{th}")
    A(f"v_mul_f32 v{ANG+1}, {fk(3.0)}, v{th}")
    for j, a in ((1, th), (2, ANG), (3, ANG+1)):
        A(f"v_cos_f32 v{WC+j}, v{a}")
        A(f"v_sin_f32 v{WS+j}, v{a}")
    def base(m):
        b = BP + 2*(m & 1); a = k0
        if m:
            a = ANG + (m & 1)
            A(f"v_fmamk_f32 v{a}, v{th}, {fk(8.0*m)}, v{k0}")
        A(f"v_cos_f32 v{b}, v{a}")
        A(f"v_sin_f32 v{b+1}, v{a}")
        if scale: A(f"v_pk_mul_f32 {pr(b)}, {pr(b)}, {scale} op_sel_hi:[1,0]")
    base(0)
    for m in range(4):
        if m < 3: base(m+1)
        b = BP + 2*(m & 1)
        for jp in range(2):
            r = 4*m + 2*jp
            dc, ds = out(r, None)
            A(f"v_pk_mul_f32 {pr(dc)}, {pr(WC+2*jp)}, {pr(b)} op_sel_hi:[1,0]")
            A(f"v_pk_mul_f32 {pr(ds)}, {pr(WC+2*jp)}, {pr(b)} op_sel:[0,1] op_sel_hi:[1,1]")
            A(f"v_pk_fma_f32 {pr(dc)}, {pr(WS+2*jp)}, {pr(b)}, {pr(dc)} op_sel:[0,1,0] op_sel_hi:[1,1,1] neg_lo:[1,0,0] neg_hi:[1,0,0]")
            A(f"v_pk_fma_f32 {pr(ds)}, {pr(WS+2*jp)}, {pr(b)}, {pr(ds)} op_sel:[0,0,0] op_sel_hi:[1,0,1]")
            out(r, (dc, ds))
        if fill: fill()

NS = int(OPT.get("ns", 4))
NS0 = 4
SLOT = 28*1024
C_LDS = NS0*SLOT
ZP = 1552
Z_OFF = C_LDS
ST_OFF = C_LDS + 8*ZP
STP = 1296
ST_H = ST_OFF + 8*STP
SCRAP = ST_H + 8*STP
M_OFF = SCRAP + 1024
LDS_TOTAL = M_OFF + 8192
B_YST = C_LDS
B_EX1 = C_LDS + 16384
assert B_EX1 + 16384 <= M_OFF

DT = OPT.get("dt", "1") == "1"
def ring_buf(s_):
    if DT: return s_ % 4 if s_ < 9 else 4
    return s_ % NS

def early_setup(C):
    A = C.A
    A("s_lshl_b32 s26, s48, 3")
    A("s_and_b32 s27, s49, 7")
    A("s_add_u32 s26, s26, s27")
    A("s_lshr_b32 s27, s49, 3")
    A("s_lshl_b32 s27, s27, 3")
    A("s_lshl_b32 s50, s3, 1")
    A("s_add_u32 s27, s27, s50")
    A("s_lshl_b32 s27, s27, 6")
    A("s_add_u32 s27, s27, s26")
    A("s_mul_i32 s27, s27, 1280")
    A("v_mul_u32_u24 v249, 40, v2")
    A("v_lshl_add_u32 v249, v3, 3, v249")
    A("v_add_u32 v249, s27, v249")
def hh_setup(C):
    A = C.A
    A("s_lshl_b32 s26, s40, 3")
    A("s_lshl_b32 s27, s3, 1")
    A("s_add_u32 s26, s26, s27")
    A("s_mul_i32 s26, s26, 55296")
    A("s_lshl_b32 s27, s41, 9")
    A("v_lshl_add_u32 v249, v1, 4, s27")
    A(f"v_mov_b32 v241, {hex(OOB)}")
    for i, r in ((3, 254), (2, 251), (1, 250), (0, 249)):
        A("s_mov_b32 s50, 55296")
        if i: A(f"v_add_u32 v{r}, {1024*i}, v249")
        A(f"v_cmp_gt_u32 vcc, s50, v{r}")
        A(f"v_add_u32 v{r}, s26, v{r}")
        if i == 3:
            A("v_cmp_gt_u32 s[50:51], 32, v1")
            A("s_and_b64 vcc, vcc, s[50:51]")
        A(f"v_cndmask_b32 v{r}, v241, v{r}, vcc")
    for q in range(4): A(f"v_accvgpr_write_b32 a{252+q}, -1")
def x_ops(C):
    A = C.A; ops = [lambda: srd(A, 28, 6, 0, SZ_X), lambda: A("s_mov_b32 s81, 81920")]
    for r in range(2):
        for q in range(3):
            def f(r=r, q=q):
                d = 6*r + 2*q
                A(f"buffer_load_dwordx2 a[{d}:{d+1}], v249, s[28:31], {'s81' if r else '0'} offen offset:{16*q}")
                C.vm.issue("X")
            ops.append(f)
    return ops
def hhfill_ops(C):
    A = C.A; ops = [lambda: A("s_mov_b32 s82, 55296")]
    for rt in range(2):
        for r in (249, 250, 251, 254):
            def f(r=r, rt=rt):
                A(f"buffer_store_dwordx4 a[252:255], v{r}, s[24:27], {'s82' if rt else '0'} offen {SC}")
                C.vm.issue("HF")
            f.mem = True
            ops.append(f)
    return ops
def m_ops(C):
    A = C.A; ops = []
    def m0():
        srd(A, 44, 4, WS_MOD, SZ_MOD)
        A("v_lshlrev_b32 v255, 4, v1")
        A("s_lshl_b32 s83, s3, 11")
    ops.append(m0)
    for i in range(2):
        def f(i=i):
            A(f"s_add_u32 m0, s83, {M_OFF + 1024*i}")
            A(f"s_add_u32 s43, s83, {5120 + 1024*i}")
            A(f"buffer_load_dwordx4 v255, s[44:47], s43 offen {LSC} lds")
            C.vm.issue("M")
        ops.append(f)
    return ops
def fw_ld(C):
    A = C.A
    A(f"s_mov_b32 s26, {FW}")
    A(f"buffer_load_dword v253, v252, s[12:15], s26 offen {LSC}")

def phase_b(C):
    A = C.A; vm = C.vm
    Lskip, Ldone = C.lab("b_skip"), C.lab("b_done")
    early_setup(C)
    A(f"v_lshlrev_b32 v252, {FSH}, v0")
    A("s_cmp_gt_u32 s2, 160")
    A(f"s_cbranch_scc1 {Lskip}")
    q_skip = list(vm.q)
    A("s_mul_i32 s20, s48, 20")
    A("s_add_u32 s20, s20, s49")
    A("s_cmp_eq_u32 s2, 160")
    A("s_cselect_b32 s20, 160, s20")
    A("s_lshl_b32 s21, s20, 1")
    A("s_lshr_b32 s22, s3, 1")
    A("s_add_u32 s21, s21, s22")
    A("s_and_b32 s23, s3, 1")
    A("s_lshl_b32 s24, s21, 13")
    A("s_lshl_b32 s25, s23, 12")
    A("s_add_u32 s24, s24, s25")
    srd(A, 36, 4, WS_Z, SZ_COL)
    pend = []
    def fill(k=1):
        for _ in range(k):
            if pend: pend.pop(0)()
    C32, S32, N32 = 40, 48, 56
    C64, S64 = 64, 80
    TWc, TWs = 96, 112
    AR, AI = 128, 144
    Pr, Pi, Pn = 160, 168, 176
    Or, Oi, On = 184, 192, 200
    T2c, T2s = 208, 224
    t0, t1, t2, t3, t4, t5 = 240, 241, 242, 243, 244, 245
    hf, pf, af = 246, 247, 5
    T = 176; TH, K0 = T+22, T+23
    A(f"v_cvt_f32_u32 v{hf}, v3")
    A(f"v_cvt_f32_u32 v{pf}, v2")
    A(f"v_cvt_f32_u32 v{af}, s23")
    A(f"v_mov_b32 v{T}, 1.0")
    A(f"v_mov_b32 v{T+4}, 0")
    def f32out(c, s_): return lambda r, p: (c+r, s_+r)
    def bfout(c, s_, n=None):
        def out(r, p):
            dc = T + 14 + 4*((r >> 1) & 1)
            if p is None: return (dc, dc+2)
            A(f"v_cvt_pk_bf16_f32 v{c + r//2}, v{dc}, v{dc+1}")
            A(f"v_cvt_pk_bf16_f32 v{s_ + r//2}, v{dc+2}, v{dc+3}")
            if n is not None: A(f"v_xor_b32 v{n + r//2}, 0x80008000, v{s_ + r//2}")
        return out
    A("v_lshrrev_b32 v4, 2, v1")
    A("s_lshl_b32 s26, s3, 6")
    A("v_add_u32 v4, s26, v4")
    A("v_and_b32 v6, 3, v1")
    A(f"v_mul_u32_u24 v8, {BLK}, v4")
    A("v_lshl_add_u32 v8, v6, 4, v8")
    A("s_lshl_b32 s26, s20, 6")
    A("v_add_u32 v8, s26, v8")
    A("v_bfe_u32 v7, v4, 1, 2")
    A("v_xor_b32 v7, v7, v6")
    A("v_lshlrev_b32 v9, 6, v4")
    A("v_lshl_add_u32 v9, v7, 4, v9")
    A(f"v_add_u32 v9, {B_YST}, v9")
    A("s_lshl_b32 s26, s23, 5")
    A("v_lshl_add_u32 v11, v3, 6, v2")
    A("v_add_u32 v11, s26, v11")
    A("v_lshlrev_b32 v11, 6, v11")
    A(f"v_add_u32 v11, {B_YST}, v11")
    A("v_bfe_u32 v7, v2, 1, 2")
    A("s_and_b32 s26, s3, 2")
    A("v_xor_b32 v7, s26, v7")
    A("v_xor_b32 v12, 1, v7")
    A("v_lshl_add_u32 v12, v12, 4, v11")
    A("v_lshl_add_u32 v11, v7, 4, v11")
    srd(A, 16, 4, WS_Y1, SZ_Y1N)
    srd(A, 32, 4, WS_WT, SZ_COL)
    YS = [24, 184]; YF = [253, 254]
    def y_loads(k):
        for i in range(4):
            if i: A(f"s_mov_b32 s26, {16*i*BLK}")
            A(f"buffer_load_dwordx4 v[{YS[k]+4*i}:{YS[k]+4*i+3}], v8, s[16:19], {'s26' if i else '0'} offen {LSC}")
        A(f"s_mov_b32 s26, {FW}")
        A(f"buffer_load_dword v{YF[k]}, v252, s[12:15], s26 offen {LSC}")
    def y_test(k):
        fill_test(A, range(YS[k], YS[k]+16), 255)
        if OPT.get("xp") == "nofw": return
        A(f"v_cmp_ne_u32 s[50:51], s{STAG}, v{YF[k]}")
        A("s_or_b64 vcc, vcc, s[50:51]")
    A(f"v_mul_f32 v{TH}, {flit(1/32)}, v{pf}")
    A(f"v_mul_f32 v{K0}, v{TH}, v{hf}")
    A(f"v_mul_f32 v{K0}, 4.0, v{K0}")
    cis_table(C, T, bfout(C32, S32, N32), fill=fill)
    A(f"v_mul_f32 v6, {flit(8.0)}, v{af}")
    A(f"v_add_f32 v6, v6, v{hf}")
    A(f"v_mul_f32 v6, 4.0, v6")
    A(f"v_mul_f32 v{TH}, {flit(1/2048)}, v{pf}")
    A(f"v_mul_f32 v{K0}, v6, v{TH}")
    cis_table(C, T, f32out(TWc, TWs), fill=fill)
    vm.wait(["wts"])
    A("s_barrier")
    flag_store(C, FW, 13, 14)
    A(f"v_mul_f32 v7, {flit(32.0)}, v{af}")
    A(f"v_add_f32 v{t5}, v7, v{pf}")
    A(f"v_mul_f32 v{TH}, {flit(1/64)}, v{t5}")
    A(f"v_mul_f32 v{K0}, v6, v{TH}")
    cis_table(C, T, bfout(C64, S64), fill=fill)
    A("v_and_b32 v7, 1, v2")
    A("v_mul_u32_u24 v7, 0x8000, v7")
    A("v_lshl_or_b32 v7, v7, 16, v7")
    for q in range(8):
        A(f"v_xor_b32 v{C64+8+q}, v7, v{C64+q}")
        A(f"v_xor_b32 v{S64+8+q}, v7, v{S64+q}")
    P2 = OPT.get("p2", "0") == "1"
    if P2: y_loads(0)
    A("s_cmp_eq_u32 s21, 0")
    A("s_cselect_b32 s26, 1, 0")
    A("s_cmp_eq_u32 s21, 320")
    A("s_cselect_b32 s26, 1, s26")
    A("s_cmp_eq_u32 s26, 1")
    csel(A, "s26", hex(f32bits(1.0/(2048*640))), hex(f32bits(2.0/(2048*640))))
    A(f"v_mul_f32 v{TH}, {flit(1/2048)}, v{t5}")
    A(f"v_mul_f32 v{K0}, v{TH}, v{hf}")
    A(f"v_mul_f32 v{K0}, 4.0, v{K0}")
    cis_table(C, T, f32out(T2c, T2s), scale="s[26:27]", fill=fill)
    fill(len(pend))
    stamp(A, 11)
    def y_use(k):
        for i in range(4):
            A(f"ds_write_b128 v9, v[{YS[k]+4*i}:{YS[k]+4*i+3}] offset:{1024*i}")
    if P2:
        y_loads(1)
        poll2(C, [lambda: y_loads(0), lambda: y_loads(1)], [lambda: y_test(0), lambda: y_test(1)], 5, y_use)
    else:
        retry_loop(C, lambda: y_loads(1), lambda: y_test(1))
        cnt(A, 1)
        y_use(1)
    if P2: A("s_waitcnt lgkmcnt(0)")
    A("v_lshlrev_b32 v4, 4, v1")
    A("v_add_u32 v4, s24, v4")
    for j in range(4):
        A(f"buffer_load_dwordx4 v[{24+4*j}:{27+4*j}], v4, s[32:35], 0 offen offset:{j*1024} {LSC}"); vm.issue("wt")
    pend.extend(x_ops(C))
    pend.extend(m_ops(C))
    A("s_waitcnt lgkmcnt(0)")
    A("s_barrier")
    stamp(A, 12)
    A("v_mov_b32 v6, v11")
    A("v_mov_b32 v7, v12")
    for t in range(2):
        for ri in range(2):
            d = 8 + 8*ri + 4*t
            A(f"ds_read_b128 v[{d}:{d+3}], v{6+ri} offset:{t*8192}")
    Xr, Xi = 8, 16
    def mf(d, a, b, first, k=0):
        mf32(A, d, a, b, first); fill(k)
    fill(3)
    for t in range(2):
        A(f"s_waitcnt lgkmcnt({2-2*t})")
        mf(AR, Xr+4*t, C32+4*t, t == 0, 1)
        mf(AI, Xi+4*t, C32+4*t, t == 0, 1)
        mf(AR, Xi+4*t, S32+4*t, False, 1)
        mf(AI, Xr+4*t, N32+4*t, False)
    TA, TB = t0, t2
    def cmul_pack(cr, ci, conj_tw, k=0):
        n1 = "" if not conj_tw else " neg_lo:[1,0,0] neg_hi:[1,0,0]"
        n2 = " neg_lo:[1,0,0] neg_hi:[1,0,0]" if not conj_tw else ""
        for r in range(0, 16, 2):
            A(f"v_pk_mul_f32 {pr(TA)}, {pr(AR+r)}, {pr(cr+r)}")
            A(f"v_pk_mul_f32 {pr(TB)}, {pr(AI+r)}, {pr(cr+r)}")
            A(f"v_pk_fma_f32 {pr(TA)}, {pr(AI+r)}, {pr(ci+r)}, {pr(TA)}{n1}")
            A(f"v_pk_fma_f32 {pr(TB)}, {pr(AR+r)}, {pr(ci+r)}, {pr(TB)}{n2}")
            A(f"v_cvt_pk_bf16_f32 v{Pr+r//2}, v{TA}, v{TA+1}")
            A(f"v_cvt_pk_bf16_f32 v{Pi+r//2}, v{TB}, v{TB+1}")
            fill(k)
    A("s_lshl_b32 s26, s3, 12")
    A(f"s_add_u32 s26, s26, {B_YST}")
    A("s_xor_b32 s27, s26, 0x1000")
    A("v_lshlrev_b32 v6, 4, v1")
    A("v_add_u32 v7, s27, v6")
    A("v_add_u32 v6, s26, v6")
    cmul_pack(TWc, TWs, False, 1)
    def exch(off):
        for g in range(2):
            A(f"ds_write_b128 v6, v[{Pr+4*g}:{Pr+4*g+3}] offset:{off+1024*g}")
            A(f"ds_write_b128 v6, v[{Pi+4*g}:{Pi+4*g+3}] offset:{off+2048+1024*g}")
        A("s_waitcnt lgkmcnt(0)")
        A("s_barrier")
        for g in range(2):
            A(f"ds_read_b128 v[{Or+4*g}:{Or+4*g+3}], v7 offset:{off+1024*g}")
            A(f"ds_read_b128 v[{Oi+4*g}:{Oi+4*g+3}], v7 offset:{off+2048+1024*g}")
    stamp(A, 13)
    vm.wait(["stale"])
    exch(B_EX1 - B_YST)
    for q in range(8): A(f"v_xor_b32 v{Pn+q}, 0x80008000, v{Pr+q}")
    for u in range(2):
        mf(AR, C64+4*u, Pr+4*u, u == 0, 1)
        mf(AI, C64+4*u, Pi+4*u, u == 0)
        mf(AR, S64+4*u, Pi+4*u, False, 1)
        mf(AI, S64+4*u, Pn+4*u, False)
    A("s_waitcnt lgkmcnt(0)")
    for q in range(8): A(f"v_xor_b32 v{On+q}, 0x80008000, v{Or+q}")
    for u in range(2):
        mf(AR, C64+8+4*u, Or+4*u, False)
        mf(AI, C64+8+4*u, Oi+4*u, False)
        mf(AR, S64+8+4*u, Oi+4*u, False)
        mf(AI, S64+8+4*u, On+4*u, False)
    fill(len(pend))
    stamp(A, 14)
    vm.wait(["wt"])
    W0, W1 = 8, 10
    for r in range(0, 16, 2):
        w = 24 + r
        A(f"v_lshlrev_b32 v{W0}, 16, v{w}")
        A(f"v_lshlrev_b32 v{W0+1}, 16, v{w+1}")
        A(f"v_and_b32 v{W1}, 0xffff0000, v{w}")
        A(f"v_and_b32 v{W1+1}, 0xffff0000, v{w+1}")
        A(f"v_pk_mul_f32 {pr(TA)}, {pr(AR+r)}, {pr(W0)}")
        A(f"v_pk_mul_f32 {pr(TB)}, {pr(AI+r)}, {pr(W0)}")
        A(f"v_pk_fma_f32 {pr(TA)}, {pr(AI+r)}, {pr(W1)}, {pr(TA)} neg_lo:[1,0,0] neg_hi:[1,0,0]")
        A(f"v_pk_fma_f32 {pr(TB)}, {pr(AR+r)}, {pr(W1)}, {pr(TB)}")
        A(f"v_cvt_pk_bf16_f32 v{Pr+r//2}, v{TA}, v{TA+1}")
        A(f"v_cvt_pk_bf16_f32 v{Pi+r//2}, v{TB}, v{TB+1}")
    exch(0)
    def ringfill(k): pass
    for q in range(8): A(f"v_xor_b32 v{Pn+q}, 0x80008000, v{Pi+q}")
    def mr(d, a, b, first, k=1):
        mf32(A, d, a, b, first); ringfill(k)
    for u in range(2):
        mr(AR, Pr+4*u, C64+4*u, u == 0)
        mr(AI, Pi+4*u, C64+4*u, u == 0, 0)
        mr(AR, Pn+4*u, S64+4*u, False)
        mr(AI, Pr+4*u, S64+4*u, False, 0)
    A("s_waitcnt lgkmcnt(0)")
    for q in range(8): A(f"v_xor_b32 v{On+q}, 0x80008000, v{Oi+q}")
    for u in range(2):
        mr(AR, Or+4*u, C64+8+4*u, False)
        mr(AI, Oi+4*u, C64+8+4*u, False, 0)
        mr(AR, On+4*u, S64+8+4*u, False)
        mr(AI, Or+4*u, S64+8+4*u, False, 0)
    stamp(A, 15)
    _fill = fill
    def cm2():
        n1 = " neg_lo:[1,0,0] neg_hi:[1,0,0]"
        for r in range(0, 16, 2):
            A(f"v_pk_mul_f32 {pr(TA)}, {pr(AR+r)}, {pr(T2c+r)}")
            A(f"v_pk_mul_f32 {pr(TB)}, {pr(AI+r)}, {pr(T2c+r)}")
            A(f"v_pk_fma_f32 {pr(TA)}, {pr(AI+r)}, {pr(T2s+r)}, {pr(TA)}{n1}")
            A(f"v_pk_fma_f32 {pr(TB)}, {pr(AR+r)}, {pr(T2s+r)}, {pr(TB)}")
            A(f"v_cvt_pk_bf16_f32 v{Pr+r//2}, v{TA}, v{TA+1}")
            A(f"v_cvt_pk_bf16_f32 v{Pi+r//2}, v{TB}, v{TB+1}")
            if r % 4 == 0: ringfill(1)
    cm2()
    for t in range(2):
        mr(AR, C32+4*t, Pr+4*t, t == 0)
        mr(AI, C32+4*t, Pi+4*t, t == 0)
        mr(AR, N32+4*t, Pi+4*t, False)
        mr(AI, S32+4*t, Pr+4*t, False, 0)
    A("v_lshlrev_b32 v4, 5, v2")
    A("v_lshl_add_u32 v4, v3, 4, v4")
    A("v_add_u32 v4, s24, v4")
    vm.wait(["X"])
    for j in range(4):
        for i in range(4):
            r = 4*j+i
            A(f"v_cvt_pk_bf16_f32 v{8+r}, v{AR+r}, v{AI+r}")
        A(f"buffer_store_dwordx4 v[{8+4*j}:{11+4*j}], v4, s[36:39], 0 offen offset:{j*1024} {SC}"); vm.issue("z")
    stamp(A, 16)
    A("s_barrier")
    A(f"s_branch {Ldone}")
    A(f"{Lskip}:")
    vm.q = q_skip
    for f in x_ops(C): f()
    vm.wait(["wts"])
    A("s_barrier")
    flag_store(C, FW, 8, 9)
    repack(C)
    if OPT.get("h2f", "a2") == "r":
        NF = 256 - NB_WG
        A(f"s_sub_u32 s26, s2, {NB_WG}")
        A("s_lshl_b32 s26, s26, 12")
        A("v_lshl_add_u32 v4, v0, 4, s26")
        srd(A, 32, 4, WS_H2P, SZ_H2P)
        for i in range(-(-SZ_H2P // (NF*4096))):
            if i: A(f"s_mov_b32 s26, {i*NF*4096}")
            A(f"buffer_store_dwordx4 a[12:15], v4, s[32:35], {'s26' if i else '0'} offen {SC}"); vm.issue("h2f")
    fw_ld(C); vm.issue("fw")
    vm.wait(["fw"])
    flag_check(C, "fw", 253, lambda: fw_ld(C))
    A("s_barrier")
    flag_store(C, FP, 8, 9)
    for f in m_ops(C): f()
    A(f"{Ldone}:")
    vm.q = []

def w13_ring(C):
    ops = []
    for s_ in range(NS0): ops += w13_ops(C, s_)
    return ops

def fh_offset(C, v, which):
    A = C.A
    A(f"v_min_u32 v{v}, {255 - NB_WG}, v0")
    A(f"v_add_u32 v{v}, {NB_WG + (which >> FSH)}, v{v}")
    A(f"v_lshlrev_b32 v{v}, {FSH}, v{v}")

def d_geometry(C):
    A = C.A
    A("s_and_b32 s40, s48, 1")
    A("s_lshl_b32 s40, s40, 3")
    A("s_and_b32 s41, s49, 7")
    A("s_add_u32 s40, s40, s41")
    A("s_lshr_b32 s41, s48, 1")
    A("s_lshl_b32 s41, s41, 2")
    A("s_lshr_b32 s42, s49, 3")
    A("s_add_u32 s41, s41, s42")
    A("s_mul_i32 s41, s41, 7")
    A("s_lshr_b32 s42, s3, 1")
    A("s_mul_i32 s42, s42, 221184")
    A("s_lshl_b32 s43, s41, 11")
    A("s_add_u32 s42, s42, s43")
    A("s_and_b32 s43, s3, 1")
    A("s_mul_i32 s43, s43, 7168")
    A("s_add_u32 s42, s42, s43")
    if DT:
        A("s_and_b32 s43, s41, 1")
        A("s_lshl_b32 s43, s43, 11")
        A("s_add_u32 s42, s42, s43")
    A("v_lshlrev_b32 v248, 4, v1")
    A("v_add_u32 v248, s42, v248")
    if DT:
        A("s_and_b32 s43, s41, s3")
        A("s_and_b32 s43, s43, 1")
        A("s_mul_i32 s43, s43, 14336")
        A("v_subrev_u32 v255, s43, v248")
    A("s_mul_i32 s42, s3, 7168")

def w13_ops(C, s, SRD=36):
    A = C.A; ops = []
    for i0, n in ((0, 4), (4, 3)):
        def setup(i0=i0):
            A(f"s_add_u32 m0, s42, {ring_buf(s)*SLOT + i0*1024}")
        def setup2(i0=i0):
            A(f"s_mov_b32 s43, {2*s*221184 + i0*1024}")
        ops += [setup, setup2]
        for i in range(n):
            def dma(i=i, i0=i0):
                va = 255 if DT and i0 + i >= 5 else 248
                A(f"buffer_load_dwordx4 v{va}, s[{SRD}:{SRD+3}], s43 offen offset:{i*1024} lds")
                C.vm.issue(("W", s))
            ops.append(dma)
    return ops

def phase_c(C):
    A = C.A; vm = C.vm
    A("s_lshl_b32 s20, s48, 3")
    A("s_and_b32 s21, s49, 7")
    A("s_add_u32 s20, s20, s21")
    A("s_lshr_b32 s21, s49, 3")
    GA, G2, SB = 32, 44, 56
    srd(A, 36, 4, WS_W13, SZ_W13)
    d_geometry(C)
    stamp(A, 17)
    A("s_lshr_b32 s22, s20, 5")
    A("s_lshl_b32 s22, s22, 12")
    A("s_lshl_b32 s23, s21, 10")
    A("s_add_u32 s22, s22, s23")
    A("s_and_b32 s23, s20, 31")
    A("s_lshl_b32 s23, s23, 5")
    A("s_add_u32 s22, s22, s23")
    A("v_and_b32 v4, 1, v1")
    A("v_bfe_u32 v5, v1, 1, 2")
    A("v_lshrrev_b32 v6, 3, v1")
    A("s_lshl_b32 s23, s3, 3")
    A("v_add_u32 v6, s23, v6")
    A("v_lshl_add_u32 v251, v5, 5, v6")
    A("v_lshlrev_b32 v251, 13, v251")
    A("v_lshl_add_u32 v251, v4, 4, v251")
    A("v_add_u32 v251, s22, v251")
    A(f"v_mul_u32_u24 v252, {4*ZP}, v4")
    A("v_mul_u32_u24 v253, 48, v6")
    A("v_add_u32 v252, v252, v253")
    A("v_lshl_add_u32 v252, v5, 2, v252")
    A(f"v_add_u32 v252, {Z_OFF}, v252")
    srd(A, 16, 4, WS_Z, SZ_COL)
    A("s_mov_b32 s24, 0x100000")
    A("s_mov_b32 s25, 0x200000")
    BR, BI, TC, TS, C32, N32 = 92, 100, 108, 124, 140, 148
    t0, t1, t2, t3, t4 = 244, 245, 246, 247, 243
    pf, hf = 249, 250
    A(f"v_cvt_f32_u32 v{pf}, v2")
    A(f"v_cvt_f32_u32 v{hf}, v3")
    A(f"v_mul_f32 v4, {flit(1/20)}, v{pf}")
    A(f"v_mul_f32 v5, v4, v{hf}")
    A(f"v_mul_f32 v5, 4.0, v5")
    A(f"v_mov_b32 v6, 0")
    for st in range(2):
        for q in range(4):
            A(f"v_fmamk_f32 v{t0}, v4, {fk(8*st+q)}, v{5 if st == 0 else 6}")
            A(f"v_cos_f32 v{t1}, v{t0}")
            A(f"v_sin_f32 v{t2}, v{t0}")
            A(f"v_sub_f32 v{t3}, 0, v{t2}")
            A(f"v_cvt_pk_bf16_f32 v{BR+4*st+q}, v{t1}, v{t3}")
            A(f"v_cvt_pk_bf16_f32 v{BI+4*st+q}, v{t2}, v{t1}")
    A("v_cmp_eq_u32 vcc, 0, v3")
    for q in range(4):
        A(f"v_cndmask_b32 v{BR+4+q}, 0, v{BR+4+q}, vcc")
        A(f"v_cndmask_b32 v{BI+4+q}, 0, v{BI+4+q}, vcc")
    A(f"v_mul_f32 v4, {flit(1/640)}, v{pf}")
    A(f"v_mul_f32 v5, v4, v{hf}")
    A(f"v_mul_f32 v5, 4.0, v5")
    for r in range(16):
        A(f"v_fmamk_f32 v{t0}, v4, {fk(8*(r//4)+r%4)}, v5")
        A(f"v_cos_f32 v{TC+r}, v{t0}")
        A(f"v_sin_f32 v{TS+r}, v{t0}")
    A(f"v_mul_f32 v4, {flit(1/32)}, v{pf}")
    A(f"v_mul_f32 v5, v4, v{hf}")
    A(f"v_mul_f32 v5, 4.0, v5")
    for t in range(2):
        for p in range(4):
            for z in range(2):
                e = 2*p+z
                A(f"v_fmamk_f32 v{t0}, v4, {fk(16*t+8*(e>>2)+(e&3))}, v5")
                A(f"v_cos_f32 v{t1+z}, v{t0}")
                A(f"v_sin_f32 v{(t3, t4)[z]}, -v{t0}")
            A(f"v_cvt_pk_bf16_f32 v{C32+4*t+p}, v{t1}, v{t2}")
            A(f"v_cvt_pk_bf16_f32 v{N32+4*t+p}, v{t3}, v{t4}")
    XF = 68
    for q in range(12): A(f"v_accvgpr_read_b32 v{20+q}, a{q}")
    for r in range(2):
        for q in range(6):
            A(f"v_lshlrev_b32 v{XF+12*r+2*q}, 16, v{20+6*r+q}")
            A(f"v_and_b32 v{XF+12*r+2*q+1}, 0xffff0000, v{20+6*r+q}")
    A("v_cmp_eq_u32 vcc, 0, v3")
    for r in range(2):
        for k in range(8, 12): A(f"v_cndmask_b32 v{XF+12*r+k}, 0, v{XF+12*r+k}, vcc")
    A("v_mul_u32_u24 v7, 80, v2")
    A("v_lshl_add_u32 v7, v3, 4, v7")
    A(f"v_add_u32 v7, {M_OFF}, v7")
    stamp(A, 18)
    fh_offset(C, 253, FP)
    def z_loads():
        for m in range(3):
            A(f"buffer_load_dwordx4 v[{8+4*m}:{11+4*m}], v251, s[16:19], {['0','s24','s25'][m]} offen {LSC}")
        A(f"buffer_load_dword v254, v253, s[12:15], 0 offen {LSC}")
    def z_test():
        fill_test(A, range(8, 20), 4)
        A(f"v_cmp_ne_u32 s[50:51], s{STAG}, v254")
        A("s_or_b64 vcc, vcc, s[50:51]")
    retry_loop(C, z_loads, z_test)
    cnt(A, 2)
    for m in range(3):
        for i in range(4):
            A(f"ds_write_b32 v252, v{8+4*m+i} offset:{i*ZP + 16*m}")
    A(f"s_mul_i32 s26, s3, {2*ZP}")
    A(f"s_add_u32 s26, s26, {Z_OFF}")
    A("v_mul_u32_u24 v4, 48, v2")
    A("v_add_u32 v4, s26, v4")
    A("v_lshl_add_u32 v5, v3, 4, v4")
    A("s_waitcnt lgkmcnt(0)")
    A("s_barrier")
    stamp(A, 19)
    FA_ = [[156, 160], [164, 168]]
    for row in range(2):
        A(f"ds_read_b128 v[{FA_[row][0]}:{FA_[row][0]+3}], v5 offset:{row*ZP}")
        A(f"ds_read_b128 v[{FA_[row][1]}:{FA_[row][1]+3}], v4 offset:{row*ZP+32}")
    for base, sec in ((GA, 0), (G2, 2), (SB, 1)):
        for q in range(3):
            A(f"ds_read_b128 v[{base+4*q}:{base+4*q+3}], v7 offset:{sec*2560 + 32*q}")
    ring = w13_ring(C)
    def rf(k=1):
        n = 0
        while ring and n < k:
            q0 = len(vm.q); ring.pop(0)()
            if len(vm.q) > q0: n += 1
    U = [[172, 188], [204, 220]]
    rf(2)
    for st in range(2):
        for row in range(2):
            if st == 0: A(f"s_waitcnt lgkmcnt({9 + (2 if row == 0 else 0)})")
            mf32(A, U[row][0], FA_[row][st], BR+4*st, st == 0)
            rf()
            mf32(A, U[row][1], FA_[row][st], BI+4*st, st == 0)
    A("v_cmp_eq_u32 vcc, 0, v3")
    P = [[156, 164], [8, 236]]
    TA, TB = 20, 22
    for row in range(2):
        ur, ui = U[row]; pr_, pi_ = P[row]
        for r in range(0, 16, 2):
            A(f"v_pk_mul_f32 {pr(TA)}, {pr(ur+r)}, {pr(TC+r)}")
            A(f"v_pk_mul_f32 {pr(TB)}, {pr(ui+r)}, {pr(TC+r)}")
            A(f"v_pk_fma_f32 {pr(TA)}, {pr(ui+r)}, {pr(TS+r)}, {pr(TA)} neg_lo:[1,0,0] neg_hi:[1,0,0]")
            A(f"v_pk_fma_f32 {pr(TB)}, {pr(ur+r)}, {pr(TS+r)}, {pr(TB)}")
            A(f"v_cvt_pk_bf16_f32 v{pr_+r//2}, v{TA}, v{TA+1}")
            A(f"v_cvt_pk_bf16_f32 v{pi_+r//2}, v{TB}, v{TB+1}")
            if r % 4 == 0: rf()
    Y = [172, 204]
    for t in range(2):
        for row in range(2):
            mf32(A, Y[row], P[row][0]+4*t, C32+4*t, t == 0)
            rf()
        for row in range(2):
            mf32(A, Y[row], P[row][1]+4*t, N32+4*t, False)
    A("s_waitcnt lgkmcnt(0)")
    for k in range(8, 12): A(f"v_cndmask_b32 v{GA+k}, 0, v{GA+k}, vcc")
    for row in range(2):
        for k in range(0, 12, 2):
            A(f"v_pk_fma_f32 {pr(XF+12*row+k)}, {pr(GA+k)}, {pr(Y[row]+k)}, {pr(XF+12*row+k)}")
    X2P = 20
    for row in range(2):
        for k in range(6):
            A(f"v_cvt_pk_bf16_f32 v{X2P+6*row+k}, v{XF+12*row+2*k}, v{XF+12*row+2*k+1}")
    A(f"s_mul_i32 s26, s3, {2*STP}")
    A(f"s_add_u32 s26, s26, {ST_OFF}")
    A("v_mul_u32_u24 v4, 40, v2")
    A("v_lshl_add_u32 v4, v3, 3, v4")
    A("v_add_u32 v4, s26, v4")
    A("v_lshlrev_b32 v7, 3, v1")
    A(f"v_add_u32 v7, {SCRAP}, v7")
    A("v_add_u32 v6, 32, v4")
    A("v_cndmask_b32 v5, v7, v6, vcc")
    for row in range(2):
        for q in range(2):
            A(f"ds_write_b64 v4, {pr(X2P+6*row+2*q)} offset:{row*STP + 16*q}")
    A(f"v_add_u32 v6, {STP}, v6")
    A("v_cndmask_b32 v6, v7, v6, vcc")
    A(f"ds_write_b64 v5, {pr(X2P+4)}")
    A(f"ds_write_b64 v6, {pr(X2P+10)}")
    for r in range(2):
        for q in range(6):
            A(f"v_lshlrev_b32 v{XF+12*r+2*q}, 16, v{X2P+6*r+q}") if OPT.get("rx2") else None
            A(f"v_and_b32 v{XF+12*r+2*q+1}, 0xffff0000, v{X2P+6*r+q}") if OPT.get("rx2") else None
    S0, S1, T0, T1 = 32, 34, 36, 38
    def red64(a, b):
        ta, tb = T0, T1
        for ctl in ["quad_perm:[1,0,3,2]", "quad_perm:[2,3,0,1]", "row_ror:4", "row_ror:8"]:
            A(f"v_add_f32_dpp v{a}, v{a}, v{a} {ctl} row_mask:0xf bank_mask:0xf")
            A(f"v_add_f32_dpp v{b}, v{b}, v{b} {ctl} row_mask:0xf bank_mask:0xf")
        for sw in ("v_permlane16_swap_b32", "v_permlane32_swap_b32"):
            A(f"v_mov_b32 v{ta}, v{a}")
            A(f"v_mov_b32 v{tb}, v{b}")
            A(f"{sw} v{a}, v{ta}")
            A(f"{sw} v{b}, v{tb}")
            A(f"v_add_f32 v{a}, v{a}, v{ta}")
            A(f"v_add_f32 v{b}, v{b}, v{tb}")
    S = [S0, S1]
    for k in range(0, 12, 2):
        for row in range(2):
            x = XF+12*row+k
            if k == 0: continue
            if k == 2: A(f"v_pk_add_f32 {pr(S[row])}, {pr(x-2)}, {pr(x)}")
            else: A(f"v_pk_add_f32 {pr(S[row])}, {pr(S[row])}, {pr(x)}")
    for row in range(2): A(f"v_add_f32 v{S[row]}, v{S[row]}, v{S[row]+1}")
    rf(2)
    red64(S0, S1)
    rf(2)
    for row in range(2):
        A(f"v_mul_f32 v{S[row]}, {flit(1/640)}, v{S[row]}")
        A(f"v_cndmask_b32 v{S[row]+1}, 0, v{S[row]}, vcc")
    for k in range(0, 12, 2):
        for row in range(2):
            x = XF+12*row+k
            sel = "op_sel_hi:[1,0]" if k < 8 else "op_sel:[0,1] op_sel_hi:[1,1]"
            A(f"v_pk_add_f32 {pr(x)}, {pr(x)}, {pr(S[row])} {sel} neg_lo:[0,1] neg_hi:[0,1]")
    V = [40, 42]
    for k in range(0, 12, 2):
        for row in range(2):
            x = XF+12*row+k
            if k == 0: A(f"v_pk_mul_f32 {pr(V[row])}, {pr(x)}, {pr(x)}")
            else: A(f"v_pk_fma_f32 {pr(V[row])}, {pr(x)}, {pr(x)}, {pr(V[row])}")
    for row in range(2): A(f"v_add_f32 v{V[row]}, v{V[row]}, v{V[row]+1}")
    rf(2)
    red64(V[0], V[1])
    rf(99)
    for row in range(2):
        A(f"v_mov_b32 v{S[row]}, {flit(1e-5)}")
        A(f"v_fmac_f32 v{S[row]}, {flit(1/640)}, v{V[row]}")
    for row in range(2): A(f"v_rsq_f32 v{S[row]}, v{S[row]}")
    for k in range(0, 12, 2):
        for row in range(2):
            x = XF+12*row+k
            A(f"v_pk_mul_f32 {pr(x)}, {pr(x)}, {pr(S[row])} op_sel_hi:[1,0]")
        for row in range(2):
            x = XF+12*row+k
            A(f"v_pk_fma_f32 {pr(x)}, {pr(x)}, {pr(G2+k)}, {pr(SB+k)}")
    H2P_ = 8
    for row in range(2):
        for k in range(6):
            A(f"v_cvt_pk_bf16_f32 v{H2P_+6*row+k}, v{XF+12*row+2*k}, v{XF+12*row+2*k+1}")
    HO = ST_H - ST_OFF
    for row in range(2):
        for q in range(2):
            A(f"ds_write_b64 v4, {pr(H2P_+6*row+2*q)} offset:{HO + row*STP + 16*q}")
    A(f"v_subrev_u32 v7, {HO}, v7")
    A(f"v_add_u32 v36, 32, v4")
    A(f"v_cndmask_b32 v37, v7, v36, vcc")
    A(f"v_add_u32 v36, {STP}, v36")
    A(f"v_cndmask_b32 v36, v7, v36, vcc")
    A(f"ds_write_b64 v37, {pr(H2P_+4)} offset:{HO}")
    A(f"ds_write_b64 v36, {pr(H2P_+10)} offset:{HO}")
    A("v_and_b32 v4, 7, v0")
    A("v_lshrrev_b32 v5, 3, v0")
    A(f"v_mul_u32_u24 v6, {STP}, v4")
    A("v_lshl_add_u32 v6, v5, 4, v6")
    A(f"v_add_u32 v6, {ST_H}, v6")
    A("s_lshl_b32 s26, s48, 4")
    A("s_lshr_b32 s27, s49, 1")
    A("s_add_u32 s26, s26, s27")
    A("s_mul_i32 s26, s26, 20480")
    A("s_and_b32 s27, s49, 1")
    A("s_lshl_b32 s27, s27, 7")
    A("s_add_u32 s26, s26, s27")
    A("v_lshlrev_b32 v5, 8, v5")
    A("v_lshl_add_u32 v5, v4, 4, v5")
    A("v_add_u32 v5, s26, v5")
    A("v_lshrrev_b32 v4, 5, v0")
    A(f"v_mul_u32_u24 v7, {STP}, v4")
    A("v_lshl_add_u32 v7, v2, 4, v7")
    A(f"v_add_u32 v7, {ST_OFF}, v7")
    A("s_lshl_b32 s26, s21, 9")
    A("s_add_u32 s26, s26, s20")
    A("s_mul_i32 s26, s26, 1280")
    A("v_mul_u32_u24 v4, 81920, v4")
    A("v_lshl_add_u32 v4, v2, 4, v4")
    A("v_add_u32 v252, s26, v4")
    A(f"v_add_u32 v253, {hex(OOB)}, v252")
    A("v_cmp_gt_u32 vcc, 16, v2")
    A("v_cndmask_b32 v253, v253, v252, vcc")
    A(f"v_add_u32 v37, {hex(OOB)}, v5")
    A("s_cmp_lt_u32 s3, 2")
    A("s_cselect_b64 vcc, -1, 0")
    A("v_cndmask_b32 v37, v37, v5, vcc")
    srd(A, 16, 4, WS_H2P, SZ_H2P)
    srd(A, 28, 4, WS_X2, SZ_X)
    A("s_waitcnt lgkmcnt(0)")
    A("s_barrier")
    for i in range(3):
        A(f"ds_read_b128 v[{8+4*i}:{11+4*i}], v6 offset:{512*i}")
    for i in range(3):
        dst = f"a[{X2A+4*i}:{X2A+4*i+3}]" if xlate() else f"v[{216+4*i}:{219+4*i}]"
        A(f"ds_read_b128 {dst}, v7 offset:{512*i}")
    A("s_movk_i32 s26, 8192")
    A("s_movk_i32 s27, 16384")
    for i in range(3):
        A(f"s_waitcnt lgkmcnt({5-i})")
        A(f"buffer_store_dwordx4 v[{8+4*i}:{11+4*i}], v{37 if i == 2 else 5}, s[16:19], {['0','s26','s27'][i]} offen {SC}"); vm.issue("st")
    stamp(A, 20)

D_LA = 6
RA = 8
RB = 10
def e_geometry(C):
    A = C.A
    A("s_lshr_b32 s44, s48, 1")
    A("s_lshl_b32 s44, s44, 3")
    A("s_and_b32 s45, s49, 7")
    A("s_add_u32 s44, s44, s45")
    A("s_and_b32 s45, s48, 1")
    A("s_lshl_b32 s45, s45, 2")
    A("s_lshr_b32 s46, s49, 3")
    A("s_add_u32 s45, s45, s46")
    A("s_mul_i32 s46, s3, 14")
    A("s_mul_i32 s47, s46, 40960")
    A("s_mul_i32 s51, s45, 5120")
    A("s_add_u32 s47, s47, s51")
    A("v_lshlrev_b32 v246, 4, v1")
    A("v_add_u32 v246, s47, v246")
    A("v_add_u32 v247, 4096, v246")

NST = 14
def xlate(): return OPT.get("xl", "1") == "1" and OPT.get("dp", "1") == "1"
X2A = 240
def wfrag(st, p):
    k = st*5 + p
    if k < 64: return ("a", 4*k)
    return ("v", 152 + 4*(k-64))
def w2_ops(C, SRD=32):
    A = C.A; ops = []
    for st in range(NST):
        def setup(st=st):
            A(f"s_mov_b32 s51, {st*40960}")
        ops.append(setup)
        for p in range(5):
            def ld(st=st, p=p):
                k, r = wfrag(st, p)
                if p < 4: A(f"buffer_load_dwordx4 {k}[{r}:{r+3}], v246, s[{SRD}:{SRD+3}], s51 offen offset:{1024*p}")
                else: A(f"buffer_load_dwordx4 {k}[{r}:{r+3}], v247, s[{SRD}:{SRD+3}], s51 offen")
                C.vm.issue(("W2", st))
            ld.mem = True
            ops.append(ld)
    return ops

def phase_d(C):
    A = C.A; vm = C.vm
    ACC, AR, BR = 8, 120, 152
    VL, VB = 232, 237
    e_geometry(C)
    srd(A, 32, 4, WS_W2, SZ_W2P)
    w2 = w2_ops(C)
    NPRE = int(OPT.get("w2pre", 36))
    for _ in range(NPRE): w2.pop(0)()
    A("s_lshl_b32 s20, s40, 3")
    A("s_lshl_b32 s21, s3, 1")
    A("s_add_u32 s20, s20, s21")
    A("v_lshlrev_b32 v4, 4, v1")
    A("s_mul_i32 s21, s20, 20480")
    A(f"v_add_u32 v{VB}, s21, v4")
    A(f"v_add_u32 v{VB+1}, 20480, v{VB}")
    for b in range(NS):
        A(f"v_add_u32 v{VL+b}, {b*SLOT}, v4") if b else A(f"v_mov_b32 v{VL}, v4")
    hh_setup(C)
    srd(A, 16, 4, WS_H2P, SZ_H2P)
    srd(A, 24, 4, WS_HH, SZ_HH)
    bstate = {}
    BACC = 239
    def b_regs(t): return range(BR + (t % RB)*8, BR + (t % RB)*8 + 8)
    def b_ops(t):
        ops = []
        if t % 4 == 0:
            ops.append(lambda t=t: A(f"s_movk_i32 s22, {t*1024}"))
        for rt in range(2):
            def f(t=t, rt=rt):
                if t >= RB: assert bstate.get(t-RB), ("B ring WAR", t)
                r = BR + (t % RB)*8 + 4*rt
                A(f"buffer_load_dwordx4 v[{r}:{r+3}], v{VB+rt}, s[16:19], s22 offen offset:{(t%4)*1024} {LSC}")
                vm.issue(("B", t))
            ops.append(f)
        return ops
    def b_reload(ts):
        def f():
            for t in ts:
                A(f"s_movk_i32 s54, {t*1024}")
                for rt in range(2):
                    r = BR + (t % RB)*8 + 4*rt
                    A(f"buffer_load_dwordx4 v[{r}:{r+3}], v{VB+rt}, s[16:19], s54 offen {LSC}")
        return f
    NB0 = 8
    NPOLL = 3
    def b_loads():
        b_reload(range(NPOLL))()
    def b_test():
        fill_test(A, [r for t in range(NPOLL) for r in b_regs(t)], BACC)
    SPEC = OPT.get("dspec", "1") == "1"
    if SPEC:
        retry_loop(C, b_loads, b_test, spec=b_reload(range(NPOLL, NB0)), tags=[("B", t) for t in range(NPOLL, NB0) for _ in range(2)])
    else:
        retry_loop(C, b_loads, b_test)
    cnt(A, 3)
    A("s_waitcnt lgkmcnt(0)")
    if NS == 4 and OPT.get("dbar", "1") == "1" or NS == 5 or True:
        A("s_barrier")
    stamp(A, 21)
    A("s_movk_i32 s22, 0")
    if not SPEC:
        for t in range(NPOLL, NB0):
            for f in b_ops(t): f()
    else:
        A(f"s_movk_i32 s22, {((NB0 - 1)//4)*4096}")
    XLATE = xlate()
    def x2_store(i):
        src = f"a[{X2A+4*i}:{X2A+4*i+3}]" if XLATE else f"v[{216+4*i}:{219+4*i}]"
        A(f"buffer_store_dwordx4 {src}, v{253 if i == 2 else 252}, s[28:31], 0 offen offset:{512*i} {SC}"); vm.issue("st")
    x2o = []
    for i in range(3):
        f = lambda i=i: x2_store(i)
        x2o.append(f)
    def mk(f):
        def g(): f()
        g.mem = True
        return g
    x2o = [mk(f) for f in x2o]
    if not XLATE:
        for f in x2o: f()
        x2o = []
    NF = 280; NSL = 10
    pending = []
    hhf = hhfill_ops(C)
    def lds_read(n):
        t, i = divmod(n, 14)
        s_ = t >> 1
        r = AR + (n % RA)*4
        A(f"ds_read_b128 v[{r}:{r+3}], v{VL + s_ % NS} offset:{((t & 1)*14 + i)*1024}")
    left = 77 - NPRE
    if OPT.get("dp", "1") == "0":
        W2_SCHED = {}
        for s_, cap in ((5, 5), (6, 5), (7, 5), (8, 13), (9, 13)):
            k = min(cap, left); W2_SCHED[s_] = k; left -= k
        def enter_slot(s_):
            if s_ >= NS: vm.wait([("W", s_)])
            A("s_barrier")
            if s_ >= 2 and s_ + NS - 2 < NSL:
                pending.extend(w13_ops(C, s_ + NS - 2))
            for _ in range(W2_SCHED.get(s_, 0)): pending.append(w2.pop(0))
            if s_ in (2, 3):
                for _ in range(5 if s_ == 2 else 4): pending.append(hhf.pop(0))
            if s_ == 7: flag_store(C, FX, 4, 5)
        def filler(k=1):
            for _ in range(k):
                if pending: pending.pop(0)()
        for t in range(NB0, RB): pending.extend(b_ops(t))
        for n in range(D_LA): lds_read(n)
        A(f"s_waitcnt lgkmcnt({D_LA-1})")
        for n in range(NF):
            t, i = divmod(n, 14)
            if i == 0 and NPOLL <= t + 1 < 20:
                vm.wait([("B", t+1)])
                pending[0:0] = check_ops(C, b_reload([t+1]), b_regs(t+1), BACC)
            a = AR + (n % RA)*4
            def mm(rt):
                c = ACC + (i*2 + rt)*4
                b = BR + (t % RB)*8 + 4*rt
                src = "0" if t == 0 else f"v[{c}:{c+3}]"
                A(f"v_mfma_f32_16x16x32_bf16 v[{c}:{c+3}], v[{a}:{a+3}], v[{b}:{b+3}], {src}")
            mm(0)
            nn = n + D_LA
            if nn < NF:
                if nn % 28 == 0: enter_slot(nn // 28)
                lds_read(nn)
            filler(1)
            mm(1)
            if i == 13:
                bstate[t] = True
                if t + RB < 20: pending.extend(b_ops(t + RB))
            if n + 1 < NF:
                rem = min(NF - 1 - (n+1), D_LA - 1)
                A(f"s_waitcnt lgkmcnt({rem})")
            filler(1)
    else:
        PER = int(OPT.get("dper", 2))
        sched = OPT.get("dsch", "G")
        vq = []
        def take(lst, k):
            out = []
            while lst and k > 0:
                f = lst.pop(0); out.append(f)
                if getattr(f, "mem", False): k -= 1
            return out
        w2a = [w2.pop(0) for _ in range(left)]
        SCH = {"B":  [(0, 4, 3), (0, 4, 0), (0, 0, 0), (0, 0, 0), (0, 0, 0), (3, 0, 0), (5, 0, 0), (5, 0, 0), (12, 0, 0), (12, 0, 0)],
               "C":  [(0, 0, 0), (0, 0, 0), (0, 0, 3), (0, 3, 0), (0, 3, 0), (0, 2, 0), (5, 0, 0), (5, 0, 0), (12, 0, 0), (12, 0, 0)],
               "D":  [(0, 0, 0), (0, 3, 3), (0, 2, 0), (0, 3, 0), (0, 0, 0), (3, 0, 0), (5, 0, 0), (5, 0, 0), (12, 0, 0), (12, 0, 0)],
               "E":  [(0, 0, 0), (0, 0, 0), (0, 0, 0), (0, 2, 1), (0, 2, 1), (0, 2, 1), (4, 2, 0), (6, 0, 0), (12, 0, 0), (12, 0, 0)],
               "F":  [(0, 0, 0), (4, 0, 0), (0, 0, 0), (0, 2, 1), (0, 2, 1), (0, 2, 1), (4, 2, 0), (6, 0, 0), (10, 0, 0), (10, 0, 0)],
               "G":  [(0, 2, 0), (0, 2, 0), (0, 1, 0), (0, 2, 0), (0, 1, 0), (0, 0, 2), (3, 0, 1), (5, 0, 0), (13, 0, 0), (13, 0, 0)],
               "H":  [(0, 1, 0), (0, 2, 0), (0, 1, 0), (0, 2, 0), (0, 1, 0), (0, 1, 1), (2, 0, 2), (6, 0, 0), (13, 0, 0), (13, 0, 0)],
               "I":  [(0, 2, 0), (0, 2, 0), (0, 2, 0), (0, 2, 0), (0, 0, 2), (3, 0, 1), (5, 0, 0), (5, 0, 0), (12, 0, 0), (12, 0, 0)],
               "J":  [(0, 0, 3), (0, 2, 0), (0, 2, 0), (0, 2, 0), (0, 2, 0), (3, 0, 0), (5, 0, 0), (5, 0, 0), (12, 0, 0), (12, 0, 0)],
               }[sched]
        FXS = int(OPT.get("fxs", {"B": 7, "C": 8, "D": 7, "E": 9, "F": 9, "G": 9, "H": 9, "I": 8, "J": 8}[sched]))
        def slot_ops(s_):
            ops = []
            if NS == 5 and s_ == 0: ops += w13_ops(C, 4)
            if s_ >= 2 and s_ + NS - 2 < NSL: ops += w13_ops(C, s_ + NS - 2)
            k2, kf, kx = SCH[s_]
            ops += take(x2o, kx)
            ops += take(hhf, kf)
            ops += take(w2a, k2)
            return ops
        def enter_slot(s_):
            if s_ >= NS0:
                assert vm.all.count(("W", s_)) == 7, ("ring slot not issued", s_)
                vm.wait([("W", s_)])
            if s_ == FXS:
                assert not hhf and not x2o, "fills pending"
                assert vm.all.count("HF") == 8
                vm.wait(["HF", "st"])
            A("s_barrier")
            if OPT.get("est") == "2": A(f"s_memtime s[{56+2*s_}:{57+2*s_}]")
            vq.extend(slot_ops(s_))
            if s_ == FXS:
                flag_store(C, FX, 4, 5)
        def vpop():
            q0 = vm.n_issued
            while vq and vm.n_issued == q0: vq.pop(0)()
        def filler():
            if pending: pending.pop(0)()
        for t in range(NB0, RB): vq.extend(b_ops(t))
        vq.extend(slot_ops(0))
        if OPT.get("est") == "2": A(f"s_memtime s[56:57]")
        for n in range(D_LA): lds_read(n)
        A(f"s_waitcnt lgkmcnt({D_LA-1})")
        for n in range(NF):
            t, i = divmod(n, 14)
            if i == 0 and NPOLL <= t + 1 < 20:
                assert vm.all.count(("B", t+1)) == 2, t
                vm.wait([("B", t+1)])
                pending[0:0] = check_ops(C, b_reload([t+1]), b_regs(t+1), BACC)
            a = AR + (n % RA)*4
            def mm(rt):
                c = ACC + (i*2 + rt)*4
                b = BR + (t % RB)*8 + 4*rt
                src = "0" if t == 0 else f"v[{c}:{c+3}]"
                A(f"v_mfma_f32_16x16x32_bf16 v[{c}:{c+3}], v[{a}:{a+3}], v[{b}:{b+3}], {src}")
            mm(0)
            nn = n + D_LA
            if nn < NF:
                if nn % 28 == 0: enter_slot(nn // 28)
                lds_read(nn)
            filler()
            mm(1)
            if i == 13:
                assert not pending
                bstate[t] = True
                if t + RB < 20: vq[0:0] = b_ops(t + RB)
            if n + 1 < NF:
                rem = min(NF - 1 - (n+1), D_LA - 1)
                A(f"s_waitcnt lgkmcnt({rem})")
            if n % PER == PER - 1 and vq: vpop()
            else: filler()
        pending = pending + vq + w2a
    stamp(A, 22)
    rest = pending + w2
    A("s_mul_i32 s21, s20, 55296")
    A("v_lshlrev_b32 v4, 4, v1")
    A(f"v_add_u32 v{VB}, s21, v4")
    A(f"v_add_u32 v{VB+1}, 55296, v{VB}")
    A("s_lshr_b32 s22, s41, 1")
    A("s_lshl_b32 s22, s22, 10")
    for f in rest: f()
    A("s_lshr_b32 s21, s44, 1")
    A("s_lshr_b32 s50, s21, 3")
    A("s_and_b32 s21, s21, 7")
    A("s_lshl_b32 s21, s21, 3")
    A("s_add_u32 s21, s21, s50")
    A("v_and_b32 v252, 3, v1")
    A("v_lshlrev_b32 v252, 6, v252")
    A("v_bfe_u32 v253, v1, 2, 2")
    A("v_lshl_add_u32 v252, v253, 1, v252")
    A("v_add_u32 v252, s21, v252")
    A("s_and_b32 s21, s44, 3")
    A("s_lshl_b32 s21, s21, 6")
    A("s_lshr_b32 s50, s44, 2")
    A("s_add_u32 s21, s21, s50")
    A("v_and_b32 v253, 7, v1")
    A("v_lshl_add_u32 v253, v253, 3, s21")
    A("v_cmp_gt_u32 vcc, 16, v1")
    A("v_cndmask_b32 v252, v253, v252, vcc")
    A(f"v_add_u32 v252, {FX >> FSH}, v252")
    A(f"v_lshlrev_b32 v252, {FSH}, v252")
    def fx_ld(): A(f"buffer_load_dword v253, v252, s[12:15], 0 offen {LSC}")
    fx_ld(); vm.issue("fx")
    T = 120
    NL = flit(-math.log2(math.e))
    A(f"v_mov_b32 v6, {NL}")
    def swiglu(ft, rt, dst):
        g = ACC + ((2*ft)*2 + rt)*4
        u = ACC + ((2*ft+1)*2 + rt)*4
        t = T + 4*rt
        for r in (0, 2): A(f"v_pk_mul_f32 {pr(t+r)}, {pr(g+r)}, {pr(6)} op_sel_hi:[1,0]")
        for r in range(4): A(f"v_exp_f32 v{t+r}, v{t+r}")
        for r in (0, 2): A(f"v_pk_mul_f32 {pr(g+r)}, {pr(g+r)}, {pr(u+r)}")
        for r in (0, 2): A(f"v_pk_add_f32 {pr(t+r)}, {pr(t+r)}, 1.0 op_sel_hi:[1,0]")
        for r in range(4): A(f"v_rcp_f32 v{t+r}, v{t+r}")
        for r in (0, 2): A(f"v_pk_mul_f32 {pr(g+r)}, {pr(g+r)}, {pr(t+r)}")
        A(f"v_cvt_pk_bf16_f32 v{dst}, v{g}, v{g+1}")
        A(f"v_cvt_pk_bf16_f32 v{dst+1}, v{g+2}, v{g+3}")
    Lodd, Ldone = C.lab("d_odd"), C.lab("d_done")
    A("v_lshlrev_b32 v4, 3, v1")
    A(f"v_sub_u32 v4, v{VB}, v4")
    A("v_add_u32 v5, 55296, v4")
    A("s_cmp_eq_u32 s41, 105")
    A(f"s_cselect_b32 s23, {hex(OOB)}, s22")
    A("s_bitcmp1_b32 s41, 0")
    A(f"s_cbranch_scc1 {Lodd}")
    OUTR = 128
    def variant(odd):
        groups = ([(0,)] + [(1,2),(3,4),(5,6)]) if odd else ([(0,1),(2,3),(4,5)] + [(6,)])
        for gi, grp in enumerate(groups):
            for rt in range(2):
                o = OUTR + 4*((2*gi + rt) % 4)
                if len(grp) == 2:
                    swiglu(grp[0], rt, o); swiglu(grp[1], rt, o+2)
                    so = "s23" if (odd and gi >= 2) else "s22"
                    A(f"buffer_store_dwordx4 v[{o}:{o+3}], v{VB+rt}, s[24:27], {so} offen offset:{1024*gi} {SC}")
                else:
                    swiglu(grp[0], rt, o)
                    A(f"buffer_store_dwordx2 v[{o}:{o+1}], v{4+rt}, s[24:27], s22 offen offset:{1024*gi + (512 if odd else 0)} {SC}")
    variant(False)
    A(f"s_branch {Ldone}")
    A(f"{Lodd}:")
    variant(True)
    A(f"{Ldone}:")
    A("s_waitcnt vmcnt(8)")
    Lfx = C.lab("fx")
    A(f"v_cmp_ne_u32 vcc, s{STAG}, v253")
    A(f"s_cbranch_vccnz {Lfx}")
    A(f"{Lfx}_b:")
    def tail():
        A(f"{Lfx}:")
        retry_loop(C, fx_ld, lambda: A(f"v_cmp_ne_u32 vcc, s{STAG}, v253"))
        A(f"s_branch {Lfx}_b")
    C.tail.append(tail)
    vm.q = []
    stamp(A, 23)

def phase_d2(C):
    A = C.A; vm = C.vm
    ACC, AR, BR = 8, 120, 152
    VL, VB = 232, 237
    e_geometry(C)
    srd(A, 32, 4, WS_W2, SZ_W2P)
    w2 = w2_ops(C)
    NPRE = int(OPT.get("w2pre", 36))
    for _ in range(NPRE): w2.pop(0)()
    A("s_lshl_b32 s20, s40, 3")
    A("s_lshl_b32 s21, s3, 1")
    A("s_add_u32 s20, s20, s21")
    A("v_lshlrev_b32 v4, 4, v1")
    A("s_mul_i32 s21, s20, 20480")
    A(f"v_add_u32 v{VB}, s21, v4")
    A(f"v_add_u32 v{VB+1}, 20480, v{VB}")
    for b in range(5):
        A(f"v_add_u32 v{VL+b}, {b*SLOT}, v4") if b else A(f"v_mov_b32 v{VL}, v4")
    hh_setup(C)
    srd(A, 16, 4, WS_H2P, SZ_H2P)
    srd(A, 24, 4, WS_HH, SZ_HH)
    bstate = {}
    BACC = 239
    def b_regs(t): return range(BR + (t % RB)*8, BR + (t % RB)*8 + 8)
    def b_ops(t):
        ops = []
        if t % 4 == 0:
            ops.append(lambda t=t: A(f"s_movk_i32 s22, {t*1024}"))
        for rt in range(2):
            def f(t=t, rt=rt):
                if t >= RB: assert bstate.get(t-RB), ("B ring WAR", t)
                r = BR + (t % RB)*8 + 4*rt
                A(f"buffer_load_dwordx4 v[{r}:{r+3}], v{VB+rt}, s[16:19], s22 offen offset:{(t%4)*1024} {LSC}")
                vm.issue(("B", t))
            ops.append(f)
        return ops
    def b_reload(ts):
        def f():
            for t in ts:
                A(f"s_movk_i32 s54, {t*1024}")
                for rt in range(2):
                    r = BR + (t % RB)*8 + 4*rt
                    A(f"buffer_load_dwordx4 v[{r}:{r+3}], v{VB+rt}, s[16:19], s54 offen {LSC}")
        return f
    NB0 = 8
    NPOLL = 3
    retry_loop(C, b_reload(range(NPOLL)), lambda: fill_test(A, [r for t in range(NPOLL) for r in b_regs(t)], BACC),
               spec=b_reload(range(NPOLL, NB0)), tags=[("B", t) for t in range(NPOLL, NB0) for _ in range(2)])
    cnt(A, 3)
    A("s_waitcnt lgkmcnt(0)")
    A("s_barrier")
    stamp(A, 21)
    def mk(f):
        f.mem = True
        return f
    x2o = []
    for i in range(3):
        def x2_store(i=i):
            A(f"buffer_store_dwordx4 a[{X2A+4*i}:{X2A+4*i+3}], v{253 if i == 2 else 252}, s[28:31], 0 offen offset:{512*i} {SC}"); vm.issue("st")
        x2o.append(mk(x2_store))
    NF = 280; NT = 224
    def nt(n):
        if n < NT: return divmod(n, 14)
        k, r = divmod(n - NT, 8)
        return 16 + r//2, 2*k + (r & 1)
    pending = []
    hhf = hhfill_ops(C)
    def lds_read(n):
        t, i = nt(n)
        r = AR + (n % RA)*4
        A(f"ds_read_b128 v[{r}:{r+3}], v{VL + ring_buf(t >> 1)} offset:{((t & 1)*14 + i)*1024}")
    PER = int(OPT.get("dper", 2))
    vq = []
    def take(lst, k):
        out = []
        while lst and k > 0:
            f = lst.pop(0); out.append(f)
            if getattr(f, "mem", False): k -= 1
        return out
    SCH = {"A": [(0, 2, 0), (0, 2, 0), (0, 1, 0), (0, 2, 0), (0, 1, 1), (3, 0, 2), (7, 0, 0), (14, 0, 0), (14, 0, 0)],
           "B": [(0, 2, 0), (0, 1, 0), (0, 1, 0), (0, 2, 0), (0, 2, 0), (0, 0, 3), (7, 0, 0), (14, 0, 0), (14, 0, 0)],
           "C": [(0, 3, 0), (0, 0, 0), (0, 2, 0), (0, 2, 0), (0, 1, 1), (2, 0, 2), (7, 0, 0), (14, 0, 0), (10, 0, 0)],
           }[OPT.get("dsch2", "B")]
    S9 = int(OPT.get("s9", 1))
    def slot_ops(s_):
        ops = []
        if s_ == S9: ops += w13_ops(C, 9)
        if 2 <= s_ <= 6: ops += w13_ops(C, s_ + 2)
        k2, kf, kx = SCH[s_]
        ops += take(x2o, kx)
        ops += take(hhf, kf)
        if s_ < 7: assert NPRE//6*5 + NPRE % 6 + sum(q[0] for q in SCH[:s_+1]) <= 60
        ops += take(w2, k2)
        if OPT.get("xq") == "now2" and s_ >= 6: w2.clear()
        return ops
    def enter_slot(s_):
        if s_ >= NS0:
            for z in ((s_,) if s_ < 8 else (8, 9)):
                assert vm.all.count(("W", z)) == 7, ("ring slot not issued", z)
            vm.wait([("W", s_)] if s_ < 8 else [("W", 8), ("W", 9)])
        if s_ == 8:
            assert not hhf and not x2o, "fills pending"
            assert vm.all.count("HF") == 8
            vm.wait(["HF", "st"])
        A("s_barrier")
        if OPT.get("est") == "2": A(f"s_memtime s[{56+2*s_}:{57+2*s_}]")
        vq.extend(slot_ops(s_))
        if s_ == 8: flag_store(C, FX, 4, 5)
    def vpop():
        q0 = vm.n_issued
        while vq and vm.n_issued == q0: vq.pop(0)()
    T, OUTR = 176, 184
    fin = []
    def emit(x): fin.append(lambda x=x: A(x))
    def fin_setup():
        emit("s_mul_i32 s21, s20, 55296")
        emit("v_lshlrev_b32 v4, 4, v1")
        emit(f"v_add_u32 v{VB}, s21, v4")
        emit(f"v_add_u32 v{VB+1}, 55296, v{VB}")
        for x in ("s_lshr_b32 s21, s44, 1",
                  "s_lshr_b32 s50, s21, 3",
                  "s_and_b32 s21, s21, 7",
                  "s_lshl_b32 s21, s21, 3",
                  "s_add_u32 s21, s21, s50",
                  "v_and_b32 v252, 3, v1",
                  "v_lshlrev_b32 v252, 6, v252",
                  "v_bfe_u32 v253, v1, 2, 2",
                  "v_lshl_add_u32 v252, v253, 1, v252",
                  "v_add_u32 v252, s21, v252",
                  "s_and_b32 s21, s44, 3",
                  "s_lshl_b32 s21, s21, 6",
                  "s_lshr_b32 s50, s44, 2",
                  "s_add_u32 s21, s21, s50",
                  "v_and_b32 v253, 7, v1",
                  "v_lshl_add_u32 v253, v253, 3, s21",
                  "v_cmp_gt_u32 vcc, 16, v1",
                  "v_cndmask_b32 v252, v253, v252, vcc",
                  f"v_add_u32 v252, {FX >> FSH}, v252",
                  f"v_lshlrev_b32 v252, {FSH}, v252",
                  f"v_mov_b32 v6, {flit(-math.log2(math.e))}",
                  "v_lshlrev_b32 v4, 3, v1",
                  f"v_sub_u32 v4, v{VB}, v4",
                  "v_add_u32 v5, 55296, v4",
                  "s_lshr_b32 s22, s41, 1",
                  "s_lshl_b32 s22, s22, 10",
                  "s_bitcmp1_b32 s41, 0",
                  "s_cselect_b32 s21, 1, 6",
                  "s_cselect_b32 s23, 1024, 0",
                  "s_lshl_b32 s21, s21, 9",
                  "s_add_u32 s21, s21, s22",
                  "s_add_u32 s22, s22, s23",
                  "s_cmp_eq_u32 s41, 105",
                  f"s_cselect_b32 s23, {hex(OOB)}, s22"):
            emit(x)
    def fx_ld(): A(f"buffer_load_dword v253, v252, s[12:15], 0 offen {LSC}")
    def swiglu(ft, rt, dst):
        g = ACC + ((2*ft)*2 + rt)*4
        u = ACC + ((2*ft+1)*2 + rt)*4
        t = T + 4*rt
        if OPT.get("dpk", "0") == "0" and (ft < 6 or OPT.get("dpk6", "1") == "0"):
            for r in range(4): emit(f"v_mul_f32 v{t+r}, v6, v{g+r}")
            for r in range(4): emit(f"v_exp_f32 v{t+r}, v{t+r}")
            for r in range(4): emit(f"v_mul_f32 v{g+r}, v{g+r}, v{u+r}")
            for r in range(4): emit(f"v_add_f32 v{t+r}, 1.0, v{t+r}")
            for r in range(4): emit(f"v_rcp_f32 v{t+r}, v{t+r}")
            for r in range(4): emit(f"v_mul_f32 v{g+r}, v{g+r}, v{t+r}")
            emit(f"v_cvt_pk_bf16_f32 v{dst}, v{g}, v{g+1}")
            emit(f"v_cvt_pk_bf16_f32 v{dst+1}, v{g+2}, v{g+3}")
            return
        for r in (0, 2): emit(f"v_pk_mul_f32 {pr(t+r)}, {pr(g+r)}, {pr(6)} op_sel_hi:[1,0]")
        for r in range(4): emit(f"v_exp_f32 v{t+r}, v{t+r}")
        for r in (0, 2): emit(f"v_pk_mul_f32 {pr(g+r)}, {pr(g+r)}, {pr(u+r)}")
        for r in (0, 2): emit(f"v_pk_add_f32 {pr(t+r)}, {pr(t+r)}, 1.0 op_sel_hi:[1,0]")
        for r in range(4): emit(f"v_rcp_f32 v{t+r}, v{t+r}")
        for r in (0, 2): emit(f"v_pk_mul_f32 {pr(g+r)}, {pr(g+r)}, {pr(t+r)}")
        emit(f"v_cvt_pk_bf16_f32 v{dst}, v{g}, v{g+1}")
        emit(f"v_cvt_pk_bf16_f32 v{dst+1}, v{g+2}, v{g+3}")
    def pair_done(k):
        gi = k // 2
        for rt in range(2):
            o = OUTR + 4*((2*gi + rt) % 4)
            swiglu(k, rt, o + 2*(k & 1))
            if k & 1:
                def st(o=o, rt=rt, gi=gi):
                    if OPT.get("xp") == "hv" and gi < 2: return
                    A(f"buffer_store_dwordx4 v[{o}:{o+3}], v{VB+rt}, s[24:27], {'s23' if gi else 's22'} offen offset:{1024*gi} {SC}"); vm.issue("hh")
                fin.append(st)
            elif k == 6:
                def st(o=o, rt=rt):
                    A(f"buffer_store_dwordx2 v[{o}:{o+1}], v{4+rt}, s[24:27], s21 offen {SC}"); vm.issue("hh")
                fin.append(st)
    FXN = int(OPT.get("fxn", 250))
    def gap(n):
        if pending: pending.pop(0)()
        elif n >= NT:
            for _ in range(int(OPT.get("dfk", 3))):
                if fin: fin.pop(0)()
    for t in range(NB0, RB): vq.extend(b_ops(t))
    vq.extend(slot_ops(0))
    if OPT.get("est") == "2": A(f"s_memtime s[56:57]")
    for n in range(D_LA): lds_read(n)
    A(f"s_waitcnt lgkmcnt({D_LA-1})")
    for n in range(NF):
        t, i = nt(n)
        if n < NT and i == 0:
            for z in [t+1] + ([t+4] if t in (13, 14, 15) else []):
                if NPOLL <= z < 20:
                    assert vm.all.count(("B", z)) == 2, z
                    vm.wait([("B", z)])
                    pending[0:0] = check_ops(C, b_reload([z]), b_regs(z), BACC)
        if n == NT:
            assert not pending
            fin_setup()
        if n == FXN:
            def fxl(): fx_ld(); vm.issue("fx")
            fin.append(fxl)
        a = AR + (n % RA)*4
        def mm(rt):
            c = ACC + (i*2 + rt)*4
            b = BR + (t % RB)*8 + 4*rt
            src = "0" if t == 0 else f"v[{c}:{c+3}]"
            A(f"v_mfma_f32_16x16x32_bf16 v[{c}:{c+3}], v[{a}:{a+3}], v[{b}:{b+3}], {src}")
        mm(0)
        nn = n + D_LA
        if nn < NF:
            if nn % 28 == 0 and nn <= NT: enter_slot(nn // 28)
            lds_read(nn)
        gap(n)
        mm(1)
        if n < NT and i == 13:
            assert not pending
            bstate[t] = True
            if t + RB < 20: vq[0:0] = b_ops(t + RB)
        if n + 1 < NF:
            rem = min(NF - 1 - (n+1), D_LA - 1)
            A(f"s_waitcnt lgkmcnt({rem})")
        if n % PER == PER - 1 and vq: vpop()
        else: gap(n)
        if n >= NT and (n - NT) % 8 == 7: pair_done((n - NT)//8)
    stamp(A, 22)
    for f in vq + w2: f()
    while fin: fin.pop(0)()
    vm.wait(["fx"])
    Lfx = C.lab("fx")
    A(f"v_cmp_ne_u32 vcc, s{STAG}, v253")
    A(f"s_cbranch_vccnz {Lfx}")
    A(f"{Lfx}_b:")
    def tail():
        A(f"{Lfx}:")
        retry_loop(C, fx_ld, lambda: A(f"v_cmp_ne_u32 vcc, s{STAG}, v253"))
        A(f"s_branch {Lfx}_b")
    C.tail.append(tail)
    vm.q = []
    stamp(A, 23)

def phase_e(C):
    A = C.A; vm = C.vm
    ACC = 8
    RING = [88, 104, 120, 136, 176, 192, 208, 224]
    VH = 240
    VH2 = 248
    PROBE = OPT.get("epr", "0") == "1" and OPT.get("eq", "1") == "1"
    C.probes = [236, 237, 238][:int(OPT.get("npb", 3))]
    if PROBE:
        assert DT
        srd(A, 16, 4, WS_HH, SZ_HH)
        PL = int(OPT.get("epl", 4))
        A("v_lshrrev_b32 v7, 4, v1")
        A("s_lshl_b32 s20, s44, 2")
        A("v_add_u32 v7, s20, v7")
        A("v_mul_u32_u24 v7, 55296, v7")
        A("v_bfe_u32 v4, v1, 3, 1")
        A("v_mul_u32_u24 v4, 7168, v4")
        A("v_add_u32 v7, v7, v4")
        A("v_bfe_u32 v4, v1, 2, 1")
        A("v_lshl_add_u32 v7, v4, 9, v7")
        A(f"v_and_b32 v4, {PL - 1}, v1")
        A("v_lshl_add_u32 v7, v4, 7, v7")
        A("s_lshl_b32 s21, s46, 10")
        A("s_add_u32 s21, s21, 3072")
        A("v_add_u32 v7, s21, v7")
        A(f"buffer_load_dword v{C.probes[0]}, v7, s[16:19], 0 offen {LSC}")
    def probe(k):
        if PROBE and k < len(C.probes): A(f"buffer_load_dword v{C.probes[k]}, v7, s[16:19], 0 offen {LSC}")
    A("v_lshlrev_b32 v2, 4, v1")
    A("s_lshl_b32 s20, s44, 2")
    if OPT.get("xp") == "r0": A("s_mov_b32 s20, 0")
    if OPT.get("xp") == "r2": A("s_and_b32 s20, s20, 0x64")
    A("s_lshl_b32 s21, s46, 10")
    ROT = OPT.get("erot", "0") == "1" and OPT.get("eq", "1") == "1"
    if ROT:
        A("s_lshr_b32 s23, s49, 3")
        A("s_add_u32 s23, s23, s3")
        A("s_and_b32 s23, s23, 3")
    else:
        A("s_mov_b32 s23, s3")
    for q in range(4):
        A(f"s_add_u32 s22, s23, {q}")
        A("s_and_b32 s22, s22, 3")
        A("s_add_u32 s22, s22, s20")
        A("s_mul_i32 s22, s22, 55296")
        A("s_add_u32 s22, s22, s21")
        A(f"v_add_u32 v{VH+q}, s22, v2")
        A(f"v_lshl_add_u32 v{VH2+q}, v1, 3, s22")
    A("s_cmp_eq_u32 s3, 3")
    A(f"s_mov_b32 s47, {12*1024}")
    A(f"s_cselect_b32 s47, {hex(OOB)}, s47")
    probe(1)
    if not PROBE: srd(A, 16, 4, WS_HH, SZ_HH)
    srd(A, 24, 4, WS_X2, SZ_X)
    srd(A, 28, 4, WS_MOD, SZ_MOD)
    srd(A, 36, 8, 0, SZ_X)
    A("v_and_b32 v3, 15, v1")
    A("s_lshl_b32 s21, s44, 6")
    A("s_lshl_b32 s22, s23, 4")
    A("s_add_u32 s21, s21, s22")
    A("v_add_u32 v3, s21, v3")
    A("v_lshrrev_b32 v4, 8, v3")
    A("v_bfe_u32 v5, v3, 3, 3")
    A("v_lshl_add_u32 v4, v4, 3, v5")
    A("v_bfe_u32 v5, v3, 6, 2")
    A("v_and_b32 v6, 7, v3")
    A("v_lshl_add_u32 v5, v5, 3, v6")
    A("v_lshl_add_u32 v4, v5, 6, v4")
    A("v_mul_u32_u24 v244, 1280, v4")
    A("v_lshrrev_b32 v5, 4, v1")
    A("s_mul_i32 s21, s45, 160")
    A("v_lshl_add_u32 v244, v5, 3, v244")
    A("v_add_u32 v244, s21, v244")
    A("s_mul_i32 s21, s45, 320")
    A(f"s_add_u32 s21, s21, {5*2560}")
    A("v_lshlrev_b32 v245, 4, v5")
    A("v_add_u32 v245, s21, v245")
    HACC = 252
    probe(2)
    if OPT.get("eq", "1") == "1":
        e_qmajor(C, ACC, VH, VH2, HACC)
    else:
        e_stepmajor(C, ACC, RING, VH, VH2, HACC)
    L = C.lab("ep")
    A("s_or_b32 s50, s2, s3")
    A("s_cmp_lg_u32 s50, 0")
    A(f"s_cbranch_scc1 {L}")
    srd(A, 16, 4, WS_EPOCH, 128)
    A("v_mov_b32 v4, 0")
    A(f"v_mov_b32 v5, s{STAG}")
    A("s_mov_b64 exec, 1")
    A(f"buffer_store_dword v5, v4, s[16:19], 0 offen {SC}")
    A("s_mov_b64 exec, -1")
    A(f"{L}:")

def e_stepmajor(C, ACC, RING, VH, VH2, HACC):
    A = C.A; vm = C.vm
    def h_regs(st): return range(RING[st % 8], RING[st % 8] + 16)
    def h_reload(sts):
        def f():
            for st in sts:
                if st >= 12: A("s_mov_b32 s54, s47"); off = (st - 12)*1024
                else: A(f"s_movk_i32 s54, {st*1024}"); off = 0
                for q in range(4):
                    r = RING[st % 8] + 4*q
                    if st % 7 == 3:
                        for z in range(2):
                            A(f"buffer_load_dwordx2 v[{r+2*z}:{r+2*z+1}], v{VH2+q}, s[16:19], s54 offen offset:{off + 512*z} {LSC}")
                    else:
                        A(f"buffer_load_dwordx4 v[{r}:{r+3}], v{VH+q}, s[16:19], s54 offen offset:{off} {LSC}")
        return f
    def h_ops(st):
        ops = []
        if st % 4 == 0:
            ops.append((lambda st=st: A(f"s_movk_i32 s22, {st*1024}")) if st < 12 else (lambda: A("s_mov_b32 s22, s47")))
        for q in range(4):
            r = RING[st % 8] + 4*q
            if st % 7 == 3:
                for z in range(2):
                    def f(q=q, st=st, r=r, z=z):
                        A(f"buffer_load_dwordx2 v[{r+2*z}:{r+2*z+1}], v{VH2+q}, s[16:19], s22 offen offset:{(st%4)*1024 + 512*z} {LSC}")
                        vm.issue(("H", st))
                    ops.append(f)
            else:
                def f(q=q, st=st, r=r):
                    A(f"buffer_load_dwordx4 v[{r}:{r+3}], v{VH+q}, s[16:19], s22 offen offset:{(st%4)*1024} {LSC}")
                    vm.issue(("H", st))
                ops.append(f)
        return ops
    NPOLL = 3
    def h_loads():
        h_reload(range(NPOLL))()
    def h_test():
        fill_test(A, [r for st in range(NPOLL) for r in h_regs(st)], HACC)
    retry_loop(C, h_loads, h_test)
    cnt(A, 4)
    estamp(A, 0)
    A("s_barrier")
    A("s_movk_i32 s22, 0")
    for st in range(NPOLL, 8):
        for f in h_ops(st): f()
    pending = []
    for st in range(NST):
        if NPOLL <= st + 1 < NST:
            vm.wait([("H", st+1)])
            pending[0:0] = check_ops(C, h_reload([st+1]), h_regs(st+1), HACC)
        k = 0
        for p in range(5):
            for q in range(4):
                c = ACC + (q*5+p)*4
                src = "0" if st == 0 else f"v[{c}:{c+3}]"
                wk, wr = wfrag(st, p)
                h = RING[st % 8] + 4*q
                A(f"v_mfma_f32_16x16x32_bf16 v[{c}:{c+3}], {wk}[{wr}:{wr+3}], v[{h}:{h+3}], {src}")
                k += 1
                if pending: pending.pop(0)()
        while pending: pending.pop(0)()
        if st + 8 < NST: pending.extend(h_ops(st + 8))
        if st == 7:
            def xg():
                for p in range(5):
                    A(f"buffer_load_dwordx2 {pr(208+2*p)}, v244, s[24:27], 0 offen offset:{32*p} {LSC}")
                    vm.issue("XG")
                    A(f"buffer_load_dwordx4 v[{220+4*p}:{223+4*p}], v245, s[28:31], 0 offen offset:{64*p} {LSC}")
                    vm.issue("XG")
            pending.append(xg)
    while pending: pending.pop(0)()
    estamp(A, 1)
    X, G = 208, 220
    A("v_lshlrev_b32 v2, 4, v1")
    for q in range(1, 4):
        A(f"s_add_u32 s21, s3, {q}")
        A("s_and_b32 s21, s21, 3")
        A("s_mul_i32 s21, s21, 15360")
        A(f"s_add_u32 s21, s21, {(q-1)*5120}")
        A(f"v_add_u32 v6, s21, v2")
        for p in range(5):
            c = ACC + (q*5+p)*4
            A(f"ds_write_b128 v6, v[{c}:{c+3}] offset:{p*1024}")
    A("s_mul_i32 s21, s3, 15360")
    A("v_add_u32 v6, s21, v2")
    A("s_waitcnt lgkmcnt(0)")
    A("s_barrier")
    estamp(A, 2)
    R = 88
    for k in range(3):
        for p in range(5):
            r = R + k*20 + 4*p
            A(f"ds_read_b128 v[{r}:{r+3}], v6 offset:{k*5120 + p*1024}")
    for k in range(3):
        A(f"s_waitcnt lgkmcnt({5*(2-k)})")
        for r in range(0, 20, 2):
            A(f"v_pk_add_f32 {pr(ACC+r)}, {pr(ACC+r)}, {pr(R+k*20+r)}")
    vm.wait(["XG"])
    for p in range(5):
        for z in range(2):
            A(f"v_lshlrev_b32 v4, 16, v{X+2*p+z}")
            A(f"v_and_b32 v5, 0xffff0000, v{X+2*p+z}")
            A(f"v_pk_fma_f32 {pr(4)}, {pr(G+4*p+2*z)}, {pr(ACC+4*p+2*z)}, {pr(4)}")
            A(f"v_cvt_pk_bf16_f32 v{88+2*p+z}, v4, v5")
        A(f"buffer_store_dwordx2 {pr(88+2*p)}, v244, s[36:39], 0 offen offset:{32*p} {OPT.get('osc','').replace('+',' ')}")
    estamp(A, 3)

def e_qmajor(C, ACC, VH, VH2, HACC):
    A = C.A; vm = C.vm
    NR = int(OPT.get("enr", 32))
    NJ = 4*NST
    QO = (1, 2, 3, 0)
    RED = SLOT if DT else 2*SLOT if NS == 4 else 0
    def slot(j):
        i = j % NR
        return 88 + 4*i if i < 16 else 176 + 4*(i - 16)
    def regs(j): return list(range(slot(j), slot(j) + 4))
    A("s_movk_i32 s20, 4096")
    A("s_movk_i32 s21, 8192")
    state = dict(hi=0)
    def load(j, track=True):
        q, st = QO[j // NST], j % NST
        so = ["0", "s20", "s21", "s47"][st // 4]
        r = slot(j)
        if st % 7 == 3:
            for z in range(2):
                A(f"buffer_load_dwordx2 v[{r+2*z}:{r+2*z+1}], v{VH2+q}, s[16:19], {so} offen offset:{(st % 4)*1024 + 512*z} {LSC}")
                if track: vm.issue(("H", j))
        else:
            A(f"buffer_load_dwordx4 v[{r}:{r+3}], v{VH+q}, s[16:19], {so} offen offset:{(st % 4)*1024} {LSC}")
            if track: vm.issue(("H", j))
        if track: state["hi"] = j + 1
    def nloads(js): return sum(2 if (j % NST) % 7 == 3 else 1 for j in js)
    def check(j):
        if OPT.get("xp") in ("hv", "nc"): return []
        L = C.lab("ex")
        rr = regs(j) + regs(j+1)
        ops = max_ops(A, rr, HACC)
        ops.append(lambda: A(f"v_cmp_eq_u32 vcc, -1, v{HACC}"))
        def br():
            A(f"s_cbranch_vccnz {L}")
            A(f"{L}_b:")
            hi = state["hi"]
            def tail():
                A(f"{L}:")
                q = vm.q
                retry_loop(C, lambda: [load(k, False) for k in range(j, hi)], lambda: fill_test(A, rr, HACC))
                if CNT and PROF and OPT.get("crep"):
                    A("s_add_u32 s70, s70, 1")
                    A("s_add_u32 s69, s69, s53")
                vm.q = q
                A(f"s_branch {L}_b")
            C.tail.append(tail)
        ops.append(br)
        return ops
    if CNT and PROF and OPT.get("crep"):
        A("s_mov_b32 s70, 0")
        A("s_mov_b32 s69, 0")
    def lds_addr():
        A("v_lshlrev_b32 v2, 4, v1")
        for q in range(1, 4):
            A(f"s_add_u32 s22, s3, {q}")
            A("s_and_b32 s22, s22, 3")
            A("s_mul_i32 s22, s22, 15360")
            A(f"s_add_u32 s22, s22, {RED + (q-1)*5120}")
            A(f"v_add_u32 v{252+q}, s22, v2")
        A("s_mul_i32 s22, s3, 15360")
        A(f"s_add_u32 s22, s22, {RED}")
        A("v_add_u32 v6, s22, v2")
    NP = int(OPT.get("enp", 4))
    if OPT.get("epr", "0") == "1":
        NPB = len(C.probes)
        L = C.lab("pb")
        if not CUM: A("s_mov_b32 s53, 0")
        A(f"{L}:")
        for k, r in enumerate(C.probes):
            A(f"s_waitcnt vmcnt({NPB - 1})")
            A(f"v_cmp_eq_u32 vcc, -1, v{r}")
            A(f"s_cbranch_vccz {L}_x")
            A(f"buffer_load_dword v{r}, v7, s[16:19], 0 offen {LSC}")
        A("s_add_u32 s53, s53, 1")
        A(f"s_cmp_lt_u32 s53, {RETRY_LIMIT}")
        A(f"s_cbranch_scc1 {L}")
        A(f"{L}_x:")
        cnt(A, 4)
        estamp(A, 0)
        vm.q = ["stale"]*(NPB - 1)
        NP = 0
        for j in range(NR): load(j)
        lds_addr()
        vm.wait([("H", 0), ("H", 1)])
        for f in check(0): f()
    else:
        NSP = int(OPT.get("ens", 4))
        if OPT.get("ewait", "0") == "1": A("s_waitcnt vmcnt(0)")
        tags = [("H", j) for j in range(NP, NSP) for _ in range(nloads([j]))]
        retry_loop(C, lambda: [load(j, False) for j in range(NP)],
                   lambda: fill_test(A, [r for j in range(NP) for r in regs(j)], HACC),
                   spec=lambda: [load(j, False) for j in range(NP, NSP)], tags=tags)
        cnt(A, 4)
        estamp(A, 0)
        state["hi"] = NSP
        for j in range(NSP, NR): load(j)
        lds_addr()
    X, G = 208, 220
    assert NR == 32
    def xg_ops():
        ops = []
        for p in range(5):
            def fx(p=p):
                A(f"buffer_load_dwordx2 {pr(X+2*p)}, v244, s[24:27], 0 offen offset:{32*p} {LSC}"); vm.issue("XG")
            def fg(p=p):
                A(f"buffer_load_dwordx4 v[{G+4*p}:{G+4*p+3}], v245, s[28:31], 0 offen offset:{64*p} {LSC}"); vm.issue("XG")
            ops += [fx, fg]
        return ops
    P = ACC + 20
    pending = []; mem = []
    gaps_left = [5*NJ]
    def gap():
        gaps_left[0] -= 1
        k = 2 if len(pending) > BUSY[0] else 1
        for _ in range(k):
            if pending: pending.pop(0)()
    BUSY = [1000]
    for j in range(NJ):
        qi, st = divmod(j, NST)
        q = QO[qi]
        if OPT.get("est") == "3" and j % 6 == 0: A(f"s_memtime s[{56+2*(j//6)}:{57+2*(j//6)}]")
        if j % 2 == 0 and j + 2 < NJ and j + 2 >= NP:
            assert state["hi"] >= j + 4
            vm.wait([("H", j+2), ("H", j+3)])
            pending[0:0] = check(j + 2)
        if st == 0 and qi > 0:
            qp = QO[qi-1]
            for p in range(5):
                c = ACC + (qp*5+p)*4
                pending.append(lambda c=c, p=p, qp=qp: A(f"ds_write_b128 v{252+qp}, v[{c}:{c+3}] offset:{p*1024}"))
        if j == 32: mem.extend(xg_ops())
        if j == 44:
            assert not any(getattr(f, "w", 0) for f in pending)
            A("s_waitcnt lgkmcnt(0)")
            A("s_barrier")
            estamp(A, 2)
            for k in range(3):
                for p in range(5):
                    r = P + k*20 + 4*p
                    pending.append(lambda r=r, k=k, p=p: A(f"ds_read_b128 v[{r}:{r+3}], v6 offset:{k*5120 + p*1024}"))
            pending.append(lambda: A("s_waitcnt lgkmcnt(5)"))
            for r in range(20):
                pending.append(lambda r=r: A(f"v_add_f32 v{P+r}, v{P+r}, v{P+20+r}"))
            pending.append(lambda: A("s_waitcnt lgkmcnt(0)"))
            for r in range(20):
                pending.append(lambda r=r: A(f"v_add_f32 v{P+r}, v{P+r}, v{P+40+r}"))
            BUSY[0] = 0
        for p in range(5):
            c = ACC + (q*5+p)*4
            src = "0" if st == 0 else f"v[{c}:{c+3}]"
            wk, wr = wfrag(st, p)
            h = slot(j)
            A(f"v_mfma_f32_16x16x32_bf16 v[{c}:{c+3}], {wk}[{wr}:{wr+3}], v[{h}:{h+3}], {src}")
            if p == 0 and j >= 1 and j - 1 + NR < NJ and j - 1 + NR >= state["hi"]:
                load(j - 1 + NR)
            elif p in (0, 2) and mem:
                mem.pop(0)()
            else:
                gap()
        if st == NST - 1 and qi < 3 or j == 43:
            pass
        if j == 43:
            while pending: pending.pop(0)()
    estamp(A, 1)
    while pending: pending.pop(0)()
    vm.wait(["XG"])
    for p in range(5):
        for z in range(2):
            r = 4*p + 2*z
            A(f"v_pk_add_f32 {pr(ACC+r)}, {pr(ACC+r)}, {pr(P+r)}")
            A(f"v_lshlrev_b32 v4, 16, v{X+2*p+z}")
            A(f"v_and_b32 v5, 0xffff0000, v{X+2*p+z}")
            A(f"v_pk_fma_f32 {pr(4)}, {pr(G+r)}, {pr(ACC+r)}, {pr(4)}")
            A(f"v_cvt_pk_bf16_f32 v{88+2*p+z}, v4, v5")
        A(f"buffer_store_dwordx2 {pr(88+2*p)}, v244, s[36:39], 0 offen offset:{32*p} {OPT.get('osc','').replace('+',' ')}")
    estamp(A, 3)

def fused(name=MAIN):
    K = Kern(name, 256, LDS_TOTAL, vgpr=256, agpr=256)
    A = K.A
    C = Ctx(A)
    phase0(C)
    phase_a(C)
    phase_b(C)
    phase_c(C)
    (phase_d2 if DT else phase_d)(C)
    phase_e(C)
    if DG:
        A("s_memrealtime s[92:93]")
        A("s_load_dwordx2 s[90:91], s[0:1], 80")
        A("s_waitcnt lgkmcnt(0)")
        A("s_mov_b64 exec, 1")
        A("v_mov_b32 v4, 0")
        A("v_mov_b32 v5, s92")
        A("global_atomic_umax v4, v5, s[90:91] offset:32")
    A("all_end:")
    A("s_endpgm")
    for f in C.tail: f()
    if DG:
        for i, x in enumerate(SITES): print("site", i, x)
    A("code_end:")
    return K
```

```python
import os, math
from gen_common import *
from gen_k5 import VM
from gen_k2 import layernorm, unpack_bf16, PITCH2

MAIN = "adaLN_cond__spectral_gfnet__glu_gated_swiglu__prompt_kernel"
OPT = dict(kv.split("=") for kv in os.environ.get("OPT", "").split(",") if kv)
SC = OPT.get("sc", "sc0+sc1").replace("+", " ")
LSC = "sc1"
WS_EPOCH = 0x80000
WS_FLG = 0xB0000
FA, FW, FP, FH1, FH2, FX = [0x8000*i for i in range(6)]
FSH = int(OPT.get("fsh", 5))
SZ_FLG = 6*0x8000
WS_MODG = 0xA0000
NB_WG = 161
BLK = 10368
SZ_Y1N = 256*BLK
TAGSTEP = 0x9E3779B9
RETRY_LIMIT = int(OPT.get("rl", 4000000))
CUM = OPT.get("cum", "1") == "1" and not (CNT and PROF)
DG = OPT.get("dg") == "1"
STAG = 55

ESTAMP = OPT.get("est") == "1"
_stamp = stamp
def stamp(A, i):
    if ESTAMP and i in (0, 1, 2, 3, 5): return
    if OPT.get("est") in ("2", "3") and i < 20: return
    if OPT.get("est") == "9": return
    _stamp(A, i)
def estamp(A, i):
    if ESTAMP: _stamp(A, i)
def fk(x): return hex(f32bits(float(x)))
def pr(r): return f"v[{r}:{r+1}]"
def mf32(A, d, a, b, first):
    c = "0" if first else f"v[{d}:{d+15}]"
    A(f"v_mfma_f32_32x32x16_bf16 v[{d}:{d+15}], v[{a}:{a+3}], v[{b}:{b+3}], {c}")
def csel(A, d, a, b):
    A(f"s_mov_b32 {d}, {b}")
    A(f"s_cselect_b32 {d}, {a}, {d}")

class Ctx:
    def __init__(self, A):
        self.A = A; self.vm = VM(A); self.n = 0; self.tail = []
    def lab(self, p):
        self.n += 1; return f"{p}_{self.n}"

def max_ops(A, regs, acc):
    regs = list(regs); ops = []
    ops.append(lambda r=regs[:3]: A(f"v_max3_u32 v{acc}, v{r[0]}, v{r[1]}, v{r[2]}"))
    rest = regs[3:]
    while rest:
        if len(rest) >= 2:
            ops.append(lambda r=rest[:2]: A(f"v_max3_u32 v{acc}, v{acc}, v{r[0]}, v{r[1]}")); rest = rest[2:]
        else:
            ops.append(lambda r=rest[0]: A(f"v_max_u32 v{acc}, v{acc}, v{r}")); rest = []
    return ops
def fill_test(A, regs, acc):
    for f in max_ops(A, regs, acc): f()
    A(f"v_cmp_eq_u32 vcc, -1, v{acc}")
def retry_loop(C, loads, test, scnt=53, spec=None, tags=()):
    A = C.A; L = C.lab("rt")
    if not CUM: A(f"s_mov_b32 s{scnt}, 0")
    A(f"{L}:")
    loads()
    if spec: spec()
    A(f"s_add_u32 s{scnt}, s{scnt}, 1")
    A(f"s_waitcnt vmcnt({len(tags)})")
    test()
    A(f"s_cmp_ge_u32 s{scnt}, {RETRY_LIMIT}")
    A(f"s_cbranch_scc1 {L}_{'t' if DG else 'x'}")
    A(f"s_cbranch_vccnz {L}")
    A(f"{L}_x:")
    if DG: gave_up(C, L + "_t", L + "_x")
    C.vm.q = []
    for t in tags: C.vm.issue(t)
SITES = []
def gave_up(C, L, back):
    import inspect
    A = C.A
    site = len(SITES); SITES.append((L, [f.lineno for f in inspect.stack()[1:5]]))
    def tail():
        A(f"{L}:")
        A("s_memrealtime s[92:93]")
        A("s_load_dwordx2 s[90:91], s[0:1], 80")
        A("s_waitcnt vmcnt(0) lgkmcnt(0)")
        A("s_mov_b64 s[94:95], exec")
        A("s_mov_b64 exec, 1")
        A("v_mov_b32 v4, 0")
        A(f"v_mov_b32 v5, {hex(1 << (site & 31))}")
        A(f"global_atomic_or v4, v5, s[90:91] offset:{4*(site >> 5)}")
        A("v_mov_b32 v5, 1")
        A("global_atomic_add v4, v5, s[90:91] offset:8")
        A("s_not_b32 s92, s92")
        A("s_lshl_b32 s96, s92, 8")
        A("s_or_b32 s96, s96, s2")
        A("v_mov_b32 v5, s96")
        A("global_atomic_umax v4, v5, s[90:91] offset:12")
        A("s_lshl_b32 s96, s92, 6")
        A(f"s_or_b32 s96, s96, {site}")
        A("v_mov_b32 v5, s96")
        A("global_atomic_umax v4, v5, s[90:91] offset:28")
        A("v_mov_b32 v5, s92")
        A("global_atomic_umax v4, v5, s[90:91] offset:24")
        A("s_waitcnt vmcnt(0)")
        A("s_mov_b64 exec, s[94:95]")
        A(f"s_branch {back}")
    C.tail.append(tail)
def poll2(C, loads, tests, nops, use, scnt=53):
    A = C.A; L = C.lab("p2")
    if not CUM: A(f"s_mov_b32 s{scnt}, 0")
    A(f"{L}:")
    for k in range(2):
        A(f"s_waitcnt vmcnt({nops})")
        tests[k]()
        A(f"s_cbranch_vccz {L}_{k}")
        loads[k]()
    A(f"s_add_u32 s{scnt}, s{scnt}, 1")
    A(f"s_cmp_lt_u32 s{scnt}, {RETRY_LIMIT}")
    A(f"s_cbranch_scc1 {L}")
    if DG:
        A(f"s_branch {L}_t")
        A(f"{L}_x:")
        gave_up(C, L + "_t", L + "_x")
    A(f"s_waitcnt vmcnt({nops})")
    A(f"{L}_0:")
    use(0)
    A(f"s_branch {L}_e")
    A(f"{L}_1:")
    use(1)
    A(f"{L}_e:")
    C.vm.q = ["stale"]*nops
def check_ops(C, loads, regs, acc):
    A = C.A; L = C.lab("fx")
    ops = max_ops(A, regs, acc)
    ops.append(lambda: A(f"v_cmp_eq_u32 vcc, -1, v{acc}"))
    def br():
        A(f"s_cbranch_vccnz {L}")
        A(f"{L}_b:")
    ops.append(br)
    def tail():
        A(f"{L}:")
        q = C.vm.q
        retry_loop(C, loads, lambda: fill_test(A, regs, acc))
        C.vm.q = q
        A(f"s_branch {L}_b")
    C.tail.append(tail)
    return ops
def flag_store(C, off, va=4, vb=5):
    A = C.A; L = C.lab("fl")
    A("s_cmp_lg_u32 s3, 0")
    A(f"s_cbranch_scc1 {L}")
    A(f"s_lshl_b32 s50, s2, {FSH}")
    A(f"s_add_u32 s50, s50, {off}")
    A(f"v_mov_b32 v{va}, s50")
    A(f"v_mov_b32 v{vb}, s{STAG}")
    A("s_mov_b64 exec, 1")
    A(f"buffer_store_dword v{vb}, v{va}, s[12:15], 0 offen {SC}")
    A("s_mov_b64 exec, -1")
    A(f"{L}:")

L_ROWS = 0
L_TR = 8*PITCH2
L_MODP = L_TR + 16384
L_MODV = L_MODP + 1024
L_WT = L_MODV + 5120
L_PREP = 45056
L_YST = L_PREP + 32768
assert L_WT + 4*2816 <= L_PREP and L_YST + 16384 <= 114688

def prep_params(C, unit, B):
    A = C.A
    g, pitch, so, do, ts, ga, ja, a, b, c = [f"s{B+i}" for i in range(10)]
    A(f"s_sub_u32 {a}, s2, {NB_WG}")
    A(f"s_lshl_b32 {a}, {a}, 2")
    A(f"s_add_u32 {a}, {a}, s3")
    if unit: A(f"s_add_u32 {a}, {a}, {unit*4*(256 - NB_WG)}")
    A(f"s_cmp_ge_u32 {a}, 540")
    A(f"s_cselect_b32 {g}, 1, 0")
    A(f"s_cmp_ge_u32 {a}, 1080")
    A(f"s_cselect_b32 {g}, 2, {g}")
    A(f"s_mul_i32 {b}, {g}, 540")
    A(f"s_sub_u32 {b}, {a}, {b}")
    A(f"s_cmp_eq_u32 {g}, 2")
    csel(A, pitch, "1280", "3456")
    csel(A, ts, "1024", "2048")
    csel(A, ga, "4", "8")
    csel(A, ja, "16", "4")
    csel(A, c, "6554", "2428")
    csel(A, so, "10", "27")
    csel(A, do, "40960", "221184")
    A(f"s_mul_i32 {c}, {c}, {b}")
    A(f"s_lshr_b32 {c}, {c}, 16")
    A(f"s_mul_i32 {so}, {so}, {c}")
    A(f"s_sub_u32 {b}, {b}, {so}")
    A(f"s_mul_i32 {do}, {do}, {c}")
    A(f"s_mul_i32 {so}, {c}, {pitch}")
    A(f"s_lshl_b32 {so}, {so}, 5")
    A(f"s_lshl_b32 {c}, {b}, 7")
    A(f"s_add_u32 {so}, {so}, {c}")
    A(f"s_cmp_eq_u32 {g}, 2")
    csel(A, c, "4096", "8192")
    A(f"s_mul_i32 {c}, {c}, {b}")
    A(f"s_add_u32 {do}, {do}, {c}")
    A(f"s_cmp_eq_u32 {g}, 1")
    A(f"s_cselect_b32 {c}, 1024, 0")
    A(f"s_add_u32 {do}, {do}, {c}")
    A(f"s_cmp_lt_u32 {a}, 1620")
    A(f"s_cselect_b32 {so}, {so}, {hex(OOB)}")
    A(f"s_cselect_b32 {do}, {do}, {hex(OOB)}")

def a_consts(C, pf):
    A = C.A
    hf = 19
    A("v_cvt_f32_u32 v7, v2")
    A(f"v_cvt_f32_u32 v{hf}, v3")
    A(f"v_mul_f32 v212, {flit(1/32)}, v7")
    A(f"v_mul_f32 v213, v212, v{hf}")
    A(f"v_mul_f32 v213, {flit(8.0)}, v213")
    for mh in range(2):
        for p in range(4):
            for z in range(2):
                A(f"v_fmamk_f32 v214, v212, {fk(16*mh+2*p+z)}, v213")
                A(f"v_cos_f32 v{60+z}, v214")
                A(f"v_sin_f32 v{62+z}, -v214")
            A(f"v_cvt_pk_bf16_f32 v{80+4*mh+p}, v60, v61")
            A(f"v_cvt_pk_bf16_f32 v{88+4*mh+p}, v62, v63")
            pf()
    A(f"v_mul_f32 v212, {flit(1/640)}, v7")
    A(f"v_mul_f32 v213, v212, v{hf}")
    A("v_mul_f32 v213, 4.0, v213")
    for r in range(12):
        A(f"v_fmamk_f32 v214, v212, {fk(8*(r//4)+r%4)}, v213")
        A(f"v_cos_f32 v{96+r}, v214")
        A(f"v_sin_f32 v{108+r}, v214")
        if r & 1: pf()
    A("v_and_b32 v60, 15, v2")
    A("v_cvt_f32_u32 v60, v60")
    A("v_lshrrev_b32 v61, 4, v2")
    A("v_cvt_f32_u32 v61, v61")
    A(f"v_mul_f32 v212, {flit(1/20)}, v60")
    A(f"v_mul_f32 v213, v212, v{hf}")
    A("v_mul_f32 v213, 4.0, v213")
    A(f"v_fmamk_f32 v213, v61, {fk(0.25)}, v213")
    A(f"v_add_f32 v215, {flit(-0.25)}, v213")
    def cpair(dst, consts, bases):
        for z in range(2):
            A(f"v_fmamk_f32 v214, v212, {fk(consts[z])}, v{bases[z]}")
            A(f"v_cos_f32 v{62+z}, v214")
        A(f"v_cvt_pk_bf16_f32 v{dst}, v62, v63")
    for p in range(4):
        d = [8*((2*p+z) >> 2) + ((2*p+z) & 3) for z in range(2)]
        cpair(120+p, d, [213, 213]); pf()
        cpair(124+p, d, [215, 215]); pf()
    for p in range(2):
        d = [16+2*p, 17+2*p]
        cpair(128+p, d, [213, 213]); pf()
        cpair(130+p, d, [215, 215]); pf()
    A("v_cmp_eq_u32 vcc, 0, v3")
    for p in range(4):
        A(f"v_cndmask_b32 v{128+p}, 0, v{128+p}, vcc")

N_FILLER = 16

def phase0(C):
    A = C.A; vm = C.vm
    A("s_cmp_ge_u32 s2, 256")
    A("s_cbranch_scc1 all_end")
    if OPT.get("cpf", "2") == "2":
        L = C.lab("cpf")
        A("s_getpc_b64 s[26:27]")
        A(f"{L}_pc:")
        A("s_bfe_u32 s50, s2, 0x30003")
        A("s_lshl_b32 s50, s50, 12")
        A("v_lshl_add_u32 v4, v0, 4, s50")
        A("s_bfe_u32 s50, s2, 0x20003")
        A("s_lshl_b32 s50, s50, 12")
        A("s_add_u32 s50, s50, 0x8000")
        A("v_lshl_add_u32 v6, v0, 4, s50")
        A(f"s_sub_u32 s26, s26, {L}_pc-{MAIN}")
        A("s_subb_u32 s27, s27, 0")
        A(f"v_min_u32 v6, code_end-{MAIN}-16, v6")
        A("global_load_dwordx4 v[248:251], v4, s[26:27]")
        A("global_load_dwordx4 v[252:255], v6, s[26:27]")
    A("s_load_dwordx2 s[4:5], s[0:1], 88")
    A("s_load_dwordx4 s[28:31], s[0:1], 56")
    A("s_load_dwordx2 s[6:7], s[0:1], 0")
    A("s_load_dwordx4 s[16:19], s[0:1], 8")
    A("s_load_dwordx4 s[20:23], s[0:1], 32")
    A("s_load_dwordx2 s[24:25], s[0:1], 48")
    A("s_load_dwordx2 s[8:9], s[0:1], 72")
    if CUM: A("s_mov_b32 s53, 0")
    if DG:
        A("s_memrealtime s[92:93]")
        A("s_load_dwordx2 s[90:91], s[0:1], 80")
    A("v_and_b32 v1, 63, v0")
    A("v_and_b32 v2, 31, v0")
    A("v_lshrrev_b32 v3, 5, v1")
    A("v_lshrrev_b32 v4, 6, v0")
    A("v_readfirstlane_b32 s3, v4")
    A("s_and_b32 s48, s2, 7")
    A("s_lshr_b32 s49, s2, 3")
    A("s_mul_i32 s26, s48, 10")
    A("s_add_u32 s26, s26, s49")
    A("s_mul_i32 s27, s48, 20")
    A("s_add_u32 s27, s27, s49")
    A("s_add_u32 s27, s27, 70")
    A("s_cmp_lt_u32 s49, 10")
    A("s_cselect_b32 s54, s26, s27")
    A("s_lshl_b32 s26, s54, 5")
    A("s_cmp_lt_u32 s49, 30")
    A(f"s_cselect_b32 s26, s26, {hex(OOB)}")
    A("v_lshrrev_b32 v4, 1, v0")
    A("v_and_b32 v5, 1, v0")
    A("v_mul_u32_u24 v56, 7680, v4")
    A("v_lshl_add_u32 v56, v5, 4, v56")
    A("v_add_u32 v56, s26, v56")
    A("v_lshlrev_b32 v57, 1, v4")
    A("s_lshl_b32 s80, s48, 3")
    A("s_and_b32 s26, s49, 7")
    A("s_add_u32 s80, s80, s26")
    A("s_lshr_b32 s26, s2, 7")
    A("s_lshl_b32 s26, s26, 4")
    A("s_bfe_u32 s27, s2, 0x10006")
    A("s_lshl_b32 s27, s27, 2")
    A("s_add_u32 s26, s26, s27")
    A("s_lshr_b32 s27, s3, 1")
    A("s_lshl_b32 s27, s27, 3")
    A("s_add_u32 s26, s26, s27")
    A("s_and_b32 s27, s3, 1")
    A("s_lshl_b32 s27, s27, 1")
    A("s_add_u32 s26, s26, s27")
    A("s_lshl_b32 s26, s26, 6")
    A("s_add_u32 s26, s26, s80")
    A("s_mul_i32 s26, s26, 1280")
    A("v_mul_u32_u24 v58, 81920, v3")
    A("v_lshl_add_u32 v58, v2, 3, v58")
    A("v_add_u32 v58, s26, v58")
    A("s_lshr_b32 s26, s2, 6")
    A("s_lshl_b32 s26, s26, 6")
    A("s_add_u32 s80, s80, s26")
    A(f"s_mul_i32 s80, s80, {BLK}")
    A("s_waitcnt lgkmcnt(0)")
    if DG:
        A("s_mov_b32 s88, s92")
        A("s_lshl_b32 s96, s2, 2")
        A("s_add_u32 s96, s96, 0x88000")
        A("v_mov_b32 v200, s96")
        A("v_mov_b32 v201, s92")
        A("s_cmp_eq_u32 s3, 0")
        A("s_cselect_b64 exec, 1, 0")
        A("global_store_dword v200, v201, s[4:5] sc0 sc1")
        A("s_mov_b64 exec, -1")
    Lfill, Ljoin = C.lab("filler"), C.lab("p0join")
    A("s_cmp_ge_u32 s49, 30")
    A(f"s_cbranch_scc1 {Lfill}")
    srd(A, 32, 28, 0, 1280)
    srd(A, 36, 30, 0, 640*7680)
    for i in range(5):
        A(f"buffer_load_ushort v{20+i}, v57, s[32:35], 0 offen offset:{256*i}"); vm.issue("c")
    for i in range(5):
        if i: A(f"s_mov_b32 s26, {i*128*7680}")
        A(f"buffer_load_dwordx4 v[{28+4*i}:{31+4*i}], v56, s[36:39], {'s26' if i else '0'} offen"); vm.issue(("w", i))
    srd(A, 32, 6, 0, SZ_X)
    for i in range(5):
        A(f"buffer_load_dwordx2 v[{8+2*i}:{9+2*i}], v58, s[32:35], 0 offen offset:{256*i}"); vm.issue("x")
    stamp(A, 0)
    A(f"s_load_dword s{STAG}, s[4:5], {hex(WS_EPOCH)}")
    def wt_code():
        A("s_lshl_b32 s26, s49, 2")
        A("s_add_u32 s26, s26, s3")
        A("s_mul_i32 s27, s26, 4370")
        A("s_lshr_b32 s27, s27, 16")
        A("s_mul_i32 s50, s27, 15")
        A("s_sub_u32 s26, s26, s50")
        A("s_mul_i32 s26, s26, 22")
        A("s_min_u32 s26, s26, 299")
        A("s_lshl_b32 s50, s48, 3")
        A("s_add_u32 s27, s27, s50")
        A("s_lshr_b32 s50, s27, 2")
        A("s_and_b32 s27, s27, 3")
        A("v_and_b32 v4, 7, v1")
        A("v_bfe_u32 v5, v1, 3, 2")
        A("v_lshl_add_u32 v6, v5, 5, v4")
        A("s_lshl_b32 s51, s50, 7")
        A("s_lshl_b32 s52, s27, 3")
        A("s_add_u32 s51, s51, s52")
        A("v_add_u32 v6, s51, v6")
        A("v_mul_u32_u24 v228, 642, v6")
        A("v_mul_u32_u24 v7, 20, v3")
        A("v_add_u32 v228, v228, v7")
        A("s_lshl_b32 s51, s26, 1")
        A("s_cmp_lt_u32 s49, 30")
        A(f"s_cselect_b32 s51, s51, {hex(OOB)}")
        A("v_add_u32 v228, s51, v228")
        A("s_mul_i32 s51, s3, 2816")
        A(f"s_add_u32 s51, s51, {L_WT}")
        A("v_mul_u32_u24 v229, 1280, v3")
        A("v_lshl_add_u32 v229, v4, 4, v229")
        A("v_lshl_add_u32 v229, v5, 2, v229")
        A("v_add_u32 v229, s51, v229")
        A("v_lshl_add_u32 v230, v1, 4, s51")
        A("s_lshl_b32 s26, s26, 13")
        A("s_lshl_b32 s50, s50, 9")
        A("s_add_u32 s26, s26, s50")
        A("s_lshl_b32 s27, s27, 7")
        A("s_add_u32 s26, s26, s27")
        A("s_cmp_lt_u32 s49, 30")
        A(f"s_cselect_b32 s26, s26, {hex(OOB)}")
        A("v_lshrrev_b32 v5, 3, v1")
        A("v_lshlrev_b32 v231, 13, v5")
        A("v_lshl_add_u32 v231, v4, 4, v231")
        A("v_add_u32 v231, s26, v231")
        srd(A, 32, 16, 0, SZ_WF)
        srd(A, 36, 18, 0, SZ_WF)
        for m in range(2):
            A(f"buffer_load_dwordx4 v[{216+6*m}:{219+6*m}], v228, s[{32+4*m}:{35+4*m}], 0 offen"); vm.issue("wt")
            A(f"buffer_load_dwordx2 v[{220+6*m}:{221+6*m}], v228, s[{32+4*m}:{35+4*m}], 0 offen offset:16"); vm.issue("wt")
    wt_code()
    stamp(A, 1)
    A("s_waitcnt lgkmcnt(0)")
    A(f"s_add_u32 s{STAG}, s{STAG}, {hex(TAGSTEP)}")
    srd(A, 12, 4, WS_FLG, SZ_FLG)
    a_consts(C, lambda: None)
    stamp(A, 2)
    vm.wait(["c"])
    for i in range(5):
        r = 20+i
        A(f"v_lshlrev_b32 v{r}, 16, v{r}")
        A(f"v_mul_f32 v26, {flit(-math.log2(math.e))}, v{r}")
        A(f"v_exp_f32 v26, v26")
        A(f"v_add_f32 v26, 1.0, v26")
        A(f"v_rcp_f32 v26, v26")
        A(f"v_mul_f32 v{r}, v{r}, v26")
        bf16_round_v(A, r, r)
    for i in range(5):
        vm.wait([("w", i)])
        for q in range(4):
            w = 28+4*i+q
            A(f"v_lshlrev_b32 v26, 16, v{w}")
            A(f"v_and_b32 v27, 0xffff0000, v{w}")
            if i == 0:
                A(f"v_mul_f32 v{48+2*q}, v{20+i}, v26")
                A(f"v_mul_f32 v{49+2*q}, v{20+i}, v27")
            else:
                A(f"v_fmac_f32 v{48+2*q}, v{20+i}, v26")
                A(f"v_fmac_f32 v{49+2*q}, v{20+i}, v27")
    for ctl in ["quad_perm:[2,3,0,1]", "row_ror:4", "row_ror:8"]:
        for q in range(8):
            A(f"v_add_f32_dpp v{48+q}, v{48+q}, v{48+q} {ctl} row_mask:0xf bank_mask:0xf")
    A("v_lshrrev_b32 v5, 4, v0")
    A("v_lshlrev_b32 v5, 6, v5")
    A("v_and_b32 v6, 1, v0")
    A("v_lshl_add_u32 v5, v6, 5, v5")
    A("v_and_b32 v6, 14, v0")
    A("v_cmp_eq_u32 vcc, 0, v6")
    A("s_and_saveexec_b64 s[26:27], vcc")
    A(f"ds_write_b128 v5, v[48:51] offset:{L_MODP}")
    A(f"ds_write_b128 v5, v[52:55] offset:{L_MODP+16}")
    A("s_mov_b64 exec, s[26:27]")
    A("s_waitcnt lgkmcnt(0)")
    A("s_barrier")
    stamp(A, 3)
    L = C.lab("modfin")
    A("s_cmp_lg_u32 s3, 0")
    A(f"s_cbranch_scc1 {L}")
    A("v_and_b32 v6, 15, v0")
    A("v_lshrrev_b32 v5, 4, v0")
    A("v_lshlrev_b32 v5, 8, v5")
    A("v_lshl_add_u32 v5, v6, 2, v5")
    A(f"v_add_u32 v5, {L_MODP}, v5")
    A("ds_read2_b32 v[20:21], v5 offset0:0 offset1:16")
    A("ds_read2_b32 v[22:23], v5 offset0:32 offset1:48")
    A("s_waitcnt lgkmcnt(0)")
    A("v_add_f32 v20, v20, v21")
    A("v_add_f32 v22, v22, v23")
    A("v_add_f32 v20, v20, v22")
    for sw in ("v_permlane16_swap_b32", "v_permlane32_swap_b32"):
        A("v_mov_b32 v21, v20")
        A(f"{sw} v20, v21")
        A("v_add_f32 v20, v20, v21")
    bf16_round_v(A, 20, 20)
    A("s_cmp_ge_u32 s54, 160")
    A("s_cselect_b32 s26, 120, 0")
    A("s_sub_u32 s26, s54, s26")
    A("s_sub_u32 s26, s26, 40")
    A("v_add_f32 v21, 1.0, v20")
    bf16_round_v(A, 21, 21)
    A("s_cmp_lt_u32 s26, 40")
    A("s_cselect_b64 vcc, -1, 0")
    A("v_cndmask_b32 v20, v20, v21, vcc")
    A(f"v_mov_b32 v21, s{STAG}")
    A("s_lshl_b32 s26, s54, 7")
    A("s_cmp_lt_u32 s54, 80")
    A(f"s_cselect_b32 s26, s26, {hex(OOB)}")
    A("v_lshl_add_u32 v22, v6, 3, s26")
    A("s_lshl_b32 s26, s54, 6")
    A("s_cmp_ge_u32 s54, 80")
    A(f"s_cselect_b32 s26, s26, {hex(OOB)}")
    A("s_cmp_lt_u32 s49, 30")
    A(f"s_cselect_b32 s26, s26, {hex(OOB)}")
    A("v_lshl_add_u32 v23, v6, 2, s26")
    srd(A, 32, 4, WS_MODG, 80*128)
    srd(A, 36, 4, WS_MOD, SZ_MOD)
    A("s_mov_b64 exec, 0xffff")
    A(f"buffer_store_dwordx2 v[20:21], v22, s[32:35], 0 offen {SC}")
    A(f"buffer_store_dword v20, v23, s[36:39], 0 offen {SC}")
    A("s_mov_b64 exec, -1")
    A(f"{L}:")
    stamp(A, 4)
    vm.wait(["x"])
    unpack_bf16(A, 60, 8, 10)
    layernorm(A, 60, 20, 212, 213)
    stamp(A, 5)
    vm.wait(["wt"])
    for m in range(2):
        for cc in range(12):
            op = "ds_write_b16_d16_hi" if cc & 1 else "ds_write_b16"
            A(f"{op} v229, v{216+6*m+cc//2} offset:{cc*128 + 2*m}")
    A("s_waitcnt lgkmcnt(0)")
    for j in range(3):
        A(f"ds_read_b128 v[{216+4*j}:{219+4*j}], v230 offset:{1024*j}")
    A(f"v_add_u32 v229, {hex(OOB)}, v231")
    A("v_cmp_gt_u32 vcc, 48, v1")
    A("v_cndmask_b32 v229, v229, v231, vcc")
    for q in range(4): A(f"v_accvgpr_write_b32 a{12+q}, -1")
    A("s_waitcnt lgkmcnt(0)")
    A(f"s_branch {Ljoin}")
    A(f"{Lfill}:")
    q_main = vm.q; vm.q = []
    srd(A, 32, 6, 0, SZ_X)
    for i in range(5):
        A(f"buffer_load_dwordx2 v[{8+2*i}:{9+2*i}], v58, s[32:35], 0 offen offset:{256*i}"); vm.issue("x")
    stamp(A, 0)
    A(f"s_load_dword s{STAG}, s[4:5], {hex(WS_EPOCH)}")
    A(f"s_sub_u32 s26, s2, {256 - N_FILLER}")
    A("s_lshl_b32 s26, s26, 12")
    A("v_lshl_add_u32 v59, v0, 4, s26")
    for q in range(4): A(f"v_accvgpr_write_b32 a{12+q}, -1")
    srd(A, 40, 4, WS_Y1, SZ_Y1N)
    fills = []
    for sd, sz in ((40, SZ_Y1N),):
        for i in range(-(-sz // (N_FILLER*4096))):
            def f(sd=sd, i=i):
                A(f"s_mov_b32 s81, {i*N_FILLER*4096}")
                A(f"buffer_store_dwordx4 a[12:15], v59, s[{sd}:{sd+3}], s81 offen {SC}"); vm.issue("fill")
            fills.append(f)
    def pf(k=1):
        for _ in range(k):
            if fills: fills.pop(0)()
    pf(4)
    stamp(A, 1)
    A("s_waitcnt lgkmcnt(0)")
    A(f"s_add_u32 s{STAG}, s{STAG}, {hex(TAGSTEP)}")
    srd(A, 12, 4, WS_FLG, SZ_FLG)
    a_consts(C, pf)
    stamp(A, 2)
    vm.wait(["x"])
    unpack_bf16(A, 60, 8, 10)
    pf(2)
    layernorm(A, 60, 20, 212, 213)
    pf(99)
    A(f"v_mov_b32 v229, {hex(OOB)}")
    A(f"v_mov_b32 v231, {hex(OOB)}")
    stamp(A, 5)
    A("s_waitcnt vmcnt(0)")
    A("s_barrier")
    flag_store(C, FA)
    A(f"{Ljoin}:")
    vm.q = []
    stamp(A, 6)
    A("v_lshlrev_b32 v245, 4, v0")
    A("v_add_u32 v246, 8192, v245")
    A("v_add_u32 v247, 4096, v245")
    A("v_cmp_gt_u32 vcc, 128, v0")
    A("v_cndmask_b32 v246, v247, v246, vcc")
    A(f"v_and_b32 v247, {N_FILLER - 1}, v0")
    A(f"v_add_u32 v247, {256 - N_FILLER}, v247")
    A(f"v_lshlrev_b32 v247, {FSH}, v247")
    srd(A, 32, 4, WS_MODG, 80*128)
    A("s_movk_i32 s26, 4096")
    def mod_loads():
        A(f"buffer_load_dwordx4 v[232:235], v245, s[32:35], 0 offen {LSC}")
        A(f"buffer_load_dwordx4 v[236:239], v245, s[32:35], s26 offen {LSC}")
        A(f"buffer_load_dwordx4 v[240:243], v246, s[32:35], 0 offen {LSC}")
    def mod_test():
        A("v_min3_u32 v4, v233, v235, v237")
        A("v_max3_u32 v5, v233, v235, v237")
        A("v_min3_u32 v4, v4, v239, v241")
        A("v_max3_u32 v5, v5, v239, v241")
        A("v_min_u32 v4, v4, v243")
        A("v_max_u32 v5, v5, v243")
        A("v_cmp_ne_u32 vcc, v4, v5")
        A(f"v_cmp_ne_u32 s[50:51], s{STAG}, v5")
        A("s_or_b64 vcc, vcc, s[50:51]")
    retry_loop(C, mod_loads, mod_test)
    cnt(A, 0)
    A("v_lshrrev_b32 v4, 1, v245")
    A("v_lshrrev_b32 v5, 1, v246")
    A(f"v_add_u32 v4, {L_MODV}, v4")
    A(f"v_add_u32 v5, {L_MODV}, v5")
    A("v_add_u32 v6, 2048, v4")
    A("ds_write2_b32 v4, v232, v234 offset0:0 offset1:1")
    A("ds_write2_b32 v6, v236, v238 offset0:0 offset1:1")
    A("ds_write2_b32 v5, v240, v242 offset0:0 offset1:1")
    fa_ld(C); vm.issue("fa")
    srd(A, 28, 4, WS_WT, SZ_COL)
    def wt_store(j):
        if j: A(f"s_mov_b32 s81, {j*8*8192}")
        A(f"buffer_store_dwordx4 v[{216+4*j}:{219+4*j}], v{229 if j == 2 else 231}, s[28:31], {'s81' if j else '0'} offen {SC}"); vm.issue("wts")
    C.wt_ops = [lambda j=j: wt_store(j) for j in range(3)]
    if OPT.get("wts", "a") == "now":
        while C.wt_ops: C.wt_ops.pop(0)()
    if True:
        A("s_lshl_b32 s26, s2, 12")
        A("v_lshl_add_u32 v245, v0, 4, s26")
        for off, sz in ((WS_Z, SZ_COL),) + (((WS_H2P, SZ_H2P),) if OPT.get("h2f", "a2") == "a2" else ()):
            srd(A, 32, 4, off, sz)
            for i in range(3):
                if i: A(f"s_mov_b32 s26, {i << 20}")
                A(f"buffer_store_dwordx4 a[12:15], v245, s[32:35], {'s26' if i else '0'} offen {SC}"); vm.issue("wts")
    A("s_waitcnt lgkmcnt(0)")
    A("s_barrier")
    stamp(A, 7)

def fa_ld(C):
    C.A(f"buffer_load_dword v244, v247, s[12:15], 0 offen offset:{FA} {LSC}")
def flag_check(C, name, reg, ld):
    A = C.A; L = C.lab(name)
    A(f"v_cmp_ne_u32 vcc, s{STAG}, v{reg}")
    A(f"s_cbranch_vccnz {L}")
    A(f"{L}_b:")
    def tail():
        A(f"{L}:")
        q = C.vm.q
        retry_loop(C, ld, lambda: A(f"v_cmp_ne_u32 vcc, s{STAG}, v{reg}"))
        C.vm.q = q
        A(f"s_branch {L}_b")
    C.tail.append(tail)

def phase_a(C):
    A = C.A; vm = C.vm
    A(f"v_lshlrev_b32 v6, 4, v2")
    A(f"v_add_u32 v6, {L_MODV}, v6")
    for i in range(5):
        A(f"ds_read_b128 v[{20+4*i}:{23+4*i}], v6 offset:{2560 + 512*i}")
    for i in range(5):
        A(f"ds_read_b128 v[{40+4*i}:{43+4*i}], v6 offset:{512*i}")
    A(f"s_mul_i32 s26, s3, {2*PITCH2}")
    A(f"v_mul_u32_u24 v4, {PITCH2}, v3")
    A("v_lshl_add_u32 v4, v2, 3, v4")
    A("v_add_u32 v4, s26, v4")
    A("v_bfe_u32 v5, v1, 2, 2")
    A("v_lshl_add_u32 v5, v3, 3, v5")
    A("v_mul_u32_u24 v5, 40, v5")
    A("v_bfe_u32 v6, v1, 4, 1")
    A("v_lshl_add_u32 v5, v6, 5, v5")
    A("v_and_b32 v6, 3, v1")
    A("v_lshl_add_u32 v5, v6, 3, v5")
    A("v_add_u32 v5, s26, v5")
    for i in range(5):
        A(f"s_waitcnt lgkmcnt({9-i})")
        for k in (0, 2):
            q = 4*i+k
            A(f"v_pk_mul_f32 {pr(20+q)}, {pr(20+q)}, {pr(212)} op_sel_hi:[1,0]")
    for i in range(5):
        A(f"s_waitcnt lgkmcnt({4-i})")
        for k in (0, 2):
            q = 4*i+k
            A(f"v_pk_fma_f32 {pr(60+q)}, {pr(60+q)}, {pr(20+q)}, {pr(40+q)}")
        for k in (0, 1):
            q = 2*i+k
            A(f"v_cvt_pk_bf16_f32 v{8+q}, v{60+2*q}, v{61+2*q}")
        A(f"ds_write_b64 v4, v[{8+2*i}:{9+2*i}] offset:{256*i}")
    def wt1():
        if C.wt_ops: C.wt_ops.pop(0)()
    wt1()
    A("v_mov_b32 v18, 0")
    A("v_mov_b32 v19, 0")
    A("v_cmp_eq_u32 vcc, 0, v2")
    A("s_and_saveexec_b64 s[26:27], vcc")
    A("ds_write_b64 v4, v[18:19] offset:1280")
    A("s_mov_b64 exec, s[26:27]")
    A("s_waitcnt lgkmcnt(0)")
    for row in range(2):
        for mh in range(2):
            for j in range(2):
                d = 132 + 8*row + 4*mh + 2*j
                A(f"ds_read_b64_tr_b16 v[{d}:{d+1}], v5 offset:{row*PITCH2 + 640*mh + 160*j}")
    T = [[148, 164], [180, 196]]
    A("s_waitcnt lgkmcnt(0)")
    for mh in range(2):
        for row in range(2):
            a = 132 + 8*row + 4*mh
            for ri in range(2):
                mf32(A, T[row][ri], a, (80 if ri == 0 else 88) + 4*mh, mh == 0)
    wt1()
    stamp(A, 8)
    A("v_bfe_u32 v4, v2, 3, 1")
    A("v_lshlrev_b32 v5, 5, v2")
    A("v_lshl_add_u32 v5, v3, 12, v5")
    A("s_lshl_b32 s26, s3, 2")
    A(f"s_add_u32 s26, s26, {L_TR}")
    A("v_add_u32 v5, s26, v5")
    A("v_lshl_add_u32 v4, v4, 4, v5")
    A("v_bfe_u32 v6, v2, 3, 1")
    A("v_xor_b32 v6, 1, v6")
    A("v_lshl_add_u32 v5, v6, 4, v5")
    B = [20, 32]
    TA, TB = 60, 62
    for row in range(2):
        tr, ti = T[row]
        b = B[row]
        for r in range(0, 12, 2):
            c, s_ = 96+r, 108+r
            A(f"v_pk_mul_f32 {pr(TA)}, {pr(tr+r)}, {pr(c)}")
            A(f"v_pk_mul_f32 {pr(TB)}, {pr(ti+r)}, {pr(c)}")
            A(f"v_pk_fma_f32 {pr(TA)}, {pr(ti+r)}, {pr(s_)}, {pr(TA)}")
            A(f"v_pk_fma_f32 {pr(TB)}, {pr(tr+r)}, {pr(s_)}, {pr(TB)} neg_lo:[1,0,0] neg_hi:[1,0,0]")
            dr = b + r//2 if r < 8 else b + 8 + (r-8)//2
            di = b + 4 + r//2 if r < 8 else b + 10 + (r-8)//2
            A(f"v_cvt_pk_bf16_f32 v{dr}, v{TA}, v{TA+1}")
            A(f"v_cvt_pk_bf16_f32 v{di}, v{TB}, v{TB+1}")
    wt1()
    O = [148, 180]
    for st in range(3):
        for row in range(2):
            mf32(A, O[row], 120 + 4*st, B[row] + 4*st, st == 0)
    stamp(A, 9)
    A("v_bfe_u32 v6, v0, 4, 1")
    A("v_xor_b32 v6, v0, v6")
    A("v_lshlrev_b32 v6, 4, v6")
    A(f"v_add_u32 v6, {L_TR}, v6")
    A("v_lshl_add_u32 v7, v0, 4, s80")
    A(f"v_add_u32 v44, {hex(OOB)}, v7")
    A("s_movk_i32 s26, 136")
    A("v_cmp_gt_u32 vcc, s26, v0")
    A("v_cndmask_b32 v44, v44, v7, vcc")
    srd(A, 32, 4, WS_Y1, SZ_Y1N)
    for ri in range(2):
        for r in range(7):
            A(f"v_cvt_pk_bf16_f32 v{60+7*ri+r}, v{O[0]+8*ri+r}, v{O[1]+8*ri+r}")
            A(f"ds_write_b32 v{4+ri}, v{60+7*ri+r} offset:{(8*(r//4)+r%4)*1024}")
    vm.wait(["fa"])
    flag_check(C, "fa", 244, lambda: fa_ld(C))
    A("s_movk_i32 s26, 4096")
    A("s_movk_i32 s27, 8192")
    A("s_waitcnt lgkmcnt(0)")
    A("s_barrier")
    for n in range(3):
        A(f"ds_read_b128 v[{8+4*n}:{11+4*n}], v6 offset:{4096*n}")
    for n in range(3):
        A(f"s_waitcnt lgkmcnt({2-n})")
        A(f"buffer_store_dwordx4 v[{8+4*n}:{11+4*n}], v{44 if n == 2 else 7}, s[32:35], {['0','s26','s27'][n]} offen {SC}"); vm.issue("y1")
    stamp(A, 10)

NU = 5
L_PREP2 = L_PREP
PD = 40
G_S = [16, 17, 18, 19, 28]
DO_S = [29, 30, 31, 81, 82]
def repack(C):
    A = C.A; vm = C.vm
    A("v_lshrrev_b32 v4, 3, v1")
    A("v_and_b32 v5, 7, v1")
    A("v_bfe_u32 v6, v1, 4, 1")
    A("v_lshrrev_b32 v7, 5, v1")
    A("v_lshlrev_b32 v6, 1, v6")
    A("v_lshl_or_b32 v6, v7, 2, v6")
    A("v_xor_b32 v7, 4, v6")
    A("v_xor_b32 v6, v5, v6")
    A("v_xor_b32 v7, v5, v7")
    A("s_mul_i32 s83, s3, 20480")
    for unit in range(NU):
        B = 36
        prep_params(C, unit, B)
        A(f"s_cmp_eq_u32 s{B}, 0")
        A("s_cselect_b32 s32, s20, s22")
        A("s_cselect_b32 s33, s21, s23")
        A(f"s_cmp_eq_u32 s{B}, 2")
        A("s_cselect_b32 s32, s24, s32")
        A("s_cselect_b32 s33, s25, s33")
        A(f"s_mov_b32 s34, {640*1728*2}")
        A("s_mov_b32 s35, 0x20000")
        A(f"v_mul_lo_u32 v59, v4, s{B+1}")
        A(f"v_lshl_add_u32 v232, v6, 4, v59")
        A(f"v_lshl_add_u32 v233, v7, 4, v59")
        A(f"s_lshl_b32 s27, s{B+1}, 3")
        if OPT.get("xp") in ("nd", "nb"): A(f"s_mov_b32 s{B+2}, {hex(OOB)}")
        for i in range(4):
            A(f"s_add_u32 m0, s83, {L_PREP2 + 4096*unit + 1024*i}")
            A(f"buffer_load_dwordx4 v{232+(i&1)}, s[32:35], s{B+2} offen lds"); vm.issue(("P", unit))
            if i < 3: A(f"s_add_u32 s{B+2}, s{B+2}, s27")
        A(f"s_mov_b32 s{G_S[unit]}, s{B}")
        A(f"s_mov_b32 s{DO_S[unit]}, s{B+3}")
        if OPT.get("xp") in ("ns", "nb"): A(f"s_mov_b32 s{DO_S[unit]}, {hex(OOB)}")
    for base, ga, ja in ((8, 8, 4), (16, 4, 16)):
        A("v_lshrrev_b32 v24, 4, v1")
        A("v_bfe_u32 v25, v1, 2, 2")
        A(f"v_mul_u32_u24 v24, {ga}, v24")
        A("v_add_u32 v24, v24, v25")
        A(f"v_add_u32 v25, {ja}, v24")
        A("v_and_b32 v26, 1, v1")
        A("v_bfe_u32 v27, v1, 1, 1")
        for j, rr in enumerate([24, 25]):
            A(f"v_bfe_u32 v28, v{rr}, 1, 1")
            A(f"v_lshrrev_b32 v29, 2, v{rr}")
            A(f"v_lshrrev_b32 v30, 3, v{rr}")
            A(f"v_xor_b32 v29, v29, v30")
            A(f"v_and_b32 v29, 1, v29")
            A(f"v_lshl_or_b32 v28, v29, 1, v28")
            A(f"v_lshlrev_b32 v28, 1, v28")
            A(f"v_xor_b32 v28, v28, v27")
            A(f"v_lshlrev_b32 v31, 7, v{rr}")
            A(f"v_lshl_add_u32 v31, v26, 3, v31")
            A(f"v_add_u32 v31, s83, v31")
            for tile in range(4):
                A(f"v_xor_b32 v29, {2*tile}, v28")
                A(f"v_lshl_add_u32 v{base+4*j+tile}, v29, 4, v31")
    A("v_lshlrev_b32 v24, 4, v1")
    if OPT.get("yg", "1") == "1":
        srd(A, 44, 4, WS_Y1, SZ_Y1N)
        A(f"v_mul_u32_u24 v25, {BLK}, v0")
        retry_loop(C, lambda: A(f"buffer_load_dword v26, v25, s[44:47], 0 offen offset:{int(OPT.get('ygo', 0))} {LSC}"),
                   lambda: A("v_cmp_eq_u32 vcc, -1, v26"))
    for unit in range(NU):
        g, do = f"s{G_S[unit]}", f"s{DO_S[unit]}"
        L = C.lab("rp")
        A(f"s_cmp_eq_u32 {g}, 2")
        csel(A, "s26", hex(WS_W2), hex(WS_W13))
        csel(A, "s34", hex(SZ_W2P), hex(SZ_W13))
        csel(A, "s27", "1024", "2048")
        A("s_add_u32 s32, s4, s26")
        A("s_addc_u32 s33, s5, 0")
        vm.wait([("P", unit)])
        A(f"s_cmp_eq_u32 {g}, 2")
        A(f"s_cbranch_scc1 {L}")
        for var, base in enumerate((8, 16)):
            if var: A(f"{L}:")
            for tile in range(4):
                for j in range(2):
                    d = PD + 16*unit + 4*tile + 2*j
                    A(f"ds_read_b64_tr_b16 v[{d}:{d+1}], v{base+4*j+tile} offset:{L_PREP2 + 4096*unit}")
            if var == 0: A(f"s_branch {L}_e")
        A(f"{L}_e:")
        for tile in range(4):
            d = PD + 16*unit + 4*tile
            A(f"s_waitcnt lgkmcnt({6-2*tile})")
            A(f"buffer_store_dwordx4 v[{d}:{d+3}], v24, s[32:35], {do} offen {SC}"); vm.issue("ps")
            if tile < 3: A(f"s_add_u32 {do}, {do}, s27")

def cis_table(C, T, out, scale=None, fill=None):
    A = C.A
    WC, WS, BP, ANG, th, k0 = T, T+4, T+8, T+12, T+22, T+23
    A(f"v_add_f32 v{ANG}, v{th}, v{th}")
    A(f"v_mul_f32 v{ANG+1}, {fk(3.0)}, v{th}")
    for j, a in ((1, th), (2, ANG), (3, ANG+1)):
        A(f"v_cos_f32 v{WC+j}, v{a}")
        A(f"v_sin_f32 v{WS+j}, v{a}")
    def base(m):
        b = BP + 2*(m & 1); a = k0
        if m:
            a = ANG + (m & 1)
            A(f"v_fmamk_f32 v{a}, v{th}, {fk(8.0*m)}, v{k0}")
        A(f"v_cos_f32 v{b}, v{a}")
        A(f"v_sin_f32 v{b+1}, v{a}")
        if scale: A(f"v_pk_mul_f32 {pr(b)}, {pr(b)}, {scale} op_sel_hi:[1,0]")
    base(0)
    for m in range(4):
        if m < 3: base(m+1)
        b = BP + 2*(m & 1)
        for jp in range(2):
            r = 4*m + 2*jp
            dc, ds = out(r, None)
            A(f"v_pk_mul_f32 {pr(dc)}, {pr(WC+2*jp)}, {pr(b)} op_sel_hi:[1,0]")
            A(f"v_pk_mul_f32 {pr(ds)}, {pr(WC+2*jp)}, {pr(b)} op_sel:[0,1] op_sel_hi:[1,1]")
            A(f"v_pk_fma_f32 {pr(dc)}, {pr(WS+2*jp)}, {pr(b)}, {pr(dc)} op_sel:[0,1,0] op_sel_hi:[1,1,1] neg_lo:[1,0,0] neg_hi:[1,0,0]")
            A(f"v_pk_fma_f32 {pr(ds)}, {pr(WS+2*jp)}, {pr(b)}, {pr(ds)} op_sel:[0,0,0] op_sel_hi:[1,0,1]")
            out(r, (dc, ds))
        if fill: fill()

NS = int(OPT.get("ns", 4))
NS0 = 4
SLOT = 28*1024
C_LDS = NS0*SLOT
ZP = 1552
Z_OFF = C_LDS
ST_OFF = C_LDS + 8*ZP
STP = 1296
ST_H = ST_OFF + 8*STP
SCRAP = ST_H + 8*STP
M_OFF = SCRAP + 1024
LDS_TOTAL = M_OFF + 8192
B_YST = C_LDS
B_EX1 = C_LDS + 16384
assert B_EX1 + 16384 <= M_OFF

DT = OPT.get("dt", "1") == "1"
def ring_buf(s_):
    if DT: return s_ % 4 if s_ < 9 else 4
    return s_ % NS

def early_setup(C):
    A = C.A
    A("s_lshl_b32 s26, s48, 3")
    A("s_and_b32 s27, s49, 7")
    A("s_add_u32 s26, s26, s27")
    A("s_lshr_b32 s27, s49, 3")
    A("s_lshl_b32 s27, s27, 3")
    A("s_lshl_b32 s50, s3, 1")
    A("s_add_u32 s27, s27, s50")
    A("s_lshl_b32 s27, s27, 6")
    A("s_add_u32 s27, s27, s26")
    A("s_mul_i32 s27, s27, 1280")
    A("v_mul_u32_u24 v249, 40, v2")
    A("v_lshl_add_u32 v249, v3, 3, v249")
    A("v_add_u32 v249, s27, v249")
def hh_setup(C):
    A = C.A
    A("s_lshl_b32 s26, s40, 3")
    A("s_lshl_b32 s27, s3, 1")
    A("s_add_u32 s26, s26, s27")
    A("s_mul_i32 s26, s26, 55296")
    A("s_lshl_b32 s27, s41, 9")
    A("v_lshl_add_u32 v249, v1, 4, s27")
    A(f"v_mov_b32 v241, {hex(OOB)}")
    for i, r in ((3, 254), (2, 251), (1, 250), (0, 249)):
        A("s_mov_b32 s50, 55296")
        if i: A(f"v_add_u32 v{r}, {1024*i}, v249")
        A(f"v_cmp_gt_u32 vcc, s50, v{r}")
        A(f"v_add_u32 v{r}, s26, v{r}")
        if i == 3:
            A("v_cmp_gt_u32 s[50:51], 32, v1")
            A("s_and_b64 vcc, vcc, s[50:51]")
        A(f"v_cndmask_b32 v{r}, v241, v{r}, vcc")
    for q in range(4): A(f"v_accvgpr_write_b32 a{252+q}, -1")
def x_ops(C):
    A = C.A; ops = [lambda: srd(A, 28, 6, 0, SZ_X), lambda: A("s_mov_b32 s81, 81920")]
    for r in range(2):
        for q in range(3):
            def f(r=r, q=q):
                d = 6*r + 2*q
                A(f"buffer_load_dwordx2 a[{d}:{d+1}], v249, s[28:31], {'s81' if r else '0'} offen offset:{16*q}")
                C.vm.issue("X")
            ops.append(f)
    return ops
def hhfill_ops(C):
    A = C.A; ops = [lambda: A("s_mov_b32 s82, 55296")]
    for rt in range(2):
        for r in (249, 250, 251, 254):
            def f(r=r, rt=rt):
                A(f"buffer_store_dwordx4 a[252:255], v{r}, s[24:27], {'s82' if rt else '0'} offen {SC}")
                C.vm.issue("HF")
            f.mem = True
            ops.append(f)
    return ops
def m_ops(C):
    A = C.A; ops = []
    def m0():
        srd(A, 44, 4, WS_MOD, SZ_MOD)
        A("v_lshlrev_b32 v255, 4, v1")
        A("s_lshl_b32 s83, s3, 11")
    ops.append(m0)
    for i in range(2):
        def f(i=i):
            A(f"s_add_u32 m0, s83, {M_OFF + 1024*i}")
            A(f"s_add_u32 s43, s83, {5120 + 1024*i}")
            A(f"buffer_load_dwordx4 v255, s[44:47], s43 offen {LSC} lds")
            C.vm.issue("M")
        ops.append(f)
    return ops
def fw_ld(C):
    A = C.A
    A(f"s_mov_b32 s26, {FW}")
    A(f"buffer_load_dword v253, v252, s[12:15], s26 offen {LSC}")

def phase_b(C):
    A = C.A; vm = C.vm
    Lskip, Ldone = C.lab("b_skip"), C.lab("b_done")
    early_setup(C)
    A(f"v_lshlrev_b32 v252, {FSH}, v0")
    A("s_cmp_gt_u32 s2, 160")
    A(f"s_cbranch_scc1 {Lskip}")
    q_skip = list(vm.q)
    A("s_mul_i32 s20, s48, 20")
    A("s_add_u32 s20, s20, s49")
    A("s_cmp_eq_u32 s2, 160")
    A("s_cselect_b32 s20, 160, s20")
    A("s_lshl_b32 s21, s20, 1")
    A("s_lshr_b32 s22, s3, 1")
    A("s_add_u32 s21, s21, s22")
    A("s_and_b32 s23, s3, 1")
    A("s_lshl_b32 s24, s21, 13")
    A("s_lshl_b32 s25, s23, 12")
    A("s_add_u32 s24, s24, s25")
    srd(A, 36, 4, WS_Z, SZ_COL)
    pend = []
    def fill(k=1):
        for _ in range(k):
            if pend: pend.pop(0)()
    C32, S32, N32 = 40, 48, 56
    C64, S64 = 64, 80
    TWc, TWs = 96, 112
    AR, AI = 128, 144
    Pr, Pi, Pn = 160, 168, 176
    Or, Oi, On = 184, 192, 200
    T2c, T2s = 208, 224
    t0, t1, t2, t3, t4, t5 = 240, 241, 242, 243, 244, 245
    hf, pf, af = 246, 247, 5
    T = 176; TH, K0 = T+22, T+23
    A(f"v_cvt_f32_u32 v{hf}, v3")
    A(f"v_cvt_f32_u32 v{pf}, v2")
    A(f"v_cvt_f32_u32 v{af}, s23")
    A(f"v_mov_b32 v{T}, 1.0")
    A(f"v_mov_b32 v{T+4}, 0")
    def f32out(c, s_): return lambda r, p: (c+r, s_+r)
    def bfout(c, s_, n=None):
        def out(r, p):
            dc = T + 14 + 4*((r >> 1) & 1)
            if p is None: return (dc, dc+2)
            A(f"v_cvt_pk_bf16_f32 v{c + r//2}, v{dc}, v{dc+1}")
            A(f"v_cvt_pk_bf16_f32 v{s_ + r//2}, v{dc+2}, v{dc+3}")
            if n is not None: A(f"v_xor_b32 v{n + r//2}, 0x80008000, v{s_ + r//2}")
        return out
    A("v_lshrrev_b32 v4, 2, v1")
    A("s_lshl_b32 s26, s3, 6")
    A("v_add_u32 v4, s26, v4")
    A("v_and_b32 v6, 3, v1")
    A(f"v_mul_u32_u24 v8, {BLK}, v4")
    A("v_lshl_add_u32 v8, v6, 4, v8")
    A("s_lshl_b32 s26, s20, 6")
    A("v_add_u32 v8, s26, v8")
    A("v_bfe_u32 v7, v4, 1, 2")
    A("v_xor_b32 v7, v7, v6")
    A("v_lshlrev_b32 v9, 6, v4")
    A("v_lshl_add_u32 v9, v7, 4, v9")
    A(f"v_add_u32 v9, {B_YST}, v9")
    A("s_lshl_b32 s26, s23, 5")
    A("v_lshl_add_u32 v11, v3, 6, v2")
    A("v_add_u32 v11, s26, v11")
    A("v_lshlrev_b32 v11, 6, v11")
    A(f"v_add_u32 v11, {B_YST}, v11")
    A("v_bfe_u32 v7, v2, 1, 2")
    A("s_and_b32 s26, s3, 2")
    A("v_xor_b32 v7, s26, v7")
    A("v_xor_b32 v12, 1, v7")
    A("v_lshl_add_u32 v12, v12, 4, v11")
    A("v_lshl_add_u32 v11, v7, 4, v11")
    srd(A, 16, 4, WS_Y1, SZ_Y1N)
    srd(A, 32, 4, WS_WT, SZ_COL)
    YS = [24, 184]; YF = [253, 254]
    def y_loads(k):
        for i in range(4):
            if i: A(f"s_mov_b32 s26, {16*i*BLK}")
            A(f"buffer_load_dwordx4 v[{YS[k]+4*i}:{YS[k]+4*i+3}], v8, s[16:19], {'s26' if i else '0'} offen {LSC}")
        A(f"s_mov_b32 s26, {FW}")
        A(f"buffer_load_dword v{YF[k]}, v252, s[12:15], s26 offen {LSC}")
    def y_test(k):
        fill_test(A, range(YS[k], YS[k]+16), 255)
        if OPT.get("xp") == "nofw": return
        A(f"v_cmp_ne_u32 s[50:51], s{STAG}, v{YF[k]}")
        A("s_or_b64 vcc, vcc, s[50:51]")
    A(f"v_mul_f32 v{TH}, {flit(1/32)}, v{pf}")
    A(f"v_mul_f32 v{K0}, v{TH}, v{hf}")
    A(f"v_mul_f32 v{K0}, 4.0, v{K0}")
    cis_table(C, T, bfout(C32, S32, N32), fill=fill)
    A(f"v_mul_f32 v6, {flit(8.0)}, v{af}")
    A(f"v_add_f32 v6, v6, v{hf}")
    A(f"v_mul_f32 v6, 4.0, v6")
    A(f"v_mul_f32 v{TH}, {flit(1/2048)}, v{pf}")
    A(f"v_mul_f32 v{K0}, v6, v{TH}")
    cis_table(C, T, f32out(TWc, TWs), fill=fill)
    vm.wait(["wts"])
    A("s_barrier")
    flag_store(C, FW, 13, 14)
    A(f"v_mul_f32 v7, {flit(32.0)}, v{af}")
    A(f"v_add_f32 v{t5}, v7, v{pf}")
    A(f"v_mul_f32 v{TH}, {flit(1/64)}, v{t5}")
    A(f"v_mul_f32 v{K0}, v6, v{TH}")
    cis_table(C, T, bfout(C64, S64), fill=fill)
    A("v_and_b32 v7, 1, v2")
    A("v_mul_u32_u24 v7, 0x8000, v7")
    A("v_lshl_or_b32 v7, v7, 16, v7")
    for q in range(8):
        A(f"v_xor_b32 v{C64+8+q}, v7, v{C64+q}")
        A(f"v_xor_b32 v{S64+8+q}, v7, v{S64+q}")
    P2 = OPT.get("p2", "0") == "1"
    if P2: y_loads(0)
    A("s_cmp_eq_u32 s21, 0")
    A("s_cselect_b32 s26, 1, 0")
    A("s_cmp_eq_u32 s21, 320")
    A("s_cselect_b32 s26, 1, s26")
    A("s_cmp_eq_u32 s26, 1")
    csel(A, "s26", hex(f32bits(1.0/(2048*640))), hex(f32bits(2.0/(2048*640))))
    A(f"v_mul_f32 v{TH}, {flit(1/2048)}, v{t5}")
    A(f"v_mul_f32 v{K0}, v{TH}, v{hf}")
    A(f"v_mul_f32 v{K0}, 4.0, v{K0}")
    cis_table(C, T, f32out(T2c, T2s), scale="s[26:27]", fill=fill)
    fill(len(pend))
    stamp(A, 11)
    def y_use(k):
        for i in range(4):
            A(f"ds_write_b128 v9, v[{YS[k]+4*i}:{YS[k]+4*i+3}] offset:{1024*i}")
    if P2:
        y_loads(1)
        poll2(C, [lambda: y_loads(0), lambda: y_loads(1)], [lambda: y_test(0), lambda: y_test(1)], 5, y_use)
    else:
        retry_loop(C, lambda: y_loads(1), lambda: y_test(1))
        cnt(A, 1)
        y_use(1)
    if P2: A("s_waitcnt lgkmcnt(0)")
    A("v_lshlrev_b32 v4, 4, v1")
    A("v_add_u32 v4, s24, v4")
    for j in range(4):
        A(f"buffer_load_dwordx4 v[{24+4*j}:{27+4*j}], v4, s[32:35], 0 offen offset:{j*1024} {LSC}"); vm.issue("wt")
    pend.extend(x_ops(C))
    pend.extend(m_ops(C))
    A("s_waitcnt lgkmcnt(0)")
    A("s_barrier")
    stamp(A, 12)
    A("v_mov_b32 v6, v11")
    A("v_mov_b32 v7, v12")
    for t in range(2):
        for ri in range(2):
            d = 8 + 8*ri + 4*t
            A(f"ds_read_b128 v[{d}:{d+3}], v{6+ri} offset:{t*8192}")
    Xr, Xi = 8, 16
    def mf(d, a, b, first, k=0):
        mf32(A, d, a, b, first); fill(k)
    fill(3)
    for t in range(2):
        A(f"s_waitcnt lgkmcnt({2-2*t})")
        mf(AR, Xr+4*t, C32+4*t, t == 0, 1)
        mf(AI, Xi+4*t, C32+4*t, t == 0, 1)
        mf(AR, Xi+4*t, S32+4*t, False, 1)
        mf(AI, Xr+4*t, N32+4*t, False)
    TA, TB = t0, t2
    def cmul_pack(cr, ci, conj_tw, k=0):
        n1 = "" if not conj_tw else " neg_lo:[1,0,0] neg_hi:[1,0,0]"
        n2 = " neg_lo:[1,0,0] neg_hi:[1,0,0]" if not conj_tw else ""
        for r in range(0, 16, 2):
            A(f"v_pk_mul_f32 {pr(TA)}, {pr(AR+r)}, {pr(cr+r)}")
            A(f"v_pk_mul_f32 {pr(TB)}, {pr(AI+r)}, {pr(cr+r)}")
            A(f"v_pk_fma_f32 {pr(TA)}, {pr(AI+r)}, {pr(ci+r)}, {pr(TA)}{n1}")
            A(f"v_pk_fma_f32 {pr(TB)}, {pr(AR+r)}, {pr(ci+r)}, {pr(TB)}{n2}")
            A(f"v_cvt_pk_bf16_f32 v{Pr+r//2}, v{TA}, v{TA+1}")
            A(f"v_cvt_pk_bf16_f32 v{Pi+r//2}, v{TB}, v{TB+1}")
            fill(k)
    A("s_lshl_b32 s26, s3, 12")
    A(f"s_add_u32 s26, s26, {B_YST}")
    A("s_xor_b32 s27, s26, 0x1000")
    A("v_lshlrev_b32 v6, 4, v1")
    A("v_add_u32 v7, s27, v6")
    A("v_add_u32 v6, s26, v6")
    cmul_pack(TWc, TWs, False, 1)
    def exch(off):
        for g in range(2):
            A(f"ds_write_b128 v6, v[{Pr+4*g}:{Pr+4*g+3}] offset:{off+1024*g}")
            A(f"ds_write_b128 v6, v[{Pi+4*g}:{Pi+4*g+3}] offset:{off+2048+1024*g}")
        A("s_waitcnt lgkmcnt(0)")
        A("s_barrier")
        for g in range(2):
            A(f"ds_read_b128 v[{Or+4*g}:{Or+4*g+3}], v7 offset:{off+1024*g}")
            A(f"ds_read_b128 v[{Oi+4*g}:{Oi+4*g+3}], v7 offset:{off+2048+1024*g}")
    stamp(A, 13)
    vm.wait(["stale"])
    exch(B_EX1 - B_YST)
    for q in range(8): A(f"v_xor_b32 v{Pn+q}, 0x80008000, v{Pr+q}")
    for u in range(2):
        mf(AR, C64+4*u, Pr+4*u, u == 0, 1)
        mf(AI, C64+4*u, Pi+4*u, u == 0)
        mf(AR, S64+4*u, Pi+4*u, False, 1)
        mf(AI, S64+4*u, Pn+4*u, False)
    A("s_waitcnt lgkmcnt(0)")
    for q in range(8): A(f"v_xor_b32 v{On+q}, 0x80008000, v{Or+q}")
    for u in range(2):
        mf(AR, C64+8+4*u, Or+4*u, False)
        mf(AI, C64+8+4*u, Oi+4*u, False)
        mf(AR, S64+8+4*u, Oi+4*u, False)
        mf(AI, S64+8+4*u, On+4*u, False)
    fill(len(pend))
    stamp(A, 14)
    vm.wait(["wt"])
    W0, W1 = 8, 10
    for r in range(0, 16, 2):
        w = 24 + r
        A(f"v_lshlrev_b32 v{W0}, 16, v{w}")
        A(f"v_lshlrev_b32 v{W0+1}, 16, v{w+1}")
        A(f"v_and_b32 v{W1}, 0xffff0000, v{w}")
        A(f"v_and_b32 v{W1+1}, 0xffff0000, v{w+1}")
        A(f"v_pk_mul_f32 {pr(TA)}, {pr(AR+r)}, {pr(W0)}")
        A(f"v_pk_mul_f32 {pr(TB)}, {pr(AI+r)}, {pr(W0)}")
        A(f"v_pk_fma_f32 {pr(TA)}, {pr(AI+r)}, {pr(W1)}, {pr(TA)} neg_lo:[1,0,0] neg_hi:[1,0,0]")
        A(f"v_pk_fma_f32 {pr(TB)}, {pr(AR+r)}, {pr(W1)}, {pr(TB)}")
        A(f"v_cvt_pk_bf16_f32 v{Pr+r//2}, v{TA}, v{TA+1}")
        A(f"v_cvt_pk_bf16_f32 v{Pi+r//2}, v{TB}, v{TB+1}")
    exch(0)
    def ringfill(k): pass
    for q in range(8): A(f"v_xor_b32 v{Pn+q}, 0x80008000, v{Pi+q}")
    def mr(d, a, b, first, k=1):
        mf32(A, d, a, b, first); ringfill(k)
    for u in range(2):
        mr(AR, Pr+4*u, C64+4*u, u == 0)
        mr(AI, Pi+4*u, C64+4*u, u == 0, 0)
        mr(AR, Pn+4*u, S64+4*u, False)
        mr(AI, Pr+4*u, S64+4*u, False, 0)
    A("s_waitcnt lgkmcnt(0)")
    for q in range(8): A(f"v_xor_b32 v{On+q}, 0x80008000, v{Oi+q}")
    for u in range(2):
        mr(AR, Or+4*u, C64+8+4*u, False)
        mr(AI, Oi+4*u, C64+8+4*u, False, 0)
        mr(AR, On+4*u, S64+8+4*u, False)
        mr(AI, Or+4*u, S64+8+4*u, False, 0)
    stamp(A, 15)
    _fill = fill
    def cm2():
        n1 = " neg_lo:[1,0,0] neg_hi:[1,0,0]"
        for r in range(0, 16, 2):
            A(f"v_pk_mul_f32 {pr(TA)}, {pr(AR+r)}, {pr(T2c+r)}")
            A(f"v_pk_mul_f32 {pr(TB)}, {pr(AI+r)}, {pr(T2c+r)}")
            A(f"v_pk_fma_f32 {pr(TA)}, {pr(AI+r)}, {pr(T2s+r)}, {pr(TA)}{n1}")
            A(f"v_pk_fma_f32 {pr(TB)}, {pr(AR+r)}, {pr(T2s+r)}, {pr(TB)}")
            A(f"v_cvt_pk_bf16_f32 v{Pr+r//2}, v{TA}, v{TA+1}")
            A(f"v_cvt_pk_bf16_f32 v{Pi+r//2}, v{TB}, v{TB+1}")
            if r % 4 == 0: ringfill(1)
    cm2()
    for t in range(2):
        mr(AR, C32+4*t, Pr+4*t, t == 0)
        mr(AI, C32+4*t, Pi+4*t, t == 0)
        mr(AR, N32+4*t, Pi+4*t, False)
        mr(AI, S32+4*t, Pr+4*t, False, 0)
    A("v_lshlrev_b32 v4, 5, v2")
    A("v_lshl_add_u32 v4, v3, 4, v4")
    A("v_add_u32 v4, s24, v4")
    vm.wait(["X"])
    for j in range(4):
        for i in range(4):
            r = 4*j+i
            A(f"v_cvt_pk_bf16_f32 v{8+r}, v{AR+r}, v{AI+r}")
        A(f"buffer_store_dwordx4 v[{8+4*j}:{11+4*j}], v4, s[36:39], 0 offen offset:{j*1024} {SC}"); vm.issue("z")
    stamp(A, 16)
    A("s_barrier")
    A(f"s_branch {Ldone}")
    A(f"{Lskip}:")
    vm.q = q_skip
    for f in x_ops(C): f()
    vm.wait(["wts"])
    A("s_barrier")
    flag_store(C, FW, 8, 9)
    repack(C)
    if OPT.get("h2f", "a2") == "r":
        NF = 256 - NB_WG
        A(f"s_sub_u32 s26, s2, {NB_WG}")
        A("s_lshl_b32 s26, s26, 12")
        A("v_lshl_add_u32 v4, v0, 4, s26")
        srd(A, 32, 4, WS_H2P, SZ_H2P)
        for i in range(-(-SZ_H2P // (NF*4096))):
            if i: A(f"s_mov_b32 s26, {i*NF*4096}")
            A(f"buffer_store_dwordx4 a[12:15], v4, s[32:35], {'s26' if i else '0'} offen {SC}"); vm.issue("h2f")
    fw_ld(C); vm.issue("fw")
    vm.wait(["fw"])
    flag_check(C, "fw", 253, lambda: fw_ld(C))
    A("s_barrier")
    flag_store(C, FP, 8, 9)
    for f in m_ops(C): f()
    A(f"{Ldone}:")
    vm.q = []

def w13_ring(C):
    ops = []
    for s_ in range(NS0): ops += w13_ops(C, s_)
    return ops

def fh_offset(C, v, which):
    A = C.A
    A(f"v_min_u32 v{v}, {255 - NB_WG}, v0")
    A(f"v_add_u32 v{v}, {NB_WG + (which >> FSH)}, v{v}")
    A(f"v_lshlrev_b32 v{v}, {FSH}, v{v}")

def d_geometry(C):
    A = C.A
    A("s_and_b32 s40, s48, 1")
    A("s_lshl_b32 s40, s40, 3")
    A("s_and_b32 s41, s49, 7")
    A("s_add_u32 s40, s40, s41")
    A("s_lshr_b32 s41, s48, 1")
    A("s_lshl_b32 s41, s41, 2")
    A("s_lshr_b32 s42, s49, 3")
    A("s_add_u32 s41, s41, s42")
    A("s_mul_i32 s41, s41, 7")
    A("s_lshr_b32 s42, s3, 1")
    A("s_mul_i32 s42, s42, 221184")
    A("s_lshl_b32 s43, s41, 11")
    A("s_add_u32 s42, s42, s43")
    A("s_and_b32 s43, s3, 1")
    A("s_mul_i32 s43, s43, 7168")
    A("s_add_u32 s42, s42, s43")
    if DT:
        A("s_and_b32 s43, s41, 1")
        A("s_lshl_b32 s43, s43, 11")
        A("s_add_u32 s42, s42, s43")
    A("v_lshlrev_b32 v248, 4, v1")
    A("v_add_u32 v248, s42, v248")
    if DT:
        A("s_and_b32 s43, s41, s3")
        A("s_and_b32 s43, s43, 1")
        A("s_mul_i32 s43, s43, 14336")
        A("v_subrev_u32 v255, s43, v248")
    A("s_mul_i32 s42, s3, 7168")

def w13_ops(C, s, SRD=36):
    A = C.A; ops = []
    for i0, n in ((0, 4), (4, 3)):
        def setup(i0=i0):
            A(f"s_add_u32 m0, s42, {ring_buf(s)*SLOT + i0*1024}")
        def setup2(i0=i0):
            A(f"s_mov_b32 s43, {2*s*221184 + i0*1024}")
        ops += [setup, setup2]
        for i in range(n):
            def dma(i=i, i0=i0):
                va = 255 if DT and i0 + i >= 5 else 248
                A(f"buffer_load_dwordx4 v{va}, s[{SRD}:{SRD+3}], s43 offen offset:{i*1024} lds")
                C.vm.issue(("W", s))
            ops.append(dma)
    return ops

def phase_c(C):
    A = C.A; vm = C.vm
    A("s_lshl_b32 s20, s48, 3")
    A("s_and_b32 s21, s49, 7")
    A("s_add_u32 s20, s20, s21")
    A("s_lshr_b32 s21, s49, 3")
    GA, G2, SB = 32, 44, 56
    srd(A, 36, 4, WS_W13, SZ_W13)
    d_geometry(C)
    stamp(A, 17)
    A("s_lshr_b32 s22, s20, 5")
    A("s_lshl_b32 s22, s22, 12")
    A("s_lshl_b32 s23, s21, 10")
    A("s_add_u32 s22, s22, s23")
    A("s_and_b32 s23, s20, 31")
    A("s_lshl_b32 s23, s23, 5")
    A("s_add_u32 s22, s22, s23")
    A("v_and_b32 v4, 1, v1")
    A("v_bfe_u32 v5, v1, 1, 2")
    A("v_lshrrev_b32 v6, 3, v1")
    A("s_lshl_b32 s23, s3, 3")
    A("v_add_u32 v6, s23, v6")
    A("v_lshl_add_u32 v251, v5, 5, v6")
    A("v_lshlrev_b32 v251, 13, v251")
    A("v_lshl_add_u32 v251, v4, 4, v251")
    A("v_add_u32 v251, s22, v251")
    A(f"v_mul_u32_u24 v252, {4*ZP}, v4")
    A("v_mul_u32_u24 v253, 48, v6")
    A("v_add_u32 v252, v252, v253")
    A("v_lshl_add_u32 v252, v5, 2, v252")
    A(f"v_add_u32 v252, {Z_OFF}, v252")
    srd(A, 16, 4, WS_Z, SZ_COL)
    A("s_mov_b32 s24, 0x100000")
    A("s_mov_b32 s25, 0x200000")
    BR, BI, TC, TS, C32, N32 = 92, 100, 108, 124, 140, 148
    t0, t1, t2, t3, t4 = 244, 245, 246, 247, 243
    pf, hf = 249, 250
    A(f"v_cvt_f32_u32 v{pf}, v2")
    A(f"v_cvt_f32_u32 v{hf}, v3")
    A(f"v_mul_f32 v4, {flit(1/20)}, v{pf}")
    A(f"v_mul_f32 v5, v4, v{hf}")
    A(f"v_mul_f32 v5, 4.0, v5")
    A(f"v_mov_b32 v6, 0")
    for st in range(2):
        for q in range(4):
            A(f"v_fmamk_f32 v{t0}, v4, {fk(8*st+q)}, v{5 if st == 0 else 6}")
            A(f"v_cos_f32 v{t1}, v{t0}")
            A(f"v_sin_f32 v{t2}, v{t0}")
            A(f"v_sub_f32 v{t3}, 0, v{t2}")
            A(f"v_cvt_pk_bf16_f32 v{BR+4*st+q}, v{t1}, v{t3}")
            A(f"v_cvt_pk_bf16_f32 v{BI+4*st+q}, v{t2}, v{t1}")
    A("v_cmp_eq_u32 vcc, 0, v3")
    for q in range(4):
        A(f"v_cndmask_b32 v{BR+4+q}, 0, v{BR+4+q}, vcc")
        A(f"v_cndmask_b32 v{BI+4+q}, 0, v{BI+4+q}, vcc")
    A(f"v_mul_f32 v4, {flit(1/640)}, v{pf}")
    A(f"v_mul_f32 v5, v4, v{hf}")
    A(f"v_mul_f32 v5, 4.0, v5")
    for r in range(16):
        A(f"v_fmamk_f32 v{t0}, v4, {fk(8*(r//4)+r%4)}, v5")
        A(f"v_cos_f32 v{TC+r}, v{t0}")
        A(f"v_sin_f32 v{TS+r}, v{t0}")
    A(f"v_mul_f32 v4, {flit(1/32)}, v{pf}")
    A(f"v_mul_f32 v5, v4, v{hf}")
    A(f"v_mul_f32 v5, 4.0, v5")
    for t in range(2):
        for p in range(4):
            for z in range(2):
                e = 2*p+z
                A(f"v_fmamk_f32 v{t0}, v4, {fk(16*t+8*(e>>2)+(e&3))}, v5")
                A(f"v_cos_f32 v{t1+z}, v{t0}")
                A(f"v_sin_f32 v{(t3, t4)[z]}, -v{t0}")
            A(f"v_cvt_pk_bf16_f32 v{C32+4*t+p}, v{t1}, v{t2}")
            A(f"v_cvt_pk_bf16_f32 v{N32+4*t+p}, v{t3}, v{t4}")
    XF = 68
    for q in range(12): A(f"v_accvgpr_read_b32 v{20+q}, a{q}")
    for r in range(2):
        for q in range(6):
            A(f"v_lshlrev_b32 v{XF+12*r+2*q}, 16, v{20+6*r+q}")
            A(f"v_and_b32 v{XF+12*r+2*q+1}, 0xffff0000, v{20+6*r+q}")
    A("v_cmp_eq_u32 vcc, 0, v3")
    for r in range(2):
        for k in range(8, 12): A(f"v_cndmask_b32 v{XF+12*r+k}, 0, v{XF+12*r+k}, vcc")
    A("v_mul_u32_u24 v7, 80, v2")
    A("v_lshl_add_u32 v7, v3, 4, v7")
    A(f"v_add_u32 v7, {M_OFF}, v7")
    stamp(A, 18)
    fh_offset(C, 253, FP)
    def z_loads():
        for m in range(3):
            A(f"buffer_load_dwordx4 v[{8+4*m}:{11+4*m}], v251, s[16:19], {['0','s24','s25'][m]} offen {LSC}")
        A(f"buffer_load_dword v254, v253, s[12:15], 0 offen {LSC}")
    def z_test():
        fill_test(A, range(8, 20), 4)
        A(f"v_cmp_ne_u32 s[50:51], s{STAG}, v254")
        A("s_or_b64 vcc, vcc, s[50:51]")
    retry_loop(C, z_loads, z_test)
    cnt(A, 2)
    for m in range(3):
        for i in range(4):
            A(f"ds_write_b32 v252, v{8+4*m+i} offset:{i*ZP + 16*m}")
    A(f"s_mul_i32 s26, s3, {2*ZP}")
    A(f"s_add_u32 s26, s26, {Z_OFF}")
    A("v_mul_u32_u24 v4, 48, v2")
    A("v_add_u32 v4, s26, v4")
    A("v_lshl_add_u32 v5, v3, 4, v4")
    A("s_waitcnt lgkmcnt(0)")
    A("s_barrier")
    stamp(A, 19)
    FA_ = [[156, 160], [164, 168]]
    for row in range(2):
        A(f"ds_read_b128 v[{FA_[row][0]}:{FA_[row][0]+3}], v5 offset:{row*ZP}")
        A(f"ds_read_b128 v[{FA_[row][1]}:{FA_[row][1]+3}], v4 offset:{row*ZP+32}")
    for base, sec in ((GA, 0), (G2, 2), (SB, 1)):
        for q in range(3):
            A(f"ds_read_b128 v[{base+4*q}:{base+4*q+3}], v7 offset:{sec*2560 + 32*q}")
    ring = w13_ring(C)
    def rf(k=1):
        n = 0
        while ring and n < k:
            q0 = len(vm.q); ring.pop(0)()
            if len(vm.q) > q0: n += 1
    U = [[172, 188], [204, 220]]
    rf(2)
    for st in range(2):
        for row in range(2):
            if st == 0: A(f"s_waitcnt lgkmcnt({9 + (2 if row == 0 else 0)})")
            mf32(A, U[row][0], FA_[row][st], BR+4*st, st == 0)
            rf()
            mf32(A, U[row][1], FA_[row][st], BI+4*st, st == 0)
    A("v_cmp_eq_u32 vcc, 0, v3")
    P = [[156, 164], [8, 236]]
    TA, TB = 20, 22
    for row in range(2):
        ur, ui = U[row]; pr_, pi_ = P[row]
        for r in range(0, 16, 2):
            A(f"v_pk_mul_f32 {pr(TA)}, {pr(ur+r)}, {pr(TC+r)}")
            A(f"v_pk_mul_f32 {pr(TB)}, {pr(ui+r)}, {pr(TC+r)}")
            A(f"v_pk_fma_f32 {pr(TA)}, {pr(ui+r)}, {pr(TS+r)}, {pr(TA)} neg_lo:[1,0,0] neg_hi:[1,0,0]")
            A(f"v_pk_fma_f32 {pr(TB)}, {pr(ur+r)}, {pr(TS+r)}, {pr(TB)}")
            A(f"v_cvt_pk_bf16_f32 v{pr_+r//2}, v{TA}, v{TA+1}")
            A(f"v_cvt_pk_bf16_f32 v{pi_+r//2}, v{TB}, v{TB+1}")
            if r % 4 == 0: rf()
    Y = [172, 204]
    for t in range(2):
        for row in range(2):
            mf32(A, Y[row], P[row][0]+4*t, C32+4*t, t == 0)
            rf()
        for row in range(2):
            mf32(A, Y[row], P[row][1]+4*t, N32+4*t, False)
    A("s_waitcnt lgkmcnt(0)")
    for k in range(8, 12): A(f"v_cndmask_b32 v{GA+k}, 0, v{GA+k}, vcc")
    for row in range(2):
        for k in range(0, 12, 2):
            A(f"v_pk_fma_f32 {pr(XF+12*row+k)}, {pr(GA+k)}, {pr(Y[row]+k)}, {pr(XF+12*row+k)}")
    X2P = 20
    for row in range(2):
        for k in range(6):
            A(f"v_cvt_pk_bf16_f32 v{X2P+6*row+k}, v{XF+12*row+2*k}, v{XF+12*row+2*k+1}")
    A(f"s_mul_i32 s26, s3, {2*STP}")
    A(f"s_add_u32 s26, s26, {ST_OFF}")
    A("v_mul_u32_u24 v4, 40, v2")
    A("v_lshl_add_u32 v4, v3, 3, v4")
    A("v_add_u32 v4, s26, v4")
    A("v_lshlrev_b32 v7, 3, v1")
    A(f"v_add_u32 v7, {SCRAP}, v7")
    A("v_add_u32 v6, 32, v4")
    A("v_cndmask_b32 v5, v7, v6, vcc")
    for row in range(2):
        for q in range(2):
            A(f"ds_write_b64 v4, {pr(X2P+6*row+2*q)} offset:{row*STP + 16*q}")
    A(f"v_add_u32 v6, {STP}, v6")
    A("v_cndmask_b32 v6, v7, v6, vcc")
    A(f"ds_write_b64 v5, {pr(X2P+4)}")
    A(f"ds_write_b64 v6, {pr(X2P+10)}")
    for r in range(2):
        for q in range(6):
            A(f"v_lshlrev_b32 v{XF+12*r+2*q}, 16, v{X2P+6*r+q}") if OPT.get("rx2") else None
            A(f"v_and_b32 v{XF+12*r+2*q+1}, 0xffff0000, v{X2P+6*r+q}") if OPT.get("rx2") else None
    S0, S1, T0, T1 = 32, 34, 36, 38
    def red64(a, b):
        ta, tb = T0, T1
        for ctl in ["quad_perm:[1,0,3,2]", "quad_perm:[2,3,0,1]", "row_ror:4", "row_ror:8"]:
            A(f"v_add_f32_dpp v{a}, v{a}, v{a} {ctl} row_mask:0xf bank_mask:0xf")
            A(f"v_add_f32_dpp v{b}, v{b}, v{b} {ctl} row_mask:0xf bank_mask:0xf")
        for sw in ("v_permlane16_swap_b32", "v_permlane32_swap_b32"):
            A(f"v_mov_b32 v{ta}, v{a}")
            A(f"v_mov_b32 v{tb}, v{b}")
            A(f"{sw} v{a}, v{ta}")
            A(f"{sw} v{b}, v{tb}")
            A(f"v_add_f32 v{a}, v{a}, v{ta}")
            A(f"v_add_f32 v{b}, v{b}, v{tb}")
    S = [S0, S1]
    for k in range(0, 12, 2):
        for row in range(2):
            x = XF+12*row+k
            if k == 0: continue
            if k == 2: A(f"v_pk_add_f32 {pr(S[row])}, {pr(x-2)}, {pr(x)}")
            else: A(f"v_pk_add_f32 {pr(S[row])}, {pr(S[row])}, {pr(x)}")
    for row in range(2): A(f"v_add_f32 v{S[row]}, v{S[row]}, v{S[row]+1}")
    rf(2)
    red64(S0, S1)
    rf(2)
    for row in range(2):
        A(f"v_mul_f32 v{S[row]}, {flit(1/640)}, v{S[row]}")
        A(f"v_cndmask_b32 v{S[row]+1}, 0, v{S[row]}, vcc")
    for k in range(0, 12, 2):
        for row in range(2):
            x = XF+12*row+k
            sel = "op_sel_hi:[1,0]" if k < 8 else "op_sel:[0,1] op_sel_hi:[1,1]"
            A(f"v_pk_add_f32 {pr(x)}, {pr(x)}, {pr(S[row])} {sel} neg_lo:[0,1] neg_hi:[0,1]")
    V = [40, 42]
    for k in range(0, 12, 2):
        for row in range(2):
            x = XF+12*row+k
            if k == 0: A(f"v_pk_mul_f32 {pr(V[row])}, {pr(x)}, {pr(x)}")
            else: A(f"v_pk_fma_f32 {pr(V[row])}, {pr(x)}, {pr(x)}, {pr(V[row])}")
    for row in range(2): A(f"v_add_f32 v{V[row]}, v{V[row]}, v{V[row]+1}")
    rf(2)
    red64(V[0], V[1])
    rf(99)
    for row in range(2):
        A(f"v_mov_b32 v{S[row]}, {flit(1e-5)}")
        A(f"v_fmac_f32 v{S[row]}, {flit(1/640)}, v{V[row]}")
    for row in range(2): A(f"v_rsq_f32 v{S[row]}, v{S[row]}")
    for k in range(0, 12, 2):
        for row in range(2):
            x = XF+12*row+k
            A(f"v_pk_mul_f32 {pr(x)}, {pr(x)}, {pr(S[row])} op_sel_hi:[1,0]")
        for row in range(2):
            x = XF+12*row+k
            A(f"v_pk_fma_f32 {pr(x)}, {pr(x)}, {pr(G2+k)}, {pr(SB+k)}")
    H2P_ = 8
    for row in range(2):
        for k in range(6):
            A(f"v_cvt_pk_bf16_f32 v{H2P_+6*row+k}, v{XF+12*row+2*k}, v{XF+12*row+2*k+1}")
    HO = ST_H - ST_OFF
    for row in range(2):
        for q in range(2):
            A(f"ds_write_b64 v4, {pr(H2P_+6*row+2*q)} offset:{HO + row*STP + 16*q}")
    A(f"v_subrev_u32 v7, {HO}, v7")
    A(f"v_add_u32 v36, 32, v4")
    A(f"v_cndmask_b32 v37, v7, v36, vcc")
    A(f"v_add_u32 v36, {STP}, v36")
    A(f"v_cndmask_b32 v36, v7, v36, vcc")
    A(f"ds_write_b64 v37, {pr(H2P_+4)} offset:{HO}")
    A(f"ds_write_b64 v36, {pr(H2P_+10)} offset:{HO}")
    A("v_and_b32 v4, 7, v0")
    A("v_lshrrev_b32 v5, 3, v0")
    A(f"v_mul_u32_u24 v6, {STP}, v4")
    A("v_lshl_add_u32 v6, v5, 4, v6")
    A(f"v_add_u32 v6, {ST_H}, v6")
    A("s_lshl_b32 s26, s48, 4")
    A("s_lshr_b32 s27, s49, 1")
    A("s_add_u32 s26, s26, s27")
    A("s_mul_i32 s26, s26, 20480")
    A("s_and_b32 s27, s49, 1")
    A("s_lshl_b32 s27, s27, 7")
    A("s_add_u32 s26, s26, s27")
    A("v_lshlrev_b32 v5, 8, v5")
    A("v_lshl_add_u32 v5, v4, 4, v5")
    A("v_add_u32 v5, s26, v5")
    A("v_lshrrev_b32 v4, 5, v0")
    A(f"v_mul_u32_u24 v7, {STP}, v4")
    A("v_lshl_add_u32 v7, v2, 4, v7")
    A(f"v_add_u32 v7, {ST_OFF}, v7")
    A("s_lshl_b32 s26, s21, 9")
    A("s_add_u32 s26, s26, s20")
    A("s_mul_i32 s26, s26, 1280")
    A("v_mul_u32_u24 v4, 81920, v4")
    A("v_lshl_add_u32 v4, v2, 4, v4")
    A("v_add_u32 v252, s26, v4")
    A(f"v_add_u32 v253, {hex(OOB)}, v252")
    A("v_cmp_gt_u32 vcc, 16, v2")
    A("v_cndmask_b32 v253, v253, v252, vcc")
    A(f"v_add_u32 v37, {hex(OOB)}, v5")
    A("s_cmp_lt_u32 s3, 2")
    A("s_cselect_b64 vcc, -1, 0")
    A("v_cndmask_b32 v37, v37, v5, vcc")
    srd(A, 16, 4, WS_H2P, SZ_H2P)
    srd(A, 28, 4, WS_X2, SZ_X)
    A("s_waitcnt lgkmcnt(0)")
    A("s_barrier")
    for i in range(3):
        A(f"ds_read_b128 v[{8+4*i}:{11+4*i}], v6 offset:{512*i}")
    for i in range(3):
        dst = f"a[{X2A+4*i}:{X2A+4*i+3}]" if xlate() else f"v[{216+4*i}:{219+4*i}]"
        A(f"ds_read_b128 {dst}, v7 offset:{512*i}")
    A("s_movk_i32 s26, 8192")
    A("s_movk_i32 s27, 16384")
    for i in range(3):
        A(f"s_waitcnt lgkmcnt({5-i})")
        A(f"buffer_store_dwordx4 v[{8+4*i}:{11+4*i}], v{37 if i == 2 else 5}, s[16:19], {['0','s26','s27'][i]} offen {SC}"); vm.issue("st")
    stamp(A, 20)

D_LA = 6
RA = 8
RB = 10
def e_geometry(C):
    A = C.A
    A("s_lshr_b32 s44, s48, 1")
    A("s_lshl_b32 s44, s44, 3")
    A("s_and_b32 s45, s49, 7")
    A("s_add_u32 s44, s44, s45")
    A("s_and_b32 s45, s48, 1")
    A("s_lshl_b32 s45, s45, 2")
    A("s_lshr_b32 s46, s49, 3")
    A("s_add_u32 s45, s45, s46")
    A("s_mul_i32 s46, s3, 14")
    A("s_mul_i32 s47, s46, 40960")
    A("s_mul_i32 s51, s45, 5120")
    A("s_add_u32 s47, s47, s51")
    A("v_lshlrev_b32 v246, 4, v1")
    A("v_add_u32 v246, s47, v246")
    A("v_add_u32 v247, 4096, v246")

NST = 14
def xlate(): return OPT.get("xl", "1") == "1" and OPT.get("dp", "1") == "1"
X2A = 240
def wfrag(st, p):
    k = st*5 + p
    if k < 64: return ("a", 4*k)
    return ("v", 152 + 4*(k-64))
def w2_ops(C, SRD=32):
    A = C.A; ops = []
    for st in range(NST):
        def setup(st=st):
            A(f"s_mov_b32 s51, {st*40960}")
        ops.append(setup)
        for p in range(5):
            def ld(st=st, p=p):
                k, r = wfrag(st, p)
                if p < 4: A(f"buffer_load_dwordx4 {k}[{r}:{r+3}], v246, s[{SRD}:{SRD+3}], s51 offen offset:{1024*p}")
                else: A(f"buffer_load_dwordx4 {k}[{r}:{r+3}], v247, s[{SRD}:{SRD+3}], s51 offen")
                C.vm.issue(("W2", st))
            ld.mem = True
            ops.append(ld)
    return ops

def phase_d(C):
    A = C.A; vm = C.vm
    ACC, AR, BR = 8, 120, 152
    VL, VB = 232, 237
    e_geometry(C)
    srd(A, 32, 4, WS_W2, SZ_W2P)
    w2 = w2_ops(C)
    NPRE = int(OPT.get("w2pre", 36))
    for _ in range(NPRE): w2.pop(0)()
    A("s_lshl_b32 s20, s40, 3")
    A("s_lshl_b32 s21, s3, 1")
    A("s_add_u32 s20, s20, s21")
    A("v_lshlrev_b32 v4, 4, v1")
    A("s_mul_i32 s21, s20, 20480")
    A(f"v_add_u32 v{VB}, s21, v4")
    A(f"v_add_u32 v{VB+1}, 20480, v{VB}")
    for b in range(NS):
        A(f"v_add_u32 v{VL+b}, {b*SLOT}, v4") if b else A(f"v_mov_b32 v{VL}, v4")
    hh_setup(C)
    srd(A, 16, 4, WS_H2P, SZ_H2P)
    srd(A, 24, 4, WS_HH, SZ_HH)
    bstate = {}
    BACC = 239
    def b_regs(t): return range(BR + (t % RB)*8, BR + (t % RB)*8 + 8)
    def b_ops(t):
        ops = []
        if t % 4 == 0:
            ops.append(lambda t=t: A(f"s_movk_i32 s22, {t*1024}"))
        for rt in range(2):
            def f(t=t, rt=rt):
                if t >= RB: assert bstate.get(t-RB), ("B ring WAR", t)
                r = BR + (t % RB)*8 + 4*rt
                A(f"buffer_load_dwordx4 v[{r}:{r+3}], v{VB+rt}, s[16:19], s22 offen offset:{(t%4)*1024} {LSC}")
                vm.issue(("B", t))
            ops.append(f)
        return ops
    def b_reload(ts):
        def f():
            for t in ts:
                A(f"s_movk_i32 s54, {t*1024}")
                for rt in range(2):
                    r = BR + (t % RB)*8 + 4*rt
                    A(f"buffer_load_dwordx4 v[{r}:{r+3}], v{VB+rt}, s[16:19], s54 offen {LSC}")
        return f
    NB0 = 8
    NPOLL = 3
    def b_loads():
        b_reload(range(NPOLL))()
    def b_test():
        fill_test(A, [r for t in range(NPOLL) for r in b_regs(t)], BACC)
    SPEC = OPT.get("dspec", "1") == "1"
    if SPEC:
        retry_loop(C, b_loads, b_test, spec=b_reload(range(NPOLL, NB0)), tags=[("B", t) for t in range(NPOLL, NB0) for _ in range(2)])
    else:
        retry_loop(C, b_loads, b_test)
    cnt(A, 3)
    A("s_waitcnt lgkmcnt(0)")
    if NS == 4 and OPT.get("dbar", "1") == "1" or NS == 5 or True:
        A("s_barrier")
    stamp(A, 21)
    A("s_movk_i32 s22, 0")
    if not SPEC:
        for t in range(NPOLL, NB0):
            for f in b_ops(t): f()
    else:
        A(f"s_movk_i32 s22, {((NB0 - 1)//4)*4096}")
    XLATE = xlate()
    def x2_store(i):
        src = f"a[{X2A+4*i}:{X2A+4*i+3}]" if XLATE else f"v[{216+4*i}:{219+4*i}]"
        A(f"buffer_store_dwordx4 {src}, v{253 if i == 2 else 252}, s[28:31], 0 offen offset:{512*i} {SC}"); vm.issue("st")
    x2o = []
    for i in range(3):
        f = lambda i=i: x2_store(i)
        x2o.append(f)
    def mk(f):
        def g(): f()
        g.mem = True
        return g
    x2o = [mk(f) for f in x2o]
    if not XLATE:
        for f in x2o: f()
        x2o = []
    NF = 280; NSL = 10
    pending = []
    hhf = hhfill_ops(C)
    def lds_read(n):
        t, i = divmod(n, 14)
        s_ = t >> 1
        r = AR + (n % RA)*4
        A(f"ds_read_b128 v[{r}:{r+3}], v{VL + s_ % NS} offset:{((t & 1)*14 + i)*1024}")
    left = 77 - NPRE
    if OPT.get("dp", "1") == "0":
        W2_SCHED = {}
        for s_, cap in ((5, 5), (6, 5), (7, 5), (8, 13), (9, 13)):
            k = min(cap, left); W2_SCHED[s_] = k; left -= k
        def enter_slot(s_):
            if s_ >= NS: vm.wait([("W", s_)])
            A("s_barrier")
            if s_ >= 2 and s_ + NS - 2 < NSL:
                pending.extend(w13_ops(C, s_ + NS - 2))
            for _ in range(W2_SCHED.get(s_, 0)): pending.append(w2.pop(0))
            if s_ in (2, 3):
                for _ in range(5 if s_ == 2 else 4): pending.append(hhf.pop(0))
            if s_ == 7: flag_store(C, FX, 4, 5)
        def filler(k=1):
            for _ in range(k):
                if pending: pending.pop(0)()
        for t in range(NB0, RB): pending.extend(b_ops(t))
        for n in range(D_LA): lds_read(n)
        A(f"s_waitcnt lgkmcnt({D_LA-1})")
        for n in range(NF):
            t, i = divmod(n, 14)
            if i == 0 and NPOLL <= t + 1 < 20:
                vm.wait([("B", t+1)])
                pending[0:0] = check_ops(C, b_reload([t+1]), b_regs(t+1), BACC)
            a = AR + (n % RA)*4
            def mm(rt):
                c = ACC + (i*2 + rt)*4
                b = BR + (t % RB)*8 + 4*rt
                src = "0" if t == 0 else f"v[{c}:{c+3}]"
                A(f"v_mfma_f32_16x16x32_bf16 v[{c}:{c+3}], v[{a}:{a+3}], v[{b}:{b+3}], {src}")
            mm(0)
            nn = n + D_LA
            if nn < NF:
                if nn % 28 == 0: enter_slot(nn // 28)
                lds_read(nn)
            filler(1)
            mm(1)
            if i == 13:
                bstate[t] = True
                if t + RB < 20: pending.extend(b_ops(t + RB))
            if n + 1 < NF:
                rem = min(NF - 1 - (n+1), D_LA - 1)
                A(f"s_waitcnt lgkmcnt({rem})")
            filler(1)
    else:
        PER = int(OPT.get("dper", 2))
        sched = OPT.get("dsch", "G")
        vq = []
        def take(lst, k):
            out = []
            while lst and k > 0:
                f = lst.pop(0); out.append(f)
                if getattr(f, "mem", False): k -= 1
            return out
        w2a = [w2.pop(0) for _ in range(left)]
        SCH = {"B":  [(0, 4, 3), (0, 4, 0), (0, 0, 0), (0, 0, 0), (0, 0, 0), (3, 0, 0), (5, 0, 0), (5, 0, 0), (12, 0, 0), (12, 0, 0)],
               "C":  [(0, 0, 0), (0, 0, 0), (0, 0, 3), (0, 3, 0), (0, 3, 0), (0, 2, 0), (5, 0, 0), (5, 0, 0), (12, 0, 0), (12, 0, 0)],
               "D":  [(0, 0, 0), (0, 3, 3), (0, 2, 0), (0, 3, 0), (0, 0, 0), (3, 0, 0), (5, 0, 0), (5, 0, 0), (12, 0, 0), (12, 0, 0)],
               "E":  [(0, 0, 0), (0, 0, 0), (0, 0, 0), (0, 2, 1), (0, 2, 1), (0, 2, 1), (4, 2, 0), (6, 0, 0), (12, 0, 0), (12, 0, 0)],
               "F":  [(0, 0, 0), (4, 0, 0), (0, 0, 0), (0, 2, 1), (0, 2, 1), (0, 2, 1), (4, 2, 0), (6, 0, 0), (10, 0, 0), (10, 0, 0)],
               "G":  [(0, 2, 0), (0, 2, 0), (0, 1, 0), (0, 2, 0), (0, 1, 0), (0, 0, 2), (3, 0, 1), (5, 0, 0), (13, 0, 0), (13, 0, 0)],
               "H":  [(0, 1, 0), (0, 2, 0), (0, 1, 0), (0, 2, 0), (0, 1, 0), (0, 1, 1), (2, 0, 2), (6, 0, 0), (13, 0, 0), (13, 0, 0)],
               "I":  [(0, 2, 0), (0, 2, 0), (0, 2, 0), (0, 2, 0), (0, 0, 2), (3, 0, 1), (5, 0, 0), (5, 0, 0), (12, 0, 0), (12, 0, 0)],
               "J":  [(0, 0, 3), (0, 2, 0), (0, 2, 0), (0, 2, 0), (0, 2, 0), (3, 0, 0), (5, 0, 0), (5, 0, 0), (12, 0, 0), (12, 0, 0)],
               }[sched]
        FXS = int(OPT.get("fxs", {"B": 7, "C": 8, "D": 7, "E": 9, "F": 9, "G": 9, "H": 9, "I": 8, "J": 8}[sched]))
        def slot_ops(s_):
            ops = []
            if NS == 5 and s_ == 0: ops += w13_ops(C, 4)
            if s_ >= 2 and s_ + NS - 2 < NSL: ops += w13_ops(C, s_ + NS - 2)
            k2, kf, kx = SCH[s_]
            ops += take(x2o, kx)
            ops += take(hhf, kf)
            ops += take(w2a, k2)
            return ops
        def enter_slot(s_):
            if s_ >= NS0:
                assert vm.all.count(("W", s_)) == 7, ("ring slot not issued", s_)
                vm.wait([("W", s_)])
            if s_ == FXS:
                assert not hhf and not x2o, "fills pending"
                assert vm.all.count("HF") == 8
                vm.wait(["HF", "st"])
            A("s_barrier")
            if OPT.get("est") == "2": A(f"s_memtime s[{56+2*s_}:{57+2*s_}]")
            vq.extend(slot_ops(s_))
            if s_ == FXS:
                flag_store(C, FX, 4, 5)
        def vpop():
            q0 = vm.n_issued
            while vq and vm.n_issued == q0: vq.pop(0)()
        def filler():
            if pending: pending.pop(0)()
        for t in range(NB0, RB): vq.extend(b_ops(t))
        vq.extend(slot_ops(0))
        if OPT.get("est") == "2": A(f"s_memtime s[56:57]")
        for n in range(D_LA): lds_read(n)
        A(f"s_waitcnt lgkmcnt({D_LA-1})")
        for n in range(NF):
            t, i = divmod(n, 14)
            if i == 0 and NPOLL <= t + 1 < 20:
                assert vm.all.count(("B", t+1)) == 2, t
                vm.wait([("B", t+1)])
                pending[0:0] = check_ops(C, b_reload([t+1]), b_regs(t+1), BACC)
            a = AR + (n % RA)*4
            def mm(rt):
                c = ACC + (i*2 + rt)*4
                b = BR + (t % RB)*8 + 4*rt
                src = "0" if t == 0 else f"v[{c}:{c+3}]"
                A(f"v_mfma_f32_16x16x32_bf16 v[{c}:{c+3}], v[{a}:{a+3}], v[{b}:{b+3}], {src}")
            mm(0)
            nn = n + D_LA
            if nn < NF:
                if nn % 28 == 0: enter_slot(nn // 28)
                lds_read(nn)
            filler()
            mm(1)
            if i == 13:
                assert not pending
                bstate[t] = True
                if t + RB < 20: vq[0:0] = b_ops(t + RB)
            if n + 1 < NF:
                rem = min(NF - 1 - (n+1), D_LA - 1)
                A(f"s_waitcnt lgkmcnt({rem})")
            if n % PER == PER - 1 and vq: vpop()
            else: filler()
        pending = pending + vq + w2a
    stamp(A, 22)
    rest = pending + w2
    A("s_mul_i32 s21, s20, 55296")
    A("v_lshlrev_b32 v4, 4, v1")
    A(f"v_add_u32 v{VB}, s21, v4")
    A(f"v_add_u32 v{VB+1}, 55296, v{VB}")
    A("s_lshr_b32 s22, s41, 1")
    A("s_lshl_b32 s22, s22, 10")
    for f in rest: f()
    A("s_lshr_b32 s21, s44, 1")
    A("s_lshr_b32 s50, s21, 3")
    A("s_and_b32 s21, s21, 7")
    A("s_lshl_b32 s21, s21, 3")
    A("s_add_u32 s21, s21, s50")
    A("v_and_b32 v252, 3, v1")
    A("v_lshlrev_b32 v252, 6, v252")
    A("v_bfe_u32 v253, v1, 2, 2")
    A("v_lshl_add_u32 v252, v253, 1, v252")
    A("v_add_u32 v252, s21, v252")
    A("s_and_b32 s21, s44, 3")
    A("s_lshl_b32 s21, s21, 6")
    A("s_lshr_b32 s50, s44, 2")
    A("s_add_u32 s21, s21, s50")
    A("v_and_b32 v253, 7, v1")
    A("v_lshl_add_u32 v253, v253, 3, s21")
    A("v_cmp_gt_u32 vcc, 16, v1")
    A("v_cndmask_b32 v252, v253, v252, vcc")
    A(f"v_add_u32 v252, {FX >> FSH}, v252")
    A(f"v_lshlrev_b32 v252, {FSH}, v252")
    def fx_ld(): A(f"buffer_load_dword v253, v252, s[12:15], 0 offen {LSC}")
    fx_ld(); vm.issue("fx")
    T = 120
    NL = flit(-math.log2(math.e))
    A(f"v_mov_b32 v6, {NL}")
    def swiglu(ft, rt, dst):
        g = ACC + ((2*ft)*2 + rt)*4
        u = ACC + ((2*ft+1)*2 + rt)*4
        t = T + 4*rt
        for r in (0, 2): A(f"v_pk_mul_f32 {pr(t+r)}, {pr(g+r)}, {pr(6)} op_sel_hi:[1,0]")
        for r in range(4): A(f"v_exp_f32 v{t+r}, v{t+r}")
        for r in (0, 2): A(f"v_pk_mul_f32 {pr(g+r)}, {pr(g+r)}, {pr(u+r)}")
        for r in (0, 2): A(f"v_pk_add_f32 {pr(t+r)}, {pr(t+r)}, 1.0 op_sel_hi:[1,0]")
        for r in range(4): A(f"v_rcp_f32 v{t+r}, v{t+r}")
        for r in (0, 2): A(f"v_pk_mul_f32 {pr(g+r)}, {pr(g+r)}, {pr(t+r)}")
        A(f"v_cvt_pk_bf16_f32 v{dst}, v{g}, v{g+1}")
        A(f"v_cvt_pk_bf16_f32 v{dst+1}, v{g+2}, v{g+3}")
    Lodd, Ldone = C.lab("d_odd"), C.lab("d_done")
    A("v_lshlrev_b32 v4, 3, v1")
    A(f"v_sub_u32 v4, v{VB}, v4")
    A("v_add_u32 v5, 55296, v4")
    A("s_cmp_eq_u32 s41, 105")
    A(f"s_cselect_b32 s23, {hex(OOB)}, s22")
    A("s_bitcmp1_b32 s41, 0")
    A(f"s_cbranch_scc1 {Lodd}")
    OUTR = 128
    def variant(odd):
        groups = ([(0,)] + [(1,2),(3,4),(5,6)]) if odd else ([(0,1),(2,3),(4,5)] + [(6,)])
        for gi, grp in enumerate(groups):
            for rt in range(2):
                o = OUTR + 4*((2*gi + rt) % 4)
                if len(grp) == 2:
                    swiglu(grp[0], rt, o); swiglu(grp[1], rt, o+2)
                    so = "s23" if (odd and gi >= 2) else "s22"
                    A(f"buffer_store_dwordx4 v[{o}:{o+3}], v{VB+rt}, s[24:27], {so} offen offset:{1024*gi} {SC}")
                else:
                    swiglu(grp[0], rt, o)
                    A(f"buffer_store_dwordx2 v[{o}:{o+1}], v{4+rt}, s[24:27], s22 offen offset:{1024*gi + (512 if odd else 0)} {SC}")
    variant(False)
    A(f"s_branch {Ldone}")
    A(f"{Lodd}:")
    variant(True)
    A(f"{Ldone}:")
    A("s_waitcnt vmcnt(8)")
    Lfx = C.lab("fx")
    A(f"v_cmp_ne_u32 vcc, s{STAG}, v253")
    A(f"s_cbranch_vccnz {Lfx}")
    A(f"{Lfx}_b:")
    def tail():
        A(f"{Lfx}:")
        retry_loop(C, fx_ld, lambda: A(f"v_cmp_ne_u32 vcc, s{STAG}, v253"))
        A(f"s_branch {Lfx}_b")
    C.tail.append(tail)
    vm.q = []
    stamp(A, 23)

def phase_d2(C):
    A = C.A; vm = C.vm
    ACC, AR, BR = 8, 120, 152
    VL, VB = 232, 237
    e_geometry(C)
    srd(A, 32, 4, WS_W2, SZ_W2P)
    w2 = w2_ops(C)
    NPRE = int(OPT.get("w2pre", 36))
    for _ in range(NPRE): w2.pop(0)()
    A("s_lshl_b32 s20, s40, 3")
    A("s_lshl_b32 s21, s3, 1")
    A("s_add_u32 s20, s20, s21")
    A("v_lshlrev_b32 v4, 4, v1")
    A("s_mul_i32 s21, s20, 20480")
    A(f"v_add_u32 v{VB}, s21, v4")
    A(f"v_add_u32 v{VB+1}, 20480, v{VB}")
    for b in range(5):
        A(f"v_add_u32 v{VL+b}, {b*SLOT}, v4") if b else A(f"v_mov_b32 v{VL}, v4")
    hh_setup(C)
    srd(A, 16, 4, WS_H2P, SZ_H2P)
    srd(A, 24, 4, WS_HH, SZ_HH)
    bstate = {}
    BACC = 239
    def b_regs(t): return range(BR + (t % RB)*8, BR + (t % RB)*8 + 8)
    def b_ops(t):
        ops = []
        if t % 4 == 0:
            ops.append(lambda t=t: A(f"s_movk_i32 s22, {t*1024}"))
        for rt in range(2):
            def f(t=t, rt=rt):
                if t >= RB: assert bstate.get(t-RB), ("B ring WAR", t)
                r = BR + (t % RB)*8 + 4*rt
                A(f"buffer_load_dwordx4 v[{r}:{r+3}], v{VB+rt}, s[16:19], s22 offen offset:{(t%4)*1024} {LSC}")
                vm.issue(("B", t))
            ops.append(f)
        return ops
    def b_reload(ts):
        def f():
            for t in ts:
                A(f"s_movk_i32 s54, {t*1024}")
                for rt in range(2):
                    r = BR + (t % RB)*8 + 4*rt
                    A(f"buffer_load_dwordx4 v[{r}:{r+3}], v{VB+rt}, s[16:19], s54 offen {LSC}")
        return f
    NB0 = 8
    NPOLL = 3
    retry_loop(C, b_reload(range(NPOLL)), lambda: fill_test(A, [r for t in range(NPOLL) for r in b_regs(t)], BACC),
               spec=b_reload(range(NPOLL, NB0)), tags=[("B", t) for t in range(NPOLL, NB0) for _ in range(2)])
    cnt(A, 3)
    A("s_waitcnt lgkmcnt(0)")
    A("s_barrier")
    stamp(A, 21)
    def mk(f):
        f.mem = True
        return f
    x2o = []
    for i in range(3):
        def x2_store(i=i):
            A(f"buffer_store_dwordx4 a[{X2A+4*i}:{X2A+4*i+3}], v{253 if i == 2 else 252}, s[28:31], 0 offen offset:{512*i} {SC}"); vm.issue("st")
        x2o.append(mk(x2_store))
    NF = 280; NT = 224
    def nt(n):
        if n < NT: return divmod(n, 14)
        k, r = divmod(n - NT, 8)
        return 16 + r//2, 2*k + (r & 1)
    pending = []
    hhf = hhfill_ops(C)
    def lds_read(n):
        t, i = nt(n)
        r = AR + (n % RA)*4
        A(f"ds_read_b128 v[{r}:{r+3}], v{VL + ring_buf(t >> 1)} offset:{((t & 1)*14 + i)*1024}")
    PER = int(OPT.get("dper", 2))
    vq = []
    def take(lst, k):
        out = []
        while lst and k > 0:
            f = lst.pop(0); out.append(f)
            if getattr(f, "mem", False): k -= 1
        return out
    SCH = {"A": [(0, 2, 0), (0, 2, 0), (0, 1, 0), (0, 2, 0), (0, 1, 1), (3, 0, 2), (7, 0, 0), (14, 0, 0), (14, 0, 0)],
           "B": [(0, 2, 0), (0, 1, 0), (0, 1, 0), (0, 2, 0), (0, 2, 0), (0, 0, 3), (7, 0, 0), (14, 0, 0), (14, 0, 0)],
           "C": [(0, 3, 0), (0, 0, 0), (0, 2, 0), (0, 2, 0), (0, 1, 1), (2, 0, 2), (7, 0, 0), (14, 0, 0), (10, 0, 0)],
           }[OPT.get("dsch2", "B")]
    S9 = int(OPT.get("s9", 1))
    def slot_ops(s_):
        ops = []
        if s_ == S9: ops += w13_ops(C, 9)
        if 2 <= s_ <= 6: ops += w13_ops(C, s_ + 2)
        k2, kf, kx = SCH[s_]
        ops += take(x2o, kx)
        ops += take(hhf, kf)
        if s_ < 7: assert NPRE//6*5 + NPRE % 6 + sum(q[0] for q in SCH[:s_+1]) <= 60
        ops += take(w2, k2)
        if OPT.get("xq") == "now2" and s_ >= 6: w2.clear()
        return ops
    def enter_slot(s_):
        if s_ >= NS0:
            for z in ((s_,) if s_ < 8 else (8, 9)):
                assert vm.all.count(("W", z)) == 7, ("ring slot not issued", z)
            vm.wait([("W", s_)] if s_ < 8 else [("W", 8), ("W", 9)])
        if s_ == 8:
            assert not hhf and not x2o, "fills pending"
            assert vm.all.count("HF") == 8
            vm.wait(["HF", "st"])
        A("s_barrier")
        if OPT.get("est") == "2": A(f"s_memtime s[{56+2*s_}:{57+2*s_}]")
        vq.extend(slot_ops(s_))
        if s_ == 8: flag_store(C, FX, 4, 5)
    def vpop():
        q0 = vm.n_issued
        while vq and vm.n_issued == q0: vq.pop(0)()
    T, OUTR = 176, 184
    fin = []
    def emit(x): fin.append(lambda x=x: A(x))
    def fin_setup():
        emit("s_mul_i32 s21, s20, 55296")
        emit("v_lshlrev_b32 v4, 4, v1")
        emit(f"v_add_u32 v{VB}, s21, v4")
        emit(f"v_add_u32 v{VB+1}, 55296, v{VB}")
        for x in ("s_lshr_b32 s21, s44, 1",
                  "s_lshr_b32 s50, s21, 3",
                  "s_and_b32 s21, s21, 7",
                  "s_lshl_b32 s21, s21, 3",
                  "s_add_u32 s21, s21, s50",
                  "v_and_b32 v252, 3, v1",
                  "v_lshlrev_b32 v252, 6, v252",
                  "v_bfe_u32 v253, v1, 2, 2",
                  "v_lshl_add_u32 v252, v253, 1, v252",
                  "v_add_u32 v252, s21, v252",
                  "s_and_b32 s21, s44, 3",
                  "s_lshl_b32 s21, s21, 6",
                  "s_lshr_b32 s50, s44, 2",
                  "s_add_u32 s21, s21, s50",
                  "v_and_b32 v253, 7, v1",
                  "v_lshl_add_u32 v253, v253, 3, s21",
                  "v_cmp_gt_u32 vcc, 16, v1",
                  "v_cndmask_b32 v252, v253, v252, vcc",
                  f"v_add_u32 v252, {FX >> FSH}, v252",
                  f"v_lshlrev_b32 v252, {FSH}, v252",
                  f"v_mov_b32 v6, {flit(-math.log2(math.e))}",
                  "v_lshlrev_b32 v4, 3, v1",
                  f"v_sub_u32 v4, v{VB}, v4",
                  "v_add_u32 v5, 55296, v4",
                  "s_lshr_b32 s22, s41, 1",
                  "s_lshl_b32 s22, s22, 10",
                  "s_bitcmp1_b32 s41, 0",
                  "s_cselect_b32 s21, 1, 6",
                  "s_cselect_b32 s23, 1024, 0",
                  "s_lshl_b32 s21, s21, 9",
                  "s_add_u32 s21, s21, s22",
                  "s_add_u32 s22, s22, s23",
                  "s_cmp_eq_u32 s41, 105",
                  f"s_cselect_b32 s23, {hex(OOB)}, s22"):
            emit(x)
    def fx_ld(): A(f"buffer_load_dword v253, v252, s[12:15], 0 offen {LSC}")
    def swiglu(ft, rt, dst):
        g = ACC + ((2*ft)*2 + rt)*4
        u = ACC + ((2*ft+1)*2 + rt)*4
        t = T + 4*rt
        if OPT.get("dpk", "0") == "0" and (ft < 6 or OPT.get("dpk6", "1") == "0"):
            for r in range(4): emit(f"v_mul_f32 v{t+r}, v6, v{g+r}")
            for r in range(4): emit(f"v_exp_f32 v{t+r}, v{t+r}")
            for r in range(4): emit(f"v_mul_f32 v{g+r}, v{g+r}, v{u+r}")
            for r in range(4): emit(f"v_add_f32 v{t+r}, 1.0, v{t+r}")
            for r in range(4): emit(f"v_rcp_f32 v{t+r}, v{t+r}")
            for r in range(4): emit(f"v_mul_f32 v{g+r}, v{g+r}, v{t+r}")
            emit(f"v_cvt_pk_bf16_f32 v{dst}, v{g}, v{g+1}")
            emit(f"v_cvt_pk_bf16_f32 v{dst+1}, v{g+2}, v{g+3}")
            return
        for r in (0, 2): emit(f"v_pk_mul_f32 {pr(t+r)}, {pr(g+r)}, {pr(6)} op_sel_hi:[1,0]")
        for r in range(4): emit(f"v_exp_f32 v{t+r}, v{t+r}")
        for r in (0, 2): emit(f"v_pk_mul_f32 {pr(g+r)}, {pr(g+r)}, {pr(u+r)}")
        for r in (0, 2): emit(f"v_pk_add_f32 {pr(t+r)}, {pr(t+r)}, 1.0 op_sel_hi:[1,0]")
        for r in range(4): emit(f"v_rcp_f32 v{t+r}, v{t+r}")
        for r in (0, 2): emit(f"v_pk_mul_f32 {pr(g+r)}, {pr(g+r)}, {pr(t+r)}")
        emit(f"v_cvt_pk_bf16_f32 v{dst}, v{g}, v{g+1}")
        emit(f"v_cvt_pk_bf16_f32 v{dst+1}, v{g+2}, v{g+3}")
    def pair_done(k):
        gi = k // 2
        for rt in range(2):
            o = OUTR + 4*((2*gi + rt) % 4)
            swiglu(k, rt, o + 2*(k & 1))
            if k & 1:
                def st(o=o, rt=rt, gi=gi):
                    if OPT.get("xp") == "hv" and gi < 2: return
                    A(f"buffer_store_dwordx4 v[{o}:{o+3}], v{VB+rt}, s[24:27], {'s23' if gi else 's22'} offen offset:{1024*gi} {SC}"); vm.issue("hh")
                fin.append(st)
            elif k == 6:
                def st(o=o, rt=rt):
                    A(f"buffer_store_dwordx2 v[{o}:{o+1}], v{4+rt}, s[24:27], s21 offen {SC}"); vm.issue("hh")
                fin.append(st)
    FXN = int(OPT.get("fxn", 250))
    def gap(n):
        if pending: pending.pop(0)()
        elif n >= NT:
            for _ in range(int(OPT.get("dfk", 3))):
                if fin: fin.pop(0)()
    for t in range(NB0, RB): vq.extend(b_ops(t))
    vq.extend(slot_ops(0))
    if OPT.get("est") == "2": A(f"s_memtime s[56:57]")
    for n in range(D_LA): lds_read(n)
    A(f"s_waitcnt lgkmcnt({D_LA-1})")
    for n in range(NF):
        t, i = nt(n)
        if n < NT and i == 0:
            for z in [t+1] + ([t+4] if t in (13, 14, 15) else []):
                if NPOLL <= z < 20:
                    assert vm.all.count(("B", z)) == 2, z
                    vm.wait([("B", z)])
                    pending[0:0] = check_ops(C, b_reload([z]), b_regs(z), BACC)
        if n == NT:
            assert not pending
            fin_setup()
        if n == FXN:
            def fxl(): fx_ld(); vm.issue("fx")
            fin.append(fxl)
        a = AR + (n % RA)*4
        def mm(rt):
            c = ACC + (i*2 + rt)*4
            b = BR + (t % RB)*8 + 4*rt
            src = "0" if t == 0 else f"v[{c}:{c+3}]"
            A(f"v_mfma_f32_16x16x32_bf16 v[{c}:{c+3}], v[{a}:{a+3}], v[{b}:{b+3}], {src}")
        mm(0)
        nn = n + D_LA
        if nn < NF:
            if nn % 28 == 0 and nn <= NT: enter_slot(nn // 28)
            lds_read(nn)
        gap(n)
        mm(1)
        if n < NT and i == 13:
            assert not pending
            bstate[t] = True
            if t + RB < 20: vq[0:0] = b_ops(t + RB)
        if n + 1 < NF:
            rem = min(NF - 1 - (n+1), D_LA - 1)
            A(f"s_waitcnt lgkmcnt({rem})")
        if n % PER == PER - 1 and vq: vpop()
        else: gap(n)
        if n >= NT and (n - NT) % 8 == 7: pair_done((n - NT)//8)
    stamp(A, 22)
    for f in vq + w2: f()
    while fin: fin.pop(0)()
    vm.wait(["fx"])
    Lfx = C.lab("fx")
    A(f"v_cmp_ne_u32 vcc, s{STAG}, v253")
    A(f"s_cbranch_vccnz {Lfx}")
    A(f"{Lfx}_b:")
    def tail():
        A(f"{Lfx}:")
        retry_loop(C, fx_ld, lambda: A(f"v_cmp_ne_u32 vcc, s{STAG}, v253"))
        A(f"s_branch {Lfx}_b")
    C.tail.append(tail)
    vm.q = []
    stamp(A, 23)

def phase_e(C):
    A = C.A; vm = C.vm
    ACC = 8
    RING = [88, 104, 120, 136, 176, 192, 208, 224]
    VH = 240
    VH2 = 248
    PROBE = OPT.get("epr", "0") == "1" and OPT.get("eq", "1") == "1"
    C.probes = [236, 237, 238][:int(OPT.get("npb", 3))]
    if PROBE:
        assert DT
        srd(A, 16, 4, WS_HH, SZ_HH)
        PL = int(OPT.get("epl", 4))
        A("v_lshrrev_b32 v7, 4, v1")
        A("s_lshl_b32 s20, s44, 2")
        A("v_add_u32 v7, s20, v7")
        A("v_mul_u32_u24 v7, 55296, v7")
        A("v_bfe_u32 v4, v1, 3, 1")
        A("v_mul_u32_u24 v4, 7168, v4")
        A("v_add_u32 v7, v7, v4")
        A("v_bfe_u32 v4, v1, 2, 1")
        A("v_lshl_add_u32 v7, v4, 9, v7")
        A(f"v_and_b32 v4, {PL - 1}, v1")
        A("v_lshl_add_u32 v7, v4, 7, v7")
        A("s_lshl_b32 s21, s46, 10")
        A("s_add_u32 s21, s21, 3072")
        A("v_add_u32 v7, s21, v7")
        A(f"buffer_load_dword v{C.probes[0]}, v7, s[16:19], 0 offen {LSC}")
    def probe(k):
        if PROBE and k < len(C.probes): A(f"buffer_load_dword v{C.probes[k]}, v7, s[16:19], 0 offen {LSC}")
    A("v_lshlrev_b32 v2, 4, v1")
    A("s_lshl_b32 s20, s44, 2")
    if OPT.get("xp") == "r0": A("s_mov_b32 s20, 0")
    if OPT.get("xp") == "r2": A("s_and_b32 s20, s20, 0x64")
    A("s_lshl_b32 s21, s46, 10")
    ROT = OPT.get("erot", "0") == "1" and OPT.get("eq", "1") == "1"
    if ROT:
        A("s_lshr_b32 s23, s49, 3")
        A("s_add_u32 s23, s23, s3")
        A("s_and_b32 s23, s23, 3")
    else:
        A("s_mov_b32 s23, s3")
    for q in range(4):
        A(f"s_add_u32 s22, s23, {q}")
        A("s_and_b32 s22, s22, 3")
        A("s_add_u32 s22, s22, s20")
        A("s_mul_i32 s22, s22, 55296")
        A("s_add_u32 s22, s22, s21")
        A(f"v_add_u32 v{VH+q}, s22, v2")
        A(f"v_lshl_add_u32 v{VH2+q}, v1, 3, s22")
    A("s_cmp_eq_u32 s3, 3")
    A(f"s_mov_b32 s47, {12*1024}")
    A(f"s_cselect_b32 s47, {hex(OOB)}, s47")
    probe(1)
    if not PROBE: srd(A, 16, 4, WS_HH, SZ_HH)
    srd(A, 24, 4, WS_X2, SZ_X)
    srd(A, 28, 4, WS_MOD, SZ_MOD)
    srd(A, 36, 8, 0, SZ_X)
    A("v_and_b32 v3, 15, v1")
    A("s_lshl_b32 s21, s44, 6")
    A("s_lshl_b32 s22, s23, 4")
    A("s_add_u32 s21, s21, s22")
    A("v_add_u32 v3, s21, v3")
    A("v_lshrrev_b32 v4, 8, v3")
    A("v_bfe_u32 v5, v3, 3, 3")
    A("v_lshl_add_u32 v4, v4, 3, v5")
    A("v_bfe_u32 v5, v3, 6, 2")
    A("v_and_b32 v6, 7, v3")
    A("v_lshl_add_u32 v5, v5, 3, v6")
    A("v_lshl_add_u32 v4, v5, 6, v4")
    A("v_mul_u32_u24 v244, 1280, v4")
    A("v_lshrrev_b32 v5, 4, v1")
    A("s_mul_i32 s21, s45, 160")
    A("v_lshl_add_u32 v244, v5, 3, v244")
    A("v_add_u32 v244, s21, v244")
    A("s_mul_i32 s21, s45, 320")
    A(f"s_add_u32 s21, s21, {5*2560}")
    A("v_lshlrev_b32 v245, 4, v5")
    A("v_add_u32 v245, s21, v245")
    HACC = 252
    probe(2)
    if OPT.get("eq", "1") == "1":
        e_qmajor(C, ACC, VH, VH2, HACC)
    else:
        e_stepmajor(C, ACC, RING, VH, VH2, HACC)
    L = C.lab("ep")
    A("s_or_b32 s50, s2, s3")
    A("s_cmp_lg_u32 s50, 0")
    A(f"s_cbranch_scc1 {L}")
    srd(A, 16, 4, WS_EPOCH, 128)
    A("v_mov_b32 v4, 0")
    A(f"v_mov_b32 v5, s{STAG}")
    A("s_mov_b64 exec, 1")
    A(f"buffer_store_dword v5, v4, s[16:19], 0 offen {SC}")
    A("s_mov_b64 exec, -1")
    A(f"{L}:")

def e_stepmajor(C, ACC, RING, VH, VH2, HACC):
    A = C.A; vm = C.vm
    def h_regs(st): return range(RING[st % 8], RING[st % 8] + 16)
    def h_reload(sts):
        def f():
            for st in sts:
                if st >= 12: A("s_mov_b32 s54, s47"); off = (st - 12)*1024
                else: A(f"s_movk_i32 s54, {st*1024}"); off = 0
                for q in range(4):
                    r = RING[st % 8] + 4*q
                    if st % 7 == 3:
                        for z in range(2):
                            A(f"buffer_load_dwordx2 v[{r+2*z}:{r+2*z+1}], v{VH2+q}, s[16:19], s54 offen offset:{off + 512*z} {LSC}")
                    else:
                        A(f"buffer_load_dwordx4 v[{r}:{r+3}], v{VH+q}, s[16:19], s54 offen offset:{off} {LSC}")
        return f
    def h_ops(st):
        ops = []
        if st % 4 == 0:
            ops.append((lambda st=st: A(f"s_movk_i32 s22, {st*1024}")) if st < 12 else (lambda: A("s_mov_b32 s22, s47")))
        for q in range(4):
            r = RING[st % 8] + 4*q
            if st % 7 == 3:
                for z in range(2):
                    def f(q=q, st=st, r=r, z=z):
                        A(f"buffer_load_dwordx2 v[{r+2*z}:{r+2*z+1}], v{VH2+q}, s[16:19], s22 offen offset:{(st%4)*1024 + 512*z} {LSC}")
                        vm.issue(("H", st))
                    ops.append(f)
            else:
                def f(q=q, st=st, r=r):
                    A(f"buffer_load_dwordx4 v[{r}:{r+3}], v{VH+q}, s[16:19], s22 offen offset:{(st%4)*1024} {LSC}")
                    vm.issue(("H", st))
                ops.append(f)
        return ops
    NPOLL = 3
    def h_loads():
        h_reload(range(NPOLL))()
    def h_test():
        fill_test(A, [r for st in range(NPOLL) for r in h_regs(st)], HACC)
    retry_loop(C, h_loads, h_test)
    cnt(A, 4)
    estamp(A, 0)
    A("s_barrier")
    A("s_movk_i32 s22, 0")
    for st in range(NPOLL, 8):
        for f in h_ops(st): f()
    pending = []
    for st in range(NST):
        if NPOLL <= st + 1 < NST:
            vm.wait([("H", st+1)])
            pending[0:0] = check_ops(C, h_reload([st+1]), h_regs(st+1), HACC)
        k = 0
        for p in range(5):
            for q in range(4):
                c = ACC + (q*5+p)*4
                src = "0" if st == 0 else f"v[{c}:{c+3}]"
                wk, wr = wfrag(st, p)
                h = RING[st % 8] + 4*q
                A(f"v_mfma_f32_16x16x32_bf16 v[{c}:{c+3}], {wk}[{wr}:{wr+3}], v[{h}:{h+3}], {src}")
                k += 1
                if pending: pending.pop(0)()
        while pending: pending.pop(0)()
        if st + 8 < NST: pending.extend(h_ops(st + 8))
        if st == 7:
            def xg():
                for p in range(5):
                    A(f"buffer_load_dwordx2 {pr(208+2*p)}, v244, s[24:27], 0 offen offset:{32*p} {LSC}")
                    vm.issue("XG")
                    A(f"buffer_load_dwordx4 v[{220+4*p}:{223+4*p}], v245, s[28:31], 0 offen offset:{64*p} {LSC}")
                    vm.issue("XG")
            pending.append(xg)
    while pending: pending.pop(0)()
    estamp(A, 1)
    X, G = 208, 220
    A("v_lshlrev_b32 v2, 4, v1")
    for q in range(1, 4):
        A(f"s_add_u32 s21, s3, {q}")
        A("s_and_b32 s21, s21, 3")
        A("s_mul_i32 s21, s21, 15360")
        A(f"s_add_u32 s21, s21, {(q-1)*5120}")
        A(f"v_add_u32 v6, s21, v2")
        for p in range(5):
            c = ACC + (q*5+p)*4
            A(f"ds_write_b128 v6, v[{c}:{c+3}] offset:{p*1024}")
    A("s_mul_i32 s21, s3, 15360")
    A("v_add_u32 v6, s21, v2")
    A("s_waitcnt lgkmcnt(0)")
    A("s_barrier")
    estamp(A, 2)
    R = 88
    for k in range(3):
        for p in range(5):
            r = R + k*20 + 4*p
            A(f"ds_read_b128 v[{r}:{r+3}], v6 offset:{k*5120 + p*1024}")
    for k in range(3):
        A(f"s_waitcnt lgkmcnt({5*(2-k)})")
        for r in range(0, 20, 2):
            A(f"v_pk_add_f32 {pr(ACC+r)}, {pr(ACC+r)}, {pr(R+k*20+r)}")
    vm.wait(["XG"])
    for p in range(5):
        for z in range(2):
            A(f"v_lshlrev_b32 v4, 16, v{X+2*p+z}")
            A(f"v_and_b32 v5, 0xffff0000, v{X+2*p+z}")
            A(f"v_pk_fma_f32 {pr(4)}, {pr(G+4*p+2*z)}, {pr(ACC+4*p+2*z)}, {pr(4)}")
            A(f"v_cvt_pk_bf16_f32 v{88+2*p+z}, v4, v5")
        A(f"buffer_store_dwordx2 {pr(88+2*p)}, v244, s[36:39], 0 offen offset:{32*p} {OPT.get('osc','').replace('+',' ')}")
    estamp(A, 3)

def e_qmajor(C, ACC, VH, VH2, HACC):
    A = C.A; vm = C.vm
    NR = int(OPT.get("enr", 32))
    NJ = 4*NST
    QO = (1, 2, 3, 0)
    RED = SLOT if DT else 2*SLOT if NS == 4 else 0
    def slot(j):
        i = j % NR
        return 88 + 4*i if i < 16 else 176 + 4*(i - 16)
    def regs(j): return list(range(slot(j), slot(j) + 4))
    A("s_movk_i32 s20, 4096")
    A("s_movk_i32 s21, 8192")
    state = dict(hi=0)
    def load(j, track=True):
        q, st = QO[j // NST], j % NST
        so = ["0", "s20", "s21", "s47"][st // 4]
        r = slot(j)
        if st % 7 == 3:
            for z in range(2):
                A(f"buffer_load_dwordx2 v[{r+2*z}:{r+2*z+1}], v{VH2+q}, s[16:19], {so} offen offset:{(st % 4)*1024 + 512*z} {LSC}")
                if track: vm.issue(("H", j))
        else:
            A(f"buffer_load_dwordx4 v[{r}:{r+3}], v{VH+q}, s[16:19], {so} offen offset:{(st % 4)*1024} {LSC}")
            if track: vm.issue(("H", j))
        if track: state["hi"] = j + 1
    def nloads(js): return sum(2 if (j % NST) % 7 == 3 else 1 for j in js)
    def check(j):
        if OPT.get("xp") in ("hv", "nc"): return []
        L = C.lab("ex")
        rr = regs(j) + regs(j+1)
        ops = max_ops(A, rr, HACC)
        ops.append(lambda: A(f"v_cmp_eq_u32 vcc, -1, v{HACC}"))
        def br():
            A(f"s_cbranch_vccnz {L}")
            A(f"{L}_b:")
            hi = state["hi"]
            def tail():
                A(f"{L}:")
                q = vm.q
                retry_loop(C, lambda: [load(k, False) for k in range(j, hi)], lambda: fill_test(A, rr, HACC))
                if CNT and PROF and OPT.get("crep"):
                    A("s_add_u32 s70, s70, 1")
                    A("s_add_u32 s69, s69, s53")
                vm.q = q
                A(f"s_branch {L}_b")
            C.tail.append(tail)
        ops.append(br)
        return ops
    if CNT and PROF and OPT.get("crep"):
        A("s_mov_b32 s70, 0")
        A("s_mov_b32 s69, 0")
    def lds_addr():
        A("v_lshlrev_b32 v2, 4, v1")
        for q in range(1, 4):
            A(f"s_add_u32 s22, s3, {q}")
            A("s_and_b32 s22, s22, 3")
            A("s_mul_i32 s22, s22, 15360")
            A(f"s_add_u32 s22, s22, {RED + (q-1)*5120}")
            A(f"v_add_u32 v{252+q}, s22, v2")
        A("s_mul_i32 s22, s3, 15360")
        A(f"s_add_u32 s22, s22, {RED}")
        A("v_add_u32 v6, s22, v2")
    NP = int(OPT.get("enp", 4))
    if OPT.get("epr", "0") == "1":
        NPB = len(C.probes)
        L = C.lab("pb")
        if not CUM: A("s_mov_b32 s53, 0")
        A(f"{L}:")
        for k, r in enumerate(C.probes):
            A(f"s_waitcnt vmcnt({NPB - 1})")
            A(f"v_cmp_eq_u32 vcc, -1, v{r}")
            A(f"s_cbranch_vccz {L}_x")
            A(f"buffer_load_dword v{r}, v7, s[16:19], 0 offen {LSC}")
        A("s_add_u32 s53, s53, 1")
        A(f"s_cmp_lt_u32 s53, {RETRY_LIMIT}")
        A(f"s_cbranch_scc1 {L}")
        A(f"{L}_x:")
        cnt(A, 4)
        estamp(A, 0)
        vm.q = ["stale"]*(NPB - 1)
        NP = 0
        for j in range(NR): load(j)
        lds_addr()
        vm.wait([("H", 0), ("H", 1)])
        for f in check(0): f()
    else:
        NSP = int(OPT.get("ens", 4))
        if OPT.get("ewait", "0") == "1": A("s_waitcnt vmcnt(0)")
        tags = [("H", j) for j in range(NP, NSP) for _ in range(nloads([j]))]
        retry_loop(C, lambda: [load(j, False) for j in range(NP)],
                   lambda: fill_test(A, [r for j in range(NP) for r in regs(j)], HACC),
                   spec=lambda: [load(j, False) for j in range(NP, NSP)], tags=tags)
        cnt(A, 4)
        estamp(A, 0)
        state["hi"] = NSP
        for j in range(NSP, NR): load(j)
        lds_addr()
    X, G = 208, 220
    assert NR == 32
    def xg_ops():
        ops = []
        for p in range(5):
            def fx(p=p):
                A(f"buffer_load_dwordx2 {pr(X+2*p)}, v244, s[24:27], 0 offen offset:{32*p} {LSC}"); vm.issue("XG")
            def fg(p=p):
                A(f"buffer_load_dwordx4 v[{G+4*p}:{G+4*p+3}], v245, s[28:31], 0 offen offset:{64*p} {LSC}"); vm.issue("XG")
            ops += [fx, fg]
        return ops
    P = ACC + 20
    pending = []; mem = []
    gaps_left = [5*NJ]
    def gap():
        gaps_left[0] -= 1
        k = 2 if len(pending) > BUSY[0] else 1
        for _ in range(k):
            if pending: pending.pop(0)()
    BUSY = [1000]
    for j in range(NJ):
        qi, st = divmod(j, NST)
        q = QO[qi]
        if OPT.get("est") == "3" and j % 6 == 0: A(f"s_memtime s[{56+2*(j//6)}:{57+2*(j//6)}]")
        if j % 2 == 0 and j + 2 < NJ and j + 2 >= NP:
            assert state["hi"] >= j + 4
            vm.wait([("H", j+2), ("H", j+3)])
            pending[0:0] = check(j + 2)
        if st == 0 and qi > 0:
            qp = QO[qi-1]
            for p in range(5):
                c = ACC + (qp*5+p)*4
                pending.append(lambda c=c, p=p, qp=qp: A(f"ds_write_b128 v{252+qp}, v[{c}:{c+3}] offset:{p*1024}"))
        if j == 32: mem.extend(xg_ops())
        if j == 44:
            assert not any(getattr(f, "w", 0) for f in pending)
            A("s_waitcnt lgkmcnt(0)")
            A("s_barrier")
            estamp(A, 2)
            for k in range(3):
                for p in range(5):
                    r = P + k*20 + 4*p
                    pending.append(lambda r=r, k=k, p=p: A(f"ds_read_b128 v[{r}:{r+3}], v6 offset:{k*5120 + p*1024}"))
            pending.append(lambda: A("s_waitcnt lgkmcnt(5)"))
            for r in range(20):
                pending.append(lambda r=r: A(f"v_add_f32 v{P+r}, v{P+r}, v{P+20+r}"))
            pending.append(lambda: A("s_waitcnt lgkmcnt(0)"))
            for r in range(20):
                pending.append(lambda r=r: A(f"v_add_f32 v{P+r}, v{P+r}, v{P+40+r}"))
            BUSY[0] = 0
        for p in range(5):
            c = ACC + (q*5+p)*4
            src = "0" if st == 0 else f"v[{c}:{c+3}]"
            wk, wr = wfrag(st, p)
            h = slot(j)
            A(f"v_mfma_f32_16x16x32_bf16 v[{c}:{c+3}], {wk}[{wr}:{wr+3}], v[{h}:{h+3}], {src}")
            if p == 0 and j >= 1 and j - 1 + NR < NJ and j - 1 + NR >= state["hi"]:
                load(j - 1 + NR)
            elif p in (0, 2) and mem:
                mem.pop(0)()
            else:
                gap()
        if st == NST - 1 and qi < 3 or j == 43:
            pass
        if j == 43:
            while pending: pending.pop(0)()
    estamp(A, 1)
    while pending: pending.pop(0)()
    vm.wait(["XG"])
    for p in range(5):
        for z in range(2):
            r = 4*p + 2*z
            A(f"v_pk_add_f32 {pr(ACC+r)}, {pr(ACC+r)}, {pr(P+r)}")
            A(f"v_lshlrev_b32 v4, 16, v{X+2*p+z}")
            A(f"v_and_b32 v5, 0xffff0000, v{X+2*p+z}")
            A(f"v_pk_fma_f32 {pr(4)}, {pr(G+r)}, {pr(ACC+r)}, {pr(4)}")
            A(f"v_cvt_pk_bf16_f32 v{88+2*p+z}, v4, v5")
        A(f"buffer_store_dwordx2 {pr(88+2*p)}, v244, s[36:39], 0 offen offset:{32*p} {OPT.get('osc','').replace('+',' ')}")
    estamp(A, 3)

def fused(name=MAIN):
    K = Kern(name, 256, LDS_TOTAL, vgpr=256, agpr=256)
    A = K.A
    C = Ctx(A)
    phase0(C)
    phase_a(C)
    phase_b(C)
    phase_c(C)
    (phase_d2 if DT else phase_d)(C)
    phase_e(C)
    if DG:
        L = "dg_end"
        A("s_or_b32 s50, s44, s45")
        A("s_or_b32 s50, s50, s3")
        A("s_cmp_lg_u32 s50, 0")
        A(f"s_cbranch_scc1 {L}")
        A("s_load_dwordx2 s[90:91], s[0:1], 80")
        A("s_waitcnt vmcnt(0) lgkmcnt(0)")
        A("v_mov_b32 v4, 0")
        A("global_load_dwordx4 v[8:11], v4, s[90:91] sc0 sc1")
        A("global_load_dwordx4 v[12:15], v4, s[90:91] offset:16 sc0 sc1")
        A("v_lshlrev_b32 v5, 2, v1")
        A("v_add_u32 v5, 0x88000, v5")
        for k in range(4): A(f"global_load_dword v{16+k}, v5, s[4:5] offset:{256*k} sc0 sc1")
        A("s_waitcnt vmcnt(0)")
        A("v_readfirstlane_b32 s96, v10")
        A("s_cmp_eq_u32 s96, 0")
        A(f"s_cbranch_scc1 {L}")
        for k in range(4):
            A(f"v_subrev_u32 v{16+k}, s88, v{16+k}")
            A(f"v_add_u32 v{16+k}, 2.0, v{16+k}")
            A(f"v_and_b32 v{16+k}, 0xffffff00, v{16+k}")
            A(f"v_add_u32 v20, {64*k}, v1")
            A(f"v_or_b32 v{16+k}, v20, v{16+k}")
        A("v_max_u32 v20, v16, v17"); A("v_max3_u32 v20, v20, v18, v19")
        A("v_min_u32 v21, v16, v17"); A("v_min3_u32 v21, v21, v18, v19")
        A("s_mov_b32 s60, 0"); A("s_mov_b32 s61, -1")
        A("s_nop 4")
        for l in range(64):
            A(f"v_readlane_b32 s62, v20, {l}"); A(f"v_readlane_b32 s63, v21, {l}")
            A("s_nop 0")
            A("s_max_u32 s60, s60, s62"); A("s_min_u32 s61, s61, s63")
        A("v_readfirstlane_b32 s64, v15")
        A("v_readfirstlane_b32 s65, v11")
        A("v_readfirstlane_b32 s66, v8")
        A("v_readfirstlane_b32 s67, v14")
        A("s_nop 4")
        A("s_and_b32 s70, s64, 63")
        A("s_and_b32 s71, s65, 255")
        A("s_min_u32 s72, s96, 255")
        A("s_and_b32 s73, s60, 255")
        A("s_and_b32 s74, s61, 255")
        A("s_and_b32 s75, s66, 255")
        A("s_sub_u32 s76, s60, s61"); A("s_lshr_b32 s76, s76, 14"); A("s_min_u32 s76, s76, 255")
        A("s_not_b32 s77, s67"); A("s_sub_u32 s77, s77, s88"); A("s_lshr_b32 s77, s77, 14"); A("s_min_u32 s77, s77, 255")
        for k in range(8): A(f"v_cvt_f32_u32 v{8+k}, s{70+k}")
        for k in range(4):
            A(f"v_lshrrev_b32 v{8+2*k}, 16, v{8+2*k}")
            A(f"v_and_or_b32 v{20+k}, v{9+2*k}, s78, v{8+2*k}") if False else None
            A(f"v_and_b32 v{9+2*k}, 0xffff0000, v{9+2*k}")
            A(f"v_or_b32 v{20+k}, v{8+2*k}, v{9+2*k}")
        A("v_mov_b32 v4, 0")
        A("s_mov_b64 exec, 1")
        A("global_store_dwordx4 v4, v[20:23], s[8:9]")
        A("s_mov_b64 exec, -1")
        A(f"{L}:")
    A("all_end:")
    A("s_endpgm")
    for f in C.tail: f()
    if DG:
        for i, x in enumerate(SITES): print("site", i, x)
    A("code_end:")
    return K
```

```python
import os, math
from gen_common import *
from gen_k5 import VM
from gen_k2 import layernorm, unpack_bf16, PITCH2

MAIN = "adaLN_cond__spectral_gfnet__glu_gated_swiglu__prompt_kernel"
OPT = dict(kv.split("=") for kv in os.environ.get("OPT", "").split(",") if kv)
SC = OPT.get("sc", "sc0+sc1").replace("+", " ")
LSC = "sc1"
WS_EPOCH = 0x80000
WS_FLG = 0xB0000
FA, FW, FP, FH1, FH2, FX = [0x8000*i for i in range(6)]
FSH = int(OPT.get("fsh", 5))
SZ_FLG = 6*0x8000
WS_MODG = 0xA0000
NB_WG = 161
BLK = 10368
SZ_Y1N = 256*BLK
TAGSTEP = 0x9E3779B9
RETRY_LIMIT = int(OPT.get("rl", 4000000))
CUM = OPT.get("cum", "1") == "1" and not (CNT and PROF)
DG = OPT.get("dg") == "1"
STAG = 55

ESTAMP = OPT.get("est") == "1"
_stamp = stamp
def stamp(A, i):
    if ESTAMP and i in (0, 1, 2, 3, 5): return
    if OPT.get("est") in ("2", "3") and i < 20: return
    if OPT.get("est") == "9": return
    _stamp(A, i)
def estamp(A, i):
    if ESTAMP: _stamp(A, i)
def fk(x): return hex(f32bits(float(x)))
def pr(r): return f"v[{r}:{r+1}]"
def mf32(A, d, a, b, first):
    c = "0" if first else f"v[{d}:{d+15}]"
    A(f"v_mfma_f32_32x32x16_bf16 v[{d}:{d+15}], v[{a}:{a+3}], v[{b}:{b+3}], {c}")
def csel(A, d, a, b):
    A(f"s_mov_b32 {d}, {b}")
    A(f"s_cselect_b32 {d}, {a}, {d}")

class Ctx:
    def __init__(self, A):
        self.A = A; self.vm = VM(A); self.n = 0; self.tail = []
    def lab(self, p):
        self.n += 1; return f"{p}_{self.n}"

def max_ops(A, regs, acc):
    regs = list(regs); ops = []
    ops.append(lambda r=regs[:3]: A(f"v_max3_u32 v{acc}, v{r[0]}, v{r[1]}, v{r[2]}"))
    rest = regs[3:]
    while rest:
        if len(rest) >= 2:
            ops.append(lambda r=rest[:2]: A(f"v_max3_u32 v{acc}, v{acc}, v{r[0]}, v{r[1]}")); rest = rest[2:]
        else:
            ops.append(lambda r=rest[0]: A(f"v_max_u32 v{acc}, v{acc}, v{r}")); rest = []
    return ops
def fill_test(A, regs, acc):
    for f in max_ops(A, regs, acc): f()
    A(f"v_cmp_eq_u32 vcc, -1, v{acc}")
def retry_loop(C, loads, test, scnt=53, spec=None, tags=()):
    A = C.A; L = C.lab("rt")
    if not CUM: A(f"s_mov_b32 s{scnt}, 0")
    A(f"{L}:")
    loads()
    if spec: spec()
    A(f"s_add_u32 s{scnt}, s{scnt}, 1")
    A(f"s_waitcnt vmcnt({len(tags)})")
    test()
    A(f"s_cmp_ge_u32 s{scnt}, {RETRY_LIMIT}")
    A(f"s_cbranch_scc1 {L}_{'t' if DG else 'x'}")
    A(f"s_cbranch_vccnz {L}")
    A(f"{L}_x:")
    if DG: gave_up(C, L + "_t", L + "_x")
    C.vm.q = []
    for t in tags: C.vm.issue(t)
SITES = []
def gave_up(C, L, back):
    import inspect
    A = C.A
    site = len(SITES); SITES.append((L, [f.lineno for f in inspect.stack()[1:5]]))
    def tail():
        A(f"{L}:")
        A("s_memrealtime s[92:93]")
        A("s_load_dwordx2 s[90:91], s[0:1], 80")
        A("s_waitcnt vmcnt(0) lgkmcnt(0)")
        A("s_mov_b64 s[94:95], exec")
        A("s_mov_b64 exec, 1")
        A("v_mov_b32 v4, 0")
        A(f"v_mov_b32 v5, {hex(1 << (site & 31))}")
        A(f"global_atomic_or v4, v5, s[90:91] offset:{4*(site >> 5)} sc1")
        A("v_mov_b32 v5, 1")
        A("global_atomic_add v4, v5, s[90:91] offset:8 sc1")
        A("s_not_b32 s92, s92")
        A("s_lshl_b32 s96, s92, 8")
        A("s_or_b32 s96, s96, s2")
        A("v_mov_b32 v5, s96")
        A("global_atomic_umax v4, v5, s[90:91] offset:12 sc1")
        A("s_lshl_b32 s96, s92, 6")
        A(f"s_or_b32 s96, s96, {site}")
        A("v_mov_b32 v5, s96")
        A("global_atomic_umax v4, v5, s[90:91] offset:28 sc1")
        A("v_mov_b32 v5, s92")
        A("global_atomic_umax v4, v5, s[90:91] offset:24 sc1")
        A("s_waitcnt vmcnt(0)")
        A("s_mov_b64 exec, s[94:95]")
        A(f"s_branch {back}")
    C.tail.append(tail)
def poll2(C, loads, tests, nops, use, scnt=53):
    A = C.A; L = C.lab("p2")
    if not CUM: A(f"s_mov_b32 s{scnt}, 0")
    A(f"{L}:")
    for k in range(2):
        A(f"s_waitcnt vmcnt({nops})")
        tests[k]()
        A(f"s_cbranch_vccz {L}_{k}")
        loads[k]()
    A(f"s_add_u32 s{scnt}, s{scnt}, 1")
    A(f"s_cmp_lt_u32 s{scnt}, {RETRY_LIMIT}")
    A(f"s_cbranch_scc1 {L}")
    if DG:
        A(f"s_branch {L}_t")
        A(f"{L}_x:")
        gave_up(C, L + "_t", L + "_x")
    A(f"s_waitcnt vmcnt({nops})")
    A(f"{L}_0:")
    use(0)
    A(f"s_branch {L}_e")
    A(f"{L}_1:")
    use(1)
    A(f"{L}_e:")
    C.vm.q = ["stale"]*nops
def check_ops(C, loads, regs, acc):
    A = C.A; L = C.lab("fx")
    ops = max_ops(A, regs, acc)
    ops.append(lambda: A(f"v_cmp_eq_u32 vcc, -1, v{acc}"))
    def br():
        A(f"s_cbranch_vccnz {L}")
        A(f"{L}_b:")
    ops.append(br)
    def tail():
        A(f"{L}:")
        q = C.vm.q
        retry_loop(C, loads, lambda: fill_test(A, regs, acc))
        C.vm.q = q
        A(f"s_branch {L}_b")
    C.tail.append(tail)
    return ops
def flag_store(C, off, va=4, vb=5):
    A = C.A; L = C.lab("fl")
    A("s_cmp_lg_u32 s3, 0")
    A(f"s_cbranch_scc1 {L}")
    A(f"s_lshl_b32 s50, s2, {FSH}")
    A(f"s_add_u32 s50, s50, {off}")
    A(f"v_mov_b32 v{va}, s50")
    A(f"v_mov_b32 v{vb}, s{STAG}")
    A("s_mov_b64 exec, 1")
    A(f"buffer_store_dword v{vb}, v{va}, s[12:15], 0 offen {SC}")
    A("s_mov_b64 exec, -1")
    A(f"{L}:")

L_ROWS = 0
L_TR = 8*PITCH2
L_MODP = L_TR + 16384
L_MODV = L_MODP + 1024
L_WT = L_MODV + 5120
L_PREP = 45056
L_YST = L_PREP + 32768
assert L_WT + 4*2816 <= L_PREP and L_YST + 16384 <= 114688

def prep_params(C, unit, B):
    A = C.A
    g, pitch, so, do, ts, ga, ja, a, b, c = [f"s{B+i}" for i in range(10)]
    A(f"s_sub_u32 {a}, s2, {NB_WG}")
    A(f"s_lshl_b32 {a}, {a}, 2")
    A(f"s_add_u32 {a}, {a}, s3")
    if unit: A(f"s_add_u32 {a}, {a}, {unit*4*(256 - NB_WG)}")
    A(f"s_cmp_ge_u32 {a}, 540")
    A(f"s_cselect_b32 {g}, 1, 0")
    A(f"s_cmp_ge_u32 {a}, 1080")
    A(f"s_cselect_b32 {g}, 2, {g}")
    A(f"s_mul_i32 {b}, {g}, 540")
    A(f"s_sub_u32 {b}, {a}, {b}")
    A(f"s_cmp_eq_u32 {g}, 2")
    csel(A, pitch, "1280", "3456")
    csel(A, ts, "1024", "2048")
    csel(A, ga, "4", "8")
    csel(A, ja, "16", "4")
    csel(A, c, "6554", "2428")
    csel(A, so, "10", "27")
    csel(A, do, "40960", "221184")
    A(f"s_mul_i32 {c}, {c}, {b}")
    A(f"s_lshr_b32 {c}, {c}, 16")
    A(f"s_mul_i32 {so}, {so}, {c}")
    A(f"s_sub_u32 {b}, {b}, {so}")
    A(f"s_mul_i32 {do}, {do}, {c}")
    A(f"s_mul_i32 {so}, {c}, {pitch}")
    A(f"s_lshl_b32 {so}, {so}, 5")
    A(f"s_lshl_b32 {c}, {b}, 7")
    A(f"s_add_u32 {so}, {so}, {c}")
    A(f"s_cmp_eq_u32 {g}, 2")
    csel(A, c, "4096", "8192")
    A(f"s_mul_i32 {c}, {c}, {b}")
    A(f"s_add_u32 {do}, {do}, {c}")
    A(f"s_cmp_eq_u32 {g}, 1")
    A(f"s_cselect_b32 {c}, 1024, 0")
    A(f"s_add_u32 {do}, {do}, {c}")
    A(f"s_cmp_lt_u32 {a}, 1620")
    A(f"s_cselect_b32 {so}, {so}, {hex(OOB)}")
    A(f"s_cselect_b32 {do}, {do}, {hex(OOB)}")

def a_consts(C, pf):
    A = C.A
    hf = 19
    A("v_cvt_f32_u32 v7, v2")
    A(f"v_cvt_f32_u32 v{hf}, v3")
    A(f"v_mul_f32 v212, {flit(1/32)}, v7")
    A(f"v_mul_f32 v213, v212, v{hf}")
    A(f"v_mul_f32 v213, {flit(8.0)}, v213")
    for mh in range(2):
        for p in range(4):
            for z in range(2):
                A(f"v_fmamk_f32 v214, v212, {fk(16*mh+2*p+z)}, v213")
                A(f"v_cos_f32 v{60+z}, v214")
                A(f"v_sin_f32 v{62+z}, -v214")
            A(f"v_cvt_pk_bf16_f32 v{80+4*mh+p}, v60, v61")
            A(f"v_cvt_pk_bf16_f32 v{88+4*mh+p}, v62, v63")
            pf()
    A(f"v_mul_f32 v212, {flit(1/640)}, v7")
    A(f"v_mul_f32 v213, v212, v{hf}")
    A("v_mul_f32 v213, 4.0, v213")
    for r in range(12):
        A(f"v_fmamk_f32 v214, v212, {fk(8*(r//4)+r%4)}, v213")
        A(f"v_cos_f32 v{96+r}, v214")
        A(f"v_sin_f32 v{108+r}, v214")
        if r & 1: pf()
    A("v_and_b32 v60, 15, v2")
    A("v_cvt_f32_u32 v60, v60")
    A("v_lshrrev_b32 v61, 4, v2")
    A("v_cvt_f32_u32 v61, v61")
    A(f"v_mul_f32 v212, {flit(1/20)}, v60")
    A(f"v_mul_f32 v213, v212, v{hf}")
    A("v_mul_f32 v213, 4.0, v213")
    A(f"v_fmamk_f32 v213, v61, {fk(0.25)}, v213")
    A(f"v_add_f32 v215, {flit(-0.25)}, v213")
    def cpair(dst, consts, bases):
        for z in range(2):
            A(f"v_fmamk_f32 v214, v212, {fk(consts[z])}, v{bases[z]}")
            A(f"v_cos_f32 v{62+z}, v214")
        A(f"v_cvt_pk_bf16_f32 v{dst}, v62, v63")
    for p in range(4):
        d = [8*((2*p+z) >> 2) + ((2*p+z) & 3) for z in range(2)]
        cpair(120+p, d, [213, 213]); pf()
        cpair(124+p, d, [215, 215]); pf()
    for p in range(2):
        d = [16+2*p, 17+2*p]
        cpair(128+p, d, [213, 213]); pf()
        cpair(130+p, d, [215, 215]); pf()
    A("v_cmp_eq_u32 vcc, 0, v3")
    for p in range(4):
        A(f"v_cndmask_b32 v{128+p}, 0, v{128+p}, vcc")

N_FILLER = 16

def phase0(C):
    A = C.A; vm = C.vm
    A("s_cmp_ge_u32 s2, 256")
    A("s_cbranch_scc1 all_end")
    if OPT.get("cpf", "2") == "2":
        L = C.lab("cpf")
        A("s_getpc_b64 s[26:27]")
        A(f"{L}_pc:")
        A("s_bfe_u32 s50, s2, 0x30003")
        A("s_lshl_b32 s50, s50, 12")
        A("v_lshl_add_u32 v4, v0, 4, s50")
        A("s_bfe_u32 s50, s2, 0x20003")
        A("s_lshl_b32 s50, s50, 12")
        A("s_add_u32 s50, s50, 0x8000")
        A("v_lshl_add_u32 v6, v0, 4, s50")
        A(f"s_sub_u32 s26, s26, {L}_pc-{MAIN}")
        A("s_subb_u32 s27, s27, 0")
        A(f"v_min_u32 v6, code_end-{MAIN}-16, v6")
        A("global_load_dwordx4 v[248:251], v4, s[26:27]")
        A("global_load_dwordx4 v[252:255], v6, s[26:27]")
    A("s_load_dwordx2 s[4:5], s[0:1], 88")
    A("s_load_dwordx4 s[28:31], s[0:1], 56")
    A("s_load_dwordx2 s[6:7], s[0:1], 0")
    A("s_load_dwordx4 s[16:19], s[0:1], 8")
    A("s_load_dwordx4 s[20:23], s[0:1], 32")
    A("s_load_dwordx2 s[24:25], s[0:1], 48")
    A("s_load_dwordx2 s[8:9], s[0:1], 72")
    if CUM: A("s_mov_b32 s53, 0")
    if DG:
        A("s_memrealtime s[92:93]")
        A("s_load_dwordx2 s[90:91], s[0:1], 80")
    A("v_and_b32 v1, 63, v0")
    A("v_and_b32 v2, 31, v0")
    A("v_lshrrev_b32 v3, 5, v1")
    A("v_lshrrev_b32 v4, 6, v0")
    A("v_readfirstlane_b32 s3, v4")
    A("s_and_b32 s48, s2, 7")
    A("s_lshr_b32 s49, s2, 3")
    A("s_mul_i32 s26, s48, 10")
    A("s_add_u32 s26, s26, s49")
    A("s_mul_i32 s27, s48, 20")
    A("s_add_u32 s27, s27, s49")
    A("s_add_u32 s27, s27, 70")
    A("s_cmp_lt_u32 s49, 10")
    A("s_cselect_b32 s54, s26, s27")
    A("s_lshl_b32 s26, s54, 5")
    A("s_cmp_lt_u32 s49, 30")
    A(f"s_cselect_b32 s26, s26, {hex(OOB)}")
    A("v_lshrrev_b32 v4, 1, v0")
    A("v_and_b32 v5, 1, v0")
    A("v_mul_u32_u24 v56, 7680, v4")
    A("v_lshl_add_u32 v56, v5, 4, v56")
    A("v_add_u32 v56, s26, v56")
    A("v_lshlrev_b32 v57, 1, v4")
    A("s_lshl_b32 s80, s48, 3")
    A("s_and_b32 s26, s49, 7")
    A("s_add_u32 s80, s80, s26")
    A("s_lshr_b32 s26, s2, 7")
    A("s_lshl_b32 s26, s26, 4")
    A("s_bfe_u32 s27, s2, 0x10006")
    A("s_lshl_b32 s27, s27, 2")
    A("s_add_u32 s26, s26, s27")
    A("s_lshr_b32 s27, s3, 1")
    A("s_lshl_b32 s27, s27, 3")
    A("s_add_u32 s26, s26, s27")
    A("s_and_b32 s27, s3, 1")
    A("s_lshl_b32 s27, s27, 1")
    A("s_add_u32 s26, s26, s27")
    A("s_lshl_b32 s26, s26, 6")
    A("s_add_u32 s26, s26, s80")
    A("s_mul_i32 s26, s26, 1280")
    A("v_mul_u32_u24 v58, 81920, v3")
    A("v_lshl_add_u32 v58, v2, 3, v58")
    A("v_add_u32 v58, s26, v58")
    A("s_lshr_b32 s26, s2, 6")
    A("s_lshl_b32 s26, s26, 6")
    A("s_add_u32 s80, s80, s26")
    A(f"s_mul_i32 s80, s80, {BLK}")
    A("s_waitcnt lgkmcnt(0)")
    if DG:
        A("s_mov_b32 s88, s92")
        A("s_lshl_b32 s96, s2, 2")
        A("s_add_u32 s96, s96, 0x88000")
        A("v_mov_b32 v200, s96")
        A("v_mov_b32 v201, s92")
        A("s_cmp_eq_u32 s3, 0")
        A("s_cselect_b64 exec, 1, 0")
        A("global_store_dword v200, v201, s[4:5] sc0 sc1")
        A("s_mov_b64 exec, -1")
    Lfill, Ljoin = C.lab("filler"), C.lab("p0join")
    A("s_cmp_ge_u32 s49, 30")
    A(f"s_cbranch_scc1 {Lfill}")
    srd(A, 32, 28, 0, 1280)
    srd(A, 36, 30, 0, 640*7680)
    for i in range(5):
        A(f"buffer_load_ushort v{20+i}, v57, s[32:35], 0 offen offset:{256*i}"); vm.issue("c")
    for i in range(5):
        if i: A(f"s_mov_b32 s26, {i*128*7680}")
        A(f"buffer_load_dwordx4 v[{28+4*i}:{31+4*i}], v56, s[36:39], {'s26' if i else '0'} offen"); vm.issue(("w", i))
    srd(A, 32, 6, 0, SZ_X)
    for i in range(5):
        A(f"buffer_load_dwordx2 v[{8+2*i}:{9+2*i}], v58, s[32:35], 0 offen offset:{256*i}"); vm.issue("x")
    stamp(A, 0)
    A(f"s_load_dword s{STAG}, s[4:5], {hex(WS_EPOCH)}")
    def wt_code():
        A("s_lshl_b32 s26, s49, 2")
        A("s_add_u32 s26, s26, s3")
        A("s_mul_i32 s27, s26, 4370")
        A("s_lshr_b32 s27, s27, 16")
        A("s_mul_i32 s50, s27, 15")
        A("s_sub_u32 s26, s26, s50")
        A("s_mul_i32 s26, s26, 22")
        A("s_min_u32 s26, s26, 299")
        A("s_lshl_b32 s50, s48, 3")
        A("s_add_u32 s27, s27, s50")
        A("s_lshr_b32 s50, s27, 2")
        A("s_and_b32 s27, s27, 3")
        A("v_and_b32 v4, 7, v1")
        A("v_bfe_u32 v5, v1, 3, 2")
        A("v_lshl_add_u32 v6, v5, 5, v4")
        A("s_lshl_b32 s51, s50, 7")
        A("s_lshl_b32 s52, s27, 3")
        A("s_add_u32 s51, s51, s52")
        A("v_add_u32 v6, s51, v6")
        A("v_mul_u32_u24 v228, 642, v6")
        A("v_mul_u32_u24 v7, 20, v3")
        A("v_add_u32 v228, v228, v7")
        A("s_lshl_b32 s51, s26, 1")
        A("s_cmp_lt_u32 s49, 30")
        A(f"s_cselect_b32 s51, s51, {hex(OOB)}")
        A("v_add_u32 v228, s51, v228")
        A("s_mul_i32 s51, s3, 2816")
        A(f"s_add_u32 s51, s51, {L_WT}")
        A("v_mul_u32_u24 v229, 1280, v3")
        A("v_lshl_add_u32 v229, v4, 4, v229")
        A("v_lshl_add_u32 v229, v5, 2, v229")
        A("v_add_u32 v229, s51, v229")
        A("v_lshl_add_u32 v230, v1, 4, s51")
        A("s_lshl_b32 s26, s26, 13")
        A("s_lshl_b32 s50, s50, 9")
        A("s_add_u32 s26, s26, s50")
        A("s_lshl_b32 s27, s27, 7")
        A("s_add_u32 s26, s26, s27")
        A("s_cmp_lt_u32 s49, 30")
        A(f"s_cselect_b32 s26, s26, {hex(OOB)}")
        A("v_lshrrev_b32 v5, 3, v1")
        A("v_lshlrev_b32 v231, 13, v5")
        A("v_lshl_add_u32 v231, v4, 4, v231")
        A("v_add_u32 v231, s26, v231")
        srd(A, 32, 16, 0, SZ_WF)
        srd(A, 36, 18, 0, SZ_WF)
        for m in range(2):
            A(f"buffer_load_dwordx4 v[{216+6*m}:{219+6*m}], v228, s[{32+4*m}:{35+4*m}], 0 offen"); vm.issue("wt")
            A(f"buffer_load_dwordx2 v[{220+6*m}:{221+6*m}], v228, s[{32+4*m}:{35+4*m}], 0 offen offset:16"); vm.issue("wt")
    wt_code()
    stamp(A, 1)
    A("s_waitcnt lgkmcnt(0)")
    A(f"s_add_u32 s{STAG}, s{STAG}, {hex(TAGSTEP)}")
    srd(A, 12, 4, WS_FLG, SZ_FLG)
    a_consts(C, lambda: None)
    stamp(A, 2)
    vm.wait(["c"])
    for i in range(5):
        r = 20+i
        A(f"v_lshlrev_b32 v{r}, 16, v{r}")
        A(f"v_mul_f32 v26, {flit(-math.log2(math.e))}, v{r}")
        A(f"v_exp_f32 v26, v26")
        A(f"v_add_f32 v26, 1.0, v26")
        A(f"v_rcp_f32 v26, v26")
        A(f"v_mul_f32 v{r}, v{r}, v26")
        bf16_round_v(A, r, r)
    for i in range(5):
        vm.wait([("w", i)])
        for q in range(4):
            w = 28+4*i+q
            A(f"v_lshlrev_b32 v26, 16, v{w}")
            A(f"v_and_b32 v27, 0xffff0000, v{w}")
            if i == 0:
                A(f"v_mul_f32 v{48+2*q}, v{20+i}, v26")
                A(f"v_mul_f32 v{49+2*q}, v{20+i}, v27")
            else:
                A(f"v_fmac_f32 v{48+2*q}, v{20+i}, v26")
                A(f"v_fmac_f32 v{49+2*q}, v{20+i}, v27")
    for ctl in ["quad_perm:[2,3,0,1]", "row_ror:4", "row_ror:8"]:
        for q in range(8):
            A(f"v_add_f32_dpp v{48+q}, v{48+q}, v{48+q} {ctl} row_mask:0xf bank_mask:0xf")
    A("v_lshrrev_b32 v5, 4, v0")
    A("v_lshlrev_b32 v5, 6, v5")
    A("v_and_b32 v6, 1, v0")
    A("v_lshl_add_u32 v5, v6, 5, v5")
    A("v_and_b32 v6, 14, v0")
    A("v_cmp_eq_u32 vcc, 0, v6")
    A("s_and_saveexec_b64 s[26:27], vcc")
    A(f"ds_write_b128 v5, v[48:51] offset:{L_MODP}")
    A(f"ds_write_b128 v5, v[52:55] offset:{L_MODP+16}")
    A("s_mov_b64 exec, s[26:27]")
    A("s_waitcnt lgkmcnt(0)")
    A("s_barrier")
    stamp(A, 3)
    L = C.lab("modfin")
    A("s_cmp_lg_u32 s3, 0")
    A(f"s_cbranch_scc1 {L}")
    A("v_and_b32 v6, 15, v0")
    A("v_lshrrev_b32 v5, 4, v0")
    A("v_lshlrev_b32 v5, 8, v5")
    A("v_lshl_add_u32 v5, v6, 2, v5")
    A(f"v_add_u32 v5, {L_MODP}, v5")
    A("ds_read2_b32 v[20:21], v5 offset0:0 offset1:16")
    A("ds_read2_b32 v[22:23], v5 offset0:32 offset1:48")
    A("s_waitcnt lgkmcnt(0)")
    A("v_add_f32 v20, v20, v21")
    A("v_add_f32 v22, v22, v23")
    A("v_add_f32 v20, v20, v22")
    for sw in ("v_permlane16_swap_b32", "v_permlane32_swap_b32"):
        A("v_mov_b32 v21, v20")
        A(f"{sw} v20, v21")
        A("v_add_f32 v20, v20, v21")
    bf16_round_v(A, 20, 20)
    A("s_cmp_ge_u32 s54, 160")
    A("s_cselect_b32 s26, 120, 0")
    A("s_sub_u32 s26, s54, s26")
    A("s_sub_u32 s26, s26, 40")
    A("v_add_f32 v21, 1.0, v20")
    bf16_round_v(A, 21, 21)
    A("s_cmp_lt_u32 s26, 40")
    A("s_cselect_b64 vcc, -1, 0")
    A("v_cndmask_b32 v20, v20, v21, vcc")
    A(f"v_mov_b32 v21, s{STAG}")
    A("s_lshl_b32 s26, s54, 7")
    A("s_cmp_lt_u32 s54, 80")
    A(f"s_cselect_b32 s26, s26, {hex(OOB)}")
    A("v_lshl_add_u32 v22, v6, 3, s26")
    A("s_lshl_b32 s26, s54, 6")
    A("s_cmp_ge_u32 s54, 80")
    A(f"s_cselect_b32 s26, s26, {hex(OOB)}")
    A("s_cmp_lt_u32 s49, 30")
    A(f"s_cselect_b32 s26, s26, {hex(OOB)}")
    A("v_lshl_add_u32 v23, v6, 2, s26")
    srd(A, 32, 4, WS_MODG, 80*128)
    srd(A, 36, 4, WS_MOD, SZ_MOD)
    A("s_mov_b64 exec, 0xffff")
    A(f"buffer_store_dwordx2 v[20:21], v22, s[32:35], 0 offen {SC}")
    A(f"buffer_store_dword v20, v23, s[36:39], 0 offen {SC}")
    A("s_mov_b64 exec, -1")
    A(f"{L}:")
    stamp(A, 4)
    vm.wait(["x"])
    unpack_bf16(A, 60, 8, 10)
    layernorm(A, 60, 20, 212, 213)
    stamp(A, 5)
    vm.wait(["wt"])
    for m in range(2):
        for cc in range(12):
            op = "ds_write_b16_d16_hi" if cc & 1 else "ds_write_b16"
            A(f"{op} v229, v{216+6*m+cc//2} offset:{cc*128 + 2*m}")
    A("s_waitcnt lgkmcnt(0)")
    for j in range(3):
        A(f"ds_read_b128 v[{216+4*j}:{219+4*j}], v230 offset:{1024*j}")
    A(f"v_add_u32 v229, {hex(OOB)}, v231")
    A("v_cmp_gt_u32 vcc, 48, v1")
    A("v_cndmask_b32 v229, v229, v231, vcc")
    for q in range(4): A(f"v_accvgpr_write_b32 a{12+q}, -1")
    A("s_waitcnt lgkmcnt(0)")
    A(f"s_branch {Ljoin}")
    A(f"{Lfill}:")
    q_main = vm.q; vm.q = []
    srd(A, 32, 6, 0, SZ_X)
    for i in range(5):
        A(f"buffer_load_dwordx2 v[{8+2*i}:{9+2*i}], v58, s[32:35], 0 offen offset:{256*i}"); vm.issue("x")
    stamp(A, 0)
    A(f"s_load_dword s{STAG}, s[4:5], {hex(WS_EPOCH)}")
    A(f"s_sub_u32 s26, s2, {256 - N_FILLER}")
    A("s_lshl_b32 s26, s26, 12")
    A("v_lshl_add_u32 v59, v0, 4, s26")
    for q in range(4): A(f"v_accvgpr_write_b32 a{12+q}, -1")
    srd(A, 40, 4, WS_Y1, SZ_Y1N)
    fills = []
    for sd, sz in ((40, SZ_Y1N),):
        for i in range(-(-sz // (N_FILLER*4096))):
            def f(sd=sd, i=i):
                A(f"s_mov_b32 s81, {i*N_FILLER*4096}")
                A(f"buffer_store_dwordx4 a[12:15], v59, s[{sd}:{sd+3}], s81 offen {SC}"); vm.issue("fill")
            fills.append(f)
    def pf(k=1):
        for _ in range(k):
            if fills: fills.pop(0)()
    pf(4)
    stamp(A, 1)
    A("s_waitcnt lgkmcnt(0)")
    A(f"s_add_u32 s{STAG}, s{STAG}, {hex(TAGSTEP)}")
    srd(A, 12, 4, WS_FLG, SZ_FLG)
    a_consts(C, pf)
    stamp(A, 2)
    vm.wait(["x"])
    unpack_bf16(A, 60, 8, 10)
    pf(2)
    layernorm(A, 60, 20, 212, 213)
    pf(99)
    A(f"v_mov_b32 v229, {hex(OOB)}")
    A(f"v_mov_b32 v231, {hex(OOB)}")
    stamp(A, 5)
    A("s_waitcnt vmcnt(0)")
    A("s_barrier")
    flag_store(C, FA)
    A(f"{Ljoin}:")
    vm.q = []
    stamp(A, 6)
    A("v_lshlrev_b32 v245, 4, v0")
    A("v_add_u32 v246, 8192, v245")
    A("v_add_u32 v247, 4096, v245")
    A("v_cmp_gt_u32 vcc, 128, v0")
    A("v_cndmask_b32 v246, v247, v246, vcc")
    A(f"v_and_b32 v247, {N_FILLER - 1}, v0")
    A(f"v_add_u32 v247, {256 - N_FILLER}, v247")
    A(f"v_lshlrev_b32 v247, {FSH}, v247")
    srd(A, 32, 4, WS_MODG, 80*128)
    A("s_movk_i32 s26, 4096")
    def mod_loads():
        A(f"buffer_load_dwordx4 v[232:235], v245, s[32:35], 0 offen {LSC}")
        A(f"buffer_load_dwordx4 v[236:239], v245, s[32:35], s26 offen {LSC}")
        A(f"buffer_load_dwordx4 v[240:243], v246, s[32:35], 0 offen {LSC}")
    def mod_test():
        A("v_min3_u32 v4, v233, v235, v237")
        A("v_max3_u32 v5, v233, v235, v237")
        A("v_min3_u32 v4, v4, v239, v241")
        A("v_max3_u32 v5, v5, v239, v241")
        A("v_min_u32 v4, v4, v243")
        A("v_max_u32 v5, v5, v243")
        A("v_cmp_ne_u32 vcc, v4, v5")
        A(f"v_cmp_ne_u32 s[50:51], s{STAG}, v5")
        A("s_or_b64 vcc, vcc, s[50:51]")
    retry_loop(C, mod_loads, mod_test)
    cnt(A, 0)
    A("v_lshrrev_b32 v4, 1, v245")
    A("v_lshrrev_b32 v5, 1, v246")
    A(f"v_add_u32 v4, {L_MODV}, v4")
    A(f"v_add_u32 v5, {L_MODV}, v5")
    A("v_add_u32 v6, 2048, v4")
    A("ds_write2_b32 v4, v232, v234 offset0:0 offset1:1")
    A("ds_write2_b32 v6, v236, v238 offset0:0 offset1:1")
    A("ds_write2_b32 v5, v240, v242 offset0:0 offset1:1")
    fa_ld(C); vm.issue("fa")
    srd(A, 28, 4, WS_WT, SZ_COL)
    def wt_store(j):
        if j: A(f"s_mov_b32 s81, {j*8*8192}")
        A(f"buffer_store_dwordx4 v[{216+4*j}:{219+4*j}], v{229 if j == 2 else 231}, s[28:31], {'s81' if j else '0'} offen {SC}"); vm.issue("wts")
    C.wt_ops = [lambda j=j: wt_store(j) for j in range(3)]
    if OPT.get("wts", "a") == "now":
        while C.wt_ops: C.wt_ops.pop(0)()
    if True:
        A("s_lshl_b32 s26, s2, 12")
        A("v_lshl_add_u32 v245, v0, 4, s26")
        for off, sz in ((WS_Z, SZ_COL),) + (((WS_H2P, SZ_H2P),) if OPT.get("h2f", "a2") == "a2" else ()):
            srd(A, 32, 4, off, sz)
            for i in range(3):
                if i: A(f"s_mov_b32 s26, {i << 20}")
                A(f"buffer_store_dwordx4 a[12:15], v245, s[32:35], {'s26' if i else '0'} offen {SC}"); vm.issue("wts")
    A("s_waitcnt lgkmcnt(0)")
    A("s_barrier")
    stamp(A, 7)

def fa_ld(C):
    C.A(f"buffer_load_dword v244, v247, s[12:15], 0 offen offset:{FA} {LSC}")
def flag_check(C, name, reg, ld):
    A = C.A; L = C.lab(name)
    A(f"v_cmp_ne_u32 vcc, s{STAG}, v{reg}")
    A(f"s_cbranch_vccnz {L}")
    A(f"{L}_b:")
    def tail():
        A(f"{L}:")
        q = C.vm.q
        retry_loop(C, ld, lambda: A(f"v_cmp_ne_u32 vcc, s{STAG}, v{reg}"))
        C.vm.q = q
        A(f"s_branch {L}_b")
    C.tail.append(tail)

def phase_a(C):
    A = C.A; vm = C.vm
    A(f"v_lshlrev_b32 v6, 4, v2")
    A(f"v_add_u32 v6, {L_MODV}, v6")
    for i in range(5):
        A(f"ds_read_b128 v[{20+4*i}:{23+4*i}], v6 offset:{2560 + 512*i}")
    for i in range(5):
        A(f"ds_read_b128 v[{40+4*i}:{43+4*i}], v6 offset:{512*i}")
    A(f"s_mul_i32 s26, s3, {2*PITCH2}")
    A(f"v_mul_u32_u24 v4, {PITCH2}, v3")
    A("v_lshl_add_u32 v4, v2, 3, v4")
    A("v_add_u32 v4, s26, v4")
    A("v_bfe_u32 v5, v1, 2, 2")
    A("v_lshl_add_u32 v5, v3, 3, v5")
    A("v_mul_u32_u24 v5, 40, v5")
    A("v_bfe_u32 v6, v1, 4, 1")
    A("v_lshl_add_u32 v5, v6, 5, v5")
    A("v_and_b32 v6, 3, v1")
    A("v_lshl_add_u32 v5, v6, 3, v5")
    A("v_add_u32 v5, s26, v5")
    for i in range(5):
        A(f"s_waitcnt lgkmcnt({9-i})")
        for k in (0, 2):
            q = 4*i+k
            A(f"v_pk_mul_f32 {pr(20+q)}, {pr(20+q)}, {pr(212)} op_sel_hi:[1,0]")
    for i in range(5):
        A(f"s_waitcnt lgkmcnt({4-i})")
        for k in (0, 2):
            q = 4*i+k
            A(f"v_pk_fma_f32 {pr(60+q)}, {pr(60+q)}, {pr(20+q)}, {pr(40+q)}")
        for k in (0, 1):
            q = 2*i+k
            A(f"v_cvt_pk_bf16_f32 v{8+q}, v{60+2*q}, v{61+2*q}")
        A(f"ds_write_b64 v4, v[{8+2*i}:{9+2*i}] offset:{256*i}")
    def wt1():
        if C.wt_ops: C.wt_ops.pop(0)()
    wt1()
    A("v_mov_b32 v18, 0")
    A("v_mov_b32 v19, 0")
    A("v_cmp_eq_u32 vcc, 0, v2")
    A("s_and_saveexec_b64 s[26:27], vcc")
    A("ds_write_b64 v4, v[18:19] offset:1280")
    A("s_mov_b64 exec, s[26:27]")
    A("s_waitcnt lgkmcnt(0)")
    for row in range(2):
        for mh in range(2):
            for j in range(2):
                d = 132 + 8*row + 4*mh + 2*j
                A(f"ds_read_b64_tr_b16 v[{d}:{d+1}], v5 offset:{row*PITCH2 + 640*mh + 160*j}")
    T = [[148, 164], [180, 196]]
    A("s_waitcnt lgkmcnt(0)")
    for mh in range(2):
        for row in range(2):
            a = 132 + 8*row + 4*mh
            for ri in range(2):
                mf32(A, T[row][ri], a, (80 if ri == 0 else 88) + 4*mh, mh == 0)
    wt1()
    stamp(A, 8)
    A("v_bfe_u32 v4, v2, 3, 1")
    A("v_lshlrev_b32 v5, 5, v2")
    A("v_lshl_add_u32 v5, v3, 12, v5")
    A("s_lshl_b32 s26, s3, 2")
    A(f"s_add_u32 s26, s26, {L_TR}")
    A("v_add_u32 v5, s26, v5")
    A("v_lshl_add_u32 v4, v4, 4, v5")
    A("v_bfe_u32 v6, v2, 3, 1")
    A("v_xor_b32 v6, 1, v6")
    A("v_lshl_add_u32 v5, v6, 4, v5")
    B = [20, 32]
    TA, TB = 60, 62
    for row in range(2):
        tr, ti = T[row]
        b = B[row]
        for r in range(0, 12, 2):
            c, s_ = 96+r, 108+r
            A(f"v_pk_mul_f32 {pr(TA)}, {pr(tr+r)}, {pr(c)}")
            A(f"v_pk_mul_f32 {pr(TB)}, {pr(ti+r)}, {pr(c)}")
            A(f"v_pk_fma_f32 {pr(TA)}, {pr(ti+r)}, {pr(s_)}, {pr(TA)}")
            A(f"v_pk_fma_f32 {pr(TB)}, {pr(tr+r)}, {pr(s_)}, {pr(TB)} neg_lo:[1,0,0] neg_hi:[1,0,0]")
            dr = b + r//2 if r < 8 else b + 8 + (r-8)//2
            di = b + 4 + r//2 if r < 8 else b + 10 + (r-8)//2
            A(f"v_cvt_pk_bf16_f32 v{dr}, v{TA}, v{TA+1}")
            A(f"v_cvt_pk_bf16_f32 v{di}, v{TB}, v{TB+1}")
    wt1()
    O = [148, 180]
    for st in range(3):
        for row in range(2):
            mf32(A, O[row], 120 + 4*st, B[row] + 4*st, st == 0)
    stamp(A, 9)
    A("v_bfe_u32 v6, v0, 4, 1")
    A("v_xor_b32 v6, v0, v6")
    A("v_lshlrev_b32 v6, 4, v6")
    A(f"v_add_u32 v6, {L_TR}, v6")
    A("v_lshl_add_u32 v7, v0, 4, s80")
    A(f"v_add_u32 v44, {hex(OOB)}, v7")
    A("s_movk_i32 s26, 136")
    A("v_cmp_gt_u32 vcc, s26, v0")
    A("v_cndmask_b32 v44, v44, v7, vcc")
    srd(A, 32, 4, WS_Y1, SZ_Y1N)
    for ri in range(2):
        for r in range(7):
            A(f"v_cvt_pk_bf16_f32 v{60+7*ri+r}, v{O[0]+8*ri+r}, v{O[1]+8*ri+r}")
            A(f"ds_write_b32 v{4+ri}, v{60+7*ri+r} offset:{(8*(r//4)+r%4)*1024}")
    vm.wait(["fa"])
    flag_check(C, "fa", 244, lambda: fa_ld(C))
    A("s_movk_i32 s26, 4096")
    A("s_movk_i32 s27, 8192")
    A("s_waitcnt lgkmcnt(0)")
    A("s_barrier")
    for n in range(3):
        A(f"ds_read_b128 v[{8+4*n}:{11+4*n}], v6 offset:{4096*n}")
    for n in range(3):
        A(f"s_waitcnt lgkmcnt({2-n})")
        A(f"buffer_store_dwordx4 v[{8+4*n}:{11+4*n}], v{44 if n == 2 else 7}, s[32:35], {['0','s26','s27'][n]} offen {SC}"); vm.issue("y1")
    stamp(A, 10)

NU = 5
L_PREP2 = L_PREP
PD = 40
G_S = [16, 17, 18, 19, 28]
DO_S = [29, 30, 31, 81, 82]
def repack(C):
    A = C.A; vm = C.vm
    A("v_lshrrev_b32 v4, 3, v1")
    A("v_and_b32 v5, 7, v1")
    A("v_bfe_u32 v6, v1, 4, 1")
    A("v_lshrrev_b32 v7, 5, v1")
    A("v_lshlrev_b32 v6, 1, v6")
    A("v_lshl_or_b32 v6, v7, 2, v6")
    A("v_xor_b32 v7, 4, v6")
    A("v_xor_b32 v6, v5, v6")
    A("v_xor_b32 v7, v5, v7")
    A("s_mul_i32 s83, s3, 20480")
    for unit in range(NU):
        B = 36
        prep_params(C, unit, B)
        A(f"s_cmp_eq_u32 s{B}, 0")
        A("s_cselect_b32 s32, s20, s22")
        A("s_cselect_b32 s33, s21, s23")
        A(f"s_cmp_eq_u32 s{B}, 2")
        A("s_cselect_b32 s32, s24, s32")
        A("s_cselect_b32 s33, s25, s33")
        A(f"s_mov_b32 s34, {640*1728*2}")
        A("s_mov_b32 s35, 0x20000")
        A(f"v_mul_lo_u32 v59, v4, s{B+1}")
        A(f"v_lshl_add_u32 v232, v6, 4, v59")
        A(f"v_lshl_add_u32 v233, v7, 4, v59")
        A(f"s_lshl_b32 s27, s{B+1}, 3")
        if OPT.get("xp") in ("nd", "nb"): A(f"s_mov_b32 s{B+2}, {hex(OOB)}")
        for i in range(4):
            A(f"s_add_u32 m0, s83, {L_PREP2 + 4096*unit + 1024*i}")
            A(f"buffer_load_dwordx4 v{232+(i&1)}, s[32:35], s{B+2} offen lds"); vm.issue(("P", unit))
            if i < 3: A(f"s_add_u32 s{B+2}, s{B+2}, s27")
        A(f"s_mov_b32 s{G_S[unit]}, s{B}")
        A(f"s_mov_b32 s{DO_S[unit]}, s{B+3}")
        if OPT.get("xp") in ("ns", "nb"): A(f"s_mov_b32 s{DO_S[unit]}, {hex(OOB)}")
    for base, ga, ja in ((8, 8, 4), (16, 4, 16)):
        A("v_lshrrev_b32 v24, 4, v1")
        A("v_bfe_u32 v25, v1, 2, 2")
        A(f"v_mul_u32_u24 v24, {ga}, v24")
        A("v_add_u32 v24, v24, v25")
        A(f"v_add_u32 v25, {ja}, v24")
        A("v_and_b32 v26, 1, v1")
        A("v_bfe_u32 v27, v1, 1, 1")
        for j, rr in enumerate([24, 25]):
            A(f"v_bfe_u32 v28, v{rr}, 1, 1")
            A(f"v_lshrrev_b32 v29, 2, v{rr}")
            A(f"v_lshrrev_b32 v30, 3, v{rr}")
            A(f"v_xor_b32 v29, v29, v30")
            A(f"v_and_b32 v29, 1, v29")
            A(f"v_lshl_or_b32 v28, v29, 1, v28")
            A(f"v_lshlrev_b32 v28, 1, v28")
            A(f"v_xor_b32 v28, v28, v27")
            A(f"v_lshlrev_b32 v31, 7, v{rr}")
            A(f"v_lshl_add_u32 v31, v26, 3, v31")
            A(f"v_add_u32 v31, s83, v31")
            for tile in range(4):
                A(f"v_xor_b32 v29, {2*tile}, v28")
                A(f"v_lshl_add_u32 v{base+4*j+tile}, v29, 4, v31")
    A("v_lshlrev_b32 v24, 4, v1")
    if OPT.get("yg", "1") == "1":
        srd(A, 44, 4, WS_Y1, SZ_Y1N)
        A(f"v_mul_u32_u24 v25, {BLK}, v0")
        retry_loop(C, lambda: A(f"buffer_load_dword v26, v25, s[44:47], 0 offen offset:{int(OPT.get('ygo', 0))} {LSC}"),
                   lambda: A("v_cmp_eq_u32 vcc, -1, v26"))
    for unit in range(NU):
        g, do = f"s{G_S[unit]}", f"s{DO_S[unit]}"
        L = C.lab("rp")
        A(f"s_cmp_eq_u32 {g}, 2")
        csel(A, "s26", hex(WS_W2), hex(WS_W13))
        csel(A, "s34", hex(SZ_W2P), hex(SZ_W13))
        csel(A, "s27", "1024", "2048")
        A("s_add_u32 s32, s4, s26")
        A("s_addc_u32 s33, s5, 0")
        vm.wait([("P", unit)])
        A(f"s_cmp_eq_u32 {g}, 2")
        A(f"s_cbranch_scc1 {L}")
        for var, base in enumerate((8, 16)):
            if var: A(f"{L}:")
            for tile in range(4):
                for j in range(2):
                    d = PD + 16*unit + 4*tile + 2*j
                    A(f"ds_read_b64_tr_b16 v[{d}:{d+1}], v{base+4*j+tile} offset:{L_PREP2 + 4096*unit}")
            if var == 0: A(f"s_branch {L}_e")
        A(f"{L}_e:")
        for tile in range(4):
            d = PD + 16*unit + 4*tile
            A(f"s_waitcnt lgkmcnt({6-2*tile})")
            A(f"buffer_store_dwordx4 v[{d}:{d+3}], v24, s[32:35], {do} offen {SC}"); vm.issue("ps")
            if tile < 3: A(f"s_add_u32 {do}, {do}, s27")

def cis_table(C, T, out, scale=None, fill=None):
    A = C.A
    WC, WS, BP, ANG, th, k0 = T, T+4, T+8, T+12, T+22, T+23
    A(f"v_add_f32 v{ANG}, v{th}, v{th}")
    A(f"v_mul_f32 v{ANG+1}, {fk(3.0)}, v{th}")
    for j, a in ((1, th), (2, ANG), (3, ANG+1)):
        A(f"v_cos_f32 v{WC+j}, v{a}")
        A(f"v_sin_f32 v{WS+j}, v{a}")
    def base(m):
        b = BP + 2*(m & 1); a = k0
        if m:
            a = ANG + (m & 1)
            A(f"v_fmamk_f32 v{a}, v{th}, {fk(8.0*m)}, v{k0}")
        A(f"v_cos_f32 v{b}, v{a}")
        A(f"v_sin_f32 v{b+1}, v{a}")
        if scale: A(f"v_pk_mul_f32 {pr(b)}, {pr(b)}, {scale} op_sel_hi:[1,0]")
    base(0)
    for m in range(4):
        if m < 3: base(m+1)
        b = BP + 2*(m & 1)
        for jp in range(2):
            r = 4*m + 2*jp
            dc, ds = out(r, None)
            A(f"v_pk_mul_f32 {pr(dc)}, {pr(WC+2*jp)}, {pr(b)} op_sel_hi:[1,0]")
            A(f"v_pk_mul_f32 {pr(ds)}, {pr(WC+2*jp)}, {pr(b)} op_sel:[0,1] op_sel_hi:[1,1]")
            A(f"v_pk_fma_f32 {pr(dc)}, {pr(WS+2*jp)}, {pr(b)}, {pr(dc)} op_sel:[0,1,0] op_sel_hi:[1,1,1] neg_lo:[1,0,0] neg_hi:[1,0,0]")
            A(f"v_pk_fma_f32 {pr(ds)}, {pr(WS+2*jp)}, {pr(b)}, {pr(ds)} op_sel:[0,0,0] op_sel_hi:[1,0,1]")
            out(r, (dc, ds))
        if fill: fill()

NS = int(OPT.get("ns", 4))
NS0 = 4
SLOT = 28*1024
C_LDS = NS0*SLOT
ZP = 1552
Z_OFF = C_LDS
ST_OFF = C_LDS + 8*ZP
STP = 1296
ST_H = ST_OFF + 8*STP
SCRAP = ST_H + 8*STP
M_OFF = SCRAP + 1024
LDS_TOTAL = M_OFF + 8192
B_YST = C_LDS
B_EX1 = C_LDS + 16384
assert B_EX1 + 16384 <= M_OFF

DT = OPT.get("dt", "1") == "1"
def ring_buf(s_):
    if DT: return s_ % 4 if s_ < 9 else 4
    return s_ % NS

def early_setup(C):
    A = C.A
    A("s_lshl_b32 s26, s48, 3")
    A("s_and_b32 s27, s49, 7")
    A("s_add_u32 s26, s26, s27")
    A("s_lshr_b32 s27, s49, 3")
    A("s_lshl_b32 s27, s27, 3")
    A("s_lshl_b32 s50, s3, 1")
    A("s_add_u32 s27, s27, s50")
    A("s_lshl_b32 s27, s27, 6")
    A("s_add_u32 s27, s27, s26")
    A("s_mul_i32 s27, s27, 1280")
    A("v_mul_u32_u24 v249, 40, v2")
    A("v_lshl_add_u32 v249, v3, 3, v249")
    A("v_add_u32 v249, s27, v249")
def hh_setup(C):
    A = C.A
    A("s_lshl_b32 s26, s40, 3")
    A("s_lshl_b32 s27, s3, 1")
    A("s_add_u32 s26, s26, s27")
    A("s_mul_i32 s26, s26, 55296")
    A("s_lshl_b32 s27, s41, 9")
    A("v_lshl_add_u32 v249, v1, 4, s27")
    A(f"v_mov_b32 v241, {hex(OOB)}")
    for i, r in ((3, 254), (2, 251), (1, 250), (0, 249)):
        A("s_mov_b32 s50, 55296")
        if i: A(f"v_add_u32 v{r}, {1024*i}, v249")
        A(f"v_cmp_gt_u32 vcc, s50, v{r}")
        A(f"v_add_u32 v{r}, s26, v{r}")
        if i == 3:
            A("v_cmp_gt_u32 s[50:51], 32, v1")
            A("s_and_b64 vcc, vcc, s[50:51]")
        A(f"v_cndmask_b32 v{r}, v241, v{r}, vcc")
    for q in range(4): A(f"v_accvgpr_write_b32 a{252+q}, -1")
def x_ops(C):
    A = C.A; ops = [lambda: srd(A, 28, 6, 0, SZ_X), lambda: A("s_mov_b32 s81, 81920")]
    for r in range(2):
        for q in range(3):
            def f(r=r, q=q):
                d = 6*r + 2*q
                A(f"buffer_load_dwordx2 a[{d}:{d+1}], v249, s[28:31], {'s81' if r else '0'} offen offset:{16*q}")
                C.vm.issue("X")
            ops.append(f)
    return ops
def hhfill_ops(C):
    A = C.A; ops = [lambda: A("s_mov_b32 s82, 55296")]
    for rt in range(2):
        for r in (249, 250, 251, 254):
            def f(r=r, rt=rt):
                A(f"buffer_store_dwordx4 a[252:255], v{r}, s[24:27], {'s82' if rt else '0'} offen {SC}")
                C.vm.issue("HF")
            f.mem = True
            ops.append(f)
    return ops
def m_ops(C):
    A = C.A; ops = []
    def m0():
        srd(A, 44, 4, WS_MOD, SZ_MOD)
        A("v_lshlrev_b32 v255, 4, v1")
        A("s_lshl_b32 s83, s3, 11")
    ops.append(m0)
    for i in range(2):
        def f(i=i):
            A(f"s_add_u32 m0, s83, {M_OFF + 1024*i}")
            A(f"s_add_u32 s43, s83, {5120 + 1024*i}")
            A(f"buffer_load_dwordx4 v255, s[44:47], s43 offen {LSC} lds")
            C.vm.issue("M")
        ops.append(f)
    return ops
def fw_ld(C):
    A = C.A
    A(f"s_mov_b32 s26, {FW}")
    A(f"buffer_load_dword v253, v252, s[12:15], s26 offen {LSC}")

def phase_b(C):
    A = C.A; vm = C.vm
    Lskip, Ldone = C.lab("b_skip"), C.lab("b_done")
    early_setup(C)
    A(f"v_lshlrev_b32 v252, {FSH}, v0")
    A("s_cmp_gt_u32 s2, 160")
    A(f"s_cbranch_scc1 {Lskip}")
    q_skip = list(vm.q)
    A("s_mul_i32 s20, s48, 20")
    A("s_add_u32 s20, s20, s49")
    A("s_cmp_eq_u32 s2, 160")
    A("s_cselect_b32 s20, 160, s20")
    A("s_lshl_b32 s21, s20, 1")
    A("s_lshr_b32 s22, s3, 1")
    A("s_add_u32 s21, s21, s22")
    A("s_and_b32 s23, s3, 1")
    A("s_lshl_b32 s24, s21, 13")
    A("s_lshl_b32 s25, s23, 12")
    A("s_add_u32 s24, s24, s25")
    srd(A, 36, 4, WS_Z, SZ_COL)
    pend = []
    def fill(k=1):
        for _ in range(k):
            if pend: pend.pop(0)()
    C32, S32, N32 = 40, 48, 56
    C64, S64 = 64, 80
    TWc, TWs = 96, 112
    AR, AI = 128, 144
    Pr, Pi, Pn = 160, 168, 176
    Or, Oi, On = 184, 192, 200
    T2c, T2s = 208, 224
    t0, t1, t2, t3, t4, t5 = 240, 241, 242, 243, 244, 245
    hf, pf, af = 246, 247, 5
    T = 176; TH, K0 = T+22, T+23
    A(f"v_cvt_f32_u32 v{hf}, v3")
    A(f"v_cvt_f32_u32 v{pf}, v2")
    A(f"v_cvt_f32_u32 v{af}, s23")
    A(f"v_mov_b32 v{T}, 1.0")
    A(f"v_mov_b32 v{T+4}, 0")
    def f32out(c, s_): return lambda r, p: (c+r, s_+r)
    def bfout(c, s_, n=None):
        def out(r, p):
            dc = T + 14 + 4*((r >> 1) & 1)
            if p is None: return (dc, dc+2)
            A(f"v_cvt_pk_bf16_f32 v{c + r//2}, v{dc}, v{dc+1}")
            A(f"v_cvt_pk_bf16_f32 v{s_ + r//2}, v{dc+2}, v{dc+3}")
            if n is not None: A(f"v_xor_b32 v{n + r//2}, 0x80008000, v{s_ + r//2}")
        return out
    A("v_lshrrev_b32 v4, 2, v1")
    A("s_lshl_b32 s26, s3, 6")
    A("v_add_u32 v4, s26, v4")
    A("v_and_b32 v6, 3, v1")
    A(f"v_mul_u32_u24 v8, {BLK}, v4")
    A("v_lshl_add_u32 v8, v6, 4, v8")
    A("s_lshl_b32 s26, s20, 6")
    A("v_add_u32 v8, s26, v8")
    A("v_bfe_u32 v7, v4, 1, 2")
    A("v_xor_b32 v7, v7, v6")
    A("v_lshlrev_b32 v9, 6, v4")
    A("v_lshl_add_u32 v9, v7, 4, v9")
    A(f"v_add_u32 v9, {B_YST}, v9")
    A("s_lshl_b32 s26, s23, 5")
    A("v_lshl_add_u32 v11, v3, 6, v2")
    A("v_add_u32 v11, s26, v11")
    A("v_lshlrev_b32 v11, 6, v11")
    A(f"v_add_u32 v11, {B_YST}, v11")
    A("v_bfe_u32 v7, v2, 1, 2")
    A("s_and_b32 s26, s3, 2")
    A("v_xor_b32 v7, s26, v7")
    A("v_xor_b32 v12, 1, v7")
    A("v_lshl_add_u32 v12, v12, 4, v11")
    A("v_lshl_add_u32 v11, v7, 4, v11")
    srd(A, 16, 4, WS_Y1, SZ_Y1N)
    srd(A, 32, 4, WS_WT, SZ_COL)
    YS = [24, 184]; YF = [253, 254]
    def y_loads(k):
        for i in range(4):
            if i: A(f"s_mov_b32 s26, {16*i*BLK}")
            A(f"buffer_load_dwordx4 v[{YS[k]+4*i}:{YS[k]+4*i+3}], v8, s[16:19], {'s26' if i else '0'} offen {LSC}")
        A(f"s_mov_b32 s26, {FW}")
        A(f"buffer_load_dword v{YF[k]}, v252, s[12:15], s26 offen {LSC}")
    def y_test(k):
        fill_test(A, range(YS[k], YS[k]+16), 255)
        if OPT.get("xp") == "nofw": return
        A(f"v_cmp_ne_u32 s[50:51], s{STAG}, v{YF[k]}")
        A("s_or_b64 vcc, vcc, s[50:51]")
    A(f"v_mul_f32 v{TH}, {flit(1/32)}, v{pf}")
    A(f"v_mul_f32 v{K0}, v{TH}, v{hf}")
    A(f"v_mul_f32 v{K0}, 4.0, v{K0}")
    cis_table(C, T, bfout(C32, S32, N32), fill=fill)
    A(f"v_mul_f32 v6, {flit(8.0)}, v{af}")
    A(f"v_add_f32 v6, v6, v{hf}")
    A(f"v_mul_f32 v6, 4.0, v6")
    A(f"v_mul_f32 v{TH}, {flit(1/2048)}, v{pf}")
    A(f"v_mul_f32 v{K0}, v6, v{TH}")
    cis_table(C, T, f32out(TWc, TWs), fill=fill)
    vm.wait(["wts"])
    A("s_barrier")
    flag_store(C, FW, 13, 14)
    A(f"v_mul_f32 v7, {flit(32.0)}, v{af}")
    A(f"v_add_f32 v{t5}, v7, v{pf}")
    A(f"v_mul_f32 v{TH}, {flit(1/64)}, v{t5}")
    A(f"v_mul_f32 v{K0}, v6, v{TH}")
    cis_table(C, T, bfout(C64, S64), fill=fill)
    A("v_and_b32 v7, 1, v2")
    A("v_mul_u32_u24 v7, 0x8000, v7")
    A("v_lshl_or_b32 v7, v7, 16, v7")
    for q in range(8):
        A(f"v_xor_b32 v{C64+8+q}, v7, v{C64+q}")
        A(f"v_xor_b32 v{S64+8+q}, v7, v{S64+q}")
    P2 = OPT.get("p2", "0") == "1"
    if P2: y_loads(0)
    A("s_cmp_eq_u32 s21, 0")
    A("s_cselect_b32 s26, 1, 0")
    A("s_cmp_eq_u32 s21, 320")
    A("s_cselect_b32 s26, 1, s26")
    A("s_cmp_eq_u32 s26, 1")
    csel(A, "s26", hex(f32bits(1.0/(2048*640))), hex(f32bits(2.0/(2048*640))))
    A(f"v_mul_f32 v{TH}, {flit(1/2048)}, v{t5}")
    A(f"v_mul_f32 v{K0}, v{TH}, v{hf}")
    A(f"v_mul_f32 v{K0}, 4.0, v{K0}")
    cis_table(C, T, f32out(T2c, T2s), scale="s[26:27]", fill=fill)
    fill(len(pend))
    stamp(A, 11)
    def y_use(k):
        for i in range(4):
            A(f"ds_write_b128 v9, v[{YS[k]+4*i}:{YS[k]+4*i+3}] offset:{1024*i}")
    if P2:
        y_loads(1)
        poll2(C, [lambda: y_loads(0), lambda: y_loads(1)], [lambda: y_test(0), lambda: y_test(1)], 5, y_use)
    else:
        retry_loop(C, lambda: y_loads(1), lambda: y_test(1))
        cnt(A, 1)
        y_use(1)
    if P2: A("s_waitcnt lgkmcnt(0)")
    A("v_lshlrev_b32 v4, 4, v1")
    A("v_add_u32 v4, s24, v4")
    for j in range(4):
        A(f"buffer_load_dwordx4 v[{24+4*j}:{27+4*j}], v4, s[32:35], 0 offen offset:{j*1024} {LSC}"); vm.issue("wt")
    pend.extend(x_ops(C))
    pend.extend(m_ops(C))
    A("s_waitcnt lgkmcnt(0)")
    A("s_barrier")
    stamp(A, 12)
    A("v_mov_b32 v6, v11")
    A("v_mov_b32 v7, v12")
    for t in range(2):
        for ri in range(2):
            d = 8 + 8*ri + 4*t
            A(f"ds_read_b128 v[{d}:{d+3}], v{6+ri} offset:{t*8192}")
    Xr, Xi = 8, 16
    def mf(d, a, b, first, k=0):
        mf32(A, d, a, b, first); fill(k)
    fill(3)
    for t in range(2):
        A(f"s_waitcnt lgkmcnt({2-2*t})")
        mf(AR, Xr+4*t, C32+4*t, t == 0, 1)
        mf(AI, Xi+4*t, C32+4*t, t == 0, 1)
        mf(AR, Xi+4*t, S32+4*t, False, 1)
        mf(AI, Xr+4*t, N32+4*t, False)
    TA, TB = t0, t2
    def cmul_pack(cr, ci, conj_tw, k=0):
        n1 = "" if not conj_tw else " neg_lo:[1,0,0] neg_hi:[1,0,0]"
        n2 = " neg_lo:[1,0,0] neg_hi:[1,0,0]" if not conj_tw else ""
        for r in range(0, 16, 2):
            A(f"v_pk_mul_f32 {pr(TA)}, {pr(AR+r)}, {pr(cr+r)}")
            A(f"v_pk_mul_f32 {pr(TB)}, {pr(AI+r)}, {pr(cr+r)}")
            A(f"v_pk_fma_f32 {pr(TA)}, {pr(AI+r)}, {pr(ci+r)}, {pr(TA)}{n1}")
            A(f"v_pk_fma_f32 {pr(TB)}, {pr(AR+r)}, {pr(ci+r)}, {pr(TB)}{n2}")
            A(f"v_cvt_pk_bf16_f32 v{Pr+r//2}, v{TA}, v{TA+1}")
            A(f"v_cvt_pk_bf16_f32 v{Pi+r//2}, v{TB}, v{TB+1}")
            fill(k)
    A("s_lshl_b32 s26, s3, 12")
    A(f"s_add_u32 s26, s26, {B_YST}")
    A("s_xor_b32 s27, s26, 0x1000")
    A("v_lshlrev_b32 v6, 4, v1")
    A("v_add_u32 v7, s27, v6")
    A("v_add_u32 v6, s26, v6")
    cmul_pack(TWc, TWs, False, 1)
    def exch(off):
        for g in range(2):
            A(f"ds_write_b128 v6, v[{Pr+4*g}:{Pr+4*g+3}] offset:{off+1024*g}")
            A(f"ds_write_b128 v6, v[{Pi+4*g}:{Pi+4*g+3}] offset:{off+2048+1024*g}")
        A("s_waitcnt lgkmcnt(0)")
        A("s_barrier")
        for g in range(2):
            A(f"ds_read_b128 v[{Or+4*g}:{Or+4*g+3}], v7 offset:{off+1024*g}")
            A(f"ds_read_b128 v[{Oi+4*g}:{Oi+4*g+3}], v7 offset:{off+2048+1024*g}")
    stamp(A, 13)
    vm.wait(["stale"])
    exch(B_EX1 - B_YST)
    for q in range(8): A(f"v_xor_b32 v{Pn+q}, 0x80008000, v{Pr+q}")
    for u in range(2):
        mf(AR, C64+4*u, Pr+4*u, u == 0, 1)
        mf(AI, C64+4*u, Pi+4*u, u == 0)
        mf(AR, S64+4*u, Pi+4*u, False, 1)
        mf(AI, S64+4*u, Pn+4*u, False)
    A("s_waitcnt lgkmcnt(0)")
    for q in range(8): A(f"v_xor_b32 v{On+q}, 0x80008000, v{Or+q}")
    for u in range(2):
        mf(AR, C64+8+4*u, Or+4*u, False)
        mf(AI, C64+8+4*u, Oi+4*u, False)
        mf(AR, S64+8+4*u, Oi+4*u, False)
        mf(AI, S64+8+4*u, On+4*u, False)
    fill(len(pend))
    stamp(A, 14)
    vm.wait(["wt"])
    W0, W1 = 8, 10
    for r in range(0, 16, 2):
        w = 24 + r
        A(f"v_lshlrev_b32 v{W0}, 16, v{w}")
        A(f"v_lshlrev_b32 v{W0+1}, 16, v{w+1}")
        A(f"v_and_b32 v{W1}, 0xffff0000, v{w}")
        A(f"v_and_b32 v{W1+1}, 0xffff0000, v{w+1}")
        A(f"v_pk_mul_f32 {pr(TA)}, {pr(AR+r)}, {pr(W0)}")
        A(f"v_pk_mul_f32 {pr(TB)}, {pr(AI+r)}, {pr(W0)}")
        A(f"v_pk_fma_f32 {pr(TA)}, {pr(AI+r)}, {pr(W1)}, {pr(TA)} neg_lo:[1,0,0] neg_hi:[1,0,0]")
        A(f"v_pk_fma_f32 {pr(TB)}, {pr(AR+r)}, {pr(W1)}, {pr(TB)}")
        A(f"v_cvt_pk_bf16_f32 v{Pr+r//2}, v{TA}, v{TA+1}")
        A(f"v_cvt_pk_bf16_f32 v{Pi+r//2}, v{TB}, v{TB+1}")
    exch(0)
    def ringfill(k): pass
    for q in range(8): A(f"v_xor_b32 v{Pn+q}, 0x80008000, v{Pi+q}")
    def mr(d, a, b, first, k=1):
        mf32(A, d, a, b, first); ringfill(k)
    for u in range(2):
        mr(AR, Pr+4*u, C64+4*u, u == 0)
        mr(AI, Pi+4*u, C64+4*u, u == 0, 0)
        mr(AR, Pn+4*u, S64+4*u, False)
        mr(AI, Pr+4*u, S64+4*u, False, 0)
    A("s_waitcnt lgkmcnt(0)")
    for q in range(8): A(f"v_xor_b32 v{On+q}, 0x80008000, v{Oi+q}")
    for u in range(2):
        mr(AR, Or+4*u, C64+8+4*u, False)
        mr(AI, Oi+4*u, C64+8+4*u, False, 0)
        mr(AR, On+4*u, S64+8+4*u, False)
        mr(AI, Or+4*u, S64+8+4*u, False, 0)
    stamp(A, 15)
    _fill = fill
    def cm2():
        n1 = " neg_lo:[1,0,0] neg_hi:[1,0,0]"
        for r in range(0, 16, 2):
            A(f"v_pk_mul_f32 {pr(TA)}, {pr(AR+r)}, {pr(T2c+r)}")
            A(f"v_pk_mul_f32 {pr(TB)}, {pr(AI+r)}, {pr(T2c+r)}")
            A(f"v_pk_fma_f32 {pr(TA)}, {pr(AI+r)}, {pr(T2s+r)}, {pr(TA)}{n1}")
            A(f"v_pk_fma_f32 {pr(TB)}, {pr(AR+r)}, {pr(T2s+r)}, {pr(TB)}")
            A(f"v_cvt_pk_bf16_f32 v{Pr+r//2}, v{TA}, v{TA+1}")
            A(f"v_cvt_pk_bf16_f32 v{Pi+r//2}, v{TB}, v{TB+1}")
            if r % 4 == 0: ringfill(1)
    cm2()
    for t in range(2):
        mr(AR, C32+4*t, Pr+4*t, t == 0)
        mr(AI, C32+4*t, Pi+4*t, t == 0)
        mr(AR, N32+4*t, Pi+4*t, False)
        mr(AI, S32+4*t, Pr+4*t, False, 0)
    A("v_lshlrev_b32 v4, 5, v2")
    A("v_lshl_add_u32 v4, v3, 4, v4")
    A("v_add_u32 v4, s24, v4")
    vm.wait(["X"])
    for j in range(4):
        for i in range(4):
            r = 4*j+i
            A(f"v_cvt_pk_bf16_f32 v{8+r}, v{AR+r}, v{AI+r}")
        A(f"buffer_store_dwordx4 v[{8+4*j}:{11+4*j}], v4, s[36:39], 0 offen offset:{j*1024} {SC}"); vm.issue("z")
    stamp(A, 16)
    A("s_barrier")
    A(f"s_branch {Ldone}")
    A(f"{Lskip}:")
    vm.q = q_skip
    for f in x_ops(C): f()
    vm.wait(["wts"])
    A("s_barrier")
    flag_store(C, FW, 8, 9)
    repack(C)
    if OPT.get("h2f", "a2") == "r":
        NF = 256 - NB_WG
        A(f"s_sub_u32 s26, s2, {NB_WG}")
        A("s_lshl_b32 s26, s26, 12")
        A("v_lshl_add_u32 v4, v0, 4, s26")
        srd(A, 32, 4, WS_H2P, SZ_H2P)
        for i in range(-(-SZ_H2P // (NF*4096))):
            if i: A(f"s_mov_b32 s26, {i*NF*4096}")
            A(f"buffer_store_dwordx4 a[12:15], v4, s[32:35], {'s26' if i else '0'} offen {SC}"); vm.issue("h2f")
    fw_ld(C); vm.issue("fw")
    vm.wait(["fw"])
    flag_check(C, "fw", 253, lambda: fw_ld(C))
    A("s_barrier")
    flag_store(C, FP, 8, 9)
    for f in m_ops(C): f()
    A(f"{Ldone}:")
    vm.q = []

def w13_ring(C):
    ops = []
    for s_ in range(NS0): ops += w13_ops(C, s_)
    return ops

def fh_offset(C, v, which):
    A = C.A
    A(f"v_min_u32 v{v}, {255 - NB_WG}, v0")
    A(f"v_add_u32 v{v}, {NB_WG + (which >> FSH)}, v{v}")
    A(f"v_lshlrev_b32 v{v}, {FSH}, v{v}")

def d_geometry(C):
    A = C.A
    A("s_and_b32 s40, s48, 1")
    A("s_lshl_b32 s40, s40, 3")
    A("s_and_b32 s41, s49, 7")
    A("s_add_u32 s40, s40, s41")
    A("s_lshr_b32 s41, s48, 1")
    A("s_lshl_b32 s41, s41, 2")
    A("s_lshr_b32 s42, s49, 3")
    A("s_add_u32 s41, s41, s42")
    A("s_mul_i32 s41, s41, 7")
    A("s_lshr_b32 s42, s3, 1")
    A("s_mul_i32 s42, s42, 221184")
    A("s_lshl_b32 s43, s41, 11")
    A("s_add_u32 s42, s42, s43")
    A("s_and_b32 s43, s3, 1")
    A("s_mul_i32 s43, s43, 7168")
    A("s_add_u32 s42, s42, s43")
    if DT:
        A("s_and_b32 s43, s41, 1")
        A("s_lshl_b32 s43, s43, 11")
        A("s_add_u32 s42, s42, s43")
    A("v_lshlrev_b32 v248, 4, v1")
    A("v_add_u32 v248, s42, v248")
    if DT:
        A("s_and_b32 s43, s41, s3")
        A("s_and_b32 s43, s43, 1")
        A("s_mul_i32 s43, s43, 14336")
        A("v_subrev_u32 v255, s43, v248")
    A("s_mul_i32 s42, s3, 7168")

def w13_ops(C, s, SRD=36):
    A = C.A; ops = []
    for i0, n in ((0, 4), (4, 3)):
        def setup(i0=i0):
            A(f"s_add_u32 m0, s42, {ring_buf(s)*SLOT + i0*1024}")
        def setup2(i0=i0):
            A(f"s_mov_b32 s43, {2*s*221184 + i0*1024}")
        ops += [setup, setup2]
        for i in range(n):
            def dma(i=i, i0=i0):
                va = 255 if DT and i0 + i >= 5 else 248
                A(f"buffer_load_dwordx4 v{va}, s[{SRD}:{SRD+3}], s43 offen offset:{i*1024} lds")
                C.vm.issue(("W", s))
            ops.append(dma)
    return ops

def phase_c(C):
    A = C.A; vm = C.vm
    A("s_lshl_b32 s20, s48, 3")
    A("s_and_b32 s21, s49, 7")
    A("s_add_u32 s20, s20, s21")
    A("s_lshr_b32 s21, s49, 3")
    GA, G2, SB = 32, 44, 56
    srd(A, 36, 4, WS_W13, SZ_W13)
    d_geometry(C)
    stamp(A, 17)
    A("s_lshr_b32 s22, s20, 5")
    A("s_lshl_b32 s22, s22, 12")
    A("s_lshl_b32 s23, s21, 10")
    A("s_add_u32 s22, s22, s23")
    A("s_and_b32 s23, s20, 31")
    A("s_lshl_b32 s23, s23, 5")
    A("s_add_u32 s22, s22, s23")
    A("v_and_b32 v4, 1, v1")
    A("v_bfe_u32 v5, v1, 1, 2")
    A("v_lshrrev_b32 v6, 3, v1")
    A("s_lshl_b32 s23, s3, 3")
    A("v_add_u32 v6, s23, v6")
    A("v_lshl_add_u32 v251, v5, 5, v6")
    A("v_lshlrev_b32 v251, 13, v251")
    A("v_lshl_add_u32 v251, v4, 4, v251")
    A("v_add_u32 v251, s22, v251")
    A(f"v_mul_u32_u24 v252, {4*ZP}, v4")
    A("v_mul_u32_u24 v253, 48, v6")
    A("v_add_u32 v252, v252, v253")
    A("v_lshl_add_u32 v252, v5, 2, v252")
    A(f"v_add_u32 v252, {Z_OFF}, v252")
    srd(A, 16, 4, WS_Z, SZ_COL)
    A("s_mov_b32 s24, 0x100000")
    A("s_mov_b32 s25, 0x200000")
    BR, BI, TC, TS, C32, N32 = 92, 100, 108, 124, 140, 148
    t0, t1, t2, t3, t4 = 244, 245, 246, 247, 243
    pf, hf = 249, 250
    A(f"v_cvt_f32_u32 v{pf}, v2")
    A(f"v_cvt_f32_u32 v{hf}, v3")
    A(f"v_mul_f32 v4, {flit(1/20)}, v{pf}")
    A(f"v_mul_f32 v5, v4, v{hf}")
    A(f"v_mul_f32 v5, 4.0, v5")
    A(f"v_mov_b32 v6, 0")
    for st in range(2):
        for q in range(4):
            A(f"v_fmamk_f32 v{t0}, v4, {fk(8*st+q)}, v{5 if st == 0 else 6}")
            A(f"v_cos_f32 v{t1}, v{t0}")
            A(f"v_sin_f32 v{t2}, v{t0}")
            A(f"v_sub_f32 v{t3}, 0, v{t2}")
            A(f"v_cvt_pk_bf16_f32 v{BR+4*st+q}, v{t1}, v{t3}")
            A(f"v_cvt_pk_bf16_f32 v{BI+4*st+q}, v{t2}, v{t1}")
    A("v_cmp_eq_u32 vcc, 0, v3")
    for q in range(4):
        A(f"v_cndmask_b32 v{BR+4+q}, 0, v{BR+4+q}, vcc")
        A(f"v_cndmask_b32 v{BI+4+q}, 0, v{BI+4+q}, vcc")
    A(f"v_mul_f32 v4, {flit(1/640)}, v{pf}")
    A(f"v_mul_f32 v5, v4, v{hf}")
    A(f"v_mul_f32 v5, 4.0, v5")
    for r in range(16):
        A(f"v_fmamk_f32 v{t0}, v4, {fk(8*(r//4)+r%4)}, v5")
        A(f"v_cos_f32 v{TC+r}, v{t0}")
        A(f"v_sin_f32 v{TS+r}, v{t0}")
    A(f"v_mul_f32 v4, {flit(1/32)}, v{pf}")
    A(f"v_mul_f32 v5, v4, v{hf}")
    A(f"v_mul_f32 v5, 4.0, v5")
    for t in range(2):
        for p in range(4):
            for z in range(2):
                e = 2*p+z
                A(f"v_fmamk_f32 v{t0}, v4, {fk(16*t+8*(e>>2)+(e&3))}, v5")
                A(f"v_cos_f32 v{t1+z}, v{t0}")
                A(f"v_sin_f32 v{(t3, t4)[z]}, -v{t0}")
            A(f"v_cvt_pk_bf16_f32 v{C32+4*t+p}, v{t1}, v{t2}")
            A(f"v_cvt_pk_bf16_f32 v{N32+4*t+p}, v{t3}, v{t4}")
    XF = 68
    for q in range(12): A(f"v_accvgpr_read_b32 v{20+q}, a{q}")
    for r in range(2):
        for q in range(6):
            A(f"v_lshlrev_b32 v{XF+12*r+2*q}, 16, v{20+6*r+q}")
            A(f"v_and_b32 v{XF+12*r+2*q+1}, 0xffff0000, v{20+6*r+q}")
    A("v_cmp_eq_u32 vcc, 0, v3")
    for r in range(2):
        for k in range(8, 12): A(f"v_cndmask_b32 v{XF+12*r+k}, 0, v{XF+12*r+k}, vcc")
    A("v_mul_u32_u24 v7, 80, v2")
    A("v_lshl_add_u32 v7, v3, 4, v7")
    A(f"v_add_u32 v7, {M_OFF}, v7")
    stamp(A, 18)
    fh_offset(C, 253, FP)
    def z_loads():
        for m in range(3):
            A(f"buffer_load_dwordx4 v[{8+4*m}:{11+4*m}], v251, s[16:19], {['0','s24','s25'][m]} offen {LSC}")
        A(f"buffer_load_dword v254, v253, s[12:15], 0 offen {LSC}")
    def z_test():
        fill_test(A, range(8, 20), 4)
        A(f"v_cmp_ne_u32 s[50:51], s{STAG}, v254")
        A("s_or_b64 vcc, vcc, s[50:51]")
    retry_loop(C, z_loads, z_test)
    cnt(A, 2)
    for m in range(3):
        for i in range(4):
            A(f"ds_write_b32 v252, v{8+4*m+i} offset:{i*ZP + 16*m}")
    A(f"s_mul_i32 s26, s3, {2*ZP}")
    A(f"s_add_u32 s26, s26, {Z_OFF}")
    A("v_mul_u32_u24 v4, 48, v2")
    A("v_add_u32 v4, s26, v4")
    A("v_lshl_add_u32 v5, v3, 4, v4")
    A("s_waitcnt lgkmcnt(0)")
    A("s_barrier")
    stamp(A, 19)
    FA_ = [[156, 160], [164, 168]]
    for row in range(2):
        A(f"ds_read_b128 v[{FA_[row][0]}:{FA_[row][0]+3}], v5 offset:{row*ZP}")
        A(f"ds_read_b128 v[{FA_[row][1]}:{FA_[row][1]+3}], v4 offset:{row*ZP+32}")
    for base, sec in ((GA, 0), (G2, 2), (SB, 1)):
        for q in range(3):
            A(f"ds_read_b128 v[{base+4*q}:{base+4*q+3}], v7 offset:{sec*2560 + 32*q}")
    ring = w13_ring(C)
    def rf(k=1):
        n = 0
        while ring and n < k:
            q0 = len(vm.q); ring.pop(0)()
            if len(vm.q) > q0: n += 1
    U = [[172, 188], [204, 220]]
    rf(2)
    for st in range(2):
        for row in range(2):
            if st == 0: A(f"s_waitcnt lgkmcnt({9 + (2 if row == 0 else 0)})")
            mf32(A, U[row][0], FA_[row][st], BR+4*st, st == 0)
            rf()
            mf32(A, U[row][1], FA_[row][st], BI+4*st, st == 0)
    A("v_cmp_eq_u32 vcc, 0, v3")
    P = [[156, 164], [8, 236]]
    TA, TB = 20, 22
    for row in range(2):
        ur, ui = U[row]; pr_, pi_ = P[row]
        for r in range(0, 16, 2):
            A(f"v_pk_mul_f32 {pr(TA)}, {pr(ur+r)}, {pr(TC+r)}")
            A(f"v_pk_mul_f32 {pr(TB)}, {pr(ui+r)}, {pr(TC+r)}")
            A(f"v_pk_fma_f32 {pr(TA)}, {pr(ui+r)}, {pr(TS+r)}, {pr(TA)} neg_lo:[1,0,0] neg_hi:[1,0,0]")
            A(f"v_pk_fma_f32 {pr(TB)}, {pr(ur+r)}, {pr(TS+r)}, {pr(TB)}")
            A(f"v_cvt_pk_bf16_f32 v{pr_+r//2}, v{TA}, v{TA+1}")
            A(f"v_cvt_pk_bf16_f32 v{pi_+r//2}, v{TB}, v{TB+1}")
            if r % 4 == 0: rf()
    Y = [172, 204]
    for t in range(2):
        for row in range(2):
            mf32(A, Y[row], P[row][0]+4*t, C32+4*t, t == 0)
            rf()
        for row in range(2):
            mf32(A, Y[row], P[row][1]+4*t, N32+4*t, False)
    A("s_waitcnt lgkmcnt(0)")
    for k in range(8, 12): A(f"v_cndmask_b32 v{GA+k}, 0, v{GA+k}, vcc")
    for row in range(2):
        for k in range(0, 12, 2):
            A(f"v_pk_fma_f32 {pr(XF+12*row+k)}, {pr(GA+k)}, {pr(Y[row]+k)}, {pr(XF+12*row+k)}")
    X2P = 20
    for row in range(2):
        for k in range(6):
            A(f"v_cvt_pk_bf16_f32 v{X2P+6*row+k}, v{XF+12*row+2*k}, v{XF+12*row+2*k+1}")
    A(f"s_mul_i32 s26, s3, {2*STP}")
    A(f"s_add_u32 s26, s26, {ST_OFF}")
    A("v_mul_u32_u24 v4, 40, v2")
    A("v_lshl_add_u32 v4, v3, 3, v4")
    A("v_add_u32 v4, s26, v4")
    A("v_lshlrev_b32 v7, 3, v1")
    A(f"v_add_u32 v7, {SCRAP}, v7")
    A("v_add_u32 v6, 32, v4")
    A("v_cndmask_b32 v5, v7, v6, vcc")
    for row in range(2):
        for q in range(2):
            A(f"ds_write_b64 v4, {pr(X2P+6*row+2*q)} offset:{row*STP + 16*q}")
    A(f"v_add_u32 v6, {STP}, v6")
    A("v_cndmask_b32 v6, v7, v6, vcc")
    A(f"ds_write_b64 v5, {pr(X2P+4)}")
    A(f"ds_write_b64 v6, {pr(X2P+10)}")
    for r in range(2):
        for q in range(6):
            A(f"v_lshlrev_b32 v{XF+12*r+2*q}, 16, v{X2P+6*r+q}") if OPT.get("rx2") else None
            A(f"v_and_b32 v{XF+12*r+2*q+1}, 0xffff0000, v{X2P+6*r+q}") if OPT.get("rx2") else None
    S0, S1, T0, T1 = 32, 34, 36, 38
    def red64(a, b):
        ta, tb = T0, T1
        for ctl in ["quad_perm:[1,0,3,2]", "quad_perm:[2,3,0,1]", "row_ror:4", "row_ror:8"]:
            A(f"v_add_f32_dpp v{a}, v{a}, v{a} {ctl} row_mask:0xf bank_mask:0xf")
            A(f"v_add_f32_dpp v{b}, v{b}, v{b} {ctl} row_mask:0xf bank_mask:0xf")
        for sw in ("v_permlane16_swap_b32", "v_permlane32_swap_b32"):
            A(f"v_mov_b32 v{ta}, v{a}")
            A(f"v_mov_b32 v{tb}, v{b}")
            A(f"{sw} v{a}, v{ta}")
            A(f"{sw} v{b}, v{tb}")
            A(f"v_add_f32 v{a}, v{a}, v{ta}")
            A(f"v_add_f32 v{b}, v{b}, v{tb}")
    S = [S0, S1]
    for k in range(0, 12, 2):
        for row in range(2):
            x = XF+12*row+k
            if k == 0: continue
            if k == 2: A(f"v_pk_add_f32 {pr(S[row])}, {pr(x-2)}, {pr(x)}")
            else: A(f"v_pk_add_f32 {pr(S[row])}, {pr(S[row])}, {pr(x)}")
    for row in range(2): A(f"v_add_f32 v{S[row]}, v{S[row]}, v{S[row]+1}")
    rf(2)
    red64(S0, S1)
    rf(2)
    for row in range(2):
        A(f"v_mul_f32 v{S[row]}, {flit(1/640)}, v{S[row]}")
        A(f"v_cndmask_b32 v{S[row]+1}, 0, v{S[row]}, vcc")
    for k in range(0, 12, 2):
        for row in range(2):
            x = XF+12*row+k
            sel = "op_sel_hi:[1,0]" if k < 8 else "op_sel:[0,1] op_sel_hi:[1,1]"
            A(f"v_pk_add_f32 {pr(x)}, {pr(x)}, {pr(S[row])} {sel} neg_lo:[0,1] neg_hi:[0,1]")
    V = [40, 42]
    for k in range(0, 12, 2):
        for row in range(2):
            x = XF+12*row+k
            if k == 0: A(f"v_pk_mul_f32 {pr(V[row])}, {pr(x)}, {pr(x)}")
            else: A(f"v_pk_fma_f32 {pr(V[row])}, {pr(x)}, {pr(x)}, {pr(V[row])}")
    for row in range(2): A(f"v_add_f32 v{V[row]}, v{V[row]}, v{V[row]+1}")
    rf(2)
    red64(V[0], V[1])
    rf(99)
    for row in range(2):
        A(f"v_mov_b32 v{S[row]}, {flit(1e-5)}")
        A(f"v_fmac_f32 v{S[row]}, {flit(1/640)}, v{V[row]}")
    for row in range(2): A(f"v_rsq_f32 v{S[row]}, v{S[row]}")
    for k in range(0, 12, 2):
        for row in range(2):
            x = XF+12*row+k
            A(f"v_pk_mul_f32 {pr(x)}, {pr(x)}, {pr(S[row])} op_sel_hi:[1,0]")
        for row in range(2):
            x = XF+12*row+k
            A(f"v_pk_fma_f32 {pr(x)}, {pr(x)}, {pr(G2+k)}, {pr(SB+k)}")
    H2P_ = 8
    for row in range(2):
        for k in range(6):
            A(f"v_cvt_pk_bf16_f32 v{H2P_+6*row+k}, v{XF+12*row+2*k}, v{XF+12*row+2*k+1}")
    HO = ST_H - ST_OFF
    for row in range(2):
        for q in range(2):
            A(f"ds_write_b64 v4, {pr(H2P_+6*row+2*q)} offset:{HO + row*STP + 16*q}")
    A(f"v_subrev_u32 v7, {HO}, v7")
    A(f"v_add_u32 v36, 32, v4")
    A(f"v_cndmask_b32 v37, v7, v36, vcc")
    A(f"v_add_u32 v36, {STP}, v36")
    A(f"v_cndmask_b32 v36, v7, v36, vcc")
    A(f"ds_write_b64 v37, {pr(H2P_+4)} offset:{HO}")
    A(f"ds_write_b64 v36, {pr(H2P_+10)} offset:{HO}")
    A("v_and_b32 v4, 7, v0")
    A("v_lshrrev_b32 v5, 3, v0")
    A(f"v_mul_u32_u24 v6, {STP}, v4")
    A("v_lshl_add_u32 v6, v5, 4, v6")
    A(f"v_add_u32 v6, {ST_H}, v6")
    A("s_lshl_b32 s26, s48, 4")
    A("s_lshr_b32 s27, s49, 1")
    A("s_add_u32 s26, s26, s27")
    A("s_mul_i32 s26, s26, 20480")
    A("s_and_b32 s27, s49, 1")
    A("s_lshl_b32 s27, s27, 7")
    A("s_add_u32 s26, s26, s27")
    A("v_lshlrev_b32 v5, 8, v5")
    A("v_lshl_add_u32 v5, v4, 4, v5")
    A("v_add_u32 v5, s26, v5")
    A("v_lshrrev_b32 v4, 5, v0")
    A(f"v_mul_u32_u24 v7, {STP}, v4")
    A("v_lshl_add_u32 v7, v2, 4, v7")
    A(f"v_add_u32 v7, {ST_OFF}, v7")
    A("s_lshl_b32 s26, s21, 9")
    A("s_add_u32 s26, s26, s20")
    A("s_mul_i32 s26, s26, 1280")
    A("v_mul_u32_u24 v4, 81920, v4")
    A("v_lshl_add_u32 v4, v2, 4, v4")
    A("v_add_u32 v252, s26, v4")
    A(f"v_add_u32 v253, {hex(OOB)}, v252")
    A("v_cmp_gt_u32 vcc, 16, v2")
    A("v_cndmask_b32 v253, v253, v252, vcc")
    A(f"v_add_u32 v37, {hex(OOB)}, v5")
    A("s_cmp_lt_u32 s3, 2")
    A("s_cselect_b64 vcc, -1, 0")
    A("v_cndmask_b32 v37, v37, v5, vcc")
    srd(A, 16, 4, WS_H2P, SZ_H2P)
    srd(A, 28, 4, WS_X2, SZ_X)
    A("s_waitcnt lgkmcnt(0)")
    A("s_barrier")
    for i in range(3):
        A(f"ds_read_b128 v[{8+4*i}:{11+4*i}], v6 offset:{512*i}")
    for i in range(3):
        dst = f"a[{X2A+4*i}:{X2A+4*i+3}]" if xlate() else f"v[{216+4*i}:{219+4*i}]"
        A(f"ds_read_b128 {dst}, v7 offset:{512*i}")
    A("s_movk_i32 s26, 8192")
    A("s_movk_i32 s27, 16384")
    for i in range(3):
        A(f"s_waitcnt lgkmcnt({5-i})")
        A(f"buffer_store_dwordx4 v[{8+4*i}:{11+4*i}], v{37 if i == 2 else 5}, s[16:19], {['0','s26','s27'][i]} offen {SC}"); vm.issue("st")
    stamp(A, 20)

D_LA = 6
RA = 8
RB = 10
def e_geometry(C):
    A = C.A
    A("s_lshr_b32 s44, s48, 1")
    A("s_lshl_b32 s44, s44, 3")
    A("s_and_b32 s45, s49, 7")
    A("s_add_u32 s44, s44, s45")
    A("s_and_b32 s45, s48, 1")
    A("s_lshl_b32 s45, s45, 2")
    A("s_lshr_b32 s46, s49, 3")
    A("s_add_u32 s45, s45, s46")
    A("s_mul_i32 s46, s3, 14")
    A("s_mul_i32 s47, s46, 40960")
    A("s_mul_i32 s51, s45, 5120")
    A("s_add_u32 s47, s47, s51")
    A("v_lshlrev_b32 v246, 4, v1")
    A("v_add_u32 v246, s47, v246")
    A("v_add_u32 v247, 4096, v246")

NST = 14
def xlate(): return OPT.get("xl", "1") == "1" and OPT.get("dp", "1") == "1"
X2A = 240
def wfrag(st, p):
    k = st*5 + p
    if k < 64: return ("a", 4*k)
    return ("v", 152 + 4*(k-64))
def w2_ops(C, SRD=32):
    A = C.A; ops = []
    for st in range(NST):
        def setup(st=st):
            A(f"s_mov_b32 s51, {st*40960}")
        ops.append(setup)
        for p in range(5):
            def ld(st=st, p=p):
                k, r = wfrag(st, p)
                if p < 4: A(f"buffer_load_dwordx4 {k}[{r}:{r+3}], v246, s[{SRD}:{SRD+3}], s51 offen offset:{1024*p}")
                else: A(f"buffer_load_dwordx4 {k}[{r}:{r+3}], v247, s[{SRD}:{SRD+3}], s51 offen")
                C.vm.issue(("W2", st))
            ld.mem = True
            ops.append(ld)
    return ops

def phase_d(C):
    A = C.A; vm = C.vm
    ACC, AR, BR = 8, 120, 152
    VL, VB = 232, 237
    e_geometry(C)
    srd(A, 32, 4, WS_W2, SZ_W2P)
    w2 = w2_ops(C)
    NPRE = int(OPT.get("w2pre", 36))
    for _ in range(NPRE): w2.pop(0)()
    A("s_lshl_b32 s20, s40, 3")
    A("s_lshl_b32 s21, s3, 1")
    A("s_add_u32 s20, s20, s21")
    A("v_lshlrev_b32 v4, 4, v1")
    A("s_mul_i32 s21, s20, 20480")
    A(f"v_add_u32 v{VB}, s21, v4")
    A(f"v_add_u32 v{VB+1}, 20480, v{VB}")
    for b in range(NS):
        A(f"v_add_u32 v{VL+b}, {b*SLOT}, v4") if b else A(f"v_mov_b32 v{VL}, v4")
    hh_setup(C)
    srd(A, 16, 4, WS_H2P, SZ_H2P)
    srd(A, 24, 4, WS_HH, SZ_HH)
    bstate = {}
    BACC = 239
    def b_regs(t): return range(BR + (t % RB)*8, BR + (t % RB)*8 + 8)
    def b_ops(t):
        ops = []
        if t % 4 == 0:
            ops.append(lambda t=t: A(f"s_movk_i32 s22, {t*1024}"))
        for rt in range(2):
            def f(t=t, rt=rt):
                if t >= RB: assert bstate.get(t-RB), ("B ring WAR", t)
                r = BR + (t % RB)*8 + 4*rt
                A(f"buffer_load_dwordx4 v[{r}:{r+3}], v{VB+rt}, s[16:19], s22 offen offset:{(t%4)*1024} {LSC}")
                vm.issue(("B", t))
            ops.append(f)
        return ops
    def b_reload(ts):
        def f():
            for t in ts:
                A(f"s_movk_i32 s54, {t*1024}")
                for rt in range(2):
                    r = BR + (t % RB)*8 + 4*rt
                    A(f"buffer_load_dwordx4 v[{r}:{r+3}], v{VB+rt}, s[16:19], s54 offen {LSC}")
        return f
    NB0 = 8
    NPOLL = 3
    def b_loads():
        b_reload(range(NPOLL))()
    def b_test():
        fill_test(A, [r for t in range(NPOLL) for r in b_regs(t)], BACC)
    SPEC = OPT.get("dspec", "1") == "1"
    if SPEC:
        retry_loop(C, b_loads, b_test, spec=b_reload(range(NPOLL, NB0)), tags=[("B", t) for t in range(NPOLL, NB0) for _ in range(2)])
    else:
        retry_loop(C, b_loads, b_test)
    cnt(A, 3)
    A("s_waitcnt lgkmcnt(0)")
    if NS == 4 and OPT.get("dbar", "1") == "1" or NS == 5 or True:
        A("s_barrier")
    stamp(A, 21)
    A("s_movk_i32 s22, 0")
    if not SPEC:
        for t in range(NPOLL, NB0):
            for f in b_ops(t): f()
    else:
        A(f"s_movk_i32 s22, {((NB0 - 1)//4)*4096}")
    XLATE = xlate()
    def x2_store(i):
        src = f"a[{X2A+4*i}:{X2A+4*i+3}]" if XLATE else f"v[{216+4*i}:{219+4*i}]"
        A(f"buffer_store_dwordx4 {src}, v{253 if i == 2 else 252}, s[28:31], 0 offen offset:{512*i} {SC}"); vm.issue("st")
    x2o = []
    for i in range(3):
        f = lambda i=i: x2_store(i)
        x2o.append(f)
    def mk(f):
        def g(): f()
        g.mem = True
        return g
    x2o = [mk(f) for f in x2o]
    if not XLATE:
        for f in x2o: f()
        x2o = []
    NF = 280; NSL = 10
    pending = []
    hhf = hhfill_ops(C)
    def lds_read(n):
        t, i = divmod(n, 14)
        s_ = t >> 1
        r = AR + (n % RA)*4
        A(f"ds_read_b128 v[{r}:{r+3}], v{VL + s_ % NS} offset:{((t & 1)*14 + i)*1024}")
    left = 77 - NPRE
    if OPT.get("dp", "1") == "0":
        W2_SCHED = {}
        for s_, cap in ((5, 5), (6, 5), (7, 5), (8, 13), (9, 13)):
            k = min(cap, left); W2_SCHED[s_] = k; left -= k
        def enter_slot(s_):
            if s_ >= NS: vm.wait([("W", s_)])
            A("s_barrier")
            if s_ >= 2 and s_ + NS - 2 < NSL:
                pending.extend(w13_ops(C, s_ + NS - 2))
            for _ in range(W2_SCHED.get(s_, 0)): pending.append(w2.pop(0))
            if s_ in (2, 3):
                for _ in range(5 if s_ == 2 else 4): pending.append(hhf.pop(0))
            if s_ == 7: flag_store(C, FX, 4, 5)
        def filler(k=1):
            for _ in range(k):
                if pending: pending.pop(0)()
        for t in range(NB0, RB): pending.extend(b_ops(t))
        for n in range(D_LA): lds_read(n)
        A(f"s_waitcnt lgkmcnt({D_LA-1})")
        for n in range(NF):
            t, i = divmod(n, 14)
            if i == 0 and NPOLL <= t + 1 < 20:
                vm.wait([("B", t+1)])
                pending[0:0] = check_ops(C, b_reload([t+1]), b_regs(t+1), BACC)
            a = AR + (n % RA)*4
            def mm(rt):
                c = ACC + (i*2 + rt)*4
                b = BR + (t % RB)*8 + 4*rt
                src = "0" if t == 0 else f"v[{c}:{c+3}]"
                A(f"v_mfma_f32_16x16x32_bf16 v[{c}:{c+3}], v[{a}:{a+3}], v[{b}:{b+3}], {src}")
            mm(0)
            nn = n + D_LA
            if nn < NF:
                if nn % 28 == 0: enter_slot(nn // 28)
                lds_read(nn)
            filler(1)
            mm(1)
            if i == 13:
                bstate[t] = True
                if t + RB < 20: pending.extend(b_ops(t + RB))
            if n + 1 < NF:
                rem = min(NF - 1 - (n+1), D_LA - 1)
                A(f"s_waitcnt lgkmcnt({rem})")
            filler(1)
    else:
        PER = int(OPT.get("dper", 2))
        sched = OPT.get("dsch", "G")
        vq = []
        def take(lst, k):
            out = []
            while lst and k > 0:
                f = lst.pop(0); out.append(f)
                if getattr(f, "mem", False): k -= 1
            return out
        w2a = [w2.pop(0) for _ in range(left)]
        SCH = {"B":  [(0, 4, 3), (0, 4, 0), (0, 0, 0), (0, 0, 0), (0, 0, 0), (3, 0, 0), (5, 0, 0), (5, 0, 0), (12, 0, 0), (12, 0, 0)],
               "C":  [(0, 0, 0), (0, 0, 0), (0, 0, 3), (0, 3, 0), (0, 3, 0), (0, 2, 0), (5, 0, 0), (5, 0, 0), (12, 0, 0), (12, 0, 0)],
               "D":  [(0, 0, 0), (0, 3, 3), (0, 2, 0), (0, 3, 0), (0, 0, 0), (3, 0, 0), (5, 0, 0), (5, 0, 0), (12, 0, 0), (12, 0, 0)],
               "E":  [(0, 0, 0), (0, 0, 0), (0, 0, 0), (0, 2, 1), (0, 2, 1), (0, 2, 1), (4, 2, 0), (6, 0, 0), (12, 0, 0), (12, 0, 0)],
               "F":  [(0, 0, 0), (4, 0, 0), (0, 0, 0), (0, 2, 1), (0, 2, 1), (0, 2, 1), (4, 2, 0), (6, 0, 0), (10, 0, 0), (10, 0, 0)],
               "G":  [(0, 2, 0), (0, 2, 0), (0, 1, 0), (0, 2, 0), (0, 1, 0), (0, 0, 2), (3, 0, 1), (5, 0, 0), (13, 0, 0), (13, 0, 0)],
               "H":  [(0, 1, 0), (0, 2, 0), (0, 1, 0), (0, 2, 0), (0, 1, 0), (0, 1, 1), (2, 0, 2), (6, 0, 0), (13, 0, 0), (13, 0, 0)],
               "I":  [(0, 2, 0), (0, 2, 0), (0, 2, 0), (0, 2, 0), (0, 0, 2), (3, 0, 1), (5, 0, 0), (5, 0, 0), (12, 0, 0), (12, 0, 0)],
               "J":  [(0, 0, 3), (0, 2, 0), (0, 2, 0), (0, 2, 0), (0, 2, 0), (3, 0, 0), (5, 0, 0), (5, 0, 0), (12, 0, 0), (12, 0, 0)],
               }[sched]
        FXS = int(OPT.get("fxs", {"B": 7, "C": 8, "D": 7, "E": 9, "F": 9, "G": 9, "H": 9, "I": 8, "J": 8}[sched]))
        def slot_ops(s_):
            ops = []
            if NS == 5 and s_ == 0: ops += w13_ops(C, 4)
            if s_ >= 2 and s_ + NS - 2 < NSL: ops += w13_ops(C, s_ + NS - 2)
            k2, kf, kx = SCH[s_]
            ops += take(x2o, kx)
            ops += take(hhf, kf)
            ops += take(w2a, k2)
            return ops
        def enter_slot(s_):
            if s_ >= NS0:
                assert vm.all.count(("W", s_)) == 7, ("ring slot not issued", s_)
                vm.wait([("W", s_)])
            if s_ == FXS:
                assert not hhf and not x2o, "fills pending"
                assert vm.all.count("HF") == 8
                vm.wait(["HF", "st"])
            A("s_barrier")
            if OPT.get("est") == "2": A(f"s_memtime s[{56+2*s_}:{57+2*s_}]")
            vq.extend(slot_ops(s_))
            if s_ == FXS:
                flag_store(C, FX, 4, 5)
        def vpop():
            q0 = vm.n_issued
            while vq and vm.n_issued == q0: vq.pop(0)()
        def filler():
            if pending: pending.pop(0)()
        for t in range(NB0, RB): vq.extend(b_ops(t))
        vq.extend(slot_ops(0))
        if OPT.get("est") == "2": A(f"s_memtime s[56:57]")
        for n in range(D_LA): lds_read(n)
        A(f"s_waitcnt lgkmcnt({D_LA-1})")
        for n in range(NF):
            t, i = divmod(n, 14)
            if i == 0 and NPOLL <= t + 1 < 20:
                assert vm.all.count(("B", t+1)) == 2, t
                vm.wait([("B", t+1)])
                pending[0:0] = check_ops(C, b_reload([t+1]), b_regs(t+1), BACC)
            a = AR + (n % RA)*4
            def mm(rt):
                c = ACC + (i*2 + rt)*4
                b = BR + (t % RB)*8 + 4*rt
                src = "0" if t == 0 else f"v[{c}:{c+3}]"
                A(f"v_mfma_f32_16x16x32_bf16 v[{c}:{c+3}], v[{a}:{a+3}], v[{b}:{b+3}], {src}")
            mm(0)
            nn = n + D_LA
            if nn < NF:
                if nn % 28 == 0: enter_slot(nn // 28)
                lds_read(nn)
            filler()
            mm(1)
            if i == 13:
                assert not pending
                bstate[t] = True
                if t + RB < 20: vq[0:0] = b_ops(t + RB)
            if n + 1 < NF:
                rem = min(NF - 1 - (n+1), D_LA - 1)
                A(f"s_waitcnt lgkmcnt({rem})")
            if n % PER == PER - 1 and vq: vpop()
            else: filler()
        pending = pending + vq + w2a
    stamp(A, 22)
    rest = pending + w2
    A("s_mul_i32 s21, s20, 55296")
    A("v_lshlrev_b32 v4, 4, v1")
    A(f"v_add_u32 v{VB}, s21, v4")
    A(f"v_add_u32 v{VB+1}, 55296, v{VB}")
    A("s_lshr_b32 s22, s41, 1")
    A("s_lshl_b32 s22, s22, 10")
    for f in rest: f()
    A("s_lshr_b32 s21, s44, 1")
    A("s_lshr_b32 s50, s21, 3")
    A("s_and_b32 s21, s21, 7")
    A("s_lshl_b32 s21, s21, 3")
    A("s_add_u32 s21, s21, s50")
    A("v_and_b32 v252, 3, v1")
    A("v_lshlrev_b32 v252, 6, v252")
    A("v_bfe_u32 v253, v1, 2, 2")
    A("v_lshl_add_u32 v252, v253, 1, v252")
    A("v_add_u32 v252, s21, v252")
    A("s_and_b32 s21, s44, 3")
    A("s_lshl_b32 s21, s21, 6")
    A("s_lshr_b32 s50, s44, 2")
    A("s_add_u32 s21, s21, s50")
    A("v_and_b32 v253, 7, v1")
    A("v_lshl_add_u32 v253, v253, 3, s21")
    A("v_cmp_gt_u32 vcc, 16, v1")
    A("v_cndmask_b32 v252, v253, v252, vcc")
    A(f"v_add_u32 v252, {FX >> FSH}, v252")
    A(f"v_lshlrev_b32 v252, {FSH}, v252")
    def fx_ld(): A(f"buffer_load_dword v253, v252, s[12:15], 0 offen {LSC}")
    fx_ld(); vm.issue("fx")
    T = 120
    NL = flit(-math.log2(math.e))
    A(f"v_mov_b32 v6, {NL}")
    def swiglu(ft, rt, dst):
        g = ACC + ((2*ft)*2 + rt)*4
        u = ACC + ((2*ft+1)*2 + rt)*4
        t = T + 4*rt
        for r in (0, 2): A(f"v_pk_mul_f32 {pr(t+r)}, {pr(g+r)}, {pr(6)} op_sel_hi:[1,0]")
        for r in range(4): A(f"v_exp_f32 v{t+r}, v{t+r}")
        for r in (0, 2): A(f"v_pk_mul_f32 {pr(g+r)}, {pr(g+r)}, {pr(u+r)}")
        for r in (0, 2): A(f"v_pk_add_f32 {pr(t+r)}, {pr(t+r)}, 1.0 op_sel_hi:[1,0]")
        for r in range(4): A(f"v_rcp_f32 v{t+r}, v{t+r}")
        for r in (0, 2): A(f"v_pk_mul_f32 {pr(g+r)}, {pr(g+r)}, {pr(t+r)}")
        A(f"v_cvt_pk_bf16_f32 v{dst}, v{g}, v{g+1}")
        A(f"v_cvt_pk_bf16_f32 v{dst+1}, v{g+2}, v{g+3}")
    Lodd, Ldone = C.lab("d_odd"), C.lab("d_done")
    A("v_lshlrev_b32 v4, 3, v1")
    A(f"v_sub_u32 v4, v{VB}, v4")
    A("v_add_u32 v5, 55296, v4")
    A("s_cmp_eq_u32 s41, 105")
    A(f"s_cselect_b32 s23, {hex(OOB)}, s22")
    A("s_bitcmp1_b32 s41, 0")
    A(f"s_cbranch_scc1 {Lodd}")
    OUTR = 128
    def variant(odd):
        groups = ([(0,)] + [(1,2),(3,4),(5,6)]) if odd else ([(0,1),(2,3),(4,5)] + [(6,)])
        for gi, grp in enumerate(groups):
            for rt in range(2):
                o = OUTR + 4*((2*gi + rt) % 4)
                if len(grp) == 2:
                    swiglu(grp[0], rt, o); swiglu(grp[1], rt, o+2)
                    so = "s23" if (odd and gi >= 2) else "s22"
                    A(f"buffer_store_dwordx4 v[{o}:{o+3}], v{VB+rt}, s[24:27], {so} offen offset:{1024*gi} {SC}")
                else:
                    swiglu(grp[0], rt, o)
                    A(f"buffer_store_dwordx2 v[{o}:{o+1}], v{4+rt}, s[24:27], s22 offen offset:{1024*gi + (512 if odd else 0)} {SC}")
    variant(False)
    A(f"s_branch {Ldone}")
    A(f"{Lodd}:")
    variant(True)
    A(f"{Ldone}:")
    A("s_waitcnt vmcnt(8)")
    Lfx = C.lab("fx")
    A(f"v_cmp_ne_u32 vcc, s{STAG}, v253")
    A(f"s_cbranch_vccnz {Lfx}")
    A(f"{Lfx}_b:")
    def tail():
        A(f"{Lfx}:")
        retry_loop(C, fx_ld, lambda: A(f"v_cmp_ne_u32 vcc, s{STAG}, v253"))
        A(f"s_branch {Lfx}_b")
    C.tail.append(tail)
    vm.q = []
    stamp(A, 23)

def phase_d2(C):
    A = C.A; vm = C.vm
    ACC, AR, BR = 8, 120, 152
    VL, VB = 232, 237
    e_geometry(C)
    srd(A, 32, 4, WS_W2, SZ_W2P)
    w2 = w2_ops(C)
    NPRE = int(OPT.get("w2pre", 36))
    for _ in range(NPRE): w2.pop(0)()
    A("s_lshl_b32 s20, s40, 3")
    A("s_lshl_b32 s21, s3, 1")
    A("s_add_u32 s20, s20, s21")
    A("v_lshlrev_b32 v4, 4, v1")
    A("s_mul_i32 s21, s20, 20480")
    A(f"v_add_u32 v{VB}, s21, v4")
    A(f"v_add_u32 v{VB+1}, 20480, v{VB}")
    for b in range(5):
        A(f"v_add_u32 v{VL+b}, {b*SLOT}, v4") if b else A(f"v_mov_b32 v{VL}, v4")
    hh_setup(C)
    srd(A, 16, 4, WS_H2P, SZ_H2P)
    srd(A, 24, 4, WS_HH, SZ_HH)
    bstate = {}
    BACC = 239
    def b_regs(t): return range(BR + (t % RB)*8, BR + (t % RB)*8 + 8)
    def b_ops(t):
        ops = []
        if t % 4 == 0:
            ops.append(lambda t=t: A(f"s_movk_i32 s22, {t*1024}"))
        for rt in range(2):
            def f(t=t, rt=rt):
                if t >= RB: assert bstate.get(t-RB), ("B ring WAR", t)
                r = BR + (t % RB)*8 + 4*rt
                A(f"buffer_load_dwordx4 v[{r}:{r+3}], v{VB+rt}, s[16:19], s22 offen offset:{(t%4)*1024} {LSC}")
                vm.issue(("B", t))
            ops.append(f)
        return ops
    def b_reload(ts):
        def f():
            for t in ts:
                A(f"s_movk_i32 s54, {t*1024}")
                for rt in range(2):
                    r = BR + (t % RB)*8 + 4*rt
                    A(f"buffer_load_dwordx4 v[{r}:{r+3}], v{VB+rt}, s[16:19], s54 offen {LSC}")
        return f
    NB0 = 8
    NPOLL = 3
    retry_loop(C, b_reload(range(NPOLL)), lambda: fill_test(A, [r for t in range(NPOLL) for r in b_regs(t)], BACC),
               spec=b_reload(range(NPOLL, NB0)), tags=[("B", t) for t in range(NPOLL, NB0) for _ in range(2)])
    cnt(A, 3)
    A("s_waitcnt lgkmcnt(0)")
    A("s_barrier")
    stamp(A, 21)
    def mk(f):
        f.mem = True
        return f
    x2o = []
    for i in range(3):
        def x2_store(i=i):
            A(f"buffer_store_dwordx4 a[{X2A+4*i}:{X2A+4*i+3}], v{253 if i == 2 else 252}, s[28:31], 0 offen offset:{512*i} {SC}"); vm.issue("st")
        x2o.append(mk(x2_store))
    NF = 280; NT = 224
    def nt(n):
        if n < NT: return divmod(n, 14)
        k, r = divmod(n - NT, 8)
        return 16 + r//2, 2*k + (r & 1)
    pending = []
    hhf = hhfill_ops(C)
    def lds_read(n):
        t, i = nt(n)
        r = AR + (n % RA)*4
        A(f"ds_read_b128 v[{r}:{r+3}], v{VL + ring_buf(t >> 1)} offset:{((t & 1)*14 + i)*1024}")
    PER = int(OPT.get("dper", 2))
    vq = []
    def take(lst, k):
        out = []
        while lst and k > 0:
            f = lst.pop(0); out.append(f)
            if getattr(f, "mem", False): k -= 1
        return out
    SCH = {"A": [(0, 2, 0), (0, 2, 0), (0, 1, 0), (0, 2, 0), (0, 1, 1), (3, 0, 2), (7, 0, 0), (14, 0, 0), (14, 0, 0)],
           "B": [(0, 2, 0), (0, 1, 0), (0, 1, 0), (0, 2, 0), (0, 2, 0), (0, 0, 3), (7, 0, 0), (14, 0, 0), (14, 0, 0)],
           "C": [(0, 3, 0), (0, 0, 0), (0, 2, 0), (0, 2, 0), (0, 1, 1), (2, 0, 2), (7, 0, 0), (14, 0, 0), (10, 0, 0)],
           }[OPT.get("dsch2", "B")]
    S9 = int(OPT.get("s9", 1))
    def slot_ops(s_):
        ops = []
        if s_ == S9: ops += w13_ops(C, 9)
        if 2 <= s_ <= 6: ops += w13_ops(C, s_ + 2)
        k2, kf, kx = SCH[s_]
        ops += take(x2o, kx)
        ops += take(hhf, kf)
        if s_ < 7: assert NPRE//6*5 + NPRE % 6 + sum(q[0] for q in SCH[:s_+1]) <= 60
        ops += take(w2, k2)
        if OPT.get("xq") == "now2" and s_ >= 6: w2.clear()
        return ops
    def enter_slot(s_):
        if s_ >= NS0:
            for z in ((s_,) if s_ < 8 else (8, 9)):
                assert vm.all.count(("W", z)) == 7, ("ring slot not issued", z)
            vm.wait([("W", s_)] if s_ < 8 else [("W", 8), ("W", 9)])
        if s_ == 8:
            assert not hhf and not x2o, "fills pending"
            assert vm.all.count("HF") == 8
            vm.wait(["HF", "st"])
        A("s_barrier")
        if OPT.get("est") == "2": A(f"s_memtime s[{56+2*s_}:{57+2*s_}]")
        vq.extend(slot_ops(s_))
        if s_ == 8: flag_store(C, FX, 4, 5)
    def vpop():
        q0 = vm.n_issued
        while vq and vm.n_issued == q0: vq.pop(0)()
    T, OUTR = 176, 184
    fin = []
    def emit(x): fin.append(lambda x=x: A(x))
    def fin_setup():
        emit("s_mul_i32 s21, s20, 55296")
        emit("v_lshlrev_b32 v4, 4, v1")
        emit(f"v_add_u32 v{VB}, s21, v4")
        emit(f"v_add_u32 v{VB+1}, 55296, v{VB}")
        for x in ("s_lshr_b32 s21, s44, 1",
                  "s_lshr_b32 s50, s21, 3",
                  "s_and_b32 s21, s21, 7",
                  "s_lshl_b32 s21, s21, 3",
                  "s_add_u32 s21, s21, s50",
                  "v_and_b32 v252, 3, v1",
                  "v_lshlrev_b32 v252, 6, v252",
                  "v_bfe_u32 v253, v1, 2, 2",
                  "v_lshl_add_u32 v252, v253, 1, v252",
                  "v_add_u32 v252, s21, v252",
                  "s_and_b32 s21, s44, 3",
                  "s_lshl_b32 s21, s21, 6",
                  "s_lshr_b32 s50, s44, 2",
                  "s_add_u32 s21, s21, s50",
                  "v_and_b32 v253, 7, v1",
                  "v_lshl_add_u32 v253, v253, 3, s21",
                  "v_cmp_gt_u32 vcc, 16, v1",
                  "v_cndmask_b32 v252, v253, v252, vcc",
                  f"v_add_u32 v252, {FX >> FSH}, v252",
                  f"v_lshlrev_b32 v252, {FSH}, v252",
                  f"v_mov_b32 v6, {flit(-math.log2(math.e))}",
                  "v_lshlrev_b32 v4, 3, v1",
                  f"v_sub_u32 v4, v{VB}, v4",
                  "v_add_u32 v5, 55296, v4",
                  "s_lshr_b32 s22, s41, 1",
                  "s_lshl_b32 s22, s22, 10",
                  "s_bitcmp1_b32 s41, 0",
                  "s_cselect_b32 s21, 1, 6",
                  "s_cselect_b32 s23, 1024, 0",
                  "s_lshl_b32 s21, s21, 9",
                  "s_add_u32 s21, s21, s22",
                  "s_add_u32 s22, s22, s23",
                  "s_cmp_eq_u32 s41, 105",
                  f"s_cselect_b32 s23, {hex(OOB)}, s22"):
            emit(x)
    def fx_ld(): A(f"buffer_load_dword v253, v252, s[12:15], 0 offen {LSC}")
    def swiglu(ft, rt, dst):
        g = ACC + ((2*ft)*2 + rt)*4
        u = ACC + ((2*ft+1)*2 + rt)*4
        t = T + 4*rt
        if OPT.get("dpk", "0") == "0" and (ft < 6 or OPT.get("dpk6", "1") == "0"):
            for r in range(4): emit(f"v_mul_f32 v{t+r}, v6, v{g+r}")
            for r in range(4): emit(f"v_exp_f32 v{t+r}, v{t+r}")
            for r in range(4): emit(f"v_mul_f32 v{g+r}, v{g+r}, v{u+r}")
            for r in range(4): emit(f"v_add_f32 v{t+r}, 1.0, v{t+r}")
            for r in range(4): emit(f"v_rcp_f32 v{t+r}, v{t+r}")
            for r in range(4): emit(f"v_mul_f32 v{g+r}, v{g+r}, v{t+r}")
            emit(f"v_cvt_pk_bf16_f32 v{dst}, v{g}, v{g+1}")
            emit(f"v_cvt_pk_bf16_f32 v{dst+1}, v{g+2}, v{g+3}")
            return
        for r in (0, 2): emit(f"v_pk_mul_f32 {pr(t+r)}, {pr(g+r)}, {pr(6)} op_sel_hi:[1,0]")
        for r in range(4): emit(f"v_exp_f32 v{t+r}, v{t+r}")
        for r in (0, 2): emit(f"v_pk_mul_f32 {pr(g+r)}, {pr(g+r)}, {pr(u+r)}")
        for r in (0, 2): emit(f"v_pk_add_f32 {pr(t+r)}, {pr(t+r)}, 1.0 op_sel_hi:[1,0]")
        for r in range(4): emit(f"v_rcp_f32 v{t+r}, v{t+r}")
        for r in (0, 2): emit(f"v_pk_mul_f32 {pr(g+r)}, {pr(g+r)}, {pr(t+r)}")
        emit(f"v_cvt_pk_bf16_f32 v{dst}, v{g}, v{g+1}")
        emit(f"v_cvt_pk_bf16_f32 v{dst+1}, v{g+2}, v{g+3}")
    def pair_done(k):
        gi = k // 2
        for rt in range(2):
            o = OUTR + 4*((2*gi + rt) % 4)
            swiglu(k, rt, o + 2*(k & 1))
            if k & 1:
                def st(o=o, rt=rt, gi=gi):
                    if OPT.get("xp") == "hv" and gi < 2: return
                    A(f"buffer_store_dwordx4 v[{o}:{o+3}], v{VB+rt}, s[24:27], {'s23' if gi else 's22'} offen offset:{1024*gi} {SC}"); vm.issue("hh")
                fin.append(st)
            elif k == 6:
                def st(o=o, rt=rt):
                    A(f"buffer_store_dwordx2 v[{o}:{o+1}], v{4+rt}, s[24:27], s21 offen {SC}"); vm.issue("hh")
                fin.append(st)
    FXN = int(OPT.get("fxn", 250))
    def gap(n):
        if pending: pending.pop(0)()
        elif n >= NT:
            for _ in range(int(OPT.get("dfk", 3))):
                if fin: fin.pop(0)()
    for t in range(NB0, RB): vq.extend(b_ops(t))
    vq.extend(slot_ops(0))
    if OPT.get("est") == "2": A(f"s_memtime s[56:57]")
    for n in range(D_LA): lds_read(n)
    A(f"s_waitcnt lgkmcnt({D_LA-1})")
    for n in range(NF):
        t, i = nt(n)
        if n < NT and i == 0:
            for z in [t+1] + ([t+4] if t in (13, 14, 15) else []):
                if NPOLL <= z < 20:
                    assert vm.all.count(("B", z)) == 2, z
                    vm.wait([("B", z)])
                    pending[0:0] = check_ops(C, b_reload([z]), b_regs(z), BACC)
        if n == NT:
            assert not pending
            fin_setup()
        if n == FXN:
            def fxl(): fx_ld(); vm.issue("fx")
            fin.append(fxl)
        a = AR + (n % RA)*4
        def mm(rt):
            c = ACC + (i*2 + rt)*4
            b = BR + (t % RB)*8 + 4*rt
            src = "0" if t == 0 else f"v[{c}:{c+3}]"
            A(f"v_mfma_f32_16x16x32_bf16 v[{c}:{c+3}], v[{a}:{a+3}], v[{b}:{b+3}], {src}")
        mm(0)
        nn = n + D_LA
        if nn < NF:
            if nn % 28 == 0 and nn <= NT: enter_slot(nn // 28)
            lds_read(nn)
        gap(n)
        mm(1)
        if n < NT and i == 13:
            assert not pending
            bstate[t] = True
            if t + RB < 20: vq[0:0] = b_ops(t + RB)
        if n + 1 < NF:
            rem = min(NF - 1 - (n+1), D_LA - 1)
            A(f"s_waitcnt lgkmcnt({rem})")
        if n % PER == PER - 1 and vq: vpop()
        else: gap(n)
        if n >= NT and (n - NT) % 8 == 7: pair_done((n - NT)//8)
    stamp(A, 22)
    for f in vq + w2: f()
    while fin: fin.pop(0)()
    vm.wait(["fx"])
    Lfx = C.lab("fx")
    A(f"v_cmp_ne_u32 vcc, s{STAG}, v253")
    A(f"s_cbranch_vccnz {Lfx}")
    A(f"{Lfx}_b:")
    def tail():
        A(f"{Lfx}:")
        retry_loop(C, fx_ld, lambda: A(f"v_cmp_ne_u32 vcc, s{STAG}, v253"))
        A(f"s_branch {Lfx}_b")
    C.tail.append(tail)
    vm.q = []
    stamp(A, 23)

def phase_e(C):
    A = C.A; vm = C.vm
    ACC = 8
    RING = [88, 104, 120, 136, 176, 192, 208, 224]
    VH = 240
    VH2 = 248
    PROBE = OPT.get("epr", "0") == "1" and OPT.get("eq", "1") == "1"
    C.probes = [236, 237, 238][:int(OPT.get("npb", 3))]
    if PROBE:
        assert DT
        srd(A, 16, 4, WS_HH, SZ_HH)
        PL = int(OPT.get("epl", 4))
        A("v_lshrrev_b32 v7, 4, v1")
        A("s_lshl_b32 s20, s44, 2")
        A("v_add_u32 v7, s20, v7")
        A("v_mul_u32_u24 v7, 55296, v7")
        A("v_bfe_u32 v4, v1, 3, 1")
        A("v_mul_u32_u24 v4, 7168, v4")
        A("v_add_u32 v7, v7, v4")
        A("v_bfe_u32 v4, v1, 2, 1")
        A("v_lshl_add_u32 v7, v4, 9, v7")
        A(f"v_and_b32 v4, {PL - 1}, v1")
        A("v_lshl_add_u32 v7, v4, 7, v7")
        A("s_lshl_b32 s21, s46, 10")
        A("s_add_u32 s21, s21, 3072")
        A("v_add_u32 v7, s21, v7")
        A(f"buffer_load_dword v{C.probes[0]}, v7, s[16:19], 0 offen {LSC}")
    def probe(k):
        if PROBE and k < len(C.probes): A(f"buffer_load_dword v{C.probes[k]}, v7, s[16:19], 0 offen {LSC}")
    A("v_lshlrev_b32 v2, 4, v1")
    A("s_lshl_b32 s20, s44, 2")
    if OPT.get("xp") == "r0": A("s_mov_b32 s20, 0")
    if OPT.get("xp") == "r2": A("s_and_b32 s20, s20, 0x64")
    A("s_lshl_b32 s21, s46, 10")
    ROT = OPT.get("erot", "0") == "1" and OPT.get("eq", "1") == "1"
    if ROT:
        A("s_lshr_b32 s23, s49, 3")
        A("s_add_u32 s23, s23, s3")
        A("s_and_b32 s23, s23, 3")
    else:
        A("s_mov_b32 s23, s3")
    for q in range(4):
        A(f"s_add_u32 s22, s23, {q}")
        A("s_and_b32 s22, s22, 3")
        A("s_add_u32 s22, s22, s20")
        A("s_mul_i32 s22, s22, 55296")
        A("s_add_u32 s22, s22, s21")
        A(f"v_add_u32 v{VH+q}, s22, v2")
        A(f"v_lshl_add_u32 v{VH2+q}, v1, 3, s22")
    A("s_cmp_eq_u32 s3, 3")
    A(f"s_mov_b32 s47, {12*1024}")
    A(f"s_cselect_b32 s47, {hex(OOB)}, s47")
    probe(1)
    if not PROBE: srd(A, 16, 4, WS_HH, SZ_HH)
    srd(A, 24, 4, WS_X2, SZ_X)
    srd(A, 28, 4, WS_MOD, SZ_MOD)
    srd(A, 36, 8, 0, SZ_X)
    A("v_and_b32 v3, 15, v1")
    A("s_lshl_b32 s21, s44, 6")
    A("s_lshl_b32 s22, s23, 4")
    A("s_add_u32 s21, s21, s22")
    A("v_add_u32 v3, s21, v3")
    A("v_lshrrev_b32 v4, 8, v3")
    A("v_bfe_u32 v5, v3, 3, 3")
    A("v_lshl_add_u32 v4, v4, 3, v5")
    A("v_bfe_u32 v5, v3, 6, 2")
    A("v_and_b32 v6, 7, v3")
    A("v_lshl_add_u32 v5, v5, 3, v6")
    A("v_lshl_add_u32 v4, v5, 6, v4")
    A("v_mul_u32_u24 v244, 1280, v4")
    A("v_lshrrev_b32 v5, 4, v1")
    A("s_mul_i32 s21, s45, 160")
    A("v_lshl_add_u32 v244, v5, 3, v244")
    A("v_add_u32 v244, s21, v244")
    A("s_mul_i32 s21, s45, 320")
    A(f"s_add_u32 s21, s21, {5*2560}")
    A("v_lshlrev_b32 v245, 4, v5")
    A("v_add_u32 v245, s21, v245")
    HACC = 252
    probe(2)
    if OPT.get("eq", "1") == "1":
        e_qmajor(C, ACC, VH, VH2, HACC)
    else:
        e_stepmajor(C, ACC, RING, VH, VH2, HACC)
    L = C.lab("ep")
    A("s_or_b32 s50, s2, s3")
    A("s_cmp_lg_u32 s50, 0")
    A(f"s_cbranch_scc1 {L}")
    srd(A, 16, 4, WS_EPOCH, 128)
    A("v_mov_b32 v4, 0")
    A(f"v_mov_b32 v5, s{STAG}")
    A("s_mov_b64 exec, 1")
    A(f"buffer_store_dword v5, v4, s[16:19], 0 offen {SC}")
    A("s_mov_b64 exec, -1")
    A(f"{L}:")

def e_stepmajor(C, ACC, RING, VH, VH2, HACC):
    A = C.A; vm = C.vm
    def h_regs(st): return range(RING[st % 8], RING[st % 8] + 16)
    def h_reload(sts):
        def f():
            for st in sts:
                if st >= 12: A("s_mov_b32 s54, s47"); off = (st - 12)*1024
                else: A(f"s_movk_i32 s54, {st*1024}"); off = 0
                for q in range(4):
                    r = RING[st % 8] + 4*q
                    if st % 7 == 3:
                        for z in range(2):
                            A(f"buffer_load_dwordx2 v[{r+2*z}:{r+2*z+1}], v{VH2+q}, s[16:19], s54 offen offset:{off + 512*z} {LSC}")
                    else:
                        A(f"buffer_load_dwordx4 v[{r}:{r+3}], v{VH+q}, s[16:19], s54 offen offset:{off} {LSC}")
        return f
    def h_ops(st):
        ops = []
        if st % 4 == 0:
            ops.append((lambda st=st: A(f"s_movk_i32 s22, {st*1024}")) if st < 12 else (lambda: A("s_mov_b32 s22, s47")))
        for q in range(4):
            r = RING[st % 8] + 4*q
            if st % 7 == 3:
                for z in range(2):
                    def f(q=q, st=st, r=r, z=z):
                        A(f"buffer_load_dwordx2 v[{r+2*z}:{r+2*z+1}], v{VH2+q}, s[16:19], s22 offen offset:{(st%4)*1024 + 512*z} {LSC}")
                        vm.issue(("H", st))
                    ops.append(f)
            else:
                def f(q=q, st=st, r=r):
                    A(f"buffer_load_dwordx4 v[{r}:{r+3}], v{VH+q}, s[16:19], s22 offen offset:{(st%4)*1024} {LSC}")
                    vm.issue(("H", st))
                ops.append(f)
        return ops
    NPOLL = 3
    def h_loads():
        h_reload(range(NPOLL))()
    def h_test():
        fill_test(A, [r for st in range(NPOLL) for r in h_regs(st)], HACC)
    retry_loop(C, h_loads, h_test)
    cnt(A, 4)
    estamp(A, 0)
    A("s_barrier")
    A("s_movk_i32 s22, 0")
    for st in range(NPOLL, 8):
        for f in h_ops(st): f()
    pending = []
    for st in range(NST):
        if NPOLL <= st + 1 < NST:
            vm.wait([("H", st+1)])
            pending[0:0] = check_ops(C, h_reload([st+1]), h_regs(st+1), HACC)
        k = 0
        for p in range(5):
            for q in range(4):
                c = ACC + (q*5+p)*4
                src = "0" if st == 0 else f"v[{c}:{c+3}]"
                wk, wr = wfrag(st, p)
                h = RING[st % 8] + 4*q
                A(f"v_mfma_f32_16x16x32_bf16 v[{c}:{c+3}], {wk}[{wr}:{wr+3}], v[{h}:{h+3}], {src}")
                k += 1
                if pending: pending.pop(0)()
        while pending: pending.pop(0)()
        if st + 8 < NST: pending.extend(h_ops(st + 8))
        if st == 7:
            def xg():
                for p in range(5):
                    A(f"buffer_load_dwordx2 {pr(208+2*p)}, v244, s[24:27], 0 offen offset:{32*p} {LSC}")
                    vm.issue("XG")
                    A(f"buffer_load_dwordx4 v[{220+4*p}:{223+4*p}], v245, s[28:31], 0 offen offset:{64*p} {LSC}")
                    vm.issue("XG")
            pending.append(xg)
    while pending: pending.pop(0)()
    estamp(A, 1)
    X, G = 208, 220
    A("v_lshlrev_b32 v2, 4, v1")
    for q in range(1, 4):
        A(f"s_add_u32 s21, s3, {q}")
        A("s_and_b32 s21, s21, 3")
        A("s_mul_i32 s21, s21, 15360")
        A(f"s_add_u32 s21, s21, {(q-1)*5120}")
        A(f"v_add_u32 v6, s21, v2")
        for p in range(5):
            c = ACC + (q*5+p)*4
            A(f"ds_write_b128 v6, v[{c}:{c+3}] offset:{p*1024}")
    A("s_mul_i32 s21, s3, 15360")
    A("v_add_u32 v6, s21, v2")
    A("s_waitcnt lgkmcnt(0)")
    A("s_barrier")
    estamp(A, 2)
    R = 88
    for k in range(3):
        for p in range(5):
            r = R + k*20 + 4*p
            A(f"ds_read_b128 v[{r}:{r+3}], v6 offset:{k*5120 + p*1024}")
    for k in range(3):
        A(f"s_waitcnt lgkmcnt({5*(2-k)})")
        for r in range(0, 20, 2):
            A(f"v_pk_add_f32 {pr(ACC+r)}, {pr(ACC+r)}, {pr(R+k*20+r)}")
    vm.wait(["XG"])
    for p in range(5):
        for z in range(2):
            A(f"v_lshlrev_b32 v4, 16, v{X+2*p+z}")
            A(f"v_and_b32 v5, 0xffff0000, v{X+2*p+z}")
            A(f"v_pk_fma_f32 {pr(4)}, {pr(G+4*p+2*z)}, {pr(ACC+4*p+2*z)}, {pr(4)}")
            A(f"v_cvt_pk_bf16_f32 v{88+2*p+z}, v4, v5")
        A(f"buffer_store_dwordx2 {pr(88+2*p)}, v244, s[36:39], 0 offen offset:{32*p} {OPT.get('osc','').replace('+',' ')}")
    estamp(A, 3)

def e_qmajor(C, ACC, VH, VH2, HACC):
    A = C.A; vm = C.vm
    NR = int(OPT.get("enr", 32))
    NJ = 4*NST
    QO = (1, 2, 3, 0)
    RED = SLOT if DT else 2*SLOT if NS == 4 else 0
    def slot(j):
        i = j % NR
        return 88 + 4*i if i < 16 else 176 + 4*(i - 16)
    def regs(j): return list(range(slot(j), slot(j) + 4))
    A("s_movk_i32 s20, 4096")
    A("s_movk_i32 s21, 8192")
    state = dict(hi=0)
    def load(j, track=True):
        q, st = QO[j // NST], j % NST
        so = ["0", "s20", "s21", "s47"][st // 4]
        r = slot(j)
        if st % 7 == 3:
            for z in range(2):
                A(f"buffer_load_dwordx2 v[{r+2*z}:{r+2*z+1}], v{VH2+q}, s[16:19], {so} offen offset:{(st % 4)*1024 + 512*z} {LSC}")
                if track: vm.issue(("H", j))
        else:
            A(f"buffer_load_dwordx4 v[{r}:{r+3}], v{VH+q}, s[16:19], {so} offen offset:{(st % 4)*1024} {LSC}")
            if track: vm.issue(("H", j))
        if track: state["hi"] = j + 1
    def nloads(js): return sum(2 if (j % NST) % 7 == 3 else 1 for j in js)
    def check(j):
        if OPT.get("xp") in ("hv", "nc"): return []
        L = C.lab("ex")
        rr = regs(j) + regs(j+1)
        ops = max_ops(A, rr, HACC)
        ops.append(lambda: A(f"v_cmp_eq_u32 vcc, -1, v{HACC}"))
        def br():
            A(f"s_cbranch_vccnz {L}")
            A(f"{L}_b:")
            hi = state["hi"]
            def tail():
                A(f"{L}:")
                q = vm.q
                retry_loop(C, lambda: [load(k, False) for k in range(j, hi)], lambda: fill_test(A, rr, HACC))
                if CNT and PROF and OPT.get("crep"):
                    A("s_add_u32 s70, s70, 1")
                    A("s_add_u32 s69, s69, s53")
                vm.q = q
                A(f"s_branch {L}_b")
            C.tail.append(tail)
        ops.append(br)
        return ops
    if CNT and PROF and OPT.get("crep"):
        A("s_mov_b32 s70, 0")
        A("s_mov_b32 s69, 0")
    def lds_addr():
        A("v_lshlrev_b32 v2, 4, v1")
        for q in range(1, 4):
            A(f"s_add_u32 s22, s3, {q}")
            A("s_and_b32 s22, s22, 3")
            A("s_mul_i32 s22, s22, 15360")
            A(f"s_add_u32 s22, s22, {RED + (q-1)*5120}")
            A(f"v_add_u32 v{252+q}, s22, v2")
        A("s_mul_i32 s22, s3, 15360")
        A(f"s_add_u32 s22, s22, {RED}")
        A("v_add_u32 v6, s22, v2")
    NP = int(OPT.get("enp", 4))
    if OPT.get("epr", "0") == "1":
        NPB = len(C.probes)
        L = C.lab("pb")
        if not CUM: A("s_mov_b32 s53, 0")
        A(f"{L}:")
        for k, r in enumerate(C.probes):
            A(f"s_waitcnt vmcnt({NPB - 1})")
            A(f"v_cmp_eq_u32 vcc, -1, v{r}")
            A(f"s_cbranch_vccz {L}_x")
            A(f"buffer_load_dword v{r}, v7, s[16:19], 0 offen {LSC}")
        A("s_add_u32 s53, s53, 1")
        A(f"s_cmp_lt_u32 s53, {RETRY_LIMIT}")
        A(f"s_cbranch_scc1 {L}")
        A(f"{L}_x:")
        cnt(A, 4)
        estamp(A, 0)
        vm.q = ["stale"]*(NPB - 1)
        NP = 0
        for j in range(NR): load(j)
        lds_addr()
        vm.wait([("H", 0), ("H", 1)])
        for f in check(0): f()
    else:
        NSP = int(OPT.get("ens", 4))
        if OPT.get("ewait", "0") == "1": A("s_waitcnt vmcnt(0)")
        tags = [("H", j) for j in range(NP, NSP) for _ in range(nloads([j]))]
        retry_loop(C, lambda: [load(j, False) for j in range(NP)],
                   lambda: fill_test(A, [r for j in range(NP) for r in regs(j)], HACC),
                   spec=lambda: [load(j, False) for j in range(NP, NSP)], tags=tags)
        cnt(A, 4)
        estamp(A, 0)
        state["hi"] = NSP
        for j in range(NSP, NR): load(j)
        lds_addr()
    X, G = 208, 220
    assert NR == 32
    def xg_ops():
        ops = []
        for p in range(5):
            def fx(p=p):
                A(f"buffer_load_dwordx2 {pr(X+2*p)}, v244, s[24:27], 0 offen offset:{32*p} {LSC}"); vm.issue("XG")
            def fg(p=p):
                A(f"buffer_load_dwordx4 v[{G+4*p}:{G+4*p+3}], v245, s[28:31], 0 offen offset:{64*p} {LSC}"); vm.issue("XG")
            ops += [fx, fg]
        return ops
    P = ACC + 20
    pending = []; mem = []
    gaps_left = [5*NJ]
    def gap():
        gaps_left[0] -= 1
        k = 2 if len(pending) > BUSY[0] else 1
        for _ in range(k):
            if pending: pending.pop(0)()
    BUSY = [1000]
    for j in range(NJ):
        qi, st = divmod(j, NST)
        q = QO[qi]
        if OPT.get("est") == "3" and j % 6 == 0: A(f"s_memtime s[{56+2*(j//6)}:{57+2*(j//6)}]")
        if j % 2 == 0 and j + 2 < NJ and j + 2 >= NP:
            assert state["hi"] >= j + 4
            vm.wait([("H", j+2), ("H", j+3)])
            pending[0:0] = check(j + 2)
        if st == 0 and qi > 0:
            qp = QO[qi-1]
            for p in range(5):
                c = ACC + (qp*5+p)*4
                pending.append(lambda c=c, p=p, qp=qp: A(f"ds_write_b128 v{252+qp}, v[{c}:{c+3}] offset:{p*1024}"))
        if j == 32: mem.extend(xg_ops())
        if j == 44:
            assert not any(getattr(f, "w", 0) for f in pending)
            A("s_waitcnt lgkmcnt(0)")
            A("s_barrier")
            estamp(A, 2)
            for k in range(3):
                for p in range(5):
                    r = P + k*20 + 4*p
                    pending.append(lambda r=r, k=k, p=p: A(f"ds_read_b128 v[{r}:{r+3}], v6 offset:{k*5120 + p*1024}"))
            pending.append(lambda: A("s_waitcnt lgkmcnt(5)"))
            for r in range(20):
                pending.append(lambda r=r: A(f"v_add_f32 v{P+r}, v{P+r}, v{P+20+r}"))
            pending.append(lambda: A("s_waitcnt lgkmcnt(0)"))
            for r in range(20):
                pending.append(lambda r=r: A(f"v_add_f32 v{P+r}, v{P+r}, v{P+40+r}"))
            BUSY[0] = 0
        for p in range(5):
            c = ACC + (q*5+p)*4
            src = "0" if st == 0 else f"v[{c}:{c+3}]"
            wk, wr = wfrag(st, p)
            h = slot(j)
            A(f"v_mfma_f32_16x16x32_bf16 v[{c}:{c+3}], {wk}[{wr}:{wr+3}], v[{h}:{h+3}], {src}")
            if p == 0 and j >= 1 and j - 1 + NR < NJ and j - 1 + NR >= state["hi"]:
                load(j - 1 + NR)
            elif p in (0, 2) and mem:
                mem.pop(0)()
            else:
                gap()
        if st == NST - 1 and qi < 3 or j == 43:
            pass
        if j == 43:
            while pending: pending.pop(0)()
    estamp(A, 1)
    while pending: pending.pop(0)()
    vm.wait(["XG"])
    for p in range(5):
        for z in range(2):
            r = 4*p + 2*z
            A(f"v_pk_add_f32 {pr(ACC+r)}, {pr(ACC+r)}, {pr(P+r)}")
            A(f"v_lshlrev_b32 v4, 16, v{X+2*p+z}")
            A(f"v_and_b32 v5, 0xffff0000, v{X+2*p+z}")
            A(f"v_pk_fma_f32 {pr(4)}, {pr(G+r)}, {pr(ACC+r)}, {pr(4)}")
            A(f"v_cvt_pk_bf16_f32 v{88+2*p+z}, v4, v5")
        A(f"buffer_store_dwordx2 {pr(88+2*p)}, v244, s[36:39], 0 offen offset:{32*p} {OPT.get('osc','').replace('+',' ')}")
    estamp(A, 3)

def fused(name=MAIN):
    K = Kern(name, 256, LDS_TOTAL, vgpr=256, agpr=256)
    A = K.A
    C = Ctx(A)
    phase0(C)
    phase_a(C)
    phase_b(C)
    phase_c(C)
    (phase_d2 if DT else phase_d)(C)
    phase_e(C)
    if DG:
        L = "dg_end"
        A("s_or_b32 s50, s44, s45")
        A("s_or_b32 s50, s50, s3")
        A("s_cmp_lg_u32 s50, 0")
        A(f"s_cbranch_scc1 {L}")
        A("s_load_dwordx2 s[90:91], s[0:1], 80")
        A("s_waitcnt vmcnt(0) lgkmcnt(0)")
        A("v_mov_b32 v4, 0")
        A("global_load_dwordx4 v[8:11], v4, s[90:91] sc0 sc1")
        A("global_load_dwordx4 v[12:15], v4, s[90:91] offset:16 sc0 sc1")
        A("s_waitcnt vmcnt(0)")
        A("v_readfirstlane_b32 s96, v10")
        A("v_readfirstlane_b32 s97, v88")
        A("s_nop 4")
        A("s_and_b32 s97, s97, 0x7f80")
        A("s_cmp_eq_u32 s97, 0x7f80")
        A("s_cselect_b32 s97, 1, 0")
        A("s_or_b32 s97, s97, s96")
        A("s_cmp_eq_u32 s97, 0")
        A(f"s_cbranch_scc1 {L}")
        A("v_readfirstlane_b32 s64, v15")
        A("v_readfirstlane_b32 s65, v11")
        A("s_nop 4")
        A("s_and_b32 s70, s64, 63")
        A("s_and_b32 s71, s65, 255")
        A("s_cmp_eq_u32 s96, 0")
        A("s_cselect_b32 s70, 99, s70")
        A("s_min_u32 s72, s96, 255")
        def sample(dst, base, stride, n, packed, word_stride=None):
            A(f"s_mov_b32 s60, {stride}")
            A("v_mul_lo_u32 v5, v1, s60")
            A(f"v_add_u32 v5, {hex(base)}, v5")
            A(f"s_mov_b32 s{dst}, 0")
            for k in range(n):
                A(f"global_load_dword v16, v5, s[4:5] sc0 sc1")
                A(f"v_add_u32 v5, {hex(64*stride)}, v5")
                A("s_waitcnt vmcnt(0)")
                A("v_and_b32 v17, 0x7f800000, v16")
                A("v_cmp_eq_u32 vcc, 0x7f800000, v17")
                if packed:
                    A("s_mov_b64 s[62:63], vcc")
                    A("v_and_b32 v17, 0x7f80, v16")
                    A("v_cmp_eq_u32 vcc, 0x7f80, v17")
                    A("s_or_b64 vcc, vcc, s[62:63]")
                A("s_bcnt1_i32_b64 s61, vcc")
                A(f"s_add_u32 s{dst}, s{dst}, s61")
            A(f"s_min_u32 s{dst}, s{dst}, 255")
        sample(73, WS_MODG, 8, 20, False)
        sample(74, WS_Y1 + 4096, BLK, 4, True)
        sample(75, WS_WT + 1024, 8192, 5, True)
        sample(76, WS_Z + 1024, 8192, 5, True)
        sample(77, WS_W13 + 512, 17280, 4, True)
        sample(78, WS_W2 + 512, 8640, 4, True)
        A("s_min_u32 s77, s77, 15"); A("s_min_u32 s78, s78, 15"); A("s_lshl_b32 s77, s77, 4"); A("s_or_b32 s77, s77, s78")
        for k in range(8): A(f"v_cvt_f32_u32 v{8+k}, s{70+k}")
        for k in range(4):
            A(f"v_lshrrev_b32 v{8+2*k}, 16, v{8+2*k}")
            A(f"v_and_b32 v{9+2*k}, 0xffff0000, v{9+2*k}")
            A(f"v_or_b32 v{20+k}, v{8+2*k}, v{9+2*k}")
        A("v_mov_b32 v4, 0")
        A("s_mov_b64 exec, 1")
        A("global_store_dwordx4 v4, v[20:23], s[8:9]")
        A("s_mov_b64 exec, -1")
        A(f"{L}:")
    A("all_end:")
    A("s_endpgm")
    for f in C.tail: f()
    if DG:
        for i, x in enumerate(SITES): print("site", i, x)
    A("code_end:")
    return K
```

```python
import os, math
from gen_common import *
from gen_k5 import VM
from gen_k2 import layernorm, unpack_bf16, PITCH2

MAIN = "adaLN_cond__spectral_gfnet__glu_gated_swiglu__prompt_kernel"
OPT = dict(kv.split("=") for kv in os.environ.get("OPT", "").split(",") if kv)
SC = OPT.get("sc", "sc0+sc1").replace("+", " ")
LSC = "sc1"
WS_EPOCH = 0x80000
WS_FLG = 0xB0000
FA, FW, FP, FH1, FH2, FX = [0x8000*i for i in range(6)]
FSH = int(OPT.get("fsh", 5))
SZ_FLG = 6*0x8000
WS_MODG = 0xA0000
NB_WG = 161
BLK = 10368
SZ_Y1N = 256*BLK
TAGSTEP = 0x9E3779B9
RETRY_LIMIT = int(OPT.get("rl", 4000000))
CUM = OPT.get("cum", "1") == "1" and not (CNT and PROF)
DG = OPT.get("dg") == "1"
STAG = 55

ESTAMP = OPT.get("est") == "1"
_stamp = stamp
DLYD = OPT.get("dly") == "dbg"
_dn = [0]
def dpoint(A, i):
    _dn[0] += 1; L = f"dp_{_dn[0]}"
    A("s_cselect_b32 s98, 1, 0")
    A(f"s_bitcmp1_b32 s96, {i}")
    A(f"s_cbranch_scc0 {L}")
    A("s_mov_b32 s97, s94")
    A(f"{L}_l:")
    A("s_sleep 16")
    A("s_sub_u32 s97, s97, 1")
    A("s_cmp_gt_i32 s97, 0")
    A(f"s_cbranch_scc1 {L}_l")
    A(f"{L}:")
    A("s_cmp_eq_u32 s98, 1")
def stamp(A, i):
    if DLYD: dpoint(A, i)
    if ESTAMP and i in (0, 1, 2, 3, 5): return
    if OPT.get("est") in ("2", "3") and i < 20: return
    if OPT.get("est") == "9": return
    _stamp(A, i)
def estamp(A, i):
    if DLYD: dpoint(A, 24 + i)
    if ESTAMP: _stamp(A, i)
def fk(x): return hex(f32bits(float(x)))
def pr(r): return f"v[{r}:{r+1}]"
def mf32(A, d, a, b, first):
    c = "0" if first else f"v[{d}:{d+15}]"
    A(f"v_mfma_f32_32x32x16_bf16 v[{d}:{d+15}], v[{a}:{a+3}], v[{b}:{b+3}], {c}")
def csel(A, d, a, b):
    A(f"s_mov_b32 {d}, {b}")
    A(f"s_cselect_b32 {d}, {a}, {d}")

class Ctx:
    def __init__(self, A):
        self.A = A; self.vm = VM(A); self.n = 0; self.tail = []
    def lab(self, p):
        self.n += 1; return f"{p}_{self.n}"

def max_ops(A, regs, acc):
    regs = list(regs); ops = []
    ops.append(lambda r=regs[:3]: A(f"v_max3_u32 v{acc}, v{r[0]}, v{r[1]}, v{r[2]}"))
    rest = regs[3:]
    while rest:
        if len(rest) >= 2:
            ops.append(lambda r=rest[:2]: A(f"v_max3_u32 v{acc}, v{acc}, v{r[0]}, v{r[1]}")); rest = rest[2:]
        else:
            ops.append(lambda r=rest[0]: A(f"v_max_u32 v{acc}, v{acc}, v{r}")); rest = []
    return ops
def fill_test(A, regs, acc):
    for f in max_ops(A, regs, acc): f()
    A(f"v_cmp_eq_u32 vcc, -1, v{acc}")
def retry_loop(C, loads, test, scnt=53, spec=None, tags=()):
    A = C.A; L = C.lab("rt")
    if not CUM: A(f"s_mov_b32 s{scnt}, 0")
    A(f"{L}:")
    loads()
    if spec: spec()
    A(f"s_add_u32 s{scnt}, s{scnt}, 1")
    A(f"s_waitcnt vmcnt({len(tags)})")
    test()
    A(f"s_cmp_ge_u32 s{scnt}, {RETRY_LIMIT}")
    A(f"s_cbranch_scc1 {L}_{'t' if DG else 'x'}")
    A(f"s_cbranch_vccnz {L}")
    A(f"{L}_x:")
    if DG: gave_up(C, L + "_t", L + "_x")
    C.vm.q = []
    for t in tags: C.vm.issue(t)
SITES = []
def gave_up(C, L, back):
    import inspect
    A = C.A
    site = len(SITES); SITES.append((L, [f.lineno for f in inspect.stack()[1:5]]))
    def tail():
        A(f"{L}:")
        A("s_memrealtime s[92:93]")
        A("s_load_dwordx2 s[90:91], s[0:1], 80")
        A("s_waitcnt vmcnt(0) lgkmcnt(0)")
        A("s_mov_b64 s[94:95], exec")
        A("s_mov_b64 exec, 1")
        A("v_mov_b32 v4, 0")
        A(f"v_mov_b32 v5, {hex(1 << (site & 31))}")
        A(f"global_atomic_or v4, v5, s[90:91] offset:{4*(site >> 5)} sc1")
        A("v_mov_b32 v5, 1")
        A("global_atomic_add v4, v5, s[90:91] offset:8 sc1")
        A("s_not_b32 s92, s92")
        A("s_lshl_b32 s96, s92, 8")
        A("s_or_b32 s96, s96, s2")
        A("v_mov_b32 v5, s96")
        A("global_atomic_umax v4, v5, s[90:91] offset:12 sc1")
        A("s_lshl_b32 s96, s92, 6")
        A(f"s_or_b32 s96, s96, {site}")
        A("v_mov_b32 v5, s96")
        A("global_atomic_umax v4, v5, s[90:91] offset:28 sc1")
        A("v_mov_b32 v5, s92")
        A("global_atomic_umax v4, v5, s[90:91] offset:24 sc1")
        A("s_waitcnt vmcnt(0)")
        A("s_mov_b64 exec, s[94:95]")
        A(f"s_branch {back}")
    C.tail.append(tail)
def poll2(C, loads, tests, nops, use, scnt=53):
    A = C.A; L = C.lab("p2")
    if not CUM: A(f"s_mov_b32 s{scnt}, 0")
    A(f"{L}:")
    for k in range(2):
        A(f"s_waitcnt vmcnt({nops})")
        tests[k]()
        A(f"s_cbranch_vccz {L}_{k}")
        loads[k]()
    A(f"s_add_u32 s{scnt}, s{scnt}, 1")
    A(f"s_cmp_lt_u32 s{scnt}, {RETRY_LIMIT}")
    A(f"s_cbranch_scc1 {L}")
    if DG:
        A(f"s_branch {L}_t")
        A(f"{L}_x:")
        gave_up(C, L + "_t", L + "_x")
    A(f"s_waitcnt vmcnt({nops})")
    A(f"{L}_0:")
    use(0)
    A(f"s_branch {L}_e")
    A(f"{L}_1:")
    use(1)
    A(f"{L}_e:")
    C.vm.q = ["stale"]*nops
def check_ops(C, loads, regs, acc):
    A = C.A; L = C.lab("fx")
    ops = max_ops(A, regs, acc)
    ops.append(lambda: A(f"v_cmp_eq_u32 vcc, -1, v{acc}"))
    def br():
        A(f"s_cbranch_vccnz {L}")
        A(f"{L}_b:")
    ops.append(br)
    def tail():
        A(f"{L}:")
        q = C.vm.q
        retry_loop(C, loads, lambda: fill_test(A, regs, acc))
        C.vm.q = q
        A(f"s_branch {L}_b")
    C.tail.append(tail)
    return ops
def flag_store(C, off, va=4, vb=5):
    A = C.A; L = C.lab("fl")
    A("s_cmp_lg_u32 s3, 0")
    A(f"s_cbranch_scc1 {L}")
    A(f"s_lshl_b32 s50, s2, {FSH}")
    A(f"s_add_u32 s50, s50, {off}")
    A(f"v_mov_b32 v{va}, s50")
    A(f"v_mov_b32 v{vb}, s{STAG}")
    A("s_mov_b64 exec, 1")
    A(f"buffer_store_dword v{vb}, v{va}, s[12:15], 0 offen {SC}")
    A("s_mov_b64 exec, -1")
    A(f"{L}:")

L_ROWS = 0
L_TR = 8*PITCH2
L_MODP = L_TR + 16384
L_MODV = L_MODP + 1024
L_WT = L_MODV + 5120
L_PREP = 45056
L_YST = L_PREP + 32768
assert L_WT + 4*2816 <= L_PREP and L_YST + 16384 <= 114688

def prep_params(C, unit, B):
    A = C.A
    g, pitch, so, do, ts, ga, ja, a, b, c = [f"s{B+i}" for i in range(10)]
    A(f"s_sub_u32 {a}, s2, {NB_WG}")
    A(f"s_lshl_b32 {a}, {a}, 2")
    A(f"s_add_u32 {a}, {a}, s3")
    if unit: A(f"s_add_u32 {a}, {a}, {unit*4*(256 - NB_WG)}")
    A(f"s_cmp_ge_u32 {a}, 540")
    A(f"s_cselect_b32 {g}, 1, 0")
    A(f"s_cmp_ge_u32 {a}, 1080")
    A(f"s_cselect_b32 {g}, 2, {g}")
    A(f"s_mul_i32 {b}, {g}, 540")
    A(f"s_sub_u32 {b}, {a}, {b}")
    A(f"s_cmp_eq_u32 {g}, 2")
    csel(A, pitch, "1280", "3456")
    csel(A, ts, "1024", "2048")
    csel(A, ga, "4", "8")
    csel(A, ja, "16", "4")
    csel(A, c, "6554", "2428")
    csel(A, so, "10", "27")
    csel(A, do, "40960", "221184")
    A(f"s_mul_i32 {c}, {c}, {b}")
    A(f"s_lshr_b32 {c}, {c}, 16")
    A(f"s_mul_i32 {so}, {so}, {c}")
    A(f"s_sub_u32 {b}, {b}, {so}")
    A(f"s_mul_i32 {do}, {do}, {c}")
    A(f"s_mul_i32 {so}, {c}, {pitch}")
    A(f"s_lshl_b32 {so}, {so}, 5")
    A(f"s_lshl_b32 {c}, {b}, 7")
    A(f"s_add_u32 {so}, {so}, {c}")
    A(f"s_cmp_eq_u32 {g}, 2")
    csel(A, c, "4096", "8192")
    A(f"s_mul_i32 {c}, {c}, {b}")
    A(f"s_add_u32 {do}, {do}, {c}")
    A(f"s_cmp_eq_u32 {g}, 1")
    A(f"s_cselect_b32 {c}, 1024, 0")
    A(f"s_add_u32 {do}, {do}, {c}")
    A(f"s_cmp_lt_u32 {a}, 1620")
    A(f"s_cselect_b32 {so}, {so}, {hex(OOB)}")
    A(f"s_cselect_b32 {do}, {do}, {hex(OOB)}")

def a_consts(C, pf):
    A = C.A
    hf = 19
    A("v_cvt_f32_u32 v7, v2")
    A(f"v_cvt_f32_u32 v{hf}, v3")
    A(f"v_mul_f32 v212, {flit(1/32)}, v7")
    A(f"v_mul_f32 v213, v212, v{hf}")
    A(f"v_mul_f32 v213, {flit(8.0)}, v213")
    for mh in range(2):
        for p in range(4):
            for z in range(2):
                A(f"v_fmamk_f32 v214, v212, {fk(16*mh+2*p+z)}, v213")
                A(f"v_cos_f32 v{60+z}, v214")
                A(f"v_sin_f32 v{62+z}, -v214")
            A(f"v_cvt_pk_bf16_f32 v{80+4*mh+p}, v60, v61")
            A(f"v_cvt_pk_bf16_f32 v{88+4*mh+p}, v62, v63")
            pf()
    A(f"v_mul_f32 v212, {flit(1/640)}, v7")
    A(f"v_mul_f32 v213, v212, v{hf}")
    A("v_mul_f32 v213, 4.0, v213")
    for r in range(12):
        A(f"v_fmamk_f32 v214, v212, {fk(8*(r//4)+r%4)}, v213")
        A(f"v_cos_f32 v{96+r}, v214")
        A(f"v_sin_f32 v{108+r}, v214")
        if r & 1: pf()
    A("v_and_b32 v60, 15, v2")
    A("v_cvt_f32_u32 v60, v60")
    A("v_lshrrev_b32 v61, 4, v2")
    A("v_cvt_f32_u32 v61, v61")
    A(f"v_mul_f32 v212, {flit(1/20)}, v60")
    A(f"v_mul_f32 v213, v212, v{hf}")
    A("v_mul_f32 v213, 4.0, v213")
    A(f"v_fmamk_f32 v213, v61, {fk(0.25)}, v213")
    A(f"v_add_f32 v215, {flit(-0.25)}, v213")
    def cpair(dst, consts, bases):
        for z in range(2):
            A(f"v_fmamk_f32 v214, v212, {fk(consts[z])}, v{bases[z]}")
            A(f"v_cos_f32 v{62+z}, v214")
        A(f"v_cvt_pk_bf16_f32 v{dst}, v62, v63")
    for p in range(4):
        d = [8*((2*p+z) >> 2) + ((2*p+z) & 3) for z in range(2)]
        cpair(120+p, d, [213, 213]); pf()
        cpair(124+p, d, [215, 215]); pf()
    for p in range(2):
        d = [16+2*p, 17+2*p]
        cpair(128+p, d, [213, 213]); pf()
        cpair(130+p, d, [215, 215]); pf()
    A("v_cmp_eq_u32 vcc, 0, v3")
    for p in range(4):
        A(f"v_cndmask_b32 v{128+p}, 0, v{128+p}, vcc")

N_FILLER = 16

def phase0(C):
    A = C.A; vm = C.vm
    A("s_cmp_ge_u32 s2, 256")
    A("s_cbranch_scc1 all_end")
    if OPT.get("cpf", "2") == "2":
        L = C.lab("cpf")
        A("s_getpc_b64 s[26:27]")
        A(f"{L}_pc:")
        A("s_bfe_u32 s50, s2, 0x30003")
        A("s_lshl_b32 s50, s50, 12")
        A("v_lshl_add_u32 v4, v0, 4, s50")
        A("s_bfe_u32 s50, s2, 0x20003")
        A("s_lshl_b32 s50, s50, 12")
        A("s_add_u32 s50, s50, 0x8000")
        A("v_lshl_add_u32 v6, v0, 4, s50")
        A(f"s_sub_u32 s26, s26, {L}_pc-{MAIN}")
        A("s_subb_u32 s27, s27, 0")
        A(f"v_min_u32 v6, code_end-{MAIN}-16, v6")
        A("global_load_dwordx4 v[248:251], v4, s[26:27]")
        A("global_load_dwordx4 v[252:255], v6, s[26:27]")
    A("s_load_dwordx2 s[4:5], s[0:1], 88")
    A("s_load_dwordx4 s[28:31], s[0:1], 56")
    A("s_load_dwordx2 s[6:7], s[0:1], 0")
    A("s_load_dwordx4 s[16:19], s[0:1], 8")
    A("s_load_dwordx4 s[20:23], s[0:1], 32")
    A("s_load_dwordx2 s[24:25], s[0:1], 48")
    A("s_load_dwordx2 s[8:9], s[0:1], 72")
    if CUM: A("s_mov_b32 s53, 0")
    if DLYD:
        A("s_load_dwordx2 s[90:91], s[0:1], 80")
        A("s_waitcnt lgkmcnt(0)")
        A("s_load_dwordx4 s[92:95], s[90:91], 0")
        A("s_waitcnt lgkmcnt(0)")
    elif OPT.get("dly"):
        m, v, n = [int(x) for x in OPT["dly"].split(":")]
        A(f"s_and_b32 s50, s2, {m}")
        A(f"s_cmp_lg_u32 s50, {v}")
        A("s_cbranch_scc1 dly_x")
        for _ in range(n): A("s_sleep 127")
        A("dly_x:")
    if DG:
        A("s_memrealtime s[92:93]")
        A("s_load_dwordx2 s[90:91], s[0:1], 80")
    A("v_and_b32 v1, 63, v0")
    A("v_and_b32 v2, 31, v0")
    A("v_lshrrev_b32 v3, 5, v1")
    A("v_lshrrev_b32 v4, 6, v0")
    A("v_readfirstlane_b32 s3, v4")
    if DLYD:
        A("s_nop 4")
        A("s_lshr_b32 s96, s95, s3")
        A("s_and_b32 s96, s96, 1")
        A("s_cmp_eq_u32 s92, s2")
        A("s_cselect_b32 s96, s96, 0")
        A("s_cmp_lg_u32 s96, 0")
        A("s_cselect_b32 s96, s93, 0")
        dpoint(A, 31)
    A("s_and_b32 s48, s2, 7")
    A("s_lshr_b32 s49, s2, 3")
    A("s_mul_i32 s26, s48, 10")
    A("s_add_u32 s26, s26, s49")
    A("s_mul_i32 s27, s48, 20")
    A("s_add_u32 s27, s27, s49")
    A("s_add_u32 s27, s27, 70")
    A("s_cmp_lt_u32 s49, 10")
    A("s_cselect_b32 s54, s26, s27")
    A("s_lshl_b32 s26, s54, 5")
    A("s_cmp_lt_u32 s49, 30")
    A(f"s_cselect_b32 s26, s26, {hex(OOB)}")
    A("v_lshrrev_b32 v4, 1, v0")
    A("v_and_b32 v5, 1, v0")
    A("v_mul_u32_u24 v56, 7680, v4")
    A("v_lshl_add_u32 v56, v5, 4, v56")
    A("v_add_u32 v56, s26, v56")
    A("v_lshlrev_b32 v57, 1, v4")
    A("s_lshl_b32 s80, s48, 3")
    A("s_and_b32 s26, s49, 7")
    A("s_add_u32 s80, s80, s26")
    A("s_lshr_b32 s26, s2, 7")
    A("s_lshl_b32 s26, s26, 4")
    A("s_bfe_u32 s27, s2, 0x10006")
    A("s_lshl_b32 s27, s27, 2")
    A("s_add_u32 s26, s26, s27")
    A("s_lshr_b32 s27, s3, 1")
    A("s_lshl_b32 s27, s27, 3")
    A("s_add_u32 s26, s26, s27")
    A("s_and_b32 s27, s3, 1")
    A("s_lshl_b32 s27, s27, 1")
    A("s_add_u32 s26, s26, s27")
    A("s_lshl_b32 s26, s26, 6")
    A("s_add_u32 s26, s26, s80")
    A("s_mul_i32 s26, s26, 1280")
    A("v_mul_u32_u24 v58, 81920, v3")
    A("v_lshl_add_u32 v58, v2, 3, v58")
    A("v_add_u32 v58, s26, v58")
    A("s_lshr_b32 s26, s2, 6")
    A("s_lshl_b32 s26, s26, 6")
    A("s_add_u32 s80, s80, s26")
    A(f"s_mul_i32 s80, s80, {BLK}")
    A("s_waitcnt lgkmcnt(0)")
    if DG:
        A("s_mov_b32 s88, s92")
        A("s_lshl_b32 s96, s2, 2")
        A("s_add_u32 s96, s96, 0x88000")
        A("v_mov_b32 v200, s96")
        A("v_mov_b32 v201, s92")
        A("s_cmp_eq_u32 s3, 0")
        A("s_cselect_b64 exec, 1, 0")
        A("global_store_dword v200, v201, s[4:5] sc0 sc1")
        A("s_mov_b64 exec, -1")
    Lfill, Ljoin = C.lab("filler"), C.lab("p0join")
    A("s_cmp_ge_u32 s49, 30")
    A(f"s_cbranch_scc1 {Lfill}")
    srd(A, 32, 28, 0, 1280)
    srd(A, 36, 30, 0, 640*7680)
    for i in range(5):
        A(f"buffer_load_ushort v{20+i}, v57, s[32:35], 0 offen offset:{256*i}"); vm.issue("c")
    for i in range(5):
        if i: A(f"s_mov_b32 s26, {i*128*7680}")
        A(f"buffer_load_dwordx4 v[{28+4*i}:{31+4*i}], v56, s[36:39], {'s26' if i else '0'} offen"); vm.issue(("w", i))
    srd(A, 32, 6, 0, SZ_X)
    for i in range(5):
        A(f"buffer_load_dwordx2 v[{8+2*i}:{9+2*i}], v58, s[32:35], 0 offen offset:{256*i}"); vm.issue("x")
    stamp(A, 0)
    A(f"s_load_dword s{STAG}, s[4:5], {hex(WS_EPOCH)}")
    def wt_code():
        A("s_lshl_b32 s26, s49, 2")
        A("s_add_u32 s26, s26, s3")
        A("s_mul_i32 s27, s26, 4370")
        A("s_lshr_b32 s27, s27, 16")
        A("s_mul_i32 s50, s27, 15")
        A("s_sub_u32 s26, s26, s50")
        A("s_mul_i32 s26, s26, 22")
        A("s_min_u32 s26, s26, 299")
        A("s_lshl_b32 s50, s48, 3")
        A("s_add_u32 s27, s27, s50")
        A("s_lshr_b32 s50, s27, 2")
        A("s_and_b32 s27, s27, 3")
        A("v_and_b32 v4, 7, v1")
        A("v_bfe_u32 v5, v1, 3, 2")
        A("v_lshl_add_u32 v6, v5, 5, v4")
        A("s_lshl_b32 s51, s50, 7")
        A("s_lshl_b32 s52, s27, 3")
        A("s_add_u32 s51, s51, s52")
        A("v_add_u32 v6, s51, v6")
        A("v_mul_u32_u24 v228, 642, v6")
        A("v_mul_u32_u24 v7, 20, v3")
        A("v_add_u32 v228, v228, v7")
        A("s_lshl_b32 s51, s26, 1")
        A("s_cmp_lt_u32 s49, 30")
        A(f"s_cselect_b32 s51, s51, {hex(OOB)}")
        A("v_add_u32 v228, s51, v228")
        A("s_mul_i32 s51, s3, 2816")
        A(f"s_add_u32 s51, s51, {L_WT}")
        A("v_mul_u32_u24 v229, 1280, v3")
        A("v_lshl_add_u32 v229, v4, 4, v229")
        A("v_lshl_add_u32 v229, v5, 2, v229")
        A("v_add_u32 v229, s51, v229")
        A("v_lshl_add_u32 v230, v1, 4, s51")
        A("s_lshl_b32 s26, s26, 13")
        A("s_lshl_b32 s50, s50, 9")
        A("s_add_u32 s26, s26, s50")
        A("s_lshl_b32 s27, s27, 7")
        A("s_add_u32 s26, s26, s27")
        A("s_cmp_lt_u32 s49, 30")
        A(f"s_cselect_b32 s26, s26, {hex(OOB)}")
        A("v_lshrrev_b32 v5, 3, v1")
        A("v_lshlrev_b32 v231, 13, v5")
        A("v_lshl_add_u32 v231, v4, 4, v231")
        A("v_add_u32 v231, s26, v231")
        srd(A, 32, 16, 0, SZ_WF)
        srd(A, 36, 18, 0, SZ_WF)
        for m in range(2):
            A(f"buffer_load_dwordx4 v[{216+6*m}:{219+6*m}], v228, s[{32+4*m}:{35+4*m}], 0 offen"); vm.issue("wt")
            A(f"buffer_load_dwordx2 v[{220+6*m}:{221+6*m}], v228, s[{32+4*m}:{35+4*m}], 0 offen offset:16"); vm.issue("wt")
    wt_code()
    stamp(A, 1)
    A("s_waitcnt lgkmcnt(0)")
    A(f"s_add_u32 s{STAG}, s{STAG}, {hex(TAGSTEP)}")
    srd(A, 12, 4, WS_FLG, SZ_FLG)
    a_consts(C, lambda: None)
    stamp(A, 2)
    vm.wait(["c"])
    for i in range(5):
        r = 20+i
        A(f"v_lshlrev_b32 v{r}, 16, v{r}")
        A(f"v_mul_f32 v26, {flit(-math.log2(math.e))}, v{r}")
        A(f"v_exp_f32 v26, v26")
        A(f"v_add_f32 v26, 1.0, v26")
        A(f"v_rcp_f32 v26, v26")
        A(f"v_mul_f32 v{r}, v{r}, v26")
        bf16_round_v(A, r, r)
    for i in range(5):
        vm.wait([("w", i)])
        for q in range(4):
            w = 28+4*i+q
            A(f"v_lshlrev_b32 v26, 16, v{w}")
            A(f"v_and_b32 v27, 0xffff0000, v{w}")
            if i == 0:
                A(f"v_mul_f32 v{48+2*q}, v{20+i}, v26")
                A(f"v_mul_f32 v{49+2*q}, v{20+i}, v27")
            else:
                A(f"v_fmac_f32 v{48+2*q}, v{20+i}, v26")
                A(f"v_fmac_f32 v{49+2*q}, v{20+i}, v27")
    for ctl in ["quad_perm:[2,3,0,1]", "row_ror:4", "row_ror:8"]:
        for q in range(8):
            A(f"v_add_f32_dpp v{48+q}, v{48+q}, v{48+q} {ctl} row_mask:0xf bank_mask:0xf")
    A("v_lshrrev_b32 v5, 4, v0")
    A("v_lshlrev_b32 v5, 6, v5")
    A("v_and_b32 v6, 1, v0")
    A("v_lshl_add_u32 v5, v6, 5, v5")
    A("v_and_b32 v6, 14, v0")
    A("v_cmp_eq_u32 vcc, 0, v6")
    A("s_and_saveexec_b64 s[26:27], vcc")
    A(f"ds_write_b128 v5, v[48:51] offset:{L_MODP}")
    A(f"ds_write_b128 v5, v[52:55] offset:{L_MODP+16}")
    A("s_mov_b64 exec, s[26:27]")
    A("s_waitcnt lgkmcnt(0)")
    A("s_barrier")
    stamp(A, 3)
    L = C.lab("modfin")
    A("s_cmp_lg_u32 s3, 0")
    A(f"s_cbranch_scc1 {L}")
    A("v_and_b32 v6, 15, v0")
    A("v_lshrrev_b32 v5, 4, v0")
    A("v_lshlrev_b32 v5, 8, v5")
    A("v_lshl_add_u32 v5, v6, 2, v5")
    A(f"v_add_u32 v5, {L_MODP}, v5")
    A("ds_read2_b32 v[20:21], v5 offset0:0 offset1:16")
    A("ds_read2_b32 v[22:23], v5 offset0:32 offset1:48")
    A("s_waitcnt lgkmcnt(0)")
    A("v_add_f32 v20, v20, v21")
    A("v_add_f32 v22, v22, v23")
    A("v_add_f32 v20, v20, v22")
    for sw in ("v_permlane16_swap_b32", "v_permlane32_swap_b32"):
        A("v_mov_b32 v21, v20")
        A(f"{sw} v20, v21")
        A("v_add_f32 v20, v20, v21")
    bf16_round_v(A, 20, 20)
    A("s_cmp_ge_u32 s54, 160")
    A("s_cselect_b32 s26, 120, 0")
    A("s_sub_u32 s26, s54, s26")
    A("s_sub_u32 s26, s26, 40")
    A("v_add_f32 v21, 1.0, v20")
    bf16_round_v(A, 21, 21)
    A("s_cmp_lt_u32 s26, 40")
    A("s_cselect_b64 vcc, -1, 0")
    A("v_cndmask_b32 v20, v20, v21, vcc")
    A(f"v_mov_b32 v21, s{STAG}")
    A("s_lshl_b32 s26, s54, 7")
    A("s_cmp_lt_u32 s54, 80")
    A(f"s_cselect_b32 s26, s26, {hex(OOB)}")
    A("v_lshl_add_u32 v22, v6, 3, s26")
    A("s_lshl_b32 s26, s54, 6")
    A("s_cmp_ge_u32 s54, 80")
    A(f"s_cselect_b32 s26, s26, {hex(OOB)}")
    A("s_cmp_lt_u32 s49, 30")
    A(f"s_cselect_b32 s26, s26, {hex(OOB)}")
    A("v_lshl_add_u32 v23, v6, 2, s26")
    srd(A, 32, 4, WS_MODG, 80*128)
    srd(A, 36, 4, WS_MOD, SZ_MOD)
    A("s_mov_b64 exec, 0xffff")
    A(f"buffer_store_dwordx2 v[20:21], v22, s[32:35], 0 offen {SC}")
    A(f"buffer_store_dword v20, v23, s[36:39], 0 offen {SC}")
    A("s_mov_b64 exec, -1")
    A(f"{L}:")
    stamp(A, 4)
    vm.wait(["x"])
    unpack_bf16(A, 60, 8, 10)
    layernorm(A, 60, 20, 212, 213)
    stamp(A, 5)
    vm.wait(["wt"])
    for m in range(2):
        for cc in range(12):
            op = "ds_write_b16_d16_hi" if cc & 1 else "ds_write_b16"
            A(f"{op} v229, v{216+6*m+cc//2} offset:{cc*128 + 2*m}")
    A("s_waitcnt lgkmcnt(0)")
    for j in range(3):
        A(f"ds_read_b128 v[{216+4*j}:{219+4*j}], v230 offset:{1024*j}")
    A(f"v_add_u32 v229, {hex(OOB)}, v231")
    A("v_cmp_gt_u32 vcc, 48, v1")
    A("v_cndmask_b32 v229, v229, v231, vcc")
    for q in range(4): A(f"v_accvgpr_write_b32 a{12+q}, -1")
    A("s_waitcnt lgkmcnt(0)")
    A(f"s_branch {Ljoin}")
    A(f"{Lfill}:")
    q_main = vm.q; vm.q = []
    srd(A, 32, 6, 0, SZ_X)
    for i in range(5):
        A(f"buffer_load_dwordx2 v[{8+2*i}:{9+2*i}], v58, s[32:35], 0 offen offset:{256*i}"); vm.issue("x")
    stamp(A, 0)
    A(f"s_load_dword s{STAG}, s[4:5], {hex(WS_EPOCH)}")
    A(f"s_sub_u32 s26, s2, {256 - N_FILLER}")
    A("s_lshl_b32 s26, s26, 12")
    A("v_lshl_add_u32 v59, v0, 4, s26")
    for q in range(4): A(f"v_accvgpr_write_b32 a{12+q}, -1")
    srd(A, 40, 4, WS_Y1, SZ_Y1N)
    fills = []
    for sd, sz in ((40, SZ_Y1N),):
        for i in range(-(-sz // (N_FILLER*4096))):
            def f(sd=sd, i=i):
                A(f"s_mov_b32 s81, {i*N_FILLER*4096}")
                A(f"buffer_store_dwordx4 a[12:15], v59, s[{sd}:{sd+3}], s81 offen {SC}"); vm.issue("fill")
            fills.append(f)
    def pf(k=1):
        for _ in range(k):
            if fills: fills.pop(0)()
    pf(4)
    stamp(A, 1)
    A("s_waitcnt lgkmcnt(0)")
    A(f"s_add_u32 s{STAG}, s{STAG}, {hex(TAGSTEP)}")
    srd(A, 12, 4, WS_FLG, SZ_FLG)
    a_consts(C, pf)
    stamp(A, 2)
    vm.wait(["x"])
    unpack_bf16(A, 60, 8, 10)
    pf(2)
    layernorm(A, 60, 20, 212, 213)
    pf(99)
    A(f"v_mov_b32 v229, {hex(OOB)}")
    A(f"v_mov_b32 v231, {hex(OOB)}")
    stamp(A, 5)
    A("s_waitcnt vmcnt(0)")
    A("s_barrier")
    flag_store(C, FA)
    A(f"{Ljoin}:")
    vm.q = []
    stamp(A, 6)
    A("v_lshlrev_b32 v245, 4, v0")
    A("v_add_u32 v246, 8192, v245")
    A("v_add_u32 v247, 4096, v245")
    A("v_cmp_gt_u32 vcc, 128, v0")
    A("v_cndmask_b32 v246, v247, v246, vcc")
    A(f"v_and_b32 v247, {N_FILLER - 1}, v0")
    A(f"v_add_u32 v247, {256 - N_FILLER}, v247")
    A(f"v_lshlrev_b32 v247, {FSH}, v247")
    srd(A, 32, 4, WS_MODG, 80*128)
    A("s_movk_i32 s26, 4096")
    def mod_loads():
        A(f"buffer_load_dwordx4 v[232:235], v245, s[32:35], 0 offen {LSC}")
        A(f"buffer_load_dwordx4 v[236:239], v245, s[32:35], s26 offen {LSC}")
        A(f"buffer_load_dwordx4 v[240:243], v246, s[32:35], 0 offen {LSC}")
    def mod_test():
        A("v_min3_u32 v4, v233, v235, v237")
        A("v_max3_u32 v5, v233, v235, v237")
        A("v_min3_u32 v4, v4, v239, v241")
        A("v_max3_u32 v5, v5, v239, v241")
        A("v_min_u32 v4, v4, v243")
        A("v_max_u32 v5, v5, v243")
        A("v_cmp_ne_u32 vcc, v4, v5")
        A(f"v_cmp_ne_u32 s[50:51], s{STAG}, v5")
        A("s_or_b64 vcc, vcc, s[50:51]")
    retry_loop(C, mod_loads, mod_test)
    cnt(A, 0)
    A("v_lshrrev_b32 v4, 1, v245")
    A("v_lshrrev_b32 v5, 1, v246")
    A(f"v_add_u32 v4, {L_MODV}, v4")
    A(f"v_add_u32 v5, {L_MODV}, v5")
    A("v_add_u32 v6, 2048, v4")
    A("ds_write2_b32 v4, v232, v234 offset0:0 offset1:1")
    A("ds_write2_b32 v6, v236, v238 offset0:0 offset1:1")
    A("ds_write2_b32 v5, v240, v242 offset0:0 offset1:1")
    fa_ld(C); vm.issue("fa")
    srd(A, 28, 4, WS_WT, SZ_COL)
    def wt_store(j):
        if j: A(f"s_mov_b32 s81, {j*8*8192}")
        A(f"buffer_store_dwordx4 v[{216+4*j}:{219+4*j}], v{229 if j == 2 else 231}, s[28:31], {'s81' if j else '0'} offen {SC}"); vm.issue("wts")
    C.wt_ops = [lambda j=j: wt_store(j) for j in range(3)]
    if OPT.get("wts", "a") == "now":
        while C.wt_ops: C.wt_ops.pop(0)()
    if True:
        A("s_lshl_b32 s26, s2, 12")
        A("v_lshl_add_u32 v245, v0, 4, s26")
        for off, sz in ((WS_Z, SZ_COL),) + (((WS_H2P, SZ_H2P),) if OPT.get("h2f", "a2") == "a2" else ()):
            srd(A, 32, 4, off, sz)
            for i in range(3):
                if i: A(f"s_mov_b32 s26, {i << 20}")
                A(f"buffer_store_dwordx4 a[12:15], v245, s[32:35], {'s26' if i else '0'} offen {SC}"); vm.issue("wts")
    A("s_waitcnt lgkmcnt(0)")
    A("s_barrier")
    stamp(A, 7)

def fa_ld(C):
    C.A(f"buffer_load_dword v244, v247, s[12:15], 0 offen offset:{FA} {LSC}")
def flag_check(C, name, reg, ld):
    A = C.A; L = C.lab(name)
    A(f"v_cmp_ne_u32 vcc, s{STAG}, v{reg}")
    A(f"s_cbranch_vccnz {L}")
    A(f"{L}_b:")
    def tail():
        A(f"{L}:")
        q = C.vm.q
        retry_loop(C, ld, lambda: A(f"v_cmp_ne_u32 vcc, s{STAG}, v{reg}"))
        C.vm.q = q
        A(f"s_branch {L}_b")
    C.tail.append(tail)

def phase_a(C):
    A = C.A; vm = C.vm
    A(f"v_lshlrev_b32 v6, 4, v2")
    A(f"v_add_u32 v6, {L_MODV}, v6")
    for i in range(5):
        A(f"ds_read_b128 v[{20+4*i}:{23+4*i}], v6 offset:{2560 + 512*i}")
    for i in range(5):
        A(f"ds_read_b128 v[{40+4*i}:{43+4*i}], v6 offset:{512*i}")
    A(f"s_mul_i32 s26, s3, {2*PITCH2}")
    A(f"v_mul_u32_u24 v4, {PITCH2}, v3")
    A("v_lshl_add_u32 v4, v2, 3, v4")
    A("v_add_u32 v4, s26, v4")
    A("v_bfe_u32 v5, v1, 2, 2")
    A("v_lshl_add_u32 v5, v3, 3, v5")
    A("v_mul_u32_u24 v5, 40, v5")
    A("v_bfe_u32 v6, v1, 4, 1")
    A("v_lshl_add_u32 v5, v6, 5, v5")
    A("v_and_b32 v6, 3, v1")
    A("v_lshl_add_u32 v5, v6, 3, v5")
    A("v_add_u32 v5, s26, v5")
    for i in range(5):
        A(f"s_waitcnt lgkmcnt({9-i})")
        for k in (0, 2):
            q = 4*i+k
            A(f"v_pk_mul_f32 {pr(20+q)}, {pr(20+q)}, {pr(212)} op_sel_hi:[1,0]")
    for i in range(5):
        A(f"s_waitcnt lgkmcnt({4-i})")
        for k in (0, 2):
            q = 4*i+k
            A(f"v_pk_fma_f32 {pr(60+q)}, {pr(60+q)}, {pr(20+q)}, {pr(40+q)}")
        for k in (0, 1):
            q = 2*i+k
            A(f"v_cvt_pk_bf16_f32 v{8+q}, v{60+2*q}, v{61+2*q}")
        A(f"ds_write_b64 v4, v[{8+2*i}:{9+2*i}] offset:{256*i}")
    def wt1():
        if C.wt_ops: C.wt_ops.pop(0)()
    wt1()
    A("v_mov_b32 v18, 0")
    A("v_mov_b32 v19, 0")
    A("v_cmp_eq_u32 vcc, 0, v2")
    A("s_and_saveexec_b64 s[26:27], vcc")
    A("ds_write_b64 v4, v[18:19] offset:1280")
    A("s_mov_b64 exec, s[26:27]")
    A("s_waitcnt lgkmcnt(0)")
    for row in range(2):
        for mh in range(2):
            for j in range(2):
                d = 132 + 8*row + 4*mh + 2*j
                A(f"ds_read_b64_tr_b16 v[{d}:{d+1}], v5 offset:{row*PITCH2 + 640*mh + 160*j}")
    T = [[148, 164], [180, 196]]
    A("s_waitcnt lgkmcnt(0)")
    for mh in range(2):
        for row in range(2):
            a = 132 + 8*row + 4*mh
            for ri in range(2):
                mf32(A, T[row][ri], a, (80 if ri == 0 else 88) + 4*mh, mh == 0)
    wt1()
    stamp(A, 8)
    A("v_bfe_u32 v4, v2, 3, 1")
    A("v_lshlrev_b32 v5, 5, v2")
    A("v_lshl_add_u32 v5, v3, 12, v5")
    A("s_lshl_b32 s26, s3, 2")
    A(f"s_add_u32 s26, s26, {L_TR}")
    A("v_add_u32 v5, s26, v5")
    A("v_lshl_add_u32 v4, v4, 4, v5")
    A("v_bfe_u32 v6, v2, 3, 1")
    A("v_xor_b32 v6, 1, v6")
    A("v_lshl_add_u32 v5, v6, 4, v5")
    B = [20, 32]
    TA, TB = 60, 62
    for row in range(2):
        tr, ti = T[row]
        b = B[row]
        for r in range(0, 12, 2):
            c, s_ = 96+r, 108+r
            A(f"v_pk_mul_f32 {pr(TA)}, {pr(tr+r)}, {pr(c)}")
            A(f"v_pk_mul_f32 {pr(TB)}, {pr(ti+r)}, {pr(c)}")
            A(f"v_pk_fma_f32 {pr(TA)}, {pr(ti+r)}, {pr(s_)}, {pr(TA)}")
            A(f"v_pk_fma_f32 {pr(TB)}, {pr(tr+r)}, {pr(s_)}, {pr(TB)} neg_lo:[1,0,0] neg_hi:[1,0,0]")
            dr = b + r//2 if r < 8 else b + 8 + (r-8)//2
            di = b + 4 + r//2 if r < 8 else b + 10 + (r-8)//2
            A(f"v_cvt_pk_bf16_f32 v{dr}, v{TA}, v{TA+1}")
            A(f"v_cvt_pk_bf16_f32 v{di}, v{TB}, v{TB+1}")
    wt1()
    O = [148, 180]
    for st in range(3):
        for row in range(2):
            mf32(A, O[row], 120 + 4*st, B[row] + 4*st, st == 0)
    stamp(A, 9)
    A("v_bfe_u32 v6, v0, 4, 1")
    A("v_xor_b32 v6, v0, v6")
    A("v_lshlrev_b32 v6, 4, v6")
    A(f"v_add_u32 v6, {L_TR}, v6")
    A("v_lshl_add_u32 v7, v0, 4, s80")
    A(f"v_add_u32 v44, {hex(OOB)}, v7")
    A("s_movk_i32 s26, 136")
    A("v_cmp_gt_u32 vcc, s26, v0")
    A("v_cndmask_b32 v44, v44, v7, vcc")
    srd(A, 32, 4, WS_Y1, SZ_Y1N)
    for ri in range(2):
        for r in range(7):
            A(f"v_cvt_pk_bf16_f32 v{60+7*ri+r}, v{O[0]+8*ri+r}, v{O[1]+8*ri+r}")
            A(f"ds_write_b32 v{4+ri}, v{60+7*ri+r} offset:{(8*(r//4)+r%4)*1024}")
    vm.wait(["fa"])
    flag_check(C, "fa", 244, lambda: fa_ld(C))
    A("s_movk_i32 s26, 4096")
    A("s_movk_i32 s27, 8192")
    A("s_waitcnt lgkmcnt(0)")
    A("s_barrier")
    for n in range(3):
        A(f"ds_read_b128 v[{8+4*n}:{11+4*n}], v6 offset:{4096*n}")
    for n in range(3):
        A(f"s_waitcnt lgkmcnt({2-n})")
        A(f"buffer_store_dwordx4 v[{8+4*n}:{11+4*n}], v{44 if n == 2 else 7}, s[32:35], {['0','s26','s27'][n]} offen {SC}"); vm.issue("y1")
    stamp(A, 10)

NU = 5
L_PREP2 = L_PREP
PD = 40
G_S = [16, 17, 18, 19, 28]
DO_S = [29, 30, 31, 81, 82]
def repack(C):
    A = C.A; vm = C.vm
    A("v_lshrrev_b32 v4, 3, v1")
    A("v_and_b32 v5, 7, v1")
    A("v_bfe_u32 v6, v1, 4, 1")
    A("v_lshrrev_b32 v7, 5, v1")
    A("v_lshlrev_b32 v6, 1, v6")
    A("v_lshl_or_b32 v6, v7, 2, v6")
    A("v_xor_b32 v7, 4, v6")
    A("v_xor_b32 v6, v5, v6")
    A("v_xor_b32 v7, v5, v7")
    A("s_mul_i32 s83, s3, 20480")
    for unit in range(NU):
        B = 36
        prep_params(C, unit, B)
        A(f"s_cmp_eq_u32 s{B}, 0")
        A("s_cselect_b32 s32, s20, s22")
        A("s_cselect_b32 s33, s21, s23")
        A(f"s_cmp_eq_u32 s{B}, 2")
        A("s_cselect_b32 s32, s24, s32")
        A("s_cselect_b32 s33, s25, s33")
        A(f"s_mov_b32 s34, {640*1728*2}")
        A("s_mov_b32 s35, 0x20000")
        A(f"v_mul_lo_u32 v59, v4, s{B+1}")
        A(f"v_lshl_add_u32 v232, v6, 4, v59")
        A(f"v_lshl_add_u32 v233, v7, 4, v59")
        A(f"s_lshl_b32 s27, s{B+1}, 3")
        if OPT.get("xp") in ("nd", "nb"): A(f"s_mov_b32 s{B+2}, {hex(OOB)}")
        for i in range(4):
            A(f"s_add_u32 m0, s83, {L_PREP2 + 4096*unit + 1024*i}")
            A(f"buffer_load_dwordx4 v{232+(i&1)}, s[32:35], s{B+2} offen lds"); vm.issue(("P", unit))
            if i < 3: A(f"s_add_u32 s{B+2}, s{B+2}, s27")
        A(f"s_mov_b32 s{G_S[unit]}, s{B}")
        A(f"s_mov_b32 s{DO_S[unit]}, s{B+3}")
        if OPT.get("xp") in ("ns", "nb"): A(f"s_mov_b32 s{DO_S[unit]}, {hex(OOB)}")
    for base, ga, ja in ((8, 8, 4), (16, 4, 16)):
        A("v_lshrrev_b32 v24, 4, v1")
        A("v_bfe_u32 v25, v1, 2, 2")
        A(f"v_mul_u32_u24 v24, {ga}, v24")
        A("v_add_u32 v24, v24, v25")
        A(f"v_add_u32 v25, {ja}, v24")
        A("v_and_b32 v26, 1, v1")
        A("v_bfe_u32 v27, v1, 1, 1")
        for j, rr in enumerate([24, 25]):
            A(f"v_bfe_u32 v28, v{rr}, 1, 1")
            A(f"v_lshrrev_b32 v29, 2, v{rr}")
            A(f"v_lshrrev_b32 v30, 3, v{rr}")
            A(f"v_xor_b32 v29, v29, v30")
            A(f"v_and_b32 v29, 1, v29")
            A(f"v_lshl_or_b32 v28, v29, 1, v28")
            A(f"v_lshlrev_b32 v28, 1, v28")
            A(f"v_xor_b32 v28, v28, v27")
            A(f"v_lshlrev_b32 v31, 7, v{rr}")
            A(f"v_lshl_add_u32 v31, v26, 3, v31")
            A(f"v_add_u32 v31, s83, v31")
            for tile in range(4):
                A(f"v_xor_b32 v29, {2*tile}, v28")
                A(f"v_lshl_add_u32 v{base+4*j+tile}, v29, 4, v31")
    A("v_lshlrev_b32 v24, 4, v1")
    if OPT.get("yg", "1") == "1":
        srd(A, 44, 4, WS_Y1, SZ_Y1N)
        A(f"v_mul_u32_u24 v25, {BLK}, v0")
        retry_loop(C, lambda: A(f"buffer_load_dword v26, v25, s[44:47], 0 offen offset:{int(OPT.get('ygo', 0))} {LSC}"),
                   lambda: A("v_cmp_eq_u32 vcc, -1, v26"))
    for unit in range(NU):
        g, do = f"s{G_S[unit]}", f"s{DO_S[unit]}"
        L = C.lab("rp")
        A(f"s_cmp_eq_u32 {g}, 2")
        csel(A, "s26", hex(WS_W2), hex(WS_W13))
        csel(A, "s34", hex(SZ_W2P), hex(SZ_W13))
        csel(A, "s27", "1024", "2048")
        A("s_add_u32 s32, s4, s26")
        A("s_addc_u32 s33, s5, 0")
        vm.wait([("P", unit)])
        A(f"s_cmp_eq_u32 {g}, 2")
        A(f"s_cbranch_scc1 {L}")
        for var, base in enumerate((8, 16)):
            if var: A(f"{L}:")
            for tile in range(4):
                for j in range(2):
                    d = PD + 16*unit + 4*tile + 2*j
                    A(f"ds_read_b64_tr_b16 v[{d}:{d+1}], v{base+4*j+tile} offset:{L_PREP2 + 4096*unit}")
            if var == 0: A(f"s_branch {L}_e")
        A(f"{L}_e:")
        for tile in range(4):
            d = PD + 16*unit + 4*tile
            A(f"s_waitcnt lgkmcnt({6-2*tile})")
            A(f"buffer_store_dwordx4 v[{d}:{d+3}], v24, s[32:35], {do} offen {SC}"); vm.issue("ps")
            if tile < 3: A(f"s_add_u32 {do}, {do}, s27")

def cis_table(C, T, out, scale=None, fill=None):
    A = C.A
    WC, WS, BP, ANG, th, k0 = T, T+4, T+8, T+12, T+22, T+23
    A(f"v_add_f32 v{ANG}, v{th}, v{th}")
    A(f"v_mul_f32 v{ANG+1}, {fk(3.0)}, v{th}")
    for j, a in ((1, th), (2, ANG), (3, ANG+1)):
        A(f"v_cos_f32 v{WC+j}, v{a}")
        A(f"v_sin_f32 v{WS+j}, v{a}")
    def base(m):
        b = BP + 2*(m & 1); a = k0
        if m:
            a = ANG + (m & 1)
            A(f"v_fmamk_f32 v{a}, v{th}, {fk(8.0*m)}, v{k0}")
        A(f"v_cos_f32 v{b}, v{a}")
        A(f"v_sin_f32 v{b+1}, v{a}")
        if scale: A(f"v_pk_mul_f32 {pr(b)}, {pr(b)}, {scale} op_sel_hi:[1,0]")
    base(0)
    for m in range(4):
        if m < 3: base(m+1)
        b = BP + 2*(m & 1)
        for jp in range(2):
            r = 4*m + 2*jp
            dc, ds = out(r, None)
            A(f"v_pk_mul_f32 {pr(dc)}, {pr(WC+2*jp)}, {pr(b)} op_sel_hi:[1,0]")
            A(f"v_pk_mul_f32 {pr(ds)}, {pr(WC+2*jp)}, {pr(b)} op_sel:[0,1] op_sel_hi:[1,1]")
            A(f"v_pk_fma_f32 {pr(dc)}, {pr(WS+2*jp)}, {pr(b)}, {pr(dc)} op_sel:[0,1,0] op_sel_hi:[1,1,1] neg_lo:[1,0,0] neg_hi:[1,0,0]")
            A(f"v_pk_fma_f32 {pr(ds)}, {pr(WS+2*jp)}, {pr(b)}, {pr(ds)} op_sel:[0,0,0] op_sel_hi:[1,0,1]")
            out(r, (dc, ds))
        if fill: fill()

NS = int(OPT.get("ns", 4))
NS0 = 4
SLOT = 28*1024
C_LDS = NS0*SLOT
ZP = 1552
Z_OFF = C_LDS
ST_OFF = C_LDS + 8*ZP
STP = 1296
ST_H = ST_OFF + 8*STP
SCRAP = ST_H + 8*STP
M_OFF = SCRAP + 1024
LDS_TOTAL = M_OFF + 8192
B_YST = C_LDS
B_EX1 = C_LDS + 16384
assert B_EX1 + 16384 <= M_OFF

DT = OPT.get("dt", "1") == "1"
def ring_buf(s_):
    if DT: return s_ % 4 if s_ < 9 else 4
    return s_ % NS

def early_setup(C):
    A = C.A
    A("s_lshl_b32 s26, s48, 3")
    A("s_and_b32 s27, s49, 7")
    A("s_add_u32 s26, s26, s27")
    A("s_lshr_b32 s27, s49, 3")
    A("s_lshl_b32 s27, s27, 3")
    A("s_lshl_b32 s50, s3, 1")
    A("s_add_u32 s27, s27, s50")
    A("s_lshl_b32 s27, s27, 6")
    A("s_add_u32 s27, s27, s26")
    A("s_mul_i32 s27, s27, 1280")
    A("v_mul_u32_u24 v249, 40, v2")
    A("v_lshl_add_u32 v249, v3, 3, v249")
    A("v_add_u32 v249, s27, v249")
def hh_setup(C):
    A = C.A
    A("s_lshl_b32 s26, s40, 3")
    A("s_lshl_b32 s27, s3, 1")
    A("s_add_u32 s26, s26, s27")
    A("s_mul_i32 s26, s26, 55296")
    A("s_lshl_b32 s27, s41, 9")
    A("v_lshl_add_u32 v249, v1, 4, s27")
    A(f"v_mov_b32 v241, {hex(OOB)}")
    for i, r in ((3, 254), (2, 251), (1, 250), (0, 249)):
        A("s_mov_b32 s50, 55296")
        if i: A(f"v_add_u32 v{r}, {1024*i}, v249")
        A(f"v_cmp_gt_u32 vcc, s50, v{r}")
        A(f"v_add_u32 v{r}, s26, v{r}")
        if i == 3:
            A("v_cmp_gt_u32 s[50:51], 32, v1")
            A("s_and_b64 vcc, vcc, s[50:51]")
        A(f"v_cndmask_b32 v{r}, v241, v{r}, vcc")
    for q in range(4): A(f"v_accvgpr_write_b32 a{252+q}, -1")
def x_ops(C):
    A = C.A; ops = [lambda: srd(A, 28, 6, 0, SZ_X), lambda: A("s_mov_b32 s81, 81920")]
    for r in range(2):
        for q in range(3):
            def f(r=r, q=q):
                d = 6*r + 2*q
                A(f"buffer_load_dwordx2 a[{d}:{d+1}], v249, s[28:31], {'s81' if r else '0'} offen offset:{16*q}")
                C.vm.issue("X")
            ops.append(f)
    return ops
def hhfill_ops(C):
    A = C.A; ops = [lambda: A("s_mov_b32 s82, 55296")]
    for rt in range(2):
        for r in (249, 250, 251, 254):
            def f(r=r, rt=rt):
                A(f"buffer_store_dwordx4 a[252:255], v{r}, s[24:27], {'s82' if rt else '0'} offen {SC}")
                C.vm.issue("HF")
            f.mem = True
            ops.append(f)
    return ops
def m_ops(C):
    A = C.A; ops = []
    def m0():
        srd(A, 44, 4, WS_MOD, SZ_MOD)
        A("v_lshlrev_b32 v255, 4, v1")
        A("s_lshl_b32 s83, s3, 11")
    ops.append(m0)
    for i in range(2):
        def f(i=i):
            A(f"s_add_u32 m0, s83, {M_OFF + 1024*i}")
            A(f"s_add_u32 s43, s83, {5120 + 1024*i}")
            A(f"buffer_load_dwordx4 v255, s[44:47], s43 offen {LSC} lds")
            C.vm.issue("M")
        ops.append(f)
    return ops
def fw_ld(C):
    A = C.A
    A(f"s_mov_b32 s26, {FW}")
    A(f"buffer_load_dword v253, v252, s[12:15], s26 offen {LSC}")

def phase_b(C):
    A = C.A; vm = C.vm
    Lskip, Ldone = C.lab("b_skip"), C.lab("b_done")
    early_setup(C)
    A(f"v_lshlrev_b32 v252, {FSH}, v0")
    A("s_cmp_gt_u32 s2, 160")
    A(f"s_cbranch_scc1 {Lskip}")
    q_skip = list(vm.q)
    A("s_mul_i32 s20, s48, 20")
    A("s_add_u32 s20, s20, s49")
    A("s_cmp_eq_u32 s2, 160")
    A("s_cselect_b32 s20, 160, s20")
    A("s_lshl_b32 s21, s20, 1")
    A("s_lshr_b32 s22, s3, 1")
    A("s_add_u32 s21, s21, s22")
    A("s_and_b32 s23, s3, 1")
    A("s_lshl_b32 s24, s21, 13")
    A("s_lshl_b32 s25, s23, 12")
    A("s_add_u32 s24, s24, s25")
    srd(A, 36, 4, WS_Z, SZ_COL)
    pend = []
    def fill(k=1):
        for _ in range(k):
            if pend: pend.pop(0)()
    C32, S32, N32 = 40, 48, 56
    C64, S64 = 64, 80
    TWc, TWs = 96, 112
    AR, AI = 128, 144
    Pr, Pi, Pn = 160, 168, 176
    Or, Oi, On = 184, 192, 200
    T2c, T2s = 208, 224
    t0, t1, t2, t3, t4, t5 = 240, 241, 242, 243, 244, 245
    hf, pf, af = 246, 247, 5
    T = 176; TH, K0 = T+22, T+23
    A(f"v_cvt_f32_u32 v{hf}, v3")
    A(f"v_cvt_f32_u32 v{pf}, v2")
    A(f"v_cvt_f32_u32 v{af}, s23")
    A(f"v_mov_b32 v{T}, 1.0")
    A(f"v_mov_b32 v{T+4}, 0")
    def f32out(c, s_): return lambda r, p: (c+r, s_+r)
    def bfout(c, s_, n=None):
        def out(r, p):
            dc = T + 14 + 4*((r >> 1) & 1)
            if p is None: return (dc, dc+2)
            A(f"v_cvt_pk_bf16_f32 v{c + r//2}, v{dc}, v{dc+1}")
            A(f"v_cvt_pk_bf16_f32 v{s_ + r//2}, v{dc+2}, v{dc+3}")
            if n is not None: A(f"v_xor_b32 v{n + r//2}, 0x80008000, v{s_ + r//2}")
        return out
    A("v_lshrrev_b32 v4, 2, v1")
    A("s_lshl_b32 s26, s3, 6")
    A("v_add_u32 v4, s26, v4")
    A("v_and_b32 v6, 3, v1")
    A(f"v_mul_u32_u24 v8, {BLK}, v4")
    A("v_lshl_add_u32 v8, v6, 4, v8")
    A("s_lshl_b32 s26, s20, 6")
    A("v_add_u32 v8, s26, v8")
    A("v_bfe_u32 v7, v4, 1, 2")
    A("v_xor_b32 v7, v7, v6")
    A("v_lshlrev_b32 v9, 6, v4")
    A("v_lshl_add_u32 v9, v7, 4, v9")
    A(f"v_add_u32 v9, {B_YST}, v9")
    A("s_lshl_b32 s26, s23, 5")
    A("v_lshl_add_u32 v11, v3, 6, v2")
    A("v_add_u32 v11, s26, v11")
    A("v_lshlrev_b32 v11, 6, v11")
    A(f"v_add_u32 v11, {B_YST}, v11")
    A("v_bfe_u32 v7, v2, 1, 2")
    A("s_and_b32 s26, s3, 2")
    A("v_xor_b32 v7, s26, v7")
    A("v_xor_b32 v12, 1, v7")
    A("v_lshl_add_u32 v12, v12, 4, v11")
    A("v_lshl_add_u32 v11, v7, 4, v11")
    srd(A, 16, 4, WS_Y1, SZ_Y1N)
    srd(A, 32, 4, WS_WT, SZ_COL)
    YS = [24, 184]; YF = [253, 254]
    def y_loads(k):
        for i in range(4):
            if i: A(f"s_mov_b32 s26, {16*i*BLK}")
            A(f"buffer_load_dwordx4 v[{YS[k]+4*i}:{YS[k]+4*i+3}], v8, s[16:19], {'s26' if i else '0'} offen {LSC}")
        A(f"s_mov_b32 s26, {FW}")
        A(f"buffer_load_dword v{YF[k]}, v252, s[12:15], s26 offen {LSC}")
    def y_test(k):
        fill_test(A, range(YS[k], YS[k]+16), 255)
        if OPT.get("xp") == "nofw": return
        A(f"v_cmp_ne_u32 s[50:51], s{STAG}, v{YF[k]}")
        A("s_or_b64 vcc, vcc, s[50:51]")
    A(f"v_mul_f32 v{TH}, {flit(1/32)}, v{pf}")
    A(f"v_mul_f32 v{K0}, v{TH}, v{hf}")
    A(f"v_mul_f32 v{K0}, 4.0, v{K0}")
    cis_table(C, T, bfout(C32, S32, N32), fill=fill)
    A(f"v_mul_f32 v6, {flit(8.0)}, v{af}")
    A(f"v_add_f32 v6, v6, v{hf}")
    A(f"v_mul_f32 v6, 4.0, v6")
    A(f"v_mul_f32 v{TH}, {flit(1/2048)}, v{pf}")
    A(f"v_mul_f32 v{K0}, v6, v{TH}")
    cis_table(C, T, f32out(TWc, TWs), fill=fill)
    vm.wait(["wts"])
    A("s_barrier")
    flag_store(C, FW, 13, 14)
    A(f"v_mul_f32 v7, {flit(32.0)}, v{af}")
    A(f"v_add_f32 v{t5}, v7, v{pf}")
    A(f"v_mul_f32 v{TH}, {flit(1/64)}, v{t5}")
    A(f"v_mul_f32 v{K0}, v6, v{TH}")
    cis_table(C, T, bfout(C64, S64), fill=fill)
    A("v_and_b32 v7, 1, v2")
    A("v_mul_u32_u24 v7, 0x8000, v7")
    A("v_lshl_or_b32 v7, v7, 16, v7")
    for q in range(8):
        A(f"v_xor_b32 v{C64+8+q}, v7, v{C64+q}")
        A(f"v_xor_b32 v{S64+8+q}, v7, v{S64+q}")
    P2 = OPT.get("p2", "0") == "1"
    if P2: y_loads(0)
    A("s_cmp_eq_u32 s21, 0")
    A("s_cselect_b32 s26, 1, 0")
    A("s_cmp_eq_u32 s21, 320")
    A("s_cselect_b32 s26, 1, s26")
    A("s_cmp_eq_u32 s26, 1")
    csel(A, "s26", hex(f32bits(1.0/(2048*640))), hex(f32bits(2.0/(2048*640))))
    A(f"v_mul_f32 v{TH}, {flit(1/2048)}, v{t5}")
    A(f"v_mul_f32 v{K0}, v{TH}, v{hf}")
    A(f"v_mul_f32 v{K0}, 4.0, v{K0}")
    cis_table(C, T, f32out(T2c, T2s), scale="s[26:27]", fill=fill)
    fill(len(pend))
    stamp(A, 11)
    def y_use(k):
        for i in range(4):
            A(f"ds_write_b128 v9, v[{YS[k]+4*i}:{YS[k]+4*i+3}] offset:{1024*i}")
    if P2:
        y_loads(1)
        poll2(C, [lambda: y_loads(0), lambda: y_loads(1)], [lambda: y_test(0), lambda: y_test(1)], 5, y_use)
    else:
        retry_loop(C, lambda: y_loads(1), lambda: y_test(1))
        cnt(A, 1)
        y_use(1)
    if P2: A("s_waitcnt lgkmcnt(0)")
    A("v_lshlrev_b32 v4, 4, v1")
    A("v_add_u32 v4, s24, v4")
    def wt_ld(j):
        A(f"buffer_load_dwordx4 v[{24+4*j}:{27+4*j}], v4, s[32:35], 0 offen offset:{j*1024} {LSC}"); vm.issue("wt")
    assert not pend
    if OPT.get("wtb") == "0":
        for j in range(4): wt_ld(j)
    else:
        pend.extend([lambda j=j: wt_ld(j) for j in range(4)])
    pend.extend(x_ops(C))
    pend.extend(m_ops(C))
    A("s_waitcnt lgkmcnt(0)")
    A("s_barrier")
    stamp(A, 12)
    A("v_mov_b32 v6, v11")
    A("v_mov_b32 v7, v12")
    for t in range(2):
        for ri in range(2):
            d = 8 + 8*ri + 4*t
            A(f"ds_read_b128 v[{d}:{d+3}], v{6+ri} offset:{t*8192}")
    Xr, Xi = 8, 16
    def mf(d, a, b, first, k=0):
        mf32(A, d, a, b, first); fill(k)
    fill(3)
    for t in range(2):
        A(f"s_waitcnt lgkmcnt({2-2*t})")
        mf(AR, Xr+4*t, C32+4*t, t == 0, 1)
        mf(AI, Xi+4*t, C32+4*t, t == 0, 1)
        mf(AR, Xi+4*t, S32+4*t, False, 1)
        mf(AI, Xr+4*t, N32+4*t, False)
    TA, TB = t0, t2
    def cmul_pack(cr, ci, conj_tw, k=0):
        n1 = "" if not conj_tw else " neg_lo:[1,0,0] neg_hi:[1,0,0]"
        n2 = " neg_lo:[1,0,0] neg_hi:[1,0,0]" if not conj_tw else ""
        for r in range(0, 16, 2):
            A(f"v_pk_mul_f32 {pr(TA)}, {pr(AR+r)}, {pr(cr+r)}")
            A(f"v_pk_mul_f32 {pr(TB)}, {pr(AI+r)}, {pr(cr+r)}")
            A(f"v_pk_fma_f32 {pr(TA)}, {pr(AI+r)}, {pr(ci+r)}, {pr(TA)}{n1}")
            A(f"v_pk_fma_f32 {pr(TB)}, {pr(AR+r)}, {pr(ci+r)}, {pr(TB)}{n2}")
            A(f"v_cvt_pk_bf16_f32 v{Pr+r//2}, v{TA}, v{TA+1}")
            A(f"v_cvt_pk_bf16_f32 v{Pi+r//2}, v{TB}, v{TB+1}")
            fill(k)
    A("s_lshl_b32 s26, s3, 12")
    A(f"s_add_u32 s26, s26, {B_YST}")
    A("s_xor_b32 s27, s26, 0x1000")
    A("v_lshlrev_b32 v6, 4, v1")
    A("v_add_u32 v7, s27, v6")
    A("v_add_u32 v6, s26, v6")
    cmul_pack(TWc, TWs, False, 1)
    def exch(off):
        for g in range(2):
            A(f"ds_write_b128 v6, v[{Pr+4*g}:{Pr+4*g+3}] offset:{off+1024*g}")
            A(f"ds_write_b128 v6, v[{Pi+4*g}:{Pi+4*g+3}] offset:{off+2048+1024*g}")
        A("s_waitcnt lgkmcnt(0)")
        A("s_barrier")
        for g in range(2):
            A(f"ds_read_b128 v[{Or+4*g}:{Or+4*g+3}], v7 offset:{off+1024*g}")
            A(f"ds_read_b128 v[{Oi+4*g}:{Oi+4*g+3}], v7 offset:{off+2048+1024*g}")
    stamp(A, 13)
    vm.wait(["stale"])
    exch(B_EX1 - B_YST)
    for q in range(8): A(f"v_xor_b32 v{Pn+q}, 0x80008000, v{Pr+q}")
    for u in range(2):
        mf(AR, C64+4*u, Pr+4*u, u == 0, 1)
        mf(AI, C64+4*u, Pi+4*u, u == 0)
        mf(AR, S64+4*u, Pi+4*u, False, 1)
        mf(AI, S64+4*u, Pn+4*u, False)
    A("s_waitcnt lgkmcnt(0)")
    for q in range(8): A(f"v_xor_b32 v{On+q}, 0x80008000, v{Or+q}")
    for u in range(2):
        mf(AR, C64+8+4*u, Or+4*u, False)
        mf(AI, C64+8+4*u, Oi+4*u, False)
        mf(AR, S64+8+4*u, Oi+4*u, False)
        mf(AI, S64+8+4*u, On+4*u, False)
    fill(len(pend))
    stamp(A, 14)
    vm.wait(["wt"])
    W0, W1 = 8, 10
    for r in range(0, 16, 2):
        w = 24 + r
        A(f"v_lshlrev_b32 v{W0}, 16, v{w}")
        A(f"v_lshlrev_b32 v{W0+1}, 16, v{w+1}")
        A(f"v_and_b32 v{W1}, 0xffff0000, v{w}")
        A(f"v_and_b32 v{W1+1}, 0xffff0000, v{w+1}")
        A(f"v_pk_mul_f32 {pr(TA)}, {pr(AR+r)}, {pr(W0)}")
        A(f"v_pk_mul_f32 {pr(TB)}, {pr(AI+r)}, {pr(W0)}")
        A(f"v_pk_fma_f32 {pr(TA)}, {pr(AI+r)}, {pr(W1)}, {pr(TA)} neg_lo:[1,0,0] neg_hi:[1,0,0]")
        A(f"v_pk_fma_f32 {pr(TB)}, {pr(AR+r)}, {pr(W1)}, {pr(TB)}")
        A(f"v_cvt_pk_bf16_f32 v{Pr+r//2}, v{TA}, v{TA+1}")
        A(f"v_cvt_pk_bf16_f32 v{Pi+r//2}, v{TB}, v{TB+1}")
    exch(0)
    def ringfill(k): pass
    for q in range(8): A(f"v_xor_b32 v{Pn+q}, 0x80008000, v{Pi+q}")
    def mr(d, a, b, first, k=1):
        mf32(A, d, a, b, first); ringfill(k)
    for u in range(2):
        mr(AR, Pr+4*u, C64+4*u, u == 0)
        mr(AI, Pi+4*u, C64+4*u, u == 0, 0)
        mr(AR, Pn+4*u, S64+4*u, False)
        mr(AI, Pr+4*u, S64+4*u, False, 0)
    A("s_waitcnt lgkmcnt(0)")
    for q in range(8): A(f"v_xor_b32 v{On+q}, 0x80008000, v{Oi+q}")
    for u in range(2):
        mr(AR, Or+4*u, C64+8+4*u, False)
        mr(AI, Oi+4*u, C64+8+4*u, False, 0)
        mr(AR, On+4*u, S64+8+4*u, False)
        mr(AI, Or+4*u, S64+8+4*u, False, 0)
    stamp(A, 15)
    _fill = fill
    def cm2():
        n1 = " neg_lo:[1,0,0] neg_hi:[1,0,0]"
        for r in range(0, 16, 2):
            A(f"v_pk_mul_f32 {pr(TA)}, {pr(AR+r)}, {pr(T2c+r)}")
            A(f"v_pk_mul_f32 {pr(TB)}, {pr(AI+r)}, {pr(T2c+r)}")
            A(f"v_pk_fma_f32 {pr(TA)}, {pr(AI+r)}, {pr(T2s+r)}, {pr(TA)}{n1}")
            A(f"v_pk_fma_f32 {pr(TB)}, {pr(AR+r)}, {pr(T2s+r)}, {pr(TB)}")
            A(f"v_cvt_pk_bf16_f32 v{Pr+r//2}, v{TA}, v{TA+1}")
            A(f"v_cvt_pk_bf16_f32 v{Pi+r//2}, v{TB}, v{TB+1}")
            if r % 4 == 0: ringfill(1)
    cm2()
    for t in range(2):
        mr(AR, C32+4*t, Pr+4*t, t == 0)
        mr(AI, C32+4*t, Pi+4*t, t == 0)
        mr(AR, N32+4*t, Pi+4*t, False)
        mr(AI, S32+4*t, Pr+4*t, False, 0)
    A("v_lshlrev_b32 v4, 5, v2")
    A("v_lshl_add_u32 v4, v3, 4, v4")
    A("v_add_u32 v4, s24, v4")
    vm.wait(["X"])
    for j in range(4):
        for i in range(4):
            r = 4*j+i
            A(f"v_cvt_pk_bf16_f32 v{8+r}, v{AR+r}, v{AI+r}")
        A(f"buffer_store_dwordx4 v[{8+4*j}:{11+4*j}], v4, s[36:39], 0 offen offset:{j*1024} {SC}"); vm.issue("z")
    stamp(A, 16)
    A("s_barrier")
    A(f"s_branch {Ldone}")
    A(f"{Lskip}:")
    vm.q = q_skip
    for f in x_ops(C): f()
    vm.wait(["wts"])
    A("s_barrier")
    flag_store(C, FW, 8, 9)
    repack(C)
    if OPT.get("h2f", "a2") == "r":
        NF = 256 - NB_WG
        A(f"s_sub_u32 s26, s2, {NB_WG}")
        A("s_lshl_b32 s26, s26, 12")
        A("v_lshl_add_u32 v4, v0, 4, s26")
        srd(A, 32, 4, WS_H2P, SZ_H2P)
        for i in range(-(-SZ_H2P // (NF*4096))):
            if i: A(f"s_mov_b32 s26, {i*NF*4096}")
            A(f"buffer_store_dwordx4 a[12:15], v4, s[32:35], {'s26' if i else '0'} offen {SC}"); vm.issue("h2f")
    fw_ld(C); vm.issue("fw")
    vm.wait(["fw"])
    flag_check(C, "fw", 253, lambda: fw_ld(C))
    A("s_barrier")
    flag_store(C, FP, 8, 9)
    for f in m_ops(C): f()
    A(f"{Ldone}:")
    vm.q = []

def w13_ring(C):
    ops = []
    for s_ in range(NS0): ops += w13_ops(C, s_)
    return ops

def fh_offset(C, v, which):
    A = C.A
    A(f"v_min_u32 v{v}, {255 - NB_WG}, v0")
    A(f"v_add_u32 v{v}, {NB_WG + (which >> FSH)}, v{v}")
    A(f"v_lshlrev_b32 v{v}, {FSH}, v{v}")

def d_geometry(C):
    A = C.A
    A("s_and_b32 s40, s48, 1")
    A("s_lshl_b32 s40, s40, 3")
    A("s_and_b32 s41, s49, 7")
    A("s_add_u32 s40, s40, s41")
    A("s_lshr_b32 s41, s48, 1")
    A("s_lshl_b32 s41, s41, 2")
    A("s_lshr_b32 s42, s49, 3")
    A("s_add_u32 s41, s41, s42")
    A("s_mul_i32 s41, s41, 7")
    A("s_lshr_b32 s42, s3, 1")
    A("s_mul_i32 s42, s42, 221184")
    A("s_lshl_b32 s43, s41, 11")
    A("s_add_u32 s42, s42, s43")
    A("s_and_b32 s43, s3, 1")
    A("s_mul_i32 s43, s43, 7168")
    A("s_add_u32 s42, s42, s43")
    if DT:
        A("s_and_b32 s43, s41, 1")
        A("s_lshl_b32 s43, s43, 11")
        A("s_add_u32 s42, s42, s43")
    A("v_lshlrev_b32 v248, 4, v1")
    A("v_add_u32 v248, s42, v248")
    if DT:
        A("s_and_b32 s43, s41, s3")
        A("s_and_b32 s43, s43, 1")
        A("s_mul_i32 s43, s43, 14336")
        A("v_subrev_u32 v255, s43, v248")
    A("s_mul_i32 s42, s3, 7168")

def w13_ops(C, s, SRD=36):
    A = C.A; ops = []
    for i0, n in ((0, 4), (4, 3)):
        def setup(i0=i0):
            A(f"s_add_u32 m0, s42, {ring_buf(s)*SLOT + i0*1024}")
        def setup2(i0=i0):
            A(f"s_mov_b32 s43, {2*s*221184 + i0*1024}")
        ops += [setup, setup2]
        for i in range(n):
            def dma(i=i, i0=i0):
                va = 255 if DT and i0 + i >= 5 else 248
                A(f"buffer_load_dwordx4 v{va}, s[{SRD}:{SRD+3}], s43 offen offset:{i*1024} lds")
                C.vm.issue(("W", s))
            ops.append(dma)
    return ops

def phase_c(C):
    A = C.A; vm = C.vm
    A("s_lshl_b32 s20, s48, 3")
    A("s_and_b32 s21, s49, 7")
    A("s_add_u32 s20, s20, s21")
    A("s_lshr_b32 s21, s49, 3")
    GA, G2, SB = 32, 44, 56
    srd(A, 36, 4, WS_W13, SZ_W13)
    d_geometry(C)
    stamp(A, 17)
    A("s_lshr_b32 s22, s20, 5")
    A("s_lshl_b32 s22, s22, 12")
    A("s_lshl_b32 s23, s21, 10")
    A("s_add_u32 s22, s22, s23")
    A("s_and_b32 s23, s20, 31")
    A("s_lshl_b32 s23, s23, 5")
    A("s_add_u32 s22, s22, s23")
    A("v_and_b32 v4, 1, v1")
    A("v_bfe_u32 v5, v1, 1, 2")
    A("v_lshrrev_b32 v6, 3, v1")
    A("s_lshl_b32 s23, s3, 3")
    A("v_add_u32 v6, s23, v6")
    A("v_lshl_add_u32 v251, v5, 5, v6")
    A("v_lshlrev_b32 v251, 13, v251")
    A("v_lshl_add_u32 v251, v4, 4, v251")
    A("v_add_u32 v251, s22, v251")
    A(f"v_mul_u32_u24 v252, {4*ZP}, v4")
    A("v_mul_u32_u24 v253, 48, v6")
    A("v_add_u32 v252, v252, v253")
    A("v_lshl_add_u32 v252, v5, 2, v252")
    A(f"v_add_u32 v252, {Z_OFF}, v252")
    srd(A, 16, 4, WS_Z, SZ_COL)
    A("s_mov_b32 s24, 0x100000")
    A("s_mov_b32 s25, 0x200000")
    BR, BI, TC, TS, C32, N32 = 92, 100, 108, 124, 140, 148
    t0, t1, t2, t3, t4 = 244, 245, 246, 247, 243
    pf, hf = 249, 250
    A(f"v_cvt_f32_u32 v{pf}, v2")
    A(f"v_cvt_f32_u32 v{hf}, v3")
    A(f"v_mul_f32 v4, {flit(1/20)}, v{pf}")
    A(f"v_mul_f32 v5, v4, v{hf}")
    A(f"v_mul_f32 v5, 4.0, v5")
    A(f"v_mov_b32 v6, 0")
    for st in range(2):
        for q in range(4):
            A(f"v_fmamk_f32 v{t0}, v4, {fk(8*st+q)}, v{5 if st == 0 else 6}")
            A(f"v_cos_f32 v{t1}, v{t0}")
            A(f"v_sin_f32 v{t2}, v{t0}")
            A(f"v_sub_f32 v{t3}, 0, v{t2}")
            A(f"v_cvt_pk_bf16_f32 v{BR+4*st+q}, v{t1}, v{t3}")
            A(f"v_cvt_pk_bf16_f32 v{BI+4*st+q}, v{t2}, v{t1}")
    A("v_cmp_eq_u32 vcc, 0, v3")
    for q in range(4):
        A(f"v_cndmask_b32 v{BR+4+q}, 0, v{BR+4+q}, vcc")
        A(f"v_cndmask_b32 v{BI+4+q}, 0, v{BI+4+q}, vcc")
    A(f"v_mul_f32 v4, {flit(1/640)}, v{pf}")
    A(f"v_mul_f32 v5, v4, v{hf}")
    A(f"v_mul_f32 v5, 4.0, v5")
    for r in range(16):
        A(f"v_fmamk_f32 v{t0}, v4, {fk(8*(r//4)+r%4)}, v5")
        A(f"v_cos_f32 v{TC+r}, v{t0}")
        A(f"v_sin_f32 v{TS+r}, v{t0}")
    A(f"v_mul_f32 v4, {flit(1/32)}, v{pf}")
    A(f"v_mul_f32 v5, v4, v{hf}")
    A(f"v_mul_f32 v5, 4.0, v5")
    for t in range(2):
        for p in range(4):
            for z in range(2):
                e = 2*p+z
                A(f"v_fmamk_f32 v{t0}, v4, {fk(16*t+8*(e>>2)+(e&3))}, v5")
                A(f"v_cos_f32 v{t1+z}, v{t0}")
                A(f"v_sin_f32 v{(t3, t4)[z]}, -v{t0}")
            A(f"v_cvt_pk_bf16_f32 v{C32+4*t+p}, v{t1}, v{t2}")
            A(f"v_cvt_pk_bf16_f32 v{N32+4*t+p}, v{t3}, v{t4}")
    XF = 68
    for q in range(12): A(f"v_accvgpr_read_b32 v{20+q}, a{q}")
    for r in range(2):
        for q in range(6):
            A(f"v_lshlrev_b32 v{XF+12*r+2*q}, 16, v{20+6*r+q}")
            A(f"v_and_b32 v{XF+12*r+2*q+1}, 0xffff0000, v{20+6*r+q}")
    A("v_cmp_eq_u32 vcc, 0, v3")
    for r in range(2):
        for k in range(8, 12): A(f"v_cndmask_b32 v{XF+12*r+k}, 0, v{XF+12*r+k}, vcc")
    A("v_mul_u32_u24 v7, 80, v2")
    A("v_lshl_add_u32 v7, v3, 4, v7")
    A(f"v_add_u32 v7, {M_OFF}, v7")
    stamp(A, 18)
    fh_offset(C, 253, FP)
    def z_loads():
        for m in range(3):
            A(f"buffer_load_dwordx4 v[{8+4*m}:{11+4*m}], v251, s[16:19], {['0','s24','s25'][m]} offen {LSC}")
        A(f"buffer_load_dword v254, v253, s[12:15], 0 offen {LSC}")
    def z_test():
        fill_test(A, range(8, 20), 4)
        A(f"v_cmp_ne_u32 s[50:51], s{STAG}, v254")
        A("s_or_b64 vcc, vcc, s[50:51]")
    retry_loop(C, z_loads, z_test)
    cnt(A, 2)
    for m in range(3):
        for i in range(4):
            A(f"ds_write_b32 v252, v{8+4*m+i} offset:{i*ZP + 16*m}")
    A(f"s_mul_i32 s26, s3, {2*ZP}")
    A(f"s_add_u32 s26, s26, {Z_OFF}")
    A("v_mul_u32_u24 v4, 48, v2")
    A("v_add_u32 v4, s26, v4")
    A("v_lshl_add_u32 v5, v3, 4, v4")
    A("s_waitcnt lgkmcnt(0)")
    A("s_barrier")
    stamp(A, 19)
    FA_ = [[156, 160], [164, 168]]
    for row in range(2):
        A(f"ds_read_b128 v[{FA_[row][0]}:{FA_[row][0]+3}], v5 offset:{row*ZP}")
        A(f"ds_read_b128 v[{FA_[row][1]}:{FA_[row][1]+3}], v4 offset:{row*ZP+32}")
    for base, sec in ((GA, 0), (G2, 2), (SB, 1)):
        for q in range(3):
            A(f"ds_read_b128 v[{base+4*q}:{base+4*q+3}], v7 offset:{sec*2560 + 32*q}")
    ring = w13_ring(C)
    def rf(k=1):
        n = 0
        while ring and n < k:
            q0 = len(vm.q); ring.pop(0)()
            if len(vm.q) > q0: n += 1
    U = [[172, 188], [204, 220]]
    rf(2)
    for st in range(2):
        for row in range(2):
            if st == 0: A(f"s_waitcnt lgkmcnt({9 + (2 if row == 0 else 0)})")
            mf32(A, U[row][0], FA_[row][st], BR+4*st, st == 0)
            rf()
            mf32(A, U[row][1], FA_[row][st], BI+4*st, st == 0)
    A("v_cmp_eq_u32 vcc, 0, v3")
    P = [[156, 164], [8, 236]]
    TA, TB = 20, 22
    for row in range(2):
        ur, ui = U[row]; pr_, pi_ = P[row]
        for r in range(0, 16, 2):
            A(f"v_pk_mul_f32 {pr(TA)}, {pr(ur+r)}, {pr(TC+r)}")
            A(f"v_pk_mul_f32 {pr(TB)}, {pr(ui+r)}, {pr(TC+r)}")
            A(f"v_pk_fma_f32 {pr(TA)}, {pr(ui+r)}, {pr(TS+r)}, {pr(TA)} neg_lo:[1,0,0] neg_hi:[1,0,0]")
            A(f"v_pk_fma_f32 {pr(TB)}, {pr(ur+r)}, {pr(TS+r)}, {pr(TB)}")
            A(f"v_cvt_pk_bf16_f32 v{pr_+r//2}, v{TA}, v{TA+1}")
            A(f"v_cvt_pk_bf16_f32 v{pi_+r//2}, v{TB}, v{TB+1}")
            if r % 4 == 0: rf()
    Y = [172, 204]
    for t in range(2):
        for row in range(2):
            mf32(A, Y[row], P[row][0]+4*t, C32+4*t, t == 0)
            rf()
        for row in range(2):
            mf32(A, Y[row], P[row][1]+4*t, N32+4*t, False)
    A("s_waitcnt lgkmcnt(0)")
    for k in range(8, 12): A(f"v_cndmask_b32 v{GA+k}, 0, v{GA+k}, vcc")
    for row in range(2):
        for k in range(0, 12, 2):
            A(f"v_pk_fma_f32 {pr(XF+12*row+k)}, {pr(GA+k)}, {pr(Y[row]+k)}, {pr(XF+12*row+k)}")
    X2P = 20
    for row in range(2):
        for k in range(6):
            A(f"v_cvt_pk_bf16_f32 v{X2P+6*row+k}, v{XF+12*row+2*k}, v{XF+12*row+2*k+1}")
    A(f"s_mul_i32 s26, s3, {2*STP}")
    A(f"s_add_u32 s26, s26, {ST_OFF}")
    A("v_mul_u32_u24 v4, 40, v2")
    A("v_lshl_add_u32 v4, v3, 3, v4")
    A("v_add_u32 v4, s26, v4")
    A("v_lshlrev_b32 v7, 3, v1")
    A(f"v_add_u32 v7, {SCRAP}, v7")
    A("v_add_u32 v6, 32, v4")
    A("v_cndmask_b32 v5, v7, v6, vcc")
    for row in range(2):
        for q in range(2):
            A(f"ds_write_b64 v4, {pr(X2P+6*row+2*q)} offset:{row*STP + 16*q}")
    A(f"v_add_u32 v6, {STP}, v6")
    A("v_cndmask_b32 v6, v7, v6, vcc")
    A(f"ds_write_b64 v5, {pr(X2P+4)}")
    A(f"ds_write_b64 v6, {pr(X2P+10)}")
    for r in range(2):
        for q in range(6):
            A(f"v_lshlrev_b32 v{XF+12*r+2*q}, 16, v{X2P+6*r+q}") if OPT.get("rx2") else None
            A(f"v_and_b32 v{XF+12*r+2*q+1}, 0xffff0000, v{X2P+6*r+q}") if OPT.get("rx2") else None
    S0, S1, T0, T1 = 32, 34, 36, 38
    def red64(a, b):
        ta, tb = T0, T1
        for ctl in ["quad_perm:[1,0,3,2]", "quad_perm:[2,3,0,1]", "row_ror:4", "row_ror:8"]:
            A(f"v_add_f32_dpp v{a}, v{a}, v{a} {ctl} row_mask:0xf bank_mask:0xf")
            A(f"v_add_f32_dpp v{b}, v{b}, v{b} {ctl} row_mask:0xf bank_mask:0xf")
        for sw in ("v_permlane16_swap_b32", "v_permlane32_swap_b32"):
            A(f"v_mov_b32 v{ta}, v{a}")
            A(f"v_mov_b32 v{tb}, v{b}")
            A(f"{sw} v{a}, v{ta}")
            A(f"{sw} v{b}, v{tb}")
            A(f"v_add_f32 v{a}, v{a}, v{ta}")
            A(f"v_add_f32 v{b}, v{b}, v{tb}")
    S = [S0, S1]
    for k in range(0, 12, 2):
        for row in range(2):
            x = XF+12*row+k
            if k == 0: continue
            if k == 2: A(f"v_pk_add_f32 {pr(S[row])}, {pr(x-2)}, {pr(x)}")
            else: A(f"v_pk_add_f32 {pr(S[row])}, {pr(S[row])}, {pr(x)}")
    for row in range(2): A(f"v_add_f32 v{S[row]}, v{S[row]}, v{S[row]+1}")
    rf(2)
    red64(S0, S1)
    rf(2)
    for row in range(2):
        A(f"v_mul_f32 v{S[row]}, {flit(1/640)}, v{S[row]}")
        A(f"v_cndmask_b32 v{S[row]+1}, 0, v{S[row]}, vcc")
    for k in range(0, 12, 2):
        for row in range(2):
            x = XF+12*row+k
            sel = "op_sel_hi:[1,0]" if k < 8 else "op_sel:[0,1] op_sel_hi:[1,1]"
            A(f"v_pk_add_f32 {pr(x)}, {pr(x)}, {pr(S[row])} {sel} neg_lo:[0,1] neg_hi:[0,1]")
    V = [40, 42]
    for k in range(0, 12, 2):
        for row in range(2):
            x = XF+12*row+k
            if k == 0: A(f"v_pk_mul_f32 {pr(V[row])}, {pr(x)}, {pr(x)}")
            else: A(f"v_pk_fma_f32 {pr(V[row])}, {pr(x)}, {pr(x)}, {pr(V[row])}")
    for row in range(2): A(f"v_add_f32 v{V[row]}, v{V[row]}, v{V[row]+1}")
    rf(2)
    red64(V[0], V[1])
    rf(99)
    for row in range(2):
        A(f"v_mov_b32 v{S[row]}, {flit(1e-5)}")
        A(f"v_fmac_f32 v{S[row]}, {flit(1/640)}, v{V[row]}")
    for row in range(2): A(f"v_rsq_f32 v{S[row]}, v{S[row]}")
    for k in range(0, 12, 2):
        for row in range(2):
            x = XF+12*row+k
            A(f"v_pk_mul_f32 {pr(x)}, {pr(x)}, {pr(S[row])} op_sel_hi:[1,0]")
        for row in range(2):
            x = XF+12*row+k
            A(f"v_pk_fma_f32 {pr(x)}, {pr(x)}, {pr(G2+k)}, {pr(SB+k)}")
    H2P_ = 8
    for row in range(2):
        for k in range(6):
            A(f"v_cvt_pk_bf16_f32 v{H2P_+6*row+k}, v{XF+12*row+2*k}, v{XF+12*row+2*k+1}")
    HO = ST_H - ST_OFF
    for row in range(2):
        for q in range(2):
            A(f"ds_write_b64 v4, {pr(H2P_+6*row+2*q)} offset:{HO + row*STP + 16*q}")
    A(f"v_subrev_u32 v7, {HO}, v7")
    A(f"v_add_u32 v36, 32, v4")
    A(f"v_cndmask_b32 v37, v7, v36, vcc")
    A(f"v_add_u32 v36, {STP}, v36")
    A(f"v_cndmask_b32 v36, v7, v36, vcc")
    A(f"ds_write_b64 v37, {pr(H2P_+4)} offset:{HO}")
    A(f"ds_write_b64 v36, {pr(H2P_+10)} offset:{HO}")
    A("v_and_b32 v4, 7, v0")
    A("v_lshrrev_b32 v5, 3, v0")
    A(f"v_mul_u32_u24 v6, {STP}, v4")
    A("v_lshl_add_u32 v6, v5, 4, v6")
    A(f"v_add_u32 v6, {ST_H}, v6")
    A("s_lshl_b32 s26, s48, 4")
    A("s_lshr_b32 s27, s49, 1")
    A("s_add_u32 s26, s26, s27")
    A("s_mul_i32 s26, s26, 20480")
    A("s_and_b32 s27, s49, 1")
    A("s_lshl_b32 s27, s27, 7")
    A("s_add_u32 s26, s26, s27")
    A("v_lshlrev_b32 v5, 8, v5")
    A("v_lshl_add_u32 v5, v4, 4, v5")
    A("v_add_u32 v5, s26, v5")
    A("v_lshrrev_b32 v4, 5, v0")
    A(f"v_mul_u32_u24 v7, {STP}, v4")
    A("v_lshl_add_u32 v7, v2, 4, v7")
    A(f"v_add_u32 v7, {ST_OFF}, v7")
    A("s_lshl_b32 s26, s21, 9")
    A("s_add_u32 s26, s26, s20")
    A("s_mul_i32 s26, s26, 1280")
    A("v_mul_u32_u24 v4, 81920, v4")
    A("v_lshl_add_u32 v4, v2, 4, v4")
    A("v_add_u32 v252, s26, v4")
    A(f"v_add_u32 v253, {hex(OOB)}, v252")
    A("v_cmp_gt_u32 vcc, 16, v2")
    A("v_cndmask_b32 v253, v253, v252, vcc")
    A(f"v_add_u32 v37, {hex(OOB)}, v5")
    A("s_cmp_lt_u32 s3, 2")
    A("s_cselect_b64 vcc, -1, 0")
    A("v_cndmask_b32 v37, v37, v5, vcc")
    srd(A, 16, 4, WS_H2P, SZ_H2P)
    srd(A, 28, 4, WS_X2, SZ_X)
    A("s_waitcnt lgkmcnt(0)")
    A("s_barrier")
    for i in range(3):
        A(f"ds_read_b128 v[{8+4*i}:{11+4*i}], v6 offset:{512*i}")
    for i in range(3):
        dst = f"a[{X2A+4*i}:{X2A+4*i+3}]" if xlate() else f"v[{216+4*i}:{219+4*i}]"
        A(f"ds_read_b128 {dst}, v7 offset:{512*i}")
    A("s_movk_i32 s26, 8192")
    A("s_movk_i32 s27, 16384")
    for i in range(3):
        A(f"s_waitcnt lgkmcnt({5-i})")
        A(f"buffer_store_dwordx4 v[{8+4*i}:{11+4*i}], v{37 if i == 2 else 5}, s[16:19], {['0','s26','s27'][i]} offen {SC}"); vm.issue("st")
    stamp(A, 20)

D_LA = 6
RA = 8
RB = 10
def e_geometry(C):
    A = C.A
    A("s_lshr_b32 s44, s48, 1")
    A("s_lshl_b32 s44, s44, 3")
    A("s_and_b32 s45, s49, 7")
    A("s_add_u32 s44, s44, s45")
    A("s_and_b32 s45, s48, 1")
    A("s_lshl_b32 s45, s45, 2")
    A("s_lshr_b32 s46, s49, 3")
    A("s_add_u32 s45, s45, s46")
    A("s_mul_i32 s46, s3, 14")
    A("s_mul_i32 s47, s46, 40960")
    A("s_mul_i32 s51, s45, 5120")
    A("s_add_u32 s47, s47, s51")
    A("v_lshlrev_b32 v246, 4, v1")
    A("v_add_u32 v246, s47, v246")
    A("v_add_u32 v247, 4096, v246")

NST = 14
def xlate(): return OPT.get("xl", "1") == "1" and OPT.get("dp", "1") == "1"
X2A = 240
def wfrag(st, p):
    k = st*5 + p
    if k < 64: return ("a", 4*k)
    return ("v", 152 + 4*(k-64))
def w2_ops(C, SRD=32):
    A = C.A; ops = []
    for st in range(NST):
        def setup(st=st):
            A(f"s_mov_b32 s51, {st*40960}")
        ops.append(setup)
        for p in range(5):
            def ld(st=st, p=p):
                k, r = wfrag(st, p)
                if p < 4: A(f"buffer_load_dwordx4 {k}[{r}:{r+3}], v246, s[{SRD}:{SRD+3}], s51 offen offset:{1024*p}")
                else: A(f"buffer_load_dwordx4 {k}[{r}:{r+3}], v247, s[{SRD}:{SRD+3}], s51 offen")
                C.vm.issue(("W2", st))
            ld.mem = True
            ops.append(ld)
    return ops

def phase_d(C):
    A = C.A; vm = C.vm
    ACC, AR, BR = 8, 120, 152
    VL, VB = 232, 237
    e_geometry(C)
    srd(A, 32, 4, WS_W2, SZ_W2P)
    w2 = w2_ops(C)
    NPRE = int(OPT.get("w2pre", 36))
    for _ in range(NPRE): w2.pop(0)()
    A("s_lshl_b32 s20, s40, 3")
    A("s_lshl_b32 s21, s3, 1")
    A("s_add_u32 s20, s20, s21")
    A("v_lshlrev_b32 v4, 4, v1")
    A("s_mul_i32 s21, s20, 20480")
    A(f"v_add_u32 v{VB}, s21, v4")
    A(f"v_add_u32 v{VB+1}, 20480, v{VB}")
    for b in range(NS):
        A(f"v_add_u32 v{VL+b}, {b*SLOT}, v4") if b else A(f"v_mov_b32 v{VL}, v4")
    hh_setup(C)
    srd(A, 16, 4, WS_H2P, SZ_H2P)
    srd(A, 24, 4, WS_HH, SZ_HH)
    bstate = {}
    BACC = 239
    def b_regs(t): return range(BR + (t % RB)*8, BR + (t % RB)*8 + 8)
    def b_ops(t):
        ops = []
        if t % 4 == 0:
            ops.append(lambda t=t: A(f"s_movk_i32 s22, {t*1024}"))
        for rt in range(2):
            def f(t=t, rt=rt):
                if t >= RB: assert bstate.get(t-RB), ("B ring WAR", t)
                r = BR + (t % RB)*8 + 4*rt
                A(f"buffer_load_dwordx4 v[{r}:{r+3}], v{VB+rt}, s[16:19], s22 offen offset:{(t%4)*1024} {LSC}")
                vm.issue(("B", t))
            ops.append(f)
        return ops
    def b_reload(ts):
        def f():
            for t in ts:
                A(f"s_movk_i32 s54, {t*1024}")
                for rt in range(2):
                    r = BR + (t % RB)*8 + 4*rt
                    A(f"buffer_load_dwordx4 v[{r}:{r+3}], v{VB+rt}, s[16:19], s54 offen {LSC}")
        return f
    NB0 = 8
    NPOLL = 3
    def b_loads():
        b_reload(range(NPOLL))()
    def b_test():
        fill_test(A, [r for t in range(NPOLL) for r in b_regs(t)], BACC)
    SPEC = OPT.get("dspec", "1") == "1"
    if SPEC:
        retry_loop(C, b_loads, b_test, spec=b_reload(range(NPOLL, NB0)), tags=[("B", t) for t in range(NPOLL, NB0) for _ in range(2)])
    else:
        retry_loop(C, b_loads, b_test)
    cnt(A, 3)
    A("s_waitcnt lgkmcnt(0)")
    if NS == 4 and OPT.get("dbar", "1") == "1" or NS == 5 or True:
        A("s_barrier")
    stamp(A, 21)
    A("s_movk_i32 s22, 0")
    if not SPEC:
        for t in range(NPOLL, NB0):
            for f in b_ops(t): f()
    else:
        A(f"s_movk_i32 s22, {((NB0 - 1)//4)*4096}")
    XLATE = xlate()
    def x2_store(i):
        src = f"a[{X2A+4*i}:{X2A+4*i+3}]" if XLATE else f"v[{216+4*i}:{219+4*i}]"
        A(f"buffer_store_dwordx4 {src}, v{253 if i == 2 else 252}, s[28:31], 0 offen offset:{512*i} {SC}"); vm.issue("st")
    x2o = []
    for i in range(3):
        f = lambda i=i: x2_store(i)
        x2o.append(f)
    def mk(f):
        def g(): f()
        g.mem = True
        return g
    x2o = [mk(f) for f in x2o]
    if not XLATE:
        for f in x2o: f()
        x2o = []
    NF = 280; NSL = 10
    pending = []
    hhf = hhfill_ops(C)
    def lds_read(n):
        t, i = divmod(n, 14)
        s_ = t >> 1
        r = AR + (n % RA)*4
        A(f"ds_read_b128 v[{r}:{r+3}], v{VL + s_ % NS} offset:{((t & 1)*14 + i)*1024}")
    left = 77 - NPRE
    if OPT.get("dp", "1") == "0":
        W2_SCHED = {}
        for s_, cap in ((5, 5), (6, 5), (7, 5), (8, 13), (9, 13)):
            k = min(cap, left); W2_SCHED[s_] = k; left -= k
        def enter_slot(s_):
            if s_ >= NS: vm.wait([("W", s_)])
            A("s_barrier")
            if s_ >= 2 and s_ + NS - 2 < NSL:
                pending.extend(w13_ops(C, s_ + NS - 2))
            for _ in range(W2_SCHED.get(s_, 0)): pending.append(w2.pop(0))
            if s_ in (2, 3):
                for _ in range(5 if s_ == 2 else 4): pending.append(hhf.pop(0))
            if s_ == 7: flag_store(C, FX, 4, 5)
        def filler(k=1):
            for _ in range(k):
                if pending: pending.pop(0)()
        for t in range(NB0, RB): pending.extend(b_ops(t))
        for n in range(D_LA): lds_read(n)
        A(f"s_waitcnt lgkmcnt({D_LA-1})")
        for n in range(NF):
            t, i = divmod(n, 14)
            if i == 0 and NPOLL <= t + 1 < 20:
                vm.wait([("B", t+1)])
                pending[0:0] = check_ops(C, b_reload([t+1]), b_regs(t+1), BACC)
            a = AR + (n % RA)*4
            def mm(rt):
                c = ACC + (i*2 + rt)*4
                b = BR + (t % RB)*8 + 4*rt
                src = "0" if t == 0 else f"v[{c}:{c+3}]"
                A(f"v_mfma_f32_16x16x32_bf16 v[{c}:{c+3}], v[{a}:{a+3}], v[{b}:{b+3}], {src}")
            mm(0)
            nn = n + D_LA
            if nn < NF:
                if nn % 28 == 0: enter_slot(nn // 28)
                lds_read(nn)
            filler(1)
            mm(1)
            if i == 13:
                bstate[t] = True
                if t + RB < 20: pending.extend(b_ops(t + RB))
            if n + 1 < NF:
                rem = min(NF - 1 - (n+1), D_LA - 1)
                A(f"s_waitcnt lgkmcnt({rem})")
            filler(1)
    else:
        PER = int(OPT.get("dper", 2))
        sched = OPT.get("dsch", "G")
        vq = []
        def take(lst, k):
            out = []
            while lst and k > 0:
                f = lst.pop(0); out.append(f)
                if getattr(f, "mem", False): k -= 1
            return out
        w2a = [w2.pop(0) for _ in range(left)]
        SCH = {"B":  [(0, 4, 3), (0, 4, 0), (0, 0, 0), (0, 0, 0), (0, 0, 0), (3, 0, 0), (5, 0, 0), (5, 0, 0), (12, 0, 0), (12, 0, 0)],
               "C":  [(0, 0, 0), (0, 0, 0), (0, 0, 3), (0, 3, 0), (0, 3, 0), (0, 2, 0), (5, 0, 0), (5, 0, 0), (12, 0, 0), (12, 0, 0)],
               "D":  [(0, 0, 0), (0, 3, 3), (0, 2, 0), (0, 3, 0), (0, 0, 0), (3, 0, 0), (5, 0, 0), (5, 0, 0), (12, 0, 0), (12, 0, 0)],
               "E":  [(0, 0, 0), (0, 0, 0), (0, 0, 0), (0, 2, 1), (0, 2, 1), (0, 2, 1), (4, 2, 0), (6, 0, 0), (12, 0, 0), (12, 0, 0)],
               "F":  [(0, 0, 0), (4, 0, 0), (0, 0, 0), (0, 2, 1), (0, 2, 1), (0, 2, 1), (4, 2, 0), (6, 0, 0), (10, 0, 0), (10, 0, 0)],
               "G":  [(0, 2, 0), (0, 2, 0), (0, 1, 0), (0, 2, 0), (0, 1, 0), (0, 0, 2), (3, 0, 1), (5, 0, 0), (13, 0, 0), (13, 0, 0)],
               "H":  [(0, 1, 0), (0, 2, 0), (0, 1, 0), (0, 2, 0), (0, 1, 0), (0, 1, 1), (2, 0, 2), (6, 0, 0), (13, 0, 0), (13, 0, 0)],
               "I":  [(0, 2, 0), (0, 2, 0), (0, 2, 0), (0, 2, 0), (0, 0, 2), (3, 0, 1), (5, 0, 0), (5, 0, 0), (12, 0, 0), (12, 0, 0)],
               "J":  [(0, 0, 3), (0, 2, 0), (0, 2, 0), (0, 2, 0), (0, 2, 0), (3, 0, 0), (5, 0, 0), (5, 0, 0), (12, 0, 0), (12, 0, 0)],
               }[sched]
        FXS = int(OPT.get("fxs", {"B": 7, "C": 8, "D": 7, "E": 9, "F": 9, "G": 9, "H": 9, "I": 8, "J": 8}[sched]))
        def slot_ops(s_):
            ops = []
            if NS == 5 and s_ == 0: ops += w13_ops(C, 4)
            if s_ >= 2 and s_ + NS - 2 < NSL: ops += w13_ops(C, s_ + NS - 2)
            k2, kf, kx = SCH[s_]
            ops += take(x2o, kx)
            ops += take(hhf, kf)
            ops += take(w2a, k2)
            return ops
        def enter_slot(s_):
            if s_ >= NS0:
                assert vm.all.count(("W", s_)) == 7, ("ring slot not issued", s_)
                vm.wait([("W", s_)])
            if s_ == FXS:
                assert not hhf and not x2o, "fills pending"
                assert vm.all.count("HF") == 8
                vm.wait(["HF", "st"])
            A("s_barrier")
            if OPT.get("est") == "2": A(f"s_memtime s[{56+2*s_}:{57+2*s_}]")
            vq.extend(slot_ops(s_))
            if s_ == FXS:
                flag_store(C, FX, 4, 5)
        def vpop():
            q0 = vm.n_issued
            while vq and vm.n_issued == q0: vq.pop(0)()
        def filler():
            if pending: pending.pop(0)()
        for t in range(NB0, RB): vq.extend(b_ops(t))
        vq.extend(slot_ops(0))
        if OPT.get("est") == "2": A(f"s_memtime s[56:57]")
        for n in range(D_LA): lds_read(n)
        A(f"s_waitcnt lgkmcnt({D_LA-1})")
        for n in range(NF):
            t, i = divmod(n, 14)
            if i == 0 and NPOLL <= t + 1 < 20:
                assert vm.all.count(("B", t+1)) == 2, t
                vm.wait([("B", t+1)])
                pending[0:0] = check_ops(C, b_reload([t+1]), b_regs(t+1), BACC)
            a = AR + (n % RA)*4
            def mm(rt):
                c = ACC + (i*2 + rt)*4
                b = BR + (t % RB)*8 + 4*rt
                src = "0" if t == 0 else f"v[{c}:{c+3}]"
                A(f"v_mfma_f32_16x16x32_bf16 v[{c}:{c+3}], v[{a}:{a+3}], v[{b}:{b+3}], {src}")
            mm(0)
            nn = n + D_LA
            if nn < NF:
                if nn % 28 == 0: enter_slot(nn // 28)
                lds_read(nn)
            filler()
            mm(1)
            if i == 13:
                assert not pending
                bstate[t] = True
                if t + RB < 20: vq[0:0] = b_ops(t + RB)
            if n + 1 < NF:
                rem = min(NF - 1 - (n+1), D_LA - 1)
                A(f"s_waitcnt lgkmcnt({rem})")
            if n % PER == PER - 1 and vq: vpop()
            else: filler()
        pending = pending + vq + w2a
    stamp(A, 22)
    rest = pending + w2
    A("s_mul_i32 s21, s20, 55296")
    A("v_lshlrev_b32 v4, 4, v1")
    A(f"v_add_u32 v{VB}, s21, v4")
    A(f"v_add_u32 v{VB+1}, 55296, v{VB}")
    A("s_lshr_b32 s22, s41, 1")
    A("s_lshl_b32 s22, s22, 10")
    for f in rest: f()
    A("s_lshr_b32 s21, s44, 1")
    A("s_lshr_b32 s50, s21, 3")
    A("s_and_b32 s21, s21, 7")
    A("s_lshl_b32 s21, s21, 3")
    A("s_add_u32 s21, s21, s50")
    A("v_and_b32 v252, 3, v1")
    A("v_lshlrev_b32 v252, 6, v252")
    A("v_bfe_u32 v253, v1, 2, 2")
    A("v_lshl_add_u32 v252, v253, 1, v252")
    A("v_add_u32 v252, s21, v252")
    A("s_and_b32 s21, s44, 3")
    A("s_lshl_b32 s21, s21, 6")
    A("s_lshr_b32 s50, s44, 2")
    A("s_add_u32 s21, s21, s50")
    A("v_and_b32 v253, 7, v1")
    A("v_lshl_add_u32 v253, v253, 3, s21")
    A("v_cmp_gt_u32 vcc, 16, v1")
    A("v_cndmask_b32 v252, v253, v252, vcc")
    A(f"v_add_u32 v252, {FX >> FSH}, v252")
    A(f"v_lshlrev_b32 v252, {FSH}, v252")
    def fx_ld(): A(f"buffer_load_dword v253, v252, s[12:15], 0 offen {LSC}")
    fx_ld(); vm.issue("fx")
    T = 120
    NL = flit(-math.log2(math.e))
    A(f"v_mov_b32 v6, {NL}")
    def swiglu(ft, rt, dst):
        g = ACC + ((2*ft)*2 + rt)*4
        u = ACC + ((2*ft+1)*2 + rt)*4
        t = T + 4*rt
        for r in (0, 2): A(f"v_pk_mul_f32 {pr(t+r)}, {pr(g+r)}, {pr(6)} op_sel_hi:[1,0]")
        for r in range(4): A(f"v_exp_f32 v{t+r}, v{t+r}")
        for r in (0, 2): A(f"v_pk_mul_f32 {pr(g+r)}, {pr(g+r)}, {pr(u+r)}")
        for r in (0, 2): A(f"v_pk_add_f32 {pr(t+r)}, {pr(t+r)}, 1.0 op_sel_hi:[1,0]")
        for r in range(4): A(f"v_rcp_f32 v{t+r}, v{t+r}")
        for r in (0, 2): A(f"v_pk_mul_f32 {pr(g+r)}, {pr(g+r)}, {pr(t+r)}")
        A(f"v_cvt_pk_bf16_f32 v{dst}, v{g}, v{g+1}")
        A(f"v_cvt_pk_bf16_f32 v{dst+1}, v{g+2}, v{g+3}")
    Lodd, Ldone = C.lab("d_odd"), C.lab("d_done")
    A("v_lshlrev_b32 v4, 3, v1")
    A(f"v_sub_u32 v4, v{VB}, v4")
    A("v_add_u32 v5, 55296, v4")
    A("s_cmp_eq_u32 s41, 105")
    A(f"s_cselect_b32 s23, {hex(OOB)}, s22")
    A("s_bitcmp1_b32 s41, 0")
    A(f"s_cbranch_scc1 {Lodd}")
    OUTR = 128
    def variant(odd):
        groups = ([(0,)] + [(1,2),(3,4),(5,6)]) if odd else ([(0,1),(2,3),(4,5)] + [(6,)])
        for gi, grp in enumerate(groups):
            for rt in range(2):
                o = OUTR + 4*((2*gi + rt) % 4)
                if len(grp) == 2:
                    swiglu(grp[0], rt, o); swiglu(grp[1], rt, o+2)
                    so = "s23" if (odd and gi >= 2) else "s22"
                    A(f"buffer_store_dwordx4 v[{o}:{o+3}], v{VB+rt}, s[24:27], {so} offen offset:{1024*gi} {SC}")
                else:
                    swiglu(grp[0], rt, o)
                    A(f"buffer_store_dwordx2 v[{o}:{o+1}], v{4+rt}, s[24:27], s22 offen offset:{1024*gi + (512 if odd else 0)} {SC}")
    variant(False)
    A(f"s_branch {Ldone}")
    A(f"{Lodd}:")
    variant(True)
    A(f"{Ldone}:")
    A("s_waitcnt vmcnt(8)")
    Lfx = C.lab("fx")
    A(f"v_cmp_ne_u32 vcc, s{STAG}, v253")
    A(f"s_cbranch_vccnz {Lfx}")
    A(f"{Lfx}_b:")
    def tail():
        A(f"{Lfx}:")
        retry_loop(C, fx_ld, lambda: A(f"v_cmp_ne_u32 vcc, s{STAG}, v253"))
        A(f"s_branch {Lfx}_b")
    C.tail.append(tail)
    vm.q = []
    stamp(A, 23)

def phase_d2(C):
    A = C.A; vm = C.vm
    ACC, AR, BR = 8, 120, 152
    VL, VB = 232, 237
    e_geometry(C)
    srd(A, 32, 4, WS_W2, SZ_W2P)
    w2 = w2_ops(C)
    NPRE = int(OPT.get("w2pre", 36))
    for _ in range(NPRE): w2.pop(0)()
    A("s_lshl_b32 s20, s40, 3")
    A("s_lshl_b32 s21, s3, 1")
    A("s_add_u32 s20, s20, s21")
    A("v_lshlrev_b32 v4, 4, v1")
    A("s_mul_i32 s21, s20, 20480")
    A(f"v_add_u32 v{VB}, s21, v4")
    A(f"v_add_u32 v{VB+1}, 20480, v{VB}")
    for b in range(5):
        A(f"v_add_u32 v{VL+b}, {b*SLOT}, v4") if b else A(f"v_mov_b32 v{VL}, v4")
    hh_setup(C)
    srd(A, 16, 4, WS_H2P, SZ_H2P)
    srd(A, 24, 4, WS_HH, SZ_HH)
    bstate = {}
    BACC = 239
    def b_regs(t): return range(BR + (t % RB)*8, BR + (t % RB)*8 + 8)
    def b_ops(t):
        ops = []
        if t % 4 == 0:
            ops.append(lambda t=t: A(f"s_movk_i32 s22, {t*1024}"))
        for rt in range(2):
            def f(t=t, rt=rt):
                if t >= RB: assert bstate.get(t-RB), ("B ring WAR", t)
                r = BR + (t % RB)*8 + 4*rt
                A(f"buffer_load_dwordx4 v[{r}:{r+3}], v{VB+rt}, s[16:19], s22 offen offset:{(t%4)*1024} {LSC}")
                vm.issue(("B", t))
            ops.append(f)
        return ops
    def b_reload(ts):
        def f():
            for t in ts:
                A(f"s_movk_i32 s54, {t*1024}")
                for rt in range(2):
                    r = BR + (t % RB)*8 + 4*rt
                    A(f"buffer_load_dwordx4 v[{r}:{r+3}], v{VB+rt}, s[16:19], s54 offen {LSC}")
        return f
    NB0 = 8
    NPOLL = 3
    retry_loop(C, b_reload(range(NPOLL)), lambda: fill_test(A, [r for t in range(NPOLL) for r in b_regs(t)], BACC),
               spec=b_reload(range(NPOLL, NB0)), tags=[("B", t) for t in range(NPOLL, NB0) for _ in range(2)])
    cnt(A, 3)
    A("s_waitcnt lgkmcnt(0)")
    A("s_barrier")
    stamp(A, 21)
    def mk(f):
        f.mem = True
        return f
    x2o = []
    for i in range(3):
        def x2_store(i=i):
            A(f"buffer_store_dwordx4 a[{X2A+4*i}:{X2A+4*i+3}], v{253 if i == 2 else 252}, s[28:31], 0 offen offset:{512*i} {SC}"); vm.issue("st")
        x2o.append(mk(x2_store))
    NF = 280; NT = 224
    def nt(n):
        if n < NT: return divmod(n, 14)
        k, r = divmod(n - NT, 8)
        return 16 + r//2, 2*k + (r & 1)
    pending = []
    hhf = hhfill_ops(C)
    def lds_read(n):
        t, i = nt(n)
        r = AR + (n % RA)*4
        A(f"ds_read_b128 v[{r}:{r+3}], v{VL + ring_buf(t >> 1)} offset:{((t & 1)*14 + i)*1024}")
    PER = int(OPT.get("dper", 2))
    vq = []
    def take(lst, k):
        out = []
        while lst and k > 0:
            f = lst.pop(0); out.append(f)
            if getattr(f, "mem", False): k -= 1
        return out
    SCH = {"A": [(0, 2, 0), (0, 2, 0), (0, 1, 0), (0, 2, 0), (0, 1, 1), (3, 0, 2), (7, 0, 0), (14, 0, 0), (14, 0, 0)],
           "B": [(0, 2, 0), (0, 1, 0), (0, 1, 0), (0, 2, 0), (0, 2, 0), (0, 0, 3), (7, 0, 0), (14, 0, 0), (14, 0, 0)],
           "C": [(0, 3, 0), (0, 0, 0), (0, 2, 0), (0, 2, 0), (0, 1, 1), (2, 0, 2), (7, 0, 0), (14, 0, 0), (10, 0, 0)],
           }[OPT.get("dsch2", "B")]
    S9 = int(OPT.get("s9", 1))
    def slot_ops(s_):
        ops = []
        if s_ == S9: ops += w13_ops(C, 9)
        if 2 <= s_ <= 6: ops += w13_ops(C, s_ + 2)
        k2, kf, kx = SCH[s_]
        ops += take(x2o, kx)
        ops += take(hhf, kf)
        if s_ < 7: assert NPRE//6*5 + NPRE % 6 + sum(q[0] for q in SCH[:s_+1]) <= 60
        ops += take(w2, k2)
        if OPT.get("xq") == "now2" and s_ >= 6: w2.clear()
        return ops
    def enter_slot(s_):
        if s_ >= NS0:
            for z in ((s_,) if s_ < 8 else (8, 9)):
                assert vm.all.count(("W", z)) == 7, ("ring slot not issued", z)
            vm.wait([("W", s_)] if s_ < 8 else [("W", 8), ("W", 9)])
        if s_ == 8:
            assert not hhf and not x2o, "fills pending"
            assert vm.all.count("HF") == 8
            vm.wait(["HF", "st"])
        A("s_barrier")
        if OPT.get("est") == "2": A(f"s_memtime s[{56+2*s_}:{57+2*s_}]")
        vq.extend(slot_ops(s_))
        if s_ == 8: flag_store(C, FX, 4, 5)
    def vpop():
        q0 = vm.n_issued
        while vq and vm.n_issued == q0: vq.pop(0)()
    T, OUTR = 176, 184
    fin = []
    def emit(x): fin.append(lambda x=x: A(x))
    def fin_setup():
        emit("s_mul_i32 s21, s20, 55296")
        emit("v_lshlrev_b32 v4, 4, v1")
        emit(f"v_add_u32 v{VB}, s21, v4")
        emit(f"v_add_u32 v{VB+1}, 55296, v{VB}")
        for x in ("s_lshr_b32 s21, s44, 1",
                  "s_lshr_b32 s50, s21, 3",
                  "s_and_b32 s21, s21, 7",
                  "s_lshl_b32 s21, s21, 3",
                  "s_add_u32 s21, s21, s50",
                  "v_and_b32 v252, 3, v1",
                  "v_lshlrev_b32 v252, 6, v252",
                  "v_bfe_u32 v253, v1, 2, 2",
                  "v_lshl_add_u32 v252, v253, 1, v252",
                  "v_add_u32 v252, s21, v252",
                  "s_and_b32 s21, s44, 3",
                  "s_lshl_b32 s21, s21, 6",
                  "s_lshr_b32 s50, s44, 2",
                  "s_add_u32 s21, s21, s50",
                  "v_and_b32 v253, 7, v1",
                  "v_lshl_add_u32 v253, v253, 3, s21",
                  "v_cmp_gt_u32 vcc, 16, v1",
                  "v_cndmask_b32 v252, v253, v252, vcc",
                  f"v_add_u32 v252, {FX >> FSH}, v252",
                  f"v_lshlrev_b32 v252, {FSH}, v252",
                  f"v_mov_b32 v6, {flit(-math.log2(math.e))}",
                  "v_lshlrev_b32 v4, 3, v1",
                  f"v_sub_u32 v4, v{VB}, v4",
                  "v_add_u32 v5, 55296, v4",
                  "s_lshr_b32 s22, s41, 1",
                  "s_lshl_b32 s22, s22, 10",
                  "s_bitcmp1_b32 s41, 0",
                  "s_cselect_b32 s21, 1, 6",
                  "s_cselect_b32 s23, 1024, 0",
                  "s_lshl_b32 s21, s21, 9",
                  "s_add_u32 s21, s21, s22",
                  "s_add_u32 s22, s22, s23",
                  "s_cmp_eq_u32 s41, 105",
                  f"s_cselect_b32 s23, {hex(OOB)}, s22"):
            emit(x)
    def fx_ld(): A(f"buffer_load_dword v253, v252, s[12:15], 0 offen {LSC}")
    def swiglu(ft, rt, dst):
        g = ACC + ((2*ft)*2 + rt)*4
        u = ACC + ((2*ft+1)*2 + rt)*4
        t = T + 4*rt
        if OPT.get("dpk", "0") == "0" and (ft < 6 or OPT.get("dpk6", "1") == "0"):
            for r in range(4): emit(f"v_mul_f32 v{t+r}, v6, v{g+r}")
            for r in range(4): emit(f"v_exp_f32 v{t+r}, v{t+r}")
            for r in range(4): emit(f"v_mul_f32 v{g+r}, v{g+r}, v{u+r}")
            for r in range(4): emit(f"v_add_f32 v{t+r}, 1.0, v{t+r}")
            for r in range(4): emit(f"v_rcp_f32 v{t+r}, v{t+r}")
            for r in range(4): emit(f"v_mul_f32 v{g+r}, v{g+r}, v{t+r}")
            emit(f"v_cvt_pk_bf16_f32 v{dst}, v{g}, v{g+1}")
            emit(f"v_cvt_pk_bf16_f32 v{dst+1}, v{g+2}, v{g+3}")
            return
        for r in (0, 2): emit(f"v_pk_mul_f32 {pr(t+r)}, {pr(g+r)}, {pr(6)} op_sel_hi:[1,0]")
        for r in range(4): emit(f"v_exp_f32 v{t+r}, v{t+r}")
        for r in (0, 2): emit(f"v_pk_mul_f32 {pr(g+r)}, {pr(g+r)}, {pr(u+r)}")
        for r in (0, 2): emit(f"v_pk_add_f32 {pr(t+r)}, {pr(t+r)}, 1.0 op_sel_hi:[1,0]")
        for r in range(4): emit(f"v_rcp_f32 v{t+r}, v{t+r}")
        for r in (0, 2): emit(f"v_pk_mul_f32 {pr(g+r)}, {pr(g+r)}, {pr(t+r)}")
        emit(f"v_cvt_pk_bf16_f32 v{dst}, v{g}, v{g+1}")
        emit(f"v_cvt_pk_bf16_f32 v{dst+1}, v{g+2}, v{g+3}")
    def pair_done(k):
        gi = k // 2
        for rt in range(2):
            o = OUTR + 4*((2*gi + rt) % 4)
            swiglu(k, rt, o + 2*(k & 1))
            if k & 1:
                def st(o=o, rt=rt, gi=gi):
                    if OPT.get("xp") == "hv" and gi < 2: return
                    A(f"buffer_store_dwordx4 v[{o}:{o+3}], v{VB+rt}, s[24:27], {'s23' if gi else 's22'} offen offset:{1024*gi} {SC}"); vm.issue("hh")
                fin.append(st)
            elif k == 6:
                def st(o=o, rt=rt):
                    A(f"buffer_store_dwordx2 v[{o}:{o+1}], v{4+rt}, s[24:27], s21 offen {SC}"); vm.issue("hh")
                fin.append(st)
    FXN = int(OPT.get("fxn", 250))
    def gap(n):
        if pending: pending.pop(0)()
        elif n >= NT:
            for _ in range(int(OPT.get("dfk", 3))):
                if fin: fin.pop(0)()
    for t in range(NB0, RB): vq.extend(b_ops(t))
    vq.extend(slot_ops(0))
    if OPT.get("est") == "2": A(f"s_memtime s[56:57]")
    for n in range(D_LA): lds_read(n)
    A(f"s_waitcnt lgkmcnt({D_LA-1})")
    for n in range(NF):
        t, i = nt(n)
        if n < NT and i == 0:
            for z in [t+1] + ([t+4] if t in (13, 14, 15) else []):
                if NPOLL <= z < 20:
                    assert vm.all.count(("B", z)) == 2, z
                    vm.wait([("B", z)])
                    pending[0:0] = check_ops(C, b_reload([z]), b_regs(z), BACC)
        if n == NT:
            assert not pending
            fin_setup()
        if n == FXN:
            def fxl(): fx_ld(); vm.issue("fx")
            fin.append(fxl)
        a = AR + (n % RA)*4
        def mm(rt):
            c = ACC + (i*2 + rt)*4
            b = BR + (t % RB)*8 + 4*rt
            src = "0" if t == 0 else f"v[{c}:{c+3}]"
            A(f"v_mfma_f32_16x16x32_bf16 v[{c}:{c+3}], v[{a}:{a+3}], v[{b}:{b+3}], {src}")
        mm(0)
        nn = n + D_LA
        if nn < NF:
            if nn % 28 == 0 and nn <= NT: enter_slot(nn // 28)
            lds_read(nn)
        gap(n)
        mm(1)
        if n < NT and i == 13:
            assert not pending
            bstate[t] = True
            if t + RB < 20: vq[0:0] = b_ops(t + RB)
        if n + 1 < NF:
            rem = min(NF - 1 - (n+1), D_LA - 1)
            A(f"s_waitcnt lgkmcnt({rem})")
        if n % PER == PER - 1 and vq: vpop()
        else: gap(n)
        if n >= NT and (n - NT) % 8 == 7: pair_done((n - NT)//8)
    stamp(A, 22)
    for f in vq + w2: f()
    while fin: fin.pop(0)()
    vm.wait(["fx"])
    Lfx = C.lab("fx")
    A(f"v_cmp_ne_u32 vcc, s{STAG}, v253")
    A(f"s_cbranch_vccnz {Lfx}")
    A(f"{Lfx}_b:")
    def tail():
        A(f"{Lfx}:")
        retry_loop(C, fx_ld, lambda: A(f"v_cmp_ne_u32 vcc, s{STAG}, v253"))
        A(f"s_branch {Lfx}_b")
    C.tail.append(tail)
    vm.q = []
    stamp(A, 23)

def phase_e(C):
    A = C.A; vm = C.vm
    ACC = 8
    RING = [88, 104, 120, 136, 176, 192, 208, 224]
    VH = 240
    VH2 = 248
    PROBE = OPT.get("epr", "0") == "1" and OPT.get("eq", "1") == "1"
    C.probes = [236, 237, 238][:int(OPT.get("npb", 3))]
    if PROBE:
        assert DT
        srd(A, 16, 4, WS_HH, SZ_HH)
        PL = int(OPT.get("epl", 4))
        A("v_lshrrev_b32 v7, 4, v1")
        A("s_lshl_b32 s20, s44, 2")
        A("v_add_u32 v7, s20, v7")
        A("v_mul_u32_u24 v7, 55296, v7")
        A("v_bfe_u32 v4, v1, 3, 1")
        A("v_mul_u32_u24 v4, 7168, v4")
        A("v_add_u32 v7, v7, v4")
        A("v_bfe_u32 v4, v1, 2, 1")
        A("v_lshl_add_u32 v7, v4, 9, v7")
        A(f"v_and_b32 v4, {PL - 1}, v1")
        A("v_lshl_add_u32 v7, v4, 7, v7")
        A("s_lshl_b32 s21, s46, 10")
        A("s_add_u32 s21, s21, 3072")
        A("v_add_u32 v7, s21, v7")
        A(f"buffer_load_dword v{C.probes[0]}, v7, s[16:19], 0 offen {LSC}")
    def probe(k):
        if PROBE and k < len(C.probes): A(f"buffer_load_dword v{C.probes[k]}, v7, s[16:19], 0 offen {LSC}")
    A("v_lshlrev_b32 v2, 4, v1")
    A("s_lshl_b32 s20, s44, 2")
    if OPT.get("xp") == "r0": A("s_mov_b32 s20, 0")
    if OPT.get("xp") == "r2": A("s_and_b32 s20, s20, 0x64")
    A("s_lshl_b32 s21, s46, 10")
    ROT = OPT.get("erot", "0") == "1" and OPT.get("eq", "1") == "1"
    if ROT:
        A("s_lshr_b32 s23, s49, 3")
        A("s_add_u32 s23, s23, s3")
        A("s_and_b32 s23, s23, 3")
    else:
        A("s_mov_b32 s23, s3")
    for q in range(4):
        A(f"s_add_u32 s22, s23, {q}")
        A("s_and_b32 s22, s22, 3")
        A("s_add_u32 s22, s22, s20")
        A("s_mul_i32 s22, s22, 55296")
        A("s_add_u32 s22, s22, s21")
        A(f"v_add_u32 v{VH+q}, s22, v2")
        A(f"v_lshl_add_u32 v{VH2+q}, v1, 3, s22")
    A("s_cmp_eq_u32 s3, 3")
    A(f"s_mov_b32 s47, {12*1024}")
    A(f"s_cselect_b32 s47, {hex(OOB)}, s47")
    probe(1)
    if not PROBE: srd(A, 16, 4, WS_HH, SZ_HH)
    srd(A, 24, 4, WS_X2, SZ_X)
    srd(A, 28, 4, WS_MOD, SZ_MOD)
    srd(A, 36, 8, 0, SZ_X)
    A("v_and_b32 v3, 15, v1")
    A("s_lshl_b32 s21, s44, 6")
    A("s_lshl_b32 s22, s23, 4")
    A("s_add_u32 s21, s21, s22")
    A("v_add_u32 v3, s21, v3")
    A("v_lshrrev_b32 v4, 8, v3")
    A("v_bfe_u32 v5, v3, 3, 3")
    A("v_lshl_add_u32 v4, v4, 3, v5")
    A("v_bfe_u32 v5, v3, 6, 2")
    A("v_and_b32 v6, 7, v3")
    A("v_lshl_add_u32 v5, v5, 3, v6")
    A("v_lshl_add_u32 v4, v5, 6, v4")
    A("v_mul_u32_u24 v244, 1280, v4")
    A("v_lshrrev_b32 v5, 4, v1")
    A("s_mul_i32 s21, s45, 160")
    A("v_lshl_add_u32 v244, v5, 3, v244")
    A("v_add_u32 v244, s21, v244")
    A("s_mul_i32 s21, s45, 320")
    A(f"s_add_u32 s21, s21, {5*2560}")
    A("v_lshlrev_b32 v245, 4, v5")
    A("v_add_u32 v245, s21, v245")
    HACC = 252
    probe(2)
    if OPT.get("eq", "1") == "1":
        e_qmajor(C, ACC, VH, VH2, HACC)
    else:
        e_stepmajor(C, ACC, RING, VH, VH2, HACC)
    L = C.lab("ep")
    A("s_or_b32 s50, s2, s3")
    A("s_cmp_lg_u32 s50, 0")
    A(f"s_cbranch_scc1 {L}")
    srd(A, 16, 4, WS_EPOCH, 128)
    A("v_mov_b32 v4, 0")
    A(f"v_mov_b32 v5, s{STAG}")
    A("s_mov_b64 exec, 1")
    A(f"buffer_store_dword v5, v4, s[16:19], 0 offen {SC}")
    A("s_mov_b64 exec, -1")
    A(f"{L}:")

def e_stepmajor(C, ACC, RING, VH, VH2, HACC):
    A = C.A; vm = C.vm
    def h_regs(st): return range(RING[st % 8], RING[st % 8] + 16)
    def h_reload(sts):
        def f():
            for st in sts:
                if st >= 12: A("s_mov_b32 s54, s47"); off = (st - 12)*1024
                else: A(f"s_movk_i32 s54, {st*1024}"); off = 0
                for q in range(4):
                    r = RING[st % 8] + 4*q
                    if st % 7 == 3:
                        for z in range(2):
                            A(f"buffer_load_dwordx2 v[{r+2*z}:{r+2*z+1}], v{VH2+q}, s[16:19], s54 offen offset:{off + 512*z} {LSC}")
                    else:
                        A(f"buffer_load_dwordx4 v[{r}:{r+3}], v{VH+q}, s[16:19], s54 offen offset:{off} {LSC}")
        return f
    def h_ops(st):
        ops = []
        if st % 4 == 0:
            ops.append((lambda st=st: A(f"s_movk_i32 s22, {st*1024}")) if st < 12 else (lambda: A("s_mov_b32 s22, s47")))
        for q in range(4):
            r = RING[st % 8] + 4*q
            if st % 7 == 3:
                for z in range(2):
                    def f(q=q, st=st, r=r, z=z):
                        A(f"buffer_load_dwordx2 v[{r+2*z}:{r+2*z+1}], v{VH2+q}, s[16:19], s22 offen offset:{(st%4)*1024 + 512*z} {LSC}")
                        vm.issue(("H", st))
                    ops.append(f)
            else:
                def f(q=q, st=st, r=r):
                    A(f"buffer_load_dwordx4 v[{r}:{r+3}], v{VH+q}, s[16:19], s22 offen offset:{(st%4)*1024} {LSC}")
                    vm.issue(("H", st))
                ops.append(f)
        return ops
    NPOLL = 3
    def h_loads():
        h_reload(range(NPOLL))()
    def h_test():
        fill_test(A, [r for st in range(NPOLL) for r in h_regs(st)], HACC)
    retry_loop(C, h_loads, h_test)
    cnt(A, 4)
    estamp(A, 0)
    A("s_barrier")
    A("s_movk_i32 s22, 0")
    for st in range(NPOLL, 8):
        for f in h_ops(st): f()
    pending = []
    for st in range(NST):
        if NPOLL <= st + 1 < NST:
            vm.wait([("H", st+1)])
            pending[0:0] = check_ops(C, h_reload([st+1]), h_regs(st+1), HACC)
        k = 0
        for p in range(5):
            for q in range(4):
                c = ACC + (q*5+p)*4
                src = "0" if st == 0 else f"v[{c}:{c+3}]"
                wk, wr = wfrag(st, p)
                h = RING[st % 8] + 4*q
                A(f"v_mfma_f32_16x16x32_bf16 v[{c}:{c+3}], {wk}[{wr}:{wr+3}], v[{h}:{h+3}], {src}")
                k += 1
                if pending: pending.pop(0)()
        while pending: pending.pop(0)()
        if st + 8 < NST: pending.extend(h_ops(st + 8))
        if st == 7:
            def xg():
                for p in range(5):
                    A(f"buffer_load_dwordx2 {pr(208+2*p)}, v244, s[24:27], 0 offen offset:{32*p} {LSC}")
                    vm.issue("XG")
                    A(f"buffer_load_dwordx4 v[{220+4*p}:{223+4*p}], v245, s[28:31], 0 offen offset:{64*p} {LSC}")
                    vm.issue("XG")
            pending.append(xg)
    while pending: pending.pop(0)()
    estamp(A, 1)
    X, G = 208, 220
    A("v_lshlrev_b32 v2, 4, v1")
    for q in range(1, 4):
        A(f"s_add_u32 s21, s3, {q}")
        A("s_and_b32 s21, s21, 3")
        A("s_mul_i32 s21, s21, 15360")
        A(f"s_add_u32 s21, s21, {(q-1)*5120}")
        A(f"v_add_u32 v6, s21, v2")
        for p in range(5):
            c = ACC + (q*5+p)*4
            A(f"ds_write_b128 v6, v[{c}:{c+3}] offset:{p*1024}")
    A("s_mul_i32 s21, s3, 15360")
    A("v_add_u32 v6, s21, v2")
    A("s_waitcnt lgkmcnt(0)")
    A("s_barrier")
    estamp(A, 2)
    R = 88
    for k in range(3):
        for p in range(5):
            r = R + k*20 + 4*p
            A(f"ds_read_b128 v[{r}:{r+3}], v6 offset:{k*5120 + p*1024}")
    for k in range(3):
        A(f"s_waitcnt lgkmcnt({5*(2-k)})")
        for r in range(0, 20, 2):
            A(f"v_pk_add_f32 {pr(ACC+r)}, {pr(ACC+r)}, {pr(R+k*20+r)}")
    vm.wait(["XG"])
    for p in range(5):
        for z in range(2):
            A(f"v_lshlrev_b32 v4, 16, v{X+2*p+z}")
            A(f"v_and_b32 v5, 0xffff0000, v{X+2*p+z}")
            A(f"v_pk_fma_f32 {pr(4)}, {pr(G+4*p+2*z)}, {pr(ACC+4*p+2*z)}, {pr(4)}")
            A(f"v_cvt_pk_bf16_f32 v{88+2*p+z}, v4, v5")
        A(f"buffer_store_dwordx2 {pr(88+2*p)}, v244, s[36:39], 0 offen offset:{32*p} {OPT.get('osc','').replace('+',' ')}")
    estamp(A, 3)

def e_qmajor(C, ACC, VH, VH2, HACC):
    A = C.A; vm = C.vm
    NR = int(OPT.get("enr", 32))
    NJ = 4*NST
    QO = (1, 2, 3, 0)
    RED = SLOT if DT else 2*SLOT if NS == 4 else 0
    def slot(j):
        i = j % NR
        return 88 + 4*i if i < 16 else 176 + 4*(i - 16)
    def regs(j): return list(range(slot(j), slot(j) + 4))
    A("s_movk_i32 s20, 4096")
    A("s_movk_i32 s21, 8192")
    state = dict(hi=0)
    def load(j, track=True):
        q, st = QO[j // NST], j % NST
        so = ["0", "s20", "s21", "s47"][st // 4]
        r = slot(j)
        if st % 7 == 3:
            for z in range(2):
                A(f"buffer_load_dwordx2 v[{r+2*z}:{r+2*z+1}], v{VH2+q}, s[16:19], {so} offen offset:{(st % 4)*1024 + 512*z} {LSC}")
                if track: vm.issue(("H", j))
        else:
            A(f"buffer_load_dwordx4 v[{r}:{r+3}], v{VH+q}, s[16:19], {so} offen offset:{(st % 4)*1024} {LSC}")
            if track: vm.issue(("H", j))
        if track: state["hi"] = j + 1
    def nloads(js): return sum(2 if (j % NST) % 7 == 3 else 1 for j in js)
    def check(j):
        if OPT.get("xp") in ("hv", "nc"): return []
        L = C.lab("ex")
        rr = regs(j) + regs(j+1)
        ops = max_ops(A, rr, HACC)
        ops.append(lambda: A(f"v_cmp_eq_u32 vcc, -1, v{HACC}"))
        def br():
            A(f"s_cbranch_vccnz {L}")
            A(f"{L}_b:")
            hi = state["hi"]
            def tail():
                A(f"{L}:")
                q = vm.q
                retry_loop(C, lambda: [load(k, False) for k in range(j, hi)], lambda: fill_test(A, rr, HACC))
                if CNT and PROF and OPT.get("crep"):
                    A("s_add_u32 s70, s70, 1")
                    A("s_add_u32 s69, s69, s53")
                vm.q = q
                A(f"s_branch {L}_b")
            C.tail.append(tail)
        ops.append(br)
        return ops
    if CNT and PROF and OPT.get("crep"):
        A("s_mov_b32 s70, 0")
        A("s_mov_b32 s69, 0")
    def lds_addr():
        A("v_lshlrev_b32 v2, 4, v1")
        for q in range(1, 4):
            A(f"s_add_u32 s22, s3, {q}")
            A("s_and_b32 s22, s22, 3")
            A("s_mul_i32 s22, s22, 15360")
            A(f"s_add_u32 s22, s22, {RED + (q-1)*5120}")
            A(f"v_add_u32 v{252+q}, s22, v2")
        A("s_mul_i32 s22, s3, 15360")
        A(f"s_add_u32 s22, s22, {RED}")
        A("v_add_u32 v6, s22, v2")
    NP = int(OPT.get("enp", 4))
    if OPT.get("epr", "0") == "1":
        NPB = len(C.probes)
        L = C.lab("pb")
        if not CUM: A("s_mov_b32 s53, 0")
        A(f"{L}:")
        for k, r in enumerate(C.probes):
            A(f"s_waitcnt vmcnt({NPB - 1})")
            A(f"v_cmp_eq_u32 vcc, -1, v{r}")
            A(f"s_cbranch_vccz {L}_x")
            A(f"buffer_load_dword v{r}, v7, s[16:19], 0 offen {LSC}")
        A("s_add_u32 s53, s53, 1")
        A(f"s_cmp_lt_u32 s53, {RETRY_LIMIT}")
        A(f"s_cbranch_scc1 {L}")
        A(f"{L}_x:")
        cnt(A, 4)
        estamp(A, 0)
        vm.q = ["stale"]*(NPB - 1)
        NP = 0
        for j in range(NR): load(j)
        lds_addr()
        vm.wait([("H", 0), ("H", 1)])
        for f in check(0): f()
    else:
        NSP = int(OPT.get("ens", 4))
        if OPT.get("ewait", "0") == "1": A("s_waitcnt vmcnt(0)")
        tags = [("H", j) for j in range(NP, NSP) for _ in range(nloads([j]))]
        retry_loop(C, lambda: [load(j, False) for j in range(NP)],
                   lambda: fill_test(A, [r for j in range(NP) for r in regs(j)], HACC),
                   spec=lambda: [load(j, False) for j in range(NP, NSP)], tags=tags)
        cnt(A, 4)
        estamp(A, 0)
        state["hi"] = NSP
        for j in range(NSP, NR): load(j)
        lds_addr()
    X, G = 208, 220
    assert NR == 32
    def xg_ops():
        ops = []
        for p in range(5):
            def fx(p=p):
                A(f"buffer_load_dwordx2 {pr(X+2*p)}, v244, s[24:27], 0 offen offset:{32*p} {LSC}"); vm.issue("XG")
            def fg(p=p):
                A(f"buffer_load_dwordx4 v[{G+4*p}:{G+4*p+3}], v245, s[28:31], 0 offen offset:{64*p} {LSC}"); vm.issue("XG")
            ops += [fx, fg]
        return ops
    P = ACC + 20
    pending = []; mem = []
    gaps_left = [5*NJ]
    def gap():
        gaps_left[0] -= 1
        k = 2 if len(pending) > BUSY[0] else 1
        for _ in range(k):
            if pending: pending.pop(0)()
    BUSY = [1000]
    for j in range(NJ):
        qi, st = divmod(j, NST)
        q = QO[qi]
        if OPT.get("est") == "3" and j % 6 == 0: A(f"s_memtime s[{56+2*(j//6)}:{57+2*(j//6)}]")
        if j % 2 == 0 and j + 2 < NJ and j + 2 >= NP:
            assert state["hi"] >= j + 4
            vm.wait([("H", j+2), ("H", j+3)])
            pending[0:0] = check(j + 2)
        if st == 0 and qi > 0:
            qp = QO[qi-1]
            for p in range(5):
                c = ACC + (qp*5+p)*4
                pending.append(lambda c=c, p=p, qp=qp: A(f"ds_write_b128 v{252+qp}, v[{c}:{c+3}] offset:{p*1024}"))
        if j == 32: mem.extend(xg_ops())
        if j == 44:
            assert not any(getattr(f, "w", 0) for f in pending)
            A("s_waitcnt lgkmcnt(0)")
            A("s_barrier")
            estamp(A, 2)
            for k in range(3):
                for p in range(5):
                    r = P + k*20 + 4*p
                    pending.append(lambda r=r, k=k, p=p: A(f"ds_read_b128 v[{r}:{r+3}], v6 offset:{k*5120 + p*1024}"))
            pending.append(lambda: A("s_waitcnt lgkmcnt(5)"))
            for r in range(20):
                pending.append(lambda r=r: A(f"v_add_f32 v{P+r}, v{P+r}, v{P+20+r}"))
            pending.append(lambda: A("s_waitcnt lgkmcnt(0)"))
            for r in range(20):
                pending.append(lambda r=r: A(f"v_add_f32 v{P+r}, v{P+r}, v{P+40+r}"))
            BUSY[0] = 0
        for p in range(5):
            c = ACC + (q*5+p)*4
            src = "0" if st == 0 else f"v[{c}:{c+3}]"
            wk, wr = wfrag(st, p)
            h = slot(j)
            A(f"v_mfma_f32_16x16x32_bf16 v[{c}:{c+3}], {wk}[{wr}:{wr+3}], v[{h}:{h+3}], {src}")
            if p == 0 and j >= 1 and j - 1 + NR < NJ and j - 1 + NR >= state["hi"]:
                load(j - 1 + NR)
            elif p in (0, 2) and mem:
                mem.pop(0)()
            else:
                gap()
        if st == NST - 1 and qi < 3 or j == 43:
            pass
        if j == 43:
            while pending: pending.pop(0)()
    estamp(A, 1)
    while pending: pending.pop(0)()
    vm.wait(["XG"])
    for p in range(5):
        for z in range(2):
            r = 4*p + 2*z
            A(f"v_pk_add_f32 {pr(ACC+r)}, {pr(ACC+r)}, {pr(P+r)}")
            A(f"v_lshlrev_b32 v4, 16, v{X+2*p+z}")
            A(f"v_and_b32 v5, 0xffff0000, v{X+2*p+z}")
            A(f"v_pk_fma_f32 {pr(4)}, {pr(G+r)}, {pr(ACC+r)}, {pr(4)}")
            A(f"v_cvt_pk_bf16_f32 v{88+2*p+z}, v4, v5")
        A(f"buffer_store_dwordx2 {pr(88+2*p)}, v244, s[36:39], 0 offen offset:{32*p} {OPT.get('osc','').replace('+',' ')}")
    estamp(A, 3)

def fused(name=MAIN):
    K = Kern(name, 256, LDS_TOTAL, vgpr=256, agpr=256)
    A = K.A
    C = Ctx(A)
    phase0(C)
    phase_a(C)
    phase_b(C)
    phase_c(C)
    (phase_d2 if DT else phase_d)(C)
    phase_e(C)
    if DG:
        L = "dg_end"
        A("s_or_b32 s50, s44, s45")
        A("s_or_b32 s50, s50, s3")
        A("s_cmp_lg_u32 s50, 0")
        A(f"s_cbranch_scc1 {L}")
        A("s_load_dwordx2 s[90:91], s[0:1], 80")
        A("s_waitcnt vmcnt(0) lgkmcnt(0)")
        A("v_mov_b32 v4, 0")
        A("global_load_dwordx4 v[8:11], v4, s[90:91] sc0 sc1")
        A("global_load_dwordx4 v[12:15], v4, s[90:91] offset:16 sc0 sc1")
        A("s_waitcnt vmcnt(0)")
        A("v_readfirstlane_b32 s96, v10")
        A("v_readfirstlane_b32 s97, v88")
        A("s_nop 4")
        A("s_and_b32 s97, s97, 0x7f80")
        A("s_cmp_eq_u32 s97, 0x7f80")
        A("s_cselect_b32 s97, 1, 0")
        A("s_or_b32 s97, s97, s96")
        A("s_cmp_eq_u32 s97, 0")
        A(f"s_cbranch_scc1 {L}")
        A("v_readfirstlane_b32 s64, v15")
        A("v_readfirstlane_b32 s65, v11")
        A("s_nop 4")
        A("s_and_b32 s70, s64, 63")
        A("s_and_b32 s71, s65, 255")
        A("s_cmp_eq_u32 s96, 0")
        A("s_cselect_b32 s70, 99, s70")
        A("s_min_u32 s72, s96, 255")
        def sample(dst, base, stride, n, packed, word_stride=None):
            A(f"s_mov_b32 s60, {stride}")
            A("v_mul_lo_u32 v5, v1, s60")
            A(f"v_add_u32 v5, {hex(base)}, v5")
            A(f"s_mov_b32 s{dst}, 0")
            for k in range(n):
                A(f"global_load_dword v16, v5, s[4:5] sc0 sc1")
                A(f"v_add_u32 v5, {hex(64*stride)}, v5")
                A("s_waitcnt vmcnt(0)")
                A("v_and_b32 v17, 0x7f800000, v16")
                A("v_cmp_eq_u32 vcc, 0x7f800000, v17")
                if packed:
                    A("s_mov_b64 s[62:63], vcc")
                    A("v_and_b32 v17, 0x7f80, v16")
                    A("v_cmp_eq_u32 vcc, 0x7f80, v17")
                    A("s_or_b64 vcc, vcc, s[62:63]")
                A("s_bcnt1_i32_b64 s61, vcc")
                A(f"s_add_u32 s{dst}, s{dst}, s61")
            A(f"s_min_u32 s{dst}, s{dst}, 255")
        sample(73, WS_MODG, 8, 20, False)
        sample(74, WS_Y1 + 4096, BLK, 4, True)
        sample(75, WS_WT + 1024, 8192, 5, True)
        sample(76, WS_Z + 1024, 8192, 5, True)
        sample(77, WS_W13 + 512, 17280, 4, True)
        sample(78, WS_W2 + 512, 8640, 4, True)
        A("s_min_u32 s77, s77, 15"); A("s_min_u32 s78, s78, 15"); A("s_lshl_b32 s77, s77, 4"); A("s_or_b32 s77, s77, s78")
        for k in range(8): A(f"v_cvt_f32_u32 v{8+k}, s{70+k}")
        for k in range(4):
            A(f"v_lshrrev_b32 v{8+2*k}, 16, v{8+2*k}")
            A(f"v_and_b32 v{9+2*k}, 0xffff0000, v{9+2*k}")
            A(f"v_or_b32 v{20+k}, v{8+2*k}, v{9+2*k}")
        A("v_mov_b32 v4, 0")
        A("s_mov_b64 exec, 1")
        A("global_store_dwordx4 v4, v[20:23], s[8:9]")
        A("s_mov_b64 exec, -1")
        A(f"{L}:")
    A("all_end:")
    A("s_endpgm")
    for f in C.tail: f()
    if DG:
        for i, x in enumerate(SITES): print("site", i, x)
    A("code_end:")
    return K
```

```python
import os, math
from gen_common import *
from gen_k5 import VM
from gen_k2 import layernorm, unpack_bf16, PITCH2

MAIN = "adaLN_cond__spectral_gfnet__glu_gated_swiglu__prompt_kernel"
OPT = dict(kv.split("=") for kv in os.environ.get("OPT", "").split(",") if kv)
SC = OPT.get("sc", "sc0+sc1").replace("+", " ")
LSC = "sc1"
WS_EPOCH = 0x80000
WS_FLG = 0xB0000
FA, FW, FP, FH1, FH2, FX = [0x8000*i for i in range(6)]
FSH = int(OPT.get("fsh", 5))
SZ_FLG = 6*0x8000
WS_MODG = 0xA0000
NB_WG = 161
BLK = 10368
SZ_Y1N = 256*BLK
TAGSTEP = 0x9E3779B9
RETRY_LIMIT = int(OPT.get("rl", 4000000))
CUM = OPT.get("cum", "1") == "1" and not (CNT and PROF)
DG = OPT.get("dg") == "1"
STAG = 55

ESTAMP = OPT.get("est") == "1"
_stamp = stamp
DLYD = OPT.get("dly") == "dbg"
_dn = [0]
def dpoint(A, i):
    _dn[0] += 1; L = f"dp_{_dn[0]}"
    A("s_cselect_b32 s98, 1, 0")
    A(f"s_bitcmp1_b32 s96, {i}")
    A(f"s_cbranch_scc0 {L}")
    A("s_mov_b32 s97, s94")
    A(f"{L}_l:")
    A("s_sleep 16")
    A("s_sub_u32 s97, s97, 1")
    A("s_cmp_gt_i32 s97, 0")
    A(f"s_cbranch_scc1 {L}_l")
    A(f"{L}:")
    A("s_cmp_eq_u32 s98, 1")
def stamp(A, i):
    if DLYD: dpoint(A, i)
    if ESTAMP and i in (0, 1, 2, 3, 5): return
    if OPT.get("est") in ("2", "3") and i < 20: return
    if OPT.get("est") == "9": return
    _stamp(A, i)
def estamp(A, i):
    if DLYD: dpoint(A, 24 + i)
    if ESTAMP: _stamp(A, i)
def fk(x): return hex(f32bits(float(x)))
def pr(r): return f"v[{r}:{r+1}]"
def mf32(A, d, a, b, first):
    c = "0" if first else f"v[{d}:{d+15}]"
    A(f"v_mfma_f32_32x32x16_bf16 v[{d}:{d+15}], v[{a}:{a+3}], v[{b}:{b+3}], {c}")
def csel(A, d, a, b):
    A(f"s_mov_b32 {d}, {b}")
    A(f"s_cselect_b32 {d}, {a}, {d}")

class Ctx:
    def __init__(self, A):
        self.A = A; self.vm = VM(A); self.n = 0; self.tail = []
    def lab(self, p):
        self.n += 1; return f"{p}_{self.n}"

def max_ops(A, regs, acc):
    regs = list(regs); ops = []
    ops.append(lambda r=regs[:3]: A(f"v_max3_u32 v{acc}, v{r[0]}, v{r[1]}, v{r[2]}"))
    rest = regs[3:]
    while rest:
        if len(rest) >= 2:
            ops.append(lambda r=rest[:2]: A(f"v_max3_u32 v{acc}, v{acc}, v{r[0]}, v{r[1]}")); rest = rest[2:]
        else:
            ops.append(lambda r=rest[0]: A(f"v_max_u32 v{acc}, v{acc}, v{r}")); rest = []
    return ops
def fill_test(A, regs, acc):
    for f in max_ops(A, regs, acc): f()
    A(f"v_cmp_eq_u32 vcc, -1, v{acc}")
def retry_loop(C, loads, test, scnt=53, spec=None, tags=()):
    A = C.A; L = C.lab("rt")
    if not CUM: A(f"s_mov_b32 s{scnt}, 0")
    A(f"{L}:")
    loads()
    if spec: spec()
    A(f"s_add_u32 s{scnt}, s{scnt}, 1")
    A(f"s_waitcnt vmcnt({len(tags)})")
    test()
    A(f"s_cmp_ge_u32 s{scnt}, {RETRY_LIMIT}")
    A(f"s_cbranch_scc1 {L}_{'t' if DG else 'x'}")
    A(f"s_cbranch_vccnz {L}")
    A(f"{L}_x:")
    if DG: gave_up(C, L + "_t", L + "_x")
    C.vm.q = []
    for t in tags: C.vm.issue(t)
SITES = []
def gave_up(C, L, back):
    import inspect
    A = C.A
    site = len(SITES); SITES.append((L, [f.lineno for f in inspect.stack()[1:5]]))
    def tail():
        A(f"{L}:")
        A("s_memrealtime s[92:93]")
        A("s_load_dwordx2 s[90:91], s[0:1], 80")
        A("s_waitcnt vmcnt(0) lgkmcnt(0)")
        A("s_mov_b64 s[94:95], exec")
        A("s_mov_b64 exec, 1")
        A("v_mov_b32 v4, 0")
        A(f"v_mov_b32 v5, {hex(1 << (site & 31))}")
        A(f"global_atomic_or v4, v5, s[90:91] offset:{4*(site >> 5)} sc1")
        A("v_mov_b32 v5, 1")
        A("global_atomic_add v4, v5, s[90:91] offset:8 sc1")
        A("s_not_b32 s92, s92")
        A("s_lshl_b32 s96, s92, 8")
        A("s_or_b32 s96, s96, s2")
        A("v_mov_b32 v5, s96")
        A("global_atomic_umax v4, v5, s[90:91] offset:12 sc1")
        A("s_lshl_b32 s96, s92, 6")
        A(f"s_or_b32 s96, s96, {site}")
        A("v_mov_b32 v5, s96")
        A("global_atomic_umax v4, v5, s[90:91] offset:28 sc1")
        A("v_mov_b32 v5, s92")
        A("global_atomic_umax v4, v5, s[90:91] offset:24 sc1")
        A("s_waitcnt vmcnt(0)")
        A("s_mov_b64 exec, s[94:95]")
        A(f"s_branch {back}")
    C.tail.append(tail)
def poll2(C, loads, tests, nops, use, scnt=53):
    A = C.A; L = C.lab("p2")
    if not CUM: A(f"s_mov_b32 s{scnt}, 0")
    A(f"{L}:")
    for k in range(2):
        A(f"s_waitcnt vmcnt({nops})")
        tests[k]()
        A(f"s_cbranch_vccz {L}_{k}")
        loads[k]()
    A(f"s_add_u32 s{scnt}, s{scnt}, 1")
    A(f"s_cmp_lt_u32 s{scnt}, {RETRY_LIMIT}")
    A(f"s_cbranch_scc1 {L}")
    if DG:
        A(f"s_branch {L}_t")
        A(f"{L}_x:")
        gave_up(C, L + "_t", L + "_x")
    A(f"s_waitcnt vmcnt({nops})")
    A(f"{L}_0:")
    use(0)
    A(f"s_branch {L}_e")
    A(f"{L}_1:")
    use(1)
    A(f"{L}_e:")
    C.vm.q = ["stale"]*nops
def check_ops(C, loads, regs, acc):
    A = C.A; L = C.lab("fx")
    ops = max_ops(A, regs, acc)
    ops.append(lambda: A(f"v_cmp_eq_u32 vcc, -1, v{acc}"))
    def br():
        A(f"s_cbranch_vccnz {L}")
        A(f"{L}_b:")
    ops.append(br)
    def tail():
        A(f"{L}:")
        q = C.vm.q
        retry_loop(C, loads, lambda: fill_test(A, regs, acc))
        C.vm.q = q
        A(f"s_branch {L}_b")
    C.tail.append(tail)
    return ops
def flag_store(C, off, va=4, vb=5):
    A = C.A; L = C.lab("fl")
    A("s_cmp_lg_u32 s3, 0")
    A(f"s_cbranch_scc1 {L}")
    A(f"s_lshl_b32 s50, s2, {FSH}")
    A(f"s_add_u32 s50, s50, {off}")
    A(f"v_mov_b32 v{va}, s50")
    A(f"v_mov_b32 v{vb}, s{STAG}")
    A("s_mov_b64 exec, 1")
    A(f"buffer_store_dword v{vb}, v{va}, s[12:15], 0 offen {SC}")
    A("s_mov_b64 exec, -1")
    A(f"{L}:")

L_ROWS = 0
L_TR = 8*PITCH2
L_MODP = L_TR + 16384
L_MODV = L_MODP + 1024
L_WT = L_MODV + 5120
L_PREP = 45056
L_YST = L_PREP + 32768
assert L_WT + 4*2816 <= L_PREP and L_YST + 16384 <= 114688

def prep_params(C, unit, B):
    A = C.A
    g, pitch, so, do, ts, ga, ja, a, b, c = [f"s{B+i}" for i in range(10)]
    A(f"s_sub_u32 {a}, s2, {NB_WG}")
    A(f"s_lshl_b32 {a}, {a}, 2")
    A(f"s_add_u32 {a}, {a}, s3")
    if unit: A(f"s_add_u32 {a}, {a}, {unit*4*(256 - NB_WG)}")
    A(f"s_cmp_ge_u32 {a}, 540")
    A(f"s_cselect_b32 {g}, 1, 0")
    A(f"s_cmp_ge_u32 {a}, 1080")
    A(f"s_cselect_b32 {g}, 2, {g}")
    A(f"s_mul_i32 {b}, {g}, 540")
    A(f"s_sub_u32 {b}, {a}, {b}")
    A(f"s_cmp_eq_u32 {g}, 2")
    csel(A, pitch, "1280", "3456")
    csel(A, ts, "1024", "2048")
    csel(A, ga, "4", "8")
    csel(A, ja, "16", "4")
    csel(A, c, "6554", "2428")
    csel(A, so, "10", "27")
    csel(A, do, "40960", "221184")
    A(f"s_mul_i32 {c}, {c}, {b}")
    A(f"s_lshr_b32 {c}, {c}, 16")
    A(f"s_mul_i32 {so}, {so}, {c}")
    A(f"s_sub_u32 {b}, {b}, {so}")
    A(f"s_mul_i32 {do}, {do}, {c}")
    A(f"s_mul_i32 {so}, {c}, {pitch}")
    A(f"s_lshl_b32 {so}, {so}, 5")
    A(f"s_lshl_b32 {c}, {b}, 7")
    A(f"s_add_u32 {so}, {so}, {c}")
    A(f"s_cmp_eq_u32 {g}, 2")
    csel(A, c, "4096", "8192")
    A(f"s_mul_i32 {c}, {c}, {b}")
    A(f"s_add_u32 {do}, {do}, {c}")
    A(f"s_cmp_eq_u32 {g}, 1")
    A(f"s_cselect_b32 {c}, 1024, 0")
    A(f"s_add_u32 {do}, {do}, {c}")
    A(f"s_cmp_lt_u32 {a}, 1620")
    A(f"s_cselect_b32 {so}, {so}, {hex(OOB)}")
    A(f"s_cselect_b32 {do}, {do}, {hex(OOB)}")

def a_consts(C, pf):
    A = C.A
    hf = 19
    A("v_cvt_f32_u32 v7, v2")
    A(f"v_cvt_f32_u32 v{hf}, v3")
    A(f"v_mul_f32 v212, {flit(1/32)}, v7")
    A(f"v_mul_f32 v213, v212, v{hf}")
    A(f"v_mul_f32 v213, {flit(8.0)}, v213")
    for mh in range(2):
        for p in range(4):
            for z in range(2):
                A(f"v_fmamk_f32 v214, v212, {fk(16*mh+2*p+z)}, v213")
                A(f"v_cos_f32 v{60+z}, v214")
                A(f"v_sin_f32 v{62+z}, -v214")
            A(f"v_cvt_pk_bf16_f32 v{80+4*mh+p}, v60, v61")
            A(f"v_cvt_pk_bf16_f32 v{88+4*mh+p}, v62, v63")
            pf()
    A(f"v_mul_f32 v212, {flit(1/640)}, v7")
    A(f"v_mul_f32 v213, v212, v{hf}")
    A("v_mul_f32 v213, 4.0, v213")
    for r in range(12):
        A(f"v_fmamk_f32 v214, v212, {fk(8*(r//4)+r%4)}, v213")
        A(f"v_cos_f32 v{96+r}, v214")
        A(f"v_sin_f32 v{108+r}, v214")
        if r & 1: pf()
    A("v_and_b32 v60, 15, v2")
    A("v_cvt_f32_u32 v60, v60")
    A("v_lshrrev_b32 v61, 4, v2")
    A("v_cvt_f32_u32 v61, v61")
    A(f"v_mul_f32 v212, {flit(1/20)}, v60")
    A(f"v_mul_f32 v213, v212, v{hf}")
    A("v_mul_f32 v213, 4.0, v213")
    A(f"v_fmamk_f32 v213, v61, {fk(0.25)}, v213")
    A(f"v_add_f32 v215, {flit(-0.25)}, v213")
    def cpair(dst, consts, bases):
        for z in range(2):
            A(f"v_fmamk_f32 v214, v212, {fk(consts[z])}, v{bases[z]}")
            A(f"v_cos_f32 v{62+z}, v214")
        A(f"v_cvt_pk_bf16_f32 v{dst}, v62, v63")
    for p in range(4):
        d = [8*((2*p+z) >> 2) + ((2*p+z) & 3) for z in range(2)]
        cpair(120+p, d, [213, 213]); pf()
        cpair(124+p, d, [215, 215]); pf()
    for p in range(2):
        d = [16+2*p, 17+2*p]
        cpair(128+p, d, [213, 213]); pf()
        cpair(130+p, d, [215, 215]); pf()
    A("v_cmp_eq_u32 vcc, 0, v3")
    for p in range(4):
        A(f"v_cndmask_b32 v{128+p}, 0, v{128+p}, vcc")

N_FILLER = 16

def phase0(C):
    A = C.A; vm = C.vm
    A("s_cmp_ge_u32 s2, 256")
    A("s_cbranch_scc1 all_end")
    if OPT.get("cpf", "2") == "2":
        L = C.lab("cpf")
        A("s_getpc_b64 s[26:27]")
        A(f"{L}_pc:")
        A("s_bfe_u32 s50, s2, 0x30003")
        A("s_lshl_b32 s50, s50, 12")
        A("v_lshl_add_u32 v4, v0, 4, s50")
        A("s_bfe_u32 s50, s2, 0x20003")
        A("s_lshl_b32 s50, s50, 12")
        A("s_add_u32 s50, s50, 0x8000")
        A("v_lshl_add_u32 v6, v0, 4, s50")
        A(f"s_sub_u32 s26, s26, {L}_pc-{MAIN}")
        A("s_subb_u32 s27, s27, 0")
        A(f"v_min_u32 v6, code_end-{MAIN}-16, v6")
        A("global_load_dwordx4 v[248:251], v4, s[26:27]")
        A("global_load_dwordx4 v[252:255], v6, s[26:27]")
    A("s_load_dwordx2 s[4:5], s[0:1], 88")
    A("s_load_dwordx4 s[28:31], s[0:1], 56")
    A("s_load_dwordx2 s[6:7], s[0:1], 0")
    A("s_load_dwordx4 s[16:19], s[0:1], 8")
    A("s_load_dwordx4 s[20:23], s[0:1], 32")
    A("s_load_dwordx2 s[24:25], s[0:1], 48")
    A("s_load_dwordx2 s[8:9], s[0:1], 72")
    if CUM: A("s_mov_b32 s53, 0")
    if DLYD:
        A("s_load_dwordx2 s[90:91], s[0:1], 80")
        A("s_waitcnt lgkmcnt(0)")
        A("s_load_dwordx4 s[92:95], s[90:91], 0")
        A("s_waitcnt lgkmcnt(0)")
    elif OPT.get("dly"):
        m, v, n = [int(x) for x in OPT["dly"].split(":")]
        A(f"s_and_b32 s50, s2, {m}")
        A(f"s_cmp_lg_u32 s50, {v}")
        A("s_cbranch_scc1 dly_x")
        for _ in range(n): A("s_sleep 127")
        A("dly_x:")
    if DG:
        A("s_memrealtime s[92:93]")
        A("s_load_dwordx2 s[90:91], s[0:1], 80")
    A("v_and_b32 v1, 63, v0")
    A("v_and_b32 v2, 31, v0")
    A("v_lshrrev_b32 v3, 5, v1")
    A("v_lshrrev_b32 v4, 6, v0")
    A("v_readfirstlane_b32 s3, v4")
    if DLYD:
        A("s_nop 4")
        A("s_lshr_b32 s96, s95, s3")
        A("s_and_b32 s96, s96, 1")
        A("s_cmp_eq_u32 s92, s2")
        A("s_cselect_b32 s96, s96, 0")
        A("s_cmp_lg_u32 s96, 0")
        A("s_cselect_b32 s96, s93, 0")
        dpoint(A, 31)
    A("s_and_b32 s48, s2, 7")
    A("s_lshr_b32 s49, s2, 3")
    A("s_mul_i32 s26, s48, 10")
    A("s_add_u32 s26, s26, s49")
    A("s_mul_i32 s27, s48, 20")
    A("s_add_u32 s27, s27, s49")
    A("s_add_u32 s27, s27, 70")
    A("s_cmp_lt_u32 s49, 10")
    A("s_cselect_b32 s54, s26, s27")
    A("s_lshl_b32 s26, s54, 5")
    A(f"s_cmp_lt_u32 s49, {10 if 'now' in OPT.get('xp', '') else 30}")
    A(f"s_cselect_b32 s26, s26, {hex(OOB)}")
    A("v_lshrrev_b32 v4, 1, v0")
    A("v_and_b32 v5, 1, v0")
    A("v_mul_u32_u24 v56, 7680, v4")
    A("v_lshl_add_u32 v56, v5, 4, v56")
    A("v_add_u32 v56, s26, v56")
    A("v_lshlrev_b32 v57, 1, v4")
    A("s_lshl_b32 s80, s48, 3")
    A("s_and_b32 s26, s49, 7")
    A("s_add_u32 s80, s80, s26")
    A("s_lshr_b32 s26, s2, 7")
    A("s_lshl_b32 s26, s26, 4")
    A("s_bfe_u32 s27, s2, 0x10006")
    A("s_lshl_b32 s27, s27, 2")
    A("s_add_u32 s26, s26, s27")
    A("s_lshr_b32 s27, s3, 1")
    A("s_lshl_b32 s27, s27, 3")
    A("s_add_u32 s26, s26, s27")
    A("s_and_b32 s27, s3, 1")
    A("s_lshl_b32 s27, s27, 1")
    A("s_add_u32 s26, s26, s27")
    A("s_lshl_b32 s26, s26, 6")
    A("s_add_u32 s26, s26, s80")
    A("s_mul_i32 s26, s26, 1280")
    A("v_mul_u32_u24 v58, 81920, v3")
    A("v_lshl_add_u32 v58, v2, 3, v58")
    A("v_add_u32 v58, s26, v58")
    A("s_lshr_b32 s26, s2, 6")
    A("s_lshl_b32 s26, s26, 6")
    A("s_add_u32 s80, s80, s26")
    A(f"s_mul_i32 s80, s80, {BLK}")
    A("s_waitcnt lgkmcnt(0)")
    if DG:
        A("s_mov_b32 s88, s92")
        A("s_lshl_b32 s96, s2, 2")
        A("s_add_u32 s96, s96, 0x88000")
        A("v_mov_b32 v200, s96")
        A("v_mov_b32 v201, s92")
        A("s_cmp_eq_u32 s3, 0")
        A("s_cselect_b64 exec, 1, 0")
        A("global_store_dword v200, v201, s[4:5] sc0 sc1")
        A("s_mov_b64 exec, -1")
    Lfill, Ljoin = C.lab("filler"), C.lab("p0join")
    A("s_cmp_ge_u32 s49, 30")
    A(f"s_cbranch_scc1 {Lfill}")
    srd(A, 32, 28, 0, 1280)
    srd(A, 36, 30, 0, 640*7680)
    TCH = OPT.get("tch", "")
    if "w" in TCH:
        A("v_mul_u32_u24 v200, 76800, v1")
        A("buffer_load_dword v201, v200, s[36:39], 0 offen")
    if "x" in TCH:
        srd(A, 40, 6, 0, SZ_X)
        A("v_mul_u32_u24 v200, 40960, v1")
        A("buffer_load_dword v202, v200, s[40:43], 0 offen")
    XO = int(OPT.get("xo", 5))
    def x_loads():
        srd(A, 40 if XO else 32, 6, 0, SZ_X)
        for i in range(5):
            A(f"buffer_load_dwordx2 v[{8+2*i}:{9+2*i}], v58, s[{40 if XO else 32}:{43 if XO else 35}], 0 offen offset:{256*i}"); vm.issue("x")
    if XO == 7: x_loads()
    for i in range(5):
        A(f"buffer_load_ushort v{20+i}, v57, s[32:35], 0 offen offset:{256*i}"); vm.issue("c")
    if XO == 8: x_loads()
    for i in range(5):
        if i: A(f"s_mov_b32 s26, {i*128*7680}")
        A(f"buffer_load_dwordx4 v[{28+4*i}:{31+4*i}], v56, s[36:39], {'s26' if i else '0'} offen"); vm.issue(("w", i))
    if not XO: x_loads()
    stamp(A, 0)
    A(f"s_load_dword s{STAG}, s[4:5], {hex(WS_EPOCH)}")
    def wt_code():
        A("s_lshl_b32 s26, s49, 2")
        A("s_add_u32 s26, s26, s3")
        A("s_mul_i32 s27, s26, 4370")
        A("s_lshr_b32 s27, s27, 16")
        A("s_mul_i32 s50, s27, 15")
        A("s_sub_u32 s26, s26, s50")
        A("s_mul_i32 s26, s26, 22")
        A("s_min_u32 s26, s26, 299")
        A("s_lshl_b32 s50, s48, 3")
        A("s_add_u32 s27, s27, s50")
        A("s_lshr_b32 s50, s27, 2")
        A("s_and_b32 s27, s27, 3")
        A("v_and_b32 v4, 7, v1")
        A("v_bfe_u32 v5, v1, 3, 2")
        A("v_lshl_add_u32 v6, v5, 5, v4")
        A("s_lshl_b32 s51, s50, 7")
        A("s_lshl_b32 s52, s27, 3")
        A("s_add_u32 s51, s51, s52")
        A("v_add_u32 v6, s51, v6")
        A("v_mul_u32_u24 v228, 642, v6")
        A("v_mul_u32_u24 v7, 20, v3")
        A("v_add_u32 v228, v228, v7")
        A("s_lshl_b32 s51, s26, 1")
        A(f"s_cmp_lt_u32 s49, {0 if 'nowt' in OPT.get('xp', '') else 30}")
        A(f"s_cselect_b32 s51, s51, {hex(OOB)}")
        A("v_add_u32 v228, s51, v228")
        A("s_mul_i32 s51, s3, 2816")
        A(f"s_add_u32 s51, s51, {L_WT}")
        A("v_mul_u32_u24 v229, 1280, v3")
        A("v_lshl_add_u32 v229, v4, 4, v229")
        A("v_lshl_add_u32 v229, v5, 2, v229")
        A("v_add_u32 v229, s51, v229")
        A("v_lshl_add_u32 v230, v1, 4, s51")
        A("s_lshl_b32 s26, s26, 13")
        A("s_lshl_b32 s50, s50, 9")
        A("s_add_u32 s26, s26, s50")
        A("s_lshl_b32 s27, s27, 7")
        A("s_add_u32 s26, s26, s27")
        A("s_cmp_lt_u32 s49, 30")
        A(f"s_cselect_b32 s26, s26, {hex(OOB)}")
        A("v_lshrrev_b32 v5, 3, v1")
        A("v_lshlrev_b32 v231, 13, v5")
        A("v_lshl_add_u32 v231, v4, 4, v231")
        A("v_add_u32 v231, s26, v231")
        if XO in (1, 4): x_loads()
        if XO < 3: wt_loads()
    WL = OPT.get("wl", "0") != "0"
    def wt_loads(late=False):
        if WL and not late: return
        S0 = 36 if late else 32
        srd(A, S0, 16, 0, SZ_WF)
        srd(A, S0 + 4, 18, 0, SZ_WF)
        for m in range(2):
            A(f"buffer_load_dwordx4 v[{216+6*m}:{219+6*m}], v228, s[{S0+4*m}:{S0+3+4*m}], 0 offen"); vm.issue("wt")
            A(f"buffer_load_dwordx2 v[{220+6*m}:{221+6*m}], v228, s[{S0+4*m}:{S0+3+4*m}], 0 offen offset:16"); vm.issue("wt")
    wt_code()
    if XO == 2: x_loads()
    ZF = int(OPT.get("zf", 0))
    def early_fills():
        if not ZF: return
        for q in range(4): A(f"v_accvgpr_write_b32 a{12+q}, -1")
        A("s_lshl_b32 s26, s2, 12")
        A("v_lshl_add_u32 v245, v0, 4, s26")
        for bit, off, sz in ((1, WS_Z, SZ_COL), (2, WS_H2P, SZ_H2P)):
            if not ZF & bit: continue
            srd(A, 44, 4, off, sz)
            for i in range(3):
                if i: A(f"s_mov_b32 s26, {i << 20}")
                A(f"buffer_store_dwordx4 a[12:15], v245, s[44:47], {'s26' if i else '0'} offen {SC}"); vm.issue("zf")
    early_fills()
    stamp(A, 1)
    A("s_waitcnt lgkmcnt(0)")
    A(f"s_add_u32 s{STAG}, s{STAG}, {hex(TAGSTEP)}")
    srd(A, 12, 4, WS_FLG, SZ_FLG)
    if XO in (5, 6):
        late = [x_loads] if XO == 5 else [x_loads, wt_loads]
        calls = [0]
        def mid():
            calls[0] += 1
            if calls[0] == int(OPT.get("xm", 1)) and late:
                while late: late.pop(0)()
        a_consts(C, mid)
        assert not late
        if XO == 5: wt_loads()
    else:
        a_consts(C, lambda: None)
        if XO == 3: x_loads()
        if XO >= 3: wt_loads()
    def ln_stats():
        vm.wait(["x"])
        unpack_bf16(A, 60, 8, 10)
        layernorm(A, 60, 20, 212, 213)
    if XO >= 7: ln_stats()
    stamp(A, 2)
    vm.wait(["c"])
    for i in range(5):
        r = 20+i
        A(f"v_lshlrev_b32 v{r}, 16, v{r}")
        A(f"v_mul_f32 v26, {flit(-math.log2(math.e))}, v{r}")
        A(f"v_exp_f32 v26, v26")
        A(f"v_add_f32 v26, 1.0, v26")
        A(f"v_rcp_f32 v26, v26")
        A(f"v_mul_f32 v{r}, v{r}, v26")
        bf16_round_v(A, r, r)
    for i in range(5):
        vm.wait([("w", i)])
        for q in range(4):
            w = 28+4*i+q
            A(f"v_lshlrev_b32 v26, 16, v{w}")
            A(f"v_and_b32 v27, 0xffff0000, v{w}")
            if i == 0:
                A(f"v_mul_f32 v{48+2*q}, v{20+i}, v26")
                A(f"v_mul_f32 v{49+2*q}, v{20+i}, v27")
            else:
                A(f"v_fmac_f32 v{48+2*q}, v{20+i}, v26")
                A(f"v_fmac_f32 v{49+2*q}, v{20+i}, v27")
    for ctl in ["quad_perm:[2,3,0,1]", "row_ror:4", "row_ror:8"]:
        for q in range(8):
            A(f"v_add_f32_dpp v{48+q}, v{48+q}, v{48+q} {ctl} row_mask:0xf bank_mask:0xf")
    A("v_lshrrev_b32 v5, 4, v0")
    A("v_lshlrev_b32 v5, 6, v5")
    A("v_and_b32 v6, 1, v0")
    A("v_lshl_add_u32 v5, v6, 5, v5")
    A("v_and_b32 v6, 14, v0")
    A("v_cmp_eq_u32 vcc, 0, v6")
    A("s_and_saveexec_b64 s[26:27], vcc")
    A(f"ds_write_b128 v5, v[48:51] offset:{L_MODP}")
    A(f"ds_write_b128 v5, v[52:55] offset:{L_MODP+16}")
    A("s_mov_b64 exec, s[26:27]")
    A("s_waitcnt lgkmcnt(0)")
    A("s_barrier")
    stamp(A, 3)
    L = C.lab("modfin")
    A("s_cmp_lg_u32 s3, 0")
    A(f"s_cbranch_scc1 {L}")
    A("v_and_b32 v6, 15, v0")
    A("v_lshrrev_b32 v5, 4, v0")
    A("v_lshlrev_b32 v5, 8, v5")
    A("v_lshl_add_u32 v5, v6, 2, v5")
    A(f"v_add_u32 v5, {L_MODP}, v5")
    A("ds_read2_b32 v[20:21], v5 offset0:0 offset1:16")
    A("ds_read2_b32 v[22:23], v5 offset0:32 offset1:48")
    A("s_waitcnt lgkmcnt(0)")
    A("v_add_f32 v20, v20, v21")
    A("v_add_f32 v22, v22, v23")
    A("v_add_f32 v20, v20, v22")
    for sw in ("v_permlane16_swap_b32", "v_permlane32_swap_b32"):
        A("v_mov_b32 v21, v20")
        A(f"{sw} v20, v21")
        A("v_add_f32 v20, v20, v21")
    bf16_round_v(A, 20, 20)
    A("s_cmp_ge_u32 s54, 160")
    A("s_cselect_b32 s26, 120, 0")
    A("s_sub_u32 s26, s54, s26")
    A("s_sub_u32 s26, s26, 40")
    A("v_add_f32 v21, 1.0, v20")
    bf16_round_v(A, 21, 21)
    A("s_cmp_lt_u32 s26, 40")
    A("s_cselect_b64 vcc, -1, 0")
    A("v_cndmask_b32 v20, v20, v21, vcc")
    A(f"v_mov_b32 v21, s{STAG}")
    A("s_lshl_b32 s26, s54, 7")
    A("s_cmp_lt_u32 s54, 80")
    A(f"s_cselect_b32 s26, s26, {hex(OOB)}")
    A("v_lshl_add_u32 v22, v6, 3, s26")
    A("s_lshl_b32 s26, s54, 6")
    A("s_cmp_ge_u32 s54, 80")
    A(f"s_cselect_b32 s26, s26, {hex(OOB)}")
    A("s_cmp_lt_u32 s49, 30")
    A(f"s_cselect_b32 s26, s26, {hex(OOB)}")
    A("v_lshl_add_u32 v23, v6, 2, s26")
    srd(A, 32, 4, WS_MODG, 80*128)
    srd(A, 36, 4, WS_MOD, SZ_MOD)
    A("s_mov_b64 exec, 0xffff")
    A(f"buffer_store_dwordx2 v[20:21], v22, s[32:35], 0 offen {SC}")
    A(f"buffer_store_dword v20, v23, s[36:39], 0 offen {SC}")
    A("s_mov_b64 exec, -1")
    A(f"{L}:")
    stamp(A, 4)
    def mod_addr():
        A("v_lshlrev_b32 v245, 4, v0")
        A("v_add_u32 v246, 8192, v245")
        A("v_add_u32 v247, 4096, v245")
        A("v_cmp_gt_u32 vcc, 128, v0")
        A("v_cndmask_b32 v246, v247, v246, vcc")
        A(f"v_and_b32 v247, {N_FILLER - 1}, v0")
        A(f"v_add_u32 v247, {256 - N_FILLER}, v247")
        A(f"v_lshlrev_b32 v247, {FSH}, v247")
    def mod_loads(sd=32, so="s26"):
        A(f"buffer_load_dwordx4 v[232:235], v245, s[{sd}:{sd+3}], 0 offen {LSC}")
        A(f"buffer_load_dwordx4 v[236:239], v245, s[{sd}:{sd+3}], {so} offen {LSC}")
        A(f"buffer_load_dwordx4 v[240:243], v246, s[{sd}:{sd+3}], 0 offen {LSC}")
    def mod_test():
        A("v_min3_u32 v4, v233, v235, v237")
        A("v_max3_u32 v5, v233, v235, v237")
        A("v_min3_u32 v4, v4, v239, v241")
        A("v_max3_u32 v5, v5, v239, v241")
        A("v_min_u32 v4, v4, v243")
        A("v_max_u32 v5, v5, v243")
        A("v_cmp_ne_u32 vcc, v4, v5")
        A(f"v_cmp_ne_u32 s[50:51], s{STAG}, v5")
        A("s_or_b64 vcc, vcc, s[50:51]")
    ME = int(OPT.get("me", 0))
    Lmod = C.lab("modok")
    def mod_early():
        mod_addr()
        srd(A, 44, 4, WS_MODG, 80*128)
        A("s_movk_i32 s43, 4096")
        mod_loads(44, "s43")
        for _ in range(3): vm.issue("mo")
    if ME == 1: mod_early()
    if XO < 7: ln_stats()
    stamp(A, 5)
    if ME == 2: mod_early()
    def wt_transpose():
        vm.wait(["wt"])
        for m in range(2):
            for cc in range(12):
                op = "ds_write_b16_d16_hi" if cc & 1 else "ds_write_b16"
                A(f"{op} v229, v{216+6*m+cc//2} offset:{cc*128 + 2*m}")
        A("s_waitcnt lgkmcnt(0)")
        for j in range(3):
            A(f"ds_read_b128 v[{216+4*j}:{219+4*j}], v230 offset:{1024*j}")
        A(f"v_add_u32 v229, {hex(OOB)}, v231")
        A("v_cmp_gt_u32 vcc, 48, v1")
        A("v_cndmask_b32 v229, v229, v231, vcc")
    if not WL: wt_transpose()
    for q in range(4): A(f"v_accvgpr_write_b32 a{12+q}, -1")
    A("s_waitcnt lgkmcnt(0)")
    if ME:
        if not CUM: A("s_mov_b32 s53, 0")
        stamp(A, 6)
        A("s_waitcnt vmcnt(0)")
        mod_test()
        A(f"s_cbranch_vccz {Lmod}")
    A(f"s_branch {Ljoin}")
    A(f"{Lfill}:")
    q_main = vm.q; vm.q = []
    srd(A, 32, 6, 0, SZ_X)
    for i in range(5):
        A(f"buffer_load_dwordx2 v[{8+2*i}:{9+2*i}], v58, s[32:35], 0 offen offset:{256*i}"); vm.issue("x")
    stamp(A, 0)
    A(f"s_load_dword s{STAG}, s[4:5], {hex(WS_EPOCH)}")
    A(f"s_sub_u32 s26, s2, {256 - N_FILLER}")
    A("s_lshl_b32 s26, s26, 12")
    A("v_lshl_add_u32 v59, v0, 4, s26")
    for q in range(4): A(f"v_accvgpr_write_b32 a{12+q}, -1")
    srd(A, 40, 4, WS_Y1, SZ_Y1N)
    fills = []
    for sd, sz in ((40, SZ_Y1N),):
        for i in range(-(-sz // (N_FILLER*4096))):
            def f(sd=sd, i=i):
                A(f"s_mov_b32 s81, {i*N_FILLER*4096}")
                A(f"buffer_store_dwordx4 a[12:15], v59, s[{sd}:{sd+3}], s81 offen {SC}"); vm.issue("fill")
            fills.append(f)
    def pf(k=1):
        for _ in range(k):
            if fills: fills.pop(0)()
    pf(4)
    early_fills()
    stamp(A, 1)
    A("s_waitcnt lgkmcnt(0)")
    A(f"s_add_u32 s{STAG}, s{STAG}, {hex(TAGSTEP)}")
    srd(A, 12, 4, WS_FLG, SZ_FLG)
    a_consts(C, pf)
    stamp(A, 2)
    vm.wait(["x"])
    unpack_bf16(A, 60, 8, 10)
    pf(2)
    layernorm(A, 60, 20, 212, 213)
    pf(99)
    A(f"v_mov_b32 v231, {hex(OOB)}")
    if WL:
        A(f"v_mov_b32 v228, {hex(OOB)}")
        A("s_mul_i32 s51, s3, 2816")
        A(f"s_add_u32 s51, s51, {L_WT}")
        A("v_lshl_add_u32 v229, v1, 4, s51")
        A("v_mov_b32 v230, v229")
    else:
        A(f"v_mov_b32 v229, {hex(OOB)}")
    stamp(A, 5)
    A("s_waitcnt vmcnt(0)")
    A("s_barrier")
    flag_store(C, FA)
    A(f"{Ljoin}:")
    vm.q = []
    stamp(A, 6)
    mod_addr()
    srd(A, 32, 4, WS_MODG, 80*128)
    A("s_movk_i32 s26, 4096")
    retry_loop(C, mod_loads, mod_test)
    A(f"{Lmod}:")
    cnt(A, 0)
    A("v_lshrrev_b32 v4, 1, v245")
    A("v_lshrrev_b32 v5, 1, v246")
    A(f"v_add_u32 v4, {L_MODV}, v4")
    A(f"v_add_u32 v5, {L_MODV}, v5")
    A("v_add_u32 v6, 2048, v4")
    A("ds_write2_b32 v4, v232, v234 offset0:0 offset1:1")
    A("ds_write2_b32 v6, v236, v238 offset0:0 offset1:1")
    A("ds_write2_b32 v5, v240, v242 offset0:0 offset1:1")
    fa_ld(C); vm.issue("fa")
    if WL: wt_loads(late=True)
    srd(A, 28, 4, WS_WT, SZ_COL)
    def wt_store(j):
        if j: A(f"s_mov_b32 s81, {j*8*8192}")
        A(f"buffer_store_dwordx4 v[{216+4*j}:{219+4*j}], v{229 if j == 2 else 231}, s[28:31], {'s81' if j else '0'} offen {SC}"); vm.issue("wts")
    C.wt_ops = [lambda j=j: wt_store(j) for j in range(3)]
    C.wt_late = None
    if WL:
        ops, C.wt_ops = C.wt_ops, []
        def wt_late():
            wt_transpose()
            for j, f in enumerate(ops):
                A(f"s_waitcnt lgkmcnt({2-j})")
                f()
        C.wt_late = wt_late
    if OPT.get("wts", "a") == "now":
        while C.wt_ops: C.wt_ops.pop(0)()
    if True:
        A("s_lshl_b32 s26, s2, 12")
        A("v_lshl_add_u32 v245, v0, 4, s26")
        for off, sz in ((WS_Z, SZ_COL),) + (((WS_H2P, SZ_H2P),) if OPT.get("h2f", "a2") == "a2" else ()):
            if ZF & (1 if off == WS_Z else 2): continue
            srd(A, 32, 4, off, sz)
            for i in range(3):
                if i: A(f"s_mov_b32 s26, {i << 20}")
                A(f"buffer_store_dwordx4 a[12:15], v245, s[32:35], {'s26' if i else '0'} offen {SC}"); vm.issue("wts")
    A("s_waitcnt lgkmcnt(0)")
    A("s_barrier")
    stamp(A, 7)

def fa_ld(C):
    C.A(f"buffer_load_dword v244, v247, s[12:15], 0 offen offset:{FA} {LSC}")
def flag_check(C, name, reg, ld):
    A = C.A; L = C.lab(name)
    A(f"v_cmp_ne_u32 vcc, s{STAG}, v{reg}")
    A(f"s_cbranch_vccnz {L}")
    A(f"{L}_b:")
    def tail():
        A(f"{L}:")
        q = C.vm.q
        retry_loop(C, ld, lambda: A(f"v_cmp_ne_u32 vcc, s{STAG}, v{reg}"))
        C.vm.q = q
        A(f"s_branch {L}_b")
    C.tail.append(tail)

def phase_a(C):
    A = C.A; vm = C.vm
    A(f"v_lshlrev_b32 v6, 4, v2")
    A(f"v_add_u32 v6, {L_MODV}, v6")
    for i in range(5):
        A(f"ds_read_b128 v[{20+4*i}:{23+4*i}], v6 offset:{2560 + 512*i}")
    for i in range(5):
        A(f"ds_read_b128 v[{40+4*i}:{43+4*i}], v6 offset:{512*i}")
    A(f"s_mul_i32 s26, s3, {2*PITCH2}")
    A(f"v_mul_u32_u24 v4, {PITCH2}, v3")
    A("v_lshl_add_u32 v4, v2, 3, v4")
    A("v_add_u32 v4, s26, v4")
    A("v_bfe_u32 v5, v1, 2, 2")
    A("v_lshl_add_u32 v5, v3, 3, v5")
    A("v_mul_u32_u24 v5, 40, v5")
    A("v_bfe_u32 v6, v1, 4, 1")
    A("v_lshl_add_u32 v5, v6, 5, v5")
    A("v_and_b32 v6, 3, v1")
    A("v_lshl_add_u32 v5, v6, 3, v5")
    A("v_add_u32 v5, s26, v5")
    for i in range(5):
        A(f"s_waitcnt lgkmcnt({9-i})")
        for k in (0, 2):
            q = 4*i+k
            A(f"v_pk_mul_f32 {pr(20+q)}, {pr(20+q)}, {pr(212)} op_sel_hi:[1,0]")
    for i in range(5):
        A(f"s_waitcnt lgkmcnt({4-i})")
        for k in (0, 2):
            q = 4*i+k
            A(f"v_pk_fma_f32 {pr(60+q)}, {pr(60+q)}, {pr(20+q)}, {pr(40+q)}")
        for k in (0, 1):
            q = 2*i+k
            A(f"v_cvt_pk_bf16_f32 v{8+q}, v{60+2*q}, v{61+2*q}")
        A(f"ds_write_b64 v4, v[{8+2*i}:{9+2*i}] offset:{256*i}")
    def wt1():
        if C.wt_ops: C.wt_ops.pop(0)()
    wt1()
    A("v_mov_b32 v18, 0")
    A("v_mov_b32 v19, 0")
    A("v_cmp_eq_u32 vcc, 0, v2")
    A("s_and_saveexec_b64 s[26:27], vcc")
    A("ds_write_b64 v4, v[18:19] offset:1280")
    A("s_mov_b64 exec, s[26:27]")
    A("s_waitcnt lgkmcnt(0)")
    for row in range(2):
        for mh in range(2):
            for j in range(2):
                d = 132 + 8*row + 4*mh + 2*j
                A(f"ds_read_b64_tr_b16 v[{d}:{d+1}], v5 offset:{row*PITCH2 + 640*mh + 160*j}")
    T = [[148, 164], [180, 196]]
    A("s_waitcnt lgkmcnt(0)")
    for mh in range(2):
        for row in range(2):
            a = 132 + 8*row + 4*mh
            for ri in range(2):
                mf32(A, T[row][ri], a, (80 if ri == 0 else 88) + 4*mh, mh == 0)
    wt1()
    stamp(A, 8)
    A("v_bfe_u32 v4, v2, 3, 1")
    A("v_lshlrev_b32 v5, 5, v2")
    A("v_lshl_add_u32 v5, v3, 12, v5")
    A("s_lshl_b32 s26, s3, 2")
    A(f"s_add_u32 s26, s26, {L_TR}")
    A("v_add_u32 v5, s26, v5")
    A("v_lshl_add_u32 v4, v4, 4, v5")
    A("v_bfe_u32 v6, v2, 3, 1")
    A("v_xor_b32 v6, 1, v6")
    A("v_lshl_add_u32 v5, v6, 4, v5")
    B = [20, 32]
    TA, TB = 60, 62
    for row in range(2):
        tr, ti = T[row]
        b = B[row]
        for r in range(0, 12, 2):
            c, s_ = 96+r, 108+r
            A(f"v_pk_mul_f32 {pr(TA)}, {pr(tr+r)}, {pr(c)}")
            A(f"v_pk_mul_f32 {pr(TB)}, {pr(ti+r)}, {pr(c)}")
            A(f"v_pk_fma_f32 {pr(TA)}, {pr(ti+r)}, {pr(s_)}, {pr(TA)}")
            A(f"v_pk_fma_f32 {pr(TB)}, {pr(tr+r)}, {pr(s_)}, {pr(TB)} neg_lo:[1,0,0] neg_hi:[1,0,0]")
            dr = b + r//2 if r < 8 else b + 8 + (r-8)//2
            di = b + 4 + r//2 if r < 8 else b + 10 + (r-8)//2
            A(f"v_cvt_pk_bf16_f32 v{dr}, v{TA}, v{TA+1}")
            A(f"v_cvt_pk_bf16_f32 v{di}, v{TB}, v{TB+1}")
    wt1()
    O = [148, 180]
    for st in range(3):
        for row in range(2):
            mf32(A, O[row], 120 + 4*st, B[row] + 4*st, st == 0)
    stamp(A, 9)
    A("v_bfe_u32 v6, v0, 4, 1")
    A("v_xor_b32 v6, v0, v6")
    A("v_lshlrev_b32 v6, 4, v6")
    A(f"v_add_u32 v6, {L_TR}, v6")
    A("v_lshl_add_u32 v7, v0, 4, s80")
    A(f"v_add_u32 v44, {hex(OOB)}, v7")
    A("s_movk_i32 s26, 136")
    A("v_cmp_gt_u32 vcc, s26, v0")
    A("v_cndmask_b32 v44, v44, v7, vcc")
    srd(A, 32, 4, WS_Y1, SZ_Y1N)
    for ri in range(2):
        for r in range(7):
            A(f"v_cvt_pk_bf16_f32 v{60+7*ri+r}, v{O[0]+8*ri+r}, v{O[1]+8*ri+r}")
            A(f"ds_write_b32 v{4+ri}, v{60+7*ri+r} offset:{(8*(r//4)+r%4)*1024}")
    vm.wait(["fa"])
    flag_check(C, "fa", 244, lambda: fa_ld(C))
    A("s_movk_i32 s26, 4096")
    A("s_movk_i32 s27, 8192")
    A("s_waitcnt lgkmcnt(0)")
    A("s_barrier")
    for n in range(3):
        A(f"ds_read_b128 v[{8+4*n}:{11+4*n}], v6 offset:{4096*n}")
    for n in range(3):
        A(f"s_waitcnt lgkmcnt({2-n})")
        A(f"buffer_store_dwordx4 v[{8+4*n}:{11+4*n}], v{44 if n == 2 else 7}, s[32:35], {['0','s26','s27'][n]} offen {SC}"); vm.issue("y1")
    stamp(A, 10)
    if C.wt_late: C.wt_late()

NU = 5
L_PREP2 = L_PREP
PD = 40
G_S = [16, 17, 18, 19, 28]
DO_S = [29, 30, 31, 81, 82]
def repack(C):
    A = C.A; vm = C.vm
    A("v_lshrrev_b32 v4, 3, v1")
    A("v_and_b32 v5, 7, v1")
    A("v_bfe_u32 v6, v1, 4, 1")
    A("v_lshrrev_b32 v7, 5, v1")
    A("v_lshlrev_b32 v6, 1, v6")
    A("v_lshl_or_b32 v6, v7, 2, v6")
    A("v_xor_b32 v7, 4, v6")
    A("v_xor_b32 v6, v5, v6")
    A("v_xor_b32 v7, v5, v7")
    A("s_mul_i32 s83, s3, 20480")
    for unit in range(NU):
        B = 36
        prep_params(C, unit, B)
        A(f"s_cmp_eq_u32 s{B}, 0")
        A("s_cselect_b32 s32, s20, s22")
        A("s_cselect_b32 s33, s21, s23")
        A(f"s_cmp_eq_u32 s{B}, 2")
        A("s_cselect_b32 s32, s24, s32")
        A("s_cselect_b32 s33, s25, s33")
        A(f"s_mov_b32 s34, {640*1728*2}")
        A("s_mov_b32 s35, 0x20000")
        A(f"v_mul_lo_u32 v59, v4, s{B+1}")
        A(f"v_lshl_add_u32 v232, v6, 4, v59")
        A(f"v_lshl_add_u32 v233, v7, 4, v59")
        A(f"s_lshl_b32 s27, s{B+1}, 3")
        if OPT.get("xp") in ("nd", "nb"): A(f"s_mov_b32 s{B+2}, {hex(OOB)}")
        for i in range(4):
            A(f"s_add_u32 m0, s83, {L_PREP2 + 4096*unit + 1024*i}")
            A(f"buffer_load_dwordx4 v{232+(i&1)}, s[32:35], s{B+2} offen lds"); vm.issue(("P", unit))
            if i < 3: A(f"s_add_u32 s{B+2}, s{B+2}, s27")
        A(f"s_mov_b32 s{G_S[unit]}, s{B}")
        A(f"s_mov_b32 s{DO_S[unit]}, s{B+3}")
        if OPT.get("xp") in ("ns", "nb"): A(f"s_mov_b32 s{DO_S[unit]}, {hex(OOB)}")
    for base, ga, ja in ((8, 8, 4), (16, 4, 16)):
        A("v_lshrrev_b32 v24, 4, v1")
        A("v_bfe_u32 v25, v1, 2, 2")
        A(f"v_mul_u32_u24 v24, {ga}, v24")
        A("v_add_u32 v24, v24, v25")
        A(f"v_add_u32 v25, {ja}, v24")
        A("v_and_b32 v26, 1, v1")
        A("v_bfe_u32 v27, v1, 1, 1")
        for j, rr in enumerate([24, 25]):
            A(f"v_bfe_u32 v28, v{rr}, 1, 1")
            A(f"v_lshrrev_b32 v29, 2, v{rr}")
            A(f"v_lshrrev_b32 v30, 3, v{rr}")
            A(f"v_xor_b32 v29, v29, v30")
            A(f"v_and_b32 v29, 1, v29")
            A(f"v_lshl_or_b32 v28, v29, 1, v28")
            A(f"v_lshlrev_b32 v28, 1, v28")
            A(f"v_xor_b32 v28, v28, v27")
            A(f"v_lshlrev_b32 v31, 7, v{rr}")
            A(f"v_lshl_add_u32 v31, v26, 3, v31")
            A(f"v_add_u32 v31, s83, v31")
            for tile in range(4):
                A(f"v_xor_b32 v29, {2*tile}, v28")
                A(f"v_lshl_add_u32 v{base+4*j+tile}, v29, 4, v31")
    A("v_lshlrev_b32 v24, 4, v1")
    if OPT.get("yg", "1") == "1":
        srd(A, 44, 4, WS_Y1, SZ_Y1N)
        A(f"v_mul_u32_u24 v25, {BLK}, v0")
        retry_loop(C, lambda: A(f"buffer_load_dword v26, v25, s[44:47], 0 offen offset:{int(OPT.get('ygo', 0))} {LSC}"),
                   lambda: A("v_cmp_eq_u32 vcc, -1, v26"))
    for unit in range(NU):
        g, do = f"s{G_S[unit]}", f"s{DO_S[unit]}"
        L = C.lab("rp")
        A(f"s_cmp_eq_u32 {g}, 2")
        csel(A, "s26", hex(WS_W2), hex(WS_W13))
        csel(A, "s34", hex(SZ_W2P), hex(SZ_W13))
        csel(A, "s27", "1024", "2048")
        A("s_add_u32 s32, s4, s26")
        A("s_addc_u32 s33, s5, 0")
        vm.wait([("P", unit)])
        A(f"s_cmp_eq_u32 {g}, 2")
        A(f"s_cbranch_scc1 {L}")
        for var, base in enumerate((8, 16)):
            if var: A(f"{L}:")
            for tile in range(4):
                for j in range(2):
                    d = PD + 16*unit + 4*tile + 2*j
                    A(f"ds_read_b64_tr_b16 v[{d}:{d+1}], v{base+4*j+tile} offset:{L_PREP2 + 4096*unit}")
            if var == 0: A(f"s_branch {L}_e")
        A(f"{L}_e:")
        for tile in range(4):
            d = PD + 16*unit + 4*tile
            A(f"s_waitcnt lgkmcnt({6-2*tile})")
            A(f"buffer_store_dwordx4 v[{d}:{d+3}], v24, s[32:35], {do} offen {SC}"); vm.issue("ps")
            if tile < 3: A(f"s_add_u32 {do}, {do}, s27")

def cis_table(C, T, out, scale=None, fill=None):
    A = C.A
    WC, WS, BP, ANG, th, k0 = T, T+4, T+8, T+12, T+22, T+23
    A(f"v_add_f32 v{ANG}, v{th}, v{th}")
    A(f"v_mul_f32 v{ANG+1}, {fk(3.0)}, v{th}")
    for j, a in ((1, th), (2, ANG), (3, ANG+1)):
        A(f"v_cos_f32 v{WC+j}, v{a}")
        A(f"v_sin_f32 v{WS+j}, v{a}")
    def base(m):
        b = BP + 2*(m & 1); a = k0
        if m:
            a = ANG + (m & 1)
            A(f"v_fmamk_f32 v{a}, v{th}, {fk(8.0*m)}, v{k0}")
        A(f"v_cos_f32 v{b}, v{a}")
        A(f"v_sin_f32 v{b+1}, v{a}")
        if scale: A(f"v_pk_mul_f32 {pr(b)}, {pr(b)}, {scale} op_sel_hi:[1,0]")
    base(0)
    for m in range(4):
        if m < 3: base(m+1)
        b = BP + 2*(m & 1)
        for jp in range(2):
            r = 4*m + 2*jp
            dc, ds = out(r, None)
            A(f"v_pk_mul_f32 {pr(dc)}, {pr(WC+2*jp)}, {pr(b)} op_sel_hi:[1,0]")
            A(f"v_pk_mul_f32 {pr(ds)}, {pr(WC+2*jp)}, {pr(b)} op_sel:[0,1] op_sel_hi:[1,1]")
            A(f"v_pk_fma_f32 {pr(dc)}, {pr(WS+2*jp)}, {pr(b)}, {pr(dc)} op_sel:[0,1,0] op_sel_hi:[1,1,1] neg_lo:[1,0,0] neg_hi:[1,0,0]")
            A(f"v_pk_fma_f32 {pr(ds)}, {pr(WS+2*jp)}, {pr(b)}, {pr(ds)} op_sel:[0,0,0] op_sel_hi:[1,0,1]")
            out(r, (dc, ds))
        if fill: fill()

NS = int(OPT.get("ns", 4))
NS0 = 4
SLOT = 28*1024
C_LDS = NS0*SLOT
ZP = 1552
Z_OFF = C_LDS
ST_OFF = C_LDS + 8*ZP
STP = 1296
ST_H = ST_OFF + 8*STP
SCRAP = ST_H + 8*STP
M_OFF = SCRAP + 1024
LDS_TOTAL = M_OFF + 8192
B_YST = C_LDS
B_EX1 = C_LDS + 16384
assert B_EX1 + 16384 <= M_OFF

DT = OPT.get("dt", "1") == "1"
def ring_buf(s_):
    if DT: return s_ % 4 if s_ < 9 else 4
    return s_ % NS

def early_setup(C):
    A = C.A
    A("s_lshl_b32 s26, s48, 3")
    A("s_and_b32 s27, s49, 7")
    A("s_add_u32 s26, s26, s27")
    A("s_lshr_b32 s27, s49, 3")
    A("s_lshl_b32 s27, s27, 3")
    A("s_lshl_b32 s50, s3, 1")
    A("s_add_u32 s27, s27, s50")
    A("s_lshl_b32 s27, s27, 6")
    A("s_add_u32 s27, s27, s26")
    A("s_mul_i32 s27, s27, 1280")
    A("v_mul_u32_u24 v249, 40, v2")
    A("v_lshl_add_u32 v249, v3, 3, v249")
    A("v_add_u32 v249, s27, v249")
def hh_setup(C):
    A = C.A
    A("s_lshl_b32 s26, s40, 3")
    A("s_lshl_b32 s27, s3, 1")
    A("s_add_u32 s26, s26, s27")
    A("s_mul_i32 s26, s26, 55296")
    A("s_lshl_b32 s27, s41, 9")
    A("v_lshl_add_u32 v249, v1, 4, s27")
    A(f"v_mov_b32 v241, {hex(OOB)}")
    for i, r in ((3, 254), (2, 251), (1, 250), (0, 249)):
        A("s_mov_b32 s50, 55296")
        if i: A(f"v_add_u32 v{r}, {1024*i}, v249")
        A(f"v_cmp_gt_u32 vcc, s50, v{r}")
        A(f"v_add_u32 v{r}, s26, v{r}")
        if i == 3:
            A("v_cmp_gt_u32 s[50:51], 32, v1")
            A("s_and_b64 vcc, vcc, s[50:51]")
        A(f"v_cndmask_b32 v{r}, v241, v{r}, vcc")
    for q in range(4): A(f"v_accvgpr_write_b32 a{252+q}, -1")
def x_ops(C):
    A = C.A; ops = [lambda: srd(A, 28, 6, 0, SZ_X), lambda: A("s_mov_b32 s81, 81920")]
    for r in range(2):
        for q in range(3):
            def f(r=r, q=q):
                d = 6*r + 2*q
                A(f"buffer_load_dwordx2 a[{d}:{d+1}], v249, s[28:31], {'s81' if r else '0'} offen offset:{16*q}")
                C.vm.issue("X")
            ops.append(f)
    return ops
def hhfill_ops(C):
    A = C.A; ops = [lambda: A("s_mov_b32 s82, 55296")]
    for rt in range(2):
        for r in (249, 250, 251, 254):
            def f(r=r, rt=rt):
                A(f"buffer_store_dwordx4 a[252:255], v{r}, s[24:27], {'s82' if rt else '0'} offen {SC}")
                C.vm.issue("HF")
            f.mem = True
            ops.append(f)
    return ops
def m_ops(C):
    A = C.A; ops = []
    def m0():
        srd(A, 44, 4, WS_MOD, SZ_MOD)
        A("v_lshlrev_b32 v255, 4, v1")
        A("s_lshl_b32 s83, s3, 11")
    ops.append(m0)
    for i in range(2):
        def f(i=i):
            A(f"s_add_u32 m0, s83, {M_OFF + 1024*i}")
            A(f"s_add_u32 s43, s83, {5120 + 1024*i}")
            A(f"buffer_load_dwordx4 v255, s[44:47], s43 offen {LSC} lds")
            C.vm.issue("M")
        ops.append(f)
    return ops
def fw_ld(C):
    A = C.A
    A(f"s_mov_b32 s26, {FW}")
    A(f"buffer_load_dword v253, v252, s[12:15], s26 offen {LSC}")

def phase_b(C):
    A = C.A; vm = C.vm
    Lskip, Ldone = C.lab("b_skip"), C.lab("b_done")
    early_setup(C)
    A(f"v_lshlrev_b32 v252, {FSH}, v0")
    A("s_cmp_gt_u32 s2, 160")
    A(f"s_cbranch_scc1 {Lskip}")
    q_skip = list(vm.q)
    A("s_mul_i32 s20, s48, 20")
    A("s_add_u32 s20, s20, s49")
    A("s_cmp_eq_u32 s2, 160")
    A("s_cselect_b32 s20, 160, s20")
    A("s_lshl_b32 s21, s20, 1")
    A("s_lshr_b32 s22, s3, 1")
    A("s_add_u32 s21, s21, s22")
    A("s_and_b32 s23, s3, 1")
    A("s_lshl_b32 s24, s21, 13")
    A("s_lshl_b32 s25, s23, 12")
    A("s_add_u32 s24, s24, s25")
    srd(A, 36, 4, WS_Z, SZ_COL)
    pend = []
    def fill(k=1):
        for _ in range(k):
            if pend: pend.pop(0)()
    C32, S32, N32 = 40, 48, 56
    C64, S64 = 64, 80
    TWc, TWs = 96, 112
    AR, AI = 128, 144
    Pr, Pi, Pn = 160, 168, 176
    Or, Oi, On = 184, 192, 200
    T2c, T2s = 208, 224
    t0, t1, t2, t3, t4, t5 = 240, 241, 242, 243, 244, 245
    hf, pf, af = 246, 247, 5
    T = 176; TH, K0 = T+22, T+23
    A(f"v_cvt_f32_u32 v{hf}, v3")
    A(f"v_cvt_f32_u32 v{pf}, v2")
    A(f"v_cvt_f32_u32 v{af}, s23")
    A(f"v_mov_b32 v{T}, 1.0")
    A(f"v_mov_b32 v{T+4}, 0")
    def f32out(c, s_): return lambda r, p: (c+r, s_+r)
    def bfout(c, s_, n=None):
        def out(r, p):
            dc = T + 14 + 4*((r >> 1) & 1)
            if p is None: return (dc, dc+2)
            A(f"v_cvt_pk_bf16_f32 v{c + r//2}, v{dc}, v{dc+1}")
            A(f"v_cvt_pk_bf16_f32 v{s_ + r//2}, v{dc+2}, v{dc+3}")
            if n is not None: A(f"v_xor_b32 v{n + r//2}, 0x80008000, v{s_ + r//2}")
        return out
    A("v_lshrrev_b32 v4, 2, v1")
    A("s_lshl_b32 s26, s3, 6")
    A("v_add_u32 v4, s26, v4")
    A("v_and_b32 v6, 3, v1")
    A(f"v_mul_u32_u24 v8, {BLK}, v4")
    A("v_lshl_add_u32 v8, v6, 4, v8")
    A("s_lshl_b32 s26, s20, 6")
    A("v_add_u32 v8, s26, v8")
    A("v_bfe_u32 v7, v4, 1, 2")
    A("v_xor_b32 v7, v7, v6")
    A("v_lshlrev_b32 v9, 6, v4")
    A("v_lshl_add_u32 v9, v7, 4, v9")
    A(f"v_add_u32 v9, {B_YST}, v9")
    A("s_lshl_b32 s26, s23, 5")
    A("v_lshl_add_u32 v11, v3, 6, v2")
    A("v_add_u32 v11, s26, v11")
    A("v_lshlrev_b32 v11, 6, v11")
    A(f"v_add_u32 v11, {B_YST}, v11")
    A("v_bfe_u32 v7, v2, 1, 2")
    A("s_and_b32 s26, s3, 2")
    A("v_xor_b32 v7, s26, v7")
    A("v_xor_b32 v12, 1, v7")
    A("v_lshl_add_u32 v12, v12, 4, v11")
    A("v_lshl_add_u32 v11, v7, 4, v11")
    srd(A, 16, 4, WS_Y1, SZ_Y1N)
    srd(A, 32, 4, WS_WT, SZ_COL)
    YS = [24, 184]; YF = [253, 254]
    def y_loads(k):
        for i in range(4):
            if i: A(f"s_mov_b32 s26, {16*i*BLK}")
            A(f"buffer_load_dwordx4 v[{YS[k]+4*i}:{YS[k]+4*i+3}], v8, s[16:19], {'s26' if i else '0'} offen {LSC}")
        A(f"s_mov_b32 s26, {FW}")
        A(f"buffer_load_dword v{YF[k]}, v252, s[12:15], s26 offen {LSC}")
    def y_test(k):
        fill_test(A, range(YS[k], YS[k]+16), 255)
        if OPT.get("xp") == "nofw": return
        A(f"v_cmp_ne_u32 s[50:51], s{STAG}, v{YF[k]}")
        A("s_or_b64 vcc, vcc, s[50:51]")
    FWP = int(OPT.get("fwp", 0))
    def raise_fw():
        vm.wait(["wts"])
        A("s_barrier")
        flag_store(C, FW, 13, 14)
    if FWP == 0: raise_fw()
    A(f"v_mul_f32 v{TH}, {flit(1/32)}, v{pf}")
    A(f"v_mul_f32 v{K0}, v{TH}, v{hf}")
    A(f"v_mul_f32 v{K0}, 4.0, v{K0}")
    cis_table(C, T, bfout(C32, S32, N32), fill=fill)
    if FWP == 1: raise_fw()
    A(f"v_mul_f32 v6, {flit(8.0)}, v{af}")
    A(f"v_add_f32 v6, v6, v{hf}")
    A(f"v_mul_f32 v6, 4.0, v6")
    A(f"v_mul_f32 v{TH}, {flit(1/2048)}, v{pf}")
    A(f"v_mul_f32 v{K0}, v6, v{TH}")
    cis_table(C, T, f32out(TWc, TWs), fill=fill)
    if FWP == 2: raise_fw()
    YE = int(OPT.get("ye", 1))
    if YE == 2: y_loads(0)
    A(f"v_mul_f32 v7, {flit(32.0)}, v{af}")
    A(f"v_add_f32 v{t5}, v7, v{pf}")
    A(f"v_mul_f32 v{TH}, {flit(1/64)}, v{t5}")
    A(f"v_mul_f32 v{K0}, v6, v{TH}")
    cis_table(C, T, bfout(C64, S64), fill=fill)
    A("v_and_b32 v7, 1, v2")
    A("v_mul_u32_u24 v7, 0x8000, v7")
    A("v_lshl_or_b32 v7, v7, 16, v7")
    for q in range(8):
        A(f"v_xor_b32 v{C64+8+q}, v7, v{C64+q}")
        A(f"v_xor_b32 v{S64+8+q}, v7, v{S64+q}")
    P2 = OPT.get("p2", "0") == "1"
    if FWP == 3: raise_fw()
    if P2 or YE == 1: y_loads(0)
    A("s_cmp_eq_u32 s21, 0")
    A("s_cselect_b32 s26, 1, 0")
    A("s_cmp_eq_u32 s21, 320")
    A("s_cselect_b32 s26, 1, s26")
    A("s_cmp_eq_u32 s26, 1")
    csel(A, "s26", hex(f32bits(1.0/(2048*640))), hex(f32bits(2.0/(2048*640))))
    A(f"v_mul_f32 v{TH}, {flit(1/2048)}, v{t5}")
    A(f"v_mul_f32 v{K0}, v{TH}, v{hf}")
    A(f"v_mul_f32 v{K0}, 4.0, v{K0}")
    cis_table(C, T, f32out(T2c, T2s), scale="s[26:27]", fill=fill)
    fill(len(pend))
    stamp(A, 11)
    def y_use(k):
        for i in range(4):
            A(f"ds_write_b128 v9, v[{YS[k]+4*i}:{YS[k]+4*i+3}] offset:{1024*i}")
    if P2:
        y_loads(1)
        poll2(C, [lambda: y_loads(0), lambda: y_loads(1)], [lambda: y_test(0), lambda: y_test(1)], 5, y_use)
    elif YE:
        Lp = C.lab("yp")
        if not CUM: A("s_mov_b32 s53, 0")
        A("s_waitcnt vmcnt(0)")
        y_test(0)
        A(f"s_cbranch_vccz {Lp}")
        retry_loop(C, lambda: y_loads(0), lambda: y_test(0))
        A(f"{Lp}:")
        vm.q = []
        cnt(A, 1)
        y_use(0)
    else:
        retry_loop(C, lambda: y_loads(1), lambda: y_test(1))
        cnt(A, 1)
        y_use(1)
    if P2: A("s_waitcnt lgkmcnt(0)")
    A("v_lshlrev_b32 v4, 4, v1")
    A("v_add_u32 v4, s24, v4")
    def wt_ld(j):
        A(f"buffer_load_dwordx4 v[{24+4*j}:{27+4*j}], v4, s[32:35], 0 offen offset:{j*1024} {LSC}"); vm.issue("wt")
    assert not pend
    if OPT.get("wtb") == "0":
        for j in range(4): wt_ld(j)
    else:
        pend.extend([lambda j=j: wt_ld(j) for j in range(4)])
    pend.extend(x_ops(C))
    pend.extend(m_ops(C))
    A("s_waitcnt lgkmcnt(0)")
    A("s_barrier")
    stamp(A, 12)
    A("v_mov_b32 v6, v11")
    A("v_mov_b32 v7, v12")
    for t in range(2):
        for ri in range(2):
            d = 8 + 8*ri + 4*t
            A(f"ds_read_b128 v[{d}:{d+3}], v{6+ri} offset:{t*8192}")
    Xr, Xi = 8, 16
    def mf(d, a, b, first, k=0):
        mf32(A, d, a, b, first); fill(k)
    fill(3)
    for t in range(2):
        A(f"s_waitcnt lgkmcnt({2-2*t})")
        mf(AR, Xr+4*t, C32+4*t, t == 0, 1)
        mf(AI, Xi+4*t, C32+4*t, t == 0, 1)
        mf(AR, Xi+4*t, S32+4*t, False, 1)
        mf(AI, Xr+4*t, N32+4*t, False)
    TA, TB = t0, t2
    def cmul_pack(cr, ci, conj_tw, k=0):
        n1 = "" if not conj_tw else " neg_lo:[1,0,0] neg_hi:[1,0,0]"
        n2 = " neg_lo:[1,0,0] neg_hi:[1,0,0]" if not conj_tw else ""
        for r in range(0, 16, 2):
            A(f"v_pk_mul_f32 {pr(TA)}, {pr(AR+r)}, {pr(cr+r)}")
            A(f"v_pk_mul_f32 {pr(TB)}, {pr(AI+r)}, {pr(cr+r)}")
            A(f"v_pk_fma_f32 {pr(TA)}, {pr(AI+r)}, {pr(ci+r)}, {pr(TA)}{n1}")
            A(f"v_pk_fma_f32 {pr(TB)}, {pr(AR+r)}, {pr(ci+r)}, {pr(TB)}{n2}")
            A(f"v_cvt_pk_bf16_f32 v{Pr+r//2}, v{TA}, v{TA+1}")
            A(f"v_cvt_pk_bf16_f32 v{Pi+r//2}, v{TB}, v{TB+1}")
            fill(k)
    A("s_lshl_b32 s26, s3, 12")
    A(f"s_add_u32 s26, s26, {B_YST}")
    A("s_xor_b32 s27, s26, 0x1000")
    A("v_lshlrev_b32 v6, 4, v1")
    A("v_add_u32 v7, s27, v6")
    A("v_add_u32 v6, s26, v6")
    cmul_pack(TWc, TWs, False, 1)
    def exch(off):
        for g in range(2):
            A(f"ds_write_b128 v6, v[{Pr+4*g}:{Pr+4*g+3}] offset:{off+1024*g}")
            A(f"ds_write_b128 v6, v[{Pi+4*g}:{Pi+4*g+3}] offset:{off+2048+1024*g}")
        A("s_waitcnt lgkmcnt(0)")
        A("s_barrier")
        for g in range(2):
            A(f"ds_read_b128 v[{Or+4*g}:{Or+4*g+3}], v7 offset:{off+1024*g}")
            A(f"ds_read_b128 v[{Oi+4*g}:{Oi+4*g+3}], v7 offset:{off+2048+1024*g}")
    stamp(A, 13)
    vm.wait(["stale"])
    exch(B_EX1 - B_YST)
    for q in range(8): A(f"v_xor_b32 v{Pn+q}, 0x80008000, v{Pr+q}")
    for u in range(2):
        mf(AR, C64+4*u, Pr+4*u, u == 0, 1)
        mf(AI, C64+4*u, Pi+4*u, u == 0)
        mf(AR, S64+4*u, Pi+4*u, False, 1)
        mf(AI, S64+4*u, Pn+4*u, False)
    A("s_waitcnt lgkmcnt(0)")
    for q in range(8): A(f"v_xor_b32 v{On+q}, 0x80008000, v{Or+q}")
    for u in range(2):
        mf(AR, C64+8+4*u, Or+4*u, False)
        mf(AI, C64+8+4*u, Oi+4*u, False)
        mf(AR, S64+8+4*u, Oi+4*u, False)
        mf(AI, S64+8+4*u, On+4*u, False)
    fill(len(pend))
    stamp(A, 14)
    vm.wait(["wt"])
    W0, W1 = 8, 10
    for r in range(0, 16, 2):
        w = 24 + r
        A(f"v_lshlrev_b32 v{W0}, 16, v{w}")
        A(f"v_lshlrev_b32 v{W0+1}, 16, v{w+1}")
        A(f"v_and_b32 v{W1}, 0xffff0000, v{w}")
        A(f"v_and_b32 v{W1+1}, 0xffff0000, v{w+1}")
        A(f"v_pk_mul_f32 {pr(TA)}, {pr(AR+r)}, {pr(W0)}")
        A(f"v_pk_mul_f32 {pr(TB)}, {pr(AI+r)}, {pr(W0)}")
        A(f"v_pk_fma_f32 {pr(TA)}, {pr(AI+r)}, {pr(W1)}, {pr(TA)} neg_lo:[1,0,0] neg_hi:[1,0,0]")
        A(f"v_pk_fma_f32 {pr(TB)}, {pr(AR+r)}, {pr(W1)}, {pr(TB)}")
        A(f"v_cvt_pk_bf16_f32 v{Pr+r//2}, v{TA}, v{TA+1}")
        A(f"v_cvt_pk_bf16_f32 v{Pi+r//2}, v{TB}, v{TB+1}")
    exch(0)
    def ringfill(k): pass
    for q in range(8): A(f"v_xor_b32 v{Pn+q}, 0x80008000, v{Pi+q}")
    def mr(d, a, b, first, k=1):
        mf32(A, d, a, b, first); ringfill(k)
    for u in range(2):
        mr(AR, Pr+4*u, C64+4*u, u == 0)
        mr(AI, Pi+4*u, C64+4*u, u == 0, 0)
        mr(AR, Pn+4*u, S64+4*u, False)
        mr(AI, Pr+4*u, S64+4*u, False, 0)
    A("s_waitcnt lgkmcnt(0)")
    for q in range(8): A(f"v_xor_b32 v{On+q}, 0x80008000, v{Oi+q}")
    for u in range(2):
        mr(AR, Or+4*u, C64+8+4*u, False)
        mr(AI, Oi+4*u, C64+8+4*u, False, 0)
        mr(AR, On+4*u, S64+8+4*u, False)
        mr(AI, Or+4*u, S64+8+4*u, False, 0)
    stamp(A, 15)
    _fill = fill
    def cm2():
        n1 = " neg_lo:[1,0,0] neg_hi:[1,0,0]"
        for r in range(0, 16, 2):
            A(f"v_pk_mul_f32 {pr(TA)}, {pr(AR+r)}, {pr(T2c+r)}")
            A(f"v_pk_mul_f32 {pr(TB)}, {pr(AI+r)}, {pr(T2c+r)}")
            A(f"v_pk_fma_f32 {pr(TA)}, {pr(AI+r)}, {pr(T2s+r)}, {pr(TA)}{n1}")
            A(f"v_pk_fma_f32 {pr(TB)}, {pr(AR+r)}, {pr(T2s+r)}, {pr(TB)}")
            A(f"v_cvt_pk_bf16_f32 v{Pr+r//2}, v{TA}, v{TA+1}")
            A(f"v_cvt_pk_bf16_f32 v{Pi+r//2}, v{TB}, v{TB+1}")
            if r % 4 == 0: ringfill(1)
    cm2()
    for t in range(2):
        mr(AR, C32+4*t, Pr+4*t, t == 0)
        mr(AI, C32+4*t, Pi+4*t, t == 0)
        mr(AR, N32+4*t, Pi+4*t, False)
        mr(AI, S32+4*t, Pr+4*t, False, 0)
    A("v_lshlrev_b32 v4, 5, v2")
    A("v_lshl_add_u32 v4, v3, 4, v4")
    A("v_add_u32 v4, s24, v4")
    vm.wait(["X"])
    for j in range(4):
        for i in range(4):
            r = 4*j+i
            A(f"v_cvt_pk_bf16_f32 v{8+r}, v{AR+r}, v{AI+r}")
        A(f"buffer_store_dwordx4 v[{8+4*j}:{11+4*j}], v4, s[36:39], 0 offen offset:{j*1024} {SC}"); vm.issue("z")
    stamp(A, 16)
    A("s_barrier")
    A(f"s_branch {Ldone}")
    A(f"{Lskip}:")
    vm.q = q_skip
    for f in x_ops(C): f()
    vm.wait(["wts"])
    A("s_barrier")
    flag_store(C, FW, 8, 9)
    repack(C)
    if OPT.get("h2f", "a2") == "r":
        NF = 256 - NB_WG
        A(f"s_sub_u32 s26, s2, {NB_WG}")
        A("s_lshl_b32 s26, s26, 12")
        A("v_lshl_add_u32 v4, v0, 4, s26")
        srd(A, 32, 4, WS_H2P, SZ_H2P)
        for i in range(-(-SZ_H2P // (NF*4096))):
            if i: A(f"s_mov_b32 s26, {i*NF*4096}")
            A(f"buffer_store_dwordx4 a[12:15], v4, s[32:35], {'s26' if i else '0'} offen {SC}"); vm.issue("h2f")
    fw_ld(C); vm.issue("fw")
    vm.wait(["fw"])
    flag_check(C, "fw", 253, lambda: fw_ld(C))
    A("s_barrier")
    flag_store(C, FP, 8, 9)
    for f in m_ops(C): f()
    A(f"{Ldone}:")
    vm.q = []

def w13_ring(C):
    ops = []
    for s_ in range(NS0): ops += w13_ops(C, s_)
    return ops

def fh_offset(C, v, which):
    A = C.A
    A(f"v_min_u32 v{v}, {255 - NB_WG}, v0")
    A(f"v_add_u32 v{v}, {NB_WG + (which >> FSH)}, v{v}")
    A(f"v_lshlrev_b32 v{v}, {FSH}, v{v}")

def d_geometry(C):
    A = C.A
    A("s_and_b32 s40, s48, 1")
    A("s_lshl_b32 s40, s40, 3")
    A("s_and_b32 s41, s49, 7")
    A("s_add_u32 s40, s40, s41")
    A("s_lshr_b32 s41, s48, 1")
    A("s_lshl_b32 s41, s41, 2")
    A("s_lshr_b32 s42, s49, 3")
    A("s_add_u32 s41, s41, s42")
    A("s_mul_i32 s41, s41, 7")
    A("s_lshr_b32 s42, s3, 1")
    A("s_mul_i32 s42, s42, 221184")
    A("s_lshl_b32 s43, s41, 11")
    A("s_add_u32 s42, s42, s43")
    A("s_and_b32 s43, s3, 1")
    A("s_mul_i32 s43, s43, 7168")
    A("s_add_u32 s42, s42, s43")
    if DT:
        A("s_and_b32 s43, s41, 1")
        A("s_lshl_b32 s43, s43, 11")
        A("s_add_u32 s42, s42, s43")
    A("v_lshlrev_b32 v248, 4, v1")
    A("v_add_u32 v248, s42, v248")
    if DT:
        A("s_and_b32 s43, s41, s3")
        A("s_and_b32 s43, s43, 1")
        A("s_mul_i32 s43, s43, 14336")
        A("v_subrev_u32 v255, s43, v248")
    A("s_mul_i32 s42, s3, 7168")

def w13_ops(C, s, SRD=36):
    A = C.A; ops = []
    for i0, n in ((0, 4), (4, 3)):
        def setup(i0=i0):
            A(f"s_add_u32 m0, s42, {ring_buf(s)*SLOT + i0*1024}")
        def setup2(i0=i0):
            A(f"s_mov_b32 s43, {2*s*221184 + i0*1024}")
        ops += [setup, setup2]
        for i in range(n):
            def dma(i=i, i0=i0):
                va = 255 if DT and i0 + i >= 5 else 248
                A(f"buffer_load_dwordx4 v{va}, s[{SRD}:{SRD+3}], s43 offen offset:{i*1024} lds")
                C.vm.issue(("W", s))
            ops.append(dma)
    return ops

def phase_c(C):
    A = C.A; vm = C.vm
    A("s_lshl_b32 s20, s48, 3")
    A("s_and_b32 s21, s49, 7")
    A("s_add_u32 s20, s20, s21")
    A("s_lshr_b32 s21, s49, 3")
    GA, G2, SB = 32, 44, 56
    if "o" in OPT.get("tch", ""):
        srd(A, 36, 8, 0, SZ_X)
        A("v_mul_u32_u24 v4, 40960, v1")
        A("buffer_load_dword v8, v4, s[36:39], 0 offen")
    srd(A, 36, 4, WS_W13, SZ_W13)
    d_geometry(C)
    stamp(A, 17)
    A("s_lshr_b32 s22, s20, 5")
    A("s_lshl_b32 s22, s22, 12")
    A("s_lshl_b32 s23, s21, 10")
    A("s_add_u32 s22, s22, s23")
    A("s_and_b32 s23, s20, 31")
    A("s_lshl_b32 s23, s23, 5")
    A("s_add_u32 s22, s22, s23")
    A("v_and_b32 v4, 1, v1")
    A("v_bfe_u32 v5, v1, 1, 2")
    A("v_lshrrev_b32 v6, 3, v1")
    A("s_lshl_b32 s23, s3, 3")
    A("v_add_u32 v6, s23, v6")
    A("v_lshl_add_u32 v251, v5, 5, v6")
    A("v_lshlrev_b32 v251, 13, v251")
    A("v_lshl_add_u32 v251, v4, 4, v251")
    A("v_add_u32 v251, s22, v251")
    A(f"v_mul_u32_u24 v252, {4*ZP}, v4")
    A("v_mul_u32_u24 v253, 48, v6")
    A("v_add_u32 v252, v252, v253")
    A("v_lshl_add_u32 v252, v5, 2, v252")
    A(f"v_add_u32 v252, {Z_OFF}, v252")
    srd(A, 16, 4, WS_Z, SZ_COL)
    A("s_mov_b32 s24, 0x100000")
    A("s_mov_b32 s25, 0x200000")
    def z_loads():
        for m in range(3):
            A(f"buffer_load_dwordx4 v[{8+4*m}:{11+4*m}], v251, s[16:19], {['0','s24','s25'][m]} offen {LSC}")
        A(f"buffer_load_dword v254, v253, s[12:15], 0 offen {LSC}")
    def z_test():
        fill_test(A, range(8, 20), 4)
        A(f"v_cmp_ne_u32 s[50:51], s{STAG}, v254")
        A("s_or_b64 vcc, vcc, s[50:51]")
    ZE = int(OPT.get("ze", 0))
    if ZE:
        fh_offset(C, 253, FP)
        if ZE == 1: z_loads()
    BR, BI, TC, TS, C32, N32 = 92, 100, 108, 124, 140, 148
    t0, t1, t2, t3, t4 = 244, 245, 246, 247, 243
    pf, hf = 249, 250
    A(f"v_cvt_f32_u32 v{pf}, v2")
    A(f"v_cvt_f32_u32 v{hf}, v3")
    A(f"v_mul_f32 v4, {flit(1/20)}, v{pf}")
    A(f"v_mul_f32 v5, v4, v{hf}")
    A(f"v_mul_f32 v5, 4.0, v5")
    A(f"v_mov_b32 v6, 0")
    for st in range(2):
        for q in range(4):
            A(f"v_fmamk_f32 v{t0}, v4, {fk(8*st+q)}, v{5 if st == 0 else 6}")
            A(f"v_cos_f32 v{t1}, v{t0}")
            A(f"v_sin_f32 v{t2}, v{t0}")
            A(f"v_sub_f32 v{t3}, 0, v{t2}")
            A(f"v_cvt_pk_bf16_f32 v{BR+4*st+q}, v{t1}, v{t3}")
            A(f"v_cvt_pk_bf16_f32 v{BI+4*st+q}, v{t2}, v{t1}")
    A("v_cmp_eq_u32 vcc, 0, v3")
    for q in range(4):
        A(f"v_cndmask_b32 v{BR+4+q}, 0, v{BR+4+q}, vcc")
        A(f"v_cndmask_b32 v{BI+4+q}, 0, v{BI+4+q}, vcc")
    if ZE == 2: z_loads()
    A(f"v_mul_f32 v4, {flit(1/640)}, v{pf}")
    A(f"v_mul_f32 v5, v4, v{hf}")
    A(f"v_mul_f32 v5, 4.0, v5")
    for r in range(16):
        A(f"v_fmamk_f32 v{t0}, v4, {fk(8*(r//4)+r%4)}, v5")
        A(f"v_cos_f32 v{TC+r}, v{t0}")
        A(f"v_sin_f32 v{TS+r}, v{t0}")
    if ZE == 3: z_loads()
    A(f"v_mul_f32 v4, {flit(1/32)}, v{pf}")
    A(f"v_mul_f32 v5, v4, v{hf}")
    A(f"v_mul_f32 v5, 4.0, v5")
    for t in range(2):
        for p in range(4):
            for z in range(2):
                e = 2*p+z
                A(f"v_fmamk_f32 v{t0}, v4, {fk(16*t+8*(e>>2)+(e&3))}, v5")
                A(f"v_cos_f32 v{t1+z}, v{t0}")
                A(f"v_sin_f32 v{(t3, t4)[z]}, -v{t0}")
            A(f"v_cvt_pk_bf16_f32 v{C32+4*t+p}, v{t1}, v{t2}")
            A(f"v_cvt_pk_bf16_f32 v{N32+4*t+p}, v{t3}, v{t4}")
    XF = 68
    for q in range(12): A(f"v_accvgpr_read_b32 v{20+q}, a{q}")
    for r in range(2):
        for q in range(6):
            A(f"v_lshlrev_b32 v{XF+12*r+2*q}, 16, v{20+6*r+q}")
            A(f"v_and_b32 v{XF+12*r+2*q+1}, 0xffff0000, v{20+6*r+q}")
    A("v_cmp_eq_u32 vcc, 0, v3")
    for r in range(2):
        for k in range(8, 12): A(f"v_cndmask_b32 v{XF+12*r+k}, 0, v{XF+12*r+k}, vcc")
    A("v_mul_u32_u24 v7, 80, v2")
    A("v_lshl_add_u32 v7, v3, 4, v7")
    A(f"v_add_u32 v7, {M_OFF}, v7")
    stamp(A, 18)
    if ZE:
        Lp = C.lab("zp")
        if not CUM: A("s_mov_b32 s53, 0")
        A("s_waitcnt vmcnt(0)")
        z_test()
        A(f"s_cbranch_vccz {Lp}")
        retry_loop(C, z_loads, z_test)
        A(f"{Lp}:")
        vm.q = []
    else:
        fh_offset(C, 253, FP)
        retry_loop(C, z_loads, z_test)
    cnt(A, 2)
    for m in range(3):
        for i in range(4):
            A(f"ds_write_b32 v252, v{8+4*m+i} offset:{i*ZP + 16*m}")
    W2C = int(OPT.get("w2c", 3))
    if W2C:
        e_geometry(C)
        srd(A, 32, 4, WS_W2, SZ_W2P)
        C.w2 = w2_ops(C)
    A(f"s_mul_i32 s26, s3, {2*ZP}")
    A(f"s_add_u32 s26, s26, {Z_OFF}")
    A("v_mul_u32_u24 v4, 48, v2")
    A("v_add_u32 v4, s26, v4")
    A("v_lshl_add_u32 v5, v3, 4, v4")
    A("s_waitcnt lgkmcnt(0)")
    A("s_barrier")
    stamp(A, 19)
    FA_ = [[156, 160], [164, 168]]
    for row in range(2):
        A(f"ds_read_b128 v[{FA_[row][0]}:{FA_[row][0]+3}], v5 offset:{row*ZP}")
        A(f"ds_read_b128 v[{FA_[row][1]}:{FA_[row][1]+3}], v4 offset:{row*ZP+32}")
    for base, sec in ((GA, 0), (G2, 2), (SB, 1)):
        for q in range(3):
            A(f"ds_read_b128 v[{base+4*q}:{base+4*q+3}], v7 offset:{sec*2560 + 32*q}")
    ring = w13_ring(C)
    if W2C:
        extra = [C.w2.pop(0) for _ in range(6*W2C)]
        mode = OPT.get("w2m", "a")
        if mode == "a": ring = ring + extra
        else: ring = extra + ring
    SPREAD = W2C and OPT.get("w2s", "1") == "1"
    RATE = float(OPT.get("w2r", (28 + 5*W2C)/26)) if W2C and not SPREAD else 1
    credit = [0.0]
    def rs(k=1):
        if SPREAD: rf(k)
    def rf(k=1):
        n = 0
        credit[0] += k*RATE
        k = int(credit[0] + 1e-9); credit[0] -= k
        while ring and n < k:
            q0 = len(vm.q); ring.pop(0)()
            if len(vm.q) > q0: n += 1
    U = [[172, 188], [204, 220]]
    rf(2)
    for st in range(2):
        for row in range(2):
            if st == 0: A(f"s_waitcnt lgkmcnt({9 + (2 if row == 0 else 0)})")
            mf32(A, U[row][0], FA_[row][st], BR+4*st, st == 0)
            rf()
            mf32(A, U[row][1], FA_[row][st], BI+4*st, st == 0)
    A("v_cmp_eq_u32 vcc, 0, v3")
    P = [[156, 164], [8, 236]]
    TA, TB = 20, 22
    for row in range(2):
        ur, ui = U[row]; pr_, pi_ = P[row]
        for r in range(0, 16, 2):
            A(f"v_pk_mul_f32 {pr(TA)}, {pr(ur+r)}, {pr(TC+r)}")
            A(f"v_pk_mul_f32 {pr(TB)}, {pr(ui+r)}, {pr(TC+r)}")
            A(f"v_pk_fma_f32 {pr(TA)}, {pr(ui+r)}, {pr(TS+r)}, {pr(TA)} neg_lo:[1,0,0] neg_hi:[1,0,0]")
            A(f"v_pk_fma_f32 {pr(TB)}, {pr(ur+r)}, {pr(TS+r)}, {pr(TB)}")
            A(f"v_cvt_pk_bf16_f32 v{pr_+r//2}, v{TA}, v{TA+1}")
            A(f"v_cvt_pk_bf16_f32 v{pi_+r//2}, v{TB}, v{TB+1}")
            if r % 4 == 0: rf()
            else: rs()
    Y = [172, 204]
    for t in range(2):
        for row in range(2):
            mf32(A, Y[row], P[row][0]+4*t, C32+4*t, t == 0)
            rf()
        for row in range(2):
            mf32(A, Y[row], P[row][1]+4*t, N32+4*t, False)
    A("s_waitcnt lgkmcnt(0)")
    for k in range(8, 12): A(f"v_cndmask_b32 v{GA+k}, 0, v{GA+k}, vcc")
    for row in range(2):
        for k in range(0, 12, 2):
            A(f"v_pk_fma_f32 {pr(XF+12*row+k)}, {pr(GA+k)}, {pr(Y[row]+k)}, {pr(XF+12*row+k)}")
    X2P = 20
    for row in range(2):
        for k in range(6):
            A(f"v_cvt_pk_bf16_f32 v{X2P+6*row+k}, v{XF+12*row+2*k}, v{XF+12*row+2*k+1}")
    A(f"s_mul_i32 s26, s3, {2*STP}")
    A(f"s_add_u32 s26, s26, {ST_OFF}")
    A("v_mul_u32_u24 v4, 40, v2")
    A("v_lshl_add_u32 v4, v3, 3, v4")
    A("v_add_u32 v4, s26, v4")
    A("v_lshlrev_b32 v7, 3, v1")
    A(f"v_add_u32 v7, {SCRAP}, v7")
    A("v_add_u32 v6, 32, v4")
    A("v_cndmask_b32 v5, v7, v6, vcc")
    for row in range(2):
        for q in range(2):
            A(f"ds_write_b64 v4, {pr(X2P+6*row+2*q)} offset:{row*STP + 16*q}")
    A(f"v_add_u32 v6, {STP}, v6")
    A("v_cndmask_b32 v6, v7, v6, vcc")
    A(f"ds_write_b64 v5, {pr(X2P+4)}")
    A(f"ds_write_b64 v6, {pr(X2P+10)}")
    for r in range(2):
        for q in range(6):
            A(f"v_lshlrev_b32 v{XF+12*r+2*q}, 16, v{X2P+6*r+q}") if OPT.get("rx2") else None
            A(f"v_and_b32 v{XF+12*r+2*q+1}, 0xffff0000, v{X2P+6*r+q}") if OPT.get("rx2") else None
    S0, S1, T0, T1 = 32, 34, 36, 38
    def red64(a, b):
        ta, tb = T0, T1
        for ctl in ["quad_perm:[1,0,3,2]", "quad_perm:[2,3,0,1]", "row_ror:4", "row_ror:8"]:
            A(f"v_add_f32_dpp v{a}, v{a}, v{a} {ctl} row_mask:0xf bank_mask:0xf")
            A(f"v_add_f32_dpp v{b}, v{b}, v{b} {ctl} row_mask:0xf bank_mask:0xf")
        for sw in ("v_permlane16_swap_b32", "v_permlane32_swap_b32"):
            A(f"v_mov_b32 v{ta}, v{a}")
            A(f"v_mov_b32 v{tb}, v{b}")
            A(f"{sw} v{a}, v{ta}")
            A(f"{sw} v{b}, v{tb}")
            A(f"v_add_f32 v{a}, v{a}, v{ta}")
            A(f"v_add_f32 v{b}, v{b}, v{tb}")
    S = [S0, S1]
    for k in range(0, 12, 2):
        for row in range(2):
            x = XF+12*row+k
            if k == 0: continue
            if k == 2: A(f"v_pk_add_f32 {pr(S[row])}, {pr(x-2)}, {pr(x)}")
            else: A(f"v_pk_add_f32 {pr(S[row])}, {pr(S[row])}, {pr(x)}")
    for row in range(2): A(f"v_add_f32 v{S[row]}, v{S[row]}, v{S[row]+1}")
    rf(2)
    red64(S0, S1)
    rf(2)
    for row in range(2):
        A(f"v_mul_f32 v{S[row]}, {flit(1/640)}, v{S[row]}")
        A(f"v_cndmask_b32 v{S[row]+1}, 0, v{S[row]}, vcc")
    for k in range(0, 12, 2):
        for row in range(2):
            x = XF+12*row+k
            sel = "op_sel_hi:[1,0]" if k < 8 else "op_sel:[0,1] op_sel_hi:[1,1]"
            A(f"v_pk_add_f32 {pr(x)}, {pr(x)}, {pr(S[row])} {sel} neg_lo:[0,1] neg_hi:[0,1]")
        if k % 4 == 2: rs()
    V = [40, 42]
    for k in range(0, 12, 2):
        for row in range(2):
            x = XF+12*row+k
            if k == 0: A(f"v_pk_mul_f32 {pr(V[row])}, {pr(x)}, {pr(x)}")
            else: A(f"v_pk_fma_f32 {pr(V[row])}, {pr(x)}, {pr(x)}, {pr(V[row])}")
        if k % 4 == 2: rs()
    for row in range(2): A(f"v_add_f32 v{V[row]}, v{V[row]}, v{V[row]+1}")
    rf(2)
    red64(V[0], V[1])
    rf(2 if SPREAD else 99)
    for row in range(2):
        A(f"v_mov_b32 v{S[row]}, {flit(1e-5)}")
        A(f"v_fmac_f32 v{S[row]}, {flit(1/640)}, v{V[row]}")
    for row in range(2): A(f"v_rsq_f32 v{S[row]}, v{S[row]}")
    for k in range(0, 12, 2):
        for row in range(2):
            x = XF+12*row+k
            A(f"v_pk_mul_f32 {pr(x)}, {pr(x)}, {pr(S[row])} op_sel_hi:[1,0]")
        for row in range(2):
            x = XF+12*row+k
            A(f"v_pk_fma_f32 {pr(x)}, {pr(x)}, {pr(G2+k)}, {pr(SB+k)}")
        rs()
    H2P_ = 8
    for row in range(2):
        for k in range(6):
            A(f"v_cvt_pk_bf16_f32 v{H2P_+6*row+k}, v{XF+12*row+2*k}, v{XF+12*row+2*k+1}")
        rs()
    rf(99)
    HO = ST_H - ST_OFF
    for row in range(2):
        for q in range(2):
            A(f"ds_write_b64 v4, {pr(H2P_+6*row+2*q)} offset:{HO + row*STP + 16*q}")
    A(f"v_subrev_u32 v7, {HO}, v7")
    A(f"v_add_u32 v36, 32, v4")
    A(f"v_cndmask_b32 v37, v7, v36, vcc")
    A(f"v_add_u32 v36, {STP}, v36")
    A(f"v_cndmask_b32 v36, v7, v36, vcc")
    A(f"ds_write_b64 v37, {pr(H2P_+4)} offset:{HO}")
    A(f"ds_write_b64 v36, {pr(H2P_+10)} offset:{HO}")
    A("v_and_b32 v4, 7, v0")
    A("v_lshrrev_b32 v5, 3, v0")
    A(f"v_mul_u32_u24 v6, {STP}, v4")
    A("v_lshl_add_u32 v6, v5, 4, v6")
    A(f"v_add_u32 v6, {ST_H}, v6")
    A("s_lshl_b32 s26, s48, 4")
    A("s_lshr_b32 s27, s49, 1")
    A("s_add_u32 s26, s26, s27")
    A("s_mul_i32 s26, s26, 20480")
    A("s_and_b32 s27, s49, 1")
    A("s_lshl_b32 s27, s27, 7")
    A("s_add_u32 s26, s26, s27")
    A("v_lshlrev_b32 v5, 8, v5")
    A("v_lshl_add_u32 v5, v4, 4, v5")
    A("v_add_u32 v5, s26, v5")
    A("v_lshrrev_b32 v4, 5, v0")
    A(f"v_mul_u32_u24 v7, {STP}, v4")
    A("v_lshl_add_u32 v7, v2, 4, v7")
    A(f"v_add_u32 v7, {ST_OFF}, v7")
    A("s_lshl_b32 s26, s21, 9")
    A("s_add_u32 s26, s26, s20")
    A("s_mul_i32 s26, s26, 1280")
    A("v_mul_u32_u24 v4, 81920, v4")
    A("v_lshl_add_u32 v4, v2, 4, v4")
    A("v_add_u32 v252, s26, v4")
    A(f"v_add_u32 v253, {hex(OOB)}, v252")
    A("v_cmp_gt_u32 vcc, 16, v2")
    A("v_cndmask_b32 v253, v253, v252, vcc")
    A(f"v_add_u32 v37, {hex(OOB)}, v5")
    A("s_cmp_lt_u32 s3, 2")
    A("s_cselect_b64 vcc, -1, 0")
    A("v_cndmask_b32 v37, v37, v5, vcc")
    srd(A, 16, 4, WS_H2P, SZ_H2P)
    srd(A, 28, 4, WS_X2, SZ_X)
    A("s_waitcnt lgkmcnt(0)")
    A("s_barrier")
    for i in range(3):
        A(f"ds_read_b128 v[{8+4*i}:{11+4*i}], v6 offset:{512*i}")
    for i in range(3):
        dst = f"a[{X2A+4*i}:{X2A+4*i+3}]" if xlate() else f"v[{216+4*i}:{219+4*i}]"
        A(f"ds_read_b128 {dst}, v7 offset:{512*i}")
    A("s_movk_i32 s26, 8192")
    A("s_movk_i32 s27, 16384")
    for i in range(3):
        A(f"s_waitcnt lgkmcnt({5-i})")
        A(f"buffer_store_dwordx4 v[{8+4*i}:{11+4*i}], v{37 if i == 2 else 5}, s[16:19], {['0','s26','s27'][i]} offen {SC}"); vm.issue("st")
    stamp(A, 20)

D_LA = 6
RA = 8
RB = 10
def e_geometry(C):
    A = C.A
    A("s_lshr_b32 s44, s48, 1")
    A("s_lshl_b32 s44, s44, 3")
    A("s_and_b32 s45, s49, 7")
    A("s_add_u32 s44, s44, s45")
    A("s_and_b32 s45, s48, 1")
    A("s_lshl_b32 s45, s45, 2")
    A("s_lshr_b32 s46, s49, 3")
    A("s_add_u32 s45, s45, s46")
    A("s_mul_i32 s46, s3, 14")
    A("s_mul_i32 s47, s46, 40960")
    A("s_mul_i32 s51, s45, 5120")
    A("s_add_u32 s47, s47, s51")
    A("v_lshlrev_b32 v246, 4, v1")
    A("v_add_u32 v246, s47, v246")
    A("v_add_u32 v247, 4096, v246")

NST = 14
def xlate(): return OPT.get("xl", "1") == "1" and OPT.get("dp", "1") == "1"
X2A = 240
def wfrag(st, p):
    k = st*5 + p
    if k < 64: return ("a", 4*k)
    return ("v", 152 + 4*(k-64))
def w2_ops(C, SRD=32):
    A = C.A; ops = []
    for st in range(NST):
        def setup(st=st):
            A(f"s_mov_b32 s51, {st*40960}")
        ops.append(setup)
        for p in range(5):
            def ld(st=st, p=p):
                k, r = wfrag(st, p)
                if p < 4: A(f"buffer_load_dwordx4 {k}[{r}:{r+3}], v246, s[{SRD}:{SRD+3}], s51 offen offset:{1024*p}")
                else: A(f"buffer_load_dwordx4 {k}[{r}:{r+3}], v247, s[{SRD}:{SRD+3}], s51 offen")
                C.vm.issue(("W2", st))
            ld.mem = True
            ops.append(ld)
    return ops

def phase_d(C):
    A = C.A; vm = C.vm
    ACC, AR, BR = 8, 120, 152
    VL, VB = 232, 237
    e_geometry(C)
    srd(A, 32, 4, WS_W2, SZ_W2P)
    w2 = w2_ops(C)
    NPRE = int(OPT.get("w2pre", 36))
    for _ in range(NPRE): w2.pop(0)()
    A("s_lshl_b32 s20, s40, 3")
    A("s_lshl_b32 s21, s3, 1")
    A("s_add_u32 s20, s20, s21")
    A("v_lshlrev_b32 v4, 4, v1")
    A("s_mul_i32 s21, s20, 20480")
    A(f"v_add_u32 v{VB}, s21, v4")
    A(f"v_add_u32 v{VB+1}, 20480, v{VB}")
    for b in range(NS):
        A(f"v_add_u32 v{VL+b}, {b*SLOT}, v4") if b else A(f"v_mov_b32 v{VL}, v4")
    hh_setup(C)
    srd(A, 16, 4, WS_H2P, SZ_H2P)
    srd(A, 24, 4, WS_HH, SZ_HH)
    bstate = {}
    BACC = 239
    def b_regs(t): return range(BR + (t % RB)*8, BR + (t % RB)*8 + 8)
    def b_ops(t):
        ops = []
        if t % 4 == 0:
            ops.append(lambda t=t: A(f"s_movk_i32 s22, {t*1024}"))
        for rt in range(2):
            def f(t=t, rt=rt):
                if t >= RB: assert bstate.get(t-RB), ("B ring WAR", t)
                r = BR + (t % RB)*8 + 4*rt
                A(f"buffer_load_dwordx4 v[{r}:{r+3}], v{VB+rt}, s[16:19], s22 offen offset:{(t%4)*1024} {LSC}")
                vm.issue(("B", t))
            ops.append(f)
        return ops
    def b_reload(ts):
        def f():
            for t in ts:
                A(f"s_movk_i32 s54, {t*1024}")
                for rt in range(2):
                    r = BR + (t % RB)*8 + 4*rt
                    A(f"buffer_load_dwordx4 v[{r}:{r+3}], v{VB+rt}, s[16:19], s54 offen {LSC}")
        return f
    NB0 = 8
    NPOLL = 3
    def b_loads():
        b_reload(range(NPOLL))()
    def b_test():
        fill_test(A, [r for t in range(NPOLL) for r in b_regs(t)], BACC)
    SPEC = OPT.get("dspec", "1") == "1"
    if SPEC:
        retry_loop(C, b_loads, b_test, spec=b_reload(range(NPOLL, NB0)), tags=[("B", t) for t in range(NPOLL, NB0) for _ in range(2)])
    else:
        retry_loop(C, b_loads, b_test)
    cnt(A, 3)
    A("s_waitcnt lgkmcnt(0)")
    if NS == 4 and OPT.get("dbar", "1") == "1" or NS == 5 or True:
        A("s_barrier")
    stamp(A, 21)
    A("s_movk_i32 s22, 0")
    if not SPEC:
        for t in range(NPOLL, NB0):
            for f in b_ops(t): f()
    else:
        A(f"s_movk_i32 s22, {((NB0 - 1)//4)*4096}")
    XLATE = xlate()
    def x2_store(i):
        src = f"a[{X2A+4*i}:{X2A+4*i+3}]" if XLATE else f"v[{216+4*i}:{219+4*i}]"
        A(f"buffer_store_dwordx4 {src}, v{253 if i == 2 else 252}, s[28:31], 0 offen offset:{512*i} {SC}"); vm.issue("st")
    x2o = []
    for i in range(3):
        f = lambda i=i: x2_store(i)
        x2o.append(f)
    def mk(f):
        def g(): f()
        g.mem = True
        return g
    x2o = [mk(f) for f in x2o]
    if not XLATE:
        for f in x2o: f()
        x2o = []
    NF = 280; NSL = 10
    pending = []
    hhf = hhfill_ops(C)
    def lds_read(n):
        t, i = divmod(n, 14)
        s_ = t >> 1
        r = AR + (n % RA)*4
        A(f"ds_read_b128 v[{r}:{r+3}], v{VL + s_ % NS} offset:{((t & 1)*14 + i)*1024}")
    left = 77 - NPRE
    if OPT.get("dp", "1") == "0":
        W2_SCHED = {}
        for s_, cap in ((5, 5), (6, 5), (7, 5), (8, 13), (9, 13)):
            k = min(cap, left); W2_SCHED[s_] = k; left -= k
        def enter_slot(s_):
            if s_ >= NS: vm.wait([("W", s_)])
            A("s_barrier")
            if s_ >= 2 and s_ + NS - 2 < NSL:
                pending.extend(w13_ops(C, s_ + NS - 2))
            for _ in range(W2_SCHED.get(s_, 0)): pending.append(w2.pop(0))
            if s_ in (2, 3):
                for _ in range(5 if s_ == 2 else 4): pending.append(hhf.pop(0))
            if s_ == 7: flag_store(C, FX, 4, 5)
        def filler(k=1):
            for _ in range(k):
                if pending: pending.pop(0)()
        for t in range(NB0, RB): pending.extend(b_ops(t))
        for n in range(D_LA): lds_read(n)
        A(f"s_waitcnt lgkmcnt({D_LA-1})")
        for n in range(NF):
            t, i = divmod(n, 14)
            if i == 0 and NPOLL <= t + 1 < 20:
                vm.wait([("B", t+1)])
                pending[0:0] = check_ops(C, b_reload([t+1]), b_regs(t+1), BACC)
            a = AR + (n % RA)*4
            def mm(rt):
                c = ACC + (i*2 + rt)*4
                b = BR + (t % RB)*8 + 4*rt
                src = "0" if t == 0 else f"v[{c}:{c+3}]"
                A(f"v_mfma_f32_16x16x32_bf16 v[{c}:{c+3}], v[{a}:{a+3}], v[{b}:{b+3}], {src}")
            mm(0)
            nn = n + D_LA
            if nn < NF:
                if nn % 28 == 0: enter_slot(nn // 28)
                lds_read(nn)
            filler(1)
            mm(1)
            if i == 13:
                bstate[t] = True
                if t + RB < 20: pending.extend(b_ops(t + RB))
            if n + 1 < NF:
                rem = min(NF - 1 - (n+1), D_LA - 1)
                A(f"s_waitcnt lgkmcnt({rem})")
            filler(1)
    else:
        PER = int(OPT.get("dper", 2))
        sched = OPT.get("dsch", "G")
        vq = []
        def take(lst, k):
            out = []
            while lst and k > 0:
                f = lst.pop(0); out.append(f)
                if getattr(f, "mem", False): k -= 1
            return out
        w2a = [w2.pop(0) for _ in range(left)]
        SCH = {"B":  [(0, 4, 3), (0, 4, 0), (0, 0, 0), (0, 0, 0), (0, 0, 0), (3, 0, 0), (5, 0, 0), (5, 0, 0), (12, 0, 0), (12, 0, 0)],
               "C":  [(0, 0, 0), (0, 0, 0), (0, 0, 3), (0, 3, 0), (0, 3, 0), (0, 2, 0), (5, 0, 0), (5, 0, 0), (12, 0, 0), (12, 0, 0)],
               "D":  [(0, 0, 0), (0, 3, 3), (0, 2, 0), (0, 3, 0), (0, 0, 0), (3, 0, 0), (5, 0, 0), (5, 0, 0), (12, 0, 0), (12, 0, 0)],
               "E":  [(0, 0, 0), (0, 0, 0), (0, 0, 0), (0, 2, 1), (0, 2, 1), (0, 2, 1), (4, 2, 0), (6, 0, 0), (12, 0, 0), (12, 0, 0)],
               "F":  [(0, 0, 0), (4, 0, 0), (0, 0, 0), (0, 2, 1), (0, 2, 1), (0, 2, 1), (4, 2, 0), (6, 0, 0), (10, 0, 0), (10, 0, 0)],
               "G":  [(0, 2, 0), (0, 2, 0), (0, 1, 0), (0, 2, 0), (0, 1, 0), (0, 0, 2), (3, 0, 1), (5, 0, 0), (13, 0, 0), (13, 0, 0)],
               "H":  [(0, 1, 0), (0, 2, 0), (0, 1, 0), (0, 2, 0), (0, 1, 0), (0, 1, 1), (2, 0, 2), (6, 0, 0), (13, 0, 0), (13, 0, 0)],
               "I":  [(0, 2, 0), (0, 2, 0), (0, 2, 0), (0, 2, 0), (0, 0, 2), (3, 0, 1), (5, 0, 0), (5, 0, 0), (12, 0, 0), (12, 0, 0)],
               "J":  [(0, 0, 3), (0, 2, 0), (0, 2, 0), (0, 2, 0), (0, 2, 0), (3, 0, 0), (5, 0, 0), (5, 0, 0), (12, 0, 0), (12, 0, 0)],
               }[sched]
        FXS = int(OPT.get("fxs", {"B": 7, "C": 8, "D": 7, "E": 9, "F": 9, "G": 9, "H": 9, "I": 8, "J": 8}[sched]))
        def slot_ops(s_):
            ops = []
            if NS == 5 and s_ == 0: ops += w13_ops(C, 4)
            if s_ >= 2 and s_ + NS - 2 < NSL: ops += w13_ops(C, s_ + NS - 2)
            k2, kf, kx = SCH[s_]
            ops += take(x2o, kx)
            ops += take(hhf, kf)
            ops += take(w2a, k2)
            return ops
        def enter_slot(s_):
            if s_ >= NS0:
                assert vm.all.count(("W", s_)) == 7, ("ring slot not issued", s_)
                vm.wait([("W", s_)])
            if s_ == FXS:
                assert not hhf and not x2o, "fills pending"
                assert vm.all.count("HF") == 8
                vm.wait(["HF", "st"])
            A("s_barrier")
            if OPT.get("est") == "2": A(f"s_memtime s[{56+2*s_}:{57+2*s_}]")
            vq.extend(slot_ops(s_))
            if s_ == FXS:
                flag_store(C, FX, 4, 5)
        def vpop():
            q0 = vm.n_issued
            while vq and vm.n_issued == q0: vq.pop(0)()
        def filler():
            if pending: pending.pop(0)()
        for t in range(NB0, RB): vq.extend(b_ops(t))
        vq.extend(slot_ops(0))
        if OPT.get("est") == "2": A(f"s_memtime s[56:57]")
        for n in range(D_LA): lds_read(n)
        A(f"s_waitcnt lgkmcnt({D_LA-1})")
        for n in range(NF):
            t, i = divmod(n, 14)
            if i == 0 and NPOLL <= t + 1 < 20:
                assert vm.all.count(("B", t+1)) == 2, t
                vm.wait([("B", t+1)])
                pending[0:0] = check_ops(C, b_reload([t+1]), b_regs(t+1), BACC)
            a = AR + (n % RA)*4
            def mm(rt):
                c = ACC + (i*2 + rt)*4
                b = BR + (t % RB)*8 + 4*rt
                src = "0" if t == 0 else f"v[{c}:{c+3}]"
                A(f"v_mfma_f32_16x16x32_bf16 v[{c}:{c+3}], v[{a}:{a+3}], v[{b}:{b+3}], {src}")
            mm(0)
            nn = n + D_LA
            if nn < NF:
                if nn % 28 == 0: enter_slot(nn // 28)
                lds_read(nn)
            filler()
            mm(1)
            if i == 13:
                assert not pending
                bstate[t] = True
                if t + RB < 20: vq[0:0] = b_ops(t + RB)
            if n + 1 < NF:
                rem = min(NF - 1 - (n+1), D_LA - 1)
                A(f"s_waitcnt lgkmcnt({rem})")
            if n % PER == PER - 1 and vq: vpop()
            else: filler()
        pending = pending + vq + w2a
    stamp(A, 22)
    rest = pending + w2
    A("s_mul_i32 s21, s20, 55296")
    A("v_lshlrev_b32 v4, 4, v1")
    A(f"v_add_u32 v{VB}, s21, v4")
    A(f"v_add_u32 v{VB+1}, 55296, v{VB}")
    A("s_lshr_b32 s22, s41, 1")
    A("s_lshl_b32 s22, s22, 10")
    for f in rest: f()
    A("s_lshr_b32 s21, s44, 1")
    A("s_lshr_b32 s50, s21, 3")
    A("s_and_b32 s21, s21, 7")
    A("s_lshl_b32 s21, s21, 3")
    A("s_add_u32 s21, s21, s50")
    A("v_and_b32 v252, 3, v1")
    A("v_lshlrev_b32 v252, 6, v252")
    A("v_bfe_u32 v253, v1, 2, 2")
    A("v_lshl_add_u32 v252, v253, 1, v252")
    A("v_add_u32 v252, s21, v252")
    A("s_and_b32 s21, s44, 3")
    A("s_lshl_b32 s21, s21, 6")
    A("s_lshr_b32 s50, s44, 2")
    A("s_add_u32 s21, s21, s50")
    A("v_and_b32 v253, 7, v1")
    A("v_lshl_add_u32 v253, v253, 3, s21")
    A("v_cmp_gt_u32 vcc, 16, v1")
    A("v_cndmask_b32 v252, v253, v252, vcc")
    A(f"v_add_u32 v252, {FX >> FSH}, v252")
    A(f"v_lshlrev_b32 v252, {FSH}, v252")
    def fx_ld(): A(f"buffer_load_dword v253, v252, s[12:15], 0 offen {LSC}")
    fx_ld(); vm.issue("fx")
    T = 120
    NL = flit(-math.log2(math.e))
    A(f"v_mov_b32 v6, {NL}")
    def swiglu(ft, rt, dst):
        g = ACC + ((2*ft)*2 + rt)*4
        u = ACC + ((2*ft+1)*2 + rt)*4
        t = T + 4*rt
        for r in (0, 2): A(f"v_pk_mul_f32 {pr(t+r)}, {pr(g+r)}, {pr(6)} op_sel_hi:[1,0]")
        for r in range(4): A(f"v_exp_f32 v{t+r}, v{t+r}")
        for r in (0, 2): A(f"v_pk_mul_f32 {pr(g+r)}, {pr(g+r)}, {pr(u+r)}")
        for r in (0, 2): A(f"v_pk_add_f32 {pr(t+r)}, {pr(t+r)}, 1.0 op_sel_hi:[1,0]")
        for r in range(4): A(f"v_rcp_f32 v{t+r}, v{t+r}")
        for r in (0, 2): A(f"v_pk_mul_f32 {pr(g+r)}, {pr(g+r)}, {pr(t+r)}")
        A(f"v_cvt_pk_bf16_f32 v{dst}, v{g}, v{g+1}")
        A(f"v_cvt_pk_bf16_f32 v{dst+1}, v{g+2}, v{g+3}")
    Lodd, Ldone = C.lab("d_odd"), C.lab("d_done")
    A("v_lshlrev_b32 v4, 3, v1")
    A(f"v_sub_u32 v4, v{VB}, v4")
    A("v_add_u32 v5, 55296, v4")
    A("s_cmp_eq_u32 s41, 105")
    A(f"s_cselect_b32 s23, {hex(OOB)}, s22")
    A("s_bitcmp1_b32 s41, 0")
    A(f"s_cbranch_scc1 {Lodd}")
    OUTR = 128
    def variant(odd):
        groups = ([(0,)] + [(1,2),(3,4),(5,6)]) if odd else ([(0,1),(2,3),(4,5)] + [(6,)])
        for gi, grp in enumerate(groups):
            for rt in range(2):
                o = OUTR + 4*((2*gi + rt) % 4)
                if len(grp) == 2:
                    swiglu(grp[0], rt, o); swiglu(grp[1], rt, o+2)
                    so = "s23" if (odd and gi >= 2) else "s22"
                    A(f"buffer_store_dwordx4 v[{o}:{o+3}], v{VB+rt}, s[24:27], {so} offen offset:{1024*gi} {SC}")
                else:
                    swiglu(grp[0], rt, o)
                    A(f"buffer_store_dwordx2 v[{o}:{o+1}], v{4+rt}, s[24:27], s22 offen offset:{1024*gi + (512 if odd else 0)} {SC}")
    variant(False)
    A(f"s_branch {Ldone}")
    A(f"{Lodd}:")
    variant(True)
    A(f"{Ldone}:")
    A("s_waitcnt vmcnt(8)")
    Lfx = C.lab("fx")
    A(f"v_cmp_ne_u32 vcc, s{STAG}, v253")
    A(f"s_cbranch_vccnz {Lfx}")
    A(f"{Lfx}_b:")
    def tail():
        A(f"{Lfx}:")
        retry_loop(C, fx_ld, lambda: A(f"v_cmp_ne_u32 vcc, s{STAG}, v253"))
        A(f"s_branch {Lfx}_b")
    C.tail.append(tail)
    vm.q = []
    stamp(A, 23)

def phase_d2(C):
    A = C.A; vm = C.vm
    ACC, AR, BR = 8, 120, 152
    VL, VB = 232, 237
    NPRE = int(OPT.get("w2pre", 36))
    if getattr(C, "w2", None) is not None:
        w2 = C.w2
        for _ in range(NPRE - 6*int(OPT.get("w2c", 3))): w2.pop(0)()
    else:
        e_geometry(C)
        srd(A, 32, 4, WS_W2, SZ_W2P)
        w2 = w2_ops(C)
        for _ in range(NPRE): w2.pop(0)()
    A("s_lshl_b32 s20, s40, 3")
    A("s_lshl_b32 s21, s3, 1")
    A("s_add_u32 s20, s20, s21")
    A("v_lshlrev_b32 v4, 4, v1")
    A("s_mul_i32 s21, s20, 20480")
    A(f"v_add_u32 v{VB}, s21, v4")
    A(f"v_add_u32 v{VB+1}, 20480, v{VB}")
    for b in range(5):
        A(f"v_add_u32 v{VL+b}, {b*SLOT}, v4") if b else A(f"v_mov_b32 v{VL}, v4")
    hh_setup(C)
    srd(A, 16, 4, WS_H2P, SZ_H2P)
    srd(A, 24, 4, WS_HH, SZ_HH)
    bstate = {}
    BACC = 239
    def b_regs(t): return range(BR + (t % RB)*8, BR + (t % RB)*8 + 8)
    def b_ops(t):
        ops = []
        if t % 4 == 0:
            ops.append(lambda t=t: A(f"s_movk_i32 s22, {t*1024}"))
        for rt in range(2):
            def f(t=t, rt=rt):
                if t >= RB: assert bstate.get(t-RB), ("B ring WAR", t)
                r = BR + (t % RB)*8 + 4*rt
                A(f"buffer_load_dwordx4 v[{r}:{r+3}], v{VB+rt}, s[16:19], s22 offen offset:{(t%4)*1024} {LSC}")
                vm.issue(("B", t))
            ops.append(f)
        return ops
    def b_reload(ts):
        def f():
            for t in ts:
                A(f"s_movk_i32 s54, {t*1024}")
                for rt in range(2):
                    r = BR + (t % RB)*8 + 4*rt
                    A(f"buffer_load_dwordx4 v[{r}:{r+3}], v{VB+rt}, s[16:19], s54 offen {LSC}")
        return f
    NB0 = 8
    NPOLL = 3
    if OPT.get("dwait") == "1": A("s_waitcnt vmcnt(0)")
    retry_loop(C, b_reload(range(NPOLL)), lambda: fill_test(A, [r for t in range(NPOLL) for r in b_regs(t)], BACC),
               spec=b_reload(range(NPOLL, NB0)), tags=[("B", t) for t in range(NPOLL, NB0) for _ in range(2)])
    cnt(A, 3)
    A("s_waitcnt lgkmcnt(0)")
    A("s_barrier")
    stamp(A, 21)
    def mk(f):
        f.mem = True
        return f
    x2o = []
    for i in range(3):
        def x2_store(i=i):
            A(f"buffer_store_dwordx4 a[{X2A+4*i}:{X2A+4*i+3}], v{253 if i == 2 else 252}, s[28:31], 0 offen offset:{512*i} {SC}"); vm.issue("st")
        x2o.append(mk(x2_store))
    NF = 280; NT = 224
    def nt(n):
        if n < NT: return divmod(n, 14)
        k, r = divmod(n - NT, 8)
        return 16 + r//2, 2*k + (r & 1)
    pending = []
    hhf = hhfill_ops(C)
    def lds_read(n):
        t, i = nt(n)
        r = AR + (n % RA)*4
        A(f"ds_read_b128 v[{r}:{r+3}], v{VL + ring_buf(t >> 1)} offset:{((t & 1)*14 + i)*1024}")
    PER = int(OPT.get("dper", 2))
    vq = []
    def take(lst, k):
        out = []
        while lst and k > 0:
            f = lst.pop(0); out.append(f)
            if getattr(f, "mem", False): k -= 1
        return out
    SCH = {"A": [(0, 2, 0), (0, 2, 0), (0, 1, 0), (0, 2, 0), (0, 1, 1), (3, 0, 2), (7, 0, 0), (14, 0, 0), (14, 0, 0)],
           "B": [(0, 2, 0), (0, 1, 0), (0, 1, 0), (0, 2, 0), (0, 2, 0), (0, 0, 3), (7, 0, 0), (14, 0, 0), (14, 0, 0)],
           "C": [(0, 3, 0), (0, 0, 0), (0, 2, 0), (0, 2, 0), (0, 1, 1), (2, 0, 2), (7, 0, 0), (14, 0, 0), (10, 0, 0)],
           }[OPT.get("dsch2", "B")]
    S9 = int(OPT.get("s9", 1))
    def slot_ops(s_):
        ops = []
        if s_ == S9: ops += w13_ops(C, 9)
        if 2 <= s_ <= 6: ops += w13_ops(C, s_ + 2)
        k2, kf, kx = SCH[s_]
        ops += take(x2o, kx)
        ops += take(hhf, kf)
        if s_ < 7: assert NPRE//6*5 + NPRE % 6 + sum(q[0] for q in SCH[:s_+1]) <= 60
        ops += take(w2, k2)
        if OPT.get("xq") == "now2" and s_ >= 6: w2.clear()
        return ops
    def enter_slot(s_):
        if s_ >= NS0:
            for z in ((s_,) if s_ < 8 else (8, 9)):
                assert vm.all.count(("W", z)) == 7, ("ring slot not issued", z)
            vm.wait([("W", s_)] if s_ < 8 else [("W", 8), ("W", 9)])
        if s_ == 8:
            assert not hhf and not x2o, "fills pending"
            assert vm.all.count("HF") == 8
            vm.wait(["HF", "st"])
        A("s_barrier")
        if OPT.get("est") == "2": A(f"s_memtime s[{56+2*s_}:{57+2*s_}]")
        vq.extend(slot_ops(s_))
        if s_ == 8: flag_store(C, FX, 4, 5)
    def vpop():
        q0 = vm.n_issued
        while vq and vm.n_issued == q0: vq.pop(0)()
    T, OUTR = 176, 184
    fin = []
    def emit(x): fin.append(lambda x=x: A(x))
    def fin_setup():
        emit("s_mul_i32 s21, s20, 55296")
        emit("v_lshlrev_b32 v4, 4, v1")
        emit(f"v_add_u32 v{VB}, s21, v4")
        emit(f"v_add_u32 v{VB+1}, 55296, v{VB}")
        for x in ("s_lshr_b32 s21, s44, 1",
                  "s_lshr_b32 s50, s21, 3",
                  "s_and_b32 s21, s21, 7",
                  "s_lshl_b32 s21, s21, 3",
                  "s_add_u32 s21, s21, s50",
                  "v_and_b32 v252, 3, v1",
                  "v_lshlrev_b32 v252, 6, v252",
                  "v_bfe_u32 v253, v1, 2, 2",
                  "v_lshl_add_u32 v252, v253, 1, v252",
                  "v_add_u32 v252, s21, v252",
                  "s_and_b32 s21, s44, 3",
                  "s_lshl_b32 s21, s21, 6",
                  "s_lshr_b32 s50, s44, 2",
                  "s_add_u32 s21, s21, s50",
                  "v_and_b32 v253, 7, v1",
                  "v_lshl_add_u32 v253, v253, 3, s21",
                  "v_cmp_gt_u32 vcc, 16, v1",
                  "v_cndmask_b32 v252, v253, v252, vcc",
                  f"v_add_u32 v252, {FX >> FSH}, v252",
                  f"v_lshlrev_b32 v252, {FSH}, v252",
                  f"v_mov_b32 v6, {flit(-math.log2(math.e))}",
                  "v_lshlrev_b32 v4, 3, v1",
                  f"v_sub_u32 v4, v{VB}, v4",
                  "v_add_u32 v5, 55296, v4",
                  "s_lshr_b32 s22, s41, 1",
                  "s_lshl_b32 s22, s22, 10",
                  "s_bitcmp1_b32 s41, 0",
                  "s_cselect_b32 s21, 1, 6",
                  "s_cselect_b32 s23, 1024, 0",
                  "s_lshl_b32 s21, s21, 9",
                  "s_add_u32 s21, s21, s22",
                  "s_add_u32 s22, s22, s23",
                  "s_cmp_eq_u32 s41, 105",
                  f"s_cselect_b32 s23, {hex(OOB)}, s22"):
            emit(x)
    def fx_ld(): A(f"buffer_load_dword v253, v252, s[12:15], 0 offen {LSC}")
    def swiglu(ft, rt, dst):
        g = ACC + ((2*ft)*2 + rt)*4
        u = ACC + ((2*ft+1)*2 + rt)*4
        t = T + 4*rt
        if OPT.get("dpk", "0") == "0" and (ft < 6 or OPT.get("dpk6", "1") == "0"):
            for r in range(4): emit(f"v_mul_f32 v{t+r}, v6, v{g+r}")
            for r in range(4): emit(f"v_exp_f32 v{t+r}, v{t+r}")
            for r in range(4): emit(f"v_mul_f32 v{g+r}, v{g+r}, v{u+r}")
            for r in range(4): emit(f"v_add_f32 v{t+r}, 1.0, v{t+r}")
            for r in range(4): emit(f"v_rcp_f32 v{t+r}, v{t+r}")
            for r in range(4): emit(f"v_mul_f32 v{g+r}, v{g+r}, v{t+r}")
            emit(f"v_cvt_pk_bf16_f32 v{dst}, v{g}, v{g+1}")
            emit(f"v_cvt_pk_bf16_f32 v{dst+1}, v{g+2}, v{g+3}")
            return
        for r in (0, 2): emit(f"v_pk_mul_f32 {pr(t+r)}, {pr(g+r)}, {pr(6)} op_sel_hi:[1,0]")
        for r in range(4): emit(f"v_exp_f32 v{t+r}, v{t+r}")
        for r in (0, 2): emit(f"v_pk_mul_f32 {pr(g+r)}, {pr(g+r)}, {pr(u+r)}")
        for r in (0, 2): emit(f"v_pk_add_f32 {pr(t+r)}, {pr(t+r)}, 1.0 op_sel_hi:[1,0]")
        for r in range(4): emit(f"v_rcp_f32 v{t+r}, v{t+r}")
        for r in (0, 2): emit(f"v_pk_mul_f32 {pr(g+r)}, {pr(g+r)}, {pr(t+r)}")
        emit(f"v_cvt_pk_bf16_f32 v{dst}, v{g}, v{g+1}")
        emit(f"v_cvt_pk_bf16_f32 v{dst+1}, v{g+2}, v{g+3}")
    def pair_done(k):
        gi = k // 2
        for rt in range(2):
            o = OUTR + 4*((2*gi + rt) % 4)
            swiglu(k, rt, o + 2*(k & 1))
            if k & 1:
                def st(o=o, rt=rt, gi=gi):
                    if OPT.get("xp") == "hv" and gi < 2: return
                    A(f"buffer_store_dwordx4 v[{o}:{o+3}], v{VB+rt}, s[24:27], {'s23' if gi else 's22'} offen offset:{1024*gi} {SC}"); vm.issue("hh")
                fin.append(st)
            elif k == 6:
                def st(o=o, rt=rt):
                    A(f"buffer_store_dwordx2 v[{o}:{o+1}], v{4+rt}, s[24:27], s21 offen {SC}"); vm.issue("hh")
                fin.append(st)
    FXN = int(OPT.get("fxn", 250))
    def gap(n):
        if pending: pending.pop(0)()
        elif n >= NT:
            for _ in range(int(OPT.get("dfk", 3))):
                if fin: fin.pop(0)()
    for t in range(NB0, RB): vq.extend(b_ops(t))
    vq.extend(slot_ops(0))
    if OPT.get("est") == "2": A(f"s_memtime s[56:57]")
    for n in range(D_LA): lds_read(n)
    A(f"s_waitcnt lgkmcnt({D_LA-1})")
    for n in range(NF):
        t, i = nt(n)
        if n < NT and i == 0:
            for z in [t+1] + ([t+4] if t in (13, 14, 15) else []):
                if NPOLL <= z < 20:
                    assert vm.all.count(("B", z)) == 2, z
                    vm.wait([("B", z)])
                    pending[0:0] = check_ops(C, b_reload([z]), b_regs(z), BACC)
        if n == NT:
            assert not pending
            fin_setup()
        if n == FXN:
            def fxl(): fx_ld(); vm.issue("fx")
            fin.append(fxl)
        a = AR + (n % RA)*4
        def mm(rt):
            c = ACC + (i*2 + rt)*4
            b = BR + (t % RB)*8 + 4*rt
            src = "0" if t == 0 else f"v[{c}:{c+3}]"
            A(f"v_mfma_f32_16x16x32_bf16 v[{c}:{c+3}], v[{a}:{a+3}], v[{b}:{b+3}], {src}")
        mm(0)
        nn = n + D_LA
        if nn < NF:
            if nn % 28 == 0 and nn <= NT: enter_slot(nn // 28)
            lds_read(nn)
        gap(n)
        mm(1)
        if n < NT and i == 13:
            assert not pending
            bstate[t] = True
            if t + RB < 20: vq[0:0] = b_ops(t + RB)
        if n + 1 < NF:
            rem = min(NF - 1 - (n+1), D_LA - 1)
            A(f"s_waitcnt lgkmcnt({rem})")
        if n % PER == PER - 1 and vq: vpop()
        else: gap(n)
        if n >= NT and (n - NT) % 8 == 7: pair_done((n - NT)//8)
    stamp(A, 22)
    for f in vq + w2: f()
    while fin: fin.pop(0)()
    vm.wait(["fx"])
    Lfx = C.lab("fx")
    A(f"v_cmp_ne_u32 vcc, s{STAG}, v253")
    A(f"s_cbranch_vccnz {Lfx}")
    A(f"{Lfx}_b:")
    def tail():
        A(f"{Lfx}:")
        retry_loop(C, fx_ld, lambda: A(f"v_cmp_ne_u32 vcc, s{STAG}, v253"))
        A(f"s_branch {Lfx}_b")
    C.tail.append(tail)
    vm.q = []
    stamp(A, 23)

def phase_e(C):
    A = C.A; vm = C.vm
    ACC = 8
    RING = [88, 104, 120, 136, 176, 192, 208, 224]
    VH = 240
    VH2 = 248
    PROBE = OPT.get("epr", "0") == "1" and OPT.get("eq", "1") == "1"
    C.probes = [236, 237, 238][:int(OPT.get("npb", 3))]
    if PROBE:
        assert DT
        srd(A, 16, 4, WS_HH, SZ_HH)
        PL = int(OPT.get("epl", 4))
        A("v_lshrrev_b32 v7, 4, v1")
        A("s_lshl_b32 s20, s44, 2")
        A("v_add_u32 v7, s20, v7")
        A("v_mul_u32_u24 v7, 55296, v7")
        A("v_bfe_u32 v4, v1, 3, 1")
        A("v_mul_u32_u24 v4, 7168, v4")
        A("v_add_u32 v7, v7, v4")
        A("v_bfe_u32 v4, v1, 2, 1")
        A("v_lshl_add_u32 v7, v4, 9, v7")
        A(f"v_and_b32 v4, {PL - 1}, v1")
        A("v_lshl_add_u32 v7, v4, 7, v7")
        A("s_lshl_b32 s21, s46, 10")
        A("s_add_u32 s21, s21, 3072")
        A("v_add_u32 v7, s21, v7")
        A(f"buffer_load_dword v{C.probes[0]}, v7, s[16:19], 0 offen {LSC}")
    def probe(k):
        if PROBE and k < len(C.probes): A(f"buffer_load_dword v{C.probes[k]}, v7, s[16:19], 0 offen {LSC}")
    A("v_lshlrev_b32 v2, 4, v1")
    A("s_lshl_b32 s20, s44, 2")
    if OPT.get("xp") == "r0": A("s_mov_b32 s20, 0")
    if OPT.get("xp") == "r2": A("s_and_b32 s20, s20, 0x64")
    A("s_lshl_b32 s21, s46, 10")
    ROT = OPT.get("erot", "0") == "1" and OPT.get("eq", "1") == "1"
    if ROT:
        A("s_lshr_b32 s23, s49, 3")
        A("s_add_u32 s23, s23, s3")
        A("s_and_b32 s23, s23, 3")
    else:
        A("s_mov_b32 s23, s3")
    for q in range(4):
        A(f"s_add_u32 s22, s23, {q}")
        A("s_and_b32 s22, s22, 3")
        A("s_add_u32 s22, s22, s20")
        A("s_mul_i32 s22, s22, 55296")
        A("s_add_u32 s22, s22, s21")
        A(f"v_add_u32 v{VH+q}, s22, v2")
        A(f"v_lshl_add_u32 v{VH2+q}, v1, 3, s22")
    A("s_cmp_eq_u32 s3, 3")
    A(f"s_mov_b32 s47, {12*1024}")
    A(f"s_cselect_b32 s47, {hex(OOB)}, s47")
    probe(1)
    if not PROBE: srd(A, 16, 4, WS_HH, SZ_HH)
    srd(A, 24, 4, WS_X2, SZ_X)
    srd(A, 28, 4, WS_MOD, SZ_MOD)
    srd(A, 36, 8, 0, SZ_X)
    A("v_and_b32 v3, 15, v1")
    A("s_lshl_b32 s21, s44, 6")
    A("s_lshl_b32 s22, s23, 4")
    A("s_add_u32 s21, s21, s22")
    A("v_add_u32 v3, s21, v3")
    A("v_lshrrev_b32 v4, 8, v3")
    A("v_bfe_u32 v5, v3, 3, 3")
    A("v_lshl_add_u32 v4, v4, 3, v5")
    A("v_bfe_u32 v5, v3, 6, 2")
    A("v_and_b32 v6, 7, v3")
    A("v_lshl_add_u32 v5, v5, 3, v6")
    A("v_lshl_add_u32 v4, v5, 6, v4")
    A("v_mul_u32_u24 v244, 1280, v4")
    A("v_lshrrev_b32 v5, 4, v1")
    A("s_mul_i32 s21, s45, 160")
    A("v_lshl_add_u32 v244, v5, 3, v244")
    A("v_add_u32 v244, s21, v244")
    A("s_mul_i32 s21, s45, 320")
    A(f"s_add_u32 s21, s21, {5*2560}")
    A("v_lshlrev_b32 v245, 4, v5")
    A("v_add_u32 v245, s21, v245")
    HACC = 252
    probe(2)
    if OPT.get("eq", "1") == "1":
        e_qmajor(C, ACC, VH, VH2, HACC)
    else:
        e_stepmajor(C, ACC, RING, VH, VH2, HACC)
    L = C.lab("ep")
    A("s_or_b32 s50, s2, s3")
    A("s_cmp_lg_u32 s50, 0")
    A(f"s_cbranch_scc1 {L}")
    srd(A, 16, 4, WS_EPOCH, 128)
    A("v_mov_b32 v4, 0")
    A(f"v_mov_b32 v5, s{STAG}")
    A("s_mov_b64 exec, 1")
    A(f"buffer_store_dword v5, v4, s[16:19], 0 offen {SC}")
    A("s_mov_b64 exec, -1")
    A(f"{L}:")

def e_stepmajor(C, ACC, RING, VH, VH2, HACC):
    A = C.A; vm = C.vm
    def h_regs(st): return range(RING[st % 8], RING[st % 8] + 16)
    def h_reload(sts):
        def f():
            for st in sts:
                if st >= 12: A("s_mov_b32 s54, s47"); off = (st - 12)*1024
                else: A(f"s_movk_i32 s54, {st*1024}"); off = 0
                for q in range(4):
                    r = RING[st % 8] + 4*q
                    if st % 7 == 3:
                        for z in range(2):
                            A(f"buffer_load_dwordx2 v[{r+2*z}:{r+2*z+1}], v{VH2+q}, s[16:19], s54 offen offset:{off + 512*z} {LSC}")
                    else:
                        A(f"buffer_load_dwordx4 v[{r}:{r+3}], v{VH+q}, s[16:19], s54 offen offset:{off} {LSC}")
        return f
    def h_ops(st):
        ops = []
        if st % 4 == 0:
            ops.append((lambda st=st: A(f"s_movk_i32 s22, {st*1024}")) if st < 12 else (lambda: A("s_mov_b32 s22, s47")))
        for q in range(4):
            r = RING[st % 8] + 4*q
            if st % 7 == 3:
                for z in range(2):
                    def f(q=q, st=st, r=r, z=z):
                        A(f"buffer_load_dwordx2 v[{r+2*z}:{r+2*z+1}], v{VH2+q}, s[16:19], s22 offen offset:{(st%4)*1024 + 512*z} {LSC}")
                        vm.issue(("H", st))
                    ops.append(f)
            else:
                def f(q=q, st=st, r=r):
                    A(f"buffer_load_dwordx4 v[{r}:{r+3}], v{VH+q}, s[16:19], s22 offen offset:{(st%4)*1024} {LSC}")
                    vm.issue(("H", st))
                ops.append(f)
        return ops
    NPOLL = 3
    def h_loads():
        h_reload(range(NPOLL))()
    def h_test():
        fill_test(A, [r for st in range(NPOLL) for r in h_regs(st)], HACC)
    retry_loop(C, h_loads, h_test)
    cnt(A, 4)
    estamp(A, 0)
    A("s_barrier")
    A("s_movk_i32 s22, 0")
    for st in range(NPOLL, 8):
        for f in h_ops(st): f()
    pending = []
    for st in range(NST):
        if NPOLL <= st + 1 < NST:
            vm.wait([("H", st+1)])
            pending[0:0] = check_ops(C, h_reload([st+1]), h_regs(st+1), HACC)
        k = 0
        for p in range(5):
            for q in range(4):
                c = ACC + (q*5+p)*4
                src = "0" if st == 0 else f"v[{c}:{c+3}]"
                wk, wr = wfrag(st, p)
                h = RING[st % 8] + 4*q
                A(f"v_mfma_f32_16x16x32_bf16 v[{c}:{c+3}], {wk}[{wr}:{wr+3}], v[{h}:{h+3}], {src}")
                k += 1
                if pending: pending.pop(0)()
        while pending: pending.pop(0)()
        if st + 8 < NST: pending.extend(h_ops(st + 8))
        if st == 7:
            def xg():
                for p in range(5):
                    A(f"buffer_load_dwordx2 {pr(208+2*p)}, v244, s[24:27], 0 offen offset:{32*p} {LSC}")
                    vm.issue("XG")
                    A(f"buffer_load_dwordx4 v[{220+4*p}:{223+4*p}], v245, s[28:31], 0 offen offset:{64*p} {LSC}")
                    vm.issue("XG")
            pending.append(xg)
    while pending: pending.pop(0)()
    estamp(A, 1)
    X, G = 208, 220
    A("v_lshlrev_b32 v2, 4, v1")
    for q in range(1, 4):
        A(f"s_add_u32 s21, s3, {q}")
        A("s_and_b32 s21, s21, 3")
        A("s_mul_i32 s21, s21, 15360")
        A(f"s_add_u32 s21, s21, {(q-1)*5120}")
        A(f"v_add_u32 v6, s21, v2")
        for p in range(5):
            c = ACC + (q*5+p)*4
            A(f"ds_write_b128 v6, v[{c}:{c+3}] offset:{p*1024}")
    A("s_mul_i32 s21, s3, 15360")
    A("v_add_u32 v6, s21, v2")
    A("s_waitcnt lgkmcnt(0)")
    A("s_barrier")
    estamp(A, 2)
    R = 88
    for k in range(3):
        for p in range(5):
            r = R + k*20 + 4*p
            A(f"ds_read_b128 v[{r}:{r+3}], v6 offset:{k*5120 + p*1024}")
    for k in range(3):
        A(f"s_waitcnt lgkmcnt({5*(2-k)})")
        for r in range(0, 20, 2):
            A(f"v_pk_add_f32 {pr(ACC+r)}, {pr(ACC+r)}, {pr(R+k*20+r)}")
    vm.wait(["XG"])
    for p in range(5):
        for z in range(2):
            A(f"v_lshlrev_b32 v4, 16, v{X+2*p+z}")
            A(f"v_and_b32 v5, 0xffff0000, v{X+2*p+z}")
            A(f"v_pk_fma_f32 {pr(4)}, {pr(G+4*p+2*z)}, {pr(ACC+4*p+2*z)}, {pr(4)}")
            A(f"v_cvt_pk_bf16_f32 v{88+2*p+z}, v4, v5")
        A(f"buffer_store_dwordx2 {pr(88+2*p)}, v244, s[36:39], 0 offen offset:{32*p} {OPT.get('osc','').replace('+',' ')}")
    estamp(A, 3)

def e_qmajor(C, ACC, VH, VH2, HACC):
    A = C.A; vm = C.vm
    NR = int(OPT.get("enr", 32))
    NJ = 4*NST
    QO = (1, 2, 3, 0)
    RED = SLOT if DT else 2*SLOT if NS == 4 else 0
    def slot(j):
        i = j % NR
        return 88 + 4*i if i < 16 else 176 + 4*(i - 16)
    def regs(j): return list(range(slot(j), slot(j) + 4))
    A("s_movk_i32 s20, 4096")
    A("s_movk_i32 s21, 8192")
    state = dict(hi=0)
    def load(j, track=True):
        q, st = QO[j // NST], j % NST
        so = ["0", "s20", "s21", "s47"][st // 4]
        r = slot(j)
        if st % 7 == 3:
            for z in range(2):
                A(f"buffer_load_dwordx2 v[{r+2*z}:{r+2*z+1}], v{VH2+q}, s[16:19], {so} offen offset:{(st % 4)*1024 + 512*z} {LSC}")
                if track: vm.issue(("H", j))
        else:
            A(f"buffer_load_dwordx4 v[{r}:{r+3}], v{VH+q}, s[16:19], {so} offen offset:{(st % 4)*1024} {LSC}")
            if track: vm.issue(("H", j))
        if track: state["hi"] = j + 1
    def nloads(js): return sum(2 if (j % NST) % 7 == 3 else 1 for j in js)
    def check(j):
        if OPT.get("xp") in ("hv", "nc"): return []
        L = C.lab("ex")
        rr = regs(j) + regs(j+1)
        ops = max_ops(A, rr, HACC)
        ops.append(lambda: A(f"v_cmp_eq_u32 vcc, -1, v{HACC}"))
        def br():
            A(f"s_cbranch_vccnz {L}")
            A(f"{L}_b:")
            hi = state["hi"]
            def tail():
                A(f"{L}:")
                q = vm.q
                retry_loop(C, lambda: [load(k, False) for k in range(j, hi)], lambda: fill_test(A, rr, HACC))
                if CNT and PROF and OPT.get("crep"):
                    A("s_add_u32 s70, s70, 1")
                    A("s_add_u32 s69, s69, s53")
                vm.q = q
                A(f"s_branch {L}_b")
            C.tail.append(tail)
        ops.append(br)
        return ops
    if CNT and PROF and OPT.get("crep"):
        A("s_mov_b32 s70, 0")
        A("s_mov_b32 s69, 0")
    def lds_addr():
        A("v_lshlrev_b32 v2, 4, v1")
        for q in range(1, 4):
            A(f"s_add_u32 s22, s3, {q}")
            A("s_and_b32 s22, s22, 3")
            A("s_mul_i32 s22, s22, 15360")
            A(f"s_add_u32 s22, s22, {RED + (q-1)*5120}")
            A(f"v_add_u32 v{252+q}, s22, v2")
        A("s_mul_i32 s22, s3, 15360")
        A(f"s_add_u32 s22, s22, {RED}")
        A("v_add_u32 v6, s22, v2")
    NP = int(OPT.get("enp", 4))
    if OPT.get("epr", "0") == "1":
        NPB = len(C.probes)
        L = C.lab("pb")
        if not CUM: A("s_mov_b32 s53, 0")
        A(f"{L}:")
        for k, r in enumerate(C.probes):
            A(f"s_waitcnt vmcnt({NPB - 1})")
            A(f"v_cmp_eq_u32 vcc, -1, v{r}")
            A(f"s_cbranch_vccz {L}_x")
            A(f"buffer_load_dword v{r}, v7, s[16:19], 0 offen {LSC}")
        A("s_add_u32 s53, s53, 1")
        A(f"s_cmp_lt_u32 s53, {RETRY_LIMIT}")
        A(f"s_cbranch_scc1 {L}")
        A(f"{L}_x:")
        cnt(A, 4)
        estamp(A, 0)
        vm.q = ["stale"]*(NPB - 1)
        NP = 0
        for j in range(NR): load(j)
        lds_addr()
        vm.wait([("H", 0), ("H", 1)])
        for f in check(0): f()
    else:
        NSP = int(OPT.get("ens", 4))
        if OPT.get("ewait", "1") == "1": A("s_waitcnt vmcnt(0)")
        tags = [("H", j) for j in range(NP, NSP) for _ in range(nloads([j]))]
        retry_loop(C, lambda: [load(j, False) for j in range(NP)],
                   lambda: fill_test(A, [r for j in range(NP) for r in regs(j)], HACC),
                   spec=lambda: [load(j, False) for j in range(NP, NSP)], tags=tags)
        cnt(A, 4)
        estamp(A, 0)
        state["hi"] = NSP
        for j in range(NSP, NR): load(j)
        lds_addr()
    X, G = 208, 220
    assert NR == 32
    def xg_ops():
        ops = []
        for p in range(5):
            def fx(p=p):
                A(f"buffer_load_dwordx2 {pr(X+2*p)}, v244, s[24:27], 0 offen offset:{32*p} {LSC}"); vm.issue("XG")
            def fg(p=p):
                A(f"buffer_load_dwordx4 v[{G+4*p}:{G+4*p+3}], v245, s[28:31], 0 offen offset:{64*p} {LSC}"); vm.issue("XG")
            ops += [fx, fg]
        return ops
    P = ACC + 20
    pending = []; mem = []
    gaps_left = [5*NJ]
    def gap():
        gaps_left[0] -= 1
        k = 2 if len(pending) > BUSY[0] else 1
        for _ in range(k):
            if pending: pending.pop(0)()
    BUSY = [1000]
    for j in range(NJ):
        qi, st = divmod(j, NST)
        q = QO[qi]
        if OPT.get("est") == "3" and j % 6 == 0: A(f"s_memtime s[{56+2*(j//6)}:{57+2*(j//6)}]")
        if j % 2 == 0 and j + 2 < NJ and j + 2 >= NP:
            assert state["hi"] >= j + 4
            vm.wait([("H", j+2), ("H", j+3)])
            pending[0:0] = check(j + 2)
        if st == 0 and qi > 0:
            qp = QO[qi-1]
            for p in range(5):
                c = ACC + (qp*5+p)*4
                pending.append(lambda c=c, p=p, qp=qp: A(f"ds_write_b128 v{252+qp}, v[{c}:{c+3}] offset:{p*1024}"))
        if j == 32: mem.extend(xg_ops())
        if j == 44:
            assert not any(getattr(f, "w", 0) for f in pending)
            A("s_waitcnt lgkmcnt(0)")
            A("s_barrier")
            estamp(A, 2)
            for k in range(3):
                for p in range(5):
                    r = P + k*20 + 4*p
                    pending.append(lambda r=r, k=k, p=p: A(f"ds_read_b128 v[{r}:{r+3}], v6 offset:{k*5120 + p*1024}"))
            pending.append(lambda: A("s_waitcnt lgkmcnt(5)"))
            for r in range(20):
                pending.append(lambda r=r: A(f"v_add_f32 v{P+r}, v{P+r}, v{P+20+r}"))
            pending.append(lambda: A("s_waitcnt lgkmcnt(0)"))
            for r in range(20):
                pending.append(lambda r=r: A(f"v_add_f32 v{P+r}, v{P+r}, v{P+40+r}"))
            BUSY[0] = 0
        for p in range(5):
            c = ACC + (q*5+p)*4
            src = "0" if st == 0 else f"v[{c}:{c+3}]"
            wk, wr = wfrag(st, p)
            h = slot(j)
            A(f"v_mfma_f32_16x16x32_bf16 v[{c}:{c+3}], {wk}[{wr}:{wr+3}], v[{h}:{h+3}], {src}")
            if p == 0 and j >= 1 and j - 1 + NR < NJ and j - 1 + NR >= state["hi"]:
                load(j - 1 + NR)
            elif p in (0, 2) and mem:
                mem.pop(0)()
            else:
                gap()
        if st == NST - 1 and qi < 3 or j == 43:
            pass
        if j == 43:
            while pending: pending.pop(0)()
    estamp(A, 1)
    while pending: pending.pop(0)()
    vm.wait(["XG"])
    for p in range(5):
        for z in range(2):
            r = 4*p + 2*z
            A(f"v_pk_add_f32 {pr(ACC+r)}, {pr(ACC+r)}, {pr(P+r)}")
            A(f"v_lshlrev_b32 v4, 16, v{X+2*p+z}")
            A(f"v_and_b32 v5, 0xffff0000, v{X+2*p+z}")
            A(f"v_pk_fma_f32 {pr(4)}, {pr(G+r)}, {pr(ACC+r)}, {pr(4)}")
            A(f"v_cvt_pk_bf16_f32 v{88+2*p+z}, v4, v5")
        A(f"buffer_store_dwordx2 {pr(88+2*p)}, v244, s[36:39], 0 offen offset:{32*p} {OPT.get('osc','').replace('+',' ')}")
    estamp(A, 3)

def fused(name=MAIN):
    K = Kern(name, 256, LDS_TOTAL, vgpr=256, agpr=256)
    A = K.A
    C = Ctx(A)
    phase0(C)
    phase_a(C)
    phase_b(C)
    phase_c(C)
    (phase_d2 if DT else phase_d)(C)
    phase_e(C)
    if DG:
        L = "dg_end"
        A("s_or_b32 s50, s44, s45")
        A("s_or_b32 s50, s50, s3")
        A("s_cmp_lg_u32 s50, 0")
        A(f"s_cbranch_scc1 {L}")
        A("s_load_dwordx2 s[90:91], s[0:1], 80")
        A("s_waitcnt vmcnt(0) lgkmcnt(0)")
        A("v_mov_b32 v4, 0")
        A("global_load_dwordx4 v[8:11], v4, s[90:91] sc0 sc1")
        A("global_load_dwordx4 v[12:15], v4, s[90:91] offset:16 sc0 sc1")
        A("s_waitcnt vmcnt(0)")
        A("v_readfirstlane_b32 s96, v10")
        A("v_readfirstlane_b32 s97, v88")
        A("s_nop 4")
        A("s_and_b32 s97, s97, 0x7f80")
        A("s_cmp_eq_u32 s97, 0x7f80")
        A("s_cselect_b32 s97, 1, 0")
        A("s_or_b32 s97, s97, s96")
        A("s_cmp_eq_u32 s97, 0")
        A(f"s_cbranch_scc1 {L}")
        A("v_readfirstlane_b32 s64, v15")
        A("v_readfirstlane_b32 s65, v11")
        A("s_nop 4")
        A("s_and_b32 s70, s64, 63")
        A("s_and_b32 s71, s65, 255")
        A("s_cmp_eq_u32 s96, 0")
        A("s_cselect_b32 s70, 99, s70")
        A("s_min_u32 s72, s96, 255")
        def sample(dst, base, stride, n, packed, word_stride=None):
            A(f"s_mov_b32 s60, {stride}")
            A("v_mul_lo_u32 v5, v1, s60")
            A(f"v_add_u32 v5, {hex(base)}, v5")
            A(f"s_mov_b32 s{dst}, 0")
            for k in range(n):
                A(f"global_load_dword v16, v5, s[4:5] sc0 sc1")
                A(f"v_add_u32 v5, {hex(64*stride)}, v5")
                A("s_waitcnt vmcnt(0)")
                A("v_and_b32 v17, 0x7f800000, v16")
                A("v_cmp_eq_u32 vcc, 0x7f800000, v17")
                if packed:
                    A("s_mov_b64 s[62:63], vcc")
                    A("v_and_b32 v17, 0x7f80, v16")
                    A("v_cmp_eq_u32 vcc, 0x7f80, v17")
                    A("s_or_b64 vcc, vcc, s[62:63]")
                A("s_bcnt1_i32_b64 s61, vcc")
                A(f"s_add_u32 s{dst}, s{dst}, s61")
            A(f"s_min_u32 s{dst}, s{dst}, 255")
        sample(73, WS_MODG, 8, 20, False)
        sample(74, WS_Y1 + 4096, BLK, 4, True)
        sample(75, WS_WT + 1024, 8192, 5, True)
        sample(76, WS_Z + 1024, 8192, 5, True)
        sample(77, WS_W13 + 512, 17280, 4, True)
        sample(78, WS_W2 + 512, 8640, 4, True)
        A("s_min_u32 s77, s77, 15"); A("s_min_u32 s78, s78, 15"); A("s_lshl_b32 s77, s77, 4"); A("s_or_b32 s77, s77, s78")
        for k in range(8): A(f"v_cvt_f32_u32 v{8+k}, s{70+k}")
        for k in range(4):
            A(f"v_lshrrev_b32 v{8+2*k}, 16, v{8+2*k}")
            A(f"v_and_b32 v{9+2*k}, 0xffff0000, v{9+2*k}")
            A(f"v_or_b32 v{20+k}, v{8+2*k}, v{9+2*k}")
        A("v_mov_b32 v4, 0")
        A("s_mov_b64 exec, 1")
        A("global_store_dwordx4 v4, v[20:23], s[8:9]")
        A("s_mov_b64 exec, -1")
        A(f"{L}:")
    A("all_end:")
    A("s_endpgm")
    for f in C.tail: f()
    if DG:
        for i, x in enumerate(SITES): print("site", i, x)
    A("code_end:")
    return K
```

```python
import os, math
from gen_common import *
from gen_k5 import VM
from gen_k2 import layernorm, unpack_bf16, PITCH2

MAIN = "adaLN_cond__spectral_gfnet__glu_gated_swiglu__prompt_kernel"
OPT = dict(kv.split("=") for kv in os.environ.get("OPT", "").split(",") if kv)
SC = OPT.get("sc", "sc0+sc1").replace("+", " ")
LSC = "sc1"
WS_EPOCH = 0x80000
WS_FLG = 0xB0000
FA, FW, FP, FH1, FH2, FX = [0x8000*i for i in range(6)]
FSH = int(OPT.get("fsh", 5))
SZ_FLG = 6*0x8000
WS_MODG = 0xA0000
NB_WG = 161
BLK = 10368
SZ_Y1N = 256*BLK
TAGSTEP = 0x9E3779B9
RETRY_LIMIT = int(OPT.get("rl", 4000000))
CUM = OPT.get("cum", "1") == "1" and not (CNT and PROF)
DG = OPT.get("dg") == "1"
STAG = 55

ESTAMP = OPT.get("est") == "1"
_stamp = stamp
DLYD = OPT.get("dly") == "dbg"
_dn = [0]
def dpoint(A, i):
    _dn[0] += 1; L = f"dp_{_dn[0]}"
    A("s_cselect_b32 s98, 1, 0")
    A(f"s_bitcmp1_b32 s96, {i}")
    A(f"s_cbranch_scc0 {L}")
    A("s_mov_b32 s97, s94")
    A(f"{L}_l:")
    A("s_sleep 16")
    A("s_sub_u32 s97, s97, 1")
    A("s_cmp_gt_i32 s97, 0")
    A(f"s_cbranch_scc1 {L}_l")
    A(f"{L}:")
    A("s_cmp_eq_u32 s98, 1")
def stamp(A, i):
    if DLYD: dpoint(A, i)
    if ESTAMP and i in (0, 1, 2, 3, 5): return
    if OPT.get("est") in ("2", "3") and i < 20: return
    if OPT.get("est") == "9": return
    _stamp(A, i)
def estamp(A, i):
    if DLYD: dpoint(A, 24 + i)
    if ESTAMP: _stamp(A, i)
def fk(x): return hex(f32bits(float(x)))
def pr(r): return f"v[{r}:{r+1}]"
def mf32(A, d, a, b, first):
    c = "0" if first else f"v[{d}:{d+15}]"
    A(f"v_mfma_f32_32x32x16_bf16 v[{d}:{d+15}], v[{a}:{a+3}], v[{b}:{b+3}], {c}")
def csel(A, d, a, b):
    A(f"s_mov_b32 {d}, {b}")
    A(f"s_cselect_b32 {d}, {a}, {d}")

class Ctx:
    def __init__(self, A):
        self.A = A; self.vm = VM(A); self.n = 0; self.tail = []
    def lab(self, p):
        self.n += 1; return f"{p}_{self.n}"

def max_ops(A, regs, acc):
    regs = list(regs); ops = []
    ops.append(lambda r=regs[:3]: A(f"v_max3_u32 v{acc}, v{r[0]}, v{r[1]}, v{r[2]}"))
    rest = regs[3:]
    while rest:
        if len(rest) >= 2:
            ops.append(lambda r=rest[:2]: A(f"v_max3_u32 v{acc}, v{acc}, v{r[0]}, v{r[1]}")); rest = rest[2:]
        else:
            ops.append(lambda r=rest[0]: A(f"v_max_u32 v{acc}, v{acc}, v{r}")); rest = []
    return ops
def fill_test(A, regs, acc):
    for f in max_ops(A, regs, acc): f()
    A(f"v_cmp_eq_u32 vcc, -1, v{acc}")
def retry_loop(C, loads, test, scnt=53, spec=None, tags=()):
    A = C.A; L = C.lab("rt")
    if not CUM: A(f"s_mov_b32 s{scnt}, 0")
    A(f"{L}:")
    loads()
    if spec: spec()
    A(f"s_add_u32 s{scnt}, s{scnt}, 1")
    A(f"s_waitcnt vmcnt({len(tags)})")
    test()
    A(f"s_cmp_ge_u32 s{scnt}, {RETRY_LIMIT}")
    A(f"s_cbranch_scc1 {L}_{'t' if DG else 'x'}")
    A(f"s_cbranch_vccnz {L}")
    A(f"{L}_x:")
    if DG: gave_up(C, L + "_t", L + "_x")
    C.vm.q = []
    for t in tags: C.vm.issue(t)
SITES = []
def gave_up(C, L, back):
    import inspect
    A = C.A
    site = len(SITES); SITES.append((L, [f.lineno for f in inspect.stack()[1:5]]))
    def tail():
        A(f"{L}:")
        A("s_memrealtime s[92:93]")
        A("s_load_dwordx2 s[90:91], s[0:1], 80")
        A("s_waitcnt vmcnt(0) lgkmcnt(0)")
        A("s_mov_b64 s[94:95], exec")
        A("s_mov_b64 exec, 1")
        A("v_mov_b32 v4, 0")
        A(f"v_mov_b32 v5, {hex(1 << (site & 31))}")
        A(f"global_atomic_or v4, v5, s[90:91] offset:{4*(site >> 5)} sc1")
        A("v_mov_b32 v5, 1")
        A("global_atomic_add v4, v5, s[90:91] offset:8 sc1")
        A("s_not_b32 s92, s92")
        A("s_lshl_b32 s96, s92, 8")
        A("s_or_b32 s96, s96, s2")
        A("v_mov_b32 v5, s96")
        A("global_atomic_umax v4, v5, s[90:91] offset:12 sc1")
        A("s_lshl_b32 s96, s92, 6")
        A(f"s_or_b32 s96, s96, {site}")
        A("v_mov_b32 v5, s96")
        A("global_atomic_umax v4, v5, s[90:91] offset:28 sc1")
        A("v_mov_b32 v5, s92")
        A("global_atomic_umax v4, v5, s[90:91] offset:24 sc1")
        A("s_waitcnt vmcnt(0)")
        A("s_mov_b64 exec, s[94:95]")
        A(f"s_branch {back}")
    C.tail.append(tail)
def poll2(C, loads, tests, nops, use, scnt=53):
    A = C.A; L = C.lab("p2")
    if not CUM: A(f"s_mov_b32 s{scnt}, 0")
    A(f"{L}:")
    for k in range(2):
        A(f"s_waitcnt vmcnt({nops})")
        tests[k]()
        A(f"s_cbranch_vccz {L}_{k}")
        loads[k]()
    A(f"s_add_u32 s{scnt}, s{scnt}, 1")
    A(f"s_cmp_lt_u32 s{scnt}, {RETRY_LIMIT}")
    A(f"s_cbranch_scc1 {L}")
    if DG:
        A(f"s_branch {L}_t")
        A(f"{L}_x:")
        gave_up(C, L + "_t", L + "_x")
    A(f"s_waitcnt vmcnt({nops})")
    A(f"{L}_0:")
    use(0)
    A(f"s_branch {L}_e")
    A(f"{L}_1:")
    use(1)
    A(f"{L}_e:")
    C.vm.q = ["stale"]*nops
def check_ops(C, loads, regs, acc):
    A = C.A; L = C.lab("fx")
    ops = max_ops(A, regs, acc)
    ops.append(lambda: A(f"v_cmp_eq_u32 vcc, -1, v{acc}"))
    def br():
        A(f"s_cbranch_vccnz {L}")
        A(f"{L}_b:")
    ops.append(br)
    def tail():
        A(f"{L}:")
        q = C.vm.q
        retry_loop(C, loads, lambda: fill_test(A, regs, acc))
        C.vm.q = q
        A(f"s_branch {L}_b")
    C.tail.append(tail)
    return ops
def flag_store(C, off, va=4, vb=5):
    A = C.A; L = C.lab("fl")
    A("s_cmp_lg_u32 s3, 0")
    A(f"s_cbranch_scc1 {L}")
    A(f"s_lshl_b32 s50, s2, {FSH}")
    A(f"s_add_u32 s50, s50, {off}")
    A(f"v_mov_b32 v{va}, s50")
    A(f"v_mov_b32 v{vb}, s{STAG}")
    A("s_mov_b64 exec, 1")
    A(f"buffer_store_dword v{vb}, v{va}, s[12:15], 0 offen {SC}")
    A("s_mov_b64 exec, -1")
    A(f"{L}:")

L_ROWS = 0
L_TR = 8*PITCH2
L_MODP = L_TR + 16384
L_MODV = L_MODP + 1024
L_WT = L_MODV + 5120
L_PREP = 45056
L_YST = L_PREP + 32768
assert L_WT + 4*2816 <= L_PREP and L_YST + 16384 <= 114688

def prep_params(C, unit, B):
    A = C.A
    g, pitch, so, do, ts, ga, ja, a, b, c = [f"s{B+i}" for i in range(10)]
    A(f"s_sub_u32 {a}, s2, {NB_WG}")
    A(f"s_lshl_b32 {a}, {a}, 2")
    A(f"s_add_u32 {a}, {a}, s3")
    if unit: A(f"s_add_u32 {a}, {a}, {unit*4*(256 - NB_WG)}")
    A(f"s_cmp_ge_u32 {a}, 540")
    A(f"s_cselect_b32 {g}, 1, 0")
    A(f"s_cmp_ge_u32 {a}, 1080")
    A(f"s_cselect_b32 {g}, 2, {g}")
    A(f"s_mul_i32 {b}, {g}, 540")
    A(f"s_sub_u32 {b}, {a}, {b}")
    A(f"s_cmp_eq_u32 {g}, 2")
    csel(A, pitch, "1280", "3456")
    csel(A, ts, "1024", "2048")
    csel(A, ga, "4", "8")
    csel(A, ja, "16", "4")
    csel(A, c, "6554", "2428")
    csel(A, so, "10", "27")
    csel(A, do, "40960", "221184")
    A(f"s_mul_i32 {c}, {c}, {b}")
    A(f"s_lshr_b32 {c}, {c}, 16")
    A(f"s_mul_i32 {so}, {so}, {c}")
    A(f"s_sub_u32 {b}, {b}, {so}")
    A(f"s_mul_i32 {do}, {do}, {c}")
    A(f"s_mul_i32 {so}, {c}, {pitch}")
    A(f"s_lshl_b32 {so}, {so}, 5")
    A(f"s_lshl_b32 {c}, {b}, 7")
    A(f"s_add_u32 {so}, {so}, {c}")
    A(f"s_cmp_eq_u32 {g}, 2")
    csel(A, c, "4096", "8192")
    A(f"s_mul_i32 {c}, {c}, {b}")
    A(f"s_add_u32 {do}, {do}, {c}")
    A(f"s_cmp_eq_u32 {g}, 1")
    A(f"s_cselect_b32 {c}, 1024, 0")
    A(f"s_add_u32 {do}, {do}, {c}")
    A(f"s_cmp_lt_u32 {a}, 1620")
    A(f"s_cselect_b32 {so}, {so}, {hex(OOB)}")
    A(f"s_cselect_b32 {do}, {do}, {hex(OOB)}")

def a_consts(C, pf):
    A = C.A
    hf = 19
    A("v_cvt_f32_u32 v7, v2")
    A(f"v_cvt_f32_u32 v{hf}, v3")
    A(f"v_mul_f32 v212, {flit(1/32)}, v7")
    A(f"v_mul_f32 v213, v212, v{hf}")
    A(f"v_mul_f32 v213, {flit(8.0)}, v213")
    for mh in range(2):
        for p in range(4):
            for z in range(2):
                A(f"v_fmamk_f32 v214, v212, {fk(16*mh+2*p+z)}, v213")
                A(f"v_cos_f32 v{60+z}, v214")
                A(f"v_sin_f32 v{62+z}, -v214")
            A(f"v_cvt_pk_bf16_f32 v{80+4*mh+p}, v60, v61")
            A(f"v_cvt_pk_bf16_f32 v{88+4*mh+p}, v62, v63")
            pf()
    A(f"v_mul_f32 v212, {flit(1/640)}, v7")
    A(f"v_mul_f32 v213, v212, v{hf}")
    A("v_mul_f32 v213, 4.0, v213")
    for r in range(12):
        A(f"v_fmamk_f32 v214, v212, {fk(8*(r//4)+r%4)}, v213")
        A(f"v_cos_f32 v{96+r}, v214")
        A(f"v_sin_f32 v{108+r}, v214")
        if r & 1: pf()
    A("v_and_b32 v60, 15, v2")
    A("v_cvt_f32_u32 v60, v60")
    A("v_lshrrev_b32 v61, 4, v2")
    A("v_cvt_f32_u32 v61, v61")
    A(f"v_mul_f32 v212, {flit(1/20)}, v60")
    A(f"v_mul_f32 v213, v212, v{hf}")
    A("v_mul_f32 v213, 4.0, v213")
    A(f"v_fmamk_f32 v213, v61, {fk(0.25)}, v213")
    A(f"v_add_f32 v215, {flit(-0.25)}, v213")
    def cpair(dst, consts, bases):
        for z in range(2):
            A(f"v_fmamk_f32 v214, v212, {fk(consts[z])}, v{bases[z]}")
            A(f"v_cos_f32 v{62+z}, v214")
        A(f"v_cvt_pk_bf16_f32 v{dst}, v62, v63")
    for p in range(4):
        d = [8*((2*p+z) >> 2) + ((2*p+z) & 3) for z in range(2)]
        cpair(120+p, d, [213, 213]); pf()
        cpair(124+p, d, [215, 215]); pf()
    for p in range(2):
        d = [16+2*p, 17+2*p]
        cpair(128+p, d, [213, 213]); pf()
        cpair(130+p, d, [215, 215]); pf()
    A("v_cmp_eq_u32 vcc, 0, v3")
    for p in range(4):
        A(f"v_cndmask_b32 v{128+p}, 0, v{128+p}, vcc")

N_FILLER = 16

def phase0(C):
    A = C.A; vm = C.vm
    A("s_cmp_ge_u32 s2, 256")
    A("s_cbranch_scc1 all_end")
    if OPT.get("cpf", "2") == "2":
        L = C.lab("cpf")
        A("s_getpc_b64 s[26:27]")
        A(f"{L}_pc:")
        A("s_bfe_u32 s50, s2, 0x30003")
        A("s_lshl_b32 s50, s50, 12")
        A("v_lshl_add_u32 v4, v0, 4, s50")
        A("s_bfe_u32 s50, s2, 0x20003")
        A("s_lshl_b32 s50, s50, 12")
        A("s_add_u32 s50, s50, 0x8000")
        A("v_lshl_add_u32 v6, v0, 4, s50")
        A(f"s_sub_u32 s26, s26, {L}_pc-{MAIN}")
        A("s_subb_u32 s27, s27, 0")
        A(f"v_min_u32 v6, code_end-{MAIN}-16, v6")
        A("global_load_dwordx4 v[248:251], v4, s[26:27]")
        A("global_load_dwordx4 v[252:255], v6, s[26:27]")
    A("s_load_dwordx2 s[4:5], s[0:1], 88")
    A("s_load_dwordx4 s[28:31], s[0:1], 56")
    A("s_load_dwordx2 s[6:7], s[0:1], 0")
    A("s_load_dwordx4 s[16:19], s[0:1], 8")
    A("s_load_dwordx4 s[20:23], s[0:1], 32")
    A("s_load_dwordx2 s[24:25], s[0:1], 48")
    A("s_load_dwordx2 s[8:9], s[0:1], 72")
    if CUM: A("s_mov_b32 s53, 0")
    if DLYD:
        A("s_load_dwordx2 s[90:91], s[0:1], 80")
        A("s_waitcnt lgkmcnt(0)")
        A("s_load_dwordx4 s[92:95], s[90:91], 0")
        A("s_waitcnt lgkmcnt(0)")
    elif OPT.get("dly"):
        m, v, n = [int(x) for x in OPT["dly"].split(":")]
        A(f"s_and_b32 s50, s2, {m}")
        A(f"s_cmp_lg_u32 s50, {v}")
        A("s_cbranch_scc1 dly_x")
        for _ in range(n): A("s_sleep 127")
        A("dly_x:")
    if DG:
        A("s_memrealtime s[92:93]")
        A("s_load_dwordx2 s[90:91], s[0:1], 80")
    A("v_and_b32 v1, 63, v0")
    A("v_and_b32 v2, 31, v0")
    A("v_lshrrev_b32 v3, 5, v1")
    A("v_lshrrev_b32 v4, 6, v0")
    A("v_readfirstlane_b32 s3, v4")
    if DLYD:
        A("s_nop 4")
        A("s_lshr_b32 s96, s95, s3")
        A("s_and_b32 s96, s96, 1")
        A("s_lshr_b32 s97, s92, 16")
        A("s_and_b32 s97, s97, s2")
        A("s_and_b32 s92, s92, 0xffff")
        A("s_cmp_eq_u32 s92, s97")
        A("s_cselect_b32 s96, s96, 0")
        A("s_cmp_lg_u32 s96, 0")
        A("s_cselect_b32 s96, s93, 0")
        dpoint(A, 31)
    A("s_and_b32 s48, s2, 7")
    A("s_lshr_b32 s49, s2, 3")
    A("s_mul_i32 s26, s48, 10")
    A("s_add_u32 s26, s26, s49")
    A("s_mul_i32 s27, s48, 20")
    A("s_add_u32 s27, s27, s49")
    A("s_add_u32 s27, s27, 70")
    A("s_cmp_lt_u32 s49, 10")
    A("s_cselect_b32 s54, s26, s27")
    A("s_lshl_b32 s26, s54, 5")
    A(f"s_cmp_lt_u32 s49, {10 if 'now' in OPT.get('xp', '') else 30}")
    A(f"s_cselect_b32 s26, s26, {hex(OOB)}")
    A("v_lshrrev_b32 v4, 1, v0")
    A("v_and_b32 v5, 1, v0")
    A("v_mul_u32_u24 v56, 7680, v4")
    A("v_lshl_add_u32 v56, v5, 4, v56")
    A("v_add_u32 v56, s26, v56")
    A("v_lshlrev_b32 v57, 1, v4")
    A("s_lshl_b32 s80, s48, 3")
    A("s_and_b32 s26, s49, 7")
    A("s_add_u32 s80, s80, s26")
    A("s_lshr_b32 s26, s2, 7")
    A("s_lshl_b32 s26, s26, 4")
    A("s_bfe_u32 s27, s2, 0x10006")
    A("s_lshl_b32 s27, s27, 2")
    A("s_add_u32 s26, s26, s27")
    A("s_lshr_b32 s27, s3, 1")
    A("s_lshl_b32 s27, s27, 3")
    A("s_add_u32 s26, s26, s27")
    A("s_and_b32 s27, s3, 1")
    A("s_lshl_b32 s27, s27, 1")
    A("s_add_u32 s26, s26, s27")
    A("s_lshl_b32 s26, s26, 6")
    A("s_add_u32 s26, s26, s80")
    A("s_mul_i32 s26, s26, 1280")
    A("v_mul_u32_u24 v58, 81920, v3")
    A("v_lshl_add_u32 v58, v2, 3, v58")
    A("v_add_u32 v58, s26, v58")
    A("s_lshr_b32 s26, s2, 6")
    A("s_lshl_b32 s26, s26, 6")
    A("s_add_u32 s80, s80, s26")
    A(f"s_mul_i32 s80, s80, {BLK}")
    A("s_waitcnt lgkmcnt(0)")
    if DG:
        A("s_mov_b32 s88, s92")
        A("s_lshl_b32 s96, s2, 2")
        A("s_add_u32 s96, s96, 0x88000")
        A("v_mov_b32 v200, s96")
        A("v_mov_b32 v201, s92")
        A("s_cmp_eq_u32 s3, 0")
        A("s_cselect_b64 exec, 1, 0")
        A("global_store_dword v200, v201, s[4:5] sc0 sc1")
        A("s_mov_b64 exec, -1")
    Lfill, Ljoin = C.lab("filler"), C.lab("p0join")
    A("s_cmp_ge_u32 s49, 30")
    A(f"s_cbranch_scc1 {Lfill}")
    srd(A, 32, 28, 0, 1280)
    srd(A, 36, 30, 0, 640*7680)
    TCH = OPT.get("tch", "")
    if "w" in TCH:
        A("v_mul_u32_u24 v200, 76800, v1")
        A("buffer_load_dword v201, v200, s[36:39], 0 offen")
    if "x" in TCH:
        srd(A, 40, 6, 0, SZ_X)
        A("v_mul_u32_u24 v200, 40960, v1")
        A("buffer_load_dword v202, v200, s[40:43], 0 offen")
    XO = int(OPT.get("xo", 5))
    def x_loads():
        srd(A, 40 if XO else 32, 6, 0, SZ_X)
        for i in range(5):
            A(f"buffer_load_dwordx2 v[{8+2*i}:{9+2*i}], v58, s[{40 if XO else 32}:{43 if XO else 35}], 0 offen offset:{256*i}"); vm.issue("x")
    if XO == 7: x_loads()
    for i in range(5):
        A(f"buffer_load_ushort v{20+i}, v57, s[32:35], 0 offen offset:{256*i}"); vm.issue("c")
    if XO == 8: x_loads()
    for i in range(5):
        if i: A(f"s_mov_b32 s26, {i*128*7680}")
        A(f"buffer_load_dwordx4 v[{28+4*i}:{31+4*i}], v56, s[36:39], {'s26' if i else '0'} offen"); vm.issue(("w", i))
    if not XO: x_loads()
    stamp(A, 0)
    A(f"s_load_dword s{STAG}, s[4:5], {hex(WS_EPOCH)}")
    def wt_code():
        A("s_lshl_b32 s26, s49, 2")
        A("s_add_u32 s26, s26, s3")
        A("s_mul_i32 s27, s26, 4370")
        A("s_lshr_b32 s27, s27, 16")
        A("s_mul_i32 s50, s27, 15")
        A("s_sub_u32 s26, s26, s50")
        A("s_mul_i32 s26, s26, 22")
        A("s_min_u32 s26, s26, 299")
        A("s_lshl_b32 s50, s48, 3")
        A("s_add_u32 s27, s27, s50")
        A("s_lshr_b32 s50, s27, 2")
        A("s_and_b32 s27, s27, 3")
        A("v_and_b32 v4, 7, v1")
        A("v_bfe_u32 v5, v1, 3, 2")
        A("v_lshl_add_u32 v6, v5, 5, v4")
        A("s_lshl_b32 s51, s50, 7")
        A("s_lshl_b32 s52, s27, 3")
        A("s_add_u32 s51, s51, s52")
        A("v_add_u32 v6, s51, v6")
        A("v_mul_u32_u24 v228, 642, v6")
        A("v_mul_u32_u24 v7, 20, v3")
        A("v_add_u32 v228, v228, v7")
        A("s_lshl_b32 s51, s26, 1")
        A(f"s_cmp_lt_u32 s49, {0 if 'nowt' in OPT.get('xp', '') else 30}")
        A(f"s_cselect_b32 s51, s51, {hex(OOB)}")
        A("v_add_u32 v228, s51, v228")
        A("s_mul_i32 s51, s3, 2816")
        A(f"s_add_u32 s51, s51, {L_WT}")
        A("v_mul_u32_u24 v229, 1280, v3")
        A("v_lshl_add_u32 v229, v4, 4, v229")
        A("v_lshl_add_u32 v229, v5, 2, v229")
        A("v_add_u32 v229, s51, v229")
        A("v_lshl_add_u32 v230, v1, 4, s51")
        A("s_lshl_b32 s26, s26, 13")
        A("s_lshl_b32 s50, s50, 9")
        A("s_add_u32 s26, s26, s50")
        A("s_lshl_b32 s27, s27, 7")
        A("s_add_u32 s26, s26, s27")
        A("s_cmp_lt_u32 s49, 30")
        A(f"s_cselect_b32 s26, s26, {hex(OOB)}")
        A("v_lshrrev_b32 v5, 3, v1")
        A("v_lshlrev_b32 v231, 13, v5")
        A("v_lshl_add_u32 v231, v4, 4, v231")
        A("v_add_u32 v231, s26, v231")
        if XO in (1, 4): x_loads()
        if XO < 3: wt_loads()
    WL = OPT.get("wl", "0") != "0"
    def wt_loads(late=False):
        if WL and not late: return
        S0 = 36 if late else 32
        srd(A, S0, 16, 0, SZ_WF)
        srd(A, S0 + 4, 18, 0, SZ_WF)
        for m in range(2):
            A(f"buffer_load_dwordx4 v[{216+6*m}:{219+6*m}], v228, s[{S0+4*m}:{S0+3+4*m}], 0 offen"); vm.issue("wt")
            A(f"buffer_load_dwordx2 v[{220+6*m}:{221+6*m}], v228, s[{S0+4*m}:{S0+3+4*m}], 0 offen offset:16"); vm.issue("wt")
    wt_code()
    if XO == 2: x_loads()
    ZF = int(OPT.get("zf", 0))
    def early_fills():
        if not ZF: return
        for q in range(4): A(f"v_accvgpr_write_b32 a{12+q}, -1")
        A("s_lshl_b32 s26, s2, 12")
        A("v_lshl_add_u32 v245, v0, 4, s26")
        for bit, off, sz in ((1, WS_Z, SZ_COL), (2, WS_H2P, SZ_H2P)):
            if not ZF & bit: continue
            srd(A, 44, 4, off, sz)
            for i in range(3):
                if i: A(f"s_mov_b32 s26, {i << 20}")
                A(f"buffer_store_dwordx4 a[12:15], v245, s[44:47], {'s26' if i else '0'} offen {SC}"); vm.issue("zf")
    early_fills()
    stamp(A, 1)
    A("s_waitcnt lgkmcnt(0)")
    A(f"s_add_u32 s{STAG}, s{STAG}, {hex(TAGSTEP)}")
    srd(A, 12, 4, WS_FLG, SZ_FLG)
    if XO in (5, 6):
        late = [x_loads] if XO == 5 else [x_loads, wt_loads]
        calls = [0]
        def mid():
            calls[0] += 1
            if calls[0] == int(OPT.get("xm", 1)) and late:
                while late: late.pop(0)()
        a_consts(C, mid)
        assert not late
        if XO == 5: wt_loads()
    else:
        a_consts(C, lambda: None)
        if XO == 3: x_loads()
        if XO >= 3: wt_loads()
    def ln_stats():
        vm.wait(["x"])
        unpack_bf16(A, 60, 8, 10)
        layernorm(A, 60, 20, 212, 213)
    if XO >= 7: ln_stats()
    stamp(A, 2)
    vm.wait(["c"])
    for i in range(5):
        r = 20+i
        A(f"v_lshlrev_b32 v{r}, 16, v{r}")
        A(f"v_mul_f32 v26, {flit(-math.log2(math.e))}, v{r}")
        A(f"v_exp_f32 v26, v26")
        A(f"v_add_f32 v26, 1.0, v26")
        A(f"v_rcp_f32 v26, v26")
        A(f"v_mul_f32 v{r}, v{r}, v26")
        bf16_round_v(A, r, r)
    for i in range(5):
        vm.wait([("w", i)])
        for q in range(4):
            w = 28+4*i+q
            A(f"v_lshlrev_b32 v26, 16, v{w}")
            A(f"v_and_b32 v27, 0xffff0000, v{w}")
            if i == 0:
                A(f"v_mul_f32 v{48+2*q}, v{20+i}, v26")
                A(f"v_mul_f32 v{49+2*q}, v{20+i}, v27")
            else:
                A(f"v_fmac_f32 v{48+2*q}, v{20+i}, v26")
                A(f"v_fmac_f32 v{49+2*q}, v{20+i}, v27")
    for ctl in ["quad_perm:[2,3,0,1]", "row_ror:4", "row_ror:8"]:
        for q in range(8):
            A(f"v_add_f32_dpp v{48+q}, v{48+q}, v{48+q} {ctl} row_mask:0xf bank_mask:0xf")
    A("v_lshrrev_b32 v5, 4, v0")
    A("v_lshlrev_b32 v5, 6, v5")
    A("v_and_b32 v6, 1, v0")
    A("v_lshl_add_u32 v5, v6, 5, v5")
    A("v_and_b32 v6, 14, v0")
    A("v_cmp_eq_u32 vcc, 0, v6")
    A("s_and_saveexec_b64 s[26:27], vcc")
    A(f"ds_write_b128 v5, v[48:51] offset:{L_MODP}")
    A(f"ds_write_b128 v5, v[52:55] offset:{L_MODP+16}")
    A("s_mov_b64 exec, s[26:27]")
    A("s_waitcnt lgkmcnt(0)")
    A("s_barrier")
    stamp(A, 3)
    L = C.lab("modfin")
    A("s_cmp_lg_u32 s3, 0")
    A(f"s_cbranch_scc1 {L}")
    A("v_and_b32 v6, 15, v0")
    A("v_lshrrev_b32 v5, 4, v0")
    A("v_lshlrev_b32 v5, 8, v5")
    A("v_lshl_add_u32 v5, v6, 2, v5")
    A(f"v_add_u32 v5, {L_MODP}, v5")
    A("ds_read2_b32 v[20:21], v5 offset0:0 offset1:16")
    A("ds_read2_b32 v[22:23], v5 offset0:32 offset1:48")
    A("s_waitcnt lgkmcnt(0)")
    A("v_add_f32 v20, v20, v21")
    A("v_add_f32 v22, v22, v23")
    A("v_add_f32 v20, v20, v22")
    for sw in ("v_permlane16_swap_b32", "v_permlane32_swap_b32"):
        A("v_mov_b32 v21, v20")
        A(f"{sw} v20, v21")
        A("v_add_f32 v20, v20, v21")
    bf16_round_v(A, 20, 20)
    A("s_cmp_ge_u32 s54, 160")
    A("s_cselect_b32 s26, 120, 0")
    A("s_sub_u32 s26, s54, s26")
    A("s_sub_u32 s26, s26, 40")
    A("v_add_f32 v21, 1.0, v20")
    bf16_round_v(A, 21, 21)
    A("s_cmp_lt_u32 s26, 40")
    A("s_cselect_b64 vcc, -1, 0")
    A("v_cndmask_b32 v20, v20, v21, vcc")
    MP = OPT.get("mp", "0") == "1"
    if MP:
        A("v_mov_b32_dpp v24, v20 row_shl:1 row_mask:0xf bank_mask:0xf bound_ctrl:0")
        A("v_mul_u32_u24 v22, 43, v6")
        A("v_cvt_pk_bf16_f32 v24, v20, v24")
        A("v_lshrrev_b32 v22, 8, v22")
        A(f"v_mov_b32 v27, s{STAG}")
        A("v_mov_b32_dpp v25, v24 row_shl:2 row_mask:0xf bank_mask:0xf bound_ctrl:0")
        A("v_mov_b32_dpp v26, v24 row_shl:4 row_mask:0xf bank_mask:0xf bound_ctrl:0")
        A("s_mul_i32 s26, s54, 48")
        A("s_cmp_lt_u32 s54, 80")
        A(f"s_cselect_b32 s26, s26, {hex(OOB)}")
        A("v_lshl_add_u32 v22, v22, 4, s26")
    else:
        A(f"v_mov_b32 v21, s{STAG}")
        A("s_lshl_b32 s26, s54, 7")
        A("s_cmp_lt_u32 s54, 80")
        A(f"s_cselect_b32 s26, s26, {hex(OOB)}")
        A("v_lshl_add_u32 v22, v6, 3, s26")
    A("s_lshl_b32 s26, s54, 6")
    A("s_cmp_ge_u32 s54, 80")
    A(f"s_cselect_b32 s26, s26, {hex(OOB)}")
    A("s_cmp_lt_u32 s49, 30")
    A(f"s_cselect_b32 s26, s26, {hex(OOB)}")
    A("v_lshl_add_u32 v23, v6, 2, s26")
    srd(A, 32, 4, WS_MODG, 80*128)
    srd(A, 36, 4, WS_MOD, SZ_MOD)
    if MP:
        A("s_mov_b64 exec, 0x1041")
        A(f"buffer_store_dwordx4 v[24:27], v22, s[32:35], 0 offen {SC}")
        A("s_mov_b64 exec, 0xffff")
    else:
        A("s_mov_b64 exec, 0xffff")
        A(f"buffer_store_dwordx2 v[20:21], v22, s[32:35], 0 offen {SC}")
    A(f"buffer_store_dword v20, v23, s[36:39], 0 offen {SC}")
    A("s_mov_b64 exec, -1")
    A(f"{L}:")
    stamp(A, 4)
    def mod_addr():
        if MP:
            A("v_min_u32 v246, 239, v0")
            A("v_lshlrev_b32 v245, 4, v246")
            A("v_mul_u32_u24 v247, 171, v246")
            A("v_lshrrev_b32 v247, 9, v247")
            A("v_mul_u32_u24 v244, 3, v247")
            A("v_sub_u32 v244, v246, v244")
            A("v_mul_u32_u24 v246, 24, v244")
            A("v_lshl_add_u32 v246, v247, 6, v246")
            A(f"v_add_u32 v246, {L_MODV}, v246")
            A("v_cmp_gt_u32 s[82:83], 2, v244")
        else:
            A("v_lshlrev_b32 v245, 4, v0")
            A("v_add_u32 v246, 8192, v245")
            A("v_add_u32 v247, 4096, v245")
            A("v_cmp_gt_u32 vcc, 128, v0")
            A("v_cndmask_b32 v246, v247, v246, vcc")
        A(f"v_and_b32 v247, {N_FILLER - 1}, v0")
        A(f"v_add_u32 v247, {256 - N_FILLER}, v247")
        A(f"v_lshlrev_b32 v247, {FSH}, v247")
    def mod_loads(sd=32, so="s26"):
        A(f"buffer_load_dwordx4 v[232:235], v245, s[{sd}:{sd+3}], 0 offen {LSC}")
        if MP: return
        A(f"buffer_load_dwordx4 v[236:239], v245, s[{sd}:{sd+3}], {so} offen {LSC}")
        A(f"buffer_load_dwordx4 v[240:243], v246, s[{sd}:{sd+3}], 0 offen {LSC}")
    def mod_test():
        if MP:
            A(f"v_cmp_ne_u32 vcc, s{STAG}, v235")
            return
        A("v_min3_u32 v4, v233, v235, v237")
        A("v_max3_u32 v5, v233, v235, v237")
        A("v_min3_u32 v4, v4, v239, v241")
        A("v_max3_u32 v5, v5, v239, v241")
        A("v_min_u32 v4, v4, v243")
        A("v_max_u32 v5, v5, v243")
        A("v_cmp_ne_u32 vcc, v4, v5")
        A(f"v_cmp_ne_u32 s[50:51], s{STAG}, v5")
        A("s_or_b64 vcc, vcc, s[50:51]")
    ME = int(OPT.get("me", 0))
    Lmod = C.lab("modok")
    def mod_early():
        mod_addr()
        srd(A, 44, 4, WS_MODG, 80*128)
        A("s_movk_i32 s43, 4096")
        mod_loads(44, "s43")
        for _ in range(3): vm.issue("mo")
    if ME == 1: mod_early()
    if XO < 7: ln_stats()
    stamp(A, 5)
    if ME == 2: mod_early()
    def wt_transpose():
        vm.wait(["wt"])
        for m in range(2):
            for cc in range(12):
                op = "ds_write_b16_d16_hi" if cc & 1 else "ds_write_b16"
                A(f"{op} v229, v{216+6*m+cc//2} offset:{cc*128 + 2*m}")
        A("s_waitcnt lgkmcnt(0)")
        for j in range(3):
            A(f"ds_read_b128 v[{216+4*j}:{219+4*j}], v230 offset:{1024*j}")
        A(f"v_add_u32 v229, {hex(OOB)}, v231")
        A("v_cmp_gt_u32 vcc, 48, v1")
        A("v_cndmask_b32 v229, v229, v231, vcc")
    if not WL: wt_transpose()
    for q in range(4): A(f"v_accvgpr_write_b32 a{12+q}, -1")
    A("s_waitcnt lgkmcnt(0)")
    if ME:
        if not CUM: A("s_mov_b32 s53, 0")
        stamp(A, 6)
        A("s_waitcnt vmcnt(0)")
        mod_test()
        A(f"s_cbranch_vccz {Lmod}")
    A(f"s_branch {Ljoin}")
    A(f"{Lfill}:")
    q_main = vm.q; vm.q = []
    srd(A, 32, 6, 0, SZ_X)
    for i in range(5):
        A(f"buffer_load_dwordx2 v[{8+2*i}:{9+2*i}], v58, s[32:35], 0 offen offset:{256*i}"); vm.issue("x")
    stamp(A, 0)
    A(f"s_load_dword s{STAG}, s[4:5], {hex(WS_EPOCH)}")
    A(f"s_sub_u32 s26, s2, {256 - N_FILLER}")
    A("s_lshl_b32 s26, s26, 12")
    A("v_lshl_add_u32 v59, v0, 4, s26")
    for q in range(4): A(f"v_accvgpr_write_b32 a{12+q}, -1")
    srd(A, 40, 4, WS_Y1, SZ_Y1N)
    fills = []
    for sd, sz in ((40, SZ_Y1N),):
        for i in range(-(-sz // (N_FILLER*4096))):
            def f(sd=sd, i=i):
                A(f"s_mov_b32 s81, {i*N_FILLER*4096}")
                A(f"buffer_store_dwordx4 a[12:15], v59, s[{sd}:{sd+3}], s81 offen {SC}"); vm.issue("fill")
            fills.append(f)
    def pf(k=1):
        for _ in range(k):
            if fills: fills.pop(0)()
    pf(4)
    early_fills()
    stamp(A, 1)
    A("s_waitcnt lgkmcnt(0)")
    A(f"s_add_u32 s{STAG}, s{STAG}, {hex(TAGSTEP)}")
    srd(A, 12, 4, WS_FLG, SZ_FLG)
    a_consts(C, pf)
    stamp(A, 2)
    vm.wait(["x"])
    unpack_bf16(A, 60, 8, 10)
    pf(2)
    layernorm(A, 60, 20, 212, 213)
    pf(99)
    A(f"v_mov_b32 v231, {hex(OOB)}")
    if WL:
        A(f"v_mov_b32 v228, {hex(OOB)}")
        A("s_mul_i32 s51, s3, 2816")
        A(f"s_add_u32 s51, s51, {L_WT}")
        A("v_lshl_add_u32 v229, v1, 4, s51")
        A("v_mov_b32 v230, v229")
    else:
        A(f"v_mov_b32 v229, {hex(OOB)}")
    stamp(A, 5)
    A("s_waitcnt vmcnt(0)")
    A("s_barrier")
    flag_store(C, FA)
    A(f"{Ljoin}:")
    vm.q = []
    stamp(A, 6)
    mod_addr()
    srd(A, 32, 4, WS_MODG, 80*128)
    A("s_movk_i32 s26, 4096")
    retry_loop(C, mod_loads, mod_test)
    A(f"{Lmod}:")
    cnt(A, 0)
    if MP:
        for q in range(3):
            A(f"v_lshlrev_b32 v{236+2*q}, 16, v{232+q}")
            A(f"v_and_b32 v{237+2*q}, 0xffff0000, v{232+q}")
        A("ds_write2_b64 v246, v[236:237], v[238:239] offset0:0 offset1:1")
        A("s_mov_b64 exec, s[82:83]")
        A("ds_write_b64 v246, v[240:241] offset:16")
        A("s_mov_b64 exec, -1")
    else:
        A("v_lshrrev_b32 v4, 1, v245")
        A("v_lshrrev_b32 v5, 1, v246")
        A(f"v_add_u32 v4, {L_MODV}, v4")
        A(f"v_add_u32 v5, {L_MODV}, v5")
        A("v_add_u32 v6, 2048, v4")
        A("ds_write2_b32 v4, v232, v234 offset0:0 offset1:1")
        A("ds_write2_b32 v6, v236, v238 offset0:0 offset1:1")
        A("ds_write2_b32 v5, v240, v242 offset0:0 offset1:1")
    fa_ld(C); vm.issue("fa")
    if WL: wt_loads(late=True)
    srd(A, 28, 4, WS_WT, SZ_COL)
    def wt_store(j):
        if j: A(f"s_mov_b32 s81, {j*8*8192}")
        A(f"buffer_store_dwordx4 v[{216+4*j}:{219+4*j}], v{229 if j == 2 else 231}, s[28:31], {'s81' if j else '0'} offen {SC}"); vm.issue("wts")
    C.wt_ops = [lambda j=j: wt_store(j) for j in range(3)]
    C.wt_late = None
    if WL:
        ops, C.wt_ops = C.wt_ops, []
        def wt_late():
            wt_transpose()
            for j, f in enumerate(ops):
                A(f"s_waitcnt lgkmcnt({2-j})")
                f()
        C.wt_late = wt_late
    if OPT.get("wts", "a") == "now":
        while C.wt_ops: C.wt_ops.pop(0)()
    if True:
        A("s_lshl_b32 s26, s2, 12")
        A("v_lshl_add_u32 v245, v0, 4, s26")
        for off, sz in ((WS_Z, SZ_COL),) + (((WS_H2P, SZ_H2P),) if OPT.get("h2f", "a2") == "a2" else ()):
            if ZF & (1 if off == WS_Z else 2): continue
            srd(A, 32, 4, off, sz)
            for i in range(3):
                if i: A(f"s_mov_b32 s26, {i << 20}")
                A(f"buffer_store_dwordx4 a[12:15], v245, s[32:35], {'s26' if i else '0'} offen {SC}"); vm.issue("wts")
    A("s_waitcnt lgkmcnt(0)")
    A("s_barrier")
    stamp(A, 7)

def fa_ld(C):
    C.A(f"buffer_load_dword v244, v247, s[12:15], 0 offen offset:{FA} {LSC}")
def flag_check(C, name, reg, ld):
    A = C.A; L = C.lab(name)
    A(f"v_cmp_ne_u32 vcc, s{STAG}, v{reg}")
    A(f"s_cbranch_vccnz {L}")
    A(f"{L}_b:")
    def tail():
        A(f"{L}:")
        q = C.vm.q
        retry_loop(C, ld, lambda: A(f"v_cmp_ne_u32 vcc, s{STAG}, v{reg}"))
        C.vm.q = q
        A(f"s_branch {L}_b")
    C.tail.append(tail)

def phase_a(C):
    A = C.A; vm = C.vm
    A(f"v_lshlrev_b32 v6, 4, v2")
    A(f"v_add_u32 v6, {L_MODV}, v6")
    for i in range(5):
        A(f"ds_read_b128 v[{20+4*i}:{23+4*i}], v6 offset:{2560 + 512*i}")
    for i in range(5):
        A(f"ds_read_b128 v[{40+4*i}:{43+4*i}], v6 offset:{512*i}")
    A(f"s_mul_i32 s26, s3, {2*PITCH2}")
    A(f"v_mul_u32_u24 v4, {PITCH2}, v3")
    A("v_lshl_add_u32 v4, v2, 3, v4")
    A("v_add_u32 v4, s26, v4")
    A("v_bfe_u32 v5, v1, 2, 2")
    A("v_lshl_add_u32 v5, v3, 3, v5")
    A("v_mul_u32_u24 v5, 40, v5")
    A("v_bfe_u32 v6, v1, 4, 1")
    A("v_lshl_add_u32 v5, v6, 5, v5")
    A("v_and_b32 v6, 3, v1")
    A("v_lshl_add_u32 v5, v6, 3, v5")
    A("v_add_u32 v5, s26, v5")
    for i in range(5):
        A(f"s_waitcnt lgkmcnt({9-i})")
        for k in (0, 2):
            q = 4*i+k
            A(f"v_pk_mul_f32 {pr(20+q)}, {pr(20+q)}, {pr(212)} op_sel_hi:[1,0]")
    for i in range(5):
        A(f"s_waitcnt lgkmcnt({4-i})")
        for k in (0, 2):
            q = 4*i+k
            A(f"v_pk_fma_f32 {pr(60+q)}, {pr(60+q)}, {pr(20+q)}, {pr(40+q)}")
        for k in (0, 1):
            q = 2*i+k
            A(f"v_cvt_pk_bf16_f32 v{8+q}, v{60+2*q}, v{61+2*q}")
        A(f"ds_write_b64 v4, v[{8+2*i}:{9+2*i}] offset:{256*i}")
    def wt1():
        if C.wt_ops: C.wt_ops.pop(0)()
    wt1()
    A("v_mov_b32 v18, 0")
    A("v_mov_b32 v19, 0")
    A("v_cmp_eq_u32 vcc, 0, v2")
    A("s_and_saveexec_b64 s[26:27], vcc")
    A("ds_write_b64 v4, v[18:19] offset:1280")
    A("s_mov_b64 exec, s[26:27]")
    A("s_waitcnt lgkmcnt(0)")
    for row in range(2):
        for mh in range(2):
            for j in range(2):
                d = 132 + 8*row + 4*mh + 2*j
                A(f"ds_read_b64_tr_b16 v[{d}:{d+1}], v5 offset:{row*PITCH2 + 640*mh + 160*j}")
    T = [[148, 164], [180, 196]]
    A("s_waitcnt lgkmcnt(0)")
    for mh in range(2):
        for row in range(2):
            a = 132 + 8*row + 4*mh
            for ri in range(2):
                mf32(A, T[row][ri], a, (80 if ri == 0 else 88) + 4*mh, mh == 0)
    wt1()
    stamp(A, 8)
    A("v_bfe_u32 v4, v2, 3, 1")
    A("v_lshlrev_b32 v5, 5, v2")
    A("v_lshl_add_u32 v5, v3, 12, v5")
    A("s_lshl_b32 s26, s3, 2")
    A(f"s_add_u32 s26, s26, {L_TR}")
    A("v_add_u32 v5, s26, v5")
    A("v_lshl_add_u32 v4, v4, 4, v5")
    A("v_bfe_u32 v6, v2, 3, 1")
    A("v_xor_b32 v6, 1, v6")
    A("v_lshl_add_u32 v5, v6, 4, v5")
    B = [20, 32]
    TA, TB = 60, 62
    for row in range(2):
        tr, ti = T[row]
        b = B[row]
        for r in range(0, 12, 2):
            c, s_ = 96+r, 108+r
            A(f"v_pk_mul_f32 {pr(TA)}, {pr(tr+r)}, {pr(c)}")
            A(f"v_pk_mul_f32 {pr(TB)}, {pr(ti+r)}, {pr(c)}")
            A(f"v_pk_fma_f32 {pr(TA)}, {pr(ti+r)}, {pr(s_)}, {pr(TA)}")
            A(f"v_pk_fma_f32 {pr(TB)}, {pr(tr+r)}, {pr(s_)}, {pr(TB)} neg_lo:[1,0,0] neg_hi:[1,0,0]")
            dr = b + r//2 if r < 8 else b + 8 + (r-8)//2
            di = b + 4 + r//2 if r < 8 else b + 10 + (r-8)//2
            A(f"v_cvt_pk_bf16_f32 v{dr}, v{TA}, v{TA+1}")
            A(f"v_cvt_pk_bf16_f32 v{di}, v{TB}, v{TB+1}")
    wt1()
    O = [148, 180]
    for st in range(3):
        for row in range(2):
            mf32(A, O[row], 120 + 4*st, B[row] + 4*st, st == 0)
    stamp(A, 9)
    A("v_bfe_u32 v6, v0, 4, 1")
    A("v_xor_b32 v6, v0, v6")
    A("v_lshlrev_b32 v6, 4, v6")
    A(f"v_add_u32 v6, {L_TR}, v6")
    A("v_lshl_add_u32 v7, v0, 4, s80")
    A(f"v_add_u32 v44, {hex(OOB)}, v7")
    A("s_movk_i32 s26, 136")
    A("v_cmp_gt_u32 vcc, s26, v0")
    A("v_cndmask_b32 v44, v44, v7, vcc")
    srd(A, 32, 4, WS_Y1, SZ_Y1N)
    for ri in range(2):
        for r in range(7):
            A(f"v_cvt_pk_bf16_f32 v{60+7*ri+r}, v{O[0]+8*ri+r}, v{O[1]+8*ri+r}")
            A(f"ds_write_b32 v{4+ri}, v{60+7*ri+r} offset:{(8*(r//4)+r%4)*1024}")
    vm.wait(["fa"])
    flag_check(C, "fa", 244, lambda: fa_ld(C))
    A("s_movk_i32 s26, 4096")
    A("s_movk_i32 s27, 8192")
    A("s_waitcnt lgkmcnt(0)")
    A("s_barrier")
    for n in range(3):
        A(f"ds_read_b128 v[{8+4*n}:{11+4*n}], v6 offset:{4096*n}")
    for n in range(3):
        A(f"s_waitcnt lgkmcnt({2-n})")
        A(f"buffer_store_dwordx4 v[{8+4*n}:{11+4*n}], v{44 if n == 2 else 7}, s[32:35], {['0','s26','s27'][n]} offen {SC}"); vm.issue("y1")
    stamp(A, 10)
    if C.wt_late: C.wt_late()

NU = 5
L_PREP2 = L_PREP
PD = 40
G_S = [16, 17, 18, 19, 28]
DO_S = [29, 30, 31, 81, 82]
def repack(C):
    A = C.A; vm = C.vm
    A("v_lshrrev_b32 v4, 3, v1")
    A("v_and_b32 v5, 7, v1")
    A("v_bfe_u32 v6, v1, 4, 1")
    A("v_lshrrev_b32 v7, 5, v1")
    A("v_lshlrev_b32 v6, 1, v6")
    A("v_lshl_or_b32 v6, v7, 2, v6")
    A("v_xor_b32 v7, 4, v6")
    A("v_xor_b32 v6, v5, v6")
    A("v_xor_b32 v7, v5, v7")
    A("s_mul_i32 s83, s3, 20480")
    for unit in range(NU):
        B = 36
        prep_params(C, unit, B)
        A(f"s_cmp_eq_u32 s{B}, 0")
        A("s_cselect_b32 s32, s20, s22")
        A("s_cselect_b32 s33, s21, s23")
        A(f"s_cmp_eq_u32 s{B}, 2")
        A("s_cselect_b32 s32, s24, s32")
        A("s_cselect_b32 s33, s25, s33")
        A(f"s_mov_b32 s34, {640*1728*2}")
        A("s_mov_b32 s35, 0x20000")
        A(f"v_mul_lo_u32 v59, v4, s{B+1}")
        A(f"v_lshl_add_u32 v232, v6, 4, v59")
        A(f"v_lshl_add_u32 v233, v7, 4, v59")
        A(f"s_lshl_b32 s27, s{B+1}, 3")
        if OPT.get("xp") in ("nd", "nb"): A(f"s_mov_b32 s{B+2}, {hex(OOB)}")
        for i in range(4):
            A(f"s_add_u32 m0, s83, {L_PREP2 + 4096*unit + 1024*i}")
            A(f"buffer_load_dwordx4 v{232+(i&1)}, s[32:35], s{B+2} offen lds"); vm.issue(("P", unit))
            if i < 3: A(f"s_add_u32 s{B+2}, s{B+2}, s27")
        A(f"s_mov_b32 s{G_S[unit]}, s{B}")
        A(f"s_mov_b32 s{DO_S[unit]}, s{B+3}")
        if OPT.get("xp") in ("ns", "nb"): A(f"s_mov_b32 s{DO_S[unit]}, {hex(OOB)}")
    for base, ga, ja in ((8, 8, 4), (16, 4, 16)):
        A("v_lshrrev_b32 v24, 4, v1")
        A("v_bfe_u32 v25, v1, 2, 2")
        A(f"v_mul_u32_u24 v24, {ga}, v24")
        A("v_add_u32 v24, v24, v25")
        A(f"v_add_u32 v25, {ja}, v24")
        A("v_and_b32 v26, 1, v1")
        A("v_bfe_u32 v27, v1, 1, 1")
        for j, rr in enumerate([24, 25]):
            A(f"v_bfe_u32 v28, v{rr}, 1, 1")
            A(f"v_lshrrev_b32 v29, 2, v{rr}")
            A(f"v_lshrrev_b32 v30, 3, v{rr}")
            A(f"v_xor_b32 v29, v29, v30")
            A(f"v_and_b32 v29, 1, v29")
            A(f"v_lshl_or_b32 v28, v29, 1, v28")
            A(f"v_lshlrev_b32 v28, 1, v28")
            A(f"v_xor_b32 v28, v28, v27")
            A(f"v_lshlrev_b32 v31, 7, v{rr}")
            A(f"v_lshl_add_u32 v31, v26, 3, v31")
            A(f"v_add_u32 v31, s83, v31")
            for tile in range(4):
                A(f"v_xor_b32 v29, {2*tile}, v28")
                A(f"v_lshl_add_u32 v{base+4*j+tile}, v29, 4, v31")
    A("v_lshlrev_b32 v24, 4, v1")
    if OPT.get("yg", "1") == "1":
        srd(A, 44, 4, WS_Y1, SZ_Y1N)
        A(f"v_mul_u32_u24 v25, {BLK}, v0")
        retry_loop(C, lambda: A(f"buffer_load_dword v26, v25, s[44:47], 0 offen offset:{int(OPT.get('ygo', 0))} {LSC}"),
                   lambda: A("v_cmp_eq_u32 vcc, -1, v26"))
    for unit in range(NU):
        g, do = f"s{G_S[unit]}", f"s{DO_S[unit]}"
        L = C.lab("rp")
        A(f"s_cmp_eq_u32 {g}, 2")
        csel(A, "s26", hex(WS_W2), hex(WS_W13))
        csel(A, "s34", hex(SZ_W2P), hex(SZ_W13))
        csel(A, "s27", "1024", "2048")
        A("s_add_u32 s32, s4, s26")
        A("s_addc_u32 s33, s5, 0")
        vm.wait([("P", unit)])
        A(f"s_cmp_eq_u32 {g}, 2")
        A(f"s_cbranch_scc1 {L}")
        for var, base in enumerate((8, 16)):
            if var: A(f"{L}:")
            for tile in range(4):
                for j in range(2):
                    d = PD + 16*unit + 4*tile + 2*j
                    A(f"ds_read_b64_tr_b16 v[{d}:{d+1}], v{base+4*j+tile} offset:{L_PREP2 + 4096*unit}")
            if var == 0: A(f"s_branch {L}_e")
        A(f"{L}_e:")
        for tile in range(4):
            d = PD + 16*unit + 4*tile
            A(f"s_waitcnt lgkmcnt({6-2*tile})")
            A(f"buffer_store_dwordx4 v[{d}:{d+3}], v24, s[32:35], {do} offen {SC}"); vm.issue("ps")
            if tile < 3: A(f"s_add_u32 {do}, {do}, s27")

def cis_table(C, T, out, scale=None, fill=None):
    A = C.A
    WC, WS, BP, ANG, th, k0 = T, T+4, T+8, T+12, T+22, T+23
    A(f"v_add_f32 v{ANG}, v{th}, v{th}")
    A(f"v_mul_f32 v{ANG+1}, {fk(3.0)}, v{th}")
    for j, a in ((1, th), (2, ANG), (3, ANG+1)):
        A(f"v_cos_f32 v{WC+j}, v{a}")
        A(f"v_sin_f32 v{WS+j}, v{a}")
    def base(m):
        b = BP + 2*(m & 1); a = k0
        if m:
            a = ANG + (m & 1)
            A(f"v_fmamk_f32 v{a}, v{th}, {fk(8.0*m)}, v{k0}")
        A(f"v_cos_f32 v{b}, v{a}")
        A(f"v_sin_f32 v{b+1}, v{a}")
        if scale: A(f"v_pk_mul_f32 {pr(b)}, {pr(b)}, {scale} op_sel_hi:[1,0]")
    base(0)
    for m in range(4):
        if m < 3: base(m+1)
        b = BP + 2*(m & 1)
        for jp in range(2):
            r = 4*m + 2*jp
            dc, ds = out(r, None)
            A(f"v_pk_mul_f32 {pr(dc)}, {pr(WC+2*jp)}, {pr(b)} op_sel_hi:[1,0]")
            A(f"v_pk_mul_f32 {pr(ds)}, {pr(WC+2*jp)}, {pr(b)} op_sel:[0,1] op_sel_hi:[1,1]")
            A(f"v_pk_fma_f32 {pr(dc)}, {pr(WS+2*jp)}, {pr(b)}, {pr(dc)} op_sel:[0,1,0] op_sel_hi:[1,1,1] neg_lo:[1,0,0] neg_hi:[1,0,0]")
            A(f"v_pk_fma_f32 {pr(ds)}, {pr(WS+2*jp)}, {pr(b)}, {pr(ds)} op_sel:[0,0,0] op_sel_hi:[1,0,1]")
            out(r, (dc, ds))
        if fill: fill()

NS = int(OPT.get("ns", 4))
NS0 = 4
SLOT = 28*1024
C_LDS = NS0*SLOT
ZP = 1552
Z_OFF = C_LDS
ST_OFF = C_LDS + 8*ZP
STP = 1296
ST_H = ST_OFF + 8*STP
SCRAP = ST_H + 8*STP
M_OFF = SCRAP + 1024
LDS_TOTAL = M_OFF + 8192
B_YST = C_LDS
B_EX1 = C_LDS + 16384
assert B_EX1 + 16384 <= M_OFF

DT = OPT.get("dt", "1") == "1"
def ring_buf(s_):
    if DT: return s_ % 4 if s_ < 9 else 4
    return s_ % NS

def early_setup(C):
    A = C.A
    A("s_lshl_b32 s26, s48, 3")
    A("s_and_b32 s27, s49, 7")
    A("s_add_u32 s26, s26, s27")
    A("s_lshr_b32 s27, s49, 3")
    A("s_lshl_b32 s27, s27, 3")
    A("s_lshl_b32 s50, s3, 1")
    A("s_add_u32 s27, s27, s50")
    A("s_lshl_b32 s27, s27, 6")
    A("s_add_u32 s27, s27, s26")
    A("s_mul_i32 s27, s27, 1280")
    A("v_mul_u32_u24 v249, 40, v2")
    A("v_lshl_add_u32 v249, v3, 3, v249")
    A("v_add_u32 v249, s27, v249")
def hh_setup(C):
    A = C.A
    A("s_lshl_b32 s26, s40, 3")
    A("s_lshl_b32 s27, s3, 1")
    A("s_add_u32 s26, s26, s27")
    A("s_mul_i32 s26, s26, 55296")
    A("s_lshl_b32 s27, s41, 9")
    A("v_lshl_add_u32 v249, v1, 4, s27")
    A(f"v_mov_b32 v241, {hex(OOB)}")
    for i, r in ((3, 254), (2, 251), (1, 250), (0, 249)):
        A("s_mov_b32 s50, 55296")
        if i: A(f"v_add_u32 v{r}, {1024*i}, v249")
        A(f"v_cmp_gt_u32 vcc, s50, v{r}")
        A(f"v_add_u32 v{r}, s26, v{r}")
        if i == 3:
            A("v_cmp_gt_u32 s[50:51], 32, v1")
            A("s_and_b64 vcc, vcc, s[50:51]")
        A(f"v_cndmask_b32 v{r}, v241, v{r}, vcc")
    for q in range(4): A(f"v_accvgpr_write_b32 a{252+q}, -1")
def x_ops(C):
    A = C.A; ops = [lambda: srd(A, 28, 6, 0, SZ_X), lambda: A("s_mov_b32 s81, 81920")]
    for r in range(2):
        for q in range(3):
            def f(r=r, q=q):
                d = 6*r + 2*q
                A(f"buffer_load_dwordx2 a[{d}:{d+1}], v249, s[28:31], {'s81' if r else '0'} offen offset:{16*q}")
                C.vm.issue("X")
            ops.append(f)
    return ops
def hhfill_ops(C):
    A = C.A; ops = [lambda: A("s_mov_b32 s82, 55296")]
    for rt in range(2):
        for r in (249, 250, 251, 254):
            def f(r=r, rt=rt):
                A(f"buffer_store_dwordx4 a[252:255], v{r}, s[24:27], {'s82' if rt else '0'} offen {SC}")
                C.vm.issue("HF")
            f.mem = True
            ops.append(f)
    return ops
def m_ops(C):
    A = C.A; ops = []
    def m0():
        srd(A, 44, 4, WS_MOD, SZ_MOD)
        A("v_lshlrev_b32 v255, 4, v1")
        A("s_lshl_b32 s83, s3, 11")
    ops.append(m0)
    for i in range(2):
        def f(i=i):
            A(f"s_add_u32 m0, s83, {M_OFF + 1024*i}")
            A(f"s_add_u32 s43, s83, {5120 + 1024*i}")
            A(f"buffer_load_dwordx4 v255, s[44:47], s43 offen {LSC} lds")
            C.vm.issue("M")
        ops.append(f)
    return ops
def fw_ld(C):
    A = C.A
    A(f"s_mov_b32 s26, {FW}")
    A(f"buffer_load_dword v253, v252, s[12:15], s26 offen {LSC}")

def phase_b(C):
    A = C.A; vm = C.vm
    Lskip, Ldone = C.lab("b_skip"), C.lab("b_done")
    early_setup(C)
    A(f"v_lshlrev_b32 v252, {FSH}, v0")
    A("s_cmp_gt_u32 s2, 160")
    A(f"s_cbranch_scc1 {Lskip}")
    q_skip = list(vm.q)
    A("s_mul_i32 s20, s48, 20")
    A("s_add_u32 s20, s20, s49")
    A("s_cmp_eq_u32 s2, 160")
    A("s_cselect_b32 s20, 160, s20")
    A("s_lshl_b32 s21, s20, 1")
    A("s_lshr_b32 s22, s3, 1")
    A("s_add_u32 s21, s21, s22")
    A("s_and_b32 s23, s3, 1")
    A("s_lshl_b32 s24, s21, 13")
    A("s_lshl_b32 s25, s23, 12")
    A("s_add_u32 s24, s24, s25")
    srd(A, 36, 4, WS_Z, SZ_COL)
    pend = []
    def fill(k=1):
        for _ in range(k):
            if pend: pend.pop(0)()
    C32, S32, N32 = 40, 48, 56
    C64, S64 = 64, 80
    TWc, TWs = 96, 112
    AR, AI = 128, 144
    Pr, Pi, Pn = 160, 168, 176
    Or, Oi, On = 184, 192, 200
    T2c, T2s = 208, 224
    t0, t1, t2, t3, t4, t5 = 240, 241, 242, 243, 244, 245
    hf, pf, af = 246, 247, 5
    T = 176; TH, K0 = T+22, T+23
    A(f"v_cvt_f32_u32 v{hf}, v3")
    A(f"v_cvt_f32_u32 v{pf}, v2")
    A(f"v_cvt_f32_u32 v{af}, s23")
    A(f"v_mov_b32 v{T}, 1.0")
    A(f"v_mov_b32 v{T+4}, 0")
    def f32out(c, s_): return lambda r, p: (c+r, s_+r)
    def bfout(c, s_, n=None):
        def out(r, p):
            dc = T + 14 + 4*((r >> 1) & 1)
            if p is None: return (dc, dc+2)
            A(f"v_cvt_pk_bf16_f32 v{c + r//2}, v{dc}, v{dc+1}")
            A(f"v_cvt_pk_bf16_f32 v{s_ + r//2}, v{dc+2}, v{dc+3}")
            if n is not None: A(f"v_xor_b32 v{n + r//2}, 0x80008000, v{s_ + r//2}")
        return out
    A("v_lshrrev_b32 v4, 2, v1")
    A("s_lshl_b32 s26, s3, 6")
    A("v_add_u32 v4, s26, v4")
    A("v_and_b32 v6, 3, v1")
    A(f"v_mul_u32_u24 v8, {BLK}, v4")
    A("v_lshl_add_u32 v8, v6, 4, v8")
    A("s_lshl_b32 s26, s20, 6")
    A("v_add_u32 v8, s26, v8")
    A("v_bfe_u32 v7, v4, 1, 2")
    A("v_xor_b32 v7, v7, v6")
    A("v_lshlrev_b32 v9, 6, v4")
    A("v_lshl_add_u32 v9, v7, 4, v9")
    A(f"v_add_u32 v9, {B_YST}, v9")
    A("s_lshl_b32 s26, s23, 5")
    A("v_lshl_add_u32 v11, v3, 6, v2")
    A("v_add_u32 v11, s26, v11")
    A("v_lshlrev_b32 v11, 6, v11")
    A(f"v_add_u32 v11, {B_YST}, v11")
    A("v_bfe_u32 v7, v2, 1, 2")
    A("s_and_b32 s26, s3, 2")
    A("v_xor_b32 v7, s26, v7")
    A("v_xor_b32 v12, 1, v7")
    A("v_lshl_add_u32 v12, v12, 4, v11")
    A("v_lshl_add_u32 v11, v7, 4, v11")
    srd(A, 16, 4, WS_Y1, SZ_Y1N)
    srd(A, 32, 4, WS_WT, SZ_COL)
    YS = [24, 184]; YF = [253, 254]
    def y_loads(k):
        for i in range(4):
            if i: A(f"s_mov_b32 s26, {16*i*BLK}")
            A(f"buffer_load_dwordx4 v[{YS[k]+4*i}:{YS[k]+4*i+3}], v8, s[16:19], {'s26' if i else '0'} offen {LSC}")
        A(f"s_mov_b32 s26, {FW}")
        A(f"buffer_load_dword v{YF[k]}, v252, s[12:15], s26 offen {LSC}")
    def y_test(k):
        fill_test(A, range(YS[k], YS[k]+16), 255)
        if OPT.get("xp") == "nofw": return
        A(f"v_cmp_ne_u32 s[50:51], s{STAG}, v{YF[k]}")
        A("s_or_b64 vcc, vcc, s[50:51]")
    FWP = int(OPT.get("fwp", 0))
    def raise_fw():
        vm.wait(["wts"])
        A("s_barrier")
        flag_store(C, FW, 13, 14)
    if FWP == 0: raise_fw()
    A(f"v_mul_f32 v{TH}, {flit(1/32)}, v{pf}")
    A(f"v_mul_f32 v{K0}, v{TH}, v{hf}")
    A(f"v_mul_f32 v{K0}, 4.0, v{K0}")
    cis_table(C, T, bfout(C32, S32, N32), fill=fill)
    if FWP == 1: raise_fw()
    A(f"v_mul_f32 v6, {flit(8.0)}, v{af}")
    A(f"v_add_f32 v6, v6, v{hf}")
    A(f"v_mul_f32 v6, 4.0, v6")
    A(f"v_mul_f32 v{TH}, {flit(1/2048)}, v{pf}")
    A(f"v_mul_f32 v{K0}, v6, v{TH}")
    cis_table(C, T, f32out(TWc, TWs), fill=fill)
    if FWP == 2: raise_fw()
    YE = int(OPT.get("ye", 1))
    if YE == 2: y_loads(0)
    A(f"v_mul_f32 v7, {flit(32.0)}, v{af}")
    A(f"v_add_f32 v{t5}, v7, v{pf}")
    A(f"v_mul_f32 v{TH}, {flit(1/64)}, v{t5}")
    A(f"v_mul_f32 v{K0}, v6, v{TH}")
    cis_table(C, T, bfout(C64, S64), fill=fill)
    A("v_and_b32 v7, 1, v2")
    A("v_mul_u32_u24 v7, 0x8000, v7")
    A("v_lshl_or_b32 v7, v7, 16, v7")
    for q in range(8):
        A(f"v_xor_b32 v{C64+8+q}, v7, v{C64+q}")
        A(f"v_xor_b32 v{S64+8+q}, v7, v{S64+q}")
    P2 = OPT.get("p2", "0") == "1"
    if FWP == 3: raise_fw()
    if P2 or YE == 1: y_loads(0)
    A("s_cmp_eq_u32 s21, 0")
    A("s_cselect_b32 s26, 1, 0")
    A("s_cmp_eq_u32 s21, 320")
    A("s_cselect_b32 s26, 1, s26")
    A("s_cmp_eq_u32 s26, 1")
    csel(A, "s26", hex(f32bits(1.0/(2048*640))), hex(f32bits(2.0/(2048*640))))
    A(f"v_mul_f32 v{TH}, {flit(1/2048)}, v{t5}")
    A(f"v_mul_f32 v{K0}, v{TH}, v{hf}")
    A(f"v_mul_f32 v{K0}, 4.0, v{K0}")
    cis_table(C, T, f32out(T2c, T2s), scale="s[26:27]", fill=fill)
    fill(len(pend))
    stamp(A, 11)
    def y_use(k):
        for i in range(4):
            A(f"ds_write_b128 v9, v[{YS[k]+4*i}:{YS[k]+4*i+3}] offset:{1024*i}")
    if P2:
        y_loads(1)
        poll2(C, [lambda: y_loads(0), lambda: y_loads(1)], [lambda: y_test(0), lambda: y_test(1)], 5, y_use)
    elif YE:
        Lp = C.lab("yp")
        if not CUM: A("s_mov_b32 s53, 0")
        A("s_waitcnt vmcnt(0)")
        y_test(0)
        A(f"s_cbranch_vccz {Lp}")
        retry_loop(C, lambda: y_loads(0), lambda: y_test(0))
        A(f"{Lp}:")
        vm.q = []
        cnt(A, 1)
        y_use(0)
    else:
        retry_loop(C, lambda: y_loads(1), lambda: y_test(1))
        cnt(A, 1)
        y_use(1)
    if P2: A("s_waitcnt lgkmcnt(0)")
    A("v_lshlrev_b32 v4, 4, v1")
    A("v_add_u32 v4, s24, v4")
    def wt_ld(j):
        A(f"buffer_load_dwordx4 v[{24+4*j}:{27+4*j}], v4, s[32:35], 0 offen offset:{j*1024} {LSC}"); vm.issue("wt")
    assert not pend
    if OPT.get("wtb") == "0":
        for j in range(4): wt_ld(j)
    else:
        pend.extend([lambda j=j: wt_ld(j) for j in range(4)])
    pend.extend(x_ops(C))
    pend.extend(m_ops(C))
    A("s_waitcnt lgkmcnt(0)")
    A("s_barrier")
    stamp(A, 12)
    A("v_mov_b32 v6, v11")
    A("v_mov_b32 v7, v12")
    for t in range(2):
        for ri in range(2):
            d = 8 + 8*ri + 4*t
            A(f"ds_read_b128 v[{d}:{d+3}], v{6+ri} offset:{t*8192}")
    Xr, Xi = 8, 16
    def mf(d, a, b, first, k=0):
        mf32(A, d, a, b, first); fill(k)
    fill(3)
    for t in range(2):
        A(f"s_waitcnt lgkmcnt({2-2*t})")
        mf(AR, Xr+4*t, C32+4*t, t == 0, 1)
        mf(AI, Xi+4*t, C32+4*t, t == 0, 1)
        mf(AR, Xi+4*t, S32+4*t, False, 1)
        mf(AI, Xr+4*t, N32+4*t, False)
    TA, TB = t0, t2
    def cmul_pack(cr, ci, conj_tw, k=0):
        n1 = "" if not conj_tw else " neg_lo:[1,0,0] neg_hi:[1,0,0]"
        n2 = " neg_lo:[1,0,0] neg_hi:[1,0,0]" if not conj_tw else ""
        for r in range(0, 16, 2):
            A(f"v_pk_mul_f32 {pr(TA)}, {pr(AR+r)}, {pr(cr+r)}")
            A(f"v_pk_mul_f32 {pr(TB)}, {pr(AI+r)}, {pr(cr+r)}")
            A(f"v_pk_fma_f32 {pr(TA)}, {pr(AI+r)}, {pr(ci+r)}, {pr(TA)}{n1}")
            A(f"v_pk_fma_f32 {pr(TB)}, {pr(AR+r)}, {pr(ci+r)}, {pr(TB)}{n2}")
            A(f"v_cvt_pk_bf16_f32 v{Pr+r//2}, v{TA}, v{TA+1}")
            A(f"v_cvt_pk_bf16_f32 v{Pi+r//2}, v{TB}, v{TB+1}")
            fill(k)
    A("s_lshl_b32 s26, s3, 12")
    A(f"s_add_u32 s26, s26, {B_YST}")
    A("s_xor_b32 s27, s26, 0x1000")
    A("v_lshlrev_b32 v6, 4, v1")
    A("v_add_u32 v7, s27, v6")
    A("v_add_u32 v6, s26, v6")
    cmul_pack(TWc, TWs, False, 1)
    def exch(off):
        for g in range(2):
            A(f"ds_write_b128 v6, v[{Pr+4*g}:{Pr+4*g+3}] offset:{off+1024*g}")
            A(f"ds_write_b128 v6, v[{Pi+4*g}:{Pi+4*g+3}] offset:{off+2048+1024*g}")
        A("s_waitcnt lgkmcnt(0)")
        A("s_barrier")
        for g in range(2):
            A(f"ds_read_b128 v[{Or+4*g}:{Or+4*g+3}], v7 offset:{off+1024*g}")
            A(f"ds_read_b128 v[{Oi+4*g}:{Oi+4*g+3}], v7 offset:{off+2048+1024*g}")
    stamp(A, 13)
    vm.wait(["stale"])
    exch(B_EX1 - B_YST)
    for q in range(8): A(f"v_xor_b32 v{Pn+q}, 0x80008000, v{Pr+q}")
    for u in range(2):
        mf(AR, C64+4*u, Pr+4*u, u == 0, 1)
        mf(AI, C64+4*u, Pi+4*u, u == 0)
        mf(AR, S64+4*u, Pi+4*u, False, 1)
        mf(AI, S64+4*u, Pn+4*u, False)
    A("s_waitcnt lgkmcnt(0)")
    for q in range(8): A(f"v_xor_b32 v{On+q}, 0x80008000, v{Or+q}")
    for u in range(2):
        mf(AR, C64+8+4*u, Or+4*u, False)
        mf(AI, C64+8+4*u, Oi+4*u, False)
        mf(AR, S64+8+4*u, Oi+4*u, False)
        mf(AI, S64+8+4*u, On+4*u, False)
    fill(len(pend))
    stamp(A, 14)
    vm.wait(["wt"])
    W0, W1 = 8, 10
    for r in range(0, 16, 2):
        w = 24 + r
        A(f"v_lshlrev_b32 v{W0}, 16, v{w}")
        A(f"v_lshlrev_b32 v{W0+1}, 16, v{w+1}")
        A(f"v_and_b32 v{W1}, 0xffff0000, v{w}")
        A(f"v_and_b32 v{W1+1}, 0xffff0000, v{w+1}")
        A(f"v_pk_mul_f32 {pr(TA)}, {pr(AR+r)}, {pr(W0)}")
        A(f"v_pk_mul_f32 {pr(TB)}, {pr(AI+r)}, {pr(W0)}")
        A(f"v_pk_fma_f32 {pr(TA)}, {pr(AI+r)}, {pr(W1)}, {pr(TA)} neg_lo:[1,0,0] neg_hi:[1,0,0]")
        A(f"v_pk_fma_f32 {pr(TB)}, {pr(AR+r)}, {pr(W1)}, {pr(TB)}")
        A(f"v_cvt_pk_bf16_f32 v{Pr+r//2}, v{TA}, v{TA+1}")
        A(f"v_cvt_pk_bf16_f32 v{Pi+r//2}, v{TB}, v{TB+1}")
    exch(0)
    def ringfill(k): pass
    for q in range(8): A(f"v_xor_b32 v{Pn+q}, 0x80008000, v{Pi+q}")
    def mr(d, a, b, first, k=1):
        mf32(A, d, a, b, first); ringfill(k)
    for u in range(2):
        mr(AR, Pr+4*u, C64+4*u, u == 0)
        mr(AI, Pi+4*u, C64+4*u, u == 0, 0)
        mr(AR, Pn+4*u, S64+4*u, False)
        mr(AI, Pr+4*u, S64+4*u, False, 0)
    A("s_waitcnt lgkmcnt(0)")
    for q in range(8): A(f"v_xor_b32 v{On+q}, 0x80008000, v{Oi+q}")
    for u in range(2):
        mr(AR, Or+4*u, C64+8+4*u, False)
        mr(AI, Oi+4*u, C64+8+4*u, False, 0)
        mr(AR, On+4*u, S64+8+4*u, False)
        mr(AI, Or+4*u, S64+8+4*u, False, 0)
    stamp(A, 15)
    _fill = fill
    def cm2():
        n1 = " neg_lo:[1,0,0] neg_hi:[1,0,0]"
        for r in range(0, 16, 2):
            A(f"v_pk_mul_f32 {pr(TA)}, {pr(AR+r)}, {pr(T2c+r)}")
            A(f"v_pk_mul_f32 {pr(TB)}, {pr(AI+r)}, {pr(T2c+r)}")
            A(f"v_pk_fma_f32 {pr(TA)}, {pr(AI+r)}, {pr(T2s+r)}, {pr(TA)}{n1}")
            A(f"v_pk_fma_f32 {pr(TB)}, {pr(AR+r)}, {pr(T2s+r)}, {pr(TB)}")
            A(f"v_cvt_pk_bf16_f32 v{Pr+r//2}, v{TA}, v{TA+1}")
            A(f"v_cvt_pk_bf16_f32 v{Pi+r//2}, v{TB}, v{TB+1}")
            if r % 4 == 0: ringfill(1)
    cm2()
    for t in range(2):
        mr(AR, C32+4*t, Pr+4*t, t == 0)
        mr(AI, C32+4*t, Pi+4*t, t == 0)
        mr(AR, N32+4*t, Pi+4*t, False)
        mr(AI, S32+4*t, Pr+4*t, False, 0)
    A("v_lshlrev_b32 v4, 5, v2")
    A("v_lshl_add_u32 v4, v3, 4, v4")
    A("v_add_u32 v4, s24, v4")
    vm.wait(["X"])
    for j in range(4):
        for i in range(4):
            r = 4*j+i
            A(f"v_cvt_pk_bf16_f32 v{8+r}, v{AR+r}, v{AI+r}")
        A(f"buffer_store_dwordx4 v[{8+4*j}:{11+4*j}], v4, s[36:39], 0 offen offset:{j*1024} {SC}"); vm.issue("z")
    stamp(A, 16)
    A("s_barrier")
    A(f"s_branch {Ldone}")
    A(f"{Lskip}:")
    vm.q = q_skip
    for f in x_ops(C): f()
    vm.wait(["wts"])
    A("s_barrier")
    flag_store(C, FW, 8, 9)
    repack(C)
    if OPT.get("h2f", "a2") == "r":
        NF = 256 - NB_WG
        A(f"s_sub_u32 s26, s2, {NB_WG}")
        A("s_lshl_b32 s26, s26, 12")
        A("v_lshl_add_u32 v4, v0, 4, s26")
        srd(A, 32, 4, WS_H2P, SZ_H2P)
        for i in range(-(-SZ_H2P // (NF*4096))):
            if i: A(f"s_mov_b32 s26, {i*NF*4096}")
            A(f"buffer_store_dwordx4 a[12:15], v4, s[32:35], {'s26' if i else '0'} offen {SC}"); vm.issue("h2f")
    fw_ld(C); vm.issue("fw")
    vm.wait(["fw"])
    flag_check(C, "fw", 253, lambda: fw_ld(C))
    A("s_barrier")
    flag_store(C, FP, 8, 9)
    for f in m_ops(C): f()
    A(f"{Ldone}:")
    vm.q = []

def w13_ring(C):
    ops = []
    for s_ in range(NS0): ops += w13_ops(C, s_)
    return ops

def fh_offset(C, v, which):
    A = C.A
    A(f"v_min_u32 v{v}, {255 - NB_WG}, v0")
    A(f"v_add_u32 v{v}, {NB_WG + (which >> FSH)}, v{v}")
    A(f"v_lshlrev_b32 v{v}, {FSH}, v{v}")

def d_geometry(C):
    A = C.A
    A("s_and_b32 s40, s48, 1")
    A("s_lshl_b32 s40, s40, 3")
    A("s_and_b32 s41, s49, 7")
    A("s_add_u32 s40, s40, s41")
    A("s_lshr_b32 s41, s48, 1")
    A("s_lshl_b32 s41, s41, 2")
    A("s_lshr_b32 s42, s49, 3")
    A("s_add_u32 s41, s41, s42")
    A("s_mul_i32 s41, s41, 7")
    A("s_lshr_b32 s42, s3, 1")
    A("s_mul_i32 s42, s42, 221184")
    A("s_lshl_b32 s43, s41, 11")
    A("s_add_u32 s42, s42, s43")
    A("s_and_b32 s43, s3, 1")
    A("s_mul_i32 s43, s43, 7168")
    A("s_add_u32 s42, s42, s43")
    if DT:
        A("s_and_b32 s43, s41, 1")
        A("s_lshl_b32 s43, s43, 11")
        A("s_add_u32 s42, s42, s43")
    A("v_lshlrev_b32 v248, 4, v1")
    A("v_add_u32 v248, s42, v248")
    if DT:
        A("s_and_b32 s43, s41, s3")
        A("s_and_b32 s43, s43, 1")
        A("s_mul_i32 s43, s43, 14336")
        A("v_subrev_u32 v255, s43, v248")
    A("s_mul_i32 s42, s3, 7168")

def w13_ops(C, s, SRD=36):
    A = C.A; ops = []
    for i0, n in ((0, 4), (4, 3)):
        def setup(i0=i0):
            A(f"s_add_u32 m0, s42, {ring_buf(s)*SLOT + i0*1024}")
        def setup2(i0=i0):
            A(f"s_mov_b32 s43, {2*s*221184 + i0*1024}")
        ops += [setup, setup2]
        for i in range(n):
            def dma(i=i, i0=i0):
                va = 255 if DT and i0 + i >= 5 else 248
                A(f"buffer_load_dwordx4 v{va}, s[{SRD}:{SRD+3}], s43 offen offset:{i*1024} lds")
                C.vm.issue(("W", s))
            ops.append(dma)
    return ops

def phase_c(C):
    A = C.A; vm = C.vm
    A("s_lshl_b32 s20, s48, 3")
    A("s_and_b32 s21, s49, 7")
    A("s_add_u32 s20, s20, s21")
    A("s_lshr_b32 s21, s49, 3")
    GA, G2, SB = 32, 44, 56
    if "o" in OPT.get("tch", ""):
        srd(A, 36, 8, 0, SZ_X)
        A("v_mul_u32_u24 v4, 40960, v1")
        A("buffer_load_dword v8, v4, s[36:39], 0 offen")
    srd(A, 36, 4, WS_W13, SZ_W13)
    d_geometry(C)
    stamp(A, 17)
    A("s_lshr_b32 s22, s20, 5")
    A("s_lshl_b32 s22, s22, 12")
    A("s_lshl_b32 s23, s21, 10")
    A("s_add_u32 s22, s22, s23")
    A("s_and_b32 s23, s20, 31")
    A("s_lshl_b32 s23, s23, 5")
    A("s_add_u32 s22, s22, s23")
    A("v_and_b32 v4, 1, v1")
    A("v_bfe_u32 v5, v1, 1, 2")
    A("v_lshrrev_b32 v6, 3, v1")
    A("s_lshl_b32 s23, s3, 3")
    A("v_add_u32 v6, s23, v6")
    A("v_lshl_add_u32 v251, v5, 5, v6")
    A("v_lshlrev_b32 v251, 13, v251")
    A("v_lshl_add_u32 v251, v4, 4, v251")
    A("v_add_u32 v251, s22, v251")
    A(f"v_mul_u32_u24 v252, {4*ZP}, v4")
    A("v_mul_u32_u24 v253, 48, v6")
    A("v_add_u32 v252, v252, v253")
    A("v_lshl_add_u32 v252, v5, 2, v252")
    A(f"v_add_u32 v252, {Z_OFF}, v252")
    srd(A, 16, 4, WS_Z, SZ_COL)
    A("s_mov_b32 s24, 0x100000")
    A("s_mov_b32 s25, 0x200000")
    def z_loads():
        for m in range(3):
            A(f"buffer_load_dwordx4 v[{8+4*m}:{11+4*m}], v251, s[16:19], {['0','s24','s25'][m]} offen {LSC}")
        A(f"buffer_load_dword v254, v253, s[12:15], 0 offen {LSC}")
    def z_test():
        fill_test(A, range(8, 20), 4)
        A(f"v_cmp_ne_u32 s[50:51], s{STAG}, v254")
        A("s_or_b64 vcc, vcc, s[50:51]")
    ZE = int(OPT.get("ze", 0))
    if ZE:
        fh_offset(C, 253, FP)
        if ZE == 1: z_loads()
    BR, BI, TC, TS, C32, N32 = 92, 100, 108, 124, 140, 148
    t0, t1, t2, t3, t4 = 244, 245, 246, 247, 243
    pf, hf = 249, 250
    A(f"v_cvt_f32_u32 v{pf}, v2")
    A(f"v_cvt_f32_u32 v{hf}, v3")
    A(f"v_mul_f32 v4, {flit(1/20)}, v{pf}")
    A(f"v_mul_f32 v5, v4, v{hf}")
    A(f"v_mul_f32 v5, 4.0, v5")
    A(f"v_mov_b32 v6, 0")
    for st in range(2):
        for q in range(4):
            A(f"v_fmamk_f32 v{t0}, v4, {fk(8*st+q)}, v{5 if st == 0 else 6}")
            A(f"v_cos_f32 v{t1}, v{t0}")
            A(f"v_sin_f32 v{t2}, v{t0}")
            A(f"v_sub_f32 v{t3}, 0, v{t2}")
            A(f"v_cvt_pk_bf16_f32 v{BR+4*st+q}, v{t1}, v{t3}")
            A(f"v_cvt_pk_bf16_f32 v{BI+4*st+q}, v{t2}, v{t1}")
    A("v_cmp_eq_u32 vcc, 0, v3")
    for q in range(4):
        A(f"v_cndmask_b32 v{BR+4+q}, 0, v{BR+4+q}, vcc")
        A(f"v_cndmask_b32 v{BI+4+q}, 0, v{BI+4+q}, vcc")
    if ZE == 2: z_loads()
    A(f"v_mul_f32 v4, {flit(1/640)}, v{pf}")
    A(f"v_mul_f32 v5, v4, v{hf}")
    A(f"v_mul_f32 v5, 4.0, v5")
    for r in range(16):
        A(f"v_fmamk_f32 v{t0}, v4, {fk(8*(r//4)+r%4)}, v5")
        A(f"v_cos_f32 v{TC+r}, v{t0}")
        A(f"v_sin_f32 v{TS+r}, v{t0}")
    if ZE == 3: z_loads()
    A(f"v_mul_f32 v4, {flit(1/32)}, v{pf}")
    A(f"v_mul_f32 v5, v4, v{hf}")
    A(f"v_mul_f32 v5, 4.0, v5")
    for t in range(2):
        for p in range(4):
            for z in range(2):
                e = 2*p+z
                A(f"v_fmamk_f32 v{t0}, v4, {fk(16*t+8*(e>>2)+(e&3))}, v5")
                A(f"v_cos_f32 v{t1+z}, v{t0}")
                A(f"v_sin_f32 v{(t3, t4)[z]}, -v{t0}")
            A(f"v_cvt_pk_bf16_f32 v{C32+4*t+p}, v{t1}, v{t2}")
            A(f"v_cvt_pk_bf16_f32 v{N32+4*t+p}, v{t3}, v{t4}")
    XF = 68
    for q in range(12): A(f"v_accvgpr_read_b32 v{20+q}, a{q}")
    for r in range(2):
        for q in range(6):
            A(f"v_lshlrev_b32 v{XF+12*r+2*q}, 16, v{20+6*r+q}")
            A(f"v_and_b32 v{XF+12*r+2*q+1}, 0xffff0000, v{20+6*r+q}")
    A("v_cmp_eq_u32 vcc, 0, v3")
    for r in range(2):
        for k in range(8, 12): A(f"v_cndmask_b32 v{XF+12*r+k}, 0, v{XF+12*r+k}, vcc")
    A("v_mul_u32_u24 v7, 80, v2")
    A("v_lshl_add_u32 v7, v3, 4, v7")
    A(f"v_add_u32 v7, {M_OFF}, v7")
    stamp(A, 18)
    if ZE:
        Lp = C.lab("zp")
        if not CUM: A("s_mov_b32 s53, 0")
        A("s_waitcnt vmcnt(0)")
        z_test()
        A(f"s_cbranch_vccz {Lp}")
        retry_loop(C, z_loads, z_test)
        A(f"{Lp}:")
        vm.q = []
    else:
        fh_offset(C, 253, FP)
        retry_loop(C, z_loads, z_test)
    cnt(A, 2)
    for m in range(3):
        for i in range(4):
            A(f"ds_write_b32 v252, v{8+4*m+i} offset:{i*ZP + 16*m}")
    W2C = int(OPT.get("w2c", 3))
    if W2C:
        e_geometry(C)
        srd(A, 32, 4, WS_W2, SZ_W2P)
        C.w2 = w2_ops(C)
    A(f"s_mul_i32 s26, s3, {2*ZP}")
    A(f"s_add_u32 s26, s26, {Z_OFF}")
    A("v_mul_u32_u24 v4, 48, v2")
    A("v_add_u32 v4, s26, v4")
    A("v_lshl_add_u32 v5, v3, 4, v4")
    A("s_waitcnt lgkmcnt(0)")
    A("s_barrier")
    stamp(A, 19)
    FA_ = [[156, 160], [164, 168]]
    for row in range(2):
        A(f"ds_read_b128 v[{FA_[row][0]}:{FA_[row][0]+3}], v5 offset:{row*ZP}")
        A(f"ds_read_b128 v[{FA_[row][1]}:{FA_[row][1]+3}], v4 offset:{row*ZP+32}")
    for base, sec in ((GA, 0), (G2, 2), (SB, 1)):
        for q in range(3):
            A(f"ds_read_b128 v[{base+4*q}:{base+4*q+3}], v7 offset:{sec*2560 + 32*q}")
    ring = w13_ring(C)
    if W2C:
        extra = [C.w2.pop(0) for _ in range(6*W2C)]
        mode = OPT.get("w2m", "a")
        if mode == "a": ring = ring + extra
        else: ring = extra + ring
    SPREAD = W2C and OPT.get("w2s", "1") == "1"
    RATE = float(OPT.get("w2r", (28 + 5*W2C)/26)) if W2C and not SPREAD else 1
    credit = [0.0]
    def rs(k=1):
        if SPREAD: rf(k)
    def rf(k=1):
        n = 0
        credit[0] += k*RATE
        k = int(credit[0] + 1e-9); credit[0] -= k
        while ring and n < k:
            q0 = len(vm.q); ring.pop(0)()
            if len(vm.q) > q0: n += 1
    U = [[172, 188], [204, 220]]
    rf(2)
    for st in range(2):
        for row in range(2):
            if st == 0: A(f"s_waitcnt lgkmcnt({9 + (2 if row == 0 else 0)})")
            mf32(A, U[row][0], FA_[row][st], BR+4*st, st == 0)
            rf()
            mf32(A, U[row][1], FA_[row][st], BI+4*st, st == 0)
    A("v_cmp_eq_u32 vcc, 0, v3")
    P = [[156, 164], [8, 236]]
    TA, TB = 20, 22
    for row in range(2):
        ur, ui = U[row]; pr_, pi_ = P[row]
        for r in range(0, 16, 2):
            A(f"v_pk_mul_f32 {pr(TA)}, {pr(ur+r)}, {pr(TC+r)}")
            A(f"v_pk_mul_f32 {pr(TB)}, {pr(ui+r)}, {pr(TC+r)}")
            A(f"v_pk_fma_f32 {pr(TA)}, {pr(ui+r)}, {pr(TS+r)}, {pr(TA)} neg_lo:[1,0,0] neg_hi:[1,0,0]")
            A(f"v_pk_fma_f32 {pr(TB)}, {pr(ur+r)}, {pr(TS+r)}, {pr(TB)}")
            A(f"v_cvt_pk_bf16_f32 v{pr_+r//2}, v{TA}, v{TA+1}")
            A(f"v_cvt_pk_bf16_f32 v{pi_+r//2}, v{TB}, v{TB+1}")
            if r % 4 == 0: rf()
            else: rs()
    Y = [172, 204]
    for t in range(2):
        for row in range(2):
            mf32(A, Y[row], P[row][0]+4*t, C32+4*t, t == 0)
            rf()
        for row in range(2):
            mf32(A, Y[row], P[row][1]+4*t, N32+4*t, False)
    A("s_waitcnt lgkmcnt(0)")
    for k in range(8, 12): A(f"v_cndmask_b32 v{GA+k}, 0, v{GA+k}, vcc")
    for row in range(2):
        for k in range(0, 12, 2):
            A(f"v_pk_fma_f32 {pr(XF+12*row+k)}, {pr(GA+k)}, {pr(Y[row]+k)}, {pr(XF+12*row+k)}")
    X2P = 20
    for row in range(2):
        for k in range(6):
            A(f"v_cvt_pk_bf16_f32 v{X2P+6*row+k}, v{XF+12*row+2*k}, v{XF+12*row+2*k+1}")
    A(f"s_mul_i32 s26, s3, {2*STP}")
    A(f"s_add_u32 s26, s26, {ST_OFF}")
    A("v_mul_u32_u24 v4, 40, v2")
    A("v_lshl_add_u32 v4, v3, 3, v4")
    A("v_add_u32 v4, s26, v4")
    A("v_lshlrev_b32 v7, 3, v1")
    A(f"v_add_u32 v7, {SCRAP}, v7")
    A("v_add_u32 v6, 32, v4")
    A("v_cndmask_b32 v5, v7, v6, vcc")
    for row in range(2):
        for q in range(2):
            A(f"ds_write_b64 v4, {pr(X2P+6*row+2*q)} offset:{row*STP + 16*q}")
    A(f"v_add_u32 v6, {STP}, v6")
    A("v_cndmask_b32 v6, v7, v6, vcc")
    A(f"ds_write_b64 v5, {pr(X2P+4)}")
    A(f"ds_write_b64 v6, {pr(X2P+10)}")
    for r in range(2):
        for q in range(6):
            A(f"v_lshlrev_b32 v{XF+12*r+2*q}, 16, v{X2P+6*r+q}") if OPT.get("rx2") else None
            A(f"v_and_b32 v{XF+12*r+2*q+1}, 0xffff0000, v{X2P+6*r+q}") if OPT.get("rx2") else None
    S0, S1, T0, T1 = 32, 34, 36, 38
    def red64(a, b):
        ta, tb = T0, T1
        for ctl in ["quad_perm:[1,0,3,2]", "quad_perm:[2,3,0,1]", "row_ror:4", "row_ror:8"]:
            A(f"v_add_f32_dpp v{a}, v{a}, v{a} {ctl} row_mask:0xf bank_mask:0xf")
            A(f"v_add_f32_dpp v{b}, v{b}, v{b} {ctl} row_mask:0xf bank_mask:0xf")
        for sw in ("v_permlane16_swap_b32", "v_permlane32_swap_b32"):
            A(f"v_mov_b32 v{ta}, v{a}")
            A(f"v_mov_b32 v{tb}, v{b}")
            A(f"{sw} v{a}, v{ta}")
            A(f"{sw} v{b}, v{tb}")
            A(f"v_add_f32 v{a}, v{a}, v{ta}")
            A(f"v_add_f32 v{b}, v{b}, v{tb}")
    S = [S0, S1]
    for k in range(0, 12, 2):
        for row in range(2):
            x = XF+12*row+k
            if k == 0: continue
            if k == 2: A(f"v_pk_add_f32 {pr(S[row])}, {pr(x-2)}, {pr(x)}")
            else: A(f"v_pk_add_f32 {pr(S[row])}, {pr(S[row])}, {pr(x)}")
    for row in range(2): A(f"v_add_f32 v{S[row]}, v{S[row]}, v{S[row]+1}")
    rf(2)
    red64(S0, S1)
    rf(2)
    for row in range(2):
        A(f"v_mul_f32 v{S[row]}, {flit(1/640)}, v{S[row]}")
        A(f"v_cndmask_b32 v{S[row]+1}, 0, v{S[row]}, vcc")
    for k in range(0, 12, 2):
        for row in range(2):
            x = XF+12*row+k
            sel = "op_sel_hi:[1,0]" if k < 8 else "op_sel:[0,1] op_sel_hi:[1,1]"
            A(f"v_pk_add_f32 {pr(x)}, {pr(x)}, {pr(S[row])} {sel} neg_lo:[0,1] neg_hi:[0,1]")
        if k % 4 == 2: rs()
    V = [40, 42]
    for k in range(0, 12, 2):
        for row in range(2):
            x = XF+12*row+k
            if k == 0: A(f"v_pk_mul_f32 {pr(V[row])}, {pr(x)}, {pr(x)}")
            else: A(f"v_pk_fma_f32 {pr(V[row])}, {pr(x)}, {pr(x)}, {pr(V[row])}")
        if k % 4 == 2: rs()
    for row in range(2): A(f"v_add_f32 v{V[row]}, v{V[row]}, v{V[row]+1}")
    rf(2)
    red64(V[0], V[1])
    rf(2 if SPREAD else 99)
    for row in range(2):
        A(f"v_mov_b32 v{S[row]}, {flit(1e-5)}")
        A(f"v_fmac_f32 v{S[row]}, {flit(1/640)}, v{V[row]}")
    for row in range(2): A(f"v_rsq_f32 v{S[row]}, v{S[row]}")
    for k in range(0, 12, 2):
        for row in range(2):
            x = XF+12*row+k
            A(f"v_pk_mul_f32 {pr(x)}, {pr(x)}, {pr(S[row])} op_sel_hi:[1,0]")
        for row in range(2):
            x = XF+12*row+k
            A(f"v_pk_fma_f32 {pr(x)}, {pr(x)}, {pr(G2+k)}, {pr(SB+k)}")
        rs()
    H2P_ = 8
    for row in range(2):
        for k in range(6):
            A(f"v_cvt_pk_bf16_f32 v{H2P_+6*row+k}, v{XF+12*row+2*k}, v{XF+12*row+2*k+1}")
        rs()
    rf(99)
    HO = ST_H - ST_OFF
    for row in range(2):
        for q in range(2):
            A(f"ds_write_b64 v4, {pr(H2P_+6*row+2*q)} offset:{HO + row*STP + 16*q}")
    A(f"v_subrev_u32 v7, {HO}, v7")
    A(f"v_add_u32 v36, 32, v4")
    A(f"v_cndmask_b32 v37, v7, v36, vcc")
    A(f"v_add_u32 v36, {STP}, v36")
    A(f"v_cndmask_b32 v36, v7, v36, vcc")
    A(f"ds_write_b64 v37, {pr(H2P_+4)} offset:{HO}")
    A(f"ds_write_b64 v36, {pr(H2P_+10)} offset:{HO}")
    A("v_and_b32 v4, 7, v0")
    A("v_lshrrev_b32 v5, 3, v0")
    A(f"v_mul_u32_u24 v6, {STP}, v4")
    A("v_lshl_add_u32 v6, v5, 4, v6")
    A(f"v_add_u32 v6, {ST_H}, v6")
    A("s_lshl_b32 s26, s48, 4")
    A("s_lshr_b32 s27, s49, 1")
    A("s_add_u32 s26, s26, s27")
    A("s_mul_i32 s26, s26, 20480")
    A("s_and_b32 s27, s49, 1")
    A("s_lshl_b32 s27, s27, 7")
    A("s_add_u32 s26, s26, s27")
    A("v_lshlrev_b32 v5, 8, v5")
    A("v_lshl_add_u32 v5, v4, 4, v5")
    A("v_add_u32 v5, s26, v5")
    A("v_lshrrev_b32 v4, 5, v0")
    A(f"v_mul_u32_u24 v7, {STP}, v4")
    A("v_lshl_add_u32 v7, v2, 4, v7")
    A(f"v_add_u32 v7, {ST_OFF}, v7")
    A("s_lshl_b32 s26, s21, 9")
    A("s_add_u32 s26, s26, s20")
    A("s_mul_i32 s26, s26, 1280")
    A("v_mul_u32_u24 v4, 81920, v4")
    A("v_lshl_add_u32 v4, v2, 4, v4")
    A("v_add_u32 v252, s26, v4")
    A(f"v_add_u32 v253, {hex(OOB)}, v252")
    A("v_cmp_gt_u32 vcc, 16, v2")
    A("v_cndmask_b32 v253, v253, v252, vcc")
    A(f"v_add_u32 v37, {hex(OOB)}, v5")
    A("s_cmp_lt_u32 s3, 2")
    A("s_cselect_b64 vcc, -1, 0")
    A("v_cndmask_b32 v37, v37, v5, vcc")
    srd(A, 16, 4, WS_H2P, SZ_H2P)
    srd(A, 28, 4, WS_X2, SZ_X)
    A("s_waitcnt lgkmcnt(0)")
    A("s_barrier")
    for i in range(3):
        A(f"ds_read_b128 v[{8+4*i}:{11+4*i}], v6 offset:{512*i}")
    for i in range(3):
        dst = f"a[{X2A+4*i}:{X2A+4*i+3}]" if xlate() else f"v[{216+4*i}:{219+4*i}]"
        A(f"ds_read_b128 {dst}, v7 offset:{512*i}")
    A("s_movk_i32 s26, 8192")
    A("s_movk_i32 s27, 16384")
    for i in range(3):
        A(f"s_waitcnt lgkmcnt({5-i})")
        A(f"buffer_store_dwordx4 v[{8+4*i}:{11+4*i}], v{37 if i == 2 else 5}, s[16:19], {['0','s26','s27'][i]} offen {SC}"); vm.issue("st")
    stamp(A, 20)

D_LA = int(OPT.get("dla", 6))
RA = 8
RB = 10
def e_geometry(C):
    A = C.A
    A("s_lshr_b32 s44, s48, 1")
    A("s_lshl_b32 s44, s44, 3")
    A("s_and_b32 s45, s49, 7")
    A("s_add_u32 s44, s44, s45")
    A("s_and_b32 s45, s48, 1")
    A("s_lshl_b32 s45, s45, 2")
    A("s_lshr_b32 s46, s49, 3")
    A("s_add_u32 s45, s45, s46")
    A("s_mul_i32 s46, s3, 14")
    A("s_mul_i32 s47, s46, 40960")
    A("s_mul_i32 s51, s45, 5120")
    A("s_add_u32 s47, s47, s51")
    A("v_lshlrev_b32 v246, 4, v1")
    A("v_add_u32 v246, s47, v246")
    A("v_add_u32 v247, 4096, v246")

NST = 14
def xlate(): return OPT.get("xl", "1") == "1" and OPT.get("dp", "1") == "1"
X2A = 240
def wfrag(st, p):
    k = st*5 + p
    if k < 64: return ("a", 4*k)
    return ("v", 152 + 4*(k-64))
def w2_ops(C, SRD=32):
    A = C.A; ops = []
    for st in range(NST):
        def setup(st=st):
            A(f"s_mov_b32 s51, {st*40960}")
        ops.append(setup)
        for p in range(5):
            def ld(st=st, p=p):
                k, r = wfrag(st, p)
                if p < 4: A(f"buffer_load_dwordx4 {k}[{r}:{r+3}], v246, s[{SRD}:{SRD+3}], s51 offen offset:{1024*p}")
                else: A(f"buffer_load_dwordx4 {k}[{r}:{r+3}], v247, s[{SRD}:{SRD+3}], s51 offen")
                C.vm.issue(("W2", st))
            ld.mem = True
            ops.append(ld)
    return ops

def phase_d(C):
    A = C.A; vm = C.vm
    ACC, AR, BR = 8, 120, 152
    VL, VB = 232, 237
    e_geometry(C)
    srd(A, 32, 4, WS_W2, SZ_W2P)
    w2 = w2_ops(C)
    NPRE = int(OPT.get("w2pre", 36))
    for _ in range(NPRE): w2.pop(0)()
    A("s_lshl_b32 s20, s40, 3")
    A("s_lshl_b32 s21, s3, 1")
    A("s_add_u32 s20, s20, s21")
    A("v_lshlrev_b32 v4, 4, v1")
    A("s_mul_i32 s21, s20, 20480")
    A(f"v_add_u32 v{VB}, s21, v4")
    A(f"v_add_u32 v{VB+1}, 20480, v{VB}")
    for b in range(NS):
        A(f"v_add_u32 v{VL+b}, {b*SLOT}, v4") if b else A(f"v_mov_b32 v{VL}, v4")
    hh_setup(C)
    srd(A, 16, 4, WS_H2P, SZ_H2P)
    srd(A, 24, 4, WS_HH, SZ_HH)
    bstate = {}
    BACC = 239
    def b_regs(t): return range(BR + (t % RB)*8, BR + (t % RB)*8 + 8)
    def b_ops(t):
        ops = []
        if t % 4 == 0:
            ops.append(lambda t=t: A(f"s_movk_i32 s22, {t*1024}"))
        for rt in range(2):
            def f(t=t, rt=rt):
                if t >= RB: assert bstate.get(t-RB), ("B ring WAR", t)
                r = BR + (t % RB)*8 + 4*rt
                A(f"buffer_load_dwordx4 v[{r}:{r+3}], v{VB+rt}, s[16:19], s22 offen offset:{(t%4)*1024} {LSC}")
                vm.issue(("B", t))
            ops.append(f)
        return ops
    def b_reload(ts):
        def f():
            for t in ts:
                A(f"s_movk_i32 s54, {t*1024}")
                for rt in range(2):
                    r = BR + (t % RB)*8 + 4*rt
                    A(f"buffer_load_dwordx4 v[{r}:{r+3}], v{VB+rt}, s[16:19], s54 offen {LSC}")
        return f
    NB0 = 8
    NPOLL = 3
    def b_loads():
        b_reload(range(NPOLL))()
    def b_test():
        fill_test(A, [r for t in range(NPOLL) for r in b_regs(t)], BACC)
    SPEC = OPT.get("dspec", "1") == "1"
    if SPEC:
        retry_loop(C, b_loads, b_test, spec=b_reload(range(NPOLL, NB0)), tags=[("B", t) for t in range(NPOLL, NB0) for _ in range(2)])
    else:
        retry_loop(C, b_loads, b_test)
    cnt(A, 3)
    A("s_waitcnt lgkmcnt(0)")
    if NS == 4 and OPT.get("dbar", "1") == "1" or NS == 5 or True:
        A("s_barrier")
    stamp(A, 21)
    A("s_movk_i32 s22, 0")
    if not SPEC:
        for t in range(NPOLL, NB0):
            for f in b_ops(t): f()
    else:
        A(f"s_movk_i32 s22, {((NB0 - 1)//4)*4096}")
    XLATE = xlate()
    def x2_store(i):
        src = f"a[{X2A+4*i}:{X2A+4*i+3}]" if XLATE else f"v[{216+4*i}:{219+4*i}]"
        A(f"buffer_store_dwordx4 {src}, v{253 if i == 2 else 252}, s[28:31], 0 offen offset:{512*i} {SC}"); vm.issue("st")
    x2o = []
    for i in range(3):
        f = lambda i=i: x2_store(i)
        x2o.append(f)
    def mk(f):
        def g(): f()
        g.mem = True
        return g
    x2o = [mk(f) for f in x2o]
    if not XLATE:
        for f in x2o: f()
        x2o = []
    NF = 280; NSL = 10
    pending = []
    hhf = hhfill_ops(C)
    def lds_read(n):
        t, i = divmod(n, 14)
        s_ = t >> 1
        r = AR + (n % RA)*4
        A(f"ds_read_b128 v[{r}:{r+3}], v{VL + s_ % NS} offset:{((t & 1)*14 + i)*1024}")
    left = 77 - NPRE
    if OPT.get("dp", "1") == "0":
        W2_SCHED = {}
        for s_, cap in ((5, 5), (6, 5), (7, 5), (8, 13), (9, 13)):
            k = min(cap, left); W2_SCHED[s_] = k; left -= k
        def enter_slot(s_):
            if s_ >= NS: vm.wait([("W", s_)])
            A("s_barrier")
            if s_ >= 2 and s_ + NS - 2 < NSL:
                pending.extend(w13_ops(C, s_ + NS - 2))
            for _ in range(W2_SCHED.get(s_, 0)): pending.append(w2.pop(0))
            if s_ in (2, 3):
                for _ in range(5 if s_ == 2 else 4): pending.append(hhf.pop(0))
            if s_ == 7: flag_store(C, FX, 4, 5)
        def filler(k=1):
            for _ in range(k):
                if pending: pending.pop(0)()
        for t in range(NB0, RB): pending.extend(b_ops(t))
        for n in range(D_LA): lds_read(n)
        A(f"s_waitcnt lgkmcnt({D_LA-1})")
        for n in range(NF):
            t, i = divmod(n, 14)
            if i == 0 and NPOLL <= t + 1 < 20:
                vm.wait([("B", t+1)])
                pending[0:0] = check_ops(C, b_reload([t+1]), b_regs(t+1), BACC)
            a = AR + (n % RA)*4
            def mm(rt):
                c = ACC + (i*2 + rt)*4
                b = BR + (t % RB)*8 + 4*rt
                src = "0" if t == 0 else f"v[{c}:{c+3}]"
                A(f"v_mfma_f32_16x16x32_bf16 v[{c}:{c+3}], v[{a}:{a+3}], v[{b}:{b+3}], {src}")
            mm(0)
            nn = n + D_LA
            if nn < NF:
                if nn % 28 == 0: enter_slot(nn // 28)
                lds_read(nn)
            filler(1)
            mm(1)
            if i == 13:
                bstate[t] = True
                if t + RB < 20: pending.extend(b_ops(t + RB))
            if n + 1 < NF:
                rem = min(NF - 1 - (n+1), D_LA - 1)
                A(f"s_waitcnt lgkmcnt({rem})")
            filler(1)
    else:
        PER = int(OPT.get("dper", 2))
        sched = OPT.get("dsch", "G")
        vq = []
        def take(lst, k):
            out = []
            while lst and k > 0:
                f = lst.pop(0); out.append(f)
                if getattr(f, "mem", False): k -= 1
            return out
        w2a = [w2.pop(0) for _ in range(left)]
        SCH = {"B":  [(0, 4, 3), (0, 4, 0), (0, 0, 0), (0, 0, 0), (0, 0, 0), (3, 0, 0), (5, 0, 0), (5, 0, 0), (12, 0, 0), (12, 0, 0)],
               "C":  [(0, 0, 0), (0, 0, 0), (0, 0, 3), (0, 3, 0), (0, 3, 0), (0, 2, 0), (5, 0, 0), (5, 0, 0), (12, 0, 0), (12, 0, 0)],
               "D":  [(0, 0, 0), (0, 3, 3), (0, 2, 0), (0, 3, 0), (0, 0, 0), (3, 0, 0), (5, 0, 0), (5, 0, 0), (12, 0, 0), (12, 0, 0)],
               "E":  [(0, 0, 0), (0, 0, 0), (0, 0, 0), (0, 2, 1), (0, 2, 1), (0, 2, 1), (4, 2, 0), (6, 0, 0), (12, 0, 0), (12, 0, 0)],
               "F":  [(0, 0, 0), (4, 0, 0), (0, 0, 0), (0, 2, 1), (0, 2, 1), (0, 2, 1), (4, 2, 0), (6, 0, 0), (10, 0, 0), (10, 0, 0)],
               "G":  [(0, 2, 0), (0, 2, 0), (0, 1, 0), (0, 2, 0), (0, 1, 0), (0, 0, 2), (3, 0, 1), (5, 0, 0), (13, 0, 0), (13, 0, 0)],
               "H":  [(0, 1, 0), (0, 2, 0), (0, 1, 0), (0, 2, 0), (0, 1, 0), (0, 1, 1), (2, 0, 2), (6, 0, 0), (13, 0, 0), (13, 0, 0)],
               "I":  [(0, 2, 0), (0, 2, 0), (0, 2, 0), (0, 2, 0), (0, 0, 2), (3, 0, 1), (5, 0, 0), (5, 0, 0), (12, 0, 0), (12, 0, 0)],
               "J":  [(0, 0, 3), (0, 2, 0), (0, 2, 0), (0, 2, 0), (0, 2, 0), (3, 0, 0), (5, 0, 0), (5, 0, 0), (12, 0, 0), (12, 0, 0)],
               }[sched]
        FXS = int(OPT.get("fxs", {"B": 7, "C": 8, "D": 7, "E": 9, "F": 9, "G": 9, "H": 9, "I": 8, "J": 8}[sched]))
        def slot_ops(s_):
            ops = []
            if NS == 5 and s_ == 0: ops += w13_ops(C, 4)
            if s_ >= 2 and s_ + NS - 2 < NSL: ops += w13_ops(C, s_ + NS - 2)
            k2, kf, kx = SCH[s_]
            ops += take(x2o, kx)
            ops += take(hhf, kf)
            ops += take(w2a, k2)
            return ops
        def enter_slot(s_):
            if s_ >= NS0:
                assert vm.all.count(("W", s_)) == 7, ("ring slot not issued", s_)
                vm.wait([("W", s_)])
            if s_ == FXS:
                assert not hhf and not x2o, "fills pending"
                assert vm.all.count("HF") == 8
                vm.wait(["HF", "st"])
            A("s_barrier")
            if OPT.get("est") == "2": A(f"s_memtime s[{56+2*s_}:{57+2*s_}]")
            vq.extend(slot_ops(s_))
            if s_ == FXS:
                flag_store(C, FX, 4, 5)
        def vpop():
            q0 = vm.n_issued
            while vq and vm.n_issued == q0: vq.pop(0)()
        def filler():
            if pending: pending.pop(0)()
        for t in range(NB0, RB): vq.extend(b_ops(t))
        vq.extend(slot_ops(0))
        if OPT.get("est") == "2": A(f"s_memtime s[56:57]")
        for n in range(D_LA): lds_read(n)
        A(f"s_waitcnt lgkmcnt({D_LA-1})")
        for n in range(NF):
            t, i = divmod(n, 14)
            if i == 0 and NPOLL <= t + 1 < 20:
                assert vm.all.count(("B", t+1)) == 2, t
                vm.wait([("B", t+1)])
                pending[0:0] = check_ops(C, b_reload([t+1]), b_regs(t+1), BACC)
            a = AR + (n % RA)*4
            def mm(rt):
                c = ACC + (i*2 + rt)*4
                b = BR + (t % RB)*8 + 4*rt
                src = "0" if t == 0 else f"v[{c}:{c+3}]"
                A(f"v_mfma_f32_16x16x32_bf16 v[{c}:{c+3}], v[{a}:{a+3}], v[{b}:{b+3}], {src}")
            mm(0)
            nn = n + D_LA
            if nn < NF:
                if nn % 28 == 0: enter_slot(nn // 28)
                lds_read(nn)
            filler()
            mm(1)
            if i == 13:
                assert not pending
                bstate[t] = True
                if t + RB < 20: vq[0:0] = b_ops(t + RB)
            if n + 1 < NF:
                rem = min(NF - 1 - (n+1), D_LA - 1)
                A(f"s_waitcnt lgkmcnt({rem})")
            if n % PER == PER - 1 and vq: vpop()
            else: filler()
        pending = pending + vq + w2a
    stamp(A, 22)
    rest = pending + w2
    A("s_mul_i32 s21, s20, 55296")
    A("v_lshlrev_b32 v4, 4, v1")
    A(f"v_add_u32 v{VB}, s21, v4")
    A(f"v_add_u32 v{VB+1}, 55296, v{VB}")
    A("s_lshr_b32 s22, s41, 1")
    A("s_lshl_b32 s22, s22, 10")
    for f in rest: f()
    A("s_lshr_b32 s21, s44, 1")
    A("s_lshr_b32 s50, s21, 3")
    A("s_and_b32 s21, s21, 7")
    A("s_lshl_b32 s21, s21, 3")
    A("s_add_u32 s21, s21, s50")
    A("v_and_b32 v252, 3, v1")
    A("v_lshlrev_b32 v252, 6, v252")
    A("v_bfe_u32 v253, v1, 2, 2")
    A("v_lshl_add_u32 v252, v253, 1, v252")
    A("v_add_u32 v252, s21, v252")
    A("s_and_b32 s21, s44, 3")
    A("s_lshl_b32 s21, s21, 6")
    A("s_lshr_b32 s50, s44, 2")
    A("s_add_u32 s21, s21, s50")
    A("v_and_b32 v253, 7, v1")
    A("v_lshl_add_u32 v253, v253, 3, s21")
    A("v_cmp_gt_u32 vcc, 16, v1")
    A("v_cndmask_b32 v252, v253, v252, vcc")
    A(f"v_add_u32 v252, {FX >> FSH}, v252")
    A(f"v_lshlrev_b32 v252, {FSH}, v252")
    def fx_ld(): A(f"buffer_load_dword v253, v252, s[12:15], 0 offen {LSC}")
    fx_ld(); vm.issue("fx")
    T = 120
    NL = flit(-math.log2(math.e))
    A(f"v_mov_b32 v6, {NL}")
    def swiglu(ft, rt, dst):
        g = ACC + ((2*ft)*2 + rt)*4
        u = ACC + ((2*ft+1)*2 + rt)*4
        t = T + 4*rt
        for r in (0, 2): A(f"v_pk_mul_f32 {pr(t+r)}, {pr(g+r)}, {pr(6)} op_sel_hi:[1,0]")
        for r in range(4): A(f"v_exp_f32 v{t+r}, v{t+r}")
        for r in (0, 2): A(f"v_pk_mul_f32 {pr(g+r)}, {pr(g+r)}, {pr(u+r)}")
        for r in (0, 2): A(f"v_pk_add_f32 {pr(t+r)}, {pr(t+r)}, 1.0 op_sel_hi:[1,0]")
        for r in range(4): A(f"v_rcp_f32 v{t+r}, v{t+r}")
        for r in (0, 2): A(f"v_pk_mul_f32 {pr(g+r)}, {pr(g+r)}, {pr(t+r)}")
        A(f"v_cvt_pk_bf16_f32 v{dst}, v{g}, v{g+1}")
        A(f"v_cvt_pk_bf16_f32 v{dst+1}, v{g+2}, v{g+3}")
    Lodd, Ldone = C.lab("d_odd"), C.lab("d_done")
    A("v_lshlrev_b32 v4, 3, v1")
    A(f"v_sub_u32 v4, v{VB}, v4")
    A("v_add_u32 v5, 55296, v4")
    A("s_cmp_eq_u32 s41, 105")
    A(f"s_cselect_b32 s23, {hex(OOB)}, s22")
    A("s_bitcmp1_b32 s41, 0")
    A(f"s_cbranch_scc1 {Lodd}")
    OUTR = 128
    def variant(odd):
        groups = ([(0,)] + [(1,2),(3,4),(5,6)]) if odd else ([(0,1),(2,3),(4,5)] + [(6,)])
        for gi, grp in enumerate(groups):
            for rt in range(2):
                o = OUTR + 4*((2*gi + rt) % 4)
                if len(grp) == 2:
                    swiglu(grp[0], rt, o); swiglu(grp[1], rt, o+2)
                    so = "s23" if (odd and gi >= 2) else "s22"
                    A(f"buffer_store_dwordx4 v[{o}:{o+3}], v{VB+rt}, s[24:27], {so} offen offset:{1024*gi} {SC}")
                else:
                    swiglu(grp[0], rt, o)
                    A(f"buffer_store_dwordx2 v[{o}:{o+1}], v{4+rt}, s[24:27], s22 offen offset:{1024*gi + (512 if odd else 0)} {SC}")
    variant(False)
    A(f"s_branch {Ldone}")
    A(f"{Lodd}:")
    variant(True)
    A(f"{Ldone}:")
    A("s_waitcnt vmcnt(8)")
    Lfx = C.lab("fx")
    A(f"v_cmp_ne_u32 vcc, s{STAG}, v253")
    A(f"s_cbranch_vccnz {Lfx}")
    A(f"{Lfx}_b:")
    def tail():
        A(f"{Lfx}:")
        retry_loop(C, fx_ld, lambda: A(f"v_cmp_ne_u32 vcc, s{STAG}, v253"))
        A(f"s_branch {Lfx}_b")
    C.tail.append(tail)
    vm.q = []
    stamp(A, 23)

def phase_d2(C):
    A = C.A; vm = C.vm
    ACC, AR, BR = 8, 120, 152
    VL, VB = 232, 237
    NPRE = int(OPT.get("w2pre", 36))
    if getattr(C, "w2", None) is not None:
        w2 = C.w2
        for _ in range(NPRE - 6*int(OPT.get("w2c", 3))): w2.pop(0)()
    else:
        e_geometry(C)
        srd(A, 32, 4, WS_W2, SZ_W2P)
        w2 = w2_ops(C)
        for _ in range(NPRE): w2.pop(0)()
    A("s_lshl_b32 s20, s40, 3")
    A("s_lshl_b32 s21, s3, 1")
    A("s_add_u32 s20, s20, s21")
    A("v_lshlrev_b32 v4, 4, v1")
    A("s_mul_i32 s21, s20, 20480")
    A(f"v_add_u32 v{VB}, s21, v4")
    A(f"v_add_u32 v{VB+1}, 20480, v{VB}")
    for b in range(5):
        A(f"v_add_u32 v{VL+b}, {b*SLOT}, v4") if b else A(f"v_mov_b32 v{VL}, v4")
    hh_setup(C)
    srd(A, 16, 4, WS_H2P, SZ_H2P)
    srd(A, 24, 4, WS_HH, SZ_HH)
    bstate = {}
    BACC = 239
    def b_regs(t): return range(BR + (t % RB)*8, BR + (t % RB)*8 + 8)
    def b_ops(t):
        ops = []
        if t % 4 == 0:
            ops.append(lambda t=t: A(f"s_movk_i32 s22, {t*1024}"))
        for rt in range(2):
            def f(t=t, rt=rt):
                if t >= RB: assert bstate.get(t-RB), ("B ring WAR", t)
                r = BR + (t % RB)*8 + 4*rt
                A(f"buffer_load_dwordx4 v[{r}:{r+3}], v{VB+rt}, s[16:19], s22 offen offset:{(t%4)*1024} {LSC}")
                vm.issue(("B", t))
            ops.append(f)
        return ops
    def b_reload(ts):
        def f():
            for t in ts:
                A(f"s_movk_i32 s54, {t*1024}")
                for rt in range(2):
                    r = BR + (t % RB)*8 + 4*rt
                    A(f"buffer_load_dwordx4 v[{r}:{r+3}], v{VB+rt}, s[16:19], s54 offen {LSC}")
        return f
    NB0 = 8
    NPOLL = 3
    if OPT.get("dwait") == "1": A("s_waitcnt vmcnt(0)")
    retry_loop(C, b_reload(range(NPOLL)), lambda: fill_test(A, [r for t in range(NPOLL) for r in b_regs(t)], BACC),
               spec=b_reload(range(NPOLL, NB0)), tags=[("B", t) for t in range(NPOLL, NB0) for _ in range(2)])
    cnt(A, 3)
    A("s_waitcnt lgkmcnt(0)")
    A("s_barrier")
    stamp(A, 21)
    def mk(f):
        f.mem = True
        return f
    x2o = []
    for i in range(3):
        def x2_store(i=i):
            A(f"buffer_store_dwordx4 a[{X2A+4*i}:{X2A+4*i+3}], v{253 if i == 2 else 252}, s[28:31], 0 offen offset:{512*i} {SC}"); vm.issue("st")
        x2o.append(mk(x2_store))
    NF = 280; NT = 224
    def nt(n):
        if n < NT: return divmod(n, 14)
        k, r = divmod(n - NT, 8)
        return 16 + r//2, 2*k + (r & 1)
    pending = []
    hhf = hhfill_ops(C)
    def lds_read(n):
        t, i = nt(n)
        r = AR + (n % RA)*4
        A(f"ds_read_b128 v[{r}:{r+3}], v{VL + ring_buf(t >> 1)} offset:{((t & 1)*14 + i)*1024}")
    PER = int(OPT.get("dper", 2))
    vq = []
    def take(lst, k):
        out = []
        while lst and k > 0:
            f = lst.pop(0); out.append(f)
            if getattr(f, "mem", False): k -= 1
        return out
    SCH = {"A": [(0, 2, 0), (0, 2, 0), (0, 1, 0), (0, 2, 0), (0, 1, 1), (3, 0, 2), (7, 0, 0), (14, 0, 0), (14, 0, 0)],
           "B": [(0, 2, 0), (0, 1, 0), (0, 1, 0), (0, 2, 0), (0, 2, 0), (0, 0, 3), (7, 0, 0), (14, 0, 0), (14, 0, 0)],
           "C": [(0, 3, 0), (0, 0, 0), (0, 2, 0), (0, 2, 0), (0, 1, 1), (2, 0, 2), (7, 0, 0), (14, 0, 0), (10, 0, 0)],
           }[OPT.get("dsch2", "B")]
    S9 = int(OPT.get("s9", 1))
    def slot_ops(s_):
        ops = []
        if s_ == S9: ops += w13_ops(C, 9)
        if 2 <= s_ <= 6: ops += w13_ops(C, s_ + 2)
        k2, kf, kx = SCH[s_]
        ops += take(x2o, kx)
        ops += take(hhf, kf)
        if s_ < 7: assert NPRE//6*5 + NPRE % 6 + sum(q[0] for q in SCH[:s_+1]) <= 60
        ops += take(w2, k2)
        if OPT.get("xq") == "now2" and s_ >= 6: w2.clear()
        return ops
    def enter_slot(s_):
        if s_ >= NS0:
            for z in ((s_,) if s_ < 8 else (8, 9)):
                assert vm.all.count(("W", z)) == 7, ("ring slot not issued", z)
            vm.wait([("W", s_)] if s_ < 8 else [("W", 8), ("W", 9)])
        if s_ == 8:
            assert not hhf and not x2o, "fills pending"
            assert vm.all.count("HF") == 8
            vm.wait(["HF", "st"])
        A("s_barrier")
        if OPT.get("est") == "2": A(f"s_memtime s[{56+2*s_}:{57+2*s_}]")
        vq.extend(slot_ops(s_))
        if s_ == 8: flag_store(C, FX, 4, 5)
    def vpop():
        q0 = vm.n_issued
        while vq and vm.n_issued == q0: vq.pop(0)()
    T, OUTR = 176, 184
    fin = []
    def emit(x): fin.append(lambda x=x: A(x))
    def fin_setup():
        emit("s_mul_i32 s21, s20, 55296")
        emit("v_lshlrev_b32 v4, 4, v1")
        emit(f"v_add_u32 v{VB}, s21, v4")
        emit(f"v_add_u32 v{VB+1}, 55296, v{VB}")
        for x in ("s_lshr_b32 s21, s44, 1",
                  "s_lshr_b32 s50, s21, 3",
                  "s_and_b32 s21, s21, 7",
                  "s_lshl_b32 s21, s21, 3",
                  "s_add_u32 s21, s21, s50",
                  "v_and_b32 v252, 3, v1",
                  "v_lshlrev_b32 v252, 6, v252",
                  "v_bfe_u32 v253, v1, 2, 2",
                  "v_lshl_add_u32 v252, v253, 1, v252",
                  "v_add_u32 v252, s21, v252",
                  "s_and_b32 s21, s44, 3",
                  "s_lshl_b32 s21, s21, 6",
                  "s_lshr_b32 s50, s44, 2",
                  "s_add_u32 s21, s21, s50",
                  "v_and_b32 v253, 7, v1",
                  "v_lshl_add_u32 v253, v253, 3, s21",
                  "v_cmp_gt_u32 vcc, 16, v1",
                  "v_cndmask_b32 v252, v253, v252, vcc",
                  f"v_add_u32 v252, {FX >> FSH}, v252",
                  f"v_lshlrev_b32 v252, {FSH}, v252",
                  f"v_mov_b32 v6, {flit(-math.log2(math.e))}",
                  "v_lshlrev_b32 v4, 3, v1",
                  f"v_sub_u32 v4, v{VB}, v4",
                  "v_add_u32 v5, 55296, v4",
                  "s_lshr_b32 s22, s41, 1",
                  "s_lshl_b32 s22, s22, 10",
                  "s_bitcmp1_b32 s41, 0",
                  "s_cselect_b32 s21, 1, 6",
                  "s_cselect_b32 s23, 1024, 0",
                  "s_lshl_b32 s21, s21, 9",
                  "s_add_u32 s21, s21, s22",
                  "s_add_u32 s22, s22, s23",
                  "s_cmp_eq_u32 s41, 105",
                  f"s_cselect_b32 s23, {hex(OOB)}, s22"):
            emit(x)
    def fx_ld(): A(f"buffer_load_dword v253, v252, s[12:15], 0 offen {LSC}")
    def swiglu(ft, rt, dst):
        g = ACC + ((2*ft)*2 + rt)*4
        u = ACC + ((2*ft+1)*2 + rt)*4
        t = T + 4*rt
        if OPT.get("dpk", "0") == "0" and (ft < 6 or OPT.get("dpk6", "1") == "0"):
            for r in range(4): emit(f"v_mul_f32 v{t+r}, v6, v{g+r}")
            for r in range(4): emit(f"v_exp_f32 v{t+r}, v{t+r}")
            for r in range(4): emit(f"v_mul_f32 v{g+r}, v{g+r}, v{u+r}")
            for r in range(4): emit(f"v_add_f32 v{t+r}, 1.0, v{t+r}")
            for r in range(4): emit(f"v_rcp_f32 v{t+r}, v{t+r}")
            for r in range(4): emit(f"v_mul_f32 v{g+r}, v{g+r}, v{t+r}")
            emit(f"v_cvt_pk_bf16_f32 v{dst}, v{g}, v{g+1}")
            emit(f"v_cvt_pk_bf16_f32 v{dst+1}, v{g+2}, v{g+3}")
            return
        for r in (0, 2): emit(f"v_pk_mul_f32 {pr(t+r)}, {pr(g+r)}, {pr(6)} op_sel_hi:[1,0]")
        for r in range(4): emit(f"v_exp_f32 v{t+r}, v{t+r}")
        for r in (0, 2): emit(f"v_pk_mul_f32 {pr(g+r)}, {pr(g+r)}, {pr(u+r)}")
        for r in (0, 2): emit(f"v_pk_add_f32 {pr(t+r)}, {pr(t+r)}, 1.0 op_sel_hi:[1,0]")
        for r in range(4): emit(f"v_rcp_f32 v{t+r}, v{t+r}")
        for r in (0, 2): emit(f"v_pk_mul_f32 {pr(g+r)}, {pr(g+r)}, {pr(t+r)}")
        emit(f"v_cvt_pk_bf16_f32 v{dst}, v{g}, v{g+1}")
        emit(f"v_cvt_pk_bf16_f32 v{dst+1}, v{g+2}, v{g+3}")
    def pair_done(k):
        gi = k // 2
        for rt in range(2):
            o = OUTR + 4*((2*gi + rt) % 4)
            swiglu(k, rt, o + 2*(k & 1))
            if k & 1:
                def st(o=o, rt=rt, gi=gi):
                    if OPT.get("xp") == "hv" and gi < 2: return
                    A(f"buffer_store_dwordx4 v[{o}:{o+3}], v{VB+rt}, s[24:27], {'s23' if gi else 's22'} offen offset:{1024*gi} {SC}"); vm.issue("hh")
                fin.append(st)
            elif k == 6:
                def st(o=o, rt=rt):
                    A(f"buffer_store_dwordx2 v[{o}:{o+1}], v{4+rt}, s[24:27], s21 offen {SC}"); vm.issue("hh")
                fin.append(st)
    FXN = int(OPT.get("fxn", 250))
    def gap(n):
        if pending: pending.pop(0)()
        elif n >= NT:
            for _ in range(int(OPT.get("dfk", 3))):
                if fin: fin.pop(0)()
    for t in range(NB0, RB): vq.extend(b_ops(t))
    vq.extend(slot_ops(0))
    if OPT.get("est") == "2": A(f"s_memtime s[56:57]")
    for n in range(D_LA): lds_read(n)
    A(f"s_waitcnt lgkmcnt({D_LA-1})")
    for n in range(NF):
        t, i = nt(n)
        if n < NT and i == 0:
            for z in [t+1] + ([t+4] if t in (13, 14, 15) else []):
                if NPOLL <= z < 20:
                    assert vm.all.count(("B", z)) == 2, z
                    vm.wait([("B", z)])
                    pending[0:0] = check_ops(C, b_reload([z]), b_regs(z), BACC)
        if n == NT:
            assert not pending
            fin_setup()
        if n == FXN:
            def fxl(): fx_ld(); vm.issue("fx")
            fin.append(fxl)
        a = AR + (n % RA)*4
        def mm(rt):
            c = ACC + (i*2 + rt)*4
            b = BR + (t % RB)*8 + 4*rt
            src = "0" if t == 0 else f"v[{c}:{c+3}]"
            A(f"v_mfma_f32_16x16x32_bf16 v[{c}:{c+3}], v[{a}:{a+3}], v[{b}:{b+3}], {src}")
        mm(0)
        nn = n + D_LA
        if nn < NF:
            if nn % 28 == 0 and nn <= NT: enter_slot(nn // 28)
            lds_read(nn)
        gap(n)
        mm(1)
        if n < NT and i == 13:
            assert not pending
            bstate[t] = True
            if t + RB < 20: vq[0:0] = b_ops(t + RB)
        if n + 1 < NF:
            rem = min(NF - 1 - (n+1), D_LA - 1)
            A(f"s_waitcnt lgkmcnt({rem})")
        if n % PER == PER - 1 and vq: vpop()
        else: gap(n)
        if n >= NT and (n - NT) % 8 == 7: pair_done((n - NT)//8)
    stamp(A, 22)
    for f in vq + w2: f()
    while fin: fin.pop(0)()
    vm.wait(["fx"])
    Lfx = C.lab("fx")
    A(f"v_cmp_ne_u32 vcc, s{STAG}, v253")
    A(f"s_cbranch_vccnz {Lfx}")
    A(f"{Lfx}_b:")
    def tail():
        A(f"{Lfx}:")
        retry_loop(C, fx_ld, lambda: A(f"v_cmp_ne_u32 vcc, s{STAG}, v253"))
        A(f"s_branch {Lfx}_b")
    C.tail.append(tail)
    vm.q = []
    stamp(A, 23)

def phase_e(C):
    A = C.A; vm = C.vm
    ACC = 8
    RING = [88, 104, 120, 136, 176, 192, 208, 224]
    VH = 240
    VH2 = 248
    PROBE = OPT.get("epr", "0") == "1" and OPT.get("eq", "1") == "1"
    C.probes = [236, 237, 238][:int(OPT.get("npb", 3))]
    if PROBE:
        assert DT
        srd(A, 16, 4, WS_HH, SZ_HH)
        PL = int(OPT.get("epl", 4))
        A("v_lshrrev_b32 v7, 4, v1")
        A("s_lshl_b32 s20, s44, 2")
        A("v_add_u32 v7, s20, v7")
        A("v_mul_u32_u24 v7, 55296, v7")
        A("v_bfe_u32 v4, v1, 3, 1")
        A("v_mul_u32_u24 v4, 7168, v4")
        A("v_add_u32 v7, v7, v4")
        A("v_bfe_u32 v4, v1, 2, 1")
        A("v_lshl_add_u32 v7, v4, 9, v7")
        A(f"v_and_b32 v4, {PL - 1}, v1")
        A("v_lshl_add_u32 v7, v4, 7, v7")
        A("s_lshl_b32 s21, s46, 10")
        A("s_add_u32 s21, s21, 3072")
        A("v_add_u32 v7, s21, v7")
        A(f"buffer_load_dword v{C.probes[0]}, v7, s[16:19], 0 offen {LSC}")
    def probe(k):
        if PROBE and k < len(C.probes): A(f"buffer_load_dword v{C.probes[k]}, v7, s[16:19], 0 offen {LSC}")
    A("v_lshlrev_b32 v2, 4, v1")
    A("s_lshl_b32 s20, s44, 2")
    if OPT.get("xp") == "r0": A("s_mov_b32 s20, 0")
    if OPT.get("xp") == "r2": A("s_and_b32 s20, s20, 0x64")
    A("s_lshl_b32 s21, s46, 10")
    ROT = OPT.get("erot", "0") == "1" and OPT.get("eq", "1") == "1"
    if ROT:
        A("s_lshr_b32 s23, s49, 3")
        A("s_add_u32 s23, s23, s3")
        A("s_and_b32 s23, s23, 3")
    else:
        A("s_mov_b32 s23, s3")
    for q in range(4):
        A(f"s_add_u32 s22, s23, {q}")
        A("s_and_b32 s22, s22, 3")
        A("s_add_u32 s22, s22, s20")
        A("s_mul_i32 s22, s22, 55296")
        A("s_add_u32 s22, s22, s21")
        A(f"v_add_u32 v{VH+q}, s22, v2")
        A(f"v_lshl_add_u32 v{VH2+q}, v1, 3, s22")
    A("s_cmp_eq_u32 s3, 3")
    A(f"s_mov_b32 s47, {12*1024}")
    A(f"s_cselect_b32 s47, {hex(OOB)}, s47")
    probe(1)
    if not PROBE: srd(A, 16, 4, WS_HH, SZ_HH)
    srd(A, 24, 4, WS_X2, SZ_X)
    srd(A, 28, 4, WS_MOD, SZ_MOD)
    srd(A, 36, 8, 0, SZ_X)
    A("v_and_b32 v3, 15, v1")
    A("s_lshl_b32 s21, s44, 6")
    A("s_lshl_b32 s22, s23, 4")
    A("s_add_u32 s21, s21, s22")
    A("v_add_u32 v3, s21, v3")
    A("v_lshrrev_b32 v4, 8, v3")
    A("v_bfe_u32 v5, v3, 3, 3")
    A("v_lshl_add_u32 v4, v4, 3, v5")
    A("v_bfe_u32 v5, v3, 6, 2")
    A("v_and_b32 v6, 7, v3")
    A("v_lshl_add_u32 v5, v5, 3, v6")
    A("v_lshl_add_u32 v4, v5, 6, v4")
    A("v_mul_u32_u24 v244, 1280, v4")
    A("v_lshrrev_b32 v5, 4, v1")
    A("s_mul_i32 s21, s45, 160")
    A("v_lshl_add_u32 v244, v5, 3, v244")
    A("v_add_u32 v244, s21, v244")
    A("s_mul_i32 s21, s45, 320")
    A(f"s_add_u32 s21, s21, {5*2560}")
    A("v_lshlrev_b32 v245, 4, v5")
    A("v_add_u32 v245, s21, v245")
    HACC = 252
    probe(2)
    if OPT.get("eq", "1") == "1":
        e_qmajor(C, ACC, VH, VH2, HACC)
    else:
        e_stepmajor(C, ACC, RING, VH, VH2, HACC)
    L = C.lab("ep")
    A("s_or_b32 s50, s2, s3")
    A("s_cmp_lg_u32 s50, 0")
    A(f"s_cbranch_scc1 {L}")
    srd(A, 16, 4, WS_EPOCH, 128)
    A("v_mov_b32 v4, 0")
    A(f"v_mov_b32 v5, s{STAG}")
    A("s_mov_b64 exec, 1")
    A(f"buffer_store_dword v5, v4, s[16:19], 0 offen {SC}")
    A("s_mov_b64 exec, -1")
    A(f"{L}:")

def e_stepmajor(C, ACC, RING, VH, VH2, HACC):
    A = C.A; vm = C.vm
    def h_regs(st): return range(RING[st % 8], RING[st % 8] + 16)
    def h_reload(sts):
        def f():
            for st in sts:
                if st >= 12: A("s_mov_b32 s54, s47"); off = (st - 12)*1024
                else: A(f"s_movk_i32 s54, {st*1024}"); off = 0
                for q in range(4):
                    r = RING[st % 8] + 4*q
                    if st % 7 == 3:
                        for z in range(2):
                            A(f"buffer_load_dwordx2 v[{r+2*z}:{r+2*z+1}], v{VH2+q}, s[16:19], s54 offen offset:{off + 512*z} {LSC}")
                    else:
                        A(f"buffer_load_dwordx4 v[{r}:{r+3}], v{VH+q}, s[16:19], s54 offen offset:{off} {LSC}")
        return f
    def h_ops(st):
        ops = []
        if st % 4 == 0:
            ops.append((lambda st=st: A(f"s_movk_i32 s22, {st*1024}")) if st < 12 else (lambda: A("s_mov_b32 s22, s47")))
        for q in range(4):
            r = RING[st % 8] + 4*q
            if st % 7 == 3:
                for z in range(2):
                    def f(q=q, st=st, r=r, z=z):
                        A(f"buffer_load_dwordx2 v[{r+2*z}:{r+2*z+1}], v{VH2+q}, s[16:19], s22 offen offset:{(st%4)*1024 + 512*z} {LSC}")
                        vm.issue(("H", st))
                    ops.append(f)
            else:
                def f(q=q, st=st, r=r):
                    A(f"buffer_load_dwordx4 v[{r}:{r+3}], v{VH+q}, s[16:19], s22 offen offset:{(st%4)*1024} {LSC}")
                    vm.issue(("H", st))
                ops.append(f)
        return ops
    NPOLL = 3
    def h_loads():
        h_reload(range(NPOLL))()
    def h_test():
        fill_test(A, [r for st in range(NPOLL) for r in h_regs(st)], HACC)
    retry_loop(C, h_loads, h_test)
    cnt(A, 4)
    estamp(A, 0)
    A("s_barrier")
    A("s_movk_i32 s22, 0")
    for st in range(NPOLL, 8):
        for f in h_ops(st): f()
    pending = []
    for st in range(NST):
        if NPOLL <= st + 1 < NST:
            vm.wait([("H", st+1)])
            pending[0:0] = check_ops(C, h_reload([st+1]), h_regs(st+1), HACC)
        k = 0
        for p in range(5):
            for q in range(4):
                c = ACC + (q*5+p)*4
                src = "0" if st == 0 else f"v[{c}:{c+3}]"
                wk, wr = wfrag(st, p)
                h = RING[st % 8] + 4*q
                A(f"v_mfma_f32_16x16x32_bf16 v[{c}:{c+3}], {wk}[{wr}:{wr+3}], v[{h}:{h+3}], {src}")
                k += 1
                if pending: pending.pop(0)()
        while pending: pending.pop(0)()
        if st + 8 < NST: pending.extend(h_ops(st + 8))
        if st == 7:
            def xg():
                for p in range(5):
                    A(f"buffer_load_dwordx2 {pr(208+2*p)}, v244, s[24:27], 0 offen offset:{32*p} {LSC}")
                    vm.issue("XG")
                    A(f"buffer_load_dwordx4 v[{220+4*p}:{223+4*p}], v245, s[28:31], 0 offen offset:{64*p} {LSC}")
                    vm.issue("XG")
            pending.append(xg)
    while pending: pending.pop(0)()
    estamp(A, 1)
    X, G = 208, 220
    A("v_lshlrev_b32 v2, 4, v1")
    for q in range(1, 4):
        A(f"s_add_u32 s21, s3, {q}")
        A("s_and_b32 s21, s21, 3")
        A("s_mul_i32 s21, s21, 15360")
        A(f"s_add_u32 s21, s21, {(q-1)*5120}")
        A(f"v_add_u32 v6, s21, v2")
        for p in range(5):
            c = ACC + (q*5+p)*4
            A(f"ds_write_b128 v6, v[{c}:{c+3}] offset:{p*1024}")
    A("s_mul_i32 s21, s3, 15360")
    A("v_add_u32 v6, s21, v2")
    A("s_waitcnt lgkmcnt(0)")
    A("s_barrier")
    estamp(A, 2)
    R = 88
    for k in range(3):
        for p in range(5):
            r = R + k*20 + 4*p
            A(f"ds_read_b128 v[{r}:{r+3}], v6 offset:{k*5120 + p*1024}")
    for k in range(3):
        A(f"s_waitcnt lgkmcnt({5*(2-k)})")
        for r in range(0, 20, 2):
            A(f"v_pk_add_f32 {pr(ACC+r)}, {pr(ACC+r)}, {pr(R+k*20+r)}")
    vm.wait(["XG"])
    for p in range(5):
        for z in range(2):
            A(f"v_lshlrev_b32 v4, 16, v{X+2*p+z}")
            A(f"v_and_b32 v5, 0xffff0000, v{X+2*p+z}")
            A(f"v_pk_fma_f32 {pr(4)}, {pr(G+4*p+2*z)}, {pr(ACC+4*p+2*z)}, {pr(4)}")
            A(f"v_cvt_pk_bf16_f32 v{88+2*p+z}, v4, v5")
        A(f"buffer_store_dwordx2 {pr(88+2*p)}, v244, s[36:39], 0 offen offset:{32*p} {OPT.get('osc','').replace('+',' ')}")
    estamp(A, 3)

def e_qmajor(C, ACC, VH, VH2, HACC):
    A = C.A; vm = C.vm
    NR = int(OPT.get("enr", 32))
    NJ = 4*NST
    QO = (1, 2, 3, 0)
    RED = SLOT if DT else 2*SLOT if NS == 4 else 0
    def slot(j):
        i = j % NR
        return 88 + 4*i if i < 16 else 176 + 4*(i - 16)
    def regs(j): return list(range(slot(j), slot(j) + 4))
    A("s_movk_i32 s20, 4096")
    A("s_movk_i32 s21, 8192")
    state = dict(hi=0)
    def load(j, track=True):
        q, st = QO[j // NST], j % NST
        so = ["0", "s20", "s21", "s47"][st // 4]
        r = slot(j)
        if st % 7 == 3:
            for z in range(2):
                A(f"buffer_load_dwordx2 v[{r+2*z}:{r+2*z+1}], v{VH2+q}, s[16:19], {so} offen offset:{(st % 4)*1024 + 512*z} {LSC}")
                if track: vm.issue(("H", j))
        else:
            A(f"buffer_load_dwordx4 v[{r}:{r+3}], v{VH+q}, s[16:19], {so} offen offset:{(st % 4)*1024} {LSC}")
            if track: vm.issue(("H", j))
        if track: state["hi"] = j + 1
    def nloads(js): return sum(2 if (j % NST) % 7 == 3 else 1 for j in js)
    def check(j):
        if OPT.get("xp") in ("hv", "nc"): return []
        L = C.lab("ex")
        rr = regs(j) + regs(j+1)
        ops = max_ops(A, rr, HACC)
        ops.append(lambda: A(f"v_cmp_eq_u32 vcc, -1, v{HACC}"))
        def br():
            A(f"s_cbranch_vccnz {L}")
            A(f"{L}_b:")
            hi = state["hi"]
            def tail():
                A(f"{L}:")
                q = vm.q
                retry_loop(C, lambda: [load(k, False) for k in range(j, hi)], lambda: fill_test(A, rr, HACC))
                if CNT and PROF and OPT.get("crep"):
                    A("s_add_u32 s70, s70, 1")
                    A("s_add_u32 s69, s69, s53")
                vm.q = q
                A(f"s_branch {L}_b")
            C.tail.append(tail)
        ops.append(br)
        return ops
    if CNT and PROF and OPT.get("crep"):
        A("s_mov_b32 s70, 0")
        A("s_mov_b32 s69, 0")
    def lds_addr():
        A("v_lshlrev_b32 v2, 4, v1")
        for q in range(1, 4):
            A(f"s_add_u32 s22, s3, {q}")
            A("s_and_b32 s22, s22, 3")
            A("s_mul_i32 s22, s22, 15360")
            A(f"s_add_u32 s22, s22, {RED + (q-1)*5120}")
            A(f"v_add_u32 v{252+q}, s22, v2")
        A("s_mul_i32 s22, s3, 15360")
        A(f"s_add_u32 s22, s22, {RED}")
        A("v_add_u32 v6, s22, v2")
    NP = int(OPT.get("enp", 4))
    if OPT.get("epr", "0") == "1":
        NPB = len(C.probes)
        L = C.lab("pb")
        if not CUM: A("s_mov_b32 s53, 0")
        A(f"{L}:")
        for k, r in enumerate(C.probes):
            A(f"s_waitcnt vmcnt({NPB - 1})")
            A(f"v_cmp_eq_u32 vcc, -1, v{r}")
            A(f"s_cbranch_vccz {L}_x")
            A(f"buffer_load_dword v{r}, v7, s[16:19], 0 offen {LSC}")
        A("s_add_u32 s53, s53, 1")
        A(f"s_cmp_lt_u32 s53, {RETRY_LIMIT}")
        A(f"s_cbranch_scc1 {L}")
        A(f"{L}_x:")
        cnt(A, 4)
        estamp(A, 0)
        vm.q = ["stale"]*(NPB - 1)
        NP = 0
        for j in range(NR): load(j)
        lds_addr()
        vm.wait([("H", 0), ("H", 1)])
        for f in check(0): f()
    else:
        NSP = int(OPT.get("ens", 4))
        if OPT.get("ewait", "1") == "1": A("s_waitcnt vmcnt(0)")
        tags = [("H", j) for j in range(NP, NSP) for _ in range(nloads([j]))]
        retry_loop(C, lambda: [load(j, False) for j in range(NP)],
                   lambda: fill_test(A, [r for j in range(NP) for r in regs(j)], HACC),
                   spec=lambda: [load(j, False) for j in range(NP, NSP)], tags=tags)
        cnt(A, 4)
        estamp(A, 0)
        state["hi"] = NSP
        for j in range(NSP, NR): load(j)
        lds_addr()
    X, G = 208, 220
    assert NR == 32
    def xg_ops():
        ops = []
        for p in range(5):
            def fx(p=p):
                A(f"buffer_load_dwordx2 {pr(X+2*p)}, v244, s[24:27], 0 offen offset:{32*p} {LSC}"); vm.issue("XG")
            def fg(p=p):
                A(f"buffer_load_dwordx4 v[{G+4*p}:{G+4*p+3}], v245, s[28:31], 0 offen offset:{64*p} {LSC}"); vm.issue("XG")
            ops += [fx, fg]
        return ops
    P = ACC + 20
    pending = []; mem = []
    gaps_left = [5*NJ]
    def gap():
        gaps_left[0] -= 1
        k = 2 if len(pending) > BUSY[0] else 1
        for _ in range(k):
            if pending: pending.pop(0)()
    BUSY = [1000]
    for j in range(NJ):
        qi, st = divmod(j, NST)
        q = QO[qi]
        if OPT.get("est") == "3" and j % 6 == 0: A(f"s_memtime s[{56+2*(j//6)}:{57+2*(j//6)}]")
        if j % 2 == 0 and j + 2 < NJ and j + 2 >= NP:
            assert state["hi"] >= j + 4
            vm.wait([("H", j+2), ("H", j+3)])
            pending[0:0] = check(j + 2)
        if st == 0 and qi > 0:
            qp = QO[qi-1]
            for p in range(5):
                c = ACC + (qp*5+p)*4
                pending.append(lambda c=c, p=p, qp=qp: A(f"ds_write_b128 v{252+qp}, v[{c}:{c+3}] offset:{p*1024}"))
        if j == 32: mem.extend(xg_ops())
        if j == 44:
            assert not any(getattr(f, "w", 0) for f in pending)
            A("s_waitcnt lgkmcnt(0)")
            A("s_barrier")
            estamp(A, 2)
            for k in range(3):
                for p in range(5):
                    r = P + k*20 + 4*p
                    pending.append(lambda r=r, k=k, p=p: A(f"ds_read_b128 v[{r}:{r+3}], v6 offset:{k*5120 + p*1024}"))
            pending.append(lambda: A("s_waitcnt lgkmcnt(5)"))
            for r in range(20):
                pending.append(lambda r=r: A(f"v_add_f32 v{P+r}, v{P+r}, v{P+20+r}"))
            pending.append(lambda: A("s_waitcnt lgkmcnt(0)"))
            for r in range(20):
                pending.append(lambda r=r: A(f"v_add_f32 v{P+r}, v{P+r}, v{P+40+r}"))
            BUSY[0] = 0
        for p in range(5):
            c = ACC + (q*5+p)*4
            src = "0" if st == 0 else f"v[{c}:{c+3}]"
            wk, wr = wfrag(st, p)
            h = slot(j)
            A(f"v_mfma_f32_16x16x32_bf16 v[{c}:{c+3}], {wk}[{wr}:{wr+3}], v[{h}:{h+3}], {src}")
            if p == 0 and j >= 1 and j - 1 + NR < NJ and j - 1 + NR >= state["hi"]:
                load(j - 1 + NR)
            elif p in (0, 2) and mem:
                mem.pop(0)()
            else:
                gap()
        if st == NST - 1 and qi < 3 or j == 43:
            pass
        if j == 43:
            while pending: pending.pop(0)()
    estamp(A, 1)
    while pending: pending.pop(0)()
    vm.wait(["XG"])
    for p in range(5):
        for z in range(2):
            r = 4*p + 2*z
            A(f"v_pk_add_f32 {pr(ACC+r)}, {pr(ACC+r)}, {pr(P+r)}")
            A(f"v_lshlrev_b32 v4, 16, v{X+2*p+z}")
            A(f"v_and_b32 v5, 0xffff0000, v{X+2*p+z}")
            A(f"v_pk_fma_f32 {pr(4)}, {pr(G+r)}, {pr(ACC+r)}, {pr(4)}")
            A(f"v_cvt_pk_bf16_f32 v{88+2*p+z}, v4, v5")
        A(f"buffer_store_dwordx2 {pr(88+2*p)}, v244, s[36:39], 0 offen offset:{32*p} {OPT.get('osc','').replace('+',' ')}")
    estamp(A, 3)

def fused(name=MAIN):
    K = Kern(name, 256, LDS_TOTAL, vgpr=256, agpr=256)
    A = K.A
    C = Ctx(A)
    phase0(C)
    phase_a(C)
    phase_b(C)
    phase_c(C)
    (phase_d2 if DT else phase_d)(C)
    phase_e(C)
    if DG:
        L = "dg_end"
        A("s_or_b32 s50, s44, s45")
        A("s_or_b32 s50, s50, s3")
        A("s_cmp_lg_u32 s50, 0")
        A(f"s_cbranch_scc1 {L}")
        A("s_load_dwordx2 s[90:91], s[0:1], 80")
        A("s_waitcnt vmcnt(0) lgkmcnt(0)")
        A("v_mov_b32 v4, 0")
        A("global_load_dwordx4 v[8:11], v4, s[90:91] sc0 sc1")
        A("global_load_dwordx4 v[12:15], v4, s[90:91] offset:16 sc0 sc1")
        A("s_waitcnt vmcnt(0)")
        A("v_readfirstlane_b32 s96, v10")
        A("v_readfirstlane_b32 s97, v88")
        A("s_nop 4")
        A("s_and_b32 s97, s97, 0x7f80")
        A("s_cmp_eq_u32 s97, 0x7f80")
        A("s_cselect_b32 s97, 1, 0")
        A("s_or_b32 s97, s97, s96")
        A("s_cmp_eq_u32 s97, 0")
        A(f"s_cbranch_scc1 {L}")
        A("v_readfirstlane_b32 s64, v15")
        A("v_readfirstlane_b32 s65, v11")
        A("s_nop 4")
        A("s_and_b32 s70, s64, 63")
        A("s_and_b32 s71, s65, 255")
        A("s_cmp_eq_u32 s96, 0")
        A("s_cselect_b32 s70, 99, s70")
        A("s_min_u32 s72, s96, 255")
        def sample(dst, base, stride, n, packed, word_stride=None):
            A(f"s_mov_b32 s60, {stride}")
            A("v_mul_lo_u32 v5, v1, s60")
            A(f"v_add_u32 v5, {hex(base)}, v5")
            A(f"s_mov_b32 s{dst}, 0")
            for k in range(n):
                A(f"global_load_dword v16, v5, s[4:5] sc0 sc1")
                A(f"v_add_u32 v5, {hex(64*stride)}, v5")
                A("s_waitcnt vmcnt(0)")
                A("v_and_b32 v17, 0x7f800000, v16")
                A("v_cmp_eq_u32 vcc, 0x7f800000, v17")
                if packed:
                    A("s_mov_b64 s[62:63], vcc")
                    A("v_and_b32 v17, 0x7f80, v16")
                    A("v_cmp_eq_u32 vcc, 0x7f80, v17")
                    A("s_or_b64 vcc, vcc, s[62:63]")
                A("s_bcnt1_i32_b64 s61, vcc")
                A(f"s_add_u32 s{dst}, s{dst}, s61")
            A(f"s_min_u32 s{dst}, s{dst}, 255")
        sample(73, WS_MODG, 8, 20, False)
        sample(74, WS_Y1 + 4096, BLK, 4, True)
        sample(75, WS_WT + 1024, 8192, 5, True)
        sample(76, WS_Z + 1024, 8192, 5, True)
        sample(77, WS_W13 + 512, 17280, 4, True)
        sample(78, WS_W2 + 512, 8640, 4, True)
        A("s_min_u32 s77, s77, 15"); A("s_min_u32 s78, s78, 15"); A("s_lshl_b32 s77, s77, 4"); A("s_or_b32 s77, s77, s78")
        for k in range(8): A(f"v_cvt_f32_u32 v{8+k}, s{70+k}")
        for k in range(4):
            A(f"v_lshrrev_b32 v{8+2*k}, 16, v{8+2*k}")
            A(f"v_and_b32 v{9+2*k}, 0xffff0000, v{9+2*k}")
            A(f"v_or_b32 v{20+k}, v{8+2*k}, v{9+2*k}")
        A("v_mov_b32 v4, 0")
        A("s_mov_b64 exec, 1")
        A("global_store_dwordx4 v4, v[20:23], s[8:9]")
        A("s_mov_b64 exec, -1")
        A(f"{L}:")
    A("all_end:")
    A("s_endpgm")
    for f in C.tail: f()
    if DG:
        for i, x in enumerate(SITES): print("site", i, x)
    A("code_end:")
    return K
```
